```python
import torch

def _softmax(x, axis=-1):
    return torch.softmax(x, dim=axis)

def _gelu(x):
    return torch.nn.functional.gelu(x, approximate='tanh')

def _silu(x):
    return torch.nn.functional.silu(x)

def _sigmoid(x):
    return torch.sigmoid(x)

def _layernorm(x, axis=-1, eps=1e-05):
    m = x.mean(dim=axis, keepdim=True)
    v = x.var(dim=axis, keepdim=True, unbiased=False)
    return (x - m) / torch.sqrt(v + eps)

def _scatter_add(tgt, idx, src, axis=0):
    return tgt.clone().index_add_(axis, idx, src)

def _segment_sum(src, seg, n):
    out = torch.zeros((n,) + src.shape[1:], dtype=src.dtype)
    return out.index_add_(0, seg, src)

def _pad(x, pw):
    flat = tuple((v for pair in reversed(pw) for v in pair))
    return torch.nn.functional.pad(x, flat)
kernel_name = 'parallel_sum__memory_aug_recurrent_mem_tr__glu_gated_geglu__prompt'

def setup_inputs():

    _w = lambda a: (lambda t: t.to(torch.bfloat16) if t.is_floating_point() else t)(torch.as_tensor(a))

    def _A_setup():
        B, S, Dm = (1, 2048, 1024)
        H, Dh = (32, 128)
        M, seg = (8, 32)
        seg = min(seg, S)
        S = S // seg * seg
        return {'x': _w((lambda *s: torch.randn(*s, dtype=torch.bfloat16) * 0.05)(B, S, Dm)), 'mem0': _w((lambda *s: torch.randn(*s, dtype=torch.bfloat16) * 0.2)(B, M, Dm)), 'Wq': _w((lambda *s: torch.randn(*s, dtype=torch.bfloat16) * 1.6)(Dm, H, Dh) * Dm ** (-0.5)), 'Wk': _w((lambda *s: torch.randn(*s, dtype=torch.bfloat16) * 1.6)(Dm, H, Dh) * Dm ** (-0.5)), 'Wv': _w((lambda *s: torch.randn(*s, dtype=torch.bfloat16) * 0.2)(Dm, H, Dh) * Dm ** (-0.5)), 'Wo': _w((lambda *s: torch.randn(*s, dtype=torch.bfloat16) * 0.2)(H, Dh, Dm) * (H * Dh) ** (-0.5)), 'seg_len': seg}
    _A_in = _A_setup()

    def _B_setup():
        B, S, Dm, Df = (1, 2048, 1024, 3584)
        return {'x': _w((lambda *s: torch.randn(*s, dtype=torch.bfloat16) * 0.05)(B, S, Dm)), 'w_gate': _w((lambda *s: torch.randn(*s, dtype=torch.bfloat16) * 0.4)(Dm, Df) * Dm ** (-0.5)), 'w_up': _w((lambda *s: torch.randn(*s, dtype=torch.bfloat16) * 0.4)(Dm, Df) * Dm ** (-0.5)), 'w_down': _w((lambda *s: torch.randn(*s, dtype=torch.bfloat16) * 0.4)(Df, Dm) * Df ** (-0.5))}
    _B_in = _B_setup()
    return {'A_x': _A_in['x'], 'A_mem0': _A_in['mem0'], 'A_Wq': _A_in['Wq'], 'A_Wk': _A_in['Wk'], 'A_Wv': _A_in['Wv'], 'A_Wo': _A_in['Wo'], 'A_seg_len': _A_in['seg_len'], 'B_x': _B_in['x'], 'B_w_gate': _B_in['w_gate'], 'B_w_up': _B_in['w_up'], 'B_w_down': _B_in['w_down']}

def reference(A_x, A_mem0, A_Wq, A_Wk, A_Wv, A_Wo, A_seg_len, B_x, B_w_gate, B_w_up, B_w_down):

    def _A_ref(x, mem0, Wq, Wk, Wv, Wo, seg_len):
        B, S, Dm = x.shape
        H, Dh = (Wq.shape[1], Wq.shape[2])
        M = mem0.shape[1]
        scale = Dh ** (-0.5)
        n_seg = S // seg_len
        L = M + seg_len
        idx = torch.arange(L)
        mask = (idx[:, None] < M) | (idx[:, None] >= idx[None, :])
        mem = mem0
        outs = []
        for s in range(n_seg):
            xs = x[:, s * seg_len:(s + 1) * seg_len, :].clone()
            h = torch.concatenate([mem, xs], axis=1)
            q = torch.einsum('btd,dhe->bhte', h, Wq)
            k = torch.einsum('btd,dhe->bhte', h, Wk)
            v = torch.einsum('btd,dhe->bhte', h, Wv)
            scores = torch.einsum('bhqe,bhke->bhqk', q, k) * scale
            scores = torch.where(mask[None, None], scores, -1000000000.0)
            p = _softmax(scores, axis=-1)
            o = torch.einsum('bhqk,bhke->bhqe', p, v)
            o = torch.einsum('bhte,hed->btd', o, Wo)
            mem = o[:, :M, :].clone()
            outs.append(o[:, M:, :])
        return torch.concatenate(outs, axis=1)

    def _B_ref(x, w_gate, w_up, w_down):
        g = torch.einsum('bsd,df->bsf', x, w_gate)
        u = torch.einsum('bsd,df->bsf', x, w_up)
        h = _gelu(g) * u
        return torch.einsum('bsf,fd->bsd', h, w_down)
    x = A_x
    xn = _layernorm(x, axis=-1)
    return x + _A_ref(xn, A_mem0, A_Wq, A_Wk, A_Wv, A_Wo, A_seg_len) + _B_ref(xn, B_w_gate, B_w_up, B_w_down)
```

```python
class Asm:
    def __init__(self):
        self.lines = []
        self.uid = 0
    def __call__(self, s=""):
        for l in s.split("\n"):
            self.lines.append("    " + l.strip() if l.strip() and not l.strip().endswith(":") else l.strip())
    def raw(self, s):
        self.lines.append(s)
    def label(self, name):
        self.lines.append(name + ":")
    def newlabel(self, base="L"):
        self.uid += 1
        return f"{base}_{self.uid}"
    def text(self):
        return "\n".join(self.lines) + "\n"

def vr(a, n=1):
    return f"v{a}" if n == 1 else f"v[{a}:{a+n-1}]"
def ar(a, n=1):
    return f"a{a}" if n == 1 else f"a[{a}:{a+n-1}]"
def sr(a, n=1):
    return f"s{a}" if n == 1 else f"s[{a}:{a+n-1}]"

def kernel_header(a, name):
    a.raw(f".globl {name}")
    a.raw(".p2align 8")
    a.raw(f".type {name},@function")
    a.raw(f"{name}:")

def kernel_desc(a, name, vgpr, accum, sgpr=102, kernarg=112):
    a.raw(".p2align 6")
    a.raw(f".amdhsa_kernel {name}")
    a.raw(f"  .amdhsa_next_free_vgpr {vgpr}")
    a.raw(f"  .amdhsa_next_free_sgpr {sgpr}")
    a.raw(f"  .amdhsa_accum_offset {accum}")
    a.raw("  .amdhsa_group_segment_fixed_size 0")
    a.raw(f"  .amdhsa_kernarg_size {kernarg}")
    a.raw("  .amdhsa_user_sgpr_count 2")
    a.raw("  .amdhsa_user_sgpr_kernarg_segment_ptr 1")
    a.raw("  .amdhsa_system_sgpr_workgroup_id_x 1")
    a.raw("  .amdhsa_float_denorm_mode_32 3")
    a.raw("  .amdhsa_float_denorm_mode_16_64 3")
    a.raw(".end_amdhsa_kernel")
```

```python
from common import *
from gemm import V_LANE, S_WAVE
import math
LOG2E = math.log2(math.e)
SCALE = DH**-0.5

A_QK0, A_QK1, A_KM, A_V0, A_V1, A_VM, A_O = 2, 3, 4, 5, 6, 7, 8
S_MASK = 72
def att_setup(a, late=False):
    L = V_LANE
    a(f"v_lshlrev_b32 v{A_QK0}, 4, v{L}"); a(f"v_add_u32 v{A_QK1}, 4096, v{A_QK0}")
    a(f"v_bfe_u32 v10, v{L}, 4, 1")
    if late:
        a(f"v_lshrrev_b32 v9, 4, v{L}"); a(f"v_and_b32 v11, 15, v{L}"); a("v_lshlrev_b32 v11, 4, v11"); a(f"v_lshl_add_u32 v{A_O}, v9, 9, v11")
    else:
        a(f"v_lshrrev_b32 v9, 5, v{L}"); a("v_lshlrev_b32 v9, 7, v9")
        a(f"v_and_b32 v11, 3, v{L}"); a("v_lshl_add_u32 v9, v11, 5, v9"); a("v_lshl_add_u32 v9, v10, 4, v9")
        a(f"v_bfe_u32 v11, v{L}, 2, 2")
        a(f"s_mov_b32 s21, {4*OA_STR}"); a(f"v_mul_lo_u32 v{A_O}, v11, s21"); a(f"v_add_u32 v{A_O}, v{A_O}, v9")
    a(f"v_lshrrev_b32 v9, 4, v{L}"); a(f"v_and_b32 v11, 7, v{L}"); a("v_lshlrev_b32 v11, 4, v11"); a(f"v_lshl_add_u32 v{A_KM}, v9, 7, v11")
    a(f"v_and_b32 v11, 15, v{L}"); a(f"v_lshlrev_b32 v{A_VM}, 4, v11"); a(f"v_lshl_add_u32 v{A_VM}, v10, 3, v{A_VM}")
    a(f"v_lshrrev_b32 v10, 4, v{L}"); a("v_lshlrev_b32 v10, 2, v10")
    for r in range(4):
        a(f"v_add_u32 v9, {r}, v10")
        a(f"v_cmp_gt_u32 s[{S_MASK+2*r}:{S_MASK+2*r+1}], v9, v11")
    a(f"s_mov_b32 s{S_MASK+8}, 0"); a(f"s_mov_b32 s{S_MASK+9}, -1")
    a(f"v_mov_b32 v12, {f2u(-1e9):#x}")
    a(f"v_mov_b32 v13, 0")

def att_loads_x(a, srd, s_blk, ab, flags):
    a(f"s_lshl_b32 s21, s{s_blk}, 13")
    a(f"s_add_u32 s22, s21, {K_OFF}"); a(f"s_add_u32 s23, s21, {VT_OFF}"); a(f"s_add_u32 s21, s21, {Q_OFF}")
    R = sr(srd, 4)
    for w in range(4):
        for t in range(2):
            a(f"buffer_load_dwordx4 {ar(ab+t*16+w*4,4)}, v{A_QK0+t}, {R}, s21 offen offset:{w*1024} {flags}")
            a(f"buffer_load_dwordx4 {ar(ab+32+t*16+w*4,4)}, v{A_QK0+t}, {R}, s22 offen offset:{w*1024} {flags}")
    for dt in range(8):
        a(f"buffer_load_dwordx4 {ar(ab+80+dt*4,4)}, v{A_QK0+dt//4}, {R}, s23 offen offset:{(dt%4)*1024} {flags}")
def att_loads_m(a, srd, s_blk, ab, flags):
    a(f"s_lshl_b32 s24, s{s_blk}, 12"); a(f"s_add_u32 s24, s24, {KVM_OFF}")
    R = sr(srd, 4)
    for w in range(4):
        a(f"buffer_load_dwordx4 {ar(ab+64+w*4,4)}, v{A_KM}, {R}, s24 offen offset:{w*512} {flags}")
    for dt in range(8):
        a(f"buffer_load_dwordx2 {ar(ab+112+dt*2,2)}, v{A_VM}, {R}, s24 offen offset:{2048+dt*256} {flags}")

def fold_g(a, op, regs, tmp):
    for sw in ("v_permlane16_swap_b32", "v_permlane32_swap_b32"):
        for i, r in enumerate(regs): a(f"v_mov_b32 v{tmp+i}, v{r}")
        a("s_nop 1" if len(regs) == 1 else "s_nop 0")
        for i, r in enumerate(regs): a(f"{sw} v{r}, v{tmp+i}")
        for i, r in enumerate(regs): a(f"{op} v{r}, v{r}, v{tmp+i}")

def att_compute(a, srd, s_seg, s_head, ab, vm_qk, vm_v, flags, late=False):
    T = 64
    T00, M0, T01, T11, M1 = T, T+4, T+8, T+12, T+16
    Q = lambda t, w: ar(ab+t*16+w*4, 4)
    K = lambda t, w: ar(ab+32+t*16+w*4, 4)
    KM = lambda w: ar(ab+64+w*4, 4)
    a(f"s_waitcnt vmcnt({vm_qk})")
    for w in range(4):
        for d, A, B in ((T00, K(0,w), Q(0,w)), (T01, K(0,w), Q(1,w)), (T11, K(1,w), Q(1,w)), (M0, KM(w), Q(0,w)), (M1, KM(w), Q(1,w))):
            a(f"v_mfma_f32_16x16x32_bf16 {vr(d,4)}, {A}, {B}, {'0' if w == 0 else vr(d,4)}")
    a(f"s_mov_b32 s21, {f2u(SCALE):#x}")
    a(f"s_mov_b32 s22, {f2u(LOG2E):#x}")
    a("s_nop 3")
    P = 84
    for i in range(0, 20, 2): a(f"v_cvt_pk_bf16_f32 v{P+i//2}, v{T+i}, v{T+i+1}")
    for i in range(0, 20, 2):
        a(f"v_lshlrev_b32 v{T+i}, 16, v{P+i//2}"); a(f"v_and_b32 v{T+i+1}, 0xffff0000, v{P+i//2}")
    for i in range(20): a(f"v_mul_f32 v{T+i}, s21, v{T+i}")
    for i in range(0, 20, 2): a(f"v_cvt_pk_bf16_f32 v{P+i//2}, v{T+i}, v{T+i+1}")
    for i in range(0, 20, 2):
        a(f"v_lshlrev_b32 v{T+i}, 16, v{P+i//2}"); a(f"v_and_b32 v{T+i+1}, 0xffff0000, v{P+i//2}")
    for r in range(4):
        m = f"s[{S_MASK+2*r}:{S_MASK+2*r+1}]"; u = f"s[{S_MASK+8}:{S_MASK+9}]"
        a(f"v_cndmask_b32 v{T00+r}, v{T00+r}, v12, {m}"); a(f"v_cndmask_b32 v{T11+r}, v{T11+r}, v12, {m}")
        a(f"v_cndmask_b32 v{M0+r}, v{M0+r}, v12, {u}"); a(f"v_cndmask_b32 v{M1+r}, v{M1+r}, v12, {u}")
    mx = [96, 97]; rng = [(T, 8), (T+8, 12)]
    for q in range(2):
        b, n = rng[q]
        a(f"v_max3_f32 v{mx[q]}, v{b}, v{b+1}, v{b+2}")
        i = 3
        while i+1 < n: a(f"v_max3_f32 v{mx[q]}, v{mx[q]}, v{b+i}, v{b+i+1}"); i += 2
        a(f"v_max_f32 v{mx[q]}, v{mx[q]}, v{b+n-1}")
    fold_g(a, "v_max_f32", mx, 98)
    for q in range(2):
        b, n = rng[q]
        for i in range(n): a(f"v_sub_f32 v{b+i}, v{b+i}, v{mx[q]}")
    for i in range(20): a(f"v_mul_f32 v{T+i}, s22, v{T+i}")
    for i in range(20): a(f"v_exp_f32 v{T+i}, v{T+i}")
    a("s_nop 0")
    for q in range(2):
        b, n = rng[q]
        a(f"v_add_f32 v{mx[q]}, v{b}, v{b+1}")
        for i in range(2, n): a(f"v_add_f32 v{mx[q]}, v{mx[q]}, v{b+i}")
    fold_g(a, "v_add_f32", mx, 98)
    a(f"v_rcp_f32 v{mx[0]}, v{mx[0]}"); a(f"v_rcp_f32 v{mx[1]}, v{mx[1]}")
    a("s_nop 0")
    for q in range(2):
        b, n = rng[q]
        for i in range(n): a(f"v_mul_f32 v{b+i}, v{b+i}, v{mx[q]}")
    a(f"v_cvt_pk_bf16_f32 v84, v{T00}, v{T00+1}"); a(f"v_cvt_pk_bf16_f32 v85, v{T00+2}, v{T00+3}")
    a("v_mov_b32 v86, 0"); a("v_mov_b32 v87, 0")
    a(f"v_cvt_pk_bf16_f32 v88, v{T01}, v{T01+1}"); a(f"v_cvt_pk_bf16_f32 v89, v{T01+2}, v{T01+3}")
    a(f"v_cvt_pk_bf16_f32 v90, v{T11}, v{T11+1}"); a(f"v_cvt_pk_bf16_f32 v91, v{T11+2}, v{T11+3}")
    a(f"v_cvt_pk_bf16_f32 v92, v{M0}, v{M0+1}"); a(f"v_cvt_pk_bf16_f32 v93, v{M0+2}, v{M0+3}")
    a(f"v_cvt_pk_bf16_f32 v94, v{M1}, v{M1+1}"); a(f"v_cvt_pk_bf16_f32 v95, v{M1+2}, v{M1+3}")
    a(f"s_waitcnt vmcnt({vm_v})")
    D = 128
    if late:
        a(f"s_lshl_b32 s21, s{s_seg}, 18"); a(f"s_lshl_b32 s22, s{s_head}, 13"); a("s_add_u32 s21, s21, s22")
        a(f"s_add_u32 s21, s21, {OL_OFF}"); a(f"s_add_u32 s22, s21, 4096")
    else:
        a(f"s_mul_i32 s21, s{s_seg}, {32*OA_STR}"); a(f"s_lshl_b32 s22, s{s_head}, 10"); a("s_add_u32 s21, s21, s22")
        a(f"s_add_u32 s21, s21, {OA_OFF}"); a(f"s_add_u32 s22, s21, {16*OA_STR}")
    for q in range(2):
        for dt in range(8):
            a(f"v_mfma_f32_16x16x32_bf16 {vr(D+(q*8+dt)*4,4)}, {ar(ab+80+dt*4,4)}, {vr(84+4*q,4)}, 0")
    for q in range(2):
        for dt in range(8):
            d = vr(D+(q*8+dt)*4,4)
            a(f"v_mfma_f32_16x16x16_bf16 {d}, {ar(ab+112+dt*2,2)}, {vr(92+2*q,2)}, {d}")
    a("s_nop 7")
    for q in range(2):
        for pp in range(4):
            O = 192 + (q*4+pp)*4; b = D + (q*8+2*pp)*4
            for i in range(4): a(f"v_cvt_pk_bf16_f32 v{O+i}, v{b+2*i}, v{b+2*i+1}")
            if late: a(f"buffer_store_dwordx4 {vr(O,4)}, v{A_O}, {sr(srd,4)}, s{21+pp//2} offen offset:{(pp&1)*2048+q*256} {flags}")
            else: a(f"buffer_store_dwordx4 {vr(O,4)}, v{A_O}, {sr(srd,4)}, s{21+q} offen offset:{pp*256} {flags}")

def att_item(a, srd, s_seg, s_hg, lflags="", sflags="", npair=2, wait=None, late=False):
    att_setup(a, late)
    a(f"s_mul_i32 s25, s{s_hg}, {4*npair}"); a(f"s_mul_i32 s26, s{S_WAVE}, {npair}"); a("s_add_u32 s25, s25, s26")
    a(f"s_lshl_b32 s26, s{s_seg}, 5"); a("s_add_u32 s26, s26, s25"); a("s_add_u32 s27, s26, 1")
    for p in range(npair): att_loads_x(a, srd, 26+p, 128*p, lflags)
    if wait: wait()
    for p in range(npair): att_loads_m(a, srd, 26+p, 128*p, lflags)
    for p in range(npair):
        younger = 12*(npair-1-p) + 8*p
        att_compute(a, srd, s_seg, 25, 128*p, younger+8, younger, sflags, late)
        if p < npair-1: a("s_add_u32 s25, s25, 1")
```

```python
from common import *
from gemm import V_LANE, S_WAVE
import math
S_WS = 8; S_WT = 12; S_X = 16; S_R = 17; S_MODE = 18; S_STEP = 19
CEXP = (DH**-0.5)*math.log2(math.e)
PROF = False
NSTEP = 64
NPOLL = 4
NFLY = 3
WIN = 4
PER = 2
GBAR = True
GATE = 'all'
XSLEEP = 6
XGAP = 4
XAHEAD = 2

def ts(a, i):
    if PROF: a(f"s_memtime s[{70+2*i}:{71+2*i}]")
def rts(a, i):
    if PROF: a(f"s_memrealtime s[{90+2*i}:{91+2*i}]")
def ts_store(a, role_id_sreg, tmpv):
    if not PROF: return
    a("s_waitcnt lgkmcnt(0)")
    for i in range(10): a(f"v_writelane_b32 v{tmpv}, s{70+2*i}, {i}")
    a(f"v_writelane_b32 v{tmpv}, s90, 10"); a(f"v_writelane_b32 v{tmpv}, s92, 11")
    a(f"v_writelane_b32 v{tmpv}, s30, 12")
    a(f"s_lshl_b32 s20, s{role_id_sreg}, 6"); a(f"s_add_u32 s20, s20, s{S_STEP}"); a("s_lshl_b32 s20, s20, 2")
    a(f"s_add_u32 s20, s20, s{S_WAVE}"); a("s_lshl_b32 s20, s20, 6"); a(f"s_add_u32 s20, s20, {TS2_OFF}")
    a(f"v_mbcnt_lo_u32_b32 v{tmpv+1}, -1, 0"); a(f"v_lshlrev_b32 v{tmpv+1}, 2, v{tmpv+1}")
    a("s_mov_b64 exec, 0xffff")
    a(f"buffer_store_dword v{tmpv}, v{tmpv+1}, {sr(S_WS,4)}, s20 offen")
    a("s_mov_b64 exec, -1")

def local_store(a, instr):
    L1, L2 = a.newlabel("ls"), a.newlabel("ls")
    a(f"s_cmp_lg_u32 s{S_MODE}, 0")
    a(f"s_cbranch_scc1 {L1}")
    a(instr)
    a(f"s_branch {L2}")
    a.label(L1)
    a(instr + " sc1")
    a.label(L2)

def poll_tail(a, Lretry, abort):
    a("s_add_u32 s30, s30, 1")
    a(f"s_cmp_lt_u32 s30, {POLL_MAX}")
    a(f"s_cbranch_scc1 {Lretry}")
    a(f"s_branch {abort}")

def idx_reg(a, v):
    a(f"v_bfe_u32 v{v}, v{V_LANE}, 3, 1")
    a(f"v_mov_b32 v15, 0x44444444")
    a(f"v_mul_u32_u24 v{v}, 0xaaaa, v{v}")
    a(f"v_lshl_or_b32 v{v}, v{v}, 16, v{v}")
    a(f"v_add_u32 v{v}, v15, v{v}")

def tr_base(a, dst, rowbytes, row_expr, chunk_expr):
    pass

A_SC = 128*1024; A_KX = 140*1024; A_VX = 148*1024
def role_A(a, abort, kv_wait=None, step_done=None):
    L = V_LANE; W = S_WAVE
    VK1, VI, VID, VT0, VT1, VKX, VVX, VVM, VO, VKM, VSW, VSR, VSM, VL16, VKA = 15, 3, 24, 6, 7, 8, 9, 10, 11, 12, 13, 14, 0, 2, 1
    PIECE = 32; STG = [96, 104, 16]; ACC = 112
    Wq = lambda ks, t: ar((ks*2+t)*8, 8)
    Wk0 = lambda ks: vr(128+ks*8, 8)
    head = 21
    a(f"s_lshl_b32 s26, s{S_X}, 3"); a(f"s_add_u32 s26, s26, s{S_R}")
    a(f"v_lshrrev_b32 v2, 4, v{L}"); a(f"v_and_b32 v3, 15, v{L}")
    a("v_lshlrev_b32 v4, 1, v2"); a("v_xor_b32 v3, v3, v4")
    a(f"s_lshl_b32 s20, s{W}, 4"); a("v_add_u32 v2, s20, v2"); a("v_lshlrev_b32 v2, 13, v2")
    a("v_lshlrev_b32 v3, 4, v3")
    for j in range(4):
        if j >= 2: a(f"v_xor_b32 v4, 128, v3")
        else: a("v_mov_b32 v4, v3")
        a(f"v_add_u32 v4, v2, v4"); a(f"v_add_u32 v{32+j}, {4*j*8192}, v4")
    a(f"v_lshrrev_b32 v2, 3, v{L}"); a(f"v_and_b32 v3, 7, v{L}")
    a(f"v_bfe_u32 v4, v{L}, 4, 1"); a("v_lshlrev_b32 v4, 1, v4"); a("v_xor_b32 v3, v3, v4")
    a("v_add_u32 v2, s20, v2"); a("v_lshlrev_b32 v2, 13, v2")
    a("v_lshlrev_b32 v3, 4, v3")
    a("v_add_u32 v36, v2, v3")
    a("v_xor_b32 v3, 64, v3"); a("v_add_u32 v37, v2, v3"); a(f"v_add_u32 v37, {8*8192}, v37")
    a(f"v_lshrrev_b32 v2, 4, v{L}"); a(f"v_bfe_u32 v3, v{L}, 2, 2")
    a("v_lshl_add_u32 v4, v2, 3, v3")
    a(f"v_and_b32 v5, 3, v{L}"); a("v_lshlrev_b32 v5, 3, v5")
    a("v_and_b32 v2, 1, v2")
    a("v_lshl_or_b32 v15, v2, 2, v3"); a(f"v_xor_b32 v15, s{W}, v15")
    a("v_lshlrev_b32 v15, 5, v15"); a("v_lshl_add_u32 v38, v4, 8, v5"); a("v_add_u32 v39, v38, v15")
    a("v_xor_b32 v15, 128, v15"); a("v_add_u32 v40, v38, v15")
    a("v_lshrrev_b32 v3, 1, v3"); a("v_lshl_or_b32 v15, v2, 1, v3"); a(f"v_xor_b32 v15, s{W}, v15")
    a("v_lshlrev_b32 v15, 5, v15"); a(f"v_lshl_add_u32 v{VT0}, v4, 7, v5"); a(f"v_add_u32 v{VT0}, v{VT0}, v15")
    a(f"v_add_u32 v{VT1}, 65536, v{VT0}")
    load_srd(a, S_WT, 44, 0, DM*4096*2)
    load_srd(a, 28, 46, 0, DM*4096*2)
    a("s_lshl_b32 s22, s26, 8")
    a(f"s_lshl_b32 s23, s{W}, 12"); a(f"s_lshl_b32 s24, s{W}, 11"); a("s_add_u32 s24, s24, 16384")
    SLOT = 24576; NSL = 6
    def issue(ks):
        b = (ks % NSL)*SLOT
        for j in range(4):
            a(f"s_add_u32 m0, s23, {b+1024*j}"); a("s_nop 0")
            a(f"buffer_load_dwordx4 v{32+j}, {sr(S_WT,4)}, s22 offen lds")
        for j in range(2):
            a(f"s_add_u32 m0, s24, {b+1024*j}"); a("s_nop 0")
            a(f"buffer_load_dwordx4 v{36+j}, s[28:31], s22 offen lds")
        a(f"s_add_u32 s22, s22, {64*8192}")
    for ks in range(NSL-1): issue(ks)
    for ks in range(16):
        nxt = ks + NSL - 1
        if nxt < 16: issue(nxt)
        a(f"s_waitcnt vmcnt({6*(min(nxt,15)-ks)})")
        a("s_barrier")
        b = (ks % NSL)*SLOT
        a(f"v_add_u32 v41, {b}, v39"); a(f"v_add_u32 v42, {b}, v40"); a(f"v_add_u32 v43, {b+16384}, v{VT0}")
        for q in range(4):
            ro = 32*(q >> 1) + 4*(q & 1)
            a(f"ds_read_b64_tr_b16 {ar((ks*2)*8+2*q,2)}, v41 offset:{ro*256}")
            a(f"ds_read_b64_tr_b16 {ar((ks*2+1)*8+2*q,2)}, v42 offset:{ro*256}")
            a(f"ds_read_b64_tr_b16 {vr(128+ks*8+2*q,2)}, v43 offset:{ro*128}")
        a("s_waitcnt lgkmcnt(0)")
        a("s_barrier")
    a("s_lshl_b32 s22, s26, 8"); a("s_add_u32 s22, s22, 128")
    a(f"s_lshl_b32 s24, s{W}, 11")
    for ks in range(16):
        for j in range(2):
            a(f"s_add_u32 m0, s24, {ks*8192+1024*j}"); a("s_nop 0")
            a(f"buffer_load_dwordx4 v{36+j}, s[28:31], s22 offen lds")
        a(f"s_add_u32 s22, s22, {64*8192}")
    a(f"v_lshlrev_b32 v{VL16}, 4, v{L}")
    a(f"v_add_u32 v{VK1}, s24, v{VL16}")
    a("s_waitcnt vmcnt(0)")
    a("s_barrier")
    for half in range(2):
        for k8 in range(8):
            for q in range(4):
                a(f"ds_read_b64_tr_b16 {vr(32+k8*8+2*q,2)}, v{VT0+half} offset:{k8*8192+4096*(q>>1)+512*(q&1)}")
        a("s_waitcnt lgkmcnt(0)")
        a("s_barrier")
        for k8 in range(8):
            for q in range(2):
                a(f"ds_write_b128 v{VK1}, {vr(32+k8*8+4*q,4)} offset:{k8*8192+1024*q}")
        a("s_waitcnt lgkmcnt(0)")
        if half == 0: a(f"v_add_u32 v{VK1}, 65536, v{VK1}")
    a(f"v_mov_b32 v{VT1}, v{VK1}"); a(f"v_subrev_u32 v{VT0}, 65536, v{VK1}")
    idx_reg(a, VI)
    a(f"v_and_b32 v32, 15, v{L}"); a(f"v_bfe_u32 v33, v{L}, 4, 1"); a("v_lshlrev_b32 v33, 2, v33"); a("v_sub_u32 v32, v32, v33")
    a("v_mov_b32 v33, 0x3f80"); a("v_mov_b32 v34, 0x3f800000")
    for h in range(4):
        e = 2*(h & 1) + 8*(h >> 1)
        a(f"v_cmp_eq_u32 vcc, {e}, v32"); a("s_nop 1"); a(f"v_cndmask_b32 v{VID+h}, 0, v33, vcc")
        a(f"v_cmp_eq_u32 vcc, {e+1}, v32"); a("s_nop 1"); a(f"v_cndmask_b32 v{VID+h}, v{VID+h}, v34, vcc")
    a(f"s_lshl_b32 s20, s{W}, 8"); a(f"s_lshl_b32 s21, s{W}, 10")
    a(f"v_add_u32 v{VKX}, s21, v{VL16}")
    a(f"v_lshrrev_b32 v34, 4, v{L}"); a(f"v_and_b32 v33, 7, v{L}"); a("v_lshlrev_b32 v33, 4, v33"); a(f"v_lshl_add_u32 v{VKM}, v34, 7, v33")
    a(f"s_lshl_b32 s21, s{W}, 9"); a(f"v_add_u32 v{VKM}, s21, v{VKM}")
    a(f"v_and_b32 v33, 15, v{L}"); a(f"v_lshrrev_b32 v34, 4, v{L}")
    a(f"v_lshlrev_b32 v{VVM}, 4, v33"); a(f"v_lshl_add_u32 v{VVM}, v34, 2, v{VVM}"); a(f"v_add_u32 v{VVM}, s20, v{VVM}")
    a(f"v_lshlrev_b32 v{VO}, 4, v33"); a(f"v_lshl_add_u32 v{VO}, v34, 7, v{VO}")
    a(f"s_lshl_b32 s21, s{W}, 9"); a(f"s_lshl_b32 s22, s{S_R}, 11"); a("s_add_u32 s21, s21, s22"); a(f"v_add_u32 v{VO}, s21, v{VO}")
    a(f"s_mul_i32 s21, s{W}, 3072"); a(f"s_add_u32 s21, s21, {A_SC}"); a(f"v_add_u32 v{VSW}, s21, v{VL16}")
    a(f"v_and_b32 v35, 7, v{L}"); a(f"v_bfe_u32 v36, v{L}, 3, 1")
    a("v_lshl_add_u32 v37, v34, 4, v35"); a("v_lshlrev_b32 v37, 4, v37"); a(f"v_lshl_add_u32 v{VSR}, v36, 10, v37")
    a(f"v_add_u32 v{VSR}, {A_SC}, v{VSR}")
    a("v_lshl_add_u32 v37, v34, 1, v36")
    a("v_lshrrev_b32 v38, 2, v37"); a("v_add_u32 v38, 2, v38"); a("v_lshl_add_u32 v38, v38, 4, v35"); a("v_lshlrev_b32 v38, 4, v38")
    a("v_and_b32 v37, 3, v37"); a(f"v_lshl_add_u32 v{VSM}, v37, 2, v38"); a(f"v_add_u32 v{VSM}, {A_SC+2048}, v{VSM}")
    a(f"s_lshl_b32 s27, s{W}, 11")
    a(f"v_add_u32 v{VKA}, s27, v{VL16}"); a(f"v_add_u32 v{VKA}, {A_KX}, v{VKA}")
    a(f"v_and_b32 v5, 0x30, v{VL16}"); a("v_lshlrev_b32 v5, 6, v5"); a(f"s_lshl_b32 s20, s{W}, 12"); a("v_add_u32 v5, s20, v5")
    a("s_mov_b32 s34, 0x00ff00ff"); a("s_mov_b32 s35, 0x00ff00ff")
    a("s_mov_b32 s36, 0xff00ff00"); a("s_mov_b32 s37, 0xff00ff00")
    a(f"s_mov_b32 s38, {f2u(CEXP):#x}")
    def kv_prefetch():
        if kv_wait: kv_wait(a)
        a(f"s_lshl_b32 s20, s{S_STEP}, 5"); a("s_add_u32 s20, s20, s26"); a("s_lshl_b32 s20, s20, 13")
        a(f"s_add_u32 s21, s20, {VT_OFF}"); a(f"s_add_u32 s20, s20, {K_OFF}")
        for t in range(2):
            a(f"s_add_u32 m0, s27, {A_KX+1024*t}"); a("s_nop 0")
            a(f"buffer_load_dwordx4 v{VKX}, {sr(S_WS,4)}, s20 offen sc1 lds")
            a(f"s_add_u32 m0, s27, {A_VX+1024*t}"); a("s_nop 0")
            a(f"buffer_load_dwordx4 v{VKX}, {sr(S_WS,4)}, s21 offen sc1 lds")
            if t == 0: a("s_add_u32 s20, s20, 4096"); a("s_add_u32 s21, s21, 4096")
    a(f"s_mov_b32 s{S_STEP}, 0")
    rts(a, 1)
    kv_prefetch()
    a("s_waitcnt vmcnt(0)")
    a("s_barrier")
    def k1read(ks):
        st = STG[ks % 3]; base = VT0 if ks < 8 else VT1
        return [f"ds_read_b128 {vr(st+4*q,4)}, v{base} offset:{(ks%8)*8192+1024*q}" for q in range(2)]
    a.label("L_A_step")
    a("s_mov_b32 s30, 0"); a("s_mov_b32 s32, 0")
    a(f"s_and_b32 s39, s{S_STEP}, 3"); a("s_lshl_b32 s39, s39, 16")
    a(f"s_lshl_b32 s21, s{S_X}, 14"); a("s_add_u32 s25, s39, s21")
    a(f"s_add_u32 s20, s25, {CH_MEM}")
    for i in range(1, 4): a(f"s_add_u32 s{20+i}, s20, {4096*i}")
    for i in range(16): a(f"v_mov_b32 v{ACC+i}, 0")
    for x in k1read(0) + k1read(1): a(x)
    def pload(i):
        a(f"buffer_load_dwordx4 {vr(PIECE+4*i,4)}, v{VL16}, {sr(S_WS,4)}, s{20+i//4} offen offset:{(i%4)*1024} sc1")
    def pcheck(i):
        a(f"v_cmp_eq_u32 vcc, -1, v{PIECE+4*i}")
    def look(n):
        if n-1+WIN < 16 and n > 0: pload(n-1+WIN)
        a(f"s_waitcnt vmcnt({min(WIN-1, 15-n)})")
        pcheck(n)
    a("s_mov_b32 s33, 0")
    def sload(k): a(f"buffer_load_dword v{PIECE+k}, v5, {sr(S_WS,4)}, s20 offen sc1")
    for k in range(NFLY):
        sload(k)
        if k < NFLY-1: a("s_sleep 1")
    a.label("L_A_poll")
    for k in range(NFLY):
        a(f"s_waitcnt vmcnt({NFLY-1})")
        a(f"v_cmp_eq_u32 vcc, -1, v{PIECE+k}")
        a("s_cbranch_vccz L_A_go")
        sload(k)
    poll_tail(a, "L_A_poll", abort)
    a.label("L_A_redo")
    a("s_nop 7")
    for i in range(16): a(f"v_mov_b32 v{ACC+i}, 0")
    for x in k1read(0) + k1read(1): a(x)
    a("s_add_u32 s32, s32, 1"); a(f"s_cmp_ge_u32 s32, {POLL_MAX}"); a(f"s_cbranch_scc1 {abort}")
    if PROF: a("s_add_u32 s30, s30, 0x10000")
    a("s_branch L_A_go2")
    a.label("L_A_go")
    a("s_barrier")
    a.label("L_A_go2")
    ts(a, 0)
    sched = {}
    nxt = WIN
    for ks in range(16):
        k = []
        for _ in range(PER):
            if nxt < 16: k.append(nxt); nxt += 1
        sched[ks] = k
    for i in range(WIN): pload(i)
    issued = WIN
    for ks in range(16):
        P = vr(PIECE+4*ks, 4)
        if ks in (0, 4, 8, 12): ts(a, 5+ks//4)
        a(f"s_waitcnt vmcnt({issued-1-ks}) lgkmcnt({0 if (ks == 15 or (PROF and ks % 4 == 0)) else 2})")
        a(f"v_smfmac_f32_16x16x64_bf16 {vr(ACC,4)}, {P}, {Wq(ks,0)}, v{VI}")
        for k in sched[ks][:1]: pload(k)
        a(f"v_smfmac_f32_16x16x64_bf16 {vr(ACC+12,4)}, {P}, {vr(STG[ks % 3],8)}, v{VI}")
        rd = k1read(ks+2) if ks+2 < 16 else []
        for x in rd[:1]: a(x)
        for k in sched[ks][1:]: pload(k)
        issued += len(sched[ks])
        a(f"v_smfmac_f32_16x16x64_bf16 {vr(ACC+4,4)}, {P}, {Wq(ks,1)}, v{VI}")
        for x in rd[1:]: a(x)
        if ks == 1: a(f"v_max_u32 v15, v{PIECE}, v{PIECE+4}")
        elif ks % 2 == 1: a(f"v_max3_u32 v15, v15, v{PIECE+4*ks-4}, v{PIECE+4*ks}")
        if ks == 15: a("v_cmp_eq_u32 vcc, -1, v15")
        a(f"v_smfmac_f32_16x16x64_bf16 {vr(ACC+8,4)}, {P}, {Wk0(ks)}, v{VI}")
    a("s_cbranch_vccnz L_A_redo")
    ts(a, 1)
    KX = 48; VX = 56; VM = 64; Y = 68; X = 72; T = 72; SX = 84; SM = 96+8
    for t in range(2): a(f"ds_read_b128 {vr(KX+4*t,4)}, v{VKA} offset:{1024*t}")
    for t in range(2): a(f"ds_read_b128 {vr(VX+4*t,4)}, v{VKA} offset:{A_VX-A_KX+1024*t}")
    a("s_lshl_b32 s21, s26, 11"); a("s_add_u32 s20, s39, s21"); a(f"s_add_u32 s24, s20, {CH_VM}")
    a("s_nop 1")
    for t in range(2):
        a(f"v_cvt_pk_bf16_f32 v{X+4*t}, v{ACC+4*t}, v{ACC+4*t+1}"); a(f"v_cvt_pk_bf16_f32 v{X+4*t+1}, v{ACC+4*t+2}, v{ACC+4*t+3}")
        a(f"v_cvt_pk_bf16_f32 v{X+4*t+2}, v{ACC+8+4*t}, v{ACC+8+4*t+1}"); a(f"v_cvt_pk_bf16_f32 v{X+4*t+3}, v{ACC+8+4*t+2}, v{ACC+8+4*t+3}")
    a("s_nop 0")
    a(f"v_mfma_f32_16x16x32_bf16 {vr(ACC+8,4)}, {vr(X,4)}, {vr(VID,4)}, 0")
    a(f"v_mfma_f32_16x16x32_bf16 {vr(ACC+12,4)}, {vr(X+4,4)}, {vr(VID,4)}, 0")
    a("s_nop 0")
    a(f"v_mov_b32 v{VM+1}, 0"); a(f"v_mov_b32 v{VM+3}, 0")
    a(f"s_lshl_b32 s20, s{S_STEP}, 5"); a("s_add_u32 s20, s20, s26"); a("s_lshl_b32 s20, s20, 12"); a(f"s_add_u32 s20, s20, {KVM_OFF}")
    a(f"v_cvt_pk_bf16_f32 v{Y}, v{ACC+8}, v{ACC+9}"); a(f"v_cvt_pk_bf16_f32 v{Y+1}, v{ACC+10}, v{ACC+11}")
    a(f"v_cvt_pk_bf16_f32 v{Y+2}, v{ACC+12}, v{ACC+13}"); a(f"v_cvt_pk_bf16_f32 v{Y+3}, v{ACC+14}, v{ACC+15}")
    a("s_waitcnt lgkmcnt(0)")
    a("s_nop 0")
    a(f"v_mfma_f32_16x16x32_bf16 {vr(T,4)}, {vr(KX,4)}, {vr(Y,4)}, 0")
    a(f"v_mfma_f32_16x16x32_bf16 {vr(T+4,4)}, {vr(KX+4,4)}, {vr(Y,4)}, 0")
    a(f"v_mfma_f32_16x16x32_bf16 {vr(T+8,4)}, {vr(Y,4)}, {vr(Y,4)}, 0")
    a(f"s_cmp_eq_u32 s{S_STEP}, {NSTEP-1}")
    a("s_cbranch_scc1 L_A_last")
    a("s_nop 3")
    a(f"ds_write_b128 v{VSW}, {vr(T,4)}")
    a(f"ds_write_b128 v{VSW}, {vr(T+4,4)} offset:1024")
    a(f"ds_write_b128 v{VSW}, {vr(T+8,4)} offset:2048")
    ts(a, 2)
    a(f"buffer_load_dword v{VM}, v{VVM}, {sr(S_WS,4)}, s24 offen sc1")
    a(f"buffer_load_dword v{VM+2}, v{VVM}, {sr(S_WS,4)}, s24 offen offset:1024 sc1")
    a("s_mov_b64 exec, s[36:37]")
    a(f"buffer_store_dwordx4 {vr(Y,4)}, v{VKM}, {sr(S_WS,4)}, s20 offen sc1")
    a("s_mov_b64 exec, -1")
    a("s_waitcnt lgkmcnt(0)")
    a("s_barrier")
    for pw in range(4):
        a(f"ds_read_b128 {vr(SX+4*pw,4)}, v{VSR} offset:{pw*3072}")
        a(f"ds_read_b32 v{SM+pw}, v{VSM} offset:{pw*3072}")
    a("s_waitcnt lgkmcnt(4)")
    a(f"v_pk_add_f32 {vr(SX,2)}, {vr(SX,2)}, {vr(SX+4,2)}"); a(f"v_pk_add_f32 {vr(SX+2,2)}, {vr(SX+2,2)}, {vr(SX+6,2)}")
    a(f"v_add_f32 v{SM}, v{SM}, v{SM+1}")
    a("s_waitcnt lgkmcnt(0)")
    a(f"v_pk_add_f32 {vr(SX+8,2)}, {vr(SX+8,2)}, {vr(SX+12,2)}"); a(f"v_pk_add_f32 {vr(SX+10,2)}, {vr(SX+10,2)}, {vr(SX+14,2)}")
    a(f"v_add_f32 v{SM+2}, v{SM+2}, v{SM+3}")
    a(f"v_pk_add_f32 {vr(SX,2)}, {vr(SX,2)}, {vr(SX+8,2)}"); a(f"v_pk_add_f32 {vr(SX+2,2)}, {vr(SX+2,2)}, {vr(SX+10,2)}")
    a(f"v_add_f32 v{SM}, v{SM}, v{SM+2}")
    M = SX+4; TM = SX+5
    def fold(op, r):
        a("s_nop 1")
        a(f"{op}_dpp v{r}, v{r}, v{r} row_ror:8 row_mask:0xf bank_mask:0xf")
        for sw in ("v_permlane16_swap_b32", "v_permlane32_swap_b32"):
            a(f"v_mov_b32 v{TM}, v{r}"); a("s_nop 1"); a(f"{sw} v{r}, v{TM}"); a(f"{op} v{r}, v{r}, v{TM}")
    a(f"v_max3_f32 v{M}, v{SX}, v{SX+1}, v{SX+2}"); a(f"v_max3_f32 v{M}, v{M}, v{SX+3}, v{SM}")
    fold("v_max_f32", M)
    a(f"v_mul_f32 v{M}, s38, v{M}")
    for r in (SX, SX+1, SX+2, SX+3, SM): a(f"v_fma_f32 v{r}, v{r}, s38, -v{M}")
    for r in (SX, SX+1, SX+2, SX+3, SM): a(f"v_exp_f32 v{r}, v{r}")
    a("s_waitcnt vmcnt(1)")
    a(f"v_max_u32 v{TM}, v{VM}, v{VM+2}")
    a(f"v_cmp_eq_u32 vcc, -1, v{TM}")
    PX = SX+8; PM = SX+12
    a(f"v_mov_b32 v{PM+1}, 0")
    a(f"v_cvt_pk_bf16_f32 v{PX}, v{SX}, v{SX+1}"); a(f"v_cvt_pk_bf16_f32 v{PX+1}, v{SX+2}, v{SX+3}")
    a(f"v_mov_b32_dpp v{SM+1}, v{SM} row_ror:8 row_mask:0xf bank_mask:0xf")
    a(f"v_add_f32 v{M}, v{SX}, v{SX+1}")
    a(f"v_mov_b32_dpp v{PX+2}, v{PX} row_ror:8 row_mask:0xf bank_mask:0xf")
    a(f"v_mov_b32_dpp v{PX+3}, v{PX+1} row_ror:8 row_mask:0xf bank_mask:0xf")
    a(f"v_cvt_pk_bf16_f32 v{PM}, v{SM}, v{SM+1}")
    a(f"v_add_f32 v{SX+2}, v{SX+2}, v{SX+3}")
    ts(a, 3)
    a(f"v_mfma_f32_16x16x32_bf16 {vr(T,4)}, {vr(VX,4)}, {vr(PX,4)}, 0")
    a(f"v_add_f32 v{M}, v{M}, v{SM}")
    a(f"v_mfma_f32_16x16x32_bf16 {vr(T+4,4)}, {vr(VX+4,4)}, {vr(PX,4)}, 0")
    a(f"v_add_f32 v{M}, v{M}, v{SX+2}")
    a(f"s_cbranch_vccnz L_A_vmfix")
    a.label("L_A_vmok")
    a(f"v_mfma_f32_16x16x16_bf16 {vr(T,4)}, {vr(VM,2)}, {vr(PM,2)}, {vr(T,4)}")
    a(f"v_add_f32_dpp v{M}, v{M}, v{M} row_ror:8 row_mask:0xf bank_mask:0xf")
    a(f"v_mfma_f32_16x16x16_bf16 {vr(T+4,4)}, {vr(VM+2,2)}, {vr(PM,2)}, {vr(T+4,4)}")
    for sw in ("v_permlane16_swap_b32", "v_permlane32_swap_b32"):
        a(f"v_mov_b32 v{TM}, v{M}"); a("s_nop 1"); a(f"{sw} v{M}, v{TM}"); a(f"v_add_f32 v{M}, v{M}, v{TM}")
    a(f"v_rcp_f32 v{M}, v{M}")
    a(f"s_add_u32 s20, s25, {CH_OX}")
    for i in range(8): a(f"v_mul_f32 v{T+i}, v{T+i}, v{M}")
    for i in range(4): a(f"v_cvt_pk_bf16_f32 v{Y+i}, v{T+2*i}, v{T+2*i+1}")
    a("s_mov_b64 exec, s[34:35]")
    local_store(a, f"buffer_store_dwordx4 {vr(Y,4)}, v{VO}, {sr(S_WS,4)}, s20 offen")
    ts(a, 4); rts(a, 0)
    for i in range(4): a(f"v_mov_b32 v{T+i}, -1")
    a(f"s_add_u32 s21, s25, {3*65536}"); a(f"s_and_b32 s21, s21, {4*65536-1}"); a(f"s_add_u32 s21, s21, {CH_OX}")
    local_store(a, f"buffer_store_dwordx4 {vr(T,4)}, v{VO}, {sr(S_WS,4)}, s21 offen")
    a("s_mov_b64 exec, -1")
    if step_done: step_done(a, "A")
    ts_store(a, 26, 60)
    a(f"s_add_u32 s{S_STEP}, s{S_STEP}, 1")
    kv_prefetch()
    a("s_branch L_A_step")
    a.label("L_A_vmfix")
    a(f"buffer_load_dword v{VM}, v{VVM}, {sr(S_WS,4)}, s24 offen sc1")
    a(f"buffer_load_dword v{VM+2}, v{VVM}, {sr(S_WS,4)}, s24 offen offset:1024 sc1")
    a("s_waitcnt vmcnt(0)")
    a(f"v_max_u32 v{TM}, v{VM}, v{VM+2}")
    a(f"v_cmp_eq_u32 vcc, -1, v{TM}")
    a("s_cbranch_vccz L_A_vmok")
    poll_tail(a, "L_A_vmfix", abort)
    a.label("L_A_last")
    a("s_mov_b64 exec, s[36:37]")
    a(f"buffer_store_dwordx4 {vr(Y,4)}, v{VKM}, {sr(S_WS,4)}, s20 offen sc1")
    a("s_mov_b64 exec, -1")
    if step_done: step_done(a, "Alast")

R_PS, R_HS, R_GS, R_CS = 2368, 1184, 288, 144
VR_V = 0; VR_R = 16384; VR_X = 40960
SCP = 52
def role_VR(a, abort, step_done=None):
    L = V_LANE; W = S_WAVE
    VI, VL16, VWV, VRV, VWR, VRR, VSV, VSP, VPL2, VSM, VPL = 3, 4, 5, 6, 7, 8, 9, 10, 12, 13, 16
    PIECE = 32; ACC = 48; RD = 64; POIS = 96
    a(f"s_sub_u32 s{S_R}, s{S_R}, 8")
    a(f"s_lshl_b32 s26, s{S_X}, 3"); a(f"s_lshr_b32 s20, s{S_R}, 1"); a("s_add_u32 s26, s26, s20")
    a(f"s_lshl_b32 s27, s{W}, 15")
    a(f"v_lshrrev_b32 v2, 4, v{L}"); a(f"v_bfe_u32 v3, v{L}, 2, 2")
    a(f"v_and_b32 v5, 3, v{L}"); a("v_lshlrev_b32 v5, 3, v5"); a("v_add_u32 v5, s27, v5")
    a("v_and_b32 v6, 1, v2")
    a("v_lshrrev_b32 v7, 1, v3"); a("v_lshl_or_b32 v8, v6, 1, v7")
    a("v_lshl_add_u32 v4, v2, 3, v3"); a("v_lshl_add_u32 v9, v4, 7, v5")
    a("v_lshrrev_b32 v4, 1, v2"); a("v_lshlrev_b32 v4, 3, v4"); a("v_lshl_add_u32 v4, v6, 6, v4"); a("v_lshl_add_u32 v4, v7, 2, v4")
    a("v_and_b32 v10, 1, v3"); a("v_add_u32 v4, v4, v10"); a("v_lshl_add_u32 v10, v4, 7, v5")
    for t in range(4):
        a(f"v_xor_b32 v4, {t}, v8"); a("v_lshlrev_b32 v4, 5, v4")
        a(f"v_add_u32 v{32+t}, v9, v4"); a(f"v_add_u32 v{36+t}, v10, v4")
    for part in range(2):
        stride = 8192 if part == 0 else 2048
        a(f"v_lshrrev_b32 v2, 3, v{L}"); a(f"v_and_b32 v3, 7, v{L}")
        a(f"v_bfe_u32 v4, v{L}, {4 if part == 0 else 5}, 1"); a("v_lshlrev_b32 v4, 1, v4"); a("v_xor_b32 v3, v3, v4")
        a(f"v_lshlrev_b32 v2, {13 if part == 0 else 11}, v2"); a("v_lshlrev_b32 v3, 4, v3")
        a("v_add_u32 v40, v2, v3"); a("v_xor_b32 v3, 64, v3"); a("v_add_u32 v41, v2, v3")
        if part == 0:
            load_srd(a, S_WT, 48, 0, DM*4096*2)
            a("s_lshl_b32 s22, s26, 8"); a(f"s_and_b32 s20, s{S_R}, 1"); a("s_lshl_b32 s20, s20, 7"); a("s_add_u32 s22, s22, s20")
            a(f"s_lshl_b32 s20, s{W}, 21"); a("s_add_u32 s22, s22, s20")
        else:
            load_srd(a, S_WT, 50, 0, 4096*DM*2)
            a(f"s_lshl_b32 s22, s{S_X}, 21"); a(f"s_lshl_b32 s20, s{W}, 19"); a("s_add_u32 s22, s22, s20")
            a(f"s_lshl_b32 s20, s{S_R}, 7"); a("s_add_u32 s22, s22, s20")
        for j in range(32):
            odd = (j & 1) if part == 0 else ((j >> 3) & 1)
            a(f"s_add_u32 m0, s27, {1024*j}"); a("s_nop 0")
            a(f"buffer_load_dwordx4 v{40+odd}, {sr(S_WT,4)}, s22 offen lds")
            a(f"s_add_u32 s22, s22, {8*stride}")
        a("s_waitcnt vmcnt(0)")
        for kk in range(4):
            for t in range(4):
                for q in range(4):
                    if part == 0: off = (64*kk + 32*(q >> 1) + 4*(q & 1))*128
                    else: off = (128*(kk >> 1) + 32*(kk & 1) + 16*(q >> 1) + 2*(q & 1))*128
                    a(f"ds_read_b64_tr_b16 {ar(part*128+(kk*4+t)*8+2*q,2)}, v{32+4*part+t} offset:{off}")
            a("s_waitcnt lgkmcnt(0)")
    a("s_barrier")
    idx_reg(a, VI)
    a(f"v_lshlrev_b32 v{VL16}, 4, v{L}")
    a(f"s_lshl_b32 s20, s{W}, 12")
    a(f"v_add_u32 v{VWV}, s20, v{VL16}")
    a(f"v_add_u32 v2, s20, v{VL16}")
    a(f"s_and_b32 s21, s{W}, 1"); a("s_lshl_b32 s22, s21, 11")
    a(f"v_lshrrev_b32 v14, 5, v{L}"); a(f"v_and_b32 v15, 31, v{L}"); a("v_lshlrev_b32 v15, 4, v15")
    a(f"v_lshl_add_u32 v{VRV}, v14, 10, v15"); a(f"v_add_u32 v{VRV}, s22, v{VRV}")
    a(f"v_and_b32 v15, 15, v{L}"); a("v_lshl_add_u32 v15, v14, 4, v15"); a("v_lshlrev_b32 v15, 4, v15")
    a(f"v_bfe_u32 v14, v{L}, 4, 1"); a(f"v_lshl_add_u32 v{VSV}, v14, 3, v15")
    a("s_lshl_b32 s22, s21, 9"); a(f"s_and_b32 s23, s{S_R}, 1"); a("s_lshl_b32 s23, s23, 10"); a("s_add_u32 s22, s22, s23")
    a(f"v_add_u32 v{VSV}, s22, v{VSV}")
    a(f"s_mul_i32 s22, s{W}, {R_PS}"); a(f"s_add_u32 s22, s22, {VR_R}")
    a(f"v_lshrrev_b32 v14, 5, v{L}"); a(f"v_mul_u32_u24 v{VWR}, {R_GS}, v14")
    a(f"v_bfe_u32 v14, v{L}, 3, 1"); a(f"v_mul_u32_u24 v14, {R_HS}, v14"); a(f"v_add_u32 v{VWR}, v{VWR}, v14")
    a(f"v_bfe_u32 v14, v{L}, 1, 1"); a(f"v_mul_u32_u24 v14, {R_CS}, v14"); a(f"v_add_u32 v{VWR}, v{VWR}, v14")
    a(f"v_bfe_u32 v14, v{L}, 4, 1"); a(f"v_lshl_add_u32 v{VWR}, v14, 6, v{VWR}")
    a(f"v_bfe_u32 v14, v{L}, 2, 1"); a(f"v_lshl_add_u32 v{VWR}, v14, 3, v{VWR}")
    a(f"v_and_b32 v14, 1, v{L}"); a(f"v_lshl_add_u32 v{VWR}, v14, 2, v{VWR}")
    a(f"v_add_u32 v{VWR}, s22, v{VWR}")
    a(f"s_mul_i32 s22, s21, {R_HS}"); a(f"s_add_u32 s22, s22, {VR_R}")
    a(f"v_lshrrev_b32 v14, 4, v{L}"); a(f"v_mul_u32_u24 v{VRR}, {R_GS}, v14")
    a(f"v_bfe_u32 v14, v{L}, 3, 1"); a(f"v_mul_u32_u24 v14, {R_CS}, v14"); a(f"v_add_u32 v{VRR}, v{VRR}, v14")
    a(f"v_and_b32 v14, 7, v{L}"); a(f"v_lshl_add_u32 v{VRR}, v14, 4, v{VRR}")
    a(f"v_add_u32 v{VPL2}, {VR_R}, v{VRR}")
    a(f"v_add_u32 v{VRR}, s22, v{VRR}")
    a(f"s_lshl_b32 s22, s{S_R}, 14")
    for k in range(3):
        a(f"s_add_u32 s23, s{S_X}, {k+1}"); a("s_and_b32 s23, s23, 3"); a("s_lshl_b32 s23, s23, 11"); a("s_add_u32 s23, s23, s22")
        a(f"v_add_u32 v{VPL+k}, s23, v{VL16}")
    a("s_lshl_b32 s23, s21, 10"); a("s_add_u32 s22, s22, s23")
    a(f"s_lshl_b32 s23, s{S_X}, 11"); a("s_add_u32 s22, s22, s23"); a(f"v_add_u32 v{VSP}, s22, v{VL16}")
    a(f"s_lshl_b32 s22, s{S_R}, 10"); a(f"v_add_u32 v{VSM}, s22, v{VL16}")
    for i in range(4): a(f"v_mov_b32 v{POIS+i}, -1")
    Lc, Lp = a.newlabel("Cal"), a.newlabel("Cal")
    a(f"s_or_b32 s22, s{S_X}, s{S_R}"); a(f"s_or_b32 s22, s22, s{W}"); a("s_cmp_lg_u32 s22, 0"); a(f"s_cbranch_scc1 {Lc}")
    a("s_mov_b32 s34, 0x100")
    for pg in range(NCOPY//2):
        for c in range(2):
            for k in range(4):
                a(f"s_mov_b32 s23, {CH_PART + pg*2*MB + c*8192 + k*16384 + 1024*k}")
                a("s_memtime s[36:37]")
                a("s_waitcnt lgkmcnt(0)")
                a(f"buffer_load_dword v14, off, {sr(S_WS,4)}, s23 sc1")
                a("s_waitcnt vmcnt(0)")
                a("s_memtime s[38:39]")
                a("s_waitcnt lgkmcnt(0)")
                a("s_sub_u32 s36, s38, s36")
                if k == 0: a(f"s_mov_b32 s{20+c}, s36")
                else: a(f"s_min_u32 s{20+c}, s{20+c}, s36")
        a("s_cmp_lt_u32 s21, s20"); a(f"s_cselect_b32 s36, {1 << pg}, 0"); a("s_or_b32 s34, s34, s36")
    a("v_mov_b32 v14, s34"); a(f"s_mov_b32 s23, {FL_NEAR}")
    a(f"buffer_store_dword v14, off, {sr(S_WS,4)}, s23 sc1")
    a.label(Lc)
    a("s_mov_b32 s30, 0"); a(f"s_mov_b32 s23, {FL_NEAR}")
    a.label(Lp)
    a(f"buffer_load_dword v14, off, {sr(S_WS,4)}, s23 sc1")
    a("s_waitcnt vmcnt(0)")
    a("v_readfirstlane_b32 s34, v14")
    a("s_nop 3")
    a("s_cmp_lg_u32 s34, 0")
    Lq = a.newlabel("Cal")
    a(f"s_cbranch_scc1 {Lq}")
    a("s_sleep 8")
    poll_tail(a, Lp, abort)
    a.label(Lq)
    for c in range(NCOPY):
        a(f"s_bfe_u32 s22, s34, {(c//2) | (1 << 16):#x}"); a("s_lshl_b32 s22, s22, 13"); a(f"s_add_u32 s{SCP+c}, s22, {CH_PART + c*MB}")
    a(f"s_lshl_b32 s28, s{S_X}, 4"); a(f"s_add_u32 s28, s28, s{S_R}"); a("s_add_u32 s28, s28, 32")
    a(f"s_mov_b32 s{S_STEP}, 0")

    def gemv(sbase, wbase, tag):
        Lp = a.newlabel("VRp")
        def pl(i): a(f"buffer_load_dwordx4 {vr(PIECE+4*i,4)}, v2, {sr(S_WS,4)}, s{sbase} offen offset:{i*1024} sc1")
        def pc(i):
            a(f"v_cmp_eq_u32 vcc, -1, v{PIECE+4*i}")
        for i in range(16): a(f"v_mov_b32 v{ACC+i}, 0")
        def mm(h):
            for kk in (2*h, 2*h+1):
                for t in range(4):
                    a(f"v_smfmac_f32_16x16x64_bf16 {vr(ACC+4*t,4)}, {vr(PIECE+4*kk,4)}, {ar(wbase+(kk*4+t)*8,8)}, v{VI}")
        def ck(h):
            a(f"v_max_u32 v15, v{PIECE+8*h}, v{PIECE+8*h+4}"); a("v_cmp_eq_u32 vcc, -1, v15")
        Lf = [a.newlabel("VRf") for _ in range(2)]; Lo = [a.newlabel("VRo") for _ in range(2)]; Lr = [a.newlabel("VRr") for _ in range(2)]
        Le = a.newlabel("VRe")
        pl(0); pl(1)
        a("s_sleep 2")
        pl(2); pl(3)
        a.label(Lp)
        for h in range(2):
            a("s_waitcnt vmcnt(2)")
            ck(h)
            a(f"s_cbranch_vccz {Lf[h]}")
            pl(2*h); pl(2*h+1)
        poll_tail(a, Lp, abort)
        for h in (1, 0):
            o = 1-h
            a.label(Lr[h])
            pl(2*o); pl(2*o+1)
            a("s_add_u32 s30, s30, 1"); a(f"s_cmp_ge_u32 s30, {POLL_MAX}"); a(f"s_cbranch_scc1 {abort}")
            a(f"s_branch {Lo[h]}")
            a.label(Lf[h])
            mm(h)
            a.label(Lo[h])
            a("s_waitcnt vmcnt(0)")
            ck(o)
            a(f"s_cbranch_vccnz {Lr[h]}")
            mm(o)
            if h == 1: a(f"s_branch {Le}")
        a.label(Le)
    def sum8():
        for i in range(1, 8):
            a(f"s_waitcnt lgkmcnt({7-i})")
            a(f"v_pk_add_f32 {vr(RD,2)}, {vr(RD,2)}, {vr(RD+4*i,2)}"); a(f"v_pk_add_f32 {vr(RD+2,2)}, {vr(RD+2,2)}, {vr(RD+4*i+2,2)}")

    a.label("L_VR_step")
    a("s_mov_b32 s30, 0")
    a(f"s_and_b32 s35, s{S_STEP}, 3"); a("s_lshl_b32 s39, s35, 16")
    a(f"s_lshl_b32 s21, s{S_X}, 14"); a("s_add_u32 s25, s39, s21")
    a(f"s_add_u32 s20, s25, {CH_MEM}")
    gemv(20, 0, "V")
    ts(a, 0)
    a("s_lshl_b32 s21, s26, 11"); a("s_add_u32 s20, s39, s21"); a(f"s_add_u32 s20, s20, {CH_VM}"); a("s_nop 0")
    a(f"s_lshl_b32 s21, s{S_STEP}, 5"); a("s_add_u32 s21, s21, s26"); a("s_lshl_b32 s21, s21, 12"); a(f"s_add_u32 s21, s21, {KVM_OFF+2048}")
    a(f"ds_write_b128 v{VWV}, {vr(ACC,4)}")
    for t in range(1, 4): a(f"ds_write_b128 v{VWV}, {vr(ACC+4*t,4)} offset:{1024*t}")
    a("s_waitcnt lgkmcnt(0)")
    a("s_barrier")
    for i in range(8): a(f"ds_read_b128 {vr(RD+4*i,4)}, v{VRV} offset:{(i>>1)*4096+(i&1)*512}")
    sum8()
    a(f"v_cvt_pk_bf16_f32 v{RD}, v{RD}, v{RD+1}"); a(f"v_cvt_pk_bf16_f32 v{RD+1}, v{RD+2}, v{RD+3}")
    Lk, Le = a.newlabel("VRk"), a.newlabel("VRe")
    a(f"s_cmp_ge_u32 s{W}, 2"); a(f"s_cbranch_scc1 {Lk}")
    local_store(a, f"buffer_store_dwordx2 {vr(RD,2)}, v{VSV}, {sr(S_WS,4)}, s20 offen")
    a(f"s_branch {Le}")
    a.label(Lk)
    a(f"buffer_store_dwordx2 {vr(RD,2)}, v{VSV}, {sr(S_WS,4)}, s21 offen sc1")
    a.label(Le)
    ts(a, 1)
    a(f"s_cmp_eq_u32 s{S_STEP}, {NSTEP-1}")
    a("s_cbranch_scc1 L_VR_last")
    a(f"s_add_u32 s22, s35, 2"); a("s_and_b32 s22, s22, 3"); a("s_lshl_b32 s22, s22, 18")
    Lq, Lq2 = a.newlabel("VRq"), a.newlabel("VRq")
    a(f"s_cmp_lt_u32 s{S_STEP}, 2"); a(f"s_cbranch_scc1 {Lq}")
    a(f"s_cmp_ge_u32 s{W}, 2"); a(f"s_cbranch_scc1 {Lq2}")
    for c in range(NCOPY):
        if c == NCOPY//2:
            a(f"s_branch {Lq}"); a.label(Lq2)
        a(f"s_add_u32 s23, s22, s{SCP+c}")
        a(f"buffer_store_dwordx4 {vr(POIS,4)}, v{VSP}, {sr(S_WS,4)}, s23 offen sc1")
    a.label(Lq)
    Lq = a.newlabel("VRq")
    a(f"s_cmp_eq_u32 s{W}, 3"); a(f"s_cbranch_scc1 {Lq}")
    a(f"s_cmp_eq_u32 s{S_STEP}, 0"); a(f"s_cbranch_scc1 {Lq}")
    Lq2 = a.newlabel("VRq")
    a(f"s_cmp_eq_u32 s{W}, 2"); a(f"s_cbranch_scc1 {Lq2}")
    a(f"s_sub_u32 s22, s20, {CH_VM}"); a(f"s_add_u32 s22, s22, {3*65536}"); a(f"s_and_b32 s22, s22, {4*65536-1}"); a(f"s_add_u32 s22, s22, {CH_VM}")
    local_store(a, f"buffer_store_dwordx2 {vr(POIS,2)}, v{VSV}, {sr(S_WS,4)}, s22 offen")
    a(f"s_branch {Lq}")
    a.label(Lq2)
    a(f"s_add_u32 s22, s25, {3*65536}"); a(f"s_and_b32 s22, s22, {4*65536-1}"); a(f"s_add_u32 s22, s22, {CH_MEM}")
    local_store(a, f"buffer_store_dwordx4 {vr(POIS,4)}, v{VSM}, {sr(S_WS,4)}, s22 offen")
    a.label(Lq)
    a(f"s_add_u32 s20, s25, {CH_OX}")
    gemv(20, 128, "R")
    ts(a, 2)
    a(f"s_lshl_b32 s20, s35, 18")
    for c in range(NCOPY): a(f"s_add_u32 s{84+c}, s20, s{SCP+c}")
    a("s_nop 0")
    for p in range(2):
        for r in range(4): a(f"v_permlane32_swap_b32 v{ACC+8*p+r}, v{ACC+8*p+4+r}")
        for r in range(0, 4, 2): a(f"v_pk_add_f32 {vr(ACC+8*p+r,2)}, {vr(ACC+8*p+r,2)}, {vr(ACC+8*p+4+r,2)}")
        for r in range(4): a(f"ds_write_b32 v{VWR}, v{ACC+8*p+r} offset:{2*p*R_GS+r*16}")
    a(f"s_add_u32 s22, s25, {65536}"); a(f"s_and_b32 s22, s22, {4*65536-1}"); a(f"s_add_u32 s22, s22, {CH_MEM}")
    Lx = a.newlabel("Xe"); Lpo = a.newlabel("Xpo")
    a(f"s_cmp_ge_u32 s{W}, 2")
    a("s_waitcnt lgkmcnt(0)")
    a("s_barrier")
    a(f"s_cbranch_scc1 {Lpo}")
    for i in range(4): a(f"ds_read_b128 {vr(RD+4*i,4)}, v{VRR} offset:{i*R_PS}")
    a("s_waitcnt lgkmcnt(2)")
    a(f"v_pk_add_f32 {vr(RD,2)}, {vr(RD,2)}, {vr(RD+4,2)}"); a(f"v_pk_add_f32 {vr(RD+2,2)}, {vr(RD+2,2)}, {vr(RD+6,2)}")
    a("s_waitcnt lgkmcnt(0)")
    a(f"v_pk_add_f32 {vr(RD+8,2)}, {vr(RD+8,2)}, {vr(RD+12,2)}"); a(f"v_pk_add_f32 {vr(RD+10,2)}, {vr(RD+10,2)}, {vr(RD+14,2)}")
    a(f"v_pk_add_f32 {vr(RD,2)}, {vr(RD,2)}, {vr(RD+8,2)}"); a(f"v_pk_add_f32 {vr(RD+2,2)}, {vr(RD+2,2)}, {vr(RD+10,2)}")
    for c in range(NCOPY):
        a(f"buffer_store_dwordx4 {vr(RD,4)}, v{VSP}, {sr(S_WS,4)}, s{84+c} offen sc1")
        if c == 0: ts(a, 3); rts(a, 0)
    a(f"s_branch {Lx}")
    a.label(Lpo)
    L3 = a.newlabel("X3")
    a(f"s_cmp_lg_u32 s{W}, 3"); a(f"s_cbranch_scc1 {L3}")
    if step_done: step_done(a, "V3")
    a(f"s_branch {Lx}")
    a.label(L3)
    XS = lambda c: 100 + 24*c
    def xl(c):
        for k in range(3):
            for h in range(2): a(f"buffer_load_dwordx4 {vr(XS(c)+8*k+4*h,4)}, v{VPL+k}, {sr(S_WS,4)}, s{84+c} offen offset:{h*1024} sc1")
    for h in range(2):
        for i in range(4): a(f"ds_read_b128 {vr(RD+16*h+4*i,4)}, v{VPL2} offset:{i*R_PS+h*R_HS}")
    for h in range(2):
        b = RD+16*h
        a(f"s_waitcnt lgkmcnt({4-4*h})")
        for k in (0, 2): a(f"v_pk_add_f32 {vr(b+k,2)}, {vr(b+k,2)}, {vr(b+4+k,2)}")
        for k in (0, 2): a(f"v_pk_add_f32 {vr(b+8+k,2)}, {vr(b+8+k,2)}, {vr(b+12+k,2)}")
        for k in (0, 2): a(f"v_pk_add_f32 {vr(RD+4*h+k,2)}, {vr(b+k,2)}, {vr(b+8+k,2)}")
    ts(a, 3); rts(a, 0)
    if XSLEEP: a(f"s_sleep {XSLEEP}")
    Lg = [a.newlabel("Xg") for _ in range(NCOPY)]; Lj = a.newlabel("Xj"); Lp = a.newlabel("Xp")
    def xc(c):
        b = XS(c)
        a(f"v_max3_u32 v15, v{b}, v{b+4}, v{b+8}")
        a(f"v_max3_u32 v15, v15, v{b+12}, v{b+16}")
        a(f"v_max_u32 v15, v15, v{b+20}")
        a("v_cmp_eq_u32 vcc, -1, v15")
        a(f"s_cbranch_vccz {Lg[c]}")
    for c in range(XAHEAD):
        xl(c)
        if c < XAHEAD-1: a(f"s_sleep {XGAP}")
    for c in range(NCOPY):
        a(f"s_waitcnt vmcnt({6*(min(c+XAHEAD, NCOPY)-1-c)})")
        xc(c)
        if c+XAHEAD < NCOPY: xl(c+XAHEAD)
        if PROF: a("s_add_u32 s30, s30, 0x10000")
    a.label(Lp)
    xl(NCOPY-1)
    a("s_waitcnt vmcnt(0)")
    xc(NCOPY-1)
    poll_tail(a, Lp, abort)
    for c in range(NCOPY):
        a.label(Lg[c])
        b = XS(c)
        for k in range(0, 8, 2): a(f"v_pk_add_f32 {vr(RD+k,2)}, {vr(RD+k,2)}, {vr(b+8+k,2)}")
        for k in range(0, 8, 2): a(f"v_pk_add_f32 {vr(RD+8+k,2)}, {vr(b+k,2)}, {vr(b+16+k,2)}")
        if c < NCOPY-1: a(f"s_branch {Lj}")
    a.label(Lj)
    for k in range(0, 8, 2): a(f"v_pk_add_f32 {vr(RD+k,2)}, {vr(RD+k,2)}, {vr(RD+8+k,2)}")
    for k in range(4): a(f"v_cvt_pk_bf16_f32 v{RD+k}, v{RD+2*k}, v{RD+2*k+1}")
    local_store(a, f"buffer_store_dwordx4 {vr(RD,4)}, v{VSM}, {sr(S_WS,4)}, s22 offen")
    a.label(Lx)
    ts(a, 4); rts(a, 1)
    ts_store(a, 28, 60)
    a(f"s_add_u32 s{S_STEP}, s{S_STEP}, 1")
    a("s_branch L_VR_step")
    a.label("L_VR_last")
    if step_done: step_done(a, "Vlast")

NCH = 24
def assign_roles(a, abort, lds_scratch):
    load_srd(a, 20, 64, 0, 256)
    a("s_getreg_b32 s31, hwreg(HW_REG_XCC_ID)"); a("s_and_b32 s31, s31, 7")
    Lw, Lp, Lg = a.newlabel("Rw"), a.newlabel("Rp"), a.newlabel("Rg")
    a(f"v_mov_b32 v4, {lds_scratch}")
    a(f"s_cmp_lg_u32 s{S_WAVE}, 0"); a(f"s_cbranch_scc1 {Lw}")
    a("s_lshl_b32 s24, s31, 2"); a("v_mov_b32 v2, 1")
    a("s_mov_b64 exec, 1")
    a("buffer_atomic_add v2, off, s[20:23], s24 sc0 sc1")
    a("s_mov_b64 exec, -1")
    a(f"v_and_b32 v3, 7, v{V_LANE}"); a("v_lshlrev_b32 v3, 2, v3")
    a("s_mov_b32 s30, 0")
    a("s_waitcnt vmcnt(0)")
    a.label(Lp)
    a("buffer_load_dword v5, v3, s[20:23], 0 offen sc1")
    a("s_waitcnt vmcnt(0)")
    a("v_readlane_b32 s24, v5, 0")
    for i in range(1, 8):
        a(f"v_readlane_b32 s25, v5, {i}"); a("s_nop 0"); a("s_add_u32 s24, s24, s25")
    a("s_cmp_ge_u32 s24, 256"); a(f"s_cbranch_scc1 {Lg}")
    a("s_sleep 2")
    poll_tail(a, Lp, abort)
    a.label(Lg)
    a("v_readlane_b32 s24, v2, 0")
    a("s_nop 3")
    a("v_writelane_b32 v5, s24, 8")
    a(f"v_lshl_add_u32 v3, v{V_LANE}, 2, v4")
    a("s_mov_b64 exec, 0x1ff")
    a("ds_write_b32 v3, v5")
    a("s_mov_b64 exec, -1")
    a("s_waitcnt lgkmcnt(0)")
    a.label(Lw)
    a("s_barrier")
    a(f"v_and_b32 v3, 15, v{V_LANE}"); a("v_lshl_add_u32 v3, v3, 2, v4")
    a("ds_read_b32 v5, v3")
    a("s_waitcnt lgkmcnt(0)")
    a("v_readlane_b32 s32, v5, 8")
    a("s_mov_b32 s33, 0"); a("s_mov_b32 s25, 256")
    for i in range(8):
        a(f"v_readlane_b32 s24, v5, {i}"); a("s_nop 0")
        if i < 4: a("s_min_u32 s25, s25, s24")
        else: a("s_cmp_eq_u32 s24, 0"); a("s_cselect_b32 s25, 0, s25")
        a(f"s_cmp_gt_u32 s31, {i}"); a("s_cselect_b32 s24, s24, 0"); a("s_add_u32 s33, s33, s24")
    a("s_add_u32 s33, s33, s32")
    a("s_barrier")
    Ls, Le = a.newlabel("Rs"), a.newlabel("Re")
    a(f"s_cmp_lt_u32 s25, {NCH}"); a(f"s_cbranch_scc1 {Ls}")
    a(f"s_mov_b32 s{S_MODE}, 0"); a(f"s_mov_b32 s{S_X}, s31"); a(f"s_mov_b32 s{S_R}, s32")
    a("s_cmp_lt_u32 s31, 4"); a("s_cselect_b32 s29, 1, 0")
    a(f"s_cmp_lt_u32 s32, {NCH}"); a("s_cselect_b32 s29, s29, 0")
    a(f"s_branch {Le}")
    a.label(Ls)
    a(f"s_mov_b32 s{S_MODE}, 1")
    a(f"s_mul_i32 s{S_X}, s33, 2731"); a(f"s_lshr_b32 s{S_X}, s{S_X}, 16")
    a(f"s_mul_i32 s24, s{S_X}, {NCH}"); a(f"s_sub_u32 s{S_R}, s33, s24")
    a(f"s_cmp_lt_u32 s33, {4*NCH}"); a("s_cselect_b32 s29, 1, 0")
    a.label(Le)
```

```python
from asmlib import *

MAIN = "parallel_sum__memory_aug_recurrent_mem_tr__glu_gated_geglu__prompt_kernel"
KA_X, KA_MEM0, KA_WQ, KA_WK, KA_WV, KA_WO, KA_SEG, KA_BX, KA_WG, KA_WU, KA_WD, KA_OUT, KA_DBG, KA_WS = [8*i for i in range(14)]
S, DM, NH, DH, DF = 2048, 1024, 32, 128, 3584
MB = 1 << 20
XN_STR = 2176;  XN_OFF = 0
Q_OFF  = 5*MB
K_OFF  = 21*MB
VT_OFF = 37*MB
H_STR  = 7296;  H_OFF  = 53*MB
OA_STR = 8320;  OA_OFF = 68*MB
BP_OFF = 85*MB
KVM_OFF = 90*MB
WS_SIZE = 256*MB

def load_srd(a, s, karg_sreg_pair, off, size):
    p = karg_sreg_pair
    if off:
        a(f"s_add_u32 s{s}, s{p}, {off}")
        a(f"s_addc_u32 s{s+1}, s{p+1}, 0")
        a(f"s_and_b32 s{s+1}, s{s+1}, 0xffff")
    else:
        a(f"s_mov_b32 s{s}, s{p}")
        a(f"s_and_b32 s{s+1}, s{p+1}, 0xffff")
    a(f"s_mov_b32 s{s+2}, {size}")
    a(f"s_mov_b32 s{s+3}, 0x20000")

def wave_reduce(a, op, v, t):
    for n in (1, 2, 4, 8):
        a("s_nop 1")
        a(f"{op}_dpp v{v}, v{v}, v{v} row_ror:{n} row_mask:0xf bank_mask:0xf")
    a(f"v_mov_b32 v{t}, v{v}")
    a("s_nop 1")
    a(f"v_permlane16_swap_b32 v{v}, v{t}")
    a(f"{op} v{v}, v{v}, v{t}")
    a(f"v_mov_b32 v{t}, v{v}")
    a("s_nop 1")
    a(f"v_permlane32_swap_b32 v{v}, v{t}")
    a(f"{op} v{v}, v{v}, v{t}")

def round_bf16(a, d, s):
    a(f"v_cvt_pk_bf16_f32 v{d}, v{s}, v{s}")
    a(f"v_lshlrev_b32 v{d}, 16, v{d}")

import struct
def f2u(x):
    return struct.unpack("<I", struct.pack("<f", x))[0]
NCOPY = 2
CH_BASE = 100*MB
CH_PART = CH_BASE
CH_MEM  = CH_BASE + NCOPY*MB
CH_VM   = CH_MEM + 256*1024
CH_OX   = CH_VM + 256*1024
EX_OFF  = CH_OX + 256*1024
CH_END  = EX_OFF + 2*MB
FLAGS   = CH_BASE + 8*MB
FL_NEAR = FLAGS
TS2_OFF = 208*MB
POLL_MAX = 1 << 20
FL_Q1L  = FLAGS + 128
FL_Q1G  = FLAGS + 128*9
FL_Q2G  = FLAGS + 128*10
FL_GU   = FLAGS + 128*11
FL_AT   = FLAGS + 128*19
FL_SLOT = FLAGS + 8192
FL_QKV  = FLAGS + 16384
FL_DN   = FLAGS + 24576
FL_STEP = FLAGS + 32768
FL_ATS  = FLAGS + 128*36
OL_OFF  = 112*MB
```

```python
from common import *

V_LANE = 1
V_DX = 16
V_DW = 24
V_RA = 32
V_FR = 64
V_T  = 128
S_SRDX = 8; S_SRDW = 12
S_OFFX = 16; S_OFFW = 17; S_M0X = 18; S_M0W = 19; S_LOOP = 20; S_WAVE = 3

KNOB = dict(nodma=False, noread=False, stagger=False, shift=0, m16=False, place=2)
class Gemm:
    def __init__(s, a, tag, MT, NT, NST, strX, strW, wmap, swap=False, xflags="", wflags="", xr4=False, wperm=False):
        s.a, s.tag, s.MT, s.NT, s.NST = a, tag, MT, NT, NST
        s.strX, s.strW, s.wmap, s.swap = strX, strW, wmap, swap
        s.xflags, s.wflags = xflags, wflags
        s.xr4, s.wperm = xr4, wperm
        s.XS = 8192*MT; s.WS = 8192*NT; s.SS = s.XS + s.WS
        s.RB = 64*NT
        s.D = 2*MT + 2*NT
        assert NT in (2, 4) and s.SS*NST <= 160*1024

    def acc(s, mt, nt): return (mt*s.NT + nt)*16
    def fx(s, st, mt): return V_FR + st*32 + mt*4
    def fw(s, st, nt): return V_FR + st*32 + 16 + nt*4

    def setup(s):
        a = s.a; MT, NT = s.MT, s.NT; L = V_LANE
        if not s.xr4:
            a(f"v_lshrrev_b32 v3, 4, v{L}")
            a(f"v_and_b32 v4, 7, v{L}")
            a(f"v_xor_b32 v3, v3, v4")
            a(f"v_lshrrev_b32 v2, 3, v{L}")
            a(f"s_mul_i32 s21, s{S_WAVE}, {16*MT}")
            a(f"v_add_u32 v2, s21, v2")
            a(f"s_mov_b32 s22, {s.strX}")
            a(f"v_mul_lo_u32 v2, v2, s22")
            a(f"v_lshlrev_b32 v3, 4, v3")
            a(f"v_xor_b32 v4, 64, v3")
        else:
            a(f"v_lshrrev_b32 v2, 5, v{L}")
            a(f"v_and_b32 v3, 31, v{L}"); a("v_lshlrev_b32 v3, 4, v3"); a("v_lshlrev_b32 v4, 7, v2"); a("v_xor_b32 v3, v3, v4")
            a(f"s_mul_i32 s21, s{S_WAVE}, {4*MT}")
            a(f"v_add_u32 v2, s21, v2")
            a(f"s_mov_b32 s22, {4*s.strX}")
            a(f"v_mul_lo_u32 v2, v2, s22")
            a(f"v_xor_b32 v4, 16, v3")
        a(f"v_add_u32 v3, v2, v3"); a(f"v_add_u32 v4, v2, v4")
        for j in range(2*MT):
            a(f"v_add_u32 v{V_DX+j}, {8*j*s.strX}, v{3+(j&1)}")
        lpr = s.RB//16; rpi = 64//lpr; sh = {16: 4, 8: 3}[lpr]
        a(f"v_lshrrev_b32 v2, {sh}, v{L}")
        a(f"v_and_b32 v3, {lpr-1}, v{L}")
        if NT == 4: a(f"v_lshlrev_b32 v4, 2, v2")
        else:
            a(f"v_and_b32 v4, 2, v2"); a(f"v_lshlrev_b32 v4, 1, v4")
        a(f"v_xor_b32 v3, v3, v4")
        a(f"s_and_b32 s21, s{S_WAVE}, 1"); a(f"s_lshl_b32 s21, s21, 5")
        if s.wperm and rpi == 8:
            a(f"v_lshrrev_b32 v4, 2, v2"); a("v_lshlrev_b32 v4, 4, v4"); a("v_and_b32 v2, 3, v2"); a("v_add_u32 v2, v2, v4")
        a(f"v_add_u32 v2, s21, v2")
        a(f"s_mov_b32 s22, {s.strW}")
        a(f"v_mul_lo_u32 v2, v2, s22")
        a(f"s_lshr_b32 s23, s{S_WAVE}, 1")
        if s.wmap == "head":
            a(f"v_lshrrev_b32 v4, 3, v3"); a(f"v_lshlrev_b32 v4, 8, v4")
            a(f"v_and_b32 v3, 7, v3"); a(f"v_lshlrev_b32 v3, 4, v3")
            a(f"v_add_u32 v3, v3, v4")
            a(f"s_lshl_b32 s23, s23, 7")
            a(f"v_add_u32 v3, s23, v3")
        elif s.wmap == "plain":
            a(f"v_lshlrev_b32 v3, 4, v3")
            a(f"s_mul_i32 s23, s23, {s.RB}")
            a(f"v_add_u32 v3, s23, v3")
        else:
            a(f"v_lshlrev_b32 v3, 4, v3")
        a(f"v_add_u32 v2, v2, v3")
        for j in range(2*NT):
            if not s.wperm: row = rpi*j
            elif rpi == 8: row = 4*j
            else: row = 16*(j & 1) + 4*(j >> 1)
            a(f"v_add_u32 v{V_DW+j}, {row*s.strW}, v2")
        a(f"s_mul_i32 s{S_M0X}, s{S_WAVE}, {2048*MT}")
        a(f"s_mul_i32 s{S_M0W}, s{S_WAVE}, {2048*NT}")
        a(f"s_add_u32 s{S_M0W}, s{S_M0W}, {s.XS}")
        a(f"s_lshr_b32 s21, s{S_WAVE}, 1"); a(f"s_mul_i32 s21, s21, {32*MT}")
        if not s.xr4:
            a(f"v_and_b32 v2, 31, v{L}")
            a(f"v_lshrrev_b32 v3, 1, v2"); a(f"v_and_b32 v3, 7, v3")
            a(f"v_lshrrev_b32 v4, 5, v{L}")
            a(f"v_xor_b32 v3, v3, v4")
            a(f"v_add_u32 v2, s21, v2"); a(f"v_lshlrev_b32 v2, 7, v2")
            for ks in range(4):
                a(f"v_xor_b32 v4, {2*ks}, v3"); a(f"v_lshlrev_b32 v4, 4, v4")
                a(f"v_add_u32 v{V_RA+ks}, v2, v4")
        else:
            a(f"v_bfe_u32 v2, v{L}, 2, 3"); a("v_lshlrev_b32 v2, 9, v2"); a("s_lshl_b32 s21, s21, 7"); a("v_add_u32 v2, s21, v2")
            a(f"v_and_b32 v3, 3, v{L}"); a("v_lshl_add_u32 v2, v3, 5, v2")
            a(f"v_lshrrev_b32 v3, 5, v{L}"); a(f"v_bfe_u32 v4, v{L}, 3, 1"); a("v_xor_b32 v3, v3, v4"); a("v_lshl_add_u32 v2, v3, 4, v2")
            a(f"v_bfe_u32 v3, v{L}, 2, 1")
            for ks in range(4):
                a(f"v_xor_b32 v4, {ks}, v3"); a(f"v_lshl_add_u32 v{V_RA+ks}, v4, 7, v2")
        a(f"v_lshrrev_b32 v2, 5, v{L}"); a(f"v_lshlrev_b32 v2, 3, v2")
        a(f"v_bfe_u32 v3, v{L}, 2, 2")
        a(f"v_add_u32 v2, v2, v3")
        a(f"v_mul_u32_u24 v2, {s.RB}, v2")
        a(f"v_bfe_u32 v4, v{L}, 4, 1"); a(f"v_lshlrev_b32 v4, 5, v4"); a(f"v_add_u32 v2, v2, v4")
        a(f"v_and_b32 v4, 3, v{L}"); a(f"v_lshlrev_b32 v4, 3, v4"); a(f"v_add_u32 v2, v2, v4")
        a(f"v_add_u32 v2, {s.XS}, v2")
        a(f"s_and_b32 s21, s{S_WAVE}, 1")
        if NT == 4:
            a(f"s_lshl_b32 s21, s21, 1")
            for p in range(2):
                a(f"v_xor_b32 v4, s21, v3")
                if p: a(f"v_xor_b32 v4, 1, v4")
                a(f"v_lshlrev_b32 v4, 6, v4"); a(f"v_add_u32 v{V_RA+4+p}, v2, v4")
        else:
            a(f"v_lshrrev_b32 v4, 1, v3"); a(f"v_xor_b32 v4, s21, v4")
            a(f"v_lshlrev_b32 v4, 6, v4"); a(f"v_add_u32 v{V_RA+4}, v2, v4")
        for b in range(1, s.NST):
            for r in range(6 if NT == 4 else 5):
                a(f"v_add_u32 v{V_RA+6*b+r}, {b*s.SS}, v{V_RA+r}")

    def dma_groups(s, buf):
        g = []
        for j in range(2*s.MT):
            g.append([f"s_add_u32 m0, s{S_M0X}, {buf*s.SS + 1024*j}", None,
                      f"buffer_load_dwordx4 v{V_DX+j}, {sr(S_SRDX,4)}, s{S_OFFX} offen {s.xflags} lds"])
        for j in range(2*s.NT):
            g.append([f"s_add_u32 m0, s{S_M0W}, {buf*s.SS + 1024*j}", None,
                      f"buffer_load_dwordx4 v{V_DW+j}, {sr(S_SRDW,4)}, s{S_OFFW} offen {s.wflags} lds"])
        x, w = g[:2*s.MT], g[2*s.MT:]
        out = []
        for i in range(max(len(x), len(w))):
            if i < len(x): out.append(x[i])
            if i < len(w): out.append(w[i])
        return out
    def advance(s):
        return [f"s_add_u32 s{S_OFFX}, s{S_OFFX}, {512 if s.xr4 else 128}", f"s_add_u32 s{S_OFFW}, s{S_OFFW}, {64*s.strW}"]
    def reads(s, buf, ks, st):
        r = []
        ra = V_RA + 6*buf
        xs = [f"ds_read_b128 {vr(s.fx(st,mt),4)}, v{ra+ks} offset:{mt*4096}" for mt in range(s.MT)]
        ws = []
        for nt in range(s.NT):
            half = nt // (s.NT//2); p = (nt % 2) if s.NT == 4 else 0
            for q in range(2):
                off = half*(s.WS//2) + (16*ks + 4*q)*s.RB
                ws.append(f"ds_read_b64_tr_b16 {vr(s.fw(st,nt)+2*q,2)}, v{ra+4+p} offset:{off}")
        r += ws[0:2] + xs[0:1]
        xi, wi = 1, 2
        while xi < len(xs) or wi < len(ws):
            if xi < len(xs): r.append(xs[xi]); xi += 1
            if wi < len(ws): r += ws[wi:wi+2]; wi += 2
        return r
    def mfmas(s, st, zero=False):
        m = []
        for nt in range(s.NT):
            for mt in range(s.MT):
                c = s.acc(mt, nt)
                A, B = vr(s.fw(st,nt),4), vr(s.fx(st,mt),4)
                if s.swap: A, B = B, A
                if KNOB['m16']:
                    st2 = 4*(st & 1)*2
                    m.append(f"v_mfma_f32_16x16x32_bf16 {ar(c+st2,4)}, {A}, {B}, {'0' if zero else ar(c+st2,4)}\nv_mfma_f32_16x16x32_bf16 {ar(c+st2+4,4)}, {B}, {A}, {'0' if zero else ar(c+st2+4,4)}")
                else:
                    m.append(f"v_mfma_f32_32x32x16_bf16 {ar(c,16)}, {A}, {B}, {'0' if zero else ar(c,16)}")
        return m

    def kstep(s, st, reads, dmas, zero=False, tail=None, pre=None):
        a = s.a
        m = s.mfmas(st, zero); n = len(m)
        gaps = [[] for _ in range(n)]
        ngap = n if tail is None else max(1, n - max(1, n//4))
        rg = max(1, min(ngap, len(reads))) if tail is None else max(1, min(ngap - (1 if ngap > 2 else 0), len(reads)))
        if n >= 16: rg = min(rg, 12 if tail is None else 8)
        pl = KNOB['place'] if n >= 16 else 0
        if KNOB['nodma']: dmas = []
        if KNOB['noread']: reads = []
        if pl == 0:
            for i, r in enumerate(reads): gaps[i*rg//len(reads)].append(r)
            for i, g in enumerate(dmas): gaps[(2*i+1)*ngap//(2*len(dmas))].append(g)
        elif pl == 1:
            for i, r in enumerate(reads): gaps[i//2].append(r)
            for i, g in enumerate(dmas): gaps[6 + (i*10)//len(dmas) + (1 if len(dmas) <= 5 else 0)].append(g)
        elif pl == 2:
            if dmas:
                for i, g in enumerate(dmas): gaps[i].append(g)
                for i, r in enumerate(reads): gaps[len(dmas) + i//2 + (0 if len(dmas) > 5 else 1)].append(r)
            else:
                for i, r in enumerate(reads): gaps[i*rg//len(reads)].append(r)
        elif pl == 3:
            if dmas:
                for i, r in enumerate(reads): gaps[2*(i//2)].append(r)
                for i, g in enumerate(dmas): gaps[2*i+1 + (2 if len(dmas) <= 5 else 0)].append(g)
            else:
                for i, r in enumerate(reads): gaps[i*rg//len(reads)].append(r)
        a("s_waitcnt lgkmcnt(0)")
        if pre:
            for x in pre: a(x)
        early = False
        for i in range(n):
            if tail is not None and i == ngap:
                for x in tail: a(x)
            a(m[i])
            grp = [x for x in gaps[i] if isinstance(x, list)]
            rds = [x for x in gaps[i] if not isinstance(x, list)]
            for gi, g in enumerate(grp):
                if not (gi == 0 and early):
                    a(g[0])
                    if rds: a(rds.pop(0))
                    else: a("s_nop 0")
                a(g[2])
            for r in rds: a(r)
            nx = [x for x in gaps[i+1] if isinstance(x, list)] if i+1 < n else []
            early = bool(nx) and KNOB['place'] > 0 and not (tail is not None and i+1 == ngap)
            if early: a(nx[0][0])

    def issue_stage(s, buf):
        a = s.a
        for g in s.dma_groups(buf):
            a(g[0]); a("s_nop 0"); a(g[2])
        for x in s.advance(): a(x)

    def phase(s, bcur, dma, vm, last_barrier=True):
        bn = (bcur+1) % s.NST
        d = s.dma_groups(bcur) if dma else []
        k = (len(d)+2)//3
        parts = [d[0:k], d[k:2*k], d[2*k:]]
        s.kstep(1, s.reads(bn, 0, 0), parts[0])
        s.kstep(0, s.reads(bn, 1, 1), parts[1])
        s.kstep(1, s.reads(bn, 2, 0), parts[2])
        tail = []
        if vm is not None: tail.append(f"s_waitcnt vmcnt({vm}) lgkmcnt(0)")
        else: tail.append("s_waitcnt lgkmcnt(0)")
        if last_barrier: tail.append("s_barrier")
        pre = s.advance() if dma else None
        s.kstep(0, s.reads(bn, 3, 1), [], tail=tail, pre=pre)

    def prologue_dma(s):
        for b in range(s.NST): s.issue_stage(b)

    def main(s, T, dma_issued=False, extra_vm=0, hook_first=None, hook_tail=None):
        a = s.a; N = s.NST; D = s.D
        assert T >= 2*N
        rem = (T - N) % N
        if not dma_issued: s.prologue_dma()
        a(f"s_waitcnt vmcnt({min(63,(N-1)*D + extra_vm)})")
        a("s_barrier")
        for r in s.reads(0, 0, 0): a(r)
        if hook_first: hook_first()
        s.kstep(0, s.reads(0, 1, 1), [], zero=True)
        s.kstep(1, s.reads(0, 2, 0), [])
        s.kstep(0, s.reads(0, 3, 1), [], tail=[f"s_waitcnt vmcnt({min(63,(N-2)*D + extra_vm)}) lgkmcnt(0)", "s_barrier"])
        a(f"s_mov_b32 s{S_LOOP}, {(T-N)//N}")
        ncopy = 3 if KNOB['stagger'] else 1
        Ls = [a.newlabel(f"G{s.tag}") for _ in range(ncopy)]
        Le = a.newlabel(f"GE{s.tag}")
        if ncopy > 1:
            a(f"s_cmp_eq_u32 s{S_WAVE}, 1"); a(f"s_cbranch_scc1 {Ls[1]}")
            a(f"s_cmp_eq_u32 s{S_WAVE}, 2"); a(f"s_cbranch_scc1 {Ls[2]}")
            a(f"s_cmp_eq_u32 s{S_WAVE}, 3"); a(f"s_cbranch_scc1 {Ls[1]}")
        for c in range(ncopy):
            s.shift = c
            a.label(Ls[c])
            for b in range(N):
                s.phase(b, True, (N-2)*D)
            a(f"s_sub_u32 s{S_LOOP}, s{S_LOOP}, 1")
            a(f"s_cmp_lg_u32 s{S_LOOP}, 0")
            a(f"s_cbranch_scc1 {Ls[c]}")
            if c < ncopy-1: a(f"s_branch {Le}")
        a.label(Le)
        for b in range(rem): s.phase(b, True, (N-2)*D)
        for i in range(N-1):
            p = T-N+i
            if p+2 <= T-1: s.phase((rem+i) % N, False, (T-1-(p+2))*D)
            else:
                if hook_tail: hook_tail()
                s.phase((rem+i) % N, False, None)
        s.kstep(1, [], [])

    def accread(s, dst, src):
        s.a(f"v_accvgpr_read_b32 v{dst}, a{src}")

    def epi_qk(s, srd, s_base, flags=""):
        a = s.a; L = V_LANE; T = V_T
        a("s_nop 15")
        a(f"v_bfe_u32 v2, v{L}, 4, 1"); a("v_lshlrev_b32 v2, 12, v2")
        a(f"v_and_b32 v3, 15, v{L}"); a("v_lshl_add_u32 v2, v3, 4, v2")
        a(f"v_lshrrev_b32 v3, 5, v{L}"); a("v_lshl_add_u32 v2, v3, 8, v2")
        a(f"s_lshr_b32 s21, s{S_WAVE}, 1"); a(f"s_mul_i32 s21, s21, {s.MT*32*8192}")
        a(f"s_and_b32 s22, s{S_WAVE}, 1"); a("s_lshl_b32 s22, s22, 13"); a("s_add_u32 s21, s21, s22")
        a(f"s_add_u32 s21, s21, s{s_base}")
        k = 0
        for mt in range(s.MT):
            for t in range(2):
                for q in range(4):
                    R = T + (k % 4)*12; k += 1
                    for i in range(4): s.accread(R+4+i, s.acc(mt,t)+4*q+i)
                    for i in range(4): s.accread(R+8+i, s.acc(mt,t+2)+4*q+i)
                    for i in range(4): a(f"v_cvt_pk_bf16_f32 v{R+i}, v{R+4+2*i}, v{R+5+2*i}")
                    a(f"buffer_store_dwordx4 {vr(R,4)}, v2, {sr(srd,4)}, s21 offen offset:{512*(4*t+q)} {flags}")
            if mt < s.MT-1: a(f"s_add_u32 s21, s21, {32*8192}")

    def epi_v(s, srd, s_base, flags=""):
        a = s.a; L = V_LANE; T = V_T
        a("s_nop 15")
        a(f"v_bfe_u32 v2, v{L}, 4, 1"); a("v_lshlrev_b32 v2, 10, v2")
        a(f"v_and_b32 v3, 15, v{L}"); a("v_lshl_add_u32 v2, v3, 4, v2")
        a(f"v_lshrrev_b32 v3, 5, v{L}"); a("v_lshl_add_u32 v2, v3, 8, v2")
        a("v_add_u32 v3, 4096, v2")
        a(f"s_lshr_b32 s21, s{S_WAVE}, 1"); a(f"s_mul_i32 s21, s21, {s.MT*32*8192}")
        a(f"s_and_b32 s22, s{S_WAVE}, 1"); a("s_lshl_b32 s22, s22, 13"); a("s_add_u32 s21, s21, s22")
        a(f"s_add_u32 s21, s21, s{s_base}")
        k = 0
        for mt in range(s.MT):
            for nt in range(4):
                for qp in range(2):
                    R = T + (k % 4)*12; k += 1
                    for i in range(4): s.accread(R+4+i, s.acc(mt,nt)+4*qp+i)
                    for i in range(4): s.accread(R+8+i, s.acc(mt,nt)+8+4*qp+i)
                    for i in range(4): a(f"v_cvt_pk_bf16_f32 v{R+i}, v{R+4+2*i}, v{R+5+2*i}")
                    a(f"buffer_store_dwordx4 {vr(R,4)}, v{2+(nt>>1)}, {sr(srd,4)}, s21 offen offset:{(nt&1)*2048+512*qp} {flags}")
            if mt < s.MT-1: a(f"s_add_u32 s21, s21, {32*8192}")

    def row_voffset(s, stride, wn_bytes, r4, dst=2):
        a = s.a; L = V_LANE; d = dst
        a(f"s_lshr_b32 s21, s{S_WAVE}, 1"); a(f"s_mul_i32 s21, s21, {32*s.MT*stride}")
        a(f"s_and_b32 s22, s{S_WAVE}, 1"); a(f"s_mul_i32 s22, s22, {wn_bytes*(4 if r4 else 1)}")
        a("s_add_u32 s21, s21, s22")
        if r4:
            a(f"v_bfe_u32 v{d}, v{L}, 2, 3"); a(f"s_mov_b32 s22, {4*stride}"); a(f"v_mul_lo_u32 v{d}, v{d}, s22")
            a(f"v_and_b32 v3, 3, v{L}"); a("v_lshlrev_b32 v3, 5, v3"); a(f"v_add_u32 v{d}, v{d}, v3")
        else:
            a(f"v_and_b32 v{d}, 31, v{L}"); a(f"s_mov_b32 s22, {stride}"); a(f"v_mul_lo_u32 v{d}, v{d}, s22")
        a(f"v_lshrrev_b32 v3, 5, v{L}"); a("v_lshlrev_b32 v3, 4, v3"); a(f"v_add_u32 v{d}, v{d}, v3")
        a(f"v_add_u32 v{d}, s21, v{d}")

    def epi_gu(s, srd, s_base, flags=""):
        import math
        a = s.a; T = V_T
        a("s_nop 15")
        s.row_voffset(H_STR, 128, True)
        c0 = -2.0*math.sqrt(2.0/math.pi)*math.log2(math.e); c1 = c0*0.044715
        a(f"v_mov_b32 v4, {f2u(c0):#x}"); a(f"v_mov_b32 v5, {f2u(c0):#x}")
        a(f"v_mov_b32 v6, {f2u(c1):#x}"); a(f"v_mov_b32 v7, {f2u(c1):#x}")
        a("v_mov_b32 v8, 1.0"); a("v_mov_b32 v9, 1.0")
        a(f"s_mov_b32 s21, s{s_base}")
        k = 0
        for mt in range(s.MT):
            for t in range(2):
                for qq in range(2):
                    R = T + (k % 2)*40; k += 1
                    G, U, P, O = R, R+8, R+16, R+32
                    for i in range(8): s.accread(G+i, s.acc(mt,t)+8*qq+i)
                    for i in range(8): s.accread(U+i, s.acc(mt,t+2)+8*qq+i)
                    for i in range(0, 8, 2): a(f"v_pk_mul_f32 {vr(P+i,2)}, {vr(G+i,2)}, {vr(G+i,2)}")
                    for i in range(0, 8, 2): a(f"v_pk_fma_f32 {vr(P+i,2)}, {vr(P+i,2)}, v[6:7], v[4:5]")
                    for i in range(0, 8, 2): a(f"v_pk_mul_f32 {vr(P+i,2)}, {vr(P+i,2)}, {vr(G+i,2)}")
                    for i in range(8): a(f"v_exp_f32 v{P+i}, v{P+i}")
                    for i in range(0, 8, 2): a(f"v_pk_mul_f32 {vr(G+i,2)}, {vr(G+i,2)}, {vr(U+i,2)}")
                    for i in range(0, 8, 2): a(f"v_pk_add_f32 {vr(P+i,2)}, {vr(P+i,2)}, v[8:9]")
                    for i in range(8): a(f"v_rcp_f32 v{P+i}, v{P+i}")
                    a("s_nop 0")
                    for i in range(0, 8, 2): a(f"v_pk_mul_f32 {vr(G+i,2)}, {vr(G+i,2)}, {vr(P+i,2)}")
                    for i in range(4): a(f"v_cvt_pk_bf16_f32 v{O+i}, v{G+2*i}, v{G+2*i+1}")
                    a("s_nop 1")
                    a(f"v_permlane32_swap_b32 v{O}, v{O+2}")
                    a(f"v_permlane32_swap_b32 v{O+1}, v{O+3}")
                    a(f"buffer_store_dwordx4 {vr(O,4)}, v2, {sr(srd,4)}, s21 offen offset:{4*(64*t+32*qq)} {flags}")
            if mt < s.MT-1: a(f"s_add_u32 s21, s21, {32*H_STR}")

    def epi_plain(s, srd, s_row0, s_col0, flags="", final=None):
        a = s.a; T = V_T; NT = s.NT
        s.row_voffset(2048, 32*NT, True, 10)
        if final: s.row_voffset(2048, 32*NT, False, 2)
        groups = []
        for mt in range(s.MT):
            for nt in range(NT):
                for qq in range(2):
                    off = (nt//(NT//2))*64*NT + (nt % (NT//2))*64 + 32*qq
                    groups.append((mt, nt, qq, off))
        def srow(mt): return 84 + mt
        def srow4(mt): return 88 + mt
        a(f"s_lshl_b32 s21, s{s_col0}, 2"); a(f"s_add_u32 s21, s21, s{s_row0}")
        a(f"s_add_u32 s22, s{s_col0}, s{s_row0}")
        for mt in range(s.MT):
            a(f"s_add_u32 s{srow(mt)}, s22, {mt*32*2048}")
            a(f"s_add_u32 s{srow4(mt)}, s21, {mt*32*2048}")
        LD = T + 32
        NB = 8
        def issue(i):
            mt, nt, qq, off = groups[i]
            Rr = LD + (i % NB)*8
            a(f"buffer_load_dwordx4 {vr(Rr,4)}, v2, {sr(final[0],4)}, s{srow(mt)} offen offset:{off}")
            a(f"buffer_load_dwordx4 {vr(Rr+4,4)}, v10, {sr(final[1],4)}, s{srow4(mt)} offen offset:{4*off} {final[2]}")
        if final:
            for i in range(min(NB-1, len(groups))): issue(i)
        a("s_nop 15")
        for gi, (mt, nt, qq, off) in enumerate(groups):
            R = T + (gi % 2)*16
            G, O = R, R+8
            for i in range(8): s.accread(G+i, s.acc(mt,nt)+8*qq+i)
            for i in range(4): a(f"v_cvt_pk_bf16_f32 v{O+i}, v{G+2*i}, v{G+2*i+1}")
            a("s_nop 1")
            a(f"v_permlane32_swap_b32 v{O}, v{O+2}")
            a(f"v_permlane32_swap_b32 v{O+1}, v{O+3}")
            if final:
                nxt = gi + NB - 1
                if nxt < len(groups): issue(nxt)
                lo = 2*(min(nxt, len(groups)-1) - gi)
                a(f"s_waitcnt vmcnt({lo})")
                X = LD + (gi % NB)*8
                for i in range(4):
                    a(f"v_lshlrev_b32 v{G}, 16, v{O+i}"); a(f"v_and_b32 v{G+1}, 0xffff0000, v{O+i}")
                    a(f"v_lshlrev_b32 v{G+2}, 16, v{X+i}"); a(f"v_and_b32 v{G+3}, 0xffff0000, v{X+i}")
                    a(f"v_pk_add_f32 {vr(G,2)}, {vr(G,2)}, {vr(G+2,2)}")
                    a(f"v_cvt_pk_bf16_f32 v{G+4}, v{G}, v{G+1}")
                    a(f"v_lshlrev_b32 v{G}, 16, v{G+4}"); a(f"v_and_b32 v{G+1}, 0xffff0000, v{G+4}")
                    a(f"v_lshlrev_b32 v{G+2}, 16, v{X+4+i}"); a(f"v_and_b32 v{G+3}, 0xffff0000, v{X+4+i}")
                    a(f"v_pk_add_f32 {vr(G,2)}, {vr(G,2)}, {vr(G+2,2)}")
                    a(f"v_cvt_pk_bf16_f32 v{O+i}, v{G}, v{G+1}")
                a(f"buffer_store_dwordx4 {vr(O,4)}, v2, {sr(srd,4)}, s{srow(mt)} offen offset:{off} {flags}")
            else:
                a(f"buffer_store_dwordx4 {vr(O,4)}, v10, {sr(srd,4)}, s{srow4(mt)} offen offset:{4*off} {flags}")
```

```python
from common import *

def emit_ln_row(a, srd_x, srd_xn, s_row, vb, store_flags=""):
    L = vb; X = vb+2; F = vb+12; T = vb+30
    assert X % 2 == 0
    st = s_row+1
    a(f"s_lshl_b32 s{st}, s{s_row}, 11")
    a(f"buffer_load_dwordx4 {vr(X,4)}, v{L}, {sr(srd_x,4)}, s{st} offen")
    a(f"buffer_load_dwordx4 {vr(X+4,4)}, v{L}, {sr(srd_x,4)}, s{st} offen offset:1024")
    a("s_waitcnt vmcnt(0)")
    for i in range(8):
        a(f"v_lshlrev_b32 v{F+2*i}, 16, v{X+i}")
        a(f"v_and_b32 v{F+2*i+1}, 0xffff0000, v{X+i}")
    a(f"v_add_f32 v{T}, v{F}, v{F+1}")
    for i in range(2, 16): a(f"v_add_f32 v{T}, v{T}, v{F+i}")
    wave_reduce(a, "v_add_f32", T, T+1)
    a(f"v_mul_f32 v{T}, {f2u(1/1024):#x}, v{T}")
    a(f"v_sub_f32 v{T+2}, v{F}, v{T}")
    a(f"v_mul_f32 v{T+3}, v{T+2}, v{T+2}")
    for i in range(1, 16):
        a(f"v_sub_f32 v{T+2}, v{F+i}, v{T}")
        a(f"v_fmac_f32 v{T+3}, v{T+2}, v{T+2}")
    wave_reduce(a, "v_add_f32", T+3, T+1)
    a(f"v_mul_f32 v{T+3}, {f2u(1/1024):#x}, v{T+3}")
    round_bf16(a, T, T)
    round_bf16(a, T+3, T+3)
    a(f"v_add_f32 v{T+3}, {f2u(1e-5):#x}, v{T+3}")
    round_bf16(a, T+3, T+3)
    a(f"v_sqrt_f32 v{T+3}, v{T+3}")
    a("s_nop 0")
    round_bf16(a, T+3, T+3)
    a(f"v_rcp_f32 v{T+4}, v{T+3}")
    for i in range(8):
        a(f"v_sub_f32 v{F+2*i}, v{F+2*i}, v{T}")
        a(f"v_sub_f32 v{F+2*i+1}, v{F+2*i+1}, v{T}")
        a(f"v_cvt_pk_bf16_f32 v{X+i}, v{F+2*i}, v{F+2*i+1}")
        a(f"v_lshlrev_b32 v{F+2*i}, 16, v{X+i}")
        a(f"v_and_b32 v{F+2*i+1}, 0xffff0000, v{X+i}")
        for j in (0, 1):
            f = F+2*i+j
            a(f"v_mul_f32 v{T+5+j}, v{f}, v{T+4}")
            a(f"v_fma_f32 v{f}, -v{T+5+j}, v{T+3}, v{f}")
            a(f"v_fma_f32 v{T+5+j}, v{f}, v{T+4}, v{T+5+j}")
        a(f"v_cvt_pk_bf16_f32 v{X+i}, v{T+5}, v{T+6}")
    a(f"s_mul_i32 s{st}, s{s_row}, {XN_STR}")
    a(f"buffer_store_dwordx4 {vr(X,4)}, v{L}, {sr(srd_xn,4)}, s{st} offen {store_flags}")
    a(f"buffer_store_dwordx4 {vr(X+4,4)}, v{L}, {sr(srd_xn,4)}, s{st} offen offset:1024 {store_flags}")

def emit_ln_kernel(a, name):
    kernel_header(a, name)
    a("s_cmp_ge_u32 s2, 512"); a(f"s_cbranch_scc1 {name}_end")
    a(f"s_load_dwordx2 s[4:5], s[0:1], {KA_X}")
    a(f"s_load_dwordx2 s[6:7], s[0:1], {KA_WS}")
    a("v_lshrrev_b32 v1, 6, v0")
    a("v_and_b32 v2, 63, v0")
    a("v_readfirstlane_b32 s3, v1")
    a("v_lshlrev_b32 v2, 4, v2")
    a("s_waitcnt lgkmcnt(0)")
    load_srd(a, 8, 4, 0, S*DM*2)
    load_srd(a, 12, 6, XN_OFF, S*XN_STR)
    a("s_lshl_b32 s16, s2, 2"); a("s_add_u32 s16, s16, s3")
    emit_ln_row(a, 8, 12, 16, 2)
    a.label(f"{name}_end")
    a("s_endpgm")

NPOIS = (CH_END - CH_BASE)//65536 - 1
PRE_GRID = 512 + 64 + NPOIS + 1
def emit_pre_kernel(a, name):
    kernel_header(a, name)
    a(f"s_cmp_ge_u32 s2, {PRE_GRID}"); a(f"s_cbranch_scc1 {name}_end")
    a(f"s_load_dwordx4 s[4:7], s[0:1], {KA_X}")
    a(f"s_load_dwordx2 s[20:21], s[0:1], {KA_WS}")
    a("v_lshrrev_b32 v1, 6, v0")
    a("v_and_b32 v2, 63, v0")
    a("v_readfirstlane_b32 s3, v1")
    a("v_lshlrev_b32 v2, 4, v2")
    a("s_waitcnt lgkmcnt(0)")
    a(f"s_cmp_ge_u32 s2, 576"); a(f"s_cbranch_scc1 {name}_fill")
    a(f"s_cmp_ge_u32 s2, 512"); a(f"s_cbranch_scc1 {name}_mem")
    load_srd(a, 8, 4, 0, S*DM*2)
    load_srd(a, 12, 20, XN_OFF, S*XN_STR)
    a("s_lshl_b32 s16, s2, 2"); a("s_add_u32 s16, s16, s3")
    emit_ln_row(a, 8, 12, 16, 2)
    a("s_endpgm")
    a.label(f"{name}_mem")
    load_srd(a, 8, 6, 0, 8*DM*2)
    load_srd(a, 12, 20, CH_MEM, 65536)
    a("s_sub_u32 s16, s2, 512"); a("s_and_b32 s17, s16, 15"); a("s_lshl_b32 s17, s17, 7")
    a("v_bfe_u32 v1, v0, 2, 3"); a("v_lshlrev_b32 v1, 11, v1")
    a("v_lshrrev_b32 v2, 6, v0"); a("v_lshl_add_u32 v1, v2, 5, v1")
    a("v_and_b32 v2, 3, v0"); a("v_lshl_add_u32 v1, v2, 3, v1")
    a("v_bfe_u32 v2, v0, 5, 1"); a("v_lshl_add_u32 v1, v2, 2, v1")
    a("buffer_load_dword v3, v1, s[8:11], s17 offen")
    a("v_lshlrev_b32 v2, 2, v0"); a("s_lshl_b32 s16, s16, 10")
    a("s_waitcnt vmcnt(0)")
    a("buffer_store_dword v3, v2, s[12:15], s16 offen")
    a("s_endpgm")
    a.label(f"{name}_fill")
    load_srd(a, 12, 20, 0, WS_SIZE)
    a("s_sub_u32 s16, s2, 576"); a(f"s_cmp_ge_u32 s16, {NCOPY*16}"); a("s_addc_u32 s16, s16, 0")
    a("s_lshl_b32 s16, s16, 16"); a(f"s_add_u32 s16, s16, {CH_BASE}")
    a(f"s_cmp_eq_u32 s2, {PRE_GRID-1}")
    a(f"s_cselect_b32 s16, {FLAGS}, s16"); a("s_cselect_b32 s17, 0, -1")
    for i in range(4): a(f"v_mov_b32 v{4+i}, s17")
    a("v_lshlrev_b32 v2, 4, v0")
    for i in range(16):
        a("buffer_store_dwordx4 v[4:7], v2, s[12:15], s16 offen")
        if i < 15: a("s_add_u32 s16, s16, 4096")
    a.label(f"{name}_end")
    a("s_endpgm")
```

```python
from common import *
from ln import *
from gemm import *
from att import att_item
import chain, gemm
from chain import role_A, role_VR, assign_roles, poll_tail, S_WS

LDS_SCR = 156*1024
S_PH, S_CTR, S_B, S_ITEM = 96, 97, 98, 99
S_PRE, S_POFF, S_PVAL = 39, 68, 69
S_FL = 92
PROFW = False
TSW_OFF = 216*MB

BATCH = {"K1": [("K1",0,0,4)], "KV1a": [("KV",1,0,4)], "KV1b": [("KV",1,4,4)], "KV2a": [("KV",2,0,4)], "KV2b": [("KV",2,4,4)],
         "KV3a": [("KV",3,0,4)], "KV3b": [("KV",3,4,4)], "Q0": [("Q",0,0,4)], "Q1": [("Q",1,0,4)], "Q2": [("Q",2,0,4)], "Q3": [("Q",3,0,4)],
         "G1": [("GU",0,0,4)], "G2": [("GU",0,4,3),("GU",1,0,1)], "G3": [("GU",1,1,4)], "G4": [("GU",1,5,2),("GU",2,0,2)],
         "G5": [("GU",2,2,4)], "G6": [("GU",2,6,1),("GU",3,0,3)], "G7": [("GU",3,3,4)],
         "DNa": [("DN",0,0,4)], "DNb": [("DN",0,4,4)], "W2x": [("W2",0,0,4)], "W1x": [("W1",0,8,4)], "WR": [("WR",0,0,4)], "WRa": [("WR",0,0,2),("W1",0,8,2)], "WRb": [("WR",0,2,2),("W1",0,10,2)], "": [("QA",0,0,4)]}
LISTS = [['K1', 'KV1b', 'KV2b', 'G3', 'KV3b', 'W2x'], ['G1', 'G6', 'G5', 'Q1', 'Q3', 'WRa'], ['G7', 'KV1a', 'Q0', 'Q2', 'KV3a', 'DNa'], ['KV2a', 'G4', 'G2', 'DNb', 'WRb']]
def q1_list():
    out = []
    for r in range(max(map(len, LISTS))):
        for l in LISTS: out += BATCH[l[r] if r < len(l) else ""]
    return out
NBLK = 12
WRPOS = 44
NQA = NBLK*16 + (64-4*NBLK)*8
NROT = 8

def load_ptrs(a):
    a("s_load_dwordx8 s[40:47], s[0:1], 0")
    a("s_load_dwordx4 s[48:51], s[0:1], 32")
    a("s_load_dwordx8 s[56:63], s[0:1], 64")
    a("s_load_dwordx4 s[64:67], s[0:1], 96")

def atomic_ret(a, vdst, s_off, val):
    a(f"v_mov_b32 v{vdst}, {val}")
    a("s_mov_b64 exec, 1")
    a(f"buffer_atomic_add v{vdst}, off, {sr(S_FL,4)}, s{s_off} sc0 sc1")
    a("s_mov_b64 exec, -1")
    a("s_waitcnt vmcnt(0)")

def signal(a, s_off, val, srd=S_FL, vtmp=4):
    a(f"v_mov_b32 v{vtmp}, {val}")
    a("s_mov_b64 exec, 1")
    a(f"buffer_atomic_add v{vtmp}, off, {sr(srd,4)}, s{s_off} sc1")
    a("s_mov_b64 exec, -1")

def wait_flags(a, voff_setup, s_base, mask, target, abort, nlanes, vd=4, vo=5, sleep=8):
    Lw, Lp = a.newlabel("Wf"), a.newlabel("Wp")
    a(f"s_cmp_lg_u32 s{S_WAVE}, 0"); a(f"s_cbranch_scc1 {Lw}")
    voff_setup()
    a("s_mov_b32 s30, 0"); a(f"s_mov_b32 s21, {target:#x}")
    a.label(Lp)
    a(f"buffer_load_dword v{vd}, v{vo}, {sr(S_FL,4)}, s{s_base} offen sc1")
    a("s_waitcnt vmcnt(0)")
    if mask != 0xffffffff: a(f"v_and_b32 v{vd}, {mask:#x}, v{vd}")
    a(f"v_cmp_ne_u32 vcc, s21, v{vd}")
    a(f"s_cbranch_vccz {Lw}")
    if sleep: a(f"s_sleep {sleep}")
    poll_tail(a, Lp, abort)
    a.label(Lw)
    a("s_barrier")

def finish(a, s_off, val):
    a("s_waitcnt vmcnt(0)")
    a("s_barrier")
    L = a.newlabel("Fin")
    a(f"s_cmp_lg_u32 s{S_WAVE}, 0"); a(f"s_cbranch_scc1 {L}")
    signal(a, s_off, val)
    a.label(L)

def wstamp(a, i):
    if PROFW: a(f"s_memrealtime s[{70+2*i}:{71+2*i}]")

def wor_item(a, END):
    L = V_LANE; W = S_WAVE
    load_srd(a, S_SRDW, 50, 0, 4096*DM*2)
    a(f"v_bfe_u32 v2, v{L}, 4, 1"); a("v_lshlrev_b32 v2, 4, v2")
    a(f"v_lshrrev_b32 v3, 5, v{L}"); a("v_lshl_add_u32 v2, v3, 2, v2")
    a(f"v_bfe_u32 v3, v{L}, 2, 2"); a("v_add_u32 v2, v2, v3"); a("v_lshlrev_b32 v2, 11, v2")
    a(f"v_and_b32 v3, 3, v{L}"); a("v_lshl_add_u32 v2, v3, 4, v2"); a(f"v_add_u32 v6, {8*2048}, v2")
    a(f"s_lshl_b32 s27, s{W}, 15")
    a(f"v_lshrrev_b32 v4, 5, v{L}"); a(f"v_bfe_u32 v5, v{L}, 2, 2"); a("v_lshl_add_u32 v4, v4, 3, v5"); a("v_lshlrev_b32 v4, 6, v4")
    a(f"v_bfe_u32 v5, v{L}, 4, 1"); a("v_lshl_add_u32 v4, v5, 5, v4"); a("v_lshl_add_u32 v4, v3, 3, v4"); a("v_add_u32 v4, s27, v4")
    a(f"s_lshl_b32 s22, s{W}, 21"); a("s_lshl_b32 s23, s37, 6"); a("s_add_u32 s22, s22, s23")
    for half in range(2):
        for j in range(32):
            a(f"s_add_u32 m0, s27, {1024*j}"); a("s_nop 0")
            a(f"buffer_load_dwordx4 v{6 if j & 1 else 2}, {sr(S_SRDW,4)}, s22 offen lds")
            if j & 1: a(f"s_add_u32 s22, s22, {32*2048}")
        a("s_waitcnt vmcnt(0)")
        for ks in range(32):
            for q in range(2):
                a(f"ds_read_b64_tr_b16 {ar((half*32+ks)*4+2*q,2)}, v4 offset:{(16*ks+4*q)*64}")
            if ks % 4 == 3: a("s_waitcnt lgkmcnt(0)")
    a("s_barrier")
    load_srd(a, S_SRDX, 66, OL_OFF, 16*MB)
    load_srd(a, 84, 62, 0, S*DM*2)
    load_srd(a, S_SRDW, 40, 0, S*DM*2)
    VX0, VO, VB, VW, VR = 64, 3, 6, 7, 8
    a(f"v_bfe_u32 v10, v{L}, 2, 3"); a(f"v_and_b32 v11, 3, v{L}"); a(f"v_lshrrev_b32 v12, 5, v{L}")
    a(f"v_lshlrev_b32 v{VX0}, 4, v{L}"); a(f"s_lshl_b32 s22, s{W}, 16"); a(f"v_add_u32 v{VX0}, s22, v{VX0}")
    for i in range(1, 16): a(f"v_add_u32 v{VX0+i}, {4096*i}, v{VX0}")
    a(f"v_and_b32 v13, 31, v{L}"); a(f"v_lshlrev_b32 v{VO}, 11, v13"); a(f"v_lshl_add_u32 v{VO}, v12, 3, v{VO}")
    a("s_lshl_b32 s22, s37, 6"); a(f"s_lshl_b32 s23, s{W}, 4"); a("s_add_u32 s22, s22, s23"); a(f"v_add_u32 v{VO}, s22, v{VO}")
    a(f"v_lshlrev_b32 v{VB}, 13, v10"); a(f"v_lshl_add_u32 v{VB}, v11, 5, v{VB}"); a(f"v_lshl_add_u32 v{VB}, v12, 3, v{VB}")
    a("s_lshl_b32 s22, s37, 8"); a(f"s_lshr_b32 s23, s{W}, 1"); a("s_lshl_b32 s23, s23, 7"); a("s_add_u32 s22, s22, s23")
    a(f"s_and_b32 s23, s{W}, 1"); a("s_lshl_b32 s23, s23, 4"); a("s_add_u32 s22, s22, s23"); a(f"s_add_u32 s22, s22, {BP_OFF}")
    a(f"v_add_u32 v{VB}, s22, v{VB}")
    a(f"v_lshlrev_b32 v13, 4, v{L}"); a(f"s_lshl_b32 s22, s{W}, 12"); a(f"v_add_u32 v{VW}, s22, v13")
    a(f"s_lshl_b32 s22, s{W}, 10"); a(f"v_add_u32 v{VR}, s22, v13")
    a(f"s_mov_b32 s38, {4*NBLK}"); a("s_mov_b32 s35, 0")
    a(f"v_mov_b32 v9, {LDS_SCR+64}")
    wstamp(a, 1)
    ACC = 16; XR = 128; RD = 32; NR = 32
    a.label("L_WORseg")
    Ld = a.newlabel("Wd")
    a("s_and_b32 s32, s38, 7"); a(f"s_cmp_eq_u32 s38, {4*NBLK}"); a("s_cselect_b32 s32, 0, s32"); a("s_cmp_lg_u32 s32, 0"); a(f"s_cbranch_scc1 {Ld}")
    a("s_lshr_b32 s32, s38, 3"); a("s_lshl_b32 s32, s32, 3"); a("s_lshr_b32 s33, s37, 2"); a("s_add_u32 s32, s32, s33")
    a("s_lshl_b32 s32, s32, 6"); a(f"s_add_u32 s32, s32, {FL_DN}")
    wait_flags(a, lambda: a("v_mov_b32 v15, 0"), 32, 0xffffffff, 1, END, 1, 14, 15)
    a.label(Ld)
    a("s_lshl_b32 s33, s38, 16")
    a(f"s_sub_u32 s32, s38, {4*NBLK}"); a("s_lshl_b32 s32, s32, 7"); a(f"s_add_u32 s32, s32, {FL_ATS}")
    a("s_lshl_b32 s34, s38, 18")
    Lr = a.newlabel("Wr")
    a("s_cmp_eq_u32 s35, 32"); a(f"s_cbranch_scc1 {Lr}")
    wait_flags(a, lambda: a("v_mov_b32 v15, 0"), 32, 0xffffffff, 32, END, 1, 14, 15, 1)
    a.label(Lr)
    a("s_add_u32 s32, s32, 128")
    wstamp(a, 2)
    def xl(ks): a(f"buffer_load_dwordx4 {vr(XR+(ks%NR)*4,4)}, v{VX0+ks//4}, {sr(S_SRDX,4)}, s34 offen offset:{(ks%4)*1024} sc1")
    a(f"s_and_b32 s22, s37, {NROT-1}")
    for e in range(1, NROT): a(f"s_cmp_eq_u32 s22, {e}"); a(f"s_cbranch_scc1 L_WORe{e}")
    for e in range(NROT):
        a.label(f"L_WORe{e}")
        order = [(64//NROT*e + i) % 64 for i in range(64)]
        for i in range(NR): xl(order[i])
        for i, ks in enumerate(order):
            a(f"s_waitcnt vmcnt({NR-1 if i < NR else 66-i})")
            a(f"v_mfma_f32_32x32x16_bf16 {vr(ACC,16)}, {ar(ks*4,4)}, {vr(XR+(ks%NR)*4,4)}, {'0' if i == 0 else vr(ACC,16)}")
            if i+NR < 64: xl(order[i+NR])
            if i == 63-NR:
                a(f"buffer_load_dwordx2 v[48:49], v{VO}, {sr(S_SRDW,4)}, s33 offen")
                a(f"buffer_load_dwordx2 v[50:51], v{VB}, {sr(S_FL,4)}, s33 offen sc1")
                a(f"buffer_load_dword v14, off, {sr(S_FL,4)}, s32 sc1")
        if e < NROT-1: a("s_branch L_WORj")
    a.label("L_WORj")
    a("s_nop 11")
    for q in range(4): a(f"ds_write_b128 v{VW}, {vr(ACC+4*q,4)} offset:{1024*q}")
    a("s_waitcnt vmcnt(0)")
    Lz = a.newlabel("Wz")
    a(f"s_cmp_lg_u32 s{W}, 0"); a(f"s_cbranch_scc1 {Lz}")
    a("ds_write_b32 v9, v14")
    a.label(Lz)
    a("v_lshlrev_b32 v52, 16, v48"); a("v_and_b32 v53, 0xffff0000, v48"); a("v_lshlrev_b32 v54, 16, v49"); a("v_and_b32 v55, 0xffff0000, v49")
    a("v_lshlrev_b32 v56, 16, v50"); a("v_and_b32 v57, 0xffff0000, v50"); a("v_lshlrev_b32 v58, 16, v51"); a("v_and_b32 v59, 0xffff0000, v51")
    a("s_waitcnt lgkmcnt(0)")
    a("s_barrier")
    for i in range(4): a(f"ds_read_b128 {vr(RD+4*i,4)}, v{VR} offset:{4096*i}")
    a("ds_read_b32 v14, v9")
    a(f"v_xor_b32 v{VW}, 16384, v{VW}"); a(f"v_xor_b32 v{VR}, 16384, v{VR}"); a("v_xor_b32 v9, 4, v9")
    a("s_waitcnt lgkmcnt(0)")
    a("v_readfirstlane_b32 s35, v14")
    for k in (0, 2):
        a(f"v_pk_add_f32 {vr(RD+k,2)}, {vr(RD+k,2)}, {vr(RD+4+k,2)}"); a(f"v_pk_add_f32 {vr(RD+8+k,2)}, {vr(RD+8+k,2)}, {vr(RD+12+k,2)}")
    for k in (0, 2): a(f"v_pk_add_f32 {vr(RD+k,2)}, {vr(RD+k,2)}, {vr(RD+8+k,2)}")
    def rnd():
        a(f"v_cvt_pk_bf16_f32 v{RD+4}, v{RD}, v{RD+1}"); a(f"v_cvt_pk_bf16_f32 v{RD+5}, v{RD+2}, v{RD+3}")
    def unp():
        a(f"v_lshlrev_b32 v{RD}, 16, v{RD+4}"); a(f"v_and_b32 v{RD+1}, 0xffff0000, v{RD+4}")
        a(f"v_lshlrev_b32 v{RD+2}, 16, v{RD+5}"); a(f"v_and_b32 v{RD+3}, 0xffff0000, v{RD+5}")
    rnd(); unp()
    a(f"v_pk_add_f32 {vr(RD,2)}, {vr(RD,2)}, v[52:53]"); a(f"v_pk_add_f32 {vr(RD+2,2)}, {vr(RD+2,2)}, v[54:55]")
    rnd(); unp()
    a(f"v_pk_add_f32 {vr(RD,2)}, {vr(RD,2)}, v[56:57]"); a(f"v_pk_add_f32 {vr(RD+2,2)}, {vr(RD+2,2)}, v[58:59]")
    rnd()
    a(f"buffer_store_dwordx2 {vr(RD+4,2)}, v{VO}, s[84:87], s33 offen")
    a("s_add_u32 s38, s38, 1"); a("s_cmp_lt_u32 s38, 64"); a("s_cbranch_scc1 L_WORseg")

def emit_mega(a, name, force_slow=False):
    END = f"{name}_end"
    Q1 = q1_list(); NQ1 = 8*sum(x[3] for x in Q1)
    kernel_header(a, name)
    a(f"s_cmp_ge_u32 s2, 256"); a(f"s_cbranch_scc1 {END}")
    load_ptrs(a)
    a("v_lshrrev_b32 v2, 6, v0")
    a(f"v_and_b32 v{V_LANE}, 63, v0")
    a(f"v_readfirstlane_b32 s{S_WAVE}, v2")
    a("s_waitcnt lgkmcnt(0)")
    load_srd(a, S_WS, 66, 0, WS_SIZE)
    assign_roles(a, END, LDS_SCR)
    if force_slow: a(f"s_mov_b32 s{chain.S_MODE}, 1")
    a(f"s_mov_b32 s{S_PH}, 0")
    a(f"s_sub_u32 s{S_B}, s31, 4"); a("s_cmp_lt_u32 s31, 4"); a(f"s_cselect_b32 s{S_B}, 5, s{S_B}")
    a(f"s_cmp_lt_u32 s{S_B}, 3"); a(f"s_cselect_b32 s{S_PH}, 1, 0")
    Lf = a.newlabel("Cl")
    a(f"s_cmp_eq_u32 s{chain.S_MODE}, 0"); a(f"s_cbranch_scc1 {Lf}")
    a(f"s_mov_b32 s{S_PH}, 0"); a("s_cmp_lt_u32 s33, 128"); a(f"s_cselect_b32 s{S_B}, 5, 4")
    a.label(Lf)
    a(f"s_and_b32 s{S_CTR}, s{S_B}, 3"); a(f"s_lshl_b32 s{S_CTR}, s{S_CTR}, 7"); a(f"s_add_u32 s{S_CTR}, s{S_CTR}, {FL_Q1L}")
    a("s_mov_b32 s100, 0")
    a("s_cmp_eq_u32 s29, 0"); a(f"s_cbranch_scc1 L_worker")
    a("s_setprio 3")
    a(f"s_cmp_ge_u32 s{chain.S_R}, 8"); a(f"s_cbranch_scc1 L_vr")
    def kv_wait(a):
        Ls, Lp = a.newlabel("Kw"), a.newlabel("Kp")
        a(f"s_and_b32 s20, s{chain.S_STEP}, 7"); a(f"s_cbranch_scc1 {Ls}")
        a(f"s_lshl_b32 s20, s{chain.S_STEP}, 7"); a("s_lshr_b32 s21, s26, 1"); a("s_lshl_b32 s21, s21, 6"); a("s_add_u32 s20, s20, s21")
        a(f"s_add_u32 s20, s20, {FL_QKV}"); a("s_mov_b32 s30, 0")
        a.label(Lp)
        a(f"buffer_load_dword v15, off, {sr(S_WS,4)}, s20 sc1")
        a("s_waitcnt vmcnt(0)")
        a("v_and_b32 v15, 0xffff, v15")
        a("v_cmp_ne_u32 vcc, 0x404, v15")
        a(f"s_cbranch_vccz {Ls}")
        a("s_sleep 4")
        poll_tail(a, Lp, END)
        a.label(Ls)
    def step_addr(delta):
        a(f"s_lshl_b32 s20, s{chain.S_STEP}, 2"); a(f"s_add_u32 s20, s20, s{chain.S_X}"); a("s_lshl_b32 s20, s20, 7")
        a(f"s_add_u32 s20, s20, {FL_STEP + delta*512}")
    def step_done(a, kind):
        L = a.newlabel("Sd")
        if kind in ("A", "Alast"):
            a("s_waitcnt vmcnt(0)"); a("s_barrier")
            a(f"s_cmp_lg_u32 s{S_WAVE}, 0"); a(f"s_cbranch_scc1 {L}")
            step_addr(0); signal(a, 20, 1, S_WS, 60)
        elif kind == "V3":
            step_addr(0); signal(a, 20, 1, S_WS, 60)
        elif kind == "Vlast":
            a("s_waitcnt vmcnt(0)"); a("s_barrier")
            a(f"s_cmp_lg_u32 s{S_WAVE}, 0"); a(f"s_cbranch_scc1 {L}")
            step_addr(0); signal(a, 20, 1, S_WS, 60)
        a.label(L)
    role_A(a, END, kv_wait, step_done)
    a("s_branch L_retire")
    a.label("L_vr")
    role_VR(a, END, step_done)
    a.label("L_retire")
    a("s_setprio 0")
    a(f"s_mov_b32 s{S_PH}, 2")
    load_ptrs(a)
    a(f"v_mbcnt_lo_u32_b32 v{V_LANE}, -1, 0"); a(f"v_mbcnt_hi_u32_b32 v{V_LANE}, -1, v{V_LANE}")
    a("s_waitcnt vmcnt(0) lgkmcnt(0)")
    a("s_barrier")
    a.label("L_worker")
    load_srd(a, S_FL, 66, 0, WS_SIZE)
    a(f"s_mov_b32 s{S_PRE}, 0"); a(f"s_mov_b32 s{S_PVAL}, 0")
    def q1_index():
        L = a.newlabel("N")
        a(f"s_cmp_eq_u32 s{S_B}, 4"); a(f"s_cbranch_scc1 {L}")
        a("s_lshr_b32 s22, s25, 5"); a("s_and_b32 s25, s25, 31"); a("s_lshl_b32 s22, s22, 2"); a(f"s_add_u32 s22, s22, s{S_B}")
        a("s_lshl_b32 s22, s22, 5"); a("s_add_u32 s25, s25, s22")
        a.label(L)
    def publish_item():
        a("v_mov_b32 v14, s25"); a(f"v_mov_b32 v15, {LDS_SCR}")
        a("ds_write_b32 v15, v14")
    def flush():
        L, L2 = a.newlabel("Fl"), a.newlabel("Fl")
        a(f"s_cmp_eq_u32 s{S_PVAL}, 0"); a(f"s_cbranch_scc1 {L}")
        finish(a, S_POFF, f"s{S_PVAL}")
        a(f"s_mov_b32 s{S_PVAL}, 0")
        a.label(L)
    def hook_first():
        L = a.newlabel("Hf")
        a(f"s_cmp_eq_u32 s{S_PVAL}, 0"); a(f"s_cbranch_scc1 {L}")
        a(f"s_mov_b32 s21, s{S_PVAL}"); a(f"s_mov_b32 s{S_PVAL}, 0")
        a(f"s_cmp_lg_u32 s{S_WAVE}, 0"); a(f"s_cbranch_scc1 {L}")
        signal(a, S_POFF, "s21", vtmp=14)
        a.label(L)
    def hook_tail():
        L = a.newlabel("Ht")
        a(f"s_cmp_lg_u32 s{S_WAVE}, 0"); a(f"s_cbranch_scc1 {L}")
        a("v_mov_b32 v14, 1")
        a("s_mov_b64 exec, 1")
        a(f"buffer_atomic_add v14, off, {sr(S_FL,4)}, s{S_CTR} sc0 sc1")
        a("s_mov_b64 exec, -1")
        a.label(L)
    def after_main():
        L = a.newlabel("Am")
        wstamp(a, 2)
        a(f"s_cmp_lg_u32 s{S_WAVE}, 0"); a(f"s_cbranch_scc1 {L}")
        a("s_waitcnt vmcnt(0)")
        a("v_readfirstlane_b32 s25, v14")
        a("s_nop 3")
        q1_index()
        a(f"s_cmp_lt_u32 s25, {NQ1}"); a(f"s_cselect_b32 s{S_PRE}, 1, 0"); a(f"s_cselect_b32 s{S_PH}, 1, 2")
        publish_item()
        a.label(L)
    HK = dict(hook_first=hook_first, hook_tail=hook_tail)
    a.label("L_next")
    wstamp(a, 0)
    Lb, Lpub, L1, L2 = [a.newlabel("N") for _ in range(4)]
    a(f"s_cmp_lg_u32 s{S_WAVE}, 0"); a(f"s_cbranch_scc1 {Lb}")
    a(f"s_cmp_lg_u32 s{S_PRE}, 0"); a(f"s_mov_b32 s{S_PRE}, 0"); a(f"s_cbranch_scc1 {Lb}")
    a(f"s_cmp_eq_u32 s{S_PH}, 1"); a(f"s_cbranch_scc1 {L1}")
    a(f"s_cmp_eq_u32 s{S_PH}, 2"); a(f"s_cbranch_scc1 {L2}")
    a(f"s_mov_b32 s20, {FL_Q1G}")
    atomic_ret(a, 4, 20, 1)
    a("v_readfirstlane_b32 s25, v4")
    a(f"s_cmp_eq_u32 s{S_B}, 5"); a(f"s_cselect_b32 s{S_PH}, 2, 1")
    a("s_nop 1")
    a("s_add_u32 s25, s25, 0x2000")
    a("s_cmp_lt_u32 s25, 0x2040"); a(f"s_cbranch_scc1 {Lpub}")
    a(f"s_cmp_eq_u32 s{S_PH}, 2"); a(f"s_cbranch_scc1 {L2}")
    a.label(L1)
    atomic_ret(a, 4, S_CTR, 1)
    a("v_readfirstlane_b32 s25, v4")
    a("s_nop 3")
    q1_index()
    a(f"s_cmp_lt_u32 s25, {NQ1}"); a(f"s_cbranch_scc1 {Lpub}")
    a(f"s_mov_b32 s{S_PH}, 2")
    a.label(L2)
    a(f"s_mov_b32 s20, {FL_Q2G}")
    atomic_ret(a, 4, 20, 1)
    a("v_readfirstlane_b32 s25, v4")
    a("s_nop 3")
    a("s_min_u32 s25, s25, 0xfff"); a("s_add_u32 s25, s25, 0x1000")
    a.label(Lpub)
    publish_item()
    a.label(Lb)
    a("s_waitcnt lgkmcnt(0)")
    a("s_barrier")
    a(f"v_mov_b32 v5, {LDS_SCR}")
    a("ds_read_b32 v4, v5")
    a("s_waitcnt lgkmcnt(0)")
    a(f"v_readfirstlane_b32 s{S_ITEM}, v4")
    a("s_nop 3")
    a(f"s_cmp_ge_u32 s{S_ITEM}, 0x2000"); a(f"s_cbranch_scc1 L_KS")
    a(f"s_cmp_ge_u32 s{S_ITEM}, 0x1000"); a(f"s_cbranch_scc1 L_qa")
    a(f"s_lshr_b32 s20, s{S_ITEM}, 3"); a(f"s_and_b32 s21, s{S_ITEM}, 7")
    base = 0
    for typ, p, c0, n in Q1:
        Ln = a.newlabel("D")
        a(f"s_cmp_ge_u32 s20, {base+n}"); a(f"s_cbranch_scc1 {Ln}")
        a(f"s_sub_u32 s20, s20, {base-c0}") if base >= c0 else a(f"s_add_u32 s20, s20, {c0-base}")
        if typ in ("DN", "W2", "W1"): a("s_mov_b32 s36, s20"); a("s_mov_b32 s37, s21")
        elif typ == "WR": a("s_lshl_b32 s37, s20, 3"); a("s_add_u32 s37, s37, s21")
        elif typ == "QA": pass
        elif typ == "K1":
            a("s_and_b32 s38, s20, 1"); a("s_add_u32 s38, s38, 1"); a("s_lshr_b32 s37, s20, 1"); a("s_lshl_b32 s37, s37, 3")
            a("s_add_u32 s37, s37, s21"); a("s_mov_b32 s36, 1")
        else:
            a(f"s_mov_b32 s36, {2*p}")
            if typ == "KV": a("s_and_b32 s38, s20, 1"); a("s_add_u32 s38, s38, 1"); a("s_lshr_b32 s20, s20, 1")
            if typ == "Q": a("s_mov_b32 s38, 0")
        a(f"s_branch L_{dict(KV='QKV', Q='QKV', K1='QKV2').get(typ, typ)}")
        a.label(Ln)
        base += n
    a(f"s_branch {END}")
    a.label("L_QA")
    a(f"s_cmp_eq_u32 s{S_B}, 4"); a(f"s_cselect_b32 s{S_PH}, 1, 2")
    a("s_barrier")
    a("s_branch L_next")
    def coords():
        a("s_and_b32 s22, s21, 1"); a("s_add_u32 s36, s36, s22")
        a("s_lshr_b32 s21, s21, 1"); a("s_lshl_b32 s37, s20, 2"); a("s_add_u32 s37, s37, s21")
    def done():
        if PROFW:
            wstamp(a, 3)
            a("s_waitcnt lgkmcnt(0)")
            for i in range(4): a(f"v_writelane_b32 v4, s{70+2*i}, {i}")
            a(f"v_writelane_b32 v4, s{S_ITEM}, 4"); a(f"v_writelane_b32 v4, s{S_B}, 5")
            a("s_lshl_b32 s20, s2, 5"); a("s_add_u32 s20, s20, s100"); a("s_lshl_b32 s20, s20, 5"); a(f"s_add_u32 s20, s20, {TSW_OFF}")
            a(f"v_lshlrev_b32 v5, 2, v{V_LANE}")
            a("s_mov_b64 exec, 0xff")
            a(f"buffer_store_dword v4, v5, {sr(S_FL,4)}, s20 offen")
            a("s_mov_b64 exec, -1")
            a("s_add_u32 s100, s100, 1"); a("s_min_u32 s100, s100, 31")
        a("s_branch L_next")
    a.label("L_QKV")
    coords()
    a.label("L_QKV2")
    wstamp(a, 1)
    load_srd(a, S_SRDX, 66, XN_OFF, S*XN_STR)
    a("s_cmp_eq_u32 s38, 1"); a("s_cselect_b32 s34, s46, s44"); a("s_cselect_b32 s35, s47, s45")
    a("s_cmp_eq_u32 s38, 2"); a("s_cselect_b32 s34, s48, s34"); a("s_cselect_b32 s35, s49, s35")
    load_srd(a, S_SRDW, 34, 0, DM*4096*2)
    gq = Gemm(a, "qk", 4, 4, 2, XN_STR, 8192, "head")
    gv = Gemm(a, "v", 4, 4, 2, XN_STR, 8192, "head", swap=True)
    gq.setup()
    a(f"s_mul_i32 s{S_OFFX}, s36, {256*XN_STR}"); a(f"s_lshl_b32 s{S_OFFW}, s37, 9")
    a("s_lshl_b32 s32, s36, 21"); a("s_lshl_b32 s33, s37, 14"); a("s_add_u32 s32, s32, s33")
    a("s_lshl_b32 s33, s38, 24"); a("s_add_u32 s32, s32, s33"); a(f"s_add_u32 s32, s32, {Q_OFF}")
    assert K_OFF == Q_OFF + 16*MB and VT_OFF == Q_OFF + 32*MB
    gq.prologue_dma()
    a("s_cmp_eq_u32 s38, 2"); a("s_cbranch_scc1 L_V")
    gq.main(16, dma_issued=True, **HK)
    after_main()
    gq.epi_qk(S_FL, 32, "sc1")
    a("s_branch L_QKVfin")
    a.label("L_V")
    gv.main(16, dma_issued=True, **HK)
    after_main()
    gv.epi_v(S_FL, 32, "sc1")
    a.label("L_QKVfin")
    a("s_lshl_b32 s32, s36, 10"); a("s_lshl_b32 s33, s37, 6"); a("s_add_u32 s32, s32, s33"); a(f"s_add_u32 s32, s32, {FL_QKV}")
    a("s_add_u32 s33, s38, 2"); a("s_cmp_ge_u32 s33, 3"); a("s_cselect_b32 s34, 3, 0"); a("s_sub_u32 s33, s33, s34")
    a("s_lshl_b32 s33, s33, 3"); a(f"s_lshl_b32 s{S_PVAL}, 4, s33"); a(f"s_mov_b32 s{S_POFF}, s32")
    done()
    a.label("L_KS")
    a(f"s_and_b32 s36, s{S_ITEM}, 1"); a(f"s_bfe_u32 s38, s{S_ITEM}, {1 | (1 << 16):#x}"); a("s_add_u32 s38, s38, 1")
    a(f"s_bfe_u32 s37, s{S_ITEM}, {2 | (4 << 16):#x}")
    wstamp(a, 1)
    load_srd(a, S_SRDX, 66, XN_OFF, S*XN_STR)
    a("s_cmp_eq_u32 s38, 2"); a("s_cselect_b32 s34, s48, s46"); a("s_cselect_b32 s35, s49, s47")
    load_srd(a, S_SRDW, 34, 0, DM*4096*2)
    gq = Gemm(a, "ks", 2, 4, 3, XN_STR, 8192, "head")
    gv = Gemm(a, "vs", 2, 4, 3, XN_STR, 8192, "head", swap=True)
    gq.setup()
    a(f"s_mul_i32 s{S_OFFX}, s36, {128*XN_STR}"); a(f"s_lshl_b32 s{S_OFFW}, s37, 9")
    a("s_lshl_b32 s32, s36, 20"); a("s_lshl_b32 s33, s37, 14"); a("s_add_u32 s32, s32, s33")
    a("s_lshl_b32 s33, s38, 24"); a("s_add_u32 s32, s32, s33"); a(f"s_add_u32 s32, s32, {Q_OFF}")
    gq.prologue_dma()
    a("s_cmp_eq_u32 s38, 2"); a("s_cbranch_scc1 L_VS")
    gq.main(16, dma_issued=True)
    wstamp(a, 2)
    gq.epi_qk(S_FL, 32, "sc1")
    a("s_branch L_KSfin")
    a.label("L_VS")
    gv.main(16, dma_issued=True)
    wstamp(a, 2)
    gv.epi_v(S_FL, 32, "sc1")
    a.label("L_KSfin")
    a("s_lshl_b32 s32, s37, 6"); a(f"s_add_u32 s32, s32, {FL_QKV}")
    a("s_sub_u32 s33, s38, 1"); a("s_lshl_b32 s33, s33, 3"); a("s_lshl_b32 s33, 2, s33")
    finish(a, 32, "s33")
    done()
    a.label("L_GU")
    coords()
    wstamp(a, 1)
    g = Gemm(a, "gu", 4, 4, 2, XN_STR, DF*2, "gu")
    load_srd(a, S_SRDX, 66, XN_OFF, S*XN_STR)
    a(f"s_cmp_ge_u32 s{S_WAVE}, 2"); a("s_cselect_b32 s34, s58, s56"); a("s_cselect_b32 s35, s59, s57")
    load_srd(a, S_SRDW, 34, 0, DM*DF*2)
    g.setup()
    a(f"s_mul_i32 s{S_OFFX}, s36, {256*XN_STR}"); a(f"s_lshl_b32 s{S_OFFW}, s37, 8")
    g.main(16, **HK)
    after_main()
    a(f"s_mul_i32 s32, s36, {256*H_STR}"); a("s_lshl_b32 s33, s37, 10"); a("s_add_u32 s32, s32, s33"); a(f"s_add_u32 s32, s32, {H_OFF}")
    g.epi_gu(S_FL, 32, "sc1")
    a(f"s_lshl_b32 s{S_POFF}, s36, 7"); a(f"s_add_u32 s{S_POFF}, s{S_POFF}, {FL_GU}"); a(f"s_mov_b32 s{S_PVAL}, 1")
    done()
    a.label("L_DN")
    flush()
    a("s_lshl_b32 s32, s36, 7"); a(f"s_add_u32 s32, s32, {FL_GU}")
    wait_flags(a, lambda: a("v_mov_b32 v5, 0"), 32, 0xffffffff, 28, END, 1)
    wstamp(a, 1)
    g = Gemm(a, "dn", 4, 2, 3, H_STR, 2048, "plain", xflags="sc1", xr4=True)
    load_srd(a, S_SRDX, 66, H_OFF, S*H_STR)
    load_srd(a, S_SRDW, 60, 0, DF*DM*2)
    g.setup()
    a(f"s_mul_i32 s{S_OFFX}, s36, {256*H_STR}"); a(f"s_lshl_b32 s{S_OFFW}, s37, 8")
    g.main(56, hook_tail=hook_tail)
    after_main()
    load_srd(a, 28, 66, BP_OFF, S*DM*2)
    a("s_lshl_b32 s32, s36, 19"); a("s_lshl_b32 s33, s37, 8")
    g.epi_plain(28, 32, 33, "sc1")
    a("s_lshl_b32 s32, s36, 3"); a("s_add_u32 s32, s32, s37"); a("s_lshl_b32 s32, s32, 6"); a(f"s_add_u32 s{S_POFF}, s32, {FL_DN}")
    a(f"s_mov_b32 s{S_PVAL}, 1")
    done()
    for nm, MT, NST in (("W2", 4, 3), ("W1", 2, 4)):
        a.label(f"L_{nm}")
        flush()
        sh = 0 if MT == 4 else 1
        a(f"s_lshl_b32 s32, s36, {8-sh}"); a(f"s_add_u32 s32, s32, {FL_AT}")
        if MT == 4: wait_flags(a, lambda: (a(f"v_and_b32 v5, 1, v{V_LANE}"), a("v_lshlrev_b32 v5, 7, v5")), 32, 0xffffffff, 128, END, 2)
        else: wait_flags(a, lambda: a("v_mov_b32 v5, 0"), 32, 0xffffffff, 128, END, 1)
        wstamp(a, 1)
        g = Gemm(a, nm, MT, 2, NST, OA_STR, 2048, "plain", xflags="sc1", xr4=True, wperm=True)
        load_srd(a, S_SRDX, 66, OA_OFF, S*OA_STR)
        load_srd(a, S_SRDW, 50, 0, 4096*DM*2)
        g.setup()
        a(f"s_mul_i32 s{S_OFFX}, s36, {64*MT*OA_STR}"); a(f"s_lshl_b32 s{S_OFFW}, s37, 8")
        g.main(64, hook_tail=hook_tail)
        after_main()
        a(f"s_lshr_b32 s32, s36, {sh}"); a("s_lshl_b32 s32, s32, 3"); a("s_add_u32 s32, s32, s37"); a("s_lshl_b32 s32, s32, 6"); a(f"s_add_u32 s32, s32, {FL_DN}")
        wait_flags(a, lambda: a("v_mov_b32 v5, 0"), 32, 0xffffffff, 1, END, 1)
        load_srd(a, 28, 62, 0, S*DM*2)
        load_srd(a, S_SRDX, 40, 0, S*DM*2)
        load_srd(a, S_SRDW, 66, BP_OFF, S*DM*2)
        a(f"s_lshl_b32 s32, s36, {19-sh}"); a("s_lshl_b32 s33, s37, 8")
        g.epi_plain(28, 32, 33, "", final=(S_SRDX, S_SRDW, "sc1"))
        done()
    a.label("L_WR")
    flush()
    wor_item(a, END)
    done()
    a.label("L_qa")
    flush()
    a(f"s_sub_u32 s20, s{S_ITEM}, 0x1000")
    a(f"s_cmp_ge_u32 s20, {NQA}"); a(f"s_cbranch_scc1 {END}")
    a(f"s_cmp_ge_u32 s20, {NBLK*16}"); a("s_cbranch_scc1 L_AT4")
    def attention(npair):
        sh = 0 if npair == 2 else 1
        a("s_lshr_b32 s32, s38, 3"); a("s_lshl_b32 s32, s32, 10"); a(f"s_lshr_b32 s34, s37, {sh}"); a("s_lshl_b32 s33, s34, 8")
        a("s_add_u32 s32, s32, s33"); a(f"s_add_u32 s32, s32, {FL_QKV}")
        wait_flags(a, lambda: (a(f"v_and_b32 v5, 3, v{V_LANE}"), a("v_lshlrev_b32 v5, 6, v5")), 32, 0xffffffff, 0x40404, END, 4)
        a("s_lshl_b32 s32, s38, 2"); a("s_add_u32 s32, s32, s34"); a("s_lshl_b32 s32, s32, 7"); a(f"s_add_u32 s32, s32, {FL_STEP}")
        def w():
            wait_flags(a, lambda: a("v_mov_b32 v15, 0"), 32, 0xffffffff, 24, END, 1, 14, 15, 2)
            if PROFW: a("s_memrealtime s[84:85]")
        att_item(a, S_FL, 38, 37, "sc1", "sc1", npair, w, late=(npair == 1))
        if PROFW: a("s_waitcnt lgkmcnt(0)"); a("s_mov_b32 s72, s84"); a("s_mov_b32 s74, s84")
        finish(a, 36, 4*npair)
        done()
    a("s_lshr_b32 s38, s20, 2"); a("s_and_b32 s37, s20, 3")
    a("s_lshr_b32 s36, s20, 4"); a("s_lshl_b32 s36, s36, 7"); a(f"s_add_u32 s36, s36, {FL_AT}")
    attention(2)
    a.label("L_AT4")
    a(f"s_sub_u32 s20, s20, {NBLK*16}"); a("s_lshr_b32 s38, s20, 3"); a("s_and_b32 s37, s20, 7")
    a("s_lshl_b32 s36, s38, 7"); a(f"s_add_u32 s36, s36, {FL_ATS}"); a(f"s_add_u32 s38, s38, {4*NBLK}")
    attention(1)
    a.label(END)
    a("s_endpgm")

def build(path, prof=False, profw=False, force_slow=False, header=""):
    global PROFW
    chain.PROF = prof; PROFW = profw
    a = Asm()
    if header: a.raw(header)
    a.raw(f"; @launch kernel=pre_kernel grid=({PRE_GRID},1,1) block=(256,1,1) lds=0")
    a.raw("; @launch kernel=mega_kernel grid=(256,1,1) block=(256,1,1) lds=163840")
    a.raw('.amdgcn_target "amdgcn-amd-amdhsa--gfx950"')
    a.raw(".text")
    emit_pre_kernel(a, "pre_kernel")
    emit_mega(a, "mega_kernel", force_slow)
    a.raw('.section .rodata,"a"')
    kernel_desc(a, "pre_kernel", 64, 64)
    kernel_desc(a, "mega_kernel", 512, 256)
    open(path, "w").write(a.text())

if __name__ == "__main__":
    build("parallel_sum__memory_aug_recurrent_mem_tr__glu_gated_geglu__prompt.s", header=open("header.txt").read())
    build("m1.s")
    build("m1_prof.s", prof=True, profw=True)
    build("m1_slow.s", force_slow=True)
```

```python
from common import *
from gemm import V_LANE, S_WAVE
import math
S_WS = 8; S_WT = 12; S_X = 16; S_R = 17; S_MODE = 18; S_STEP = 19
CEXP = (DH**-0.5)*math.log2(math.e)
PROF = False
NSTEP = 64
INIT_WAIT = None
FORCE_FALLBACK = False
NPOLL = 4
NFLY = 3
WIN = 4
PER = 2
GBAR = True
GATE = 'all'
XSLEEP = 6
XGAP = 4
XAHEAD = 2

def ts(a, i):
    if PROF: a(f"s_memtime s[{70+2*i}:{71+2*i}]")
def rts(a, i):
    if PROF: a(f"s_memrealtime s[{90+2*i}:{91+2*i}]")
def ts_store(a, role_id_sreg, tmpv):
    if not PROF: return
    a("s_waitcnt lgkmcnt(0)")
    for i in range(10): a(f"v_writelane_b32 v{tmpv}, s{70+2*i}, {i}")
    a(f"v_writelane_b32 v{tmpv}, s90, 10"); a(f"v_writelane_b32 v{tmpv}, s92, 11")
    a(f"v_writelane_b32 v{tmpv}, s30, 12")
    a(f"s_lshl_b32 s20, s{role_id_sreg}, 6"); a(f"s_add_u32 s20, s20, s{S_STEP}"); a("s_lshl_b32 s20, s20, 2")
    a(f"s_add_u32 s20, s20, s{S_WAVE}"); a("s_lshl_b32 s20, s20, 6"); a(f"s_add_u32 s20, s20, {TS2_OFF}")
    a(f"v_mbcnt_lo_u32_b32 v{tmpv+1}, -1, 0"); a(f"v_lshlrev_b32 v{tmpv+1}, 2, v{tmpv+1}")
    a("s_mov_b64 exec, 0xffff")
    a(f"buffer_store_dword v{tmpv}, v{tmpv+1}, {sr(S_WS,4)}, s20 offen")
    a("s_mov_b64 exec, -1")

def local_store(a, instr):
    L1, L2 = a.newlabel("ls"), a.newlabel("ls")
    a(f"s_cmp_lg_u32 s{S_MODE}, 0")
    a(f"s_cbranch_scc1 {L1}")
    a(instr)
    a(f"s_branch {L2}")
    a.label(L1)
    a(instr + " sc1")
    a.label(L2)

def poll_tail(a, Lretry, abort):
    a("s_add_u32 s30, s30, 1")
    a(f"s_cmp_lt_u32 s30, {POLL_MAX}")
    a(f"s_cbranch_scc1 {Lretry}")
    a(f"s_branch {abort}")

def idx_reg(a, v):
    a(f"v_bfe_u32 v{v}, v{V_LANE}, 3, 1")
    a(f"v_mov_b32 v15, 0x44444444")
    a(f"v_mul_u32_u24 v{v}, 0xaaaa, v{v}")
    a(f"v_lshl_or_b32 v{v}, v{v}, 16, v{v}")
    a(f"v_add_u32 v{v}, v15, v{v}")

def tr_base(a, dst, rowbytes, row_expr, chunk_expr):
    pass

A_SC = 128*1024; A_KX = 140*1024; A_VX = 148*1024
def role_A(a, abort, kv_wait=None, step_done=None):
    L = V_LANE; W = S_WAVE
    VK1, VI, VID, VT0, VT1, VKX, VVX, VVM, VO, VKM, VSW, VSR, VSM, VL16, VKA = 15, 3, 24, 6, 7, 8, 9, 10, 11, 12, 13, 14, 0, 2, 1
    PIECE = 32; STG = [96, 104, 16]; ACC = 112
    Wq = lambda ks, t: ar((ks*2+t)*8, 8)
    Wk0 = lambda ks: vr(128+ks*8, 8)
    head = 21
    a(f"s_lshl_b32 s26, s{S_X}, 3"); a(f"s_add_u32 s26, s26, s{S_R}")
    a(f"v_lshrrev_b32 v2, 4, v{L}"); a(f"v_and_b32 v3, 15, v{L}")
    a("v_lshlrev_b32 v4, 1, v2"); a("v_xor_b32 v3, v3, v4")
    a(f"s_lshl_b32 s20, s{W}, 4"); a("v_add_u32 v2, s20, v2"); a("v_lshlrev_b32 v2, 13, v2")
    a("v_lshlrev_b32 v3, 4, v3")
    for j in range(4):
        if j >= 2: a(f"v_xor_b32 v4, 128, v3")
        else: a("v_mov_b32 v4, v3")
        a(f"v_add_u32 v4, v2, v4"); a(f"v_add_u32 v{32+j}, {4*j*8192}, v4")
    a(f"v_lshrrev_b32 v2, 3, v{L}"); a(f"v_and_b32 v3, 7, v{L}")
    a(f"v_bfe_u32 v4, v{L}, 4, 1"); a("v_lshlrev_b32 v4, 1, v4"); a("v_xor_b32 v3, v3, v4")
    a("v_add_u32 v2, s20, v2"); a("v_lshlrev_b32 v2, 13, v2")
    a("v_lshlrev_b32 v3, 4, v3")
    a("v_add_u32 v36, v2, v3")
    a("v_xor_b32 v3, 64, v3"); a("v_add_u32 v37, v2, v3"); a(f"v_add_u32 v37, {8*8192}, v37")
    a(f"v_lshrrev_b32 v2, 4, v{L}"); a(f"v_bfe_u32 v3, v{L}, 2, 2")
    a("v_lshl_add_u32 v4, v2, 3, v3")
    a(f"v_and_b32 v5, 3, v{L}"); a("v_lshlrev_b32 v5, 3, v5")
    a("v_and_b32 v2, 1, v2")
    a("v_lshl_or_b32 v15, v2, 2, v3"); a(f"v_xor_b32 v15, s{W}, v15")
    a("v_lshlrev_b32 v15, 5, v15"); a("v_lshl_add_u32 v38, v4, 8, v5"); a("v_add_u32 v39, v38, v15")
    a("v_xor_b32 v15, 128, v15"); a("v_add_u32 v40, v38, v15")
    a("v_lshrrev_b32 v3, 1, v3"); a("v_lshl_or_b32 v15, v2, 1, v3"); a(f"v_xor_b32 v15, s{W}, v15")
    a("v_lshlrev_b32 v15, 5, v15"); a(f"v_lshl_add_u32 v{VT0}, v4, 7, v5"); a(f"v_add_u32 v{VT0}, v{VT0}, v15")
    a(f"v_add_u32 v{VT1}, 65536, v{VT0}")
    load_srd(a, S_WT, 44, 0, DM*4096*2)
    load_srd(a, 28, 46, 0, DM*4096*2)
    a("s_lshl_b32 s22, s26, 8")
    a(f"s_lshl_b32 s23, s{W}, 12"); a(f"s_lshl_b32 s24, s{W}, 11"); a("s_add_u32 s24, s24, 16384")
    SLOT = 24576; NSL = 6
    def issue(ks):
        b = (ks % NSL)*SLOT
        for j in range(4):
            a(f"s_add_u32 m0, s23, {b+1024*j}"); a("s_nop 0")
            a(f"buffer_load_dwordx4 v{32+j}, {sr(S_WT,4)}, s22 offen lds")
        for j in range(2):
            a(f"s_add_u32 m0, s24, {b+1024*j}"); a("s_nop 0")
            a(f"buffer_load_dwordx4 v{36+j}, s[28:31], s22 offen lds")
        a(f"s_add_u32 s22, s22, {64*8192}")
    for ks in range(NSL-1): issue(ks)
    for ks in range(16):
        nxt = ks + NSL - 1
        if nxt < 16: issue(nxt)
        a(f"s_waitcnt vmcnt({6*(min(nxt,15)-ks)})")
        a("s_barrier")
        b = (ks % NSL)*SLOT
        a(f"v_add_u32 v41, {b}, v39"); a(f"v_add_u32 v42, {b}, v40"); a(f"v_add_u32 v43, {b+16384}, v{VT0}")
        for q in range(4):
            ro = 32*(q >> 1) + 4*(q & 1)
            a(f"ds_read_b64_tr_b16 {ar((ks*2)*8+2*q,2)}, v41 offset:{ro*256}")
            a(f"ds_read_b64_tr_b16 {ar((ks*2+1)*8+2*q,2)}, v42 offset:{ro*256}")
            a(f"ds_read_b64_tr_b16 {vr(128+ks*8+2*q,2)}, v43 offset:{ro*128}")
        a("s_waitcnt lgkmcnt(0)")
        a("s_barrier")
    a("s_lshl_b32 s22, s26, 8"); a("s_add_u32 s22, s22, 128")
    a(f"s_lshl_b32 s24, s{W}, 11")
    for ks in range(16):
        for j in range(2):
            a(f"s_add_u32 m0, s24, {ks*8192+1024*j}"); a("s_nop 0")
            a(f"buffer_load_dwordx4 v{36+j}, s[28:31], s22 offen lds")
        a(f"s_add_u32 s22, s22, {64*8192}")
    a(f"v_lshlrev_b32 v{VL16}, 4, v{L}")
    a(f"v_add_u32 v{VK1}, s24, v{VL16}")
    a("s_waitcnt vmcnt(0)")
    a("s_barrier")
    for half in range(2):
        for k8 in range(8):
            for q in range(4):
                a(f"ds_read_b64_tr_b16 {vr(32+k8*8+2*q,2)}, v{VT0+half} offset:{k8*8192+4096*(q>>1)+512*(q&1)}")
        a("s_waitcnt lgkmcnt(0)")
        a("s_barrier")
        for k8 in range(8):
            for q in range(2):
                a(f"ds_write_b128 v{VK1}, {vr(32+k8*8+4*q,4)} offset:{k8*8192+1024*q}")
        a("s_waitcnt lgkmcnt(0)")
        if half == 0: a(f"v_add_u32 v{VK1}, 65536, v{VK1}")
    a(f"v_mov_b32 v{VT1}, v{VK1}"); a(f"v_subrev_u32 v{VT0}, 65536, v{VK1}")
    idx_reg(a, VI)
    a(f"v_and_b32 v32, 15, v{L}"); a(f"v_bfe_u32 v33, v{L}, 4, 1"); a("v_lshlrev_b32 v33, 2, v33"); a("v_sub_u32 v32, v32, v33")
    a("v_mov_b32 v33, 0x3f80"); a("v_mov_b32 v34, 0x3f800000")
    for h in range(4):
        e = 2*(h & 1) + 8*(h >> 1)
        a(f"v_cmp_eq_u32 vcc, {e}, v32"); a("s_nop 1"); a(f"v_cndmask_b32 v{VID+h}, 0, v33, vcc")
        a(f"v_cmp_eq_u32 vcc, {e+1}, v32"); a("s_nop 1"); a(f"v_cndmask_b32 v{VID+h}, v{VID+h}, v34, vcc")
    a(f"s_lshl_b32 s20, s{W}, 8"); a(f"s_lshl_b32 s21, s{W}, 10")
    a(f"v_add_u32 v{VKX}, s21, v{VL16}")
    a(f"v_lshrrev_b32 v34, 4, v{L}"); a(f"v_and_b32 v33, 7, v{L}"); a("v_lshlrev_b32 v33, 4, v33"); a(f"v_lshl_add_u32 v{VKM}, v34, 7, v33")
    a(f"s_lshl_b32 s21, s{W}, 9"); a(f"v_add_u32 v{VKM}, s21, v{VKM}")
    a(f"v_and_b32 v33, 15, v{L}"); a(f"v_lshrrev_b32 v34, 4, v{L}")
    a(f"v_lshlrev_b32 v{VVM}, 4, v33"); a(f"v_lshl_add_u32 v{VVM}, v34, 2, v{VVM}"); a(f"v_add_u32 v{VVM}, s20, v{VVM}")
    a(f"v_lshlrev_b32 v{VO}, 4, v33"); a(f"v_lshl_add_u32 v{VO}, v34, 7, v{VO}")
    a(f"s_lshl_b32 s21, s{W}, 9"); a(f"s_lshl_b32 s22, s{S_R}, 11"); a("s_add_u32 s21, s21, s22"); a(f"v_add_u32 v{VO}, s21, v{VO}")
    a(f"s_mul_i32 s21, s{W}, 3072"); a(f"s_add_u32 s21, s21, {A_SC}"); a(f"v_add_u32 v{VSW}, s21, v{VL16}")
    a(f"v_and_b32 v35, 7, v{L}"); a(f"v_bfe_u32 v36, v{L}, 3, 1")
    a("v_lshl_add_u32 v37, v34, 4, v35"); a("v_lshlrev_b32 v37, 4, v37"); a(f"v_lshl_add_u32 v{VSR}, v36, 10, v37")
    a(f"v_add_u32 v{VSR}, {A_SC}, v{VSR}")
    a("v_lshl_add_u32 v37, v34, 1, v36")
    a("v_lshrrev_b32 v38, 2, v37"); a("v_add_u32 v38, 2, v38"); a("v_lshl_add_u32 v38, v38, 4, v35"); a("v_lshlrev_b32 v38, 4, v38")
    a("v_and_b32 v37, 3, v37"); a(f"v_lshl_add_u32 v{VSM}, v37, 2, v38"); a(f"v_add_u32 v{VSM}, {A_SC+2048}, v{VSM}")
    a(f"s_lshl_b32 s27, s{W}, 11")
    a(f"v_add_u32 v{VKA}, s27, v{VL16}"); a(f"v_add_u32 v{VKA}, {A_KX}, v{VKA}")
    a(f"v_and_b32 v5, 0x30, v{VL16}"); a("v_lshlrev_b32 v5, 6, v5"); a(f"s_lshl_b32 s20, s{W}, 12"); a("v_add_u32 v5, s20, v5")
    a("s_mov_b32 s34, 0x00ff00ff"); a("s_mov_b32 s35, 0x00ff00ff")
    a("s_mov_b32 s36, 0xff00ff00"); a("s_mov_b32 s37, 0xff00ff00")
    a(f"s_mov_b32 s38, {f2u(CEXP):#x}")
    def kv_prefetch():
        if kv_wait: kv_wait(a)
        a(f"s_lshl_b32 s20, s{S_STEP}, 5"); a("s_add_u32 s20, s20, s26"); a("s_lshl_b32 s20, s20, 13")
        a(f"s_add_u32 s21, s20, {VT_OFF}"); a(f"s_add_u32 s20, s20, {K_OFF}")
        for t in range(2):
            a(f"s_add_u32 m0, s27, {A_KX+1024*t}"); a("s_nop 0")
            a(f"buffer_load_dwordx4 v{VKX}, {sr(S_WS,4)}, s20 offen sc1 lds")
            a(f"s_add_u32 m0, s27, {A_VX+1024*t}"); a("s_nop 0")
            a(f"buffer_load_dwordx4 v{VKX}, {sr(S_WS,4)}, s21 offen sc1 lds")
            if t == 0: a("s_add_u32 s20, s20, 4096"); a("s_add_u32 s21, s21, 4096")
    a(f"s_mov_b32 s{S_STEP}, 0")
    rts(a, 1)
    if INIT_WAIT:
        a("v_mov_b32 v60, v14"); INIT_WAIT(a); a("v_mov_b32 v14, v60")
    kv_prefetch()
    a("s_waitcnt vmcnt(0)")
    a("s_barrier")
    def k1read(ks):
        st = STG[ks % 3]; base = VT0 if ks < 8 else VT1
        return [f"ds_read_b128 {vr(st+4*q,4)}, v{base} offset:{(ks%8)*8192+1024*q}" for q in range(2)]
    a.label("L_A_step")
    a("s_mov_b32 s30, 0"); a("s_mov_b32 s32, 0")
    a(f"s_and_b32 s39, s{S_STEP}, 3"); a("s_lshl_b32 s39, s39, 16")
    a(f"s_lshl_b32 s21, s{S_X}, 14"); a("s_add_u32 s25, s39, s21")
    a(f"s_add_u32 s20, s25, {CH_MEM}")
    for i in range(1, 4): a(f"s_add_u32 s{20+i}, s20, {4096*i}")
    for i in range(16): a(f"v_mov_b32 v{ACC+i}, 0")
    for x in k1read(0) + k1read(1): a(x)
    def pload(i):
        a(f"buffer_load_dwordx4 {vr(PIECE+4*i,4)}, v{VL16}, {sr(S_WS,4)}, s{20+i//4} offen offset:{(i%4)*1024} sc1")
    def pcheck(i):
        a(f"v_cmp_eq_u32 vcc, -1, v{PIECE+4*i}")
    def look(n):
        if n-1+WIN < 16 and n > 0: pload(n-1+WIN)
        a(f"s_waitcnt vmcnt({min(WIN-1, 15-n)})")
        pcheck(n)
    a("s_mov_b32 s33, 0")
    def sload(k): a(f"buffer_load_dword v{PIECE+k}, v5, {sr(S_WS,4)}, s20 offen sc1")
    for k in range(NFLY):
        sload(k)
        if k < NFLY-1: a("s_sleep 1")
    a.label("L_A_poll")
    for k in range(NFLY):
        a(f"s_waitcnt vmcnt({NFLY-1})")
        a(f"v_cmp_eq_u32 vcc, -1, v{PIECE+k}")
        a("s_cbranch_vccz L_A_go")
        sload(k)
    poll_tail(a, "L_A_poll", abort)
    a.label("L_A_redo")
    a("s_nop 7")
    for i in range(16): a(f"v_mov_b32 v{ACC+i}, 0")
    for x in k1read(0) + k1read(1): a(x)
    a("s_add_u32 s32, s32, 1"); a(f"s_cmp_ge_u32 s32, {POLL_MAX}"); a(f"s_cbranch_scc1 {abort}")
    if PROF: a("s_add_u32 s30, s30, 0x10000")
    a("s_branch L_A_go2")
    a.label("L_A_go")
    a("s_barrier")
    a.label("L_A_go2")
    ts(a, 0)
    sched = {}
    nxt = WIN
    for ks in range(16):
        k = []
        for _ in range(PER):
            if nxt < 16: k.append(nxt); nxt += 1
        sched[ks] = k
    for i in range(WIN): pload(i)
    issued = WIN
    for ks in range(16):
        P = vr(PIECE+4*ks, 4)
        if ks in (0, 4, 8, 12): ts(a, 5+ks//4)
        a(f"s_waitcnt vmcnt({issued-1-ks}) lgkmcnt({0 if (ks == 15 or (PROF and ks % 4 == 0)) else 2})")
        a(f"v_smfmac_f32_16x16x64_bf16 {vr(ACC,4)}, {P}, {Wq(ks,0)}, v{VI}")
        for k in sched[ks][:1]: pload(k)
        a(f"v_smfmac_f32_16x16x64_bf16 {vr(ACC+12,4)}, {P}, {vr(STG[ks % 3],8)}, v{VI}")
        rd = k1read(ks+2) if ks+2 < 16 else []
        for x in rd[:1]: a(x)
        for k in sched[ks][1:]: pload(k)
        issued += len(sched[ks])
        a(f"v_smfmac_f32_16x16x64_bf16 {vr(ACC+4,4)}, {P}, {Wq(ks,1)}, v{VI}")
        for x in rd[1:]: a(x)
        if ks == 1: a(f"v_max_u32 v15, v{PIECE}, v{PIECE+4}")
        elif ks % 2 == 1: a(f"v_max3_u32 v15, v15, v{PIECE+4*ks-4}, v{PIECE+4*ks}")
        if ks == 15: a("v_cmp_eq_u32 vcc, -1, v15")
        a(f"v_smfmac_f32_16x16x64_bf16 {vr(ACC+8,4)}, {P}, {Wk0(ks)}, v{VI}")
    a("s_cbranch_vccnz L_A_redo")
    ts(a, 1)
    KX = 48; VX = 56; VM = 64; Y = 68; X = 72; T = 72; SX = 84; SM = 96+8
    for t in range(2): a(f"ds_read_b128 {vr(KX+4*t,4)}, v{VKA} offset:{1024*t}")
    for t in range(2): a(f"ds_read_b128 {vr(VX+4*t,4)}, v{VKA} offset:{A_VX-A_KX+1024*t}")
    a("s_lshl_b32 s21, s26, 11"); a("s_add_u32 s20, s39, s21"); a(f"s_add_u32 s24, s20, {CH_VM}")
    a("s_nop 1")
    for t in range(2):
        a(f"v_cvt_pk_bf16_f32 v{X+4*t}, v{ACC+4*t}, v{ACC+4*t+1}"); a(f"v_cvt_pk_bf16_f32 v{X+4*t+1}, v{ACC+4*t+2}, v{ACC+4*t+3}")
        a(f"v_cvt_pk_bf16_f32 v{X+4*t+2}, v{ACC+8+4*t}, v{ACC+8+4*t+1}"); a(f"v_cvt_pk_bf16_f32 v{X+4*t+3}, v{ACC+8+4*t+2}, v{ACC+8+4*t+3}")
    a("s_nop 0")
    a(f"v_mfma_f32_16x16x32_bf16 {vr(ACC+8,4)}, {vr(X,4)}, {vr(VID,4)}, 0")
    a(f"v_mfma_f32_16x16x32_bf16 {vr(ACC+12,4)}, {vr(X+4,4)}, {vr(VID,4)}, 0")
    a("s_nop 0")
    a(f"v_mov_b32 v{VM+1}, 0"); a(f"v_mov_b32 v{VM+3}, 0")
    a(f"s_lshl_b32 s20, s{S_STEP}, 5"); a("s_add_u32 s20, s20, s26"); a("s_lshl_b32 s20, s20, 12"); a(f"s_add_u32 s20, s20, {KVM_OFF}")
    a(f"v_cvt_pk_bf16_f32 v{Y}, v{ACC+8}, v{ACC+9}"); a(f"v_cvt_pk_bf16_f32 v{Y+1}, v{ACC+10}, v{ACC+11}")
    a(f"v_cvt_pk_bf16_f32 v{Y+2}, v{ACC+12}, v{ACC+13}"); a(f"v_cvt_pk_bf16_f32 v{Y+3}, v{ACC+14}, v{ACC+15}")
    a("s_waitcnt lgkmcnt(0)")
    a("s_nop 0")
    a(f"v_mfma_f32_16x16x32_bf16 {vr(T,4)}, {vr(KX,4)}, {vr(Y,4)}, 0")
    a(f"v_mfma_f32_16x16x32_bf16 {vr(T+4,4)}, {vr(KX+4,4)}, {vr(Y,4)}, 0")
    a(f"v_mfma_f32_16x16x32_bf16 {vr(T+8,4)}, {vr(Y,4)}, {vr(Y,4)}, 0")
    a(f"s_cmp_eq_u32 s{S_STEP}, {NSTEP-1}")
    a("s_cbranch_scc1 L_A_last")
    a("s_nop 3")
    a(f"ds_write_b128 v{VSW}, {vr(T,4)}")
    a(f"ds_write_b128 v{VSW}, {vr(T+4,4)} offset:1024")
    a(f"ds_write_b128 v{VSW}, {vr(T+8,4)} offset:2048")
    ts(a, 2)
    a(f"buffer_load_dword v{VM}, v{VVM}, {sr(S_WS,4)}, s24 offen sc1")
    a(f"buffer_load_dword v{VM+2}, v{VVM}, {sr(S_WS,4)}, s24 offen offset:1024 sc1")
    a("s_mov_b64 exec, s[36:37]")
    a(f"buffer_store_dwordx4 {vr(Y,4)}, v{VKM}, {sr(S_WS,4)}, s20 offen sc1")
    a("s_mov_b64 exec, -1")
    a("s_waitcnt lgkmcnt(0)")
    a("s_barrier")
    for pw in range(4):
        a(f"ds_read_b128 {vr(SX+4*pw,4)}, v{VSR} offset:{pw*3072}")
        a(f"ds_read_b32 v{SM+pw}, v{VSM} offset:{pw*3072}")
    a("s_waitcnt lgkmcnt(4)")
    a(f"v_pk_add_f32 {vr(SX,2)}, {vr(SX,2)}, {vr(SX+4,2)}"); a(f"v_pk_add_f32 {vr(SX+2,2)}, {vr(SX+2,2)}, {vr(SX+6,2)}")
    a(f"v_add_f32 v{SM}, v{SM}, v{SM+1}")
    a("s_waitcnt lgkmcnt(0)")
    a(f"v_pk_add_f32 {vr(SX+8,2)}, {vr(SX+8,2)}, {vr(SX+12,2)}"); a(f"v_pk_add_f32 {vr(SX+10,2)}, {vr(SX+10,2)}, {vr(SX+14,2)}")
    a(f"v_add_f32 v{SM+2}, v{SM+2}, v{SM+3}")
    a(f"v_pk_add_f32 {vr(SX,2)}, {vr(SX,2)}, {vr(SX+8,2)}"); a(f"v_pk_add_f32 {vr(SX+2,2)}, {vr(SX+2,2)}, {vr(SX+10,2)}")
    a(f"v_add_f32 v{SM}, v{SM}, v{SM+2}")
    M = SX+4; TM = SX+5
    def fold(op, r):
        a("s_nop 1")
        a(f"{op}_dpp v{r}, v{r}, v{r} row_ror:8 row_mask:0xf bank_mask:0xf")
        for sw in ("v_permlane16_swap_b32", "v_permlane32_swap_b32"):
            a(f"v_mov_b32 v{TM}, v{r}"); a("s_nop 1"); a(f"{sw} v{r}, v{TM}"); a(f"{op} v{r}, v{r}, v{TM}")
    a(f"v_max3_f32 v{M}, v{SX}, v{SX+1}, v{SX+2}"); a(f"v_max3_f32 v{M}, v{M}, v{SX+3}, v{SM}")
    fold("v_max_f32", M)
    a(f"v_mul_f32 v{M}, s38, v{M}")
    for r in (SX, SX+1, SX+2, SX+3, SM): a(f"v_fma_f32 v{r}, v{r}, s38, -v{M}")
    for r in (SX, SX+1, SX+2, SX+3, SM): a(f"v_exp_f32 v{r}, v{r}")
    a("s_waitcnt vmcnt(1)")
    a(f"v_max_u32 v{TM}, v{VM}, v{VM+2}")
    a(f"v_cmp_eq_u32 vcc, -1, v{TM}")
    PX = SX+8; PM = SX+12
    a(f"v_mov_b32 v{PM+1}, 0")
    a(f"v_cvt_pk_bf16_f32 v{PX}, v{SX}, v{SX+1}"); a(f"v_cvt_pk_bf16_f32 v{PX+1}, v{SX+2}, v{SX+3}")
    a(f"v_mov_b32_dpp v{SM+1}, v{SM} row_ror:8 row_mask:0xf bank_mask:0xf")
    a(f"v_add_f32 v{M}, v{SX}, v{SX+1}")
    a(f"v_mov_b32_dpp v{PX+2}, v{PX} row_ror:8 row_mask:0xf bank_mask:0xf")
    a(f"v_mov_b32_dpp v{PX+3}, v{PX+1} row_ror:8 row_mask:0xf bank_mask:0xf")
    a(f"v_cvt_pk_bf16_f32 v{PM}, v{SM}, v{SM+1}")
    a(f"v_add_f32 v{SX+2}, v{SX+2}, v{SX+3}")
    ts(a, 3)
    a(f"v_mfma_f32_16x16x32_bf16 {vr(T,4)}, {vr(VX,4)}, {vr(PX,4)}, 0")
    a(f"v_add_f32 v{M}, v{M}, v{SM}")
    a(f"v_mfma_f32_16x16x32_bf16 {vr(T+4,4)}, {vr(VX+4,4)}, {vr(PX,4)}, 0")
    a(f"v_add_f32 v{M}, v{M}, v{SX+2}")
    a(f"s_cbranch_vccnz L_A_vmfix")
    a.label("L_A_vmok")
    a(f"v_mfma_f32_16x16x16_bf16 {vr(T,4)}, {vr(VM,2)}, {vr(PM,2)}, {vr(T,4)}")
    a(f"v_add_f32_dpp v{M}, v{M}, v{M} row_ror:8 row_mask:0xf bank_mask:0xf")
    a(f"v_mfma_f32_16x16x16_bf16 {vr(T+4,4)}, {vr(VM+2,2)}, {vr(PM,2)}, {vr(T+4,4)}")
    for sw in ("v_permlane16_swap_b32", "v_permlane32_swap_b32"):
        a(f"v_mov_b32 v{TM}, v{M}"); a("s_nop 1"); a(f"{sw} v{M}, v{TM}"); a(f"v_add_f32 v{M}, v{M}, v{TM}")
    a(f"v_rcp_f32 v{M}, v{M}")
    a(f"s_add_u32 s20, s25, {CH_OX}")
    for i in range(8): a(f"v_mul_f32 v{T+i}, v{T+i}, v{M}")
    for i in range(4): a(f"v_cvt_pk_bf16_f32 v{Y+i}, v{T+2*i}, v{T+2*i+1}")
    a("s_mov_b64 exec, s[34:35]")
    local_store(a, f"buffer_store_dwordx4 {vr(Y,4)}, v{VO}, {sr(S_WS,4)}, s20 offen")
    ts(a, 4); rts(a, 0)
    for i in range(4): a(f"v_mov_b32 v{T+i}, -1")
    a(f"s_add_u32 s21, s25, {3*65536}"); a(f"s_and_b32 s21, s21, {4*65536-1}"); a(f"s_add_u32 s21, s21, {CH_OX}")
    local_store(a, f"buffer_store_dwordx4 {vr(T,4)}, v{VO}, {sr(S_WS,4)}, s21 offen")
    a("s_mov_b64 exec, -1")
    if step_done: step_done(a, "A")
    ts_store(a, 26, 60)
    a(f"s_add_u32 s{S_STEP}, s{S_STEP}, 1")
    kv_prefetch()
    a("s_branch L_A_step")
    a.label("L_A_vmfix")
    a(f"buffer_load_dword v{VM}, v{VVM}, {sr(S_WS,4)}, s24 offen sc1")
    a(f"buffer_load_dword v{VM+2}, v{VVM}, {sr(S_WS,4)}, s24 offen offset:1024 sc1")
    a("s_waitcnt vmcnt(0)")
    a(f"v_max_u32 v{TM}, v{VM}, v{VM+2}")
    a(f"v_cmp_eq_u32 vcc, -1, v{TM}")
    a("s_cbranch_vccz L_A_vmok")
    poll_tail(a, "L_A_vmfix", abort)
    a.label("L_A_last")
    a("s_mov_b64 exec, s[36:37]")
    a(f"buffer_store_dwordx4 {vr(Y,4)}, v{VKM}, {sr(S_WS,4)}, s20 offen sc1")
    a("s_mov_b64 exec, -1")
    if step_done: step_done(a, "Alast")

R_PS, R_HS, R_GS, R_CS = 2368, 1184, 288, 144
VR_V = 0; VR_R = 16384; VR_X = 40960
SCP = 52
def role_VR(a, abort, step_done=None):
    L = V_LANE; W = S_WAVE
    VI, VL16, VWV, VRV, VWR, VRR, VSV, VSP, VPL2, VSM, VPL = 3, 4, 5, 6, 7, 8, 9, 10, 12, 13, 16
    PIECE = 32; ACC = 48; RD = 64; POIS = 96
    a(f"s_sub_u32 s{S_R}, s{S_R}, 8")
    a(f"s_lshl_b32 s26, s{S_X}, 3"); a(f"s_lshr_b32 s20, s{S_R}, 1"); a("s_add_u32 s26, s26, s20")
    a(f"s_lshl_b32 s27, s{W}, 15")
    a(f"v_lshrrev_b32 v2, 4, v{L}"); a(f"v_bfe_u32 v3, v{L}, 2, 2")
    a(f"v_and_b32 v5, 3, v{L}"); a("v_lshlrev_b32 v5, 3, v5"); a("v_add_u32 v5, s27, v5")
    a("v_and_b32 v6, 1, v2")
    a("v_lshrrev_b32 v7, 1, v3"); a("v_lshl_or_b32 v8, v6, 1, v7")
    a("v_lshl_add_u32 v4, v2, 3, v3"); a("v_lshl_add_u32 v9, v4, 7, v5")
    a("v_lshrrev_b32 v4, 1, v2"); a("v_lshlrev_b32 v4, 3, v4"); a("v_lshl_add_u32 v4, v6, 6, v4"); a("v_lshl_add_u32 v4, v7, 2, v4")
    a("v_and_b32 v10, 1, v3"); a("v_add_u32 v4, v4, v10"); a("v_lshl_add_u32 v10, v4, 7, v5")
    for t in range(4):
        a(f"v_xor_b32 v4, {t}, v8"); a("v_lshlrev_b32 v4, 5, v4")
        a(f"v_add_u32 v{32+t}, v9, v4"); a(f"v_add_u32 v{36+t}, v10, v4")
    for part in range(2):
        stride = 8192 if part == 0 else 2048
        a(f"v_lshrrev_b32 v2, 3, v{L}"); a(f"v_and_b32 v3, 7, v{L}")
        a(f"v_bfe_u32 v4, v{L}, {4 if part == 0 else 5}, 1"); a("v_lshlrev_b32 v4, 1, v4"); a("v_xor_b32 v3, v3, v4")
        a(f"v_lshlrev_b32 v2, {13 if part == 0 else 11}, v2"); a("v_lshlrev_b32 v3, 4, v3")
        a("v_add_u32 v40, v2, v3"); a("v_xor_b32 v3, 64, v3"); a("v_add_u32 v41, v2, v3")
        if part == 0:
            load_srd(a, S_WT, 48, 0, DM*4096*2)
            a("s_lshl_b32 s22, s26, 8"); a(f"s_and_b32 s20, s{S_R}, 1"); a("s_lshl_b32 s20, s20, 7"); a("s_add_u32 s22, s22, s20")
            a(f"s_lshl_b32 s20, s{W}, 21"); a("s_add_u32 s22, s22, s20")
        else:
            load_srd(a, S_WT, 50, 0, 4096*DM*2)
            a(f"s_lshl_b32 s22, s{S_X}, 21"); a(f"s_lshl_b32 s20, s{W}, 19"); a("s_add_u32 s22, s22, s20")
            a(f"s_lshl_b32 s20, s{S_R}, 7"); a("s_add_u32 s22, s22, s20")
        for j in range(32):
            odd = (j & 1) if part == 0 else ((j >> 3) & 1)
            a(f"s_add_u32 m0, s27, {1024*j}"); a("s_nop 0")
            a(f"buffer_load_dwordx4 v{40+odd}, {sr(S_WT,4)}, s22 offen lds")
            a(f"s_add_u32 s22, s22, {8*stride}")
        a("s_waitcnt vmcnt(0)")
        for kk in range(4):
            for t in range(4):
                for q in range(4):
                    if part == 0: off = (64*kk + 32*(q >> 1) + 4*(q & 1))*128
                    else: off = (128*(kk >> 1) + 32*(kk & 1) + 16*(q >> 1) + 2*(q & 1))*128
                    a(f"ds_read_b64_tr_b16 {ar(part*128+(kk*4+t)*8+2*q,2)}, v{32+4*part+t} offset:{off}")
            a("s_waitcnt lgkmcnt(0)")
    a("s_barrier")
    idx_reg(a, VI)
    a(f"v_lshlrev_b32 v{VL16}, 4, v{L}")
    a(f"s_lshl_b32 s20, s{W}, 12")
    a(f"v_add_u32 v{VWV}, s20, v{VL16}")
    a(f"v_add_u32 v2, s20, v{VL16}")
    a(f"s_and_b32 s21, s{W}, 1"); a("s_lshl_b32 s22, s21, 11")
    a(f"v_lshrrev_b32 v14, 5, v{L}"); a(f"v_and_b32 v15, 31, v{L}"); a("v_lshlrev_b32 v15, 4, v15")
    a(f"v_lshl_add_u32 v{VRV}, v14, 10, v15"); a(f"v_add_u32 v{VRV}, s22, v{VRV}")
    a(f"v_and_b32 v15, 15, v{L}"); a("v_lshl_add_u32 v15, v14, 4, v15"); a("v_lshlrev_b32 v15, 4, v15")
    a(f"v_bfe_u32 v14, v{L}, 4, 1"); a(f"v_lshl_add_u32 v{VSV}, v14, 3, v15")
    a("s_lshl_b32 s22, s21, 9"); a(f"s_and_b32 s23, s{S_R}, 1"); a("s_lshl_b32 s23, s23, 10"); a("s_add_u32 s22, s22, s23")
    a(f"v_add_u32 v{VSV}, s22, v{VSV}")
    a(f"s_mul_i32 s22, s{W}, {R_PS}"); a(f"s_add_u32 s22, s22, {VR_R}")
    a(f"v_lshrrev_b32 v14, 5, v{L}"); a(f"v_mul_u32_u24 v{VWR}, {R_GS}, v14")
    a(f"v_bfe_u32 v14, v{L}, 3, 1"); a(f"v_mul_u32_u24 v14, {R_HS}, v14"); a(f"v_add_u32 v{VWR}, v{VWR}, v14")
    a(f"v_bfe_u32 v14, v{L}, 1, 1"); a(f"v_mul_u32_u24 v14, {R_CS}, v14"); a(f"v_add_u32 v{VWR}, v{VWR}, v14")
    a(f"v_bfe_u32 v14, v{L}, 4, 1"); a(f"v_lshl_add_u32 v{VWR}, v14, 6, v{VWR}")
    a(f"v_bfe_u32 v14, v{L}, 2, 1"); a(f"v_lshl_add_u32 v{VWR}, v14, 3, v{VWR}")
    a(f"v_and_b32 v14, 1, v{L}"); a(f"v_lshl_add_u32 v{VWR}, v14, 2, v{VWR}")
    a(f"v_add_u32 v{VWR}, s22, v{VWR}")
    a(f"s_mul_i32 s22, s21, {R_HS}"); a(f"s_add_u32 s22, s22, {VR_R}")
    a(f"v_lshrrev_b32 v14, 4, v{L}"); a(f"v_mul_u32_u24 v{VRR}, {R_GS}, v14")
    a(f"v_bfe_u32 v14, v{L}, 3, 1"); a(f"v_mul_u32_u24 v14, {R_CS}, v14"); a(f"v_add_u32 v{VRR}, v{VRR}, v14")
    a(f"v_and_b32 v14, 7, v{L}"); a(f"v_lshl_add_u32 v{VRR}, v14, 4, v{VRR}")
    a(f"v_add_u32 v{VPL2}, {VR_R}, v{VRR}")
    a(f"v_add_u32 v{VRR}, s22, v{VRR}")
    a(f"s_lshl_b32 s22, s{S_R}, 14")
    for k in range(3):
        a(f"s_add_u32 s23, s{S_X}, {k+1}"); a("s_and_b32 s23, s23, 3"); a("s_lshl_b32 s23, s23, 11"); a("s_add_u32 s23, s23, s22")
        a(f"v_add_u32 v{VPL+k}, s23, v{VL16}")
    a("s_lshl_b32 s23, s21, 10"); a("s_add_u32 s22, s22, s23")
    a(f"s_lshl_b32 s23, s{S_X}, 11"); a("s_add_u32 s22, s22, s23"); a(f"v_add_u32 v{VSP}, s22, v{VL16}")
    a(f"s_lshl_b32 s22, s{S_R}, 10"); a(f"v_add_u32 v{VSM}, s22, v{VL16}")
    for i in range(4): a(f"v_mov_b32 v{POIS+i}, -1")
    if INIT_WAIT: INIT_WAIT(a)
    Lc, Lp = a.newlabel("Cal"), a.newlabel("Cal")
    a(f"s_or_b32 s22, s{S_X}, s{S_R}"); a(f"s_or_b32 s22, s22, s{W}"); a("s_cmp_lg_u32 s22, 0"); a(f"s_cbranch_scc1 {Lc}")
    a("s_mov_b32 s34, 0x100")
    for pg in range(NCOPY//2):
        for c in range(2):
            for k in range(4):
                a(f"s_mov_b32 s23, {CH_PART + pg*2*MB + c*8192 + k*16384 + 1024*k}")
                a("s_memtime s[36:37]")
                a("s_waitcnt lgkmcnt(0)")
                a(f"buffer_load_dword v14, off, {sr(S_WS,4)}, s23 sc1")
                a("s_waitcnt vmcnt(0)")
                a("s_memtime s[38:39]")
                a("s_waitcnt lgkmcnt(0)")
                a("s_sub_u32 s36, s38, s36")
                if k == 0: a(f"s_mov_b32 s{20+c}, s36")
                else: a(f"s_min_u32 s{20+c}, s{20+c}, s36")
        a("s_cmp_lt_u32 s21, s20"); a(f"s_cselect_b32 s36, {1 << pg}, 0"); a("s_or_b32 s34, s34, s36")
    a("v_mov_b32 v14, s34"); a(f"s_mov_b32 s23, {FL_NEAR}")
    a(f"buffer_store_dword v14, off, {sr(S_WS,4)}, s23 sc1")
    a.label(Lc)
    a("s_mov_b32 s30, 0"); a(f"s_mov_b32 s23, {FL_NEAR}")
    a.label(Lp)
    a(f"buffer_load_dword v14, off, {sr(S_WS,4)}, s23 sc1")
    a("s_waitcnt vmcnt(0)")
    a("v_readfirstlane_b32 s34, v14")
    a("s_nop 3")
    a("s_cmp_lg_u32 s34, 0")
    Lq = a.newlabel("Cal")
    a(f"s_cbranch_scc1 {Lq}")
    a("s_sleep 8")
    poll_tail(a, Lp, abort)
    a.label(Lq)
    for c in range(NCOPY):
        a(f"s_bfe_u32 s22, s34, {(c//2) | (1 << 16):#x}"); a("s_lshl_b32 s22, s22, 13"); a(f"s_add_u32 s{SCP+c}, s22, {CH_PART + c*MB}")
    a(f"s_lshl_b32 s28, s{S_X}, 4"); a(f"s_add_u32 s28, s28, s{S_R}"); a("s_add_u32 s28, s28, 32")
    a(f"s_mov_b32 s{S_STEP}, 0")

    def gemv(sbase, wbase, tag):
        Lp = a.newlabel("VRp")
        def pl(i): a(f"buffer_load_dwordx4 {vr(PIECE+4*i,4)}, v2, {sr(S_WS,4)}, s{sbase} offen offset:{i*1024} sc1")
        def pc(i):
            a(f"v_cmp_eq_u32 vcc, -1, v{PIECE+4*i}")
        for i in range(16): a(f"v_mov_b32 v{ACC+i}, 0")
        def mm(h):
            for kk in (2*h, 2*h+1):
                for t in range(4):
                    a(f"v_smfmac_f32_16x16x64_bf16 {vr(ACC+4*t,4)}, {vr(PIECE+4*kk,4)}, {ar(wbase+(kk*4+t)*8,8)}, v{VI}")
        def ck(h):
            a(f"v_max_u32 v15, v{PIECE+8*h}, v{PIECE+8*h+4}"); a("v_cmp_eq_u32 vcc, -1, v15")
        Lf = [a.newlabel("VRf") for _ in range(2)]; Lo = [a.newlabel("VRo") for _ in range(2)]; Lr = [a.newlabel("VRr") for _ in range(2)]
        Le = a.newlabel("VRe")
        pl(0); pl(1)
        a("s_sleep 2")
        pl(2); pl(3)
        a.label(Lp)
        for h in range(2):
            a("s_waitcnt vmcnt(2)")
            ck(h)
            a(f"s_cbranch_vccz {Lf[h]}")
            pl(2*h); pl(2*h+1)
        poll_tail(a, Lp, abort)
        for h in (1, 0):
            o = 1-h
            a.label(Lr[h])
            pl(2*o); pl(2*o+1)
            a("s_add_u32 s30, s30, 1"); a(f"s_cmp_ge_u32 s30, {POLL_MAX}"); a(f"s_cbranch_scc1 {abort}")
            a(f"s_branch {Lo[h]}")
            a.label(Lf[h])
            mm(h)
            a.label(Lo[h])
            a("s_waitcnt vmcnt(0)")
            ck(o)
            a(f"s_cbranch_vccnz {Lr[h]}")
            mm(o)
            if h == 1: a(f"s_branch {Le}")
        a.label(Le)
    def sum8():
        for i in range(1, 8):
            a(f"s_waitcnt lgkmcnt({7-i})")
            a(f"v_pk_add_f32 {vr(RD,2)}, {vr(RD,2)}, {vr(RD+4*i,2)}"); a(f"v_pk_add_f32 {vr(RD+2,2)}, {vr(RD+2,2)}, {vr(RD+4*i+2,2)}")

    a.label("L_VR_step")
    a("s_mov_b32 s30, 0")
    a(f"s_and_b32 s35, s{S_STEP}, 3"); a("s_lshl_b32 s39, s35, 16")
    a(f"s_lshl_b32 s21, s{S_X}, 14"); a("s_add_u32 s25, s39, s21")
    a(f"s_add_u32 s20, s25, {CH_MEM}")
    gemv(20, 0, "V")
    ts(a, 0)
    a("s_lshl_b32 s21, s26, 11"); a("s_add_u32 s20, s39, s21"); a(f"s_add_u32 s20, s20, {CH_VM}"); a("s_nop 0")
    a(f"s_lshl_b32 s21, s{S_STEP}, 5"); a("s_add_u32 s21, s21, s26"); a("s_lshl_b32 s21, s21, 12"); a(f"s_add_u32 s21, s21, {KVM_OFF+2048}")
    a(f"ds_write_b128 v{VWV}, {vr(ACC,4)}")
    for t in range(1, 4): a(f"ds_write_b128 v{VWV}, {vr(ACC+4*t,4)} offset:{1024*t}")
    a("s_waitcnt lgkmcnt(0)")
    a("s_barrier")
    for i in range(8): a(f"ds_read_b128 {vr(RD+4*i,4)}, v{VRV} offset:{(i>>1)*4096+(i&1)*512}")
    sum8()
    a(f"v_cvt_pk_bf16_f32 v{RD}, v{RD}, v{RD+1}"); a(f"v_cvt_pk_bf16_f32 v{RD+1}, v{RD+2}, v{RD+3}")
    Lk, Le = a.newlabel("VRk"), a.newlabel("VRe")
    a(f"s_cmp_ge_u32 s{W}, 2"); a(f"s_cbranch_scc1 {Lk}")
    local_store(a, f"buffer_store_dwordx2 {vr(RD,2)}, v{VSV}, {sr(S_WS,4)}, s20 offen")
    a(f"s_branch {Le}")
    a.label(Lk)
    a(f"buffer_store_dwordx2 {vr(RD,2)}, v{VSV}, {sr(S_WS,4)}, s21 offen sc1")
    a.label(Le)
    ts(a, 1)
    a(f"s_cmp_eq_u32 s{S_STEP}, {NSTEP-1}")
    a("s_cbranch_scc1 L_VR_last")
    a(f"s_add_u32 s22, s35, 2"); a("s_and_b32 s22, s22, 3"); a("s_lshl_b32 s22, s22, 18")
    Lq, Lq2 = a.newlabel("VRq"), a.newlabel("VRq")
    a(f"s_cmp_lt_u32 s{S_STEP}, 2"); a(f"s_cbranch_scc1 {Lq}")
    a(f"s_cmp_ge_u32 s{W}, 2"); a(f"s_cbranch_scc1 {Lq2}")
    for c in range(NCOPY):
        if c == NCOPY//2:
            a(f"s_branch {Lq}"); a.label(Lq2)
        a(f"s_add_u32 s23, s22, s{SCP+c}")
        a(f"buffer_store_dwordx4 {vr(POIS,4)}, v{VSP}, {sr(S_WS,4)}, s23 offen sc1")
    a.label(Lq)
    Lq = a.newlabel("VRq")
    a(f"s_cmp_eq_u32 s{W}, 3"); a(f"s_cbranch_scc1 {Lq}")
    a(f"s_cmp_eq_u32 s{S_STEP}, 0"); a(f"s_cbranch_scc1 {Lq}")
    Lq2 = a.newlabel("VRq")
    a(f"s_cmp_eq_u32 s{W}, 2"); a(f"s_cbranch_scc1 {Lq2}")
    a(f"s_sub_u32 s22, s20, {CH_VM}"); a(f"s_add_u32 s22, s22, {3*65536}"); a(f"s_and_b32 s22, s22, {4*65536-1}"); a(f"s_add_u32 s22, s22, {CH_VM}")
    local_store(a, f"buffer_store_dwordx2 {vr(POIS,2)}, v{VSV}, {sr(S_WS,4)}, s22 offen")
    a(f"s_branch {Lq}")
    a.label(Lq2)
    a(f"s_add_u32 s22, s25, {3*65536}"); a(f"s_and_b32 s22, s22, {4*65536-1}"); a(f"s_add_u32 s22, s22, {CH_MEM}")
    local_store(a, f"buffer_store_dwordx4 {vr(POIS,4)}, v{VSM}, {sr(S_WS,4)}, s22 offen")
    a.label(Lq)
    a(f"s_add_u32 s20, s25, {CH_OX}")
    gemv(20, 128, "R")
    ts(a, 2)
    a(f"s_lshl_b32 s20, s35, 18")
    for c in range(NCOPY): a(f"s_add_u32 s{84+c}, s20, s{SCP+c}")
    a("s_nop 0")
    for p in range(2):
        for r in range(4): a(f"v_permlane32_swap_b32 v{ACC+8*p+r}, v{ACC+8*p+4+r}")
        for r in range(0, 4, 2): a(f"v_pk_add_f32 {vr(ACC+8*p+r,2)}, {vr(ACC+8*p+r,2)}, {vr(ACC+8*p+4+r,2)}")
        for r in range(4): a(f"ds_write_b32 v{VWR}, v{ACC+8*p+r} offset:{2*p*R_GS+r*16}")
    a(f"s_add_u32 s22, s25, {65536}"); a(f"s_and_b32 s22, s22, {4*65536-1}"); a(f"s_add_u32 s22, s22, {CH_MEM}")
    Lx = a.newlabel("Xe"); Lpo = a.newlabel("Xpo")
    a(f"s_cmp_ge_u32 s{W}, 2")
    a("s_waitcnt lgkmcnt(0)")
    a("s_barrier")
    a(f"s_cbranch_scc1 {Lpo}")
    for i in range(4): a(f"ds_read_b128 {vr(RD+4*i,4)}, v{VRR} offset:{i*R_PS}")
    a("s_waitcnt lgkmcnt(2)")
    a(f"v_pk_add_f32 {vr(RD,2)}, {vr(RD,2)}, {vr(RD+4,2)}"); a(f"v_pk_add_f32 {vr(RD+2,2)}, {vr(RD+2,2)}, {vr(RD+6,2)}")
    a("s_waitcnt lgkmcnt(0)")
    a(f"v_pk_add_f32 {vr(RD+8,2)}, {vr(RD+8,2)}, {vr(RD+12,2)}"); a(f"v_pk_add_f32 {vr(RD+10,2)}, {vr(RD+10,2)}, {vr(RD+14,2)}")
    a(f"v_pk_add_f32 {vr(RD,2)}, {vr(RD,2)}, {vr(RD+8,2)}"); a(f"v_pk_add_f32 {vr(RD+2,2)}, {vr(RD+2,2)}, {vr(RD+10,2)}")
    for c in range(NCOPY):
        a(f"buffer_store_dwordx4 {vr(RD,4)}, v{VSP}, {sr(S_WS,4)}, s{84+c} offen sc1")
        if c == 0: ts(a, 3); rts(a, 0)
    a(f"s_branch {Lx}")
    a.label(Lpo)
    L3 = a.newlabel("X3")
    a(f"s_cmp_lg_u32 s{W}, 3"); a(f"s_cbranch_scc1 {L3}")
    if step_done: step_done(a, "V3")
    a(f"s_branch {Lx}")
    a.label(L3)
    XS = lambda c: 100 + 24*c
    def xl(c):
        for k in range(3):
            for h in range(2): a(f"buffer_load_dwordx4 {vr(XS(c)+8*k+4*h,4)}, v{VPL+k}, {sr(S_WS,4)}, s{84+c} offen offset:{h*1024} sc1")
    for h in range(2):
        for i in range(4): a(f"ds_read_b128 {vr(RD+16*h+4*i,4)}, v{VPL2} offset:{i*R_PS+h*R_HS}")
    for h in range(2):
        b = RD+16*h
        a(f"s_waitcnt lgkmcnt({4-4*h})")
        for k in (0, 2): a(f"v_pk_add_f32 {vr(b+k,2)}, {vr(b+k,2)}, {vr(b+4+k,2)}")
        for k in (0, 2): a(f"v_pk_add_f32 {vr(b+8+k,2)}, {vr(b+8+k,2)}, {vr(b+12+k,2)}")
        for k in (0, 2): a(f"v_pk_add_f32 {vr(RD+4*h+k,2)}, {vr(b+k,2)}, {vr(b+8+k,2)}")
    ts(a, 3); rts(a, 0)
    if XSLEEP: a(f"s_sleep {XSLEEP}")
    Lg = [a.newlabel("Xg") for _ in range(NCOPY)]; Lj = a.newlabel("Xj"); Lp = a.newlabel("Xp")
    def xc(c):
        b = XS(c)
        a(f"v_max3_u32 v15, v{b}, v{b+4}, v{b+8}")
        a(f"v_max3_u32 v15, v15, v{b+12}, v{b+16}")
        a(f"v_max_u32 v15, v15, v{b+20}")
        a("v_cmp_eq_u32 vcc, -1, v15")
        a(f"s_cbranch_vccz {Lg[c]}")
    for c in range(XAHEAD):
        xl(c)
        if c < XAHEAD-1: a(f"s_sleep {XGAP}")
    for c in range(NCOPY):
        a(f"s_waitcnt vmcnt({6*(min(c+XAHEAD, NCOPY)-1-c)})")
        xc(c)
        if c+XAHEAD < NCOPY: xl(c+XAHEAD)
        if PROF: a("s_add_u32 s30, s30, 0x10000")
    a.label(Lp)
    xl(NCOPY-1)
    a("s_waitcnt vmcnt(0)")
    xc(NCOPY-1)
    poll_tail(a, Lp, abort)
    for c in range(NCOPY):
        a.label(Lg[c])
        b = XS(c)
        for k in range(0, 8, 2): a(f"v_pk_add_f32 {vr(RD+k,2)}, {vr(RD+k,2)}, {vr(b+8+k,2)}")
        for k in range(0, 8, 2): a(f"v_pk_add_f32 {vr(RD+8+k,2)}, {vr(b+k,2)}, {vr(b+16+k,2)}")
        if c < NCOPY-1: a(f"s_branch {Lj}")
    a.label(Lj)
    for k in range(0, 8, 2): a(f"v_pk_add_f32 {vr(RD+k,2)}, {vr(RD+k,2)}, {vr(RD+8+k,2)}")
    for k in range(4): a(f"v_cvt_pk_bf16_f32 v{RD+k}, v{RD+2*k}, v{RD+2*k+1}")
    local_store(a, f"buffer_store_dwordx4 {vr(RD,4)}, v{VSM}, {sr(S_WS,4)}, s22 offen")
    a.label(Lx)
    ts(a, 4); rts(a, 1)
    ts_store(a, 28, 60)
    a(f"s_add_u32 s{S_STEP}, s{S_STEP}, 1")
    a("s_branch L_VR_step")
    a.label("L_VR_last")
    if step_done: step_done(a, "Vlast")

NCH = 24
def assign_roles(a, abort, lds_scratch):
    load_srd(a, 20, 64, 0, 256)
    a("s_getreg_b32 s31, hwreg(HW_REG_XCC_ID)"); a("s_and_b32 s31, s31, 7")
    Lw, Lp, Lg = a.newlabel("Rw"), a.newlabel("Rp"), a.newlabel("Rg")
    a(f"v_mov_b32 v4, {lds_scratch}")
    a(f"s_cmp_lg_u32 s{S_WAVE}, 0"); a(f"s_cbranch_scc1 {Lw}")
    a("s_lshl_b32 s24, s31, 2"); a("v_mov_b32 v2, 1")
    a("s_mov_b64 exec, 1")
    a("buffer_atomic_add v2, off, s[20:23], s24 sc0 sc1")
    a("s_mov_b64 exec, -1")
    a(f"v_and_b32 v3, 7, v{V_LANE}"); a("v_lshlrev_b32 v3, 2, v3")
    a("s_mov_b32 s30, 0")
    a("s_waitcnt vmcnt(0)")
    a.label(Lp)
    a("buffer_load_dword v5, v3, s[20:23], 0 offen sc1")
    a("s_waitcnt vmcnt(0)")
    a("v_readlane_b32 s24, v5, 0")
    for i in range(1, 8):
        a(f"v_readlane_b32 s25, v5, {i}"); a("s_nop 0"); a("s_add_u32 s24, s24, s25")
    a("s_cmp_ge_u32 s24, 256"); a(f"s_cbranch_scc1 {Lg}")
    a("s_sleep 2")
    poll_tail(a, Lp, abort)
    a.label(Lg)
    a("v_readlane_b32 s24, v2, 0")
    a("s_nop 3")
    a("v_writelane_b32 v5, s24, 8")
    a(f"v_lshl_add_u32 v3, v{V_LANE}, 2, v4")
    a("s_mov_b64 exec, 0x1ff")
    a("ds_write_b32 v3, v5")
    a("s_mov_b64 exec, -1")
    a("s_waitcnt lgkmcnt(0)")
    a.label(Lw)
    a("s_barrier")
    a(f"v_and_b32 v3, 15, v{V_LANE}"); a("v_lshl_add_u32 v3, v3, 2, v4")
    a("ds_read_b32 v5, v3")
    a("s_waitcnt lgkmcnt(0)")
    a("v_readlane_b32 s32, v5, 8")
    a("s_mov_b32 s33, 0"); a("s_mov_b32 s25, 256")
    for i in range(8):
        a(f"v_readlane_b32 s24, v5, {i}"); a("s_nop 0")
        if i < 4: a("s_min_u32 s25, s25, s24")
        else: a("s_cmp_eq_u32 s24, 0"); a("s_cselect_b32 s25, 0, s25")
        a(f"s_cmp_gt_u32 s31, {i}"); a("s_cselect_b32 s24, s24, 0"); a("s_add_u32 s33, s33, s24")
    a("s_add_u32 s33, s33, s32")
    a("s_barrier")
    Ls, Le = a.newlabel("Rs"), a.newlabel("Re")
    if FORCE_FALLBACK: a("s_mov_b32 s25, 0")
    a(f"s_cmp_lt_u32 s25, {NCH}"); a(f"s_cbranch_scc1 {Ls}")
    a(f"s_mov_b32 s{S_MODE}, 0"); a(f"s_mov_b32 s{S_X}, s31"); a(f"s_mov_b32 s{S_R}, s32")
    a("s_cmp_lt_u32 s31, 4"); a("s_cselect_b32 s29, 1, 0")
    a(f"s_cmp_lt_u32 s32, {NCH}"); a("s_cselect_b32 s29, s29, 0")
    a(f"s_branch {Le}")
    a.label(Ls)
    a(f"s_mov_b32 s{S_MODE}, 1")
    a(f"s_mul_i32 s{S_X}, s33, 2731"); a(f"s_lshr_b32 s{S_X}, s{S_X}, 16")
    a(f"s_mul_i32 s24, s{S_X}, {NCH}"); a(f"s_sub_u32 s{S_R}, s33, s24")
    a(f"s_cmp_lt_u32 s33, {4*NCH}"); a("s_cselect_b32 s29, 1, 0")
    a.label(Le)
```

```python
from common import *

def emit_ln_row(a, srd_x, srd_xn, s_row, vb, store_flags="", preloaded=None, vm=0):
    L = vb; X = vb+2; F = vb+12; T = vb+30
    assert X % 2 == 0
    st = s_row+1
    if preloaded is None:
        a(f"s_lshl_b32 s{st}, s{s_row}, 11")
        a(f"buffer_load_dwordx4 {vr(X,4)}, v{L}, {sr(srd_x,4)}, s{st} offen")
        a(f"buffer_load_dwordx4 {vr(X+4,4)}, v{L}, {sr(srd_x,4)}, s{st} offen offset:1024")
    else: X = preloaded
    a(f"s_waitcnt vmcnt({vm})")
    for i in range(8):
        a(f"v_lshlrev_b32 v{F+2*i}, 16, v{X+i}")
        a(f"v_and_b32 v{F+2*i+1}, 0xffff0000, v{X+i}")
    a(f"v_add_f32 v{T}, v{F}, v{F+1}")
    for i in range(2, 16): a(f"v_add_f32 v{T}, v{T}, v{F+i}")
    wave_reduce(a, "v_add_f32", T, T+1)
    a(f"v_mul_f32 v{T}, {f2u(1/1024):#x}, v{T}")
    a(f"v_sub_f32 v{T+2}, v{F}, v{T}")
    a(f"v_mul_f32 v{T+3}, v{T+2}, v{T+2}")
    for i in range(1, 16):
        a(f"v_sub_f32 v{T+2}, v{F+i}, v{T}")
        a(f"v_fmac_f32 v{T+3}, v{T+2}, v{T+2}")
    wave_reduce(a, "v_add_f32", T+3, T+1)
    a(f"v_mul_f32 v{T+3}, {f2u(1/1024):#x}, v{T+3}")
    round_bf16(a, T, T)
    round_bf16(a, T+3, T+3)
    a(f"v_add_f32 v{T+3}, {f2u(1e-5):#x}, v{T+3}")
    round_bf16(a, T+3, T+3)
    a(f"v_sqrt_f32 v{T+3}, v{T+3}")
    a("s_nop 0")
    round_bf16(a, T+3, T+3)
    a(f"v_rcp_f32 v{T+4}, v{T+3}")
    for i in range(8):
        a(f"v_sub_f32 v{F+2*i}, v{F+2*i}, v{T}")
        a(f"v_sub_f32 v{F+2*i+1}, v{F+2*i+1}, v{T}")
        a(f"v_cvt_pk_bf16_f32 v{X+i}, v{F+2*i}, v{F+2*i+1}")
        a(f"v_lshlrev_b32 v{F+2*i}, 16, v{X+i}")
        a(f"v_and_b32 v{F+2*i+1}, 0xffff0000, v{X+i}")
        for j in (0, 1):
            f = F+2*i+j
            a(f"v_mul_f32 v{T+5+j}, v{f}, v{T+4}")
            a(f"v_fma_f32 v{f}, -v{T+5+j}, v{T+3}, v{f}")
            a(f"v_fma_f32 v{T+5+j}, v{f}, v{T+4}, v{T+5+j}")
        a(f"v_cvt_pk_bf16_f32 v{X+i}, v{T+5}, v{T+6}")
    a(f"s_mul_i32 s{st}, s{s_row}, {XN_STR}")
    a(f"buffer_store_dwordx4 {vr(X,4)}, v{L}, {sr(srd_xn,4)}, s{st} offen {store_flags}")
    a(f"buffer_store_dwordx4 {vr(X+4,4)}, v{L}, {sr(srd_xn,4)}, s{st} offen offset:1024 {store_flags}")

def emit_ln_kernel(a, name):
    kernel_header(a, name)
    a("s_cmp_ge_u32 s2, 512"); a(f"s_cbranch_scc1 {name}_end")
    a(f"s_load_dwordx2 s[4:5], s[0:1], {KA_X}")
    a(f"s_load_dwordx2 s[6:7], s[0:1], {KA_WS}")
    a("v_lshrrev_b32 v1, 6, v0")
    a("v_and_b32 v2, 63, v0")
    a("v_readfirstlane_b32 s3, v1")
    a("v_lshlrev_b32 v2, 4, v2")
    a("s_waitcnt lgkmcnt(0)")
    load_srd(a, 8, 4, 0, S*DM*2)
    load_srd(a, 12, 6, XN_OFF, S*XN_STR)
    a("s_lshl_b32 s16, s2, 2"); a("s_add_u32 s16, s16, s3")
    emit_ln_row(a, 8, 12, 16, 2)
    a.label(f"{name}_end")
    a("s_endpgm")

NPOIS = (CH_END - CH_BASE)//65536 - 1
PRE_GRID = 512 + 64 + NPOIS + 1
def emit_pre_kernel(a, name):
    kernel_header(a, name)
    a(f"s_cmp_ge_u32 s2, {PRE_GRID}"); a(f"s_cbranch_scc1 {name}_end")
    a(f"s_load_dwordx4 s[4:7], s[0:1], {KA_X}")
    a(f"s_load_dwordx2 s[20:21], s[0:1], {KA_WS}")
    a("v_lshrrev_b32 v1, 6, v0")
    a("v_and_b32 v2, 63, v0")
    a("v_readfirstlane_b32 s3, v1")
    a("v_lshlrev_b32 v2, 4, v2")
    a("s_waitcnt lgkmcnt(0)")
    a(f"s_cmp_ge_u32 s2, 576"); a(f"s_cbranch_scc1 {name}_fill")
    a(f"s_cmp_ge_u32 s2, 512"); a(f"s_cbranch_scc1 {name}_mem")
    load_srd(a, 8, 4, 0, S*DM*2)
    load_srd(a, 12, 20, XN_OFF, S*XN_STR)
    a("s_lshl_b32 s16, s2, 2"); a("s_add_u32 s16, s16, s3")
    emit_ln_row(a, 8, 12, 16, 2)
    a("s_endpgm")
    a.label(f"{name}_mem")
    load_srd(a, 8, 6, 0, 8*DM*2)
    load_srd(a, 12, 20, CH_MEM, 65536)
    a("s_sub_u32 s16, s2, 512"); a("s_and_b32 s17, s16, 15"); a("s_lshl_b32 s17, s17, 7")
    a("v_bfe_u32 v1, v0, 2, 3"); a("v_lshlrev_b32 v1, 11, v1")
    a("v_lshrrev_b32 v2, 6, v0"); a("v_lshl_add_u32 v1, v2, 5, v1")
    a("v_and_b32 v2, 3, v0"); a("v_lshl_add_u32 v1, v2, 3, v1")
    a("v_bfe_u32 v2, v0, 5, 1"); a("v_lshl_add_u32 v1, v2, 2, v1")
    a("buffer_load_dword v3, v1, s[8:11], s17 offen")
    a("v_lshlrev_b32 v2, 2, v0"); a("s_lshl_b32 s16, s16, 10")
    a("s_waitcnt vmcnt(0)")
    a("buffer_store_dword v3, v2, s[12:15], s16 offen")
    a("s_endpgm")
    a.label(f"{name}_fill")
    load_srd(a, 12, 20, 0, WS_SIZE)
    a("s_sub_u32 s16, s2, 576"); a(f"s_cmp_ge_u32 s16, {NCOPY*16}"); a("s_addc_u32 s16, s16, 0")
    a("s_lshl_b32 s16, s16, 16"); a(f"s_add_u32 s16, s16, {CH_BASE}")
    a(f"s_cmp_eq_u32 s2, {PRE_GRID-1}")
    a(f"s_cselect_b32 s16, {FLAGS}, s16"); a("s_cselect_b32 s17, 0, -1")
    for i in range(4): a(f"v_mov_b32 v{4+i}, s17")
    a("v_lshlrev_b32 v2, 4, v0")
    for i in range(16):
        a("buffer_store_dwordx4 v[4:7], v2, s[12:15], s16 offen")
        if i < 15: a("s_add_u32 s16, s16, 4096")
    a.label(f"{name}_end")
    a("s_endpgm")
```

```python
from common import *
from ln import *
from gemm import *
from att import att_item
import chain, gemm
from chain import role_A, role_VR, assign_roles, poll_tail, S_WS

LDS_SCR = 156*1024
S_PH, S_CTR, S_B, S_ITEM = 96, 97, 98, 99
S_PRE, S_POFF, S_PVAL = 39, 68, 69
S_FL = 92
PROFW = False
TSW_OFF = 216*MB

BATCH = {"K1": [("K1",0,0,4)], "KV1a": [("KV",1,0,4)], "KV1b": [("KV",1,4,4)], "KV2a": [("KV",2,0,4)], "KV2b": [("KV",2,4,4)],
         "KV3a": [("KV",3,0,4)], "KV3b": [("KV",3,4,4)], "Q0": [("Q",0,0,4)], "Q1": [("Q",1,0,4)], "Q2": [("Q",2,0,4)], "Q3": [("Q",3,0,4)],
         "G1": [("GU",0,0,4)], "G2": [("GU",0,4,3),("GU",1,0,1)], "G3": [("GU",1,1,4)], "G4": [("GU",1,5,2),("GU",2,0,2)],
         "G5": [("GU",2,2,4)], "G6": [("GU",2,6,1),("GU",3,0,3)], "G7": [("GU",3,3,4)],
         "DNa": [("DN",0,0,4)], "DNb": [("DN",0,4,4)], "W2x": [("W2",0,0,4)], "W1x": [("W1",0,8,4)], "WR": [("WR",0,0,4)], "WRa": [("WR",0,0,2),("W1",0,8,2)], "WRb": [("WR",0,2,2),("W1",0,10,2)], "": [("QA",0,0,4)]}
LISTS = [['K1', 'KV1b', 'KV2b', 'G3', 'KV3b', 'W2x'], ['G1', 'G6', 'G5', 'Q1', 'Q3', 'WRa'], ['G7', 'KV1a', 'Q0', 'Q2', 'KV3a', 'DNa'], ['KV2a', 'G4', 'G2', 'DNb', 'WRb']]
def q1_list():
    out = []
    for r in range(max(map(len, LISTS))):
        for l in LISTS: out += BATCH[l[r] if r < len(l) else ""]
    return out
NBLK = 12
WRPOS = 44
NQA = NBLK*16 + (64-4*NBLK)*8
NROT = 4

def load_ptrs(a):
    a("s_load_dwordx8 s[40:47], s[0:1], 0")
    a("s_load_dwordx4 s[48:51], s[0:1], 32")
    a("s_load_dwordx8 s[56:63], s[0:1], 64")
    a("s_load_dwordx4 s[64:67], s[0:1], 96")

def atomic_ret(a, vdst, s_off, val):
    a(f"v_mov_b32 v{vdst}, {val}")
    a("s_mov_b64 exec, 1")
    a(f"buffer_atomic_add v{vdst}, off, {sr(S_FL,4)}, s{s_off} sc0 sc1")
    a("s_mov_b64 exec, -1")
    a("s_waitcnt vmcnt(0)")

def signal(a, s_off, val, srd=S_FL, vtmp=4):
    a(f"v_mov_b32 v{vtmp}, {val}")
    a("s_mov_b64 exec, 1")
    a(f"buffer_atomic_add v{vtmp}, off, {sr(srd,4)}, s{s_off} sc1")
    a("s_mov_b64 exec, -1")

def wait_flags(a, voff_setup, s_base, mask, target, abort, nlanes, vd=4, vo=5, sleep=8):
    Lw, Lp = a.newlabel("Wf"), a.newlabel("Wp")
    a(f"s_cmp_lg_u32 s{S_WAVE}, 0"); a(f"s_cbranch_scc1 {Lw}")
    voff_setup()
    a("s_mov_b32 s30, 0"); a(f"s_mov_b32 s21, {target:#x}")
    a.label(Lp)
    a(f"buffer_load_dword v{vd}, v{vo}, {sr(S_FL,4)}, s{s_base} offen sc1")
    a("s_waitcnt vmcnt(0)")
    if mask != 0xffffffff: a(f"v_and_b32 v{vd}, {mask:#x}, v{vd}")
    a(f"v_cmp_ne_u32 vcc, s21, v{vd}")
    a(f"s_cbranch_vccz {Lw}")
    if sleep: a(f"s_sleep {sleep}")
    poll_tail(a, Lp, abort)
    a.label(Lw)
    a("s_barrier")

def finish(a, s_off, val):
    a("s_waitcnt vmcnt(0)")
    a("s_barrier")
    L = a.newlabel("Fin")
    a(f"s_cmp_lg_u32 s{S_WAVE}, 0"); a(f"s_cbranch_scc1 {L}")
    signal(a, s_off, val)
    a.label(L)

def wstamp(a, i):
    if PROFW: a(f"s_memrealtime s[{70+2*i}:{71+2*i}]")

def xstamp(a, i):
    r = [4,6,52,54,82][i]
    if PROFW: a(f"s_memrealtime s[{r}:{r+1}]")

def wor_item(a, END):
    L = V_LANE; W = S_WAVE
    load_srd(a, S_SRDW, 50, 0, 4096*DM*2)
    a("s_and_b32 s36, s37, 1"); a("s_lshr_b32 s34, s37, 1")
    a(f"v_lshrrev_b32 v2, 5, v{L}"); a("v_lshlrev_b32 v2, 4, v2")
    a(f"v_bfe_u32 v3, v{L}, 3, 2"); a("v_add_u32 v2, v2, v3"); a("v_lshlrev_b32 v2, 11, v2")
    a(f"v_and_b32 v3, 7, v{L}"); a("v_lshl_add_u32 v2, v3, 4, v2")
    a(f"s_lshl_b32 s27, s{W}, 15")
    a(f"v_lshrrev_b32 v4, 5, v{L}"); a(f"v_bfe_u32 v5, v{L}, 2, 2"); a("v_lshl_add_u32 v4, v4, 3, v5"); a("v_lshlrev_b32 v4, 7, v4")
    a(f"v_bfe_u32 v5, v{L}, 4, 1"); a("v_lshl_add_u32 v4, v5, 5, v4"); a(f"v_and_b32 v3, 3, v{L}"); a("v_lshl_add_u32 v4, v3, 3, v4"); a("v_add_u32 v4, s27, v4")
    a(f"s_lshl_b32 s22, s{W}, 20"); a("s_lshl_b32 s23, s36, 22"); a("s_add_u32 s22, s22, s23"); a("s_lshl_b32 s23, s34, 7"); a("s_add_u32 s22, s22, s23")
    for rnd_ in range(2):
        for j in range(32):
            a(f"s_add_u32 m0, s27, {1024*j}"); a("s_nop 0")
            a(f"buffer_load_dwordx4 v2, {sr(S_SRDW,4)}, s22 offen lds")
            a(f"s_add_u32 s22, s22, {(4 if (j & 3) < 3 else 20)*2048}")
        a("s_waitcnt vmcnt(0)")
        for ks in range(16):
            for t in range(2):
                for q in range(2):
                    a(f"ds_read_b64_tr_b16 {ar(((rnd_*16+ks)*2+t)*4+2*q,2)}, v4 offset:{(16*ks+4*q)*128+64*t}")
            if ks % 2 == 1: a("s_waitcnt lgkmcnt(0)")
    a("s_barrier")
    load_srd(a, S_SRDX, 66, OL_OFF, 16*MB)
    load_srd(a, 84, 62, 0, S*DM*2)
    load_srd(a, S_SRDW, 40, 0, S*DM*2)
    VX0, VO, VB, VW, VR, VE, VP = 64, 3, 6, 7, 8, 10, 11
    a("s_lshl_b32 s37, s34, 1"); a("s_add_u32 s37, s37, s36")
    a(f"v_bfe_u32 v10, v{L}, 2, 3"); a(f"v_and_b32 v11, 3, v{L}"); a(f"v_lshrrev_b32 v12, 5, v{L}")
    a(f"v_and_b32 v13, 31, v{L}"); a(f"v_lshlrev_b32 v{VO}, 11, v13"); a(f"v_lshl_add_u32 v{VO}, v12, 3, v{VO}")
    a("s_lshl_b32 s22, s37, 6"); a(f"s_lshl_b32 s23, s{W}, 4"); a("s_add_u32 s22, s22, s23"); a(f"v_add_u32 v{VO}, s22, v{VO}")
    a(f"v_lshlrev_b32 v{VB}, 13, v10"); a(f"v_lshl_add_u32 v{VB}, v11, 5, v{VB}"); a(f"v_lshl_add_u32 v{VB}, v12, 3, v{VB}")
    a("s_lshl_b32 s22, s37, 8"); a(f"s_lshr_b32 s23, s{W}, 1"); a("s_lshl_b32 s23, s23, 7"); a("s_add_u32 s22, s22, s23")
    a(f"s_and_b32 s23, s{W}, 1"); a("s_lshl_b32 s23, s23, 4"); a("s_add_u32 s22, s22, s23"); a(f"s_add_u32 s22, s22, {BP_OFF}")
    a(f"v_add_u32 v{VB}, s22, v{VB}")
    a(f"v_lshlrev_b32 v13, 4, v{L}")
    a(f"s_lshl_b32 s22, s{W}, 15"); a("s_lshl_b32 s23, s36, 17"); a("s_add_u32 s22, s22, s23"); a(f"v_add_u32 v{VX0}, s22, v13")
    for i in range(1, 8): a(f"v_add_u32 v{VX0+i}, {4096*i}, v{VX0}")
    a(f"s_lshl_b32 s22, s{W}, 13"); a(f"v_add_u32 v{VW}, s22, v13")
    a(f"s_lshl_b32 s22, s{W}, 10"); a("s_lshl_b32 s23, s36, 12"); a("s_add_u32 s23, s23, s22"); a(f"v_add_u32 v{VR}, s23, v13")
    a("s_lshl_b32 s23, s37, 12"); a("s_add_u32 s22, s22, s23"); a(f"s_add_u32 s22, s22, {EX_OFF - 4*NBLK*131072}")
    a(f"v_add_u32 v{VE}, s22, v13"); a(f"v_xor_b32 v{VP}, 4096, v{VE}")
    a(f"s_mov_b32 s38, {4*NBLK}"); a("s_mov_b32 s35, 0")
    a(f"v_mov_b32 v9, {LDS_SCR+64}")
    wstamp(a, 1)
    ACC = 16; XR = 128; RD = 80
    a.label("L_WORseg")
    Ld = a.newlabel("Wd")
    a("s_and_b32 s32, s38, 7"); a(f"s_cmp_eq_u32 s38, {4*NBLK}"); a("s_cselect_b32 s32, 0, s32"); a("s_cmp_lg_u32 s32, 0"); a(f"s_cbranch_scc1 {Ld}")
    a("s_lshr_b32 s32, s38, 3"); a("s_lshl_b32 s32, s32, 3"); a("s_lshr_b32 s33, s37, 2"); a("s_add_u32 s32, s32, s33")
    a("s_lshl_b32 s32, s32, 6"); a(f"s_add_u32 s32, s32, {FL_DN}")
    wait_flags(a, lambda: a("v_mov_b32 v15, 0"), 32, 0xffffffff, 1, END, 1, 14, 15)
    a.label(Ld)
    a("s_lshl_b32 s33, s38, 16")
    a(f"s_sub_u32 s32, s38, {4*NBLK}"); a("s_lshl_b32 s32, s32, 7"); a("s_lshl_b32 s34, s36, 6"); a("s_add_u32 s32, s32, s34"); a(f"s_add_u32 s32, s32, {FL_ATS}")
    a("s_lshl_b32 s34, s38, 18"); a("s_lshl_b32 s26, s38, 17")
    Lr = a.newlabel("Wr")
    a("s_cmp_eq_u32 s35, 16"); a(f"s_cbranch_scc1 {Lr}")
    wait_flags(a, lambda: a("v_mov_b32 v15, 0"), 32, 0xffffffff, 16, END, 1, 14, 15, 1)
    a.label(Lr)
    a("s_add_u32 s32, s32, 128")
    wstamp(a, 2)
    a(f"s_bfe_u32 s22, s37, {1 | (2 << 16):#x}")
    for e in range(1, NROT): a(f"s_cmp_eq_u32 s22, {e}"); a(f"s_cbranch_scc1 L_WORe{e}")
    for e in range(NROT):
        a.label(f"L_WORe{e}")
        order = [(32//NROT*e + i) % 32 for i in range(32)]
        WN = 8
        lds = [f"buffer_load_dwordx4 {vr(XR+ks*4,4)}, v{VX0+ks//4}, {sr(S_SRDX,4)}, s34 offen offset:{(ks%4)*1024} sc1" for ks in order]
        lds += [f"buffer_load_dwordx2 v[48:49], v{VO}, {sr(S_SRDW,4)}, s33 offen", f"buffer_load_dwordx2 v[50:51], v{VB}, {sr(S_FL,4)}, s33 offen sc1",
                f"buffer_load_dword v14, off, {sr(S_FL,4)}, s32 sc1"]
        for x in lds[:WN]: a(x)
        n = WN
        for i, ks in enumerate(order):
            a(f"s_waitcnt vmcnt({n-1-i})")
            if i == 0: xstamp(a, 0)
            for t in range(2):
                a(f"v_mfma_f32_32x32x16_bf16 {vr(ACC+16*t,16)}, {ar((ks*2+t)*4,4)}, {vr(XR+ks*4,4)}, {'0' if i == 0 else vr(ACC+16*t,16)}")
                if n < len(lds) and (t == 0 or i < 8): a(lds[n]); n += 1
        if e < NROT-1: a("s_branch L_WORj")
    a.label("L_WORj")
    xstamp(a, 1)
    a("s_nop 10")
    for q in range(8): a(f"ds_write_b128 v{VW}, {vr(ACC+4*q,4)} offset:{1024*q}")
    a("s_waitcnt vmcnt(0)")
    xstamp(a, 2)
    Lz = a.newlabel("Wz")
    a(f"s_cmp_lg_u32 s{W}, 0"); a(f"s_cbranch_scc1 {Lz}")
    a("ds_write_b32 v9, v14")
    a.label(Lz)
    a(f"v_xor_b32 v13, 4096, v{VR}")
    a("s_waitcnt lgkmcnt(0)")
    a("s_barrier")
    for i in range(4): a(f"ds_read_b128 {vr(RD+16+4*i,4)}, v13 offset:{8192*i}")
    for i in range(4): a(f"ds_read_b128 {vr(RD+4*i,4)}, v{VR} offset:{8192*i}")
    a("ds_read_b32 v14, v9")
    a(f"v_xor_b32 v{VW}, 32768, v{VW}"); a(f"v_xor_b32 v{VR}, 32768, v{VR}"); a("v_xor_b32 v9, 4, v9")
    def sum4(b):
        for k in (0, 2):
            a(f"v_pk_add_f32 {vr(b+k,2)}, {vr(b+k,2)}, {vr(b+4+k,2)}"); a(f"v_pk_add_f32 {vr(b+8+k,2)}, {vr(b+8+k,2)}, {vr(b+12+k,2)}")
        for k in (0, 2): a(f"v_pk_add_f32 {vr(b+k,2)}, {vr(b+k,2)}, {vr(b+8+k,2)}")
    a("s_waitcnt lgkmcnt(5)")
    sum4(RD+16)
    xstamp(a, 3)
    a(f"buffer_store_dwordx4 {vr(RD+16,4)}, v{VE}, {sr(S_FL,4)}, s26 offen sc1")
    a("s_waitcnt lgkmcnt(0)")
    sum4(RD)
    a("v_readfirstlane_b32 s35, v14")
    a("v_lshlrev_b32 v52, 16, v48"); a("v_and_b32 v53, 0xffff0000, v48"); a("v_lshlrev_b32 v54, 16, v49"); a("v_and_b32 v55, 0xffff0000, v49")
    a("v_lshlrev_b32 v56, 16, v50"); a("v_and_b32 v57, 0xffff0000, v50"); a("v_lshlrev_b32 v58, 16, v51"); a("v_and_b32 v59, 0xffff0000, v51")
    a("s_mov_b32 s30, 0")
    a("s_sleep 4")
    Lp, Lg = a.newlabel("Wp"), a.newlabel("Wg")
    a.label(Lp)
    a(f"buffer_load_dwordx4 {vr(RD+8,4)}, v{VP}, {sr(S_FL,4)}, s26 offen sc1")
    a("s_waitcnt vmcnt(0)")
    a(f"v_max3_u32 v15, v{RD+8}, v{RD+9}, v{RD+10}"); a(f"v_max_u32 v15, v15, v{RD+11}")
    a("v_cmp_eq_u32 vcc, -1, v15")
    a(f"s_cbranch_vccz {Lg}")
    poll_tail(a, Lp, END)
    a.label(Lg)
    xstamp(a, 4)
    for k in (0, 2): a(f"v_pk_add_f32 {vr(RD+k,2)}, {vr(RD+k,2)}, {vr(RD+8+k,2)}")
    def rnd():
        a(f"v_cvt_pk_bf16_f32 v{RD+4}, v{RD}, v{RD+1}"); a(f"v_cvt_pk_bf16_f32 v{RD+5}, v{RD+2}, v{RD+3}")
    def unp():
        a(f"v_lshlrev_b32 v{RD}, 16, v{RD+4}"); a(f"v_and_b32 v{RD+1}, 0xffff0000, v{RD+4}")
        a(f"v_lshlrev_b32 v{RD+2}, 16, v{RD+5}"); a(f"v_and_b32 v{RD+3}, 0xffff0000, v{RD+5}")
    rnd(); unp()
    a(f"v_pk_add_f32 {vr(RD,2)}, {vr(RD,2)}, v[52:53]"); a(f"v_pk_add_f32 {vr(RD+2,2)}, {vr(RD+2,2)}, v[54:55]")
    rnd(); unp()
    a(f"v_pk_add_f32 {vr(RD,2)}, {vr(RD,2)}, v[56:57]"); a(f"v_pk_add_f32 {vr(RD+2,2)}, {vr(RD+2,2)}, v[58:59]")
    rnd()
    a(f"buffer_store_dwordx2 {vr(RD+4,2)}, v{VO}, s[84:87], s33 offen")
    a("s_add_u32 s38, s38, 1"); a("s_cmp_lt_u32 s38, 64"); a("s_cbranch_scc1 L_WORseg")

NINIT = 160
def wait_init(a, abort):
    load_srd(a, 20, 64, 0, 256)
    Lp, Lg = a.newlabel("Ip"), a.newlabel("Ig")
    a("s_mov_b32 s30, 0"); a("s_mov_b32 s24, 32")
    a.label(Lp)
    a("buffer_load_dword v14, off, s[20:23], s24 sc1")
    a("s_waitcnt vmcnt(0)")
    a(f"v_cmp_ne_u32 vcc, {NINIT}, v14" if NINIT <= 64 else f"v_cmp_ne_u32 vcc, {NINIT:#x}, v14")
    a(f"s_cbranch_vccz {Lg}")
    a("s_sleep 4")
    poll_tail(a, Lp, abort)
    a.label(Lg)

def worker_init(a, abort):
    L = V_LANE
    load_srd(a, 8, 40, 0, S*DM*2)
    load_srd(a, 12, 66, XN_OFF, S*XN_STR)
    a(f"v_lshlrev_b32 v2, 4, v{L}")
    a(f"s_lshl_b32 s16, s101, 2"); a(f"s_add_u32 s16, s16, s{S_WAVE}")
    for k in range(4):
        a(f"s_add_u32 s17, s16, {640*k}"); a("s_lshl_b32 s17, s17, 11")
        a(f"buffer_load_dwordx4 {vr(64+8*k,4)}, v2, s[8:11], s17 offen")
        a(f"buffer_load_dwordx4 {vr(68+8*k,4)}, v2, s[8:11], s17 offen offset:1024")
    for k in range(4):
        if k == 3:
            a("s_cmp_ge_u32 s16, 2048"); a("s_cbranch_scc1 L_lnend")
        emit_ln_row(a, 8, 12, 16, 2, "sc1", preloaded=64+8*k, vm=6-2*k+2*k if False else (6 if k == 0 else 6))
        a("s_add_u32 s16, s16, 640")
    a.label("L_lnend")
    NP = (CH_END - CH_BASE)//65536 - 1
    Lm, Le = a.newlabel("In"), a.newlabel("In")
    a(f"s_cmp_ge_u32 s101, 96"); a(f"s_cbranch_scc1 {Lm}")
    a(f"s_cmp_gt_u32 s101, {NP}"); a(f"s_cbranch_scc1 {Le}")
    a(f"s_cmp_ge_u32 s101, {NCOPY*16}"); a("s_addc_u32 s16, s101, 0")
    a("s_lshl_b32 s16, s16, 16"); a(f"s_add_u32 s16, s16, {CH_BASE}")
    a(f"s_cmp_eq_u32 s101, {NP}"); a(f"s_cselect_b32 s16, {FLAGS}, s16"); a("s_cselect_b32 s17, 0, -1")
    for i in range(4): a(f"v_mov_b32 v{4+i}, s17")
    a(f"s_lshl_b32 s17, s{S_WAVE}, 10"); a("v_add_u32 v3, s17, v2")
    for i in range(16):
        a(f"buffer_store_dwordx4 v[4:7], v3, {sr(S_FL,4)}, s16 offen sc1")
        if i < 15: a("s_add_u32 s16, s16, 4096")
    a(f"s_branch {Le}")
    a.label(Lm)
    load_srd(a, 8, 42, 0, 8*DM*2)
    a("s_sub_u32 s16, s101, 96"); a("s_and_b32 s17, s16, 15"); a("s_lshl_b32 s17, s17, 7")
    a(f"v_bfe_u32 v4, v{L}, 2, 3"); a("v_lshlrev_b32 v4, 11, v4")
    a(f"s_lshl_b32 s18, s{S_WAVE}, 5"); a("s_add_u32 s17, s17, s18")
    a(f"v_and_b32 v5, 3, v{L}"); a("v_lshl_add_u32 v4, v5, 3, v4")
    a(f"v_lshrrev_b32 v5, 5, v{L}"); a("v_lshl_add_u32 v4, v5, 2, v4")
    a("buffer_load_dword v6, v4, s[8:11], s17 offen")
    a(f"v_lshlrev_b32 v5, 2, v{L}"); a("s_lshl_b32 s16, s16, 10"); a(f"s_lshl_b32 s18, s{S_WAVE}, 8"); a("s_add_u32 s16, s16, s18"); a(f"s_add_u32 s16, s16, {CH_MEM}")
    a("s_waitcnt vmcnt(0)")
    a(f"buffer_store_dword v6, v5, {sr(S_FL,4)}, s16 offen sc1")
    a.label(Le)
    load_srd(a, 20, 64, 0, 256)
    a("s_mov_b32 s24, 32")
    a("s_waitcnt vmcnt(0)")
    a("s_barrier")
    Lw = a.newlabel("In")
    a(f"s_cmp_lg_u32 s{S_WAVE}, 0"); a(f"s_cbranch_scc1 {Lw}")
    signal(a, 24, 1, 20)
    wait_init(a, abort)
    a.label(Lw)
    a("s_barrier")

def emit_mega(a, name, force_slow=False):
    END = "L_end"
    Q1 = q1_list(); NQ1 = 8*sum(x[3] for x in Q1)
    kernel_header(a, name)
    a(f"s_cmp_ge_u32 s2, 256"); a(f"s_cbranch_scc1 {END}")
    load_ptrs(a)
    a("v_lshrrev_b32 v2, 6, v0")
    a(f"v_and_b32 v{V_LANE}, 63, v0")
    a(f"v_readfirstlane_b32 s{S_WAVE}, v2")
    a("s_waitcnt lgkmcnt(0)")
    load_srd(a, S_WS, 66, 0, WS_SIZE)
    assign_roles(a, END, LDS_SCR)
    a(f"s_mov_b32 s35, s{chain.S_MODE}")
    if force_slow: a(f"s_mov_b32 s{chain.S_MODE}, 1")
    a(f"s_mov_b32 s{S_PH}, 0")
    a(f"s_sub_u32 s{S_B}, s31, 4"); a("s_cmp_lt_u32 s31, 4"); a(f"s_cselect_b32 s{S_B}, 5, s{S_B}")
    a(f"s_cmp_lt_u32 s{S_B}, 3"); a(f"s_cselect_b32 s{S_PH}, 1, 0")
    Lf = a.newlabel("Cl")
    a(f"s_cmp_eq_u32 s{chain.S_MODE}, 0"); a(f"s_cbranch_scc1 {Lf}")
    a(f"s_mov_b32 s{S_PH}, 0"); a("s_cmp_lt_u32 s33, 128"); a(f"s_cselect_b32 s{S_B}, 5, 4")
    a.label(Lf)
    a(f"s_and_b32 s{S_CTR}, s{S_B}, 3"); a(f"s_lshl_b32 s{S_CTR}, s{S_CTR}, 7"); a(f"s_add_u32 s{S_CTR}, s{S_CTR}, {FL_Q1L}")
    a("s_mov_b32 s100, 0")
    a("s_lshl_b32 s101, s31, 3"); a("s_add_u32 s101, s101, s32"); a("s_sub_u32 s101, s101, 24")
    a("s_lshl_b32 s20, s31, 5"); a("s_add_u32 s20, s20, s32"); a("s_sub_u32 s20, s20, 96")
    a("s_cmp_ge_u32 s31, 4"); a("s_cselect_b32 s101, s20, s101")
    a("s_sub_u32 s20, s33, 96"); a("s_cmp_lg_u32 s35, 0"); a("s_cselect_b32 s101, s20, s101")
    a("s_cmp_eq_u32 s29, 0"); a(f"s_cbranch_scc1 L_worker0")
    a("s_setprio 3")
    a(f"s_cmp_ge_u32 s{chain.S_R}, 8"); a(f"s_cbranch_scc1 L_vr")
    def kv_wait(a):
        Ls, Lp = a.newlabel("Kw"), a.newlabel("Kp")
        a(f"s_and_b32 s20, s{chain.S_STEP}, 7"); a(f"s_cbranch_scc1 {Ls}")
        a(f"s_lshl_b32 s20, s{chain.S_STEP}, 7"); a("s_lshr_b32 s21, s26, 1"); a("s_lshl_b32 s21, s21, 6"); a("s_add_u32 s20, s20, s21")
        a(f"s_add_u32 s20, s20, {FL_QKV}"); a("s_mov_b32 s30, 0")
        a.label(Lp)
        a(f"buffer_load_dword v15, off, {sr(S_WS,4)}, s20 sc1")
        a("s_waitcnt vmcnt(0)")
        a("v_and_b32 v15, 0xffff, v15")
        a("v_cmp_ne_u32 vcc, 0x404, v15")
        a(f"s_cbranch_vccz {Ls}")
        a("s_sleep 4")
        poll_tail(a, Lp, END)
        a.label(Ls)
    def step_addr(delta):
        a(f"s_lshl_b32 s20, s{chain.S_STEP}, 2"); a(f"s_add_u32 s20, s20, s{chain.S_X}"); a("s_lshl_b32 s20, s20, 7")
        a(f"s_add_u32 s20, s20, {FL_STEP + delta*512}")
    def step_done(a, kind):
        L = a.newlabel("Sd")
        if kind in ("A", "Alast"):
            a("s_waitcnt vmcnt(0)"); a("s_barrier")
            a(f"s_cmp_lg_u32 s{S_WAVE}, 0"); a(f"s_cbranch_scc1 {L}")
            step_addr(0); signal(a, 20, 1, S_WS, 60)
        elif kind == "V3":
            step_addr(0); signal(a, 20, 1, S_WS, 60)
        elif kind == "Vlast":
            a("s_waitcnt vmcnt(0)"); a("s_barrier")
            a(f"s_cmp_lg_u32 s{S_WAVE}, 0"); a(f"s_cbranch_scc1 {L}")
            step_addr(0); signal(a, 20, 1, S_WS, 60)
        a.label(L)
    chain.INIT_WAIT = lambda a: wait_init(a, END)
    role_A(a, END, kv_wait, step_done)
    a("s_branch L_retire")
    a.label("L_vr")
    role_VR(a, END, step_done)
    a.label("L_retire")
    a("s_setprio 0")
    a(f"s_mov_b32 s{S_PH}, 2")
    load_ptrs(a)
    a(f"v_mbcnt_lo_u32_b32 v{V_LANE}, -1, 0"); a(f"v_mbcnt_hi_u32_b32 v{V_LANE}, -1, v{V_LANE}")
    a("s_waitcnt vmcnt(0) lgkmcnt(0)")
    a("s_barrier")
    load_srd(a, S_FL, 66, 0, WS_SIZE)
    a("s_branch L_worker")
    a.label("L_worker0")
    load_srd(a, S_FL, 66, 0, WS_SIZE)
    worker_init(a, END)
    a.label("L_worker")
    a(f"s_mov_b32 s{S_PRE}, 0"); a(f"s_mov_b32 s{S_PVAL}, 0")
    def q1_index():
        L = a.newlabel("N")
        a(f"s_cmp_eq_u32 s{S_B}, 4"); a(f"s_cbranch_scc1 {L}")
        a("s_lshr_b32 s22, s25, 5"); a("s_and_b32 s25, s25, 31"); a("s_lshl_b32 s22, s22, 2"); a(f"s_add_u32 s22, s22, s{S_B}")
        a("s_lshl_b32 s22, s22, 5"); a("s_add_u32 s25, s25, s22")
        a.label(L)
    def publish_item():
        a("v_mov_b32 v14, s25"); a(f"v_mov_b32 v15, {LDS_SCR}")
        a("ds_write_b32 v15, v14")
    def flush():
        L, L2 = a.newlabel("Fl"), a.newlabel("Fl")
        a(f"s_cmp_eq_u32 s{S_PVAL}, 0"); a(f"s_cbranch_scc1 {L}")
        finish(a, S_POFF, f"s{S_PVAL}")
        a(f"s_mov_b32 s{S_PVAL}, 0")
        a.label(L)
    def hook_first():
        L = a.newlabel("Hf")
        a(f"s_cmp_eq_u32 s{S_PVAL}, 0"); a(f"s_cbranch_scc1 {L}")
        a(f"s_mov_b32 s21, s{S_PVAL}"); a(f"s_mov_b32 s{S_PVAL}, 0")
        a(f"s_cmp_lg_u32 s{S_WAVE}, 0"); a(f"s_cbranch_scc1 {L}")
        signal(a, S_POFF, "s21", vtmp=14)
        a.label(L)
    def hook_tail():
        L = a.newlabel("Ht")
        a(f"s_cmp_lg_u32 s{S_WAVE}, 0"); a(f"s_cbranch_scc1 {L}")
        a("v_mov_b32 v14, 1")
        a("s_mov_b64 exec, 1")
        a(f"buffer_atomic_add v14, off, {sr(S_FL,4)}, s{S_CTR} sc0 sc1")
        a("s_mov_b64 exec, -1")
        a.label(L)
    def after_main():
        L = a.newlabel("Am")
        wstamp(a, 2)
        a(f"s_cmp_lg_u32 s{S_WAVE}, 0"); a(f"s_cbranch_scc1 {L}")
        a("s_waitcnt vmcnt(0)")
        a("v_readfirstlane_b32 s25, v14")
        a("s_nop 3")
        q1_index()
        a(f"s_cmp_lt_u32 s25, {NQ1}"); a(f"s_cselect_b32 s{S_PRE}, 1, 0"); a(f"s_cselect_b32 s{S_PH}, 1, 2")
        publish_item()
        a.label(L)
    HK = dict(hook_first=hook_first, hook_tail=hook_tail)
    a.label("L_next")
    wstamp(a, 0)
    Lb, Lpub, L1, L2 = [a.newlabel("N") for _ in range(4)]
    a(f"s_cmp_lg_u32 s{S_WAVE}, 0"); a(f"s_cbranch_scc1 {Lb}")
    a(f"s_cmp_lg_u32 s{S_PRE}, 0"); a(f"s_mov_b32 s{S_PRE}, 0"); a(f"s_cbranch_scc1 {Lb}")
    a(f"s_cmp_eq_u32 s{S_PH}, 1"); a(f"s_cbranch_scc1 {L1}")
    a(f"s_cmp_eq_u32 s{S_PH}, 2"); a(f"s_cbranch_scc1 {L2}")
    a(f"s_mov_b32 s20, {FL_Q1G}")
    atomic_ret(a, 4, 20, 1)
    a("v_readfirstlane_b32 s25, v4")
    a(f"s_cmp_eq_u32 s{S_B}, 5"); a(f"s_cselect_b32 s{S_PH}, 2, 1")
    a("s_nop 1")
    a("s_add_u32 s25, s25, 0x2000")
    a("s_cmp_lt_u32 s25, 0x2040"); a(f"s_cbranch_scc1 {Lpub}")
    a(f"s_cmp_eq_u32 s{S_PH}, 2"); a(f"s_cbranch_scc1 {L2}")
    a.label(L1)
    atomic_ret(a, 4, S_CTR, 1)
    a("v_readfirstlane_b32 s25, v4")
    a("s_nop 3")
    q1_index()
    a(f"s_cmp_lt_u32 s25, {NQ1}"); a(f"s_cbranch_scc1 {Lpub}")
    a(f"s_mov_b32 s{S_PH}, 2")
    a.label(L2)
    a(f"s_mov_b32 s20, {FL_Q2G}")
    atomic_ret(a, 4, 20, 1)
    a("v_readfirstlane_b32 s25, v4")
    a("s_nop 3")
    a("s_min_u32 s25, s25, 0xfff"); a("s_add_u32 s25, s25, 0x1000")
    a.label(Lpub)
    publish_item()
    a.label(Lb)
    a("s_waitcnt lgkmcnt(0)")
    a("s_barrier")
    a(f"v_mov_b32 v5, {LDS_SCR}")
    a("ds_read_b32 v4, v5")
    a("s_waitcnt lgkmcnt(0)")
    a(f"v_readfirstlane_b32 s{S_ITEM}, v4")
    a("s_nop 3")
    a(f"s_cmp_ge_u32 s{S_ITEM}, 0x2000"); a(f"s_cbranch_scc1 L_KS")
    a(f"s_cmp_ge_u32 s{S_ITEM}, 0x1000"); a(f"s_cbranch_scc1 L_qa")
    a(f"s_lshr_b32 s20, s{S_ITEM}, 3"); a(f"s_and_b32 s21, s{S_ITEM}, 7")
    base = 0
    for typ, p, c0, n in Q1:
        Ln = a.newlabel("D")
        a(f"s_cmp_ge_u32 s20, {base+n}"); a(f"s_cbranch_scc1 {Ln}")
        a(f"s_sub_u32 s20, s20, {base-c0}") if base >= c0 else a(f"s_add_u32 s20, s20, {c0-base}")
        if typ in ("DN", "W2", "W1"): a("s_mov_b32 s36, s20"); a("s_mov_b32 s37, s21")
        elif typ == "WR": a("s_lshl_b32 s37, s20, 3"); a("s_add_u32 s37, s37, s21")
        elif typ == "QA": pass
        elif typ == "K1":
            a("s_and_b32 s38, s20, 1"); a("s_add_u32 s38, s38, 1"); a("s_lshr_b32 s37, s20, 1"); a("s_lshl_b32 s37, s37, 3")
            a("s_add_u32 s37, s37, s21"); a("s_mov_b32 s36, 1")
        else:
            a(f"s_mov_b32 s36, {2*p}")
            if typ == "KV": a("s_and_b32 s38, s20, 1"); a("s_add_u32 s38, s38, 1"); a("s_lshr_b32 s20, s20, 1")
            if typ == "Q": a("s_mov_b32 s38, 0")
        a(f"s_branch L_{dict(KV='QKV', Q='QKV', K1='QKV2').get(typ, typ)}")
        a.label(Ln)
        base += n
    a(f"s_branch {END}")
    a.label("L_QA")
    a(f"s_cmp_eq_u32 s{S_B}, 4"); a(f"s_cselect_b32 s{S_PH}, 1, 2")
    a("s_barrier")
    a("s_branch L_next")
    def coords():
        a("s_and_b32 s22, s21, 1"); a("s_add_u32 s36, s36, s22")
        a("s_lshr_b32 s21, s21, 1"); a("s_lshl_b32 s37, s20, 2"); a("s_add_u32 s37, s37, s21")
    def done():
        if PROFW:
            wstamp(a, 3)
            a("s_waitcnt lgkmcnt(0)")
            for i in range(4): a(f"v_writelane_b32 v4, s{70+2*i}, {i}")
            a(f"v_writelane_b32 v4, s{S_ITEM}, 4"); a(f"v_writelane_b32 v4, s{S_B}, 5")
            for i in range(5): a(f"v_writelane_b32 v4, s{[4,6,52,54,82][i]}, {8+i}")
            a("s_lshl_b32 s20, s2, 5"); a("s_add_u32 s20, s20, s100"); a("s_lshl_b32 s20, s20, 6"); a(f"s_add_u32 s20, s20, {TSW_OFF}")
            a(f"v_lshlrev_b32 v5, 2, v{V_LANE}")
            a("s_mov_b64 exec, 0xffff")
            a(f"buffer_store_dword v4, v5, {sr(S_FL,4)}, s20 offen")
            a("s_mov_b64 exec, -1")
            a("s_add_u32 s100, s100, 1"); a("s_min_u32 s100, s100, 31")
        a("s_branch L_next")
    a.label("L_QKV")
    coords()
    a.label("L_QKV2")
    wstamp(a, 1)
    load_srd(a, S_SRDX, 66, XN_OFF, S*XN_STR)
    a("s_cmp_eq_u32 s38, 1"); a("s_cselect_b32 s34, s46, s44"); a("s_cselect_b32 s35, s47, s45")
    a("s_cmp_eq_u32 s38, 2"); a("s_cselect_b32 s34, s48, s34"); a("s_cselect_b32 s35, s49, s35")
    load_srd(a, S_SRDW, 34, 0, DM*4096*2)
    gq = Gemm(a, "qk", 4, 4, 2, XN_STR, 8192, "head", xflags="sc1")
    gv = Gemm(a, "v", 4, 4, 2, XN_STR, 8192, "head", swap=True, xflags="sc1")
    gq.setup()
    a(f"s_mul_i32 s{S_OFFX}, s36, {256*XN_STR}"); a(f"s_lshl_b32 s{S_OFFW}, s37, 9")
    a("s_lshl_b32 s32, s36, 21"); a("s_lshl_b32 s33, s37, 14"); a("s_add_u32 s32, s32, s33")
    a("s_lshl_b32 s33, s38, 24"); a("s_add_u32 s32, s32, s33"); a(f"s_add_u32 s32, s32, {Q_OFF}")
    assert K_OFF == Q_OFF + 16*MB and VT_OFF == Q_OFF + 32*MB
    gq.prologue_dma()
    a("s_cmp_eq_u32 s38, 2"); a("s_cbranch_scc1 L_V")
    gq.main(16, dma_issued=True, **HK)
    after_main()
    gq.epi_qk(S_FL, 32, "sc1")
    a("s_branch L_QKVfin")
    a.label("L_V")
    gv.main(16, dma_issued=True, **HK)
    after_main()
    gv.epi_v(S_FL, 32, "sc1")
    a.label("L_QKVfin")
    a("s_lshl_b32 s32, s36, 10"); a("s_lshl_b32 s33, s37, 6"); a("s_add_u32 s32, s32, s33"); a(f"s_add_u32 s32, s32, {FL_QKV}")
    a("s_add_u32 s33, s38, 2"); a("s_cmp_ge_u32 s33, 3"); a("s_cselect_b32 s34, 3, 0"); a("s_sub_u32 s33, s33, s34")
    a("s_lshl_b32 s33, s33, 3"); a(f"s_lshl_b32 s{S_PVAL}, 4, s33"); a(f"s_mov_b32 s{S_POFF}, s32")
    done()
    a.label("L_KS")
    a(f"s_and_b32 s36, s{S_ITEM}, 1"); a(f"s_bfe_u32 s38, s{S_ITEM}, {1 | (1 << 16):#x}"); a("s_add_u32 s38, s38, 1")
    a(f"s_bfe_u32 s37, s{S_ITEM}, {2 | (4 << 16):#x}")
    wstamp(a, 1)
    load_srd(a, S_SRDX, 66, XN_OFF, S*XN_STR)
    a("s_cmp_eq_u32 s38, 2"); a("s_cselect_b32 s34, s48, s46"); a("s_cselect_b32 s35, s49, s47")
    load_srd(a, S_SRDW, 34, 0, DM*4096*2)
    gq = Gemm(a, "ks", 2, 4, 3, XN_STR, 8192, "head", xflags="sc1")
    gv = Gemm(a, "vs", 2, 4, 3, XN_STR, 8192, "head", swap=True, xflags="sc1")
    gq.setup()
    a(f"s_mul_i32 s{S_OFFX}, s36, {128*XN_STR}"); a(f"s_lshl_b32 s{S_OFFW}, s37, 9")
    a("s_lshl_b32 s32, s36, 20"); a("s_lshl_b32 s33, s37, 14"); a("s_add_u32 s32, s32, s33")
    a("s_lshl_b32 s33, s38, 24"); a("s_add_u32 s32, s32, s33"); a(f"s_add_u32 s32, s32, {Q_OFF}")
    gq.prologue_dma()
    a("s_cmp_eq_u32 s38, 2"); a("s_cbranch_scc1 L_VS")
    gq.main(16, dma_issued=True)
    wstamp(a, 2)
    gq.epi_qk(S_FL, 32, "sc1")
    a("s_branch L_KSfin")
    a.label("L_VS")
    gv.main(16, dma_issued=True)
    wstamp(a, 2)
    gv.epi_v(S_FL, 32, "sc1")
    a.label("L_KSfin")
    a("s_lshl_b32 s32, s37, 6"); a(f"s_add_u32 s32, s32, {FL_QKV}")
    a("s_sub_u32 s33, s38, 1"); a("s_lshl_b32 s33, s33, 3"); a("s_lshl_b32 s33, 2, s33")
    finish(a, 32, "s33")
    done()
    a.label("L_GU")
    coords()
    wstamp(a, 1)
    g = Gemm(a, "gu", 4, 4, 2, XN_STR, DF*2, "gu", xflags="sc1")
    load_srd(a, S_SRDX, 66, XN_OFF, S*XN_STR)
    a(f"s_cmp_ge_u32 s{S_WAVE}, 2"); a("s_cselect_b32 s34, s58, s56"); a("s_cselect_b32 s35, s59, s57")
    load_srd(a, S_SRDW, 34, 0, DM*DF*2)
    g.setup()
    a(f"s_mul_i32 s{S_OFFX}, s36, {256*XN_STR}"); a(f"s_lshl_b32 s{S_OFFW}, s37, 8")
    g.main(16, **HK)
    after_main()
    a(f"s_mul_i32 s32, s36, {256*H_STR}"); a("s_lshl_b32 s33, s37, 10"); a("s_add_u32 s32, s32, s33"); a(f"s_add_u32 s32, s32, {H_OFF}")
    g.epi_gu(S_FL, 32, "sc1")
    a(f"s_lshl_b32 s{S_POFF}, s36, 7"); a(f"s_add_u32 s{S_POFF}, s{S_POFF}, {FL_GU}"); a(f"s_mov_b32 s{S_PVAL}, 1")
    done()
    a.label("L_DN")
    flush()
    a("s_lshl_b32 s32, s36, 7"); a(f"s_add_u32 s32, s32, {FL_GU}")
    wait_flags(a, lambda: a("v_mov_b32 v5, 0"), 32, 0xffffffff, 28, END, 1)
    wstamp(a, 1)
    g = Gemm(a, "dn", 4, 2, 3, H_STR, 2048, "plain", xflags="sc1", xr4=True)
    load_srd(a, S_SRDX, 66, H_OFF, S*H_STR)
    load_srd(a, S_SRDW, 60, 0, DF*DM*2)
    g.setup()
    a(f"s_mul_i32 s{S_OFFX}, s36, {256*H_STR}"); a(f"s_lshl_b32 s{S_OFFW}, s37, 8")
    g.main(56, hook_tail=hook_tail)
    after_main()
    load_srd(a, 28, 66, BP_OFF, S*DM*2)
    a("s_lshl_b32 s32, s36, 19"); a("s_lshl_b32 s33, s37, 8")
    g.epi_plain(28, 32, 33, "sc1")
    a("s_lshl_b32 s32, s36, 3"); a("s_add_u32 s32, s32, s37"); a("s_lshl_b32 s32, s32, 6"); a(f"s_add_u32 s{S_POFF}, s32, {FL_DN}")
    a(f"s_mov_b32 s{S_PVAL}, 1")
    done()
    for nm, MT, NST in (("W2", 4, 3), ("W1", 2, 4)):
        a.label(f"L_{nm}")
        flush()
        sh = 0 if MT == 4 else 1
        a(f"s_lshl_b32 s32, s36, {8-sh}"); a(f"s_add_u32 s32, s32, {FL_AT}")
        if MT == 4: wait_flags(a, lambda: (a(f"v_and_b32 v5, 1, v{V_LANE}"), a("v_lshlrev_b32 v5, 7, v5")), 32, 0xffffffff, 128, END, 2)
        else: wait_flags(a, lambda: a("v_mov_b32 v5, 0"), 32, 0xffffffff, 128, END, 1)
        wstamp(a, 1)
        g = Gemm(a, nm, MT, 2, NST, OA_STR, 2048, "plain", xflags="sc1", xr4=True, wperm=True)
        load_srd(a, S_SRDX, 66, OA_OFF, S*OA_STR)
        load_srd(a, S_SRDW, 50, 0, 4096*DM*2)
        g.setup()
        a(f"s_mul_i32 s{S_OFFX}, s36, {64*MT*OA_STR}"); a(f"s_lshl_b32 s{S_OFFW}, s37, 8")
        g.main(64, hook_tail=hook_tail)
        after_main()
        a(f"s_lshr_b32 s32, s36, {sh}"); a("s_lshl_b32 s32, s32, 3"); a("s_add_u32 s32, s32, s37"); a("s_lshl_b32 s32, s32, 6"); a(f"s_add_u32 s32, s32, {FL_DN}")
        wait_flags(a, lambda: a("v_mov_b32 v5, 0"), 32, 0xffffffff, 1, END, 1)
        load_srd(a, 28, 62, 0, S*DM*2)
        load_srd(a, S_SRDX, 40, 0, S*DM*2)
        load_srd(a, S_SRDW, 66, BP_OFF, S*DM*2)
        a(f"s_lshl_b32 s32, s36, {19-sh}"); a("s_lshl_b32 s33, s37, 8")
        g.epi_plain(28, 32, 33, "", final=(S_SRDX, S_SRDW, "sc1"))
        done()
    a.label("L_WR")
    flush()
    wor_item(a, END)
    done()
    a.label("L_qa")
    flush()
    a(f"s_sub_u32 s20, s{S_ITEM}, 0x1000")
    a(f"s_cmp_ge_u32 s20, {NQA}"); a(f"s_cbranch_scc1 {END}")
    a(f"s_cmp_ge_u32 s20, {NBLK*16}"); a("s_cbranch_scc1 L_AT4")
    def attention(npair):
        sh = 0 if npair == 2 else 1
        a("s_lshr_b32 s32, s38, 3"); a("s_lshl_b32 s32, s32, 10"); a(f"s_lshr_b32 s34, s37, {sh}"); a("s_lshl_b32 s33, s34, 8")
        a("s_add_u32 s32, s32, s33"); a(f"s_add_u32 s32, s32, {FL_QKV}")
        wait_flags(a, lambda: (a(f"v_and_b32 v5, 3, v{V_LANE}"), a("v_lshlrev_b32 v5, 6, v5")), 32, 0xffffffff, 0x40404, END, 4)
        a("s_lshl_b32 s32, s38, 2"); a("s_add_u32 s32, s32, s34"); a("s_lshl_b32 s32, s32, 7"); a(f"s_add_u32 s32, s32, {FL_STEP}")
        def w():
            wait_flags(a, lambda: a("v_mov_b32 v15, 0"), 32, 0xffffffff, 24, END, 1, 14, 15, 2)
            if PROFW: a("s_memrealtime s[84:85]")
        att_item(a, S_FL, 38, 37, "sc1", "sc1", npair, w, late=(npair == 1))
        if PROFW: a("s_waitcnt lgkmcnt(0)"); a("s_mov_b32 s72, s84"); a("s_mov_b32 s74, s84")
        finish(a, 36, 4*npair)
        done()
    a("s_lshr_b32 s38, s20, 2"); a("s_and_b32 s37, s20, 3")
    a("s_lshr_b32 s36, s20, 4"); a("s_lshl_b32 s36, s36, 7"); a(f"s_add_u32 s36, s36, {FL_AT}")
    attention(2)
    a.label("L_AT4")
    a(f"s_sub_u32 s20, s20, {NBLK*16}"); a("s_lshr_b32 s38, s20, 3"); a("s_and_b32 s37, s20, 7")
    a("s_lshl_b32 s36, s38, 7"); a("s_lshr_b32 s21, s37, 2"); a("s_lshl_b32 s21, s21, 6"); a("s_add_u32 s36, s36, s21")
    a(f"s_add_u32 s36, s36, {FL_ATS}"); a(f"s_add_u32 s38, s38, {4*NBLK}")
    attention(1)
    a.label(END)
    a("s_endpgm")

def build(path, prof=False, profw=False, force_slow=False, header=""):
    global PROFW
    chain.PROF = prof; PROFW = profw
    a = Asm()
    if header: a.raw(header)
    a.raw("; @launch grid=(256,1,1) block=(256,1,1) lds=163840")
    a.raw('.amdgcn_target "amdgcn-amd-amdhsa--gfx950"')
    a.raw(".text")
    emit_mega(a, MAIN, force_slow)
    a.raw('.section .rodata,"a"')
    kernel_desc(a, MAIN, 512, 256)
    open(path, "w").write(a.text())

if __name__ == "__main__":
    build("parallel_sum__memory_aug_recurrent_mem_tr__glu_gated_geglu__prompt.s", header=open("header.txt").read())
    build("m1.s")
    build("m1_prof.s", prof=True, profw=True)
    build("m1_slow.s", force_slow=True)
    chain.FORCE_FALLBACK = True
    build("m1_fb.s")
```

```python
from common import *
from gemm import V_LANE, S_WAVE
import math
S_WS = 8; S_WT = 12; S_X = 16; S_R = 17; S_MODE = 18; S_STEP = 19
CEXP = (DH**-0.5)*math.log2(math.e)
PROF = False
NSTEP = 64
INIT_WAIT = None
FORCE_FALLBACK = False
STAMP = None
NPOLL = 4
NFLY = 3
WIN = 4
PER = 2
GBAR = True
GATE = 'all'
XSLEEP = 6
XGAP = 4
XAHEAD = 2

def ts(a, i):
    if PROF: a(f"s_memtime s[{70+2*i}:{71+2*i}]")
def rts(a, i):
    if PROF: a(f"s_memrealtime s[{90+2*i}:{91+2*i}]")
def ts_store(a, role_id_sreg, tmpv):
    if not PROF: return
    a("s_waitcnt lgkmcnt(0)")
    for i in range(10): a(f"v_writelane_b32 v{tmpv}, s{70+2*i}, {i}")
    a(f"v_writelane_b32 v{tmpv}, s90, 10"); a(f"v_writelane_b32 v{tmpv}, s92, 11")
    a(f"v_writelane_b32 v{tmpv}, s30, 12")
    a(f"s_lshl_b32 s20, s{role_id_sreg}, 6"); a(f"s_add_u32 s20, s20, s{S_STEP}"); a("s_lshl_b32 s20, s20, 2")
    a(f"s_add_u32 s20, s20, s{S_WAVE}"); a("s_lshl_b32 s20, s20, 6"); a(f"s_add_u32 s20, s20, {TS2_OFF}")
    a(f"v_mbcnt_lo_u32_b32 v{tmpv+1}, -1, 0"); a(f"v_lshlrev_b32 v{tmpv+1}, 2, v{tmpv+1}")
    a("s_mov_b64 exec, 0xffff")
    a(f"buffer_store_dword v{tmpv}, v{tmpv+1}, {sr(S_WS,4)}, s20 offen")
    a("s_mov_b64 exec, -1")

def local_store(a, instr):
    L1, L2 = a.newlabel("ls"), a.newlabel("ls")
    a(f"s_cmp_lg_u32 s{S_MODE}, 0")
    a(f"s_cbranch_scc1 {L1}")
    a(instr)
    a(f"s_branch {L2}")
    a.label(L1)
    a(instr + " sc1")
    a.label(L2)

def poll_tail(a, Lretry, abort):
    a("s_add_u32 s30, s30, 1")
    a(f"s_cmp_lt_u32 s30, {POLL_MAX}")
    a(f"s_cbranch_scc1 {Lretry}")
    a(f"s_branch {abort}")

def idx_reg(a, v):
    a(f"v_bfe_u32 v{v}, v{V_LANE}, 3, 1")
    a(f"v_mov_b32 v15, 0x44444444")
    a(f"v_mul_u32_u24 v{v}, 0xaaaa, v{v}")
    a(f"v_lshl_or_b32 v{v}, v{v}, 16, v{v}")
    a(f"v_add_u32 v{v}, v15, v{v}")

def tr_base(a, dst, rowbytes, row_expr, chunk_expr):
    pass

A_SC = 128*1024; A_KX = 140*1024; A_VX = 148*1024
def role_A(a, abort, kv_wait=None, step_done=None):
    L = V_LANE; W = S_WAVE
    VK1, VI, VID, VT0, VT1, VKX, VVX, VVM, VO, VKM, VSW, VSR, VSM, VL16, VKA = 15, 3, 24, 6, 7, 8, 9, 10, 11, 12, 13, 14, 0, 2, 1
    PIECE = 32; STG = [96, 104, 16]; ACC = 112
    Wq = lambda ks, t: ar((ks*2+t)*8, 8)
    Wk0 = lambda ks: vr(128+ks*8, 8)
    head = 21
    a(f"s_lshl_b32 s26, s{S_X}, 3"); a(f"s_add_u32 s26, s26, s{S_R}")
    a(f"v_lshrrev_b32 v2, 4, v{L}"); a(f"v_and_b32 v3, 15, v{L}")
    a("v_lshlrev_b32 v4, 1, v2"); a("v_xor_b32 v3, v3, v4")
    a(f"s_lshl_b32 s20, s{W}, 4"); a("v_add_u32 v2, s20, v2"); a("v_lshlrev_b32 v2, 13, v2")
    a("v_lshlrev_b32 v3, 4, v3")
    for j in range(4):
        if j >= 2: a(f"v_xor_b32 v4, 128, v3")
        else: a("v_mov_b32 v4, v3")
        a(f"v_add_u32 v4, v2, v4"); a(f"v_add_u32 v{32+j}, {4*j*8192}, v4")
    a(f"v_lshrrev_b32 v2, 3, v{L}"); a(f"v_and_b32 v3, 7, v{L}")
    a(f"v_bfe_u32 v4, v{L}, 4, 1"); a("v_lshlrev_b32 v4, 1, v4"); a("v_xor_b32 v3, v3, v4")
    a("v_add_u32 v2, s20, v2"); a("v_lshlrev_b32 v2, 13, v2")
    a("v_lshlrev_b32 v3, 4, v3")
    a("v_add_u32 v36, v2, v3")
    a("v_xor_b32 v3, 64, v3"); a("v_add_u32 v37, v2, v3"); a(f"v_add_u32 v37, {8*8192}, v37")
    a(f"v_lshrrev_b32 v2, 4, v{L}"); a(f"v_bfe_u32 v3, v{L}, 2, 2")
    a("v_lshl_add_u32 v4, v2, 3, v3")
    a(f"v_and_b32 v5, 3, v{L}"); a("v_lshlrev_b32 v5, 3, v5")
    a("v_and_b32 v2, 1, v2")
    a("v_lshl_or_b32 v15, v2, 2, v3"); a(f"v_xor_b32 v15, s{W}, v15")
    a("v_lshlrev_b32 v15, 5, v15"); a("v_lshl_add_u32 v38, v4, 8, v5"); a("v_add_u32 v39, v38, v15")
    a("v_xor_b32 v15, 128, v15"); a("v_add_u32 v40, v38, v15")
    a("v_lshrrev_b32 v3, 1, v3"); a("v_lshl_or_b32 v15, v2, 1, v3"); a(f"v_xor_b32 v15, s{W}, v15")
    a("v_lshlrev_b32 v15, 5, v15"); a(f"v_lshl_add_u32 v{VT0}, v4, 7, v5"); a(f"v_add_u32 v{VT0}, v{VT0}, v15")
    a(f"v_add_u32 v{VT1}, 65536, v{VT0}")
    load_srd(a, S_WT, 44, 0, DM*4096*2)
    load_srd(a, 28, 46, 0, DM*4096*2)
    a("s_lshl_b32 s22, s26, 8")
    a(f"s_lshl_b32 s23, s{W}, 12"); a(f"s_lshl_b32 s24, s{W}, 11"); a("s_add_u32 s24, s24, 16384")
    SLOT = 24576; NSL = 6
    def issue(ks):
        b = (ks % NSL)*SLOT
        for j in range(4):
            a(f"s_add_u32 m0, s23, {b+1024*j}"); a("s_nop 0")
            a(f"buffer_load_dwordx4 v{32+j}, {sr(S_WT,4)}, s22 offen lds")
        for j in range(2):
            a(f"s_add_u32 m0, s24, {b+1024*j}"); a("s_nop 0")
            a(f"buffer_load_dwordx4 v{36+j}, s[28:31], s22 offen lds")
        a(f"s_add_u32 s22, s22, {64*8192}")
    for ks in range(NSL-1): issue(ks)
    for ks in range(16):
        nxt = ks + NSL - 1
        if nxt < 16: issue(nxt)
        a(f"s_waitcnt vmcnt({6*(min(nxt,15)-ks)})")
        a("s_barrier")
        b = (ks % NSL)*SLOT
        a(f"v_add_u32 v41, {b}, v39"); a(f"v_add_u32 v42, {b}, v40"); a(f"v_add_u32 v43, {b+16384}, v{VT0}")
        for q in range(4):
            ro = 32*(q >> 1) + 4*(q & 1)
            a(f"ds_read_b64_tr_b16 {ar((ks*2)*8+2*q,2)}, v41 offset:{ro*256}")
            a(f"ds_read_b64_tr_b16 {ar((ks*2+1)*8+2*q,2)}, v42 offset:{ro*256}")
            a(f"ds_read_b64_tr_b16 {vr(128+ks*8+2*q,2)}, v43 offset:{ro*128}")
        a("s_waitcnt lgkmcnt(0)")
        a("s_barrier")
    a("s_lshl_b32 s22, s26, 8"); a("s_add_u32 s22, s22, 128")
    a(f"s_lshl_b32 s24, s{W}, 11")
    for ks in range(16):
        for j in range(2):
            a(f"s_add_u32 m0, s24, {ks*8192+1024*j}"); a("s_nop 0")
            a(f"buffer_load_dwordx4 v{36+j}, s[28:31], s22 offen lds")
        a(f"s_add_u32 s22, s22, {64*8192}")
    a(f"v_lshlrev_b32 v{VL16}, 4, v{L}")
    a(f"v_add_u32 v{VK1}, s24, v{VL16}")
    a("s_waitcnt vmcnt(0)")
    a("s_barrier")
    for half in range(2):
        for k8 in range(8):
            for q in range(4):
                a(f"ds_read_b64_tr_b16 {vr(32+k8*8+2*q,2)}, v{VT0+half} offset:{k8*8192+4096*(q>>1)+512*(q&1)}")
        a("s_waitcnt lgkmcnt(0)")
        a("s_barrier")
        for k8 in range(8):
            for q in range(2):
                a(f"ds_write_b128 v{VK1}, {vr(32+k8*8+4*q,4)} offset:{k8*8192+1024*q}")
        a("s_waitcnt lgkmcnt(0)")
        if half == 0: a(f"v_add_u32 v{VK1}, 65536, v{VK1}")
    a(f"v_mov_b32 v{VT1}, v{VK1}"); a(f"v_subrev_u32 v{VT0}, 65536, v{VK1}")
    idx_reg(a, VI)
    a(f"v_and_b32 v32, 15, v{L}"); a(f"v_bfe_u32 v33, v{L}, 4, 1"); a("v_lshlrev_b32 v33, 2, v33"); a("v_sub_u32 v32, v32, v33")
    a("v_mov_b32 v33, 0x3f80"); a("v_mov_b32 v34, 0x3f800000")
    for h in range(4):
        e = 2*(h & 1) + 8*(h >> 1)
        a(f"v_cmp_eq_u32 vcc, {e}, v32"); a("s_nop 1"); a(f"v_cndmask_b32 v{VID+h}, 0, v33, vcc")
        a(f"v_cmp_eq_u32 vcc, {e+1}, v32"); a("s_nop 1"); a(f"v_cndmask_b32 v{VID+h}, v{VID+h}, v34, vcc")
    a(f"s_lshl_b32 s20, s{W}, 8"); a(f"s_lshl_b32 s21, s{W}, 10")
    a(f"v_add_u32 v{VKX}, s21, v{VL16}")
    a(f"v_lshrrev_b32 v34, 4, v{L}"); a(f"v_and_b32 v33, 7, v{L}"); a("v_lshlrev_b32 v33, 4, v33"); a(f"v_lshl_add_u32 v{VKM}, v34, 7, v33")
    a(f"s_lshl_b32 s21, s{W}, 9"); a(f"v_add_u32 v{VKM}, s21, v{VKM}")
    a(f"v_and_b32 v33, 15, v{L}"); a(f"v_lshrrev_b32 v34, 4, v{L}")
    a(f"v_lshlrev_b32 v{VVM}, 4, v33"); a(f"v_lshl_add_u32 v{VVM}, v34, 2, v{VVM}"); a(f"v_add_u32 v{VVM}, s20, v{VVM}")
    a(f"v_lshlrev_b32 v{VO}, 4, v33"); a(f"v_lshl_add_u32 v{VO}, v34, 7, v{VO}")
    a(f"s_lshl_b32 s21, s{W}, 9"); a(f"s_lshl_b32 s22, s{S_R}, 11"); a("s_add_u32 s21, s21, s22"); a(f"v_add_u32 v{VO}, s21, v{VO}")
    a(f"s_mul_i32 s21, s{W}, 3072"); a(f"s_add_u32 s21, s21, {A_SC}"); a(f"v_add_u32 v{VSW}, s21, v{VL16}")
    a(f"v_and_b32 v35, 7, v{L}"); a(f"v_bfe_u32 v36, v{L}, 3, 1")
    a("v_lshl_add_u32 v37, v34, 4, v35"); a("v_lshlrev_b32 v37, 4, v37"); a(f"v_lshl_add_u32 v{VSR}, v36, 10, v37")
    a(f"v_add_u32 v{VSR}, {A_SC}, v{VSR}")
    a("v_lshl_add_u32 v37, v34, 1, v36")
    a("v_lshrrev_b32 v38, 2, v37"); a("v_add_u32 v38, 2, v38"); a("v_lshl_add_u32 v38, v38, 4, v35"); a("v_lshlrev_b32 v38, 4, v38")
    a("v_and_b32 v37, 3, v37"); a(f"v_lshl_add_u32 v{VSM}, v37, 2, v38"); a(f"v_add_u32 v{VSM}, {A_SC+2048}, v{VSM}")
    a(f"s_lshl_b32 s27, s{W}, 11")
    a(f"v_add_u32 v{VKA}, s27, v{VL16}"); a(f"v_add_u32 v{VKA}, {A_KX}, v{VKA}")
    a(f"v_and_b32 v5, 0x30, v{VL16}"); a("v_lshlrev_b32 v5, 6, v5"); a(f"s_lshl_b32 s20, s{W}, 12"); a("v_add_u32 v5, s20, v5")
    a("s_mov_b32 s34, 0x00ff00ff"); a("s_mov_b32 s35, 0x00ff00ff")
    a("s_mov_b32 s36, 0xff00ff00"); a("s_mov_b32 s37, 0xff00ff00")
    a(f"s_mov_b32 s38, {f2u(CEXP):#x}")
    def kv_prefetch():
        if kv_wait: kv_wait(a)
        a(f"s_lshl_b32 s20, s{S_STEP}, 5"); a("s_add_u32 s20, s20, s26"); a("s_lshl_b32 s20, s20, 13")
        a(f"s_add_u32 s21, s20, {VT_OFF}"); a(f"s_add_u32 s20, s20, {K_OFF}")
        for t in range(2):
            a(f"s_add_u32 m0, s27, {A_KX+1024*t}"); a("s_nop 0")
            a(f"buffer_load_dwordx4 v{VKX}, {sr(S_WS,4)}, s20 offen sc1 lds")
            a(f"s_add_u32 m0, s27, {A_VX+1024*t}"); a("s_nop 0")
            a(f"buffer_load_dwordx4 v{VKX}, {sr(S_WS,4)}, s21 offen sc1 lds")
            if t == 0: a("s_add_u32 s20, s20, 4096"); a("s_add_u32 s21, s21, 4096")
    a(f"s_mov_b32 s{S_STEP}, 0")
    rts(a, 1)
    if INIT_WAIT:
        a("v_mov_b32 v60, v14"); INIT_WAIT(a); a("v_mov_b32 v14, v60")
    kv_prefetch()
    a("s_waitcnt vmcnt(0)")
    a("s_barrier")
    def k1read(ks):
        st = STG[ks % 3]; base = VT0 if ks < 8 else VT1
        return [f"ds_read_b128 {vr(st+4*q,4)}, v{base} offset:{(ks%8)*8192+1024*q}" for q in range(2)]
    a.label("L_A_step")
    a("s_mov_b32 s30, 0"); a("s_mov_b32 s32, 0")
    a(f"s_and_b32 s39, s{S_STEP}, 3"); a("s_lshl_b32 s39, s39, 16")
    a(f"s_lshl_b32 s21, s{S_X}, 14"); a("s_add_u32 s25, s39, s21")
    a(f"s_add_u32 s20, s25, {CH_MEM}")
    for i in range(1, 4): a(f"s_add_u32 s{20+i}, s20, {4096*i}")
    for i in range(16): a(f"v_mov_b32 v{ACC+i}, 0")
    for x in k1read(0) + k1read(1): a(x)
    def pload(i):
        a(f"buffer_load_dwordx4 {vr(PIECE+4*i,4)}, v{VL16}, {sr(S_WS,4)}, s{20+i//4} offen offset:{(i%4)*1024} sc1")
    def pcheck(i):
        a(f"v_cmp_eq_u32 vcc, -1, v{PIECE+4*i}")
    def look(n):
        if n-1+WIN < 16 and n > 0: pload(n-1+WIN)
        a(f"s_waitcnt vmcnt({min(WIN-1, 15-n)})")
        pcheck(n)
    a("s_mov_b32 s33, 0")
    def sload(k): a(f"buffer_load_dword v{PIECE+k}, v5, {sr(S_WS,4)}, s20 offen sc1")
    for k in range(NFLY):
        sload(k)
        if k < NFLY-1: a("s_sleep 1")
    a.label("L_A_poll")
    for k in range(NFLY):
        a(f"s_waitcnt vmcnt({NFLY-1})")
        a(f"v_cmp_eq_u32 vcc, -1, v{PIECE+k}")
        a("s_cbranch_vccz L_A_go")
        sload(k)
    poll_tail(a, "L_A_poll", abort)
    a.label("L_A_redo")
    a("s_nop 7")
    for i in range(16): a(f"v_mov_b32 v{ACC+i}, 0")
    for x in k1read(0) + k1read(1): a(x)
    a("s_add_u32 s32, s32, 1"); a(f"s_cmp_ge_u32 s32, {POLL_MAX}"); a(f"s_cbranch_scc1 {abort}")
    if PROF: a("s_add_u32 s30, s30, 0x10000")
    a("s_branch L_A_go2")
    a.label("L_A_go")
    a("s_barrier")
    a.label("L_A_go2")
    ts(a, 0)
    sched = {}
    nxt = WIN
    for ks in range(16):
        k = []
        for _ in range(PER):
            if nxt < 16: k.append(nxt); nxt += 1
        sched[ks] = k
    for i in range(WIN): pload(i)
    issued = WIN
    for ks in range(16):
        P = vr(PIECE+4*ks, 4)
        if ks in (0, 4, 8, 12): ts(a, 5+ks//4)
        a(f"s_waitcnt vmcnt({issued-1-ks}) lgkmcnt({0 if (ks == 15 or (PROF and ks % 4 == 0)) else 2})")
        a(f"v_smfmac_f32_16x16x64_bf16 {vr(ACC,4)}, {P}, {Wq(ks,0)}, v{VI}")
        for k in sched[ks][:1]: pload(k)
        a(f"v_smfmac_f32_16x16x64_bf16 {vr(ACC+12,4)}, {P}, {vr(STG[ks % 3],8)}, v{VI}")
        rd = k1read(ks+2) if ks+2 < 16 else []
        for x in rd[:1]: a(x)
        for k in sched[ks][1:]: pload(k)
        issued += len(sched[ks])
        a(f"v_smfmac_f32_16x16x64_bf16 {vr(ACC+4,4)}, {P}, {Wq(ks,1)}, v{VI}")
        for x in rd[1:]: a(x)
        if ks == 1: a(f"v_max_u32 v15, v{PIECE}, v{PIECE+4}")
        elif ks % 2 == 1: a(f"v_max3_u32 v15, v15, v{PIECE+4*ks-4}, v{PIECE+4*ks}")
        if ks == 15: a("v_cmp_eq_u32 vcc, -1, v15")
        a(f"v_smfmac_f32_16x16x64_bf16 {vr(ACC+8,4)}, {P}, {Wk0(ks)}, v{VI}")
    a("s_cbranch_vccnz L_A_redo")
    ts(a, 1)
    KX = 48; VX = 56; VM = 64; Y = 68; X = 72; T = 72; SX = 84; SM = 96+8
    for t in range(2): a(f"ds_read_b128 {vr(KX+4*t,4)}, v{VKA} offset:{1024*t}")
    for t in range(2): a(f"ds_read_b128 {vr(VX+4*t,4)}, v{VKA} offset:{A_VX-A_KX+1024*t}")
    a("s_lshl_b32 s21, s26, 11"); a("s_add_u32 s20, s39, s21"); a(f"s_add_u32 s24, s20, {CH_VM}")
    a("s_nop 1")
    for t in range(2):
        a(f"v_cvt_pk_bf16_f32 v{X+4*t}, v{ACC+4*t}, v{ACC+4*t+1}"); a(f"v_cvt_pk_bf16_f32 v{X+4*t+1}, v{ACC+4*t+2}, v{ACC+4*t+3}")
        a(f"v_cvt_pk_bf16_f32 v{X+4*t+2}, v{ACC+8+4*t}, v{ACC+8+4*t+1}"); a(f"v_cvt_pk_bf16_f32 v{X+4*t+3}, v{ACC+8+4*t+2}, v{ACC+8+4*t+3}")
    a("s_nop 0")
    a(f"v_mfma_f32_16x16x32_bf16 {vr(ACC+8,4)}, {vr(X,4)}, {vr(VID,4)}, 0")
    a(f"v_mfma_f32_16x16x32_bf16 {vr(ACC+12,4)}, {vr(X+4,4)}, {vr(VID,4)}, 0")
    a("s_nop 0")
    a(f"v_mov_b32 v{VM+1}, 0"); a(f"v_mov_b32 v{VM+3}, 0")
    a(f"s_lshl_b32 s20, s{S_STEP}, 5"); a("s_add_u32 s20, s20, s26"); a("s_lshl_b32 s20, s20, 12"); a(f"s_add_u32 s20, s20, {KVM_OFF}")
    a(f"v_cvt_pk_bf16_f32 v{Y}, v{ACC+8}, v{ACC+9}"); a(f"v_cvt_pk_bf16_f32 v{Y+1}, v{ACC+10}, v{ACC+11}")
    a(f"v_cvt_pk_bf16_f32 v{Y+2}, v{ACC+12}, v{ACC+13}"); a(f"v_cvt_pk_bf16_f32 v{Y+3}, v{ACC+14}, v{ACC+15}")
    a("s_waitcnt lgkmcnt(0)")
    a("s_nop 0")
    a(f"v_mfma_f32_16x16x32_bf16 {vr(T,4)}, {vr(KX,4)}, {vr(Y,4)}, 0")
    a(f"v_mfma_f32_16x16x32_bf16 {vr(T+4,4)}, {vr(KX+4,4)}, {vr(Y,4)}, 0")
    a(f"v_mfma_f32_16x16x32_bf16 {vr(T+8,4)}, {vr(Y,4)}, {vr(Y,4)}, 0")
    a(f"s_cmp_eq_u32 s{S_STEP}, {NSTEP-1}")
    a("s_cbranch_scc1 L_A_last")
    a("s_nop 3")
    a(f"ds_write_b128 v{VSW}, {vr(T,4)}")
    a(f"ds_write_b128 v{VSW}, {vr(T+4,4)} offset:1024")
    a(f"ds_write_b128 v{VSW}, {vr(T+8,4)} offset:2048")
    ts(a, 2)
    a(f"buffer_load_dword v{VM}, v{VVM}, {sr(S_WS,4)}, s24 offen sc1")
    a(f"buffer_load_dword v{VM+2}, v{VVM}, {sr(S_WS,4)}, s24 offen offset:1024 sc1")
    a("s_mov_b64 exec, s[36:37]")
    a(f"buffer_store_dwordx4 {vr(Y,4)}, v{VKM}, {sr(S_WS,4)}, s20 offen sc1")
    a("s_mov_b64 exec, -1")
    a("s_waitcnt lgkmcnt(0)")
    a("s_barrier")
    for pw in range(4):
        a(f"ds_read_b128 {vr(SX+4*pw,4)}, v{VSR} offset:{pw*3072}")
        a(f"ds_read_b32 v{SM+pw}, v{VSM} offset:{pw*3072}")
    a("s_waitcnt lgkmcnt(4)")
    a(f"v_pk_add_f32 {vr(SX,2)}, {vr(SX,2)}, {vr(SX+4,2)}"); a(f"v_pk_add_f32 {vr(SX+2,2)}, {vr(SX+2,2)}, {vr(SX+6,2)}")
    a(f"v_add_f32 v{SM}, v{SM}, v{SM+1}")
    a("s_waitcnt lgkmcnt(0)")
    a(f"v_pk_add_f32 {vr(SX+8,2)}, {vr(SX+8,2)}, {vr(SX+12,2)}"); a(f"v_pk_add_f32 {vr(SX+10,2)}, {vr(SX+10,2)}, {vr(SX+14,2)}")
    a(f"v_add_f32 v{SM+2}, v{SM+2}, v{SM+3}")
    a(f"v_pk_add_f32 {vr(SX,2)}, {vr(SX,2)}, {vr(SX+8,2)}"); a(f"v_pk_add_f32 {vr(SX+2,2)}, {vr(SX+2,2)}, {vr(SX+10,2)}")
    a(f"v_add_f32 v{SM}, v{SM}, v{SM+2}")
    M = SX+4; TM = SX+5
    def fold(op, r):
        a("s_nop 1")
        a(f"{op}_dpp v{r}, v{r}, v{r} row_ror:8 row_mask:0xf bank_mask:0xf")
        for sw in ("v_permlane16_swap_b32", "v_permlane32_swap_b32"):
            a(f"v_mov_b32 v{TM}, v{r}"); a("s_nop 1"); a(f"{sw} v{r}, v{TM}"); a(f"{op} v{r}, v{r}, v{TM}")
    a(f"v_max3_f32 v{M}, v{SX}, v{SX+1}, v{SX+2}"); a(f"v_max3_f32 v{M}, v{M}, v{SX+3}, v{SM}")
    fold("v_max_f32", M)
    a(f"v_mul_f32 v{M}, s38, v{M}")
    for r in (SX, SX+1, SX+2, SX+3, SM): a(f"v_fma_f32 v{r}, v{r}, s38, -v{M}")
    for r in (SX, SX+1, SX+2, SX+3, SM): a(f"v_exp_f32 v{r}, v{r}")
    a("s_waitcnt vmcnt(1)")
    a(f"v_max_u32 v{TM}, v{VM}, v{VM+2}")
    a(f"v_cmp_eq_u32 vcc, -1, v{TM}")
    PX = SX+8; PM = SX+12
    a(f"v_mov_b32 v{PM+1}, 0")
    a(f"v_cvt_pk_bf16_f32 v{PX}, v{SX}, v{SX+1}"); a(f"v_cvt_pk_bf16_f32 v{PX+1}, v{SX+2}, v{SX+3}")
    a(f"v_mov_b32_dpp v{SM+1}, v{SM} row_ror:8 row_mask:0xf bank_mask:0xf")
    a(f"v_add_f32 v{M}, v{SX}, v{SX+1}")
    a(f"v_mov_b32_dpp v{PX+2}, v{PX} row_ror:8 row_mask:0xf bank_mask:0xf")
    a(f"v_mov_b32_dpp v{PX+3}, v{PX+1} row_ror:8 row_mask:0xf bank_mask:0xf")
    a(f"v_cvt_pk_bf16_f32 v{PM}, v{SM}, v{SM+1}")
    a(f"v_add_f32 v{SX+2}, v{SX+2}, v{SX+3}")
    ts(a, 3)
    a(f"v_mfma_f32_16x16x32_bf16 {vr(T,4)}, {vr(VX,4)}, {vr(PX,4)}, 0")
    a(f"v_add_f32 v{M}, v{M}, v{SM}")
    a(f"v_mfma_f32_16x16x32_bf16 {vr(T+4,4)}, {vr(VX+4,4)}, {vr(PX,4)}, 0")
    a(f"v_add_f32 v{M}, v{M}, v{SX+2}")
    a(f"s_cbranch_vccnz L_A_vmfix")
    a.label("L_A_vmok")
    a(f"v_mfma_f32_16x16x16_bf16 {vr(T,4)}, {vr(VM,2)}, {vr(PM,2)}, {vr(T,4)}")
    a(f"v_add_f32_dpp v{M}, v{M}, v{M} row_ror:8 row_mask:0xf bank_mask:0xf")
    a(f"v_mfma_f32_16x16x16_bf16 {vr(T+4,4)}, {vr(VM+2,2)}, {vr(PM,2)}, {vr(T+4,4)}")
    for sw in ("v_permlane16_swap_b32", "v_permlane32_swap_b32"):
        a(f"v_mov_b32 v{TM}, v{M}"); a("s_nop 1"); a(f"{sw} v{M}, v{TM}"); a(f"v_add_f32 v{M}, v{M}, v{TM}")
    a(f"v_rcp_f32 v{M}, v{M}")
    a(f"s_add_u32 s20, s25, {CH_OX}")
    for i in range(8): a(f"v_mul_f32 v{T+i}, v{T+i}, v{M}")
    for i in range(4): a(f"v_cvt_pk_bf16_f32 v{Y+i}, v{T+2*i}, v{T+2*i+1}")
    a("s_mov_b64 exec, s[34:35]")
    local_store(a, f"buffer_store_dwordx4 {vr(Y,4)}, v{VO}, {sr(S_WS,4)}, s20 offen")
    ts(a, 4); rts(a, 0)
    for i in range(4): a(f"v_mov_b32 v{T+i}, -1")
    a(f"s_add_u32 s21, s25, {3*65536}"); a(f"s_and_b32 s21, s21, {4*65536-1}"); a(f"s_add_u32 s21, s21, {CH_OX}")
    local_store(a, f"buffer_store_dwordx4 {vr(T,4)}, v{VO}, {sr(S_WS,4)}, s21 offen")
    a("s_mov_b64 exec, -1")
    if step_done: step_done(a, "A")
    ts_store(a, 26, 60)
    a(f"s_add_u32 s{S_STEP}, s{S_STEP}, 1")
    kv_prefetch()
    a("s_branch L_A_step")
    a.label("L_A_vmfix")
    a(f"buffer_load_dword v{VM}, v{VVM}, {sr(S_WS,4)}, s24 offen sc1")
    a(f"buffer_load_dword v{VM+2}, v{VVM}, {sr(S_WS,4)}, s24 offen offset:1024 sc1")
    a("s_waitcnt vmcnt(0)")
    a(f"v_max_u32 v{TM}, v{VM}, v{VM+2}")
    a(f"v_cmp_eq_u32 vcc, -1, v{TM}")
    a("s_cbranch_vccz L_A_vmok")
    poll_tail(a, "L_A_vmfix", abort)
    a.label("L_A_last")
    a("s_mov_b64 exec, s[36:37]")
    a(f"buffer_store_dwordx4 {vr(Y,4)}, v{VKM}, {sr(S_WS,4)}, s20 offen sc1")
    a("s_mov_b64 exec, -1")
    if step_done: step_done(a, "Alast")

R_PS, R_HS, R_GS, R_CS = 2368, 1184, 288, 144
VR_V = 0; VR_R = 16384; VR_X = 40960
SCP = 52
def role_VR(a, abort, step_done=None):
    L = V_LANE; W = S_WAVE
    VI, VL16, VWV, VRV, VWR, VRR, VSV, VSP, VPL2, VSM, VPL = 3, 4, 5, 6, 7, 8, 9, 10, 12, 13, 16
    PIECE = 32; ACC = 48; RD = 64; POIS = 96
    a(f"s_sub_u32 s{S_R}, s{S_R}, 8")
    a(f"s_lshl_b32 s26, s{S_X}, 3"); a(f"s_lshr_b32 s20, s{S_R}, 1"); a("s_add_u32 s26, s26, s20")
    a(f"s_lshl_b32 s27, s{W}, 15")
    a(f"v_lshrrev_b32 v2, 4, v{L}"); a(f"v_bfe_u32 v3, v{L}, 2, 2")
    a(f"v_and_b32 v5, 3, v{L}"); a("v_lshlrev_b32 v5, 3, v5"); a("v_add_u32 v5, s27, v5")
    a("v_and_b32 v6, 1, v2")
    a("v_lshrrev_b32 v7, 1, v3"); a("v_lshl_or_b32 v8, v6, 1, v7")
    a("v_lshl_add_u32 v4, v2, 3, v3"); a("v_lshl_add_u32 v9, v4, 7, v5")
    a("v_lshrrev_b32 v4, 1, v2"); a("v_lshlrev_b32 v4, 3, v4"); a("v_lshl_add_u32 v4, v6, 6, v4"); a("v_lshl_add_u32 v4, v7, 2, v4")
    a("v_and_b32 v10, 1, v3"); a("v_add_u32 v4, v4, v10"); a("v_lshl_add_u32 v10, v4, 7, v5")
    for t in range(4):
        a(f"v_xor_b32 v4, {t}, v8"); a("v_lshlrev_b32 v4, 5, v4")
        a(f"v_add_u32 v{32+t}, v9, v4"); a(f"v_add_u32 v{36+t}, v10, v4")
    for part in range(2):
        stride = 8192 if part == 0 else 2048
        a(f"v_lshrrev_b32 v2, 3, v{L}"); a(f"v_and_b32 v3, 7, v{L}")
        a(f"v_bfe_u32 v4, v{L}, {4 if part == 0 else 5}, 1"); a("v_lshlrev_b32 v4, 1, v4"); a("v_xor_b32 v3, v3, v4")
        a(f"v_lshlrev_b32 v2, {13 if part == 0 else 11}, v2"); a("v_lshlrev_b32 v3, 4, v3")
        a("v_add_u32 v40, v2, v3"); a("v_xor_b32 v3, 64, v3"); a("v_add_u32 v41, v2, v3")
        if part == 0:
            load_srd(a, S_WT, 48, 0, DM*4096*2)
            a("s_lshl_b32 s22, s26, 8"); a(f"s_and_b32 s20, s{S_R}, 1"); a("s_lshl_b32 s20, s20, 7"); a("s_add_u32 s22, s22, s20")
            a(f"s_lshl_b32 s20, s{W}, 21"); a("s_add_u32 s22, s22, s20")
        else:
            load_srd(a, S_WT, 50, 0, 4096*DM*2)
            a(f"s_lshl_b32 s22, s{S_X}, 21"); a(f"s_lshl_b32 s20, s{W}, 19"); a("s_add_u32 s22, s22, s20")
            a(f"s_lshl_b32 s20, s{S_R}, 7"); a("s_add_u32 s22, s22, s20")
        for j in range(32):
            odd = (j & 1) if part == 0 else ((j >> 3) & 1)
            a(f"s_add_u32 m0, s27, {1024*j}"); a("s_nop 0")
            a(f"buffer_load_dwordx4 v{40+odd}, {sr(S_WT,4)}, s22 offen lds")
            a(f"s_add_u32 s22, s22, {8*stride}")
        a("s_waitcnt vmcnt(0)")
        for kk in range(4):
            for t in range(4):
                for q in range(4):
                    if part == 0: off = (64*kk + 32*(q >> 1) + 4*(q & 1))*128
                    else: off = (128*(kk >> 1) + 32*(kk & 1) + 16*(q >> 1) + 2*(q & 1))*128
                    a(f"ds_read_b64_tr_b16 {ar(part*128+(kk*4+t)*8+2*q,2)}, v{32+4*part+t} offset:{off}")
            a("s_waitcnt lgkmcnt(0)")
    a("s_barrier")
    idx_reg(a, VI)
    a(f"v_lshlrev_b32 v{VL16}, 4, v{L}")
    a(f"s_lshl_b32 s20, s{W}, 12")
    a(f"v_add_u32 v{VWV}, s20, v{VL16}")
    a(f"v_add_u32 v2, s20, v{VL16}")
    a(f"s_and_b32 s21, s{W}, 1"); a("s_lshl_b32 s22, s21, 11")
    a(f"v_lshrrev_b32 v14, 5, v{L}"); a(f"v_and_b32 v15, 31, v{L}"); a("v_lshlrev_b32 v15, 4, v15")
    a(f"v_lshl_add_u32 v{VRV}, v14, 10, v15"); a(f"v_add_u32 v{VRV}, s22, v{VRV}")
    a(f"v_and_b32 v15, 15, v{L}"); a("v_lshl_add_u32 v15, v14, 4, v15"); a("v_lshlrev_b32 v15, 4, v15")
    a(f"v_bfe_u32 v14, v{L}, 4, 1"); a(f"v_lshl_add_u32 v{VSV}, v14, 3, v15")
    a("s_lshl_b32 s22, s21, 9"); a(f"s_and_b32 s23, s{S_R}, 1"); a("s_lshl_b32 s23, s23, 10"); a("s_add_u32 s22, s22, s23")
    a(f"v_add_u32 v{VSV}, s22, v{VSV}")
    a(f"s_mul_i32 s22, s{W}, {R_PS}"); a(f"s_add_u32 s22, s22, {VR_R}")
    a(f"v_lshrrev_b32 v14, 5, v{L}"); a(f"v_mul_u32_u24 v{VWR}, {R_GS}, v14")
    a(f"v_bfe_u32 v14, v{L}, 3, 1"); a(f"v_mul_u32_u24 v14, {R_HS}, v14"); a(f"v_add_u32 v{VWR}, v{VWR}, v14")
    a(f"v_bfe_u32 v14, v{L}, 1, 1"); a(f"v_mul_u32_u24 v14, {R_CS}, v14"); a(f"v_add_u32 v{VWR}, v{VWR}, v14")
    a(f"v_bfe_u32 v14, v{L}, 4, 1"); a(f"v_lshl_add_u32 v{VWR}, v14, 6, v{VWR}")
    a(f"v_bfe_u32 v14, v{L}, 2, 1"); a(f"v_lshl_add_u32 v{VWR}, v14, 3, v{VWR}")
    a(f"v_and_b32 v14, 1, v{L}"); a(f"v_lshl_add_u32 v{VWR}, v14, 2, v{VWR}")
    a(f"v_add_u32 v{VWR}, s22, v{VWR}")
    a(f"s_mul_i32 s22, s21, {R_HS}"); a(f"s_add_u32 s22, s22, {VR_R}")
    a(f"v_lshrrev_b32 v14, 4, v{L}"); a(f"v_mul_u32_u24 v{VRR}, {R_GS}, v14")
    a(f"v_bfe_u32 v14, v{L}, 3, 1"); a(f"v_mul_u32_u24 v14, {R_CS}, v14"); a(f"v_add_u32 v{VRR}, v{VRR}, v14")
    a(f"v_and_b32 v14, 7, v{L}"); a(f"v_lshl_add_u32 v{VRR}, v14, 4, v{VRR}")
    a(f"v_add_u32 v{VPL2}, {VR_R}, v{VRR}")
    a(f"v_add_u32 v{VRR}, s22, v{VRR}")
    a(f"s_lshl_b32 s22, s{S_R}, 14")
    for k in range(3):
        a(f"s_add_u32 s23, s{S_X}, {k+1}"); a("s_and_b32 s23, s23, 3"); a("s_lshl_b32 s23, s23, 11"); a("s_add_u32 s23, s23, s22")
        a(f"v_add_u32 v{VPL+k}, s23, v{VL16}")
    a("s_lshl_b32 s23, s21, 10"); a("s_add_u32 s22, s22, s23")
    a(f"s_lshl_b32 s23, s{S_X}, 11"); a("s_add_u32 s22, s22, s23"); a(f"v_add_u32 v{VSP}, s22, v{VL16}")
    a(f"s_lshl_b32 s22, s{S_R}, 10"); a(f"v_add_u32 v{VSM}, s22, v{VL16}")
    for i in range(4): a(f"v_mov_b32 v{POIS+i}, -1")
    if INIT_WAIT: INIT_WAIT(a)
    Lc, Lp = a.newlabel("Cal"), a.newlabel("Cal")
    a(f"s_or_b32 s22, s{S_X}, s{S_R}"); a(f"s_or_b32 s22, s22, s{W}"); a("s_cmp_lg_u32 s22, 0"); a(f"s_cbranch_scc1 {Lc}")
    a("s_mov_b32 s34, 0x100")
    for pg in range(NCOPY//2):
        for c in range(2):
            for k in range(4):
                a(f"s_mov_b32 s23, {CH_PART + pg*2*MB + c*8192 + k*16384 + 1024*k}")
                a("s_memtime s[36:37]")
                a("s_waitcnt lgkmcnt(0)")
                a(f"buffer_load_dword v14, off, {sr(S_WS,4)}, s23 sc1")
                a("s_waitcnt vmcnt(0)")
                a("s_memtime s[38:39]")
                a("s_waitcnt lgkmcnt(0)")
                a("s_sub_u32 s36, s38, s36")
                if k == 0: a(f"s_mov_b32 s{20+c}, s36")
                else: a(f"s_min_u32 s{20+c}, s{20+c}, s36")
        a("s_cmp_lt_u32 s21, s20"); a(f"s_cselect_b32 s36, {1 << pg}, 0"); a("s_or_b32 s34, s34, s36")
    a("v_mov_b32 v14, s34"); a(f"s_mov_b32 s23, {FL_NEAR}")
    a(f"buffer_store_dword v14, off, {sr(S_WS,4)}, s23 sc1")
    a.label(Lc)
    a("s_mov_b32 s30, 0"); a(f"s_mov_b32 s23, {FL_NEAR}")
    a.label(Lp)
    a(f"buffer_load_dword v14, off, {sr(S_WS,4)}, s23 sc1")
    a("s_waitcnt vmcnt(0)")
    a("v_readfirstlane_b32 s34, v14")
    a("s_nop 3")
    a("s_cmp_lg_u32 s34, 0")
    Lq = a.newlabel("Cal")
    a(f"s_cbranch_scc1 {Lq}")
    a("s_sleep 8")
    poll_tail(a, Lp, abort)
    a.label(Lq)
    for c in range(NCOPY):
        a(f"s_bfe_u32 s22, s34, {(c//2) | (1 << 16):#x}"); a("s_lshl_b32 s22, s22, 13"); a(f"s_add_u32 s{SCP+c}, s22, {CH_PART + c*MB}")
    a(f"s_lshl_b32 s28, s{S_X}, 4"); a(f"s_add_u32 s28, s28, s{S_R}"); a("s_add_u32 s28, s28, 32")
    a(f"s_mov_b32 s{S_STEP}, 0")

    def gemv(sbase, wbase, tag):
        Lp = a.newlabel("VRp")
        def pl(i): a(f"buffer_load_dwordx4 {vr(PIECE+4*i,4)}, v2, {sr(S_WS,4)}, s{sbase} offen offset:{i*1024} sc1")
        def pc(i):
            a(f"v_cmp_eq_u32 vcc, -1, v{PIECE+4*i}")
        for i in range(16): a(f"v_mov_b32 v{ACC+i}, 0")
        def mm(h):
            for kk in (2*h, 2*h+1):
                for t in range(4):
                    a(f"v_smfmac_f32_16x16x64_bf16 {vr(ACC+4*t,4)}, {vr(PIECE+4*kk,4)}, {ar(wbase+(kk*4+t)*8,8)}, v{VI}")
        def ck(h):
            a(f"v_max_u32 v15, v{PIECE+8*h}, v{PIECE+8*h+4}"); a("v_cmp_eq_u32 vcc, -1, v15")
        Lf = [a.newlabel("VRf") for _ in range(2)]; Lo = [a.newlabel("VRo") for _ in range(2)]; Lr = [a.newlabel("VRr") for _ in range(2)]
        Le = a.newlabel("VRe")
        pl(0); pl(1)
        a("s_sleep 2")
        pl(2); pl(3)
        a.label(Lp)
        for h in range(2):
            a("s_waitcnt vmcnt(2)")
            ck(h)
            a(f"s_cbranch_vccz {Lf[h]}")
            pl(2*h); pl(2*h+1)
        poll_tail(a, Lp, abort)
        for h in (1, 0):
            o = 1-h
            a.label(Lr[h])
            pl(2*o); pl(2*o+1)
            a("s_add_u32 s30, s30, 1"); a(f"s_cmp_ge_u32 s30, {POLL_MAX}"); a(f"s_cbranch_scc1 {abort}")
            a(f"s_branch {Lo[h]}")
            a.label(Lf[h])
            mm(h)
            a.label(Lo[h])
            a("s_waitcnt vmcnt(0)")
            ck(o)
            a(f"s_cbranch_vccnz {Lr[h]}")
            mm(o)
            if h == 1: a(f"s_branch {Le}")
        a.label(Le)
    def sum8():
        for i in range(1, 8):
            a(f"s_waitcnt lgkmcnt({7-i})")
            a(f"v_pk_add_f32 {vr(RD,2)}, {vr(RD,2)}, {vr(RD+4*i,2)}"); a(f"v_pk_add_f32 {vr(RD+2,2)}, {vr(RD+2,2)}, {vr(RD+4*i+2,2)}")

    a.label("L_VR_step")
    a("s_mov_b32 s30, 0")
    a(f"s_and_b32 s35, s{S_STEP}, 3"); a("s_lshl_b32 s39, s35, 16")
    a(f"s_lshl_b32 s21, s{S_X}, 14"); a("s_add_u32 s25, s39, s21")
    a(f"s_add_u32 s20, s25, {CH_MEM}")
    gemv(20, 0, "V")
    ts(a, 0)
    a("s_lshl_b32 s21, s26, 11"); a("s_add_u32 s20, s39, s21"); a(f"s_add_u32 s20, s20, {CH_VM}"); a("s_nop 0")
    a(f"s_lshl_b32 s21, s{S_STEP}, 5"); a("s_add_u32 s21, s21, s26"); a("s_lshl_b32 s21, s21, 12"); a(f"s_add_u32 s21, s21, {KVM_OFF+2048}")
    a(f"ds_write_b128 v{VWV}, {vr(ACC,4)}")
    for t in range(1, 4): a(f"ds_write_b128 v{VWV}, {vr(ACC+4*t,4)} offset:{1024*t}")
    a("s_waitcnt lgkmcnt(0)")
    a("s_barrier")
    for i in range(8): a(f"ds_read_b128 {vr(RD+4*i,4)}, v{VRV} offset:{(i>>1)*4096+(i&1)*512}")
    sum8()
    a(f"v_cvt_pk_bf16_f32 v{RD}, v{RD}, v{RD+1}"); a(f"v_cvt_pk_bf16_f32 v{RD+1}, v{RD+2}, v{RD+3}")
    Lk, Le = a.newlabel("VRk"), a.newlabel("VRe")
    a(f"s_cmp_ge_u32 s{W}, 2"); a(f"s_cbranch_scc1 {Lk}")
    local_store(a, f"buffer_store_dwordx2 {vr(RD,2)}, v{VSV}, {sr(S_WS,4)}, s20 offen")
    a(f"s_branch {Le}")
    a.label(Lk)
    a(f"buffer_store_dwordx2 {vr(RD,2)}, v{VSV}, {sr(S_WS,4)}, s21 offen sc1")
    a.label(Le)
    ts(a, 1)
    a(f"s_cmp_eq_u32 s{S_STEP}, {NSTEP-1}")
    a("s_cbranch_scc1 L_VR_last")
    a(f"s_add_u32 s22, s35, 2"); a("s_and_b32 s22, s22, 3"); a("s_lshl_b32 s22, s22, 18")
    Lq, Lq2 = a.newlabel("VRq"), a.newlabel("VRq")
    a(f"s_cmp_lt_u32 s{S_STEP}, 2"); a(f"s_cbranch_scc1 {Lq}")
    a(f"s_cmp_ge_u32 s{W}, 2"); a(f"s_cbranch_scc1 {Lq2}")
    for c in range(NCOPY):
        if c == NCOPY//2:
            a(f"s_branch {Lq}"); a.label(Lq2)
        a(f"s_add_u32 s23, s22, s{SCP+c}")
        a(f"buffer_store_dwordx4 {vr(POIS,4)}, v{VSP}, {sr(S_WS,4)}, s23 offen sc1")
    a.label(Lq)
    Lq = a.newlabel("VRq")
    a(f"s_cmp_eq_u32 s{W}, 3"); a(f"s_cbranch_scc1 {Lq}")
    a(f"s_cmp_eq_u32 s{S_STEP}, 0"); a(f"s_cbranch_scc1 {Lq}")
    Lq2 = a.newlabel("VRq")
    a(f"s_cmp_eq_u32 s{W}, 2"); a(f"s_cbranch_scc1 {Lq2}")
    a(f"s_sub_u32 s22, s20, {CH_VM}"); a(f"s_add_u32 s22, s22, {3*65536}"); a(f"s_and_b32 s22, s22, {4*65536-1}"); a(f"s_add_u32 s22, s22, {CH_VM}")
    local_store(a, f"buffer_store_dwordx2 {vr(POIS,2)}, v{VSV}, {sr(S_WS,4)}, s22 offen")
    a(f"s_branch {Lq}")
    a.label(Lq2)
    a(f"s_add_u32 s22, s25, {3*65536}"); a(f"s_and_b32 s22, s22, {4*65536-1}"); a(f"s_add_u32 s22, s22, {CH_MEM}")
    local_store(a, f"buffer_store_dwordx4 {vr(POIS,4)}, v{VSM}, {sr(S_WS,4)}, s22 offen")
    a.label(Lq)
    a(f"s_add_u32 s20, s25, {CH_OX}")
    gemv(20, 128, "R")
    ts(a, 2)
    a(f"s_lshl_b32 s20, s35, 18")
    for c in range(NCOPY): a(f"s_add_u32 s{84+c}, s20, s{SCP+c}")
    a("s_nop 0")
    for p in range(2):
        for r in range(4): a(f"v_permlane32_swap_b32 v{ACC+8*p+r}, v{ACC+8*p+4+r}")
        for r in range(0, 4, 2): a(f"v_pk_add_f32 {vr(ACC+8*p+r,2)}, {vr(ACC+8*p+r,2)}, {vr(ACC+8*p+4+r,2)}")
        for r in range(4): a(f"ds_write_b32 v{VWR}, v{ACC+8*p+r} offset:{2*p*R_GS+r*16}")
    a(f"s_add_u32 s22, s25, {65536}"); a(f"s_and_b32 s22, s22, {4*65536-1}"); a(f"s_add_u32 s22, s22, {CH_MEM}")
    Lx = a.newlabel("Xe"); Lpo = a.newlabel("Xpo")
    a(f"s_cmp_ge_u32 s{W}, 2")
    a("s_waitcnt lgkmcnt(0)")
    a("s_barrier")
    a(f"s_cbranch_scc1 {Lpo}")
    for i in range(4): a(f"ds_read_b128 {vr(RD+4*i,4)}, v{VRR} offset:{i*R_PS}")
    a("s_waitcnt lgkmcnt(2)")
    a(f"v_pk_add_f32 {vr(RD,2)}, {vr(RD,2)}, {vr(RD+4,2)}"); a(f"v_pk_add_f32 {vr(RD+2,2)}, {vr(RD+2,2)}, {vr(RD+6,2)}")
    a("s_waitcnt lgkmcnt(0)")
    a(f"v_pk_add_f32 {vr(RD+8,2)}, {vr(RD+8,2)}, {vr(RD+12,2)}"); a(f"v_pk_add_f32 {vr(RD+10,2)}, {vr(RD+10,2)}, {vr(RD+14,2)}")
    a(f"v_pk_add_f32 {vr(RD,2)}, {vr(RD,2)}, {vr(RD+8,2)}"); a(f"v_pk_add_f32 {vr(RD+2,2)}, {vr(RD+2,2)}, {vr(RD+10,2)}")
    for c in range(NCOPY):
        a(f"buffer_store_dwordx4 {vr(RD,4)}, v{VSP}, {sr(S_WS,4)}, s{84+c} offen sc1")
        if c == 0: ts(a, 3); rts(a, 0)
    a(f"s_branch {Lx}")
    a.label(Lpo)
    L3 = a.newlabel("X3")
    a(f"s_cmp_lg_u32 s{W}, 3"); a(f"s_cbranch_scc1 {L3}")
    if step_done: step_done(a, "V3")
    a(f"s_branch {Lx}")
    a.label(L3)
    XS = lambda c: 100 + 24*c
    def xl(c):
        for k in range(3):
            for h in range(2): a(f"buffer_load_dwordx4 {vr(XS(c)+8*k+4*h,4)}, v{VPL+k}, {sr(S_WS,4)}, s{84+c} offen offset:{h*1024} sc1")
    for h in range(2):
        for i in range(4): a(f"ds_read_b128 {vr(RD+16*h+4*i,4)}, v{VPL2} offset:{i*R_PS+h*R_HS}")
    for h in range(2):
        b = RD+16*h
        a(f"s_waitcnt lgkmcnt({4-4*h})")
        for k in (0, 2): a(f"v_pk_add_f32 {vr(b+k,2)}, {vr(b+k,2)}, {vr(b+4+k,2)}")
        for k in (0, 2): a(f"v_pk_add_f32 {vr(b+8+k,2)}, {vr(b+8+k,2)}, {vr(b+12+k,2)}")
        for k in (0, 2): a(f"v_pk_add_f32 {vr(RD+4*h+k,2)}, {vr(b+k,2)}, {vr(b+8+k,2)}")
    ts(a, 3); rts(a, 0)
    if XSLEEP: a(f"s_sleep {XSLEEP}")
    Lg = [a.newlabel("Xg") for _ in range(NCOPY)]; Lj = a.newlabel("Xj"); Lp = a.newlabel("Xp")
    def xc(c):
        b = XS(c)
        a(f"v_max3_u32 v15, v{b}, v{b+4}, v{b+8}")
        a(f"v_max3_u32 v15, v15, v{b+12}, v{b+16}")
        a(f"v_max_u32 v15, v15, v{b+20}")
        a("v_cmp_eq_u32 vcc, -1, v15")
        a(f"s_cbranch_vccz {Lg[c]}")
    for c in range(XAHEAD):
        xl(c)
        if c < XAHEAD-1: a(f"s_sleep {XGAP}")
    for c in range(NCOPY):
        a(f"s_waitcnt vmcnt({6*(min(c+XAHEAD, NCOPY)-1-c)})")
        xc(c)
        if c+XAHEAD < NCOPY: xl(c+XAHEAD)
        if PROF: a("s_add_u32 s30, s30, 0x10000")
    a.label(Lp)
    xl(NCOPY-1)
    a("s_waitcnt vmcnt(0)")
    xc(NCOPY-1)
    poll_tail(a, Lp, abort)
    for c in range(NCOPY):
        a.label(Lg[c])
        b = XS(c)
        for k in range(0, 8, 2): a(f"v_pk_add_f32 {vr(RD+k,2)}, {vr(RD+k,2)}, {vr(b+8+k,2)}")
        for k in range(0, 8, 2): a(f"v_pk_add_f32 {vr(RD+8+k,2)}, {vr(b+k,2)}, {vr(b+16+k,2)}")
        if c < NCOPY-1: a(f"s_branch {Lj}")
    a.label(Lj)
    for k in range(0, 8, 2): a(f"v_pk_add_f32 {vr(RD+k,2)}, {vr(RD+k,2)}, {vr(RD+8+k,2)}")
    for k in range(4): a(f"v_cvt_pk_bf16_f32 v{RD+k}, v{RD+2*k}, v{RD+2*k+1}")
    local_store(a, f"buffer_store_dwordx4 {vr(RD,4)}, v{VSM}, {sr(S_WS,4)}, s22 offen")
    a.label(Lx)
    ts(a, 4); rts(a, 1)
    ts_store(a, 28, 60)
    a(f"s_add_u32 s{S_STEP}, s{S_STEP}, 1")
    a("s_branch L_VR_step")
    a.label("L_VR_last")
    if step_done: step_done(a, "Vlast")

NCH = 24
def assign_roles(a, abort, lds_scratch):
    a("s_getreg_b32 s31, hwreg(HW_REG_XCC_ID)"); a("s_and_b32 s31, s31, 7")
    Lw, Lp, Lg, Lt, Lt2 = [a.newlabel("R") for _ in range(5)]
    a(f"v_mov_b32 v4, {lds_scratch}")
    a("s_waitcnt vmcnt(0)")
    a("s_barrier")
    if STAMP: STAMP(a)
    a(f"s_cmp_lg_u32 s{S_WAVE}, 0"); a(f"s_cbranch_scc1 {Lw}")
    a("s_mov_b32 s30, 0")
    a.label(Lt)
    a("v_readfirstlane_b32 s24, v60")
    a("s_nop 3")
    a("s_cmp_lg_u32 s24, 0"); a(f"s_cbranch_scc1 {Lt2}")
    a("buffer_load_dword v60, off, s[20:23], 0 sc1")
    a("s_waitcnt vmcnt(0)")
    poll_tail(a, Lt, abort)
    a.label(Lt2)
    a("s_or_b32 s25, s24, s31"); a("v_mov_b32 v2, s25"); a("s_lshl_b32 s26, s2, 2"); a(f"s_add_u32 s26, s26, {TBL_OFF}")
    a("s_mov_b64 exec, 1")
    a(f"buffer_store_dword v2, off, {sr(S_WS,4)}, s26 sc1")
    a("s_mov_b64 exec, -1")
    a(f"v_lshlrev_b32 v3, 2, v{V_LANE}"); a(f"s_mov_b32 s26, {TBL_OFF}"); a("s_mov_b32 s30, 0")
    Lf, Lf2 = a.newlabel("R"), a.newlabel("R")
    a("s_cmp_eq_u32 s2, 0"); a(f"s_cbranch_scc1 {Lp}")
    a("s_mov_b32 s25, 128")
    a.label(Lf)
    a("s_sleep 4")
    a("buffer_load_dword v5, off, s[20:23], s25 sc1")
    a("s_waitcnt vmcnt(0)")
    a("v_cmp_eq_u32 vcc, 0, v5")
    a(f"s_cbranch_vccz {Lp}")
    poll_tail(a, Lf, abort)
    a.label(Lp)
    for k in range(4): a(f"buffer_load_dword v{8+k}, v3, {sr(S_WS,4)}, s26 offen offset:{256*k} sc1")
    a("s_waitcnt vmcnt(0)")
    for k in range(4): a(f"v_xor_b32 v{8+k}, s24, v{8+k}")
    a("v_or_b32 v5, v8, v9"); a("v_or3_b32 v5, v5, v10, v11")
    a("v_cmp_lt_u32 vcc, 7, v5")
    a(f"s_cbranch_vccz {Lg}")
    a("s_sleep 2")
    poll_tail(a, Lp, abort)
    a.label(Lg)
    a("s_cmp_lg_u32 s2, 0"); a(f"s_cbranch_scc1 {Lf2}")
    a("v_mov_b32 v5, 1"); a("s_mov_b32 s25, 128")
    a("buffer_store_dword v5, off, s[20:23], s25 sc1")
    a.label(Lf2)
    a("s_mov_b32 s32, 0")
    for x in range(8):
        a("s_mov_b32 s25, 0")
        for k in range(4):
            a(f"v_cmp_eq_u32 vcc, {x}, v{8+k}"); a("s_nop 0"); a("s_bcnt1_i32_b64 s27, vcc"); a("s_add_u32 s25, s25, s27")
        a(f"v_writelane_b32 v5, s25, {x}")
    for k in range(4):
        a(f"v_add_u32 v2, {64*k}, v{V_LANE}")
        a(f"v_cmp_eq_u32 vcc, s31, v{8+k}"); a("v_cmp_gt_u32 s[26:27], s2, v2"); a("s_nop 0")
        a("s_and_b64 vcc, vcc, s[26:27]"); a("s_bcnt1_i32_b64 s27, vcc"); a("s_add_u32 s32, s32, s27")
    a("v_writelane_b32 v5, s32, 8")
    a(f"v_lshl_add_u32 v3, v{V_LANE}, 2, v4")
    a("s_mov_b64 exec, 0x1ff")
    a("ds_write_b32 v3, v5")
    a("s_mov_b64 exec, -1")
    a("s_waitcnt lgkmcnt(0)")
    a.label(Lw)
    a("s_barrier")
    a(f"v_and_b32 v3, 15, v{V_LANE}"); a("v_lshl_add_u32 v3, v3, 2, v4")
    a("ds_read_b32 v5, v3")
    a("s_waitcnt lgkmcnt(0)")
    a("v_readlane_b32 s32, v5, 8")
    a("s_mov_b32 s33, 0"); a("s_mov_b32 s25, 256")
    for i in range(8):
        a(f"v_readlane_b32 s24, v5, {i}"); a("s_nop 0")
        if i < 4: a("s_min_u32 s25, s25, s24")
        else: a("s_cmp_eq_u32 s24, 0"); a("s_cselect_b32 s25, 0, s25")
        a(f"s_cmp_gt_u32 s31, {i}"); a("s_cselect_b32 s24, s24, 0"); a("s_add_u32 s33, s33, s24")
    a("s_add_u32 s33, s33, s32")
    a("s_barrier")
    Ls, Le = a.newlabel("Rs"), a.newlabel("Re")
    if FORCE_FALLBACK: a("s_mov_b32 s25, 0")
    a(f"s_cmp_lt_u32 s25, {NCH}"); a(f"s_cbranch_scc1 {Ls}")
    a(f"s_mov_b32 s{S_MODE}, 0"); a(f"s_mov_b32 s{S_X}, s31"); a(f"s_mov_b32 s{S_R}, s32")
    a("s_cmp_lt_u32 s31, 4"); a("s_cselect_b32 s29, 1, 0")
    a(f"s_cmp_lt_u32 s32, {NCH}"); a("s_cselect_b32 s29, s29, 0")
    a(f"s_branch {Le}")
    a.label(Ls)
    a(f"s_mov_b32 s{S_MODE}, 1")
    a(f"s_mul_i32 s{S_X}, s33, 2731"); a(f"s_lshr_b32 s{S_X}, s{S_X}, 16")
    a(f"s_mul_i32 s24, s{S_X}, {NCH}"); a(f"s_sub_u32 s{S_R}, s33, s24")
    a(f"s_cmp_lt_u32 s33, {4*NCH}"); a("s_cselect_b32 s29, 1, 0")
    a.label(Le)
```

```python
from asmlib import *

MAIN = "parallel_sum__memory_aug_recurrent_mem_tr__glu_gated_geglu__prompt_kernel"
KA_X, KA_MEM0, KA_WQ, KA_WK, KA_WV, KA_WO, KA_SEG, KA_BX, KA_WG, KA_WU, KA_WD, KA_OUT, KA_DBG, KA_WS = [8*i for i in range(14)]
S, DM, NH, DH, DF = 2048, 1024, 32, 128, 3584
MB = 1 << 20
XN_STR = 2176;  XN_OFF = 0
Q_OFF  = 5*MB
K_OFF  = 21*MB
VT_OFF = 37*MB
H_STR  = 7296;  H_OFF  = 53*MB
OA_STR = 8320;  OA_OFF = 68*MB
BP_OFF = 85*MB
KVM_OFF = 90*MB
WS_SIZE = 256*MB

def load_srd(a, s, karg_sreg_pair, off, size):
    p = karg_sreg_pair
    if off:
        a(f"s_add_u32 s{s}, s{p}, {off}")
        a(f"s_addc_u32 s{s+1}, s{p+1}, 0")
        a(f"s_and_b32 s{s+1}, s{s+1}, 0xffff")
    else:
        a(f"s_mov_b32 s{s}, s{p}")
        a(f"s_and_b32 s{s+1}, s{p+1}, 0xffff")
    a(f"s_mov_b32 s{s+2}, {size}")
    a(f"s_mov_b32 s{s+3}, 0x20000")

def wave_reduce(a, op, v, t):
    for n in (1, 2, 4, 8):
        a("s_nop 1")
        a(f"{op}_dpp v{v}, v{v}, v{v} row_ror:{n} row_mask:0xf bank_mask:0xf")
    a(f"v_mov_b32 v{t}, v{v}")
    a("s_nop 1")
    a(f"v_permlane16_swap_b32 v{v}, v{t}")
    a(f"{op} v{v}, v{v}, v{t}")
    a(f"v_mov_b32 v{t}, v{v}")
    a("s_nop 1")
    a(f"v_permlane32_swap_b32 v{v}, v{t}")
    a(f"{op} v{v}, v{v}, v{t}")

def round_bf16(a, d, s):
    a(f"v_cvt_pk_bf16_f32 v{d}, v{s}, v{s}")
    a(f"v_lshlrev_b32 v{d}, 16, v{d}")

import struct
def f2u(x):
    return struct.unpack("<I", struct.pack("<f", x))[0]
NCOPY = 1
CH_BASE = 100*MB
CH_PART = CH_BASE
CH_MEM  = CH_BASE + NCOPY*MB
CH_VM   = CH_MEM + 256*1024
CH_OX   = CH_VM + 256*1024
CH_K1   = CH_OX + 256*1024
CH_END  = CH_K1
EX_OFF  = CH_BASE + 4*MB
TBL_OFF = CH_BASE + 7*MB
FLAGS   = CH_BASE + 8*MB
FL_NEAR = FLAGS
TS2_OFF = 208*MB
POLL_MAX = 1 << 16
FL_Q1L  = FLAGS + 128
FL_Q1G  = FLAGS + 128*9
FL_Q2G  = FLAGS + 128*10
FL_GU   = FLAGS + 128*11
FL_AT   = FLAGS + 128*19
FL_SLOT = FLAGS + 8192
FL_QKV  = FLAGS + 16384
FL_DN   = FLAGS + 24576
FL_STEP = FLAGS + 32768
FL_ATS  = FLAGS + 128*36
OL_OFF  = 112*MB
FL_EX   = FLAGS + 128*52
FL_Q0B  = FLAGS + 128*53
FL_RDY  = FLAGS + 128*54
FL_LN2  = FLAGS + 128*55
```

```python
from common import *

def emit_ln_row(a, srd_x, srd_xn, s_row, vb, store_flags="", preloaded=None, vm=0):
    L = vb; X = vb+2; F = vb+12; T = vb+30
    assert X % 2 == 0
    st = s_row+1
    if preloaded is None:
        a(f"s_lshl_b32 s{st}, s{s_row}, 11")
        a(f"buffer_load_dwordx4 {vr(X,4)}, v{L}, {sr(srd_x,4)}, s{st} offen")
        a(f"buffer_load_dwordx4 {vr(X+4,4)}, v{L}, {sr(srd_x,4)}, s{st} offen offset:1024")
    else: X = preloaded
    a(f"s_waitcnt vmcnt({vm})")
    for i in range(8):
        a(f"v_lshlrev_b32 v{F+2*i}, 16, v{X+i}")
        a(f"v_and_b32 v{F+2*i+1}, 0xffff0000, v{X+i}")
    a(f"v_add_f32 v{T}, v{F}, v{F+1}")
    for i in range(2, 16): a(f"v_add_f32 v{T}, v{T}, v{F+i}")
    wave_reduce(a, "v_add_f32", T, T+1)
    a(f"v_mul_f32 v{T}, {f2u(1/1024):#x}, v{T}")
    a(f"v_sub_f32 v{T+2}, v{F}, v{T}")
    a(f"v_mul_f32 v{T+3}, v{T+2}, v{T+2}")
    for i in range(1, 16):
        a(f"v_sub_f32 v{T+2}, v{F+i}, v{T}")
        a(f"v_fmac_f32 v{T+3}, v{T+2}, v{T+2}")
    wave_reduce(a, "v_add_f32", T+3, T+1)
    a(f"v_mul_f32 v{T+3}, {f2u(1/1024):#x}, v{T+3}")
    round_bf16(a, T, T)
    round_bf16(a, T+3, T+3)
    a(f"v_add_f32 v{T+3}, {f2u(1e-5):#x}, v{T+3}")
    round_bf16(a, T+3, T+3)
    a(f"v_sqrt_f32 v{T+3}, v{T+3}")
    a("s_nop 0")
    round_bf16(a, T+3, T+3)
    a(f"v_rcp_f32 v{T+4}, v{T+3}")
    for i in range(8):
        a(f"v_sub_f32 v{F+2*i}, v{F+2*i}, v{T}")
        a(f"v_sub_f32 v{F+2*i+1}, v{F+2*i+1}, v{T}")
        a(f"v_cvt_pk_bf16_f32 v{X+i}, v{F+2*i}, v{F+2*i+1}")
        a(f"v_lshlrev_b32 v{F+2*i}, 16, v{X+i}")
        a(f"v_and_b32 v{F+2*i+1}, 0xffff0000, v{X+i}")
        for j in (0, 1):
            f = F+2*i+j
            a(f"v_mul_f32 v{T+5+j}, v{f}, v{T+4}")
            a(f"v_fma_f32 v{f}, -v{T+5+j}, v{T+3}, v{f}")
            a(f"v_fma_f32 v{T+5+j}, v{f}, v{T+4}, v{T+5+j}")
        a(f"v_cvt_pk_bf16_f32 v{X+i}, v{T+5}, v{T+6}")
    a(f"s_mul_i32 s{st}, s{s_row}, {XN_STR}")
    a(f"buffer_store_dwordx4 {vr(X,4)}, v{L}, {sr(srd_xn,4)}, s{st} offen {store_flags}")
    a(f"buffer_store_dwordx4 {vr(X+4,4)}, v{L}, {sr(srd_xn,4)}, s{st} offen offset:1024 {store_flags}")

def emit_ln_kernel(a, name):
    kernel_header(a, name)
    a("s_cmp_ge_u32 s2, 512"); a(f"s_cbranch_scc1 {name}_end")
    a(f"s_load_dwordx2 s[4:5], s[0:1], {KA_X}")
    a(f"s_load_dwordx2 s[6:7], s[0:1], {KA_WS}")
    a("v_lshrrev_b32 v1, 6, v0")
    a("v_and_b32 v2, 63, v0")
    a("v_readfirstlane_b32 s3, v1")
    a("v_lshlrev_b32 v2, 4, v2")
    a("s_waitcnt lgkmcnt(0)")
    load_srd(a, 8, 4, 0, S*DM*2)
    load_srd(a, 12, 6, XN_OFF, S*XN_STR)
    a("s_lshl_b32 s16, s2, 2"); a("s_add_u32 s16, s16, s3")
    emit_ln_row(a, 8, 12, 16, 2)
    a.label(f"{name}_end")
    a("s_endpgm")

NPOIS = (CH_END - CH_BASE)//65536 - 1
PRE_GRID = 512 + 64 + NPOIS + 1
def emit_pre_kernel(a, name):
    kernel_header(a, name)
    a(f"s_cmp_ge_u32 s2, {PRE_GRID}"); a(f"s_cbranch_scc1 {name}_end")
    a(f"s_load_dwordx4 s[4:7], s[0:1], {KA_X}")
    a(f"s_load_dwordx2 s[20:21], s[0:1], {KA_WS}")
    a("v_lshrrev_b32 v1, 6, v0")
    a("v_and_b32 v2, 63, v0")
    a("v_readfirstlane_b32 s3, v1")
    a("v_lshlrev_b32 v2, 4, v2")
    a("s_waitcnt lgkmcnt(0)")
    a(f"s_cmp_ge_u32 s2, 576"); a(f"s_cbranch_scc1 {name}_fill")
    a(f"s_cmp_ge_u32 s2, 512"); a(f"s_cbranch_scc1 {name}_mem")
    load_srd(a, 8, 4, 0, S*DM*2)
    load_srd(a, 12, 20, XN_OFF, S*XN_STR)
    a("s_lshl_b32 s16, s2, 2"); a("s_add_u32 s16, s16, s3")
    emit_ln_row(a, 8, 12, 16, 2)
    a("s_endpgm")
    a.label(f"{name}_mem")
    load_srd(a, 8, 6, 0, 8*DM*2)
    load_srd(a, 12, 20, CH_MEM, 65536)
    a("s_sub_u32 s16, s2, 512"); a("s_and_b32 s17, s16, 15"); a("s_lshl_b32 s17, s17, 7")
    a("v_bfe_u32 v1, v0, 2, 3"); a("v_lshlrev_b32 v1, 11, v1")
    a("v_lshrrev_b32 v2, 6, v0"); a("v_lshl_add_u32 v1, v2, 5, v1")
    a("v_and_b32 v2, 3, v0"); a("v_lshl_add_u32 v1, v2, 3, v1")
    a("v_bfe_u32 v2, v0, 5, 1"); a("v_lshl_add_u32 v1, v2, 2, v1")
    a("buffer_load_dword v3, v1, s[8:11], s17 offen")
    a("v_lshlrev_b32 v2, 2, v0"); a("s_lshl_b32 s16, s16, 10")
    a("s_waitcnt vmcnt(0)")
    a("buffer_store_dword v3, v2, s[12:15], s16 offen")
    a("s_endpgm")
    a.label(f"{name}_fill")
    load_srd(a, 12, 20, 0, WS_SIZE)
    a("s_sub_u32 s16, s2, 576"); a(f"s_cmp_ge_u32 s16, {NCOPY*16}"); a("s_addc_u32 s16, s16, 0")
    a("s_lshl_b32 s16, s16, 16"); a(f"s_add_u32 s16, s16, {CH_BASE}")
    a(f"s_cmp_eq_u32 s2, {PRE_GRID-1}")
    a(f"s_cselect_b32 s16, {FLAGS}, s16"); a("s_cselect_b32 s17, 0, -1")
    for i in range(4): a(f"v_mov_b32 v{4+i}, s17")
    a("v_lshlrev_b32 v2, 4, v0")
    for i in range(16):
        a("buffer_store_dwordx4 v[4:7], v2, s[12:15], s16 offen")
        if i < 15: a("s_add_u32 s16, s16, 4096")
    a.label(f"{name}_end")
    a("s_endpgm")

def emit_ln_pair(a, srd_xn, s_row, L, X0, vb, store_flags, vm):
    streams = []
    for k in range(2):
        b = Asm()
        b(f"s_add_u32 s{s_row+1+2*k}, s{s_row}, {k}")
        b(f"v_mov_b32 v{vb+52*k}, v{L}")
        emit_ln_row(b, None, srd_xn, s_row+1+2*k, vb+52*k, store_flags, preloaded=X0+8*k, vm=vm)
        streams.append([x for x in b.lines if x.strip()])
    for x, y in zip(*streams):
        if "s_nop 1" in x: a.raw("    s_nop 0"); continue
        a.raw(x); a.raw(y)
```

```python
from common import *
from ln import *
from gemm import *
from att import att_item
import chain, gemm
from chain import role_A, role_VR, assign_roles, poll_tail, S_WS

LDS_SCR = 156*1024
S_PH, S_CTR, S_B, S_ITEM = 96, 97, 98, 99
S_PRE, S_POFF, S_PVAL = 39, 68, 69
S_FL = 92
PROFW = False
TSW_OFF = 216*MB

BATCH = {"S0": [("KS",0,0,4)], "S1": [("KS",0,4,4)], "S2": [("KS",0,8,4)], "S3": [("KS",0,12,4)], "K1": [("K1",0,0,4)], "KV1a": [("KV",1,0,4)], "KV1b": [("KV",1,4,4)], "KV2a": [("KV",2,0,4)], "KV2b": [("KV",2,4,4)],
         "KV3a": [("KV",3,0,4)], "KV3b": [("KV",3,4,4)], "Q0": [("Q",0,0,4)], "Q1": [("Q",1,0,4)], "Q2": [("Q",2,0,4)], "Q3": [("Q",3,0,4)],
         "G1": [("GU",0,0,4)], "G2": [("GU",0,4,3),("GU",1,0,1)], "G3": [("GU",1,1,4)], "G4": [("GU",1,5,2),("GU",2,0,2)],
         "G5": [("GU",2,2,4)], "G6": [("GU",2,6,1),("GU",3,0,3)], "G7": [("GU",3,3,4)],
         "DNa": [("DN",0,0,4)], "DNb": [("DN",0,4,4)], "W2x": [("W2",0,0,4)], "W1x": [("W1",0,8,4)], "WR": [("WR",0,0,4)], "WRa": [("WR",0,0,2),("W1",0,8,2)], "WRb": [("WR",0,2,2),("W1",0,10,2)], "": [("QA",0,0,4)]}
LISTS = [['G7', 'KV2b', 'G1', 'KV3a', 'WRa'], ['KV1a', 'G4', 'G3', 'Q3', 'W2x'], ['KV2a', 'G5', 'KV3b', 'DNb', 'WRb'], ['KV1b', 'G6', 'G2', 'Q2', 'DNa']]
SMALL = ['K1', 'Q0', 'Q1']
def q1_list():
    out = []
    LL = [[f'S{i}'] + l for i, l in enumerate(LISTS)]
    for r in range(max(map(len, LL))):
        for l in LL: out += BATCH[l[r] if r < len(l) else ""]
    for b in SMALL: out += BATCH[b]
    return out
NBLK = 12
WRPOS = 44
NQA = 32 + NBLK*16 + (64-4*NBLK)*8
NROT = 4

def load_ptrs(a):
    a("s_load_dwordx8 s[40:47], s[0:1], 0")
    a("s_load_dwordx4 s[48:51], s[0:1], 32")
    a("s_load_dwordx8 s[56:63], s[0:1], 64")
    a("s_load_dwordx4 s[64:67], s[0:1], 96")

def atomic_ret(a, vdst, s_off, val):
    a(f"v_mov_b32 v{vdst}, {val}")
    a("s_mov_b64 exec, 1")
    a(f"buffer_atomic_add v{vdst}, off, {sr(S_FL,4)}, s{s_off} sc0 sc1")
    a("s_mov_b64 exec, -1")
    a("s_waitcnt vmcnt(0)")

def signal(a, s_off, val, srd=S_FL, vtmp=4):
    a(f"v_mov_b32 v{vtmp}, {val}")
    a("s_mov_b64 exec, 1")
    a(f"buffer_atomic_add v{vtmp}, off, {sr(srd,4)}, s{s_off} sc1")
    a("s_mov_b64 exec, -1")

def wait_flags(a, voff_setup, s_base, mask, target, abort, nlanes, vd=4, vo=5, sleep=8):
    Lw, Lp = a.newlabel("Wf"), a.newlabel("Wp")
    a(f"s_cmp_lg_u32 s{S_WAVE}, 0"); a(f"s_cbranch_scc1 {Lw}")
    voff_setup()
    a("s_mov_b32 s30, 0"); a(f"s_mov_b32 s21, {target:#x}")
    a.label(Lp)
    a(f"buffer_load_dword v{vd}, v{vo}, {sr(S_FL,4)}, s{s_base} offen sc1")
    a("s_waitcnt vmcnt(0)")
    if mask != 0xffffffff: a(f"v_and_b32 v{vd}, {mask:#x}, v{vd}")
    a(f"v_cmp_ne_u32 vcc, s21, v{vd}")
    a(f"s_cbranch_vccz {Lw}")
    if sleep: a(f"s_sleep {sleep}")
    poll_tail(a, Lp, abort)
    a.label(Lw)
    a("s_barrier")

def finish(a, s_off, val):
    a("s_waitcnt vmcnt(0)")
    a("s_barrier")
    L = a.newlabel("Fin")
    a(f"s_cmp_lg_u32 s{S_WAVE}, 0"); a(f"s_cbranch_scc1 {L}")
    signal(a, s_off, val)
    a.label(L)

def wstamp(a, i):
    if PROFW: a(f"s_memrealtime s[{70+2*i}:{71+2*i}]")

def xstamp(a, i):
    r = [4,6,52,54,82][i]
    if PROFW: a(f"s_memrealtime s[{r}:{r+1}]")

def wor_item(a, END):
    L = V_LANE; W = S_WAVE
    load_srd(a, S_SRDW, 50, 0, 4096*DM*2)
    a("s_and_b32 s36, s37, 1"); a("s_lshr_b32 s34, s37, 1")
    a(f"v_lshrrev_b32 v2, 5, v{L}"); a("v_lshlrev_b32 v2, 4, v2")
    a(f"v_bfe_u32 v3, v{L}, 3, 2"); a("v_add_u32 v2, v2, v3"); a("v_lshlrev_b32 v2, 11, v2")
    a(f"v_and_b32 v3, 7, v{L}"); a("v_lshl_add_u32 v2, v3, 4, v2")
    a(f"s_lshl_b32 s27, s{W}, 15")
    a(f"v_lshrrev_b32 v4, 5, v{L}"); a(f"v_bfe_u32 v5, v{L}, 2, 2"); a("v_lshl_add_u32 v4, v4, 3, v5"); a("v_lshlrev_b32 v4, 7, v4")
    a(f"v_bfe_u32 v5, v{L}, 4, 1"); a("v_lshl_add_u32 v4, v5, 5, v4"); a(f"v_and_b32 v3, 3, v{L}"); a("v_lshl_add_u32 v4, v3, 3, v4"); a("v_add_u32 v4, s27, v4")
    a(f"s_lshl_b32 s22, s{W}, 20"); a("s_lshl_b32 s23, s36, 22"); a("s_add_u32 s22, s22, s23"); a("s_lshl_b32 s23, s34, 7"); a("s_add_u32 s22, s22, s23")
    for rnd_ in range(2):
        for j in range(32):
            a(f"s_add_u32 m0, s27, {1024*j}"); a("s_nop 0")
            a(f"buffer_load_dwordx4 v2, {sr(S_SRDW,4)}, s22 offen lds")
            a(f"s_add_u32 s22, s22, {(4 if (j & 3) < 3 else 20)*2048}")
        a("s_waitcnt vmcnt(0)")
        for ks in range(16):
            for t in range(2):
                for q in range(2):
                    a(f"ds_read_b64_tr_b16 {ar(((rnd_*16+ks)*2+t)*4+2*q,2)}, v4 offset:{(16*ks+4*q)*128+64*t}")
            if ks % 2 == 1: a("s_waitcnt lgkmcnt(0)")
    a(f"s_mov_b32 s32, {FL_EX}")
    wait_flags(a, lambda: a("v_mov_b32 v15, 0"), 32, 0xffffffff, 32, END, 1, 14, 15)
    load_srd(a, S_SRDX, 66, OL_OFF, 16*MB)
    load_srd(a, 84, 62, 0, S*DM*2)
    load_srd(a, S_SRDW, 40, 0, S*DM*2)
    VX0, VO, VB, VW, VR, VE, VP = 64, 3, 6, 7, 8, 10, 11
    a("s_lshl_b32 s37, s34, 1"); a("s_add_u32 s37, s37, s36")
    a(f"v_bfe_u32 v10, v{L}, 2, 3"); a(f"v_and_b32 v11, 3, v{L}"); a(f"v_lshrrev_b32 v12, 5, v{L}")
    a(f"v_and_b32 v13, 31, v{L}"); a(f"v_lshlrev_b32 v{VO}, 11, v13"); a(f"v_lshl_add_u32 v{VO}, v12, 3, v{VO}")
    a("s_lshl_b32 s22, s37, 6"); a(f"s_lshl_b32 s23, s{W}, 4"); a("s_add_u32 s22, s22, s23"); a(f"v_add_u32 v{VO}, s22, v{VO}")
    a(f"v_lshlrev_b32 v{VB}, 13, v10"); a(f"v_lshl_add_u32 v{VB}, v11, 5, v{VB}"); a(f"v_lshl_add_u32 v{VB}, v12, 3, v{VB}")
    a("s_lshl_b32 s22, s37, 8"); a(f"s_lshr_b32 s23, s{W}, 1"); a("s_lshl_b32 s23, s23, 7"); a("s_add_u32 s22, s22, s23")
    a(f"s_and_b32 s23, s{W}, 1"); a("s_lshl_b32 s23, s23, 4"); a("s_add_u32 s22, s22, s23"); a(f"s_add_u32 s22, s22, {BP_OFF}")
    a(f"v_add_u32 v{VB}, s22, v{VB}")
    a(f"v_lshlrev_b32 v13, 4, v{L}")
    a(f"s_lshl_b32 s22, s{W}, 15"); a("s_lshl_b32 s23, s36, 17"); a("s_add_u32 s22, s22, s23"); a(f"v_add_u32 v{VX0}, s22, v13")
    for i in range(1, 8): a(f"v_add_u32 v{VX0+i}, {4096*i}, v{VX0}")
    a(f"s_lshl_b32 s22, s{W}, 13"); a(f"v_add_u32 v{VW}, s22, v13")
    a(f"s_lshl_b32 s22, s{W}, 10"); a("s_lshl_b32 s23, s36, 12"); a("s_add_u32 s23, s23, s22"); a(f"v_add_u32 v{VR}, s23, v13")
    a("s_lshl_b32 s23, s37, 12"); a("s_add_u32 s22, s22, s23"); a(f"s_add_u32 s22, s22, {EX_OFF - 4*NBLK*131072}")
    a(f"v_add_u32 v{VE}, s22, v13"); a(f"v_xor_b32 v{VP}, 4096, v{VE}")
    a(f"s_mov_b32 s38, {4*NBLK}"); a("s_mov_b32 s35, 0")
    a(f"v_mov_b32 v9, {LDS_SCR+64}")
    wstamp(a, 1)
    ACC = 16; XR = 128; RD = 80
    a.label("L_WORseg")
    Ld = a.newlabel("Wd")
    a("s_and_b32 s32, s38, 7"); a(f"s_cmp_eq_u32 s38, {4*NBLK}"); a("s_cselect_b32 s32, 0, s32"); a("s_cmp_lg_u32 s32, 0"); a(f"s_cbranch_scc1 {Ld}")
    a("s_lshr_b32 s32, s38, 3"); a("s_lshl_b32 s32, s32, 3"); a("s_lshr_b32 s33, s37, 2"); a("s_add_u32 s32, s32, s33")
    a("s_lshl_b32 s32, s32, 6"); a(f"s_add_u32 s32, s32, {FL_DN}")
    wait_flags(a, lambda: a("v_mov_b32 v15, 0"), 32, 0xffffffff, 1, END, 1, 14, 15)
    a.label(Ld)
    a("s_lshl_b32 s33, s38, 16")
    a(f"s_sub_u32 s32, s38, {4*NBLK}"); a("s_lshl_b32 s32, s32, 7"); a("s_lshl_b32 s34, s36, 6"); a("s_add_u32 s32, s32, s34"); a(f"s_add_u32 s32, s32, {FL_ATS}")
    a("s_lshl_b32 s34, s38, 18"); a("s_lshl_b32 s26, s38, 17")
    Lr = a.newlabel("Wr")
    a("s_cmp_eq_u32 s35, 16"); a(f"s_cbranch_scc1 {Lr}")
    wait_flags(a, lambda: a("v_mov_b32 v15, 0"), 32, 0xffffffff, 16, END, 1, 14, 15, 1)
    a.label(Lr)
    a("s_add_u32 s32, s32, 128")
    wstamp(a, 2)
    a(f"s_bfe_u32 s22, s37, {1 | (2 << 16):#x}")
    for e in range(1, NROT): a(f"s_cmp_eq_u32 s22, {e}"); a(f"s_cbranch_scc1 L_WORe{e}")
    for e in range(NROT):
        a.label(f"L_WORe{e}")
        order = [(32//NROT*e + i) % 32 for i in range(32)]
        WN = 8
        lds = [f"buffer_load_dwordx4 {vr(XR+ks*4,4)}, v{VX0+ks//4}, {sr(S_SRDX,4)}, s34 offen offset:{(ks%4)*1024} sc1" for ks in order]
        lds += [f"buffer_load_dwordx2 v[48:49], v{VO}, {sr(S_SRDW,4)}, s33 offen", f"buffer_load_dwordx2 v[50:51], v{VB}, {sr(S_FL,4)}, s33 offen sc1",
                f"buffer_load_dword v14, off, {sr(S_FL,4)}, s32 sc1"]
        for x in lds[:WN]: a(x)
        n = WN
        for i, ks in enumerate(order):
            a(f"s_waitcnt vmcnt({n-1-i})")
            if i == 0: xstamp(a, 0)
            for t in range(2):
                a(f"v_mfma_f32_32x32x16_bf16 {vr(ACC+16*t,16)}, {ar((ks*2+t)*4,4)}, {vr(XR+ks*4,4)}, {'0' if i == 0 else vr(ACC+16*t,16)}")
                if n < len(lds) and (t == 0 or i < 8): a(lds[n]); n += 1
        if e < NROT-1: a("s_branch L_WORj")
    a.label("L_WORj")
    xstamp(a, 1)
    a("s_nop 10")
    for q in range(8): a(f"ds_write_b128 v{VW}, {vr(ACC+4*q,4)} offset:{1024*q}")
    a("s_waitcnt vmcnt(0)")
    xstamp(a, 2)
    Lz = a.newlabel("Wz")
    a(f"s_cmp_lg_u32 s{W}, 0"); a(f"s_cbranch_scc1 {Lz}")
    a("ds_write_b32 v9, v14")
    a.label(Lz)
    a(f"v_xor_b32 v13, 4096, v{VR}")
    a("s_waitcnt lgkmcnt(0)")
    a("s_barrier")
    for i in range(4): a(f"ds_read_b128 {vr(RD+16+4*i,4)}, v13 offset:{8192*i}")
    for i in range(4): a(f"ds_read_b128 {vr(RD+4*i,4)}, v{VR} offset:{8192*i}")
    a("ds_read_b32 v14, v9")
    a(f"v_xor_b32 v{VW}, 32768, v{VW}"); a(f"v_xor_b32 v{VR}, 32768, v{VR}"); a("v_xor_b32 v9, 4, v9")
    def sum4(b):
        for k in (0, 2):
            a(f"v_pk_add_f32 {vr(b+k,2)}, {vr(b+k,2)}, {vr(b+4+k,2)}"); a(f"v_pk_add_f32 {vr(b+8+k,2)}, {vr(b+8+k,2)}, {vr(b+12+k,2)}")
        for k in (0, 2): a(f"v_pk_add_f32 {vr(b+k,2)}, {vr(b+k,2)}, {vr(b+8+k,2)}")
    a("s_waitcnt lgkmcnt(5)")
    sum4(RD+16)
    xstamp(a, 3)
    a(f"buffer_store_dwordx4 {vr(RD+16,4)}, v{VE}, {sr(S_FL,4)}, s26 offen sc1")
    a("s_waitcnt lgkmcnt(0)")
    sum4(RD)
    a("v_readfirstlane_b32 s35, v14")
    a("v_lshlrev_b32 v52, 16, v48"); a("v_and_b32 v53, 0xffff0000, v48"); a("v_lshlrev_b32 v54, 16, v49"); a("v_and_b32 v55, 0xffff0000, v49")
    a("v_lshlrev_b32 v56, 16, v50"); a("v_and_b32 v57, 0xffff0000, v50"); a("v_lshlrev_b32 v58, 16, v51"); a("v_and_b32 v59, 0xffff0000, v51")
    a("s_mov_b32 s30, 0")
    a("s_sleep 4")
    Lp, Lg = a.newlabel("Wp"), a.newlabel("Wg")
    a.label(Lp)
    a(f"buffer_load_dwordx4 {vr(RD+8,4)}, v{VP}, {sr(S_FL,4)}, s26 offen sc1")
    a("s_waitcnt vmcnt(0)")
    a(f"v_max3_u32 v15, v{RD+8}, v{RD+9}, v{RD+10}"); a(f"v_max_u32 v15, v15, v{RD+11}")
    a("v_cmp_eq_u32 vcc, -1, v15")
    a(f"s_cbranch_vccz {Lg}")
    poll_tail(a, Lp, END)
    a.label(Lg)
    xstamp(a, 4)
    for k in (0, 2): a(f"v_pk_add_f32 {vr(RD+k,2)}, {vr(RD+k,2)}, {vr(RD+8+k,2)}")
    def rnd():
        a(f"v_cvt_pk_bf16_f32 v{RD+4}, v{RD}, v{RD+1}"); a(f"v_cvt_pk_bf16_f32 v{RD+5}, v{RD+2}, v{RD+3}")
    def unp():
        a(f"v_lshlrev_b32 v{RD}, 16, v{RD+4}"); a(f"v_and_b32 v{RD+1}, 0xffff0000, v{RD+4}")
        a(f"v_lshlrev_b32 v{RD+2}, 16, v{RD+5}"); a(f"v_and_b32 v{RD+3}, 0xffff0000, v{RD+5}")
    rnd(); unp()
    a(f"v_pk_add_f32 {vr(RD,2)}, {vr(RD,2)}, v[52:53]"); a(f"v_pk_add_f32 {vr(RD+2,2)}, {vr(RD+2,2)}, v[54:55]")
    rnd(); unp()
    a(f"v_pk_add_f32 {vr(RD,2)}, {vr(RD,2)}, v[56:57]"); a(f"v_pk_add_f32 {vr(RD+2,2)}, {vr(RD+2,2)}, v[58:59]")
    rnd()
    a(f"buffer_store_dwordx2 {vr(RD+4,2)}, v{VO}, s[84:87], s33 offen")
    a("s_add_u32 s38, s38, 1"); a("s_cmp_lt_u32 s38, 64"); a("s_cbranch_scc1 L_WORseg")

def setup_phase(a):
    L = V_LANE; W = S_WAVE
    load_srd(a, 20, 64, 0, 256)
    Lk = a.newlabel("Tk")
    a(f"s_or_b32 s24, s2, s{W}"); a("s_cmp_lg_u32 s24, 0"); a(f"s_cbranch_scc1 {Lk}")
    a("s_memrealtime s[24:25]"); a("s_waitcnt lgkmcnt(0)")
    a("s_lshl_b32 s24, s24, 3"); a("s_bitset1_b32 s24, 31")
    a("v_mov_b32 v2, s24")
    a("buffer_store_dword v2, off, s[20:23], 0 sc1")
    a.label(Lk)
    load_srd(a, 24, 40, 0, S*DM*2)
    load_srd(a, 12, 66, XN_OFF, S*XN_STR)
    a(f"v_lshlrev_b32 v2, 4, v{L}")
    a("s_lshl_b32 s16, s2, 3"); a(f"s_lshl_b32 s17, s{W}, 1"); a("s_add_u32 s34, s16, s17"); a("s_lshl_b32 s17, s34, 11")
    for k in range(4): a(f"buffer_load_dwordx4 {vr(64+4*k,4)}, v2, s[24:27], s17 offen offset:{1024*k}")
    load_srd(a, 28, 42, 0, 8*DM*2)
    a("s_and_b32 s17, s2, 15"); a("s_lshl_b32 s17, s17, 7"); a(f"s_lshl_b32 s18, s{W}, 5"); a("s_add_u32 s17, s17, s18")
    a(f"v_bfe_u32 v8, v{L}, 2, 3"); a("v_lshlrev_b32 v8, 11, v8")
    a(f"v_and_b32 v9, 3, v{L}"); a("v_lshl_add_u32 v8, v9, 3, v8")
    a(f"v_lshrrev_b32 v9, 5, v{L}"); a("v_lshl_add_u32 v8, v9, 2, v8")
    a("buffer_load_dword v10, v8, s[28:31], s17 offen")
    a("buffer_load_dword v60, off, s[20:23], 0 sc1")
    xstamp(a, 2)
    emit_ln_pair(a, 12, 34, 2, 64, 96, "sc1", 2)
    xstamp(a, 3)
    tot = CH_END - CH_BASE - 65536
    assert tot % 1024 == 0 and tot//1024 <= 256*11
    for i in range(4): a(f"v_mov_b32 v{4+i}, -1")
    a("s_mul_i32 s16, s2, 11"); a(f"s_mul_i32 s17, s{W}, 3"); a("s_add_u32 s16, s16, s17")
    for i in range(3):
        Ls = a.newlabel("Ps")
        if i == 2: a(f"s_cmp_eq_u32 s{W}, 3"); a(f"s_cbranch_scc1 {Ls}")
        a(f"s_cmp_ge_u32 s16, {tot//1024}"); a(f"s_cbranch_scc1 {Ls}")
        a(f"s_cmp_ge_u32 s16, {(CH_MEM-CH_BASE)//1024}"); a("s_cselect_b32 s17, 64, 0"); a("s_add_u32 s17, s17, s16")
        a("s_lshl_b32 s17, s17, 10"); a(f"s_add_u32 s17, s17, {CH_BASE}")
        a(f"buffer_store_dwordx4 v[4:7], v2, {sr(S_WS,4)}, s17 offen sc1")
        a.label(Ls)
        a("s_add_u32 s16, s16, 1")
    Lz, Lm = a.newlabel("Pz"), a.newlabel("Pm")
    a(f"v_lshlrev_b32 v9, 2, v{L}")
    a(f"s_cmp_lg_u32 s{W}, 3"); a(f"s_cbranch_scc1 {Lz}")
    a("v_mov_b32 v8, 0"); a("s_lshl_b32 s17, s2, 8"); a(f"s_add_u32 s17, s17, {FLAGS}")
    a(f"buffer_store_dword v8, v9, {sr(S_WS,4)}, s17 offen sc1")
    a.label(Lz)
    a("s_cmp_ge_u32 s2, 64"); a(f"s_cbranch_scc1 {Lm}")
    a("s_lshl_b32 s16, s2, 10"); a(f"s_lshl_b32 s18, s{W}, 8"); a("s_add_u32 s16, s16, s18"); a(f"s_add_u32 s16, s16, {CH_MEM}")
    a("s_waitcnt vmcnt(4)")
    a(f"buffer_store_dword v10, v9, {sr(S_WS,4)}, s16 offen sc1")
    a.label(Lm)

def emit_mega(a, name, force_slow=False):
    END = "L_end"
    Q1 = q1_list(); NSM = 32*len(SMALL); NQ1 = 8*sum(x[3] for x in Q1) - NSM
    kernel_header(a, name)
    a(f"s_cmp_ge_u32 s2, 256"); a(f"s_cbranch_scc1 {END}")
    xstamp(a, 0)
    load_ptrs(a)
    a("v_lshrrev_b32 v2, 6, v0")
    a(f"v_and_b32 v{V_LANE}, 63, v0")
    a(f"v_readfirstlane_b32 s{S_WAVE}, v2")
    a("s_waitcnt lgkmcnt(0)")
    load_srd(a, S_WS, 66, 0, WS_SIZE)
    setup_phase(a)
    chain.STAMP = lambda a: xstamp(a, 4)
    assign_roles(a, END, LDS_SCR)
    xstamp(a, 1)
    a(f"s_mov_b32 s35, s{chain.S_MODE}")
    if force_slow: a(f"s_mov_b32 s{chain.S_MODE}, 1")
    a(f"s_mov_b32 s{S_PH}, 0")
    a(f"s_sub_u32 s{S_B}, s31, 4"); a("s_cmp_lt_u32 s31, 4"); a(f"s_cselect_b32 s{S_B}, 5, s{S_B}")
    a(f"s_mov_b32 s{S_PH}, 1")

    Lf = a.newlabel("Cl")
    a(f"s_cmp_eq_u32 s{chain.S_MODE}, 0"); a(f"s_cbranch_scc1 {Lf}")
    a("s_cmp_lt_u32 s33, 128"); a(f"s_cselect_b32 s{S_B}, 5, 4")
    a.label(Lf)
    a(f"s_lshl_b32 s{S_CTR}, s{S_B}, 7"); a(f"s_add_u32 s{S_CTR}, s{S_CTR}, {FL_Q1L}")
    a("s_mov_b32 s100, 0")
    a("s_cmp_eq_u32 s29, 0"); a(f"s_cbranch_scc1 L_worker")
    a("s_setprio 3")
    a(f"s_cmp_ge_u32 s{chain.S_R}, 8"); a(f"s_cbranch_scc1 L_vr")
    def kv_wait(a):
        Ls, Lp = a.newlabel("Kw"), a.newlabel("Kp")
        Lc = a.newlabel("Kc")
        a(f"s_and_b32 s20, s{chain.S_STEP}, 7"); a(f"s_cbranch_scc1 {Ls}")
        a.label(Lc)
        a(f"s_lshr_b32 s20, s{chain.S_STEP}, 3"); a("s_lshl_b32 s20, s20, 10"); a("s_lshr_b32 s21, s26, 1"); a("s_lshl_b32 s21, s21, 6"); a("s_add_u32 s20, s20, s21")
        a(f"s_add_u32 s20, s20, {FL_QKV}"); a("s_mov_b32 s30, 0")
        a("s_mov_b32 s21, 0xffff"); a("s_movk_i32 s22, 0x404")
        a.label(Lp)
        a(f"buffer_load_dword v15, off, {sr(S_WS,4)}, s20 sc1")
        a("s_waitcnt vmcnt(0)")
        a("v_and_b32 v15, s21, v15")
        a("v_cmp_ne_u32 vcc, s22, v15")
        a(f"s_cbranch_vccz {Ls}")
        a("s_sleep 4")
        poll_tail(a, Lp, END)
        a.label(Ls)
    def step_addr(delta):
        a(f"s_lshl_b32 s20, s{chain.S_STEP}, 2"); a(f"s_add_u32 s20, s20, s{chain.S_X}"); a("s_lshl_b32 s20, s20, 7")
        a(f"s_add_u32 s20, s20, {FL_STEP + delta*512}")
    def step_done(a, kind):
        L = a.newlabel("Sd")
        if kind in ("A", "Alast"):
            a("s_waitcnt vmcnt(0)"); a("s_barrier")
            a(f"s_cmp_lg_u32 s{S_WAVE}, 0"); a(f"s_cbranch_scc1 {L}")
            step_addr(0); signal(a, 20, 1, S_WS, 60)
        elif kind == "V3":
            step_addr(0); signal(a, 20, 1, S_WS, 60)
        elif kind == "Vlast":
            a("s_waitcnt vmcnt(0)"); a("s_barrier")
            a(f"s_cmp_lg_u32 s{S_WAVE}, 0"); a(f"s_cbranch_scc1 {L}")
            step_addr(0); signal(a, 20, 1, S_WS, 60)
        a.label(L)
    role_A(a, END, kv_wait, step_done)
    a("s_branch L_retire")
    a.label("L_vr")
    role_VR(a, END, step_done)
    a.label("L_retire")
    a("s_setprio 0")
    a(f"s_mov_b32 s{S_PH}, 2")
    load_ptrs(a)
    a(f"v_mbcnt_lo_u32_b32 v{V_LANE}, -1, 0"); a(f"v_mbcnt_hi_u32_b32 v{V_LANE}, -1, v{V_LANE}")
    a("s_waitcnt vmcnt(0) lgkmcnt(0)")
    a("s_barrier")
    a.label("L_worker")
    load_srd(a, S_FL, 66, 0, WS_SIZE)
    a(f"s_mov_b32 s{S_PRE}, 0"); a(f"s_mov_b32 s{S_PVAL}, 0")
    def q1_index():
        L, L5 = a.newlabel("N"), a.newlabel("N")
        a(f"s_cmp_eq_u32 s{S_B}, 5"); a(f"s_cbranch_scc1 {L5}")
        a(f"s_cmp_eq_u32 s{S_B}, 4"); a(f"s_cbranch_scc1 {L}")
        a("s_lshr_b32 s22, s25, 5"); a("s_and_b32 s25, s25, 31"); a("s_lshl_b32 s22, s22, 2"); a(f"s_add_u32 s22, s22, s{S_B}")
        a("s_lshl_b32 s22, s22, 5"); a("s_add_u32 s25, s25, s22")
        a.label(L)
        a(f"s_cmp_lt_u32 s25, {NQ1}"); a(f"s_cselect_b32 s25, s25, {NSM}"); a(f"s_cbranch_scc1 {L5}_e")
        a.label(L5)
        a(f"s_add_u32 s25, s25, {NQ1}"); a(f"s_cmp_lt_u32 s25, {NQ1+NSM}")
        a.label(f"{L5}_e")
    def publish_item():
        a("v_mov_b32 v14, s25"); a(f"v_mov_b32 v15, {LDS_SCR}")
        a("ds_write_b32 v15, v14")
    def flush():
        L, L2 = a.newlabel("Fl"), a.newlabel("Fl")
        a(f"s_cmp_eq_u32 s{S_PVAL}, 0"); a(f"s_cbranch_scc1 {L}")
        finish(a, S_POFF, f"s{S_PVAL}")
        a(f"s_mov_b32 s{S_PVAL}, 0")
        a.label(L)
    def hook_first():
        L = a.newlabel("Hf")
        a(f"s_cmp_eq_u32 s{S_PVAL}, 0"); a(f"s_cbranch_scc1 {L}")
        a(f"s_mov_b32 s21, s{S_PVAL}"); a(f"s_mov_b32 s{S_PVAL}, 0")
        a(f"s_cmp_lg_u32 s{S_WAVE}, 0"); a(f"s_cbranch_scc1 {L}")
        signal(a, S_POFF, "s21", vtmp=14)
        a.label(L)
    def hook_tail():
        L = a.newlabel("Ht")
        a(f"s_cmp_lg_u32 s{S_WAVE}, 0"); a(f"s_cbranch_scc1 {L}")
        a("v_mov_b32 v14, 1")
        a("s_mov_b64 exec, 1")
        a(f"buffer_atomic_add v14, off, {sr(S_FL,4)}, s{S_CTR} sc0 sc1")
        a("s_mov_b64 exec, -1")
        a.label(L)
    def after_main():
        L = a.newlabel("Am")
        wstamp(a, 2)
        a(f"s_cmp_lg_u32 s{S_WAVE}, 0"); a(f"s_cbranch_scc1 {L}")
        a("s_waitcnt vmcnt(0)")
        a("v_readfirstlane_b32 s25, v14")
        a("s_nop 3")
        q1_index()
        a(f"s_cselect_b32 s{S_PRE}, 1, 0"); a(f"s_cselect_b32 s{S_PH}, 1, 2")
        publish_item()
        a.label(L)
    HK = dict(hook_first=hook_first, hook_tail=hook_tail)
    a.label("L_next")
    wstamp(a, 0)
    Lb, Lpub, L1, L2 = [a.newlabel("N") for _ in range(4)]
    a(f"s_cmp_lg_u32 s{S_WAVE}, 0"); a(f"s_cbranch_scc1 {Lb}")
    a(f"s_cmp_lg_u32 s{S_PRE}, 0"); a(f"s_mov_b32 s{S_PRE}, 0"); a(f"s_cbranch_scc1 {Lb}")
    a(f"s_cmp_eq_u32 s{S_PH}, 2"); a(f"s_cbranch_scc1 {L2}")
    a.label(L1)
    atomic_ret(a, 4, S_CTR, 1)
    a("v_readfirstlane_b32 s25, v4")
    a("s_nop 3")
    q1_index()
    a(f"s_cbranch_scc1 {Lpub}")
    a(f"s_mov_b32 s{S_PH}, 2")
    a.label(L2)
    a(f"s_mov_b32 s20, {FL_Q2G}")
    atomic_ret(a, 4, 20, 1)
    a("v_readfirstlane_b32 s25, v4")
    a("s_nop 3")
    a("s_min_u32 s25, s25, 0xfff"); a("s_add_u32 s25, s25, 0x1000")
    a.label(Lpub)
    publish_item()
    a.label(Lb)
    a("s_waitcnt lgkmcnt(0)")
    a("s_barrier")
    a(f"v_mov_b32 v5, {LDS_SCR}")
    a("ds_read_b32 v4, v5")
    a("s_waitcnt lgkmcnt(0)")
    a(f"v_readfirstlane_b32 s{S_ITEM}, v4")
    a("s_nop 3")
    a(f"s_cmp_ge_u32 s{S_ITEM}, 0x1000"); a(f"s_cbranch_scc1 L_qa")
    a(f"s_lshr_b32 s20, s{S_ITEM}, 3"); a(f"s_and_b32 s21, s{S_ITEM}, 7")
    base = 0
    for typ, p, c0, n in Q1:
        Ln = a.newlabel("D")
        a(f"s_cmp_ge_u32 s20, {base+n}"); a(f"s_cbranch_scc1 {Ln}")
        a(f"s_sub_u32 s20, s20, {base-c0}") if base >= c0 else a(f"s_add_u32 s20, s20, {c0-base}")
        if typ in ("DN", "W2", "W1"): a("s_mov_b32 s36, s20"); a("s_mov_b32 s37, s21")
        elif typ == "WR": a("s_lshl_b32 s37, s20, 3"); a("s_add_u32 s37, s37, s21")
        elif typ == "KS":
            a("s_lshr_b32 s38, s20, 3"); a("s_add_u32 s38, s38, 1"); a("s_and_b32 s37, s20, 7"); a("s_lshl_b32 s37, s37, 1")
            a("s_lshr_b32 s22, s21, 2"); a("s_add_u32 s37, s37, s22"); a("s_and_b32 s36, s21, 3")
        elif typ == "QA": pass
        elif typ == "K1":
            a("s_and_b32 s38, s20, 1"); a("s_add_u32 s38, s38, 1"); a("s_lshr_b32 s37, s20, 1"); a("s_lshl_b32 s37, s37, 3")
            a("s_add_u32 s37, s37, s21"); a("s_mov_b32 s36, 1")
        else:
            a(f"s_mov_b32 s36, {2*p}")
            if typ == "KV": a("s_and_b32 s38, s20, 1"); a("s_add_u32 s38, s38, 1"); a("s_lshr_b32 s20, s20, 1")
            if typ == "Q": a("s_mov_b32 s38, 0")
        a(f"s_branch L_{dict(KV='QKV', Q='QKV', K1='QKV2').get(typ, typ)}")
        a.label(Ln)
        base += n
    a(f"s_branch {END}")
    a.label("L_QA")
    a(f"s_cmp_eq_u32 s{S_B}, 4"); a(f"s_cselect_b32 s{S_PH}, 1, 2")
    a("s_barrier")
    a("s_branch L_next")
    def coords():
        a("s_and_b32 s22, s21, 1"); a("s_add_u32 s36, s36, s22")
        a("s_lshr_b32 s21, s21, 1"); a("s_lshl_b32 s37, s20, 2"); a("s_add_u32 s37, s37, s21")
    def done():
        if PROFW:
            wstamp(a, 3)
            a("s_waitcnt lgkmcnt(0)")
            for i in range(4): a(f"v_writelane_b32 v4, s{70+2*i}, {i}")
            a(f"v_writelane_b32 v4, s{S_ITEM}, 4"); a(f"v_writelane_b32 v4, s{S_B}, 5")
            for i in range(5): a(f"v_writelane_b32 v4, s{[4,6,52,54,82][i]}, {8+i}")
            a("s_lshl_b32 s20, s2, 5"); a("s_add_u32 s20, s20, s100"); a("s_lshl_b32 s20, s20, 6"); a(f"s_add_u32 s20, s20, {TSW_OFF}")
            a(f"v_lshlrev_b32 v5, 2, v{V_LANE}")
            a("s_mov_b64 exec, 0xffff")
            a(f"buffer_store_dword v4, v5, {sr(S_FL,4)}, s20 offen")
            a("s_mov_b64 exec, -1")
            a("s_add_u32 s100, s100, 1"); a("s_min_u32 s100, s100, 31")
        a("s_branch L_next")
    a.label("L_QKV")
    coords()
    a.label("L_QKV2")
    wstamp(a, 1)
    load_srd(a, S_SRDX, 66, XN_OFF, S*XN_STR)
    a("s_cmp_eq_u32 s38, 1"); a("s_cselect_b32 s34, s46, s44"); a("s_cselect_b32 s35, s47, s45")
    a("s_cmp_eq_u32 s38, 2"); a("s_cselect_b32 s34, s48, s34"); a("s_cselect_b32 s35, s49, s35")
    load_srd(a, S_SRDW, 34, 0, DM*4096*2)
    gq = Gemm(a, "qk", 4, 4, 2, XN_STR, 8192, "head", xflags="sc1")
    gv = Gemm(a, "v", 4, 4, 2, XN_STR, 8192, "head", swap=True, xflags="sc1")
    gq.setup()
    a(f"s_mul_i32 s{S_OFFX}, s36, {256*XN_STR}"); a(f"s_lshl_b32 s{S_OFFW}, s37, 9")
    a("s_lshl_b32 s32, s36, 21"); a("s_lshl_b32 s33, s37, 14"); a("s_add_u32 s32, s32, s33")
    a("s_lshl_b32 s33, s38, 24"); a("s_add_u32 s32, s32, s33"); a(f"s_add_u32 s32, s32, {Q_OFF}")
    assert K_OFF == Q_OFF + 16*MB and VT_OFF == Q_OFF + 32*MB
    gq.prologue_dma()
    a("s_cmp_eq_u32 s38, 2"); a("s_cbranch_scc1 L_V")
    gq.main(16, dma_issued=True, **HK)
    after_main()
    gq.epi_qk(S_FL, 32, "sc1")
    a("s_branch L_QKVfin")
    a.label("L_V")
    gv.main(16, dma_issued=True, **HK)
    after_main()
    gv.epi_v(S_FL, 32, "sc1")
    a.label("L_QKVfin")
    a("s_lshl_b32 s32, s36, 10"); a("s_lshl_b32 s33, s37, 6"); a("s_add_u32 s32, s32, s33"); a(f"s_add_u32 s32, s32, {FL_QKV}")
    a("s_add_u32 s33, s38, 2"); a("s_cmp_ge_u32 s33, 3"); a("s_cselect_b32 s34, 3, 0"); a("s_sub_u32 s33, s33, s34")
    a("s_lshl_b32 s33, s33, 3"); a(f"s_lshl_b32 s{S_PVAL}, 4, s33"); a(f"s_mov_b32 s{S_POFF}, s32")
    done()
    a.label("L_KS")
    wstamp(a, 1)
    load_srd(a, S_SRDX, 66, XN_OFF, S*XN_STR)
    a("s_cmp_eq_u32 s38, 2"); a("s_cselect_b32 s34, s48, s46"); a("s_cselect_b32 s35, s49, s47")
    load_srd(a, S_SRDW, 34, 0, DM*4096*2)
    gq = Gemm(a, "ks", 1, 4, 3, XN_STR, 8192, "head", xflags="sc1")
    gv = Gemm(a, "vs", 1, 4, 3, XN_STR, 8192, "head", swap=True, xflags="sc1")
    gq.setup()
    a(f"s_mul_i32 s{S_OFFX}, s36, {64*XN_STR}"); a(f"s_lshl_b32 s{S_OFFW}, s37, 9")
    a("s_lshl_b32 s32, s36, 19"); a("s_lshl_b32 s33, s37, 14"); a("s_add_u32 s32, s32, s33")
    a("s_lshl_b32 s33, s38, 24"); a("s_add_u32 s32, s32, s33"); a(f"s_add_u32 s32, s32, {Q_OFF}")
    gq.prologue_dma()
    a("s_cmp_eq_u32 s38, 2"); a("s_cbranch_scc1 L_VS")
    gq.main(16, dma_issued=True, hook_tail=hook_tail)
    after_main()
    gq.epi_qk(S_FL, 32, "sc1")
    a("s_branch L_KSfin")
    a.label("L_VS")
    gv.main(16, dma_issued=True, hook_tail=hook_tail)
    after_main()
    gv.epi_v(S_FL, 32, "sc1")
    a.label("L_KSfin")
    a("s_lshl_b32 s32, s37, 6"); a(f"s_add_u32 s32, s32, {FL_QKV}")
    a("s_sub_u32 s33, s38, 1"); a("s_lshl_b32 s33, s33, 3"); a("s_lshl_b32 s33, 1, s33")
    finish(a, 32, "s33")
    done()
    a.label("L_GU")
    coords()
    wstamp(a, 1)
    g = Gemm(a, "gu", 4, 4, 2, XN_STR, DF*2, "gu", xflags="sc1")
    load_srd(a, S_SRDX, 66, XN_OFF, S*XN_STR)
    a(f"s_cmp_ge_u32 s{S_WAVE}, 2"); a("s_cselect_b32 s34, s58, s56"); a("s_cselect_b32 s35, s59, s57")
    load_srd(a, S_SRDW, 34, 0, DM*DF*2)
    g.setup()
    a(f"s_mul_i32 s{S_OFFX}, s36, {256*XN_STR}"); a(f"s_lshl_b32 s{S_OFFW}, s37, 8")
    g.main(16, **HK)
    after_main()
    a(f"s_mul_i32 s32, s36, {256*H_STR}"); a("s_lshl_b32 s33, s37, 10"); a("s_add_u32 s32, s32, s33"); a(f"s_add_u32 s32, s32, {H_OFF}")
    g.epi_gu(S_FL, 32, "sc1")
    a(f"s_lshl_b32 s{S_POFF}, s36, 7"); a(f"s_add_u32 s{S_POFF}, s{S_POFF}, {FL_GU}"); a(f"s_mov_b32 s{S_PVAL}, 1")
    done()
    a.label("L_DN")
    flush()
    a("s_lshl_b32 s32, s36, 7"); a(f"s_add_u32 s32, s32, {FL_GU}")
    wait_flags(a, lambda: a("v_mov_b32 v5, 0"), 32, 0xffffffff, 28, END, 1)
    wstamp(a, 1)
    g = Gemm(a, "dn", 4, 2, 3, H_STR, 2048, "plain", xflags="sc1", xr4=True)
    load_srd(a, S_SRDX, 66, H_OFF, S*H_STR)
    load_srd(a, S_SRDW, 60, 0, DF*DM*2)
    g.setup()
    a(f"s_mul_i32 s{S_OFFX}, s36, {256*H_STR}"); a(f"s_lshl_b32 s{S_OFFW}, s37, 8")
    g.main(56, hook_tail=hook_tail)
    after_main()
    load_srd(a, 28, 66, BP_OFF, S*DM*2)
    a("s_lshl_b32 s32, s36, 19"); a("s_lshl_b32 s33, s37, 8")
    g.epi_plain(28, 32, 33, "sc1")
    a("s_lshl_b32 s32, s36, 3"); a("s_add_u32 s32, s32, s37"); a("s_lshl_b32 s32, s32, 6"); a(f"s_add_u32 s{S_POFF}, s32, {FL_DN}")
    a(f"s_mov_b32 s{S_PVAL}, 1")
    done()
    for nm, MT, NST in (("W2", 4, 3), ("W1", 2, 4)):
        a.label(f"L_{nm}")
        flush()
        sh = 0 if MT == 4 else 1
        a(f"s_lshl_b32 s32, s36, {8-sh}"); a(f"s_add_u32 s32, s32, {FL_AT}")
        if MT == 4: wait_flags(a, lambda: (a(f"v_and_b32 v5, 1, v{V_LANE}"), a("v_lshlrev_b32 v5, 7, v5")), 32, 0xffffffff, 128, END, 2)
        else: wait_flags(a, lambda: a("v_mov_b32 v5, 0"), 32, 0xffffffff, 128, END, 1)
        wstamp(a, 1)
        g = Gemm(a, nm, MT, 2, NST, OA_STR, 2048, "plain", xflags="sc1", xr4=True, wperm=True)
        load_srd(a, S_SRDX, 66, OA_OFF, S*OA_STR)
        load_srd(a, S_SRDW, 50, 0, 4096*DM*2)
        g.setup()
        a(f"s_mul_i32 s{S_OFFX}, s36, {64*MT*OA_STR}"); a(f"s_lshl_b32 s{S_OFFW}, s37, 8")
        g.main(64, hook_tail=hook_tail)
        after_main()
        a(f"s_lshr_b32 s32, s36, {sh}"); a("s_lshl_b32 s32, s32, 3"); a("s_add_u32 s32, s32, s37"); a("s_lshl_b32 s32, s32, 6"); a(f"s_add_u32 s32, s32, {FL_DN}")
        wait_flags(a, lambda: a("v_mov_b32 v5, 0"), 32, 0xffffffff, 1, END, 1)
        load_srd(a, 28, 62, 0, S*DM*2)
        load_srd(a, S_SRDX, 40, 0, S*DM*2)
        load_srd(a, S_SRDW, 66, BP_OFF, S*DM*2)
        a(f"s_lshl_b32 s32, s36, {19-sh}"); a("s_lshl_b32 s33, s37, 8")
        g.epi_plain(28, 32, 33, "", final=(S_SRDX, S_SRDW, "sc1"))
        done()
    a.label("L_WR")
    flush()
    wor_item(a, END)
    done()
    a.label("L_qa")
    flush()
    a(f"s_sub_u32 s20, s{S_ITEM}, 0x1000")
    a(f"s_cmp_ge_u32 s20, {NQA}"); a(f"s_cbranch_scc1 {END}")
    Lq = a.newlabel("Px")
    a("s_cmp_ge_u32 s20, 32"); a(f"s_cbranch_scc1 {Lq}")
    for i in range(4): a(f"v_mov_b32 v{4+i}, -1")
    a(f"v_lshlrev_b32 v3, 4, v{V_LANE}"); a("s_lshl_b32 s21, s20, 16"); a(f"s_lshl_b32 s22, s{S_WAVE}, 14"); a("s_add_u32 s21, s21, s22"); a(f"s_add_u32 s21, s21, {EX_OFF}")
    for i in range(16):
        a(f"buffer_store_dwordx4 v[4:7], v3, {sr(S_FL,4)}, s21 offen offset:{(i%4)*1024} sc1")
        if i % 4 == 3: a("s_add_u32 s21, s21, 4096")
    a(f"s_mov_b32 s36, {FL_EX}")
    wstamp(a, 1); wstamp(a, 2)
    finish(a, 36, 1)
    done()
    a.label(Lq)
    a("s_sub_u32 s20, s20, 32")
    a(f"s_cmp_ge_u32 s20, {NBLK*16}"); a("s_cbranch_scc1 L_AT4")
    def attention(npair):
        sh = 0 if npair == 2 else 1
        a("s_lshr_b32 s32, s38, 3"); a("s_lshl_b32 s32, s32, 10"); a(f"s_lshr_b32 s34, s37, {sh}"); a("s_lshl_b32 s33, s34, 8")
        a("s_add_u32 s32, s32, s33"); a(f"s_add_u32 s32, s32, {FL_QKV}")
        wait_flags(a, lambda: (a(f"v_and_b32 v5, 3, v{V_LANE}"), a("v_lshlrev_b32 v5, 6, v5")), 32, 0xffffff, 0x40404, END, 4)
        a("s_lshl_b32 s32, s38, 2"); a("s_add_u32 s32, s32, s34"); a("s_lshl_b32 s32, s32, 7"); a(f"s_add_u32 s32, s32, {FL_STEP}")
        def w():
            wait_flags(a, lambda: a("v_mov_b32 v15, 0"), 32, 0xffffffff, 24, END, 1, 14, 15, 2)
            if PROFW: a("s_memrealtime s[84:85]")
        att_item(a, S_FL, 38, 37, "sc1", "sc1", npair, w, late=(npair == 1))
        if PROFW: a("s_waitcnt lgkmcnt(0)"); a("s_mov_b32 s72, s84"); a("s_mov_b32 s74, s84")
        finish(a, 36, 4*npair)
        done()
    a("s_lshr_b32 s38, s20, 2"); a("s_and_b32 s37, s20, 3")
    a("s_lshr_b32 s36, s20, 4"); a("s_lshl_b32 s36, s36, 7"); a(f"s_add_u32 s36, s36, {FL_AT}")
    attention(2)
    a.label("L_AT4")
    a(f"s_sub_u32 s20, s20, {NBLK*16}"); a("s_lshr_b32 s38, s20, 3"); a("s_and_b32 s37, s20, 7")
    a("s_lshl_b32 s36, s38, 7"); a("s_lshr_b32 s21, s37, 2"); a("s_lshl_b32 s21, s21, 6"); a("s_add_u32 s36, s36, s21")
    a(f"s_add_u32 s36, s36, {FL_ATS}"); a(f"s_add_u32 s38, s38, {4*NBLK}")
    attention(1)
    a.label(END)
    a("s_endpgm")

def build(path, prof=False, profw=False, force_slow=False, header=""):
    global PROFW
    chain.PROF = prof; PROFW = profw
    a = Asm()
    if header: a.raw(header)
    a.raw("; @launch grid=(256,1,1) block=(256,1,1) lds=163840")
    a.raw('.amdgcn_target "amdgcn-amd-amdhsa--gfx950"')
    a.raw(".text")
    emit_mega(a, MAIN, force_slow)
    a.raw('.section .rodata,"a"')
    kernel_desc(a, MAIN, 512, 256)
    open(path, "w").write(a.text())

if __name__ == "__main__":
    build("parallel_sum__memory_aug_recurrent_mem_tr__glu_gated_geglu__prompt.s", header=open("header.txt").read())
    build("m1.s")
    build("m1_prof.s", prof=True, profw=True)
    build("m1_slow.s", force_slow=True)
    LISTS = [['KV1a', 'G5', 'KV2a', 'Q2', 'DNa'], ['G6', 'KV2b', 'G3', 'DNb', 'WRa'], ['KV1b', 'G1', 'G7', 'KV3b', 'W2x'], ['Q1', 'G2', 'G4', 'KV3a', 'Q3', 'WRb']]
    SMALL = ['K1', 'Q0']
    build("m2_prof.s", prof=True, profw=True)
    chain.FORCE_FALLBACK = True
    build("m1_fb.s")
```

```python
from common import *
from gemm import V_LANE, S_WAVE
import math
S_WS = 8; S_WT = 12; S_X = 16; S_R = 17; S_MODE = 18; S_STEP = 19
CEXP = (DH**-0.5)*math.log2(math.e)
PROF = False
NSTEP = 64
INIT_WAIT = None
FORCE_FALLBACK = False
STAMP = None
IDLE = None
A_READY = None
NYOUNG = 0
INIT_ARRIVE = None
NPOLL = 4
NFLY = 3
WIN = 4
PER = 2
GBAR = True
GATE = 'all'
XSLEEP = 6
XGAP = 4
XAHEAD = 2

def ts(a, i):
    if PROF: a(f"s_memtime s[{70+2*i}:{71+2*i}]")
def rts(a, i):
    if PROF: a(f"s_memrealtime s[{90+2*i}:{91+2*i}]")
def ts_store(a, role_id_sreg, tmpv):
    if not PROF: return
    a("s_waitcnt lgkmcnt(0)")
    for i in range(10): a(f"v_writelane_b32 v{tmpv}, s{70+2*i}, {i}")
    a(f"v_writelane_b32 v{tmpv}, s90, 10"); a(f"v_writelane_b32 v{tmpv}, s92, 11")
    a(f"v_writelane_b32 v{tmpv}, s30, 12"); a(f"v_writelane_b32 v{tmpv}, s94, 13"); a(f"v_writelane_b32 v{tmpv}, s4, 14"); a(f"v_writelane_b32 v{tmpv}, s6, 15")
    a(f"s_lshl_b32 s20, s{role_id_sreg}, 6"); a(f"s_add_u32 s20, s20, s{S_STEP}"); a("s_lshl_b32 s20, s20, 2")
    a(f"s_add_u32 s20, s20, s{S_WAVE}"); a("s_lshl_b32 s20, s20, 6"); a(f"s_add_u32 s20, s20, {TS2_OFF}")
    a(f"v_mbcnt_lo_u32_b32 v{tmpv+1}, -1, 0"); a(f"v_lshlrev_b32 v{tmpv+1}, 2, v{tmpv+1}")
    a("s_mov_b64 exec, 0xffff")
    a(f"buffer_store_dword v{tmpv}, v{tmpv+1}, {sr(S_WS,4)}, s20 offen")
    a("s_mov_b64 exec, -1")

def local_store(a, instr):
    L1, L2 = a.newlabel("ls"), a.newlabel("ls")
    a(f"s_cmp_lg_u32 s{S_MODE}, 0")
    a(f"s_cbranch_scc1 {L1}")
    a(instr)
    a(f"s_branch {L2}")
    a.label(L1)
    a(instr + " sc1")
    a.label(L2)

def poll_tail(a, Lretry, abort):
    a("s_add_u32 s30, s30, 1")
    a(f"s_cmp_lt_u32 s30, {POLL_MAX*(8 if PROF else 1)}")
    a(f"s_cbranch_scc1 {Lretry}")
    a(f"s_branch {abort}")

def idx_reg(a, v):
    a(f"v_bfe_u32 v{v}, v{V_LANE}, 3, 1")
    a(f"v_mov_b32 v15, 0x44444444")
    a(f"v_mul_u32_u24 v{v}, 0xaaaa, v{v}")
    a(f"v_lshl_or_b32 v{v}, v{v}, 16, v{v}")
    a(f"v_add_u32 v{v}, v15, v{v}")

def tr_base(a, dst, rowbytes, row_expr, chunk_expr):
    pass

A_SC = 128*1024; A_KX = 140*1024; A_VX = 148*1024
def role_A(a, abort, kv_wait=None, step_done=None):
    L = V_LANE; W = S_WAVE
    VK1, VI, VID, VT0, VT1, VKX, VVX, VVM, VO, VKM, VSW, VSR, VSM, VL16, VKA = 15, 3, 24, 6, 7, 8, 9, 10, 11, 12, 13, 14, 0, 2, 1
    PIECE = 32; STG = [96, 104, 16]; ACC = 112
    Wq = lambda ks, t: ar((ks*2+t)*8, 8)
    Wk0 = lambda ks: vr(128+ks*8, 8)
    head = 21
    a(f"s_lshl_b32 s26, s{S_X}, 3"); a(f"s_add_u32 s26, s26, s{S_R}")
    a(f"v_lshrrev_b32 v2, 4, v{L}"); a(f"v_and_b32 v3, 15, v{L}")
    a("v_lshlrev_b32 v4, 1, v2"); a("v_xor_b32 v3, v3, v4")
    a(f"s_lshl_b32 s20, s{W}, 4"); a("v_add_u32 v2, s20, v2"); a("v_lshlrev_b32 v2, 13, v2")
    a("v_lshlrev_b32 v3, 4, v3")
    for j in range(4):
        if j >= 2: a(f"v_xor_b32 v4, 128, v3")
        else: a("v_mov_b32 v4, v3")
        a(f"v_add_u32 v4, v2, v4"); a(f"v_add_u32 v{32+j}, {4*j*8192}, v4")
    a(f"v_lshrrev_b32 v2, 3, v{L}"); a(f"v_and_b32 v3, 7, v{L}")
    a(f"v_bfe_u32 v4, v{L}, 4, 1"); a("v_lshlrev_b32 v4, 1, v4"); a("v_xor_b32 v3, v3, v4")
    a("v_add_u32 v2, s20, v2"); a("v_lshlrev_b32 v2, 13, v2")
    a("v_lshlrev_b32 v3, 4, v3")
    a("v_add_u32 v36, v2, v3")
    a("v_xor_b32 v3, 64, v3"); a("v_add_u32 v37, v2, v3"); a(f"v_add_u32 v37, {8*8192}, v37")
    a(f"v_lshrrev_b32 v2, 4, v{L}"); a(f"v_bfe_u32 v3, v{L}, 2, 2")
    a("v_lshl_add_u32 v4, v2, 3, v3")
    a(f"v_and_b32 v5, 3, v{L}"); a("v_lshlrev_b32 v5, 3, v5")
    a("v_and_b32 v2, 1, v2")
    a("v_lshl_or_b32 v15, v2, 2, v3"); a(f"v_xor_b32 v15, s{W}, v15")
    a("v_lshlrev_b32 v15, 5, v15"); a("v_lshl_add_u32 v38, v4, 8, v5"); a("v_add_u32 v39, v38, v15")
    a("v_xor_b32 v15, 128, v15"); a("v_add_u32 v40, v38, v15")
    a("v_lshrrev_b32 v3, 1, v3"); a("v_lshl_or_b32 v15, v2, 1, v3"); a(f"v_xor_b32 v15, s{W}, v15")
    a("v_lshlrev_b32 v15, 5, v15"); a(f"v_lshl_add_u32 v{VT0}, v4, 7, v5"); a(f"v_add_u32 v{VT0}, v{VT0}, v15")
    a(f"v_add_u32 v{VT1}, 65536, v{VT0}")
    load_srd(a, S_WT, 44, 0, DM*4096*2)
    load_srd(a, 28, 46, 0, DM*4096*2)
    a("s_lshl_b32 s22, s26, 8")
    a(f"s_lshl_b32 s23, s{W}, 12"); a(f"s_lshl_b32 s24, s{W}, 11"); a("s_add_u32 s24, s24, 16384")
    SLOT = 24576; NSL = 6
    def issue(ks):
        b = (ks % NSL)*SLOT
        for j in range(4):
            a(f"s_add_u32 m0, s23, {b+1024*j}"); a("s_nop 0")
            a(f"buffer_load_dwordx4 v{32+j}, {sr(S_WT,4)}, s22 offen lds")
        for j in range(2):
            a(f"s_add_u32 m0, s24, {b+1024*j}"); a("s_nop 0")
            a(f"buffer_load_dwordx4 v{36+j}, s[28:31], s22 offen lds")
        a(f"s_add_u32 s22, s22, {64*8192}")
    for ks in range(NSL-1):
        issue(ks)
        if ks == 0 and INIT_ARRIVE:
            a(f"s_waitcnt vmcnt({6+NYOUNG})"); a("s_barrier"); INIT_ARRIVE(a)
    for ks in range(16):
        nxt = ks + NSL - 1
        if nxt < 16: issue(nxt)
        a(f"s_waitcnt vmcnt({6*(min(nxt,15)-ks)})")
        a("s_barrier")
        if ks == -99: pass
        b = (ks % NSL)*SLOT
        a(f"v_add_u32 v41, {b}, v39"); a(f"v_add_u32 v42, {b}, v40"); a(f"v_add_u32 v43, {b+16384}, v{VT0}")
        for q in range(4):
            ro = 32*(q >> 1) + 4*(q & 1)
            a(f"ds_read_b64_tr_b16 {ar((ks*2)*8+2*q,2)}, v41 offset:{ro*256}")
            a(f"ds_read_b64_tr_b16 {ar((ks*2+1)*8+2*q,2)}, v42 offset:{ro*256}")
            a(f"ds_read_b64_tr_b16 {vr(128+ks*8+2*q,2)}, v43 offset:{ro*128}")
        a("s_waitcnt lgkmcnt(0)")
        a("s_barrier")
    a("s_lshl_b32 s22, s26, 8"); a("s_add_u32 s22, s22, 128")
    a(f"s_lshl_b32 s24, s{W}, 11")
    for ks in range(16):
        for j in range(2):
            a(f"s_add_u32 m0, s24, {ks*8192+1024*j}"); a("s_nop 0")
            a(f"buffer_load_dwordx4 v{36+j}, s[28:31], s22 offen lds")
        a(f"s_add_u32 s22, s22, {64*8192}")
    a(f"v_lshlrev_b32 v{VL16}, 4, v{L}")
    a(f"v_add_u32 v{VK1}, s24, v{VL16}")
    a("s_waitcnt vmcnt(0)")
    a("s_barrier")
    for half in range(2):
        for k8 in range(8):
            for q in range(4):
                a(f"ds_read_b64_tr_b16 {vr(32+k8*8+2*q,2)}, v{VT0+half} offset:{k8*8192+4096*(q>>1)+512*(q&1)}")
        a("s_waitcnt lgkmcnt(0)")
        a("s_barrier")
        for k8 in range(8):
            for q in range(2):
                a(f"ds_write_b128 v{VK1}, {vr(32+k8*8+4*q,4)} offset:{k8*8192+1024*q}")
        a("s_waitcnt lgkmcnt(0)")
        if half == 0: a(f"v_add_u32 v{VK1}, 65536, v{VK1}")
    a(f"v_mov_b32 v{VT1}, v{VK1}"); a(f"v_subrev_u32 v{VT0}, 65536, v{VK1}")
    idx_reg(a, VI)
    a(f"v_and_b32 v32, 15, v{L}"); a(f"v_bfe_u32 v33, v{L}, 4, 1"); a("v_lshlrev_b32 v33, 2, v33"); a("v_sub_u32 v32, v32, v33")
    a("v_mov_b32 v33, 0x3f80"); a("v_mov_b32 v34, 0x3f800000")
    for h in range(4):
        e = 2*(h & 1) + 8*(h >> 1)
        a(f"v_cmp_eq_u32 vcc, {e}, v32"); a("s_nop 1"); a(f"v_cndmask_b32 v{VID+h}, 0, v33, vcc")
        a(f"v_cmp_eq_u32 vcc, {e+1}, v32"); a("s_nop 1"); a(f"v_cndmask_b32 v{VID+h}, v{VID+h}, v34, vcc")
    a(f"s_lshl_b32 s20, s{W}, 8"); a(f"s_lshl_b32 s21, s{W}, 10")
    a(f"v_add_u32 v{VKX}, s21, v{VL16}")
    a(f"v_lshrrev_b32 v34, 4, v{L}"); a(f"v_and_b32 v33, 7, v{L}"); a("v_lshlrev_b32 v33, 4, v33"); a(f"v_lshl_add_u32 v{VKM}, v34, 7, v33")
    a(f"s_lshl_b32 s21, s{W}, 9"); a(f"v_add_u32 v{VKM}, s21, v{VKM}")
    a(f"v_and_b32 v33, 15, v{L}"); a(f"v_lshrrev_b32 v34, 4, v{L}")
    a(f"v_lshlrev_b32 v{VVM}, 4, v33"); a(f"v_lshl_add_u32 v{VVM}, v34, 2, v{VVM}"); a(f"v_add_u32 v{VVM}, s20, v{VVM}")
    a(f"v_lshlrev_b32 v{VO}, 4, v33"); a(f"v_lshl_add_u32 v{VO}, v34, 7, v{VO}")
    a(f"s_lshl_b32 s21, s{W}, 9"); a(f"s_lshl_b32 s22, s{S_R}, 11"); a("s_add_u32 s21, s21, s22"); a(f"v_add_u32 v{VO}, s21, v{VO}")
    a(f"s_mul_i32 s21, s{W}, 3072"); a(f"s_add_u32 s21, s21, {A_SC}"); a(f"v_add_u32 v{VSW}, s21, v{VL16}")
    a(f"v_and_b32 v35, 7, v{L}"); a(f"v_bfe_u32 v36, v{L}, 3, 1")
    a("v_lshl_add_u32 v37, v34, 4, v35"); a("v_lshlrev_b32 v37, 4, v37"); a(f"v_lshl_add_u32 v{VSR}, v36, 10, v37")
    a(f"v_add_u32 v{VSR}, {A_SC}, v{VSR}")
    a("v_lshl_add_u32 v37, v34, 1, v36")
    a("v_lshrrev_b32 v38, 2, v37"); a("v_add_u32 v38, 2, v38"); a("v_lshl_add_u32 v38, v38, 4, v35"); a("v_lshlrev_b32 v38, 4, v38")
    a("v_and_b32 v37, 3, v37"); a(f"v_lshl_add_u32 v{VSM}, v37, 2, v38"); a(f"v_add_u32 v{VSM}, {A_SC+2048}, v{VSM}")
    a(f"s_lshl_b32 s27, s{W}, 11")
    a(f"v_add_u32 v{VKA}, s27, v{VL16}"); a(f"v_add_u32 v{VKA}, {A_KX}, v{VKA}")
    a(f"v_and_b32 v5, 0x30, v{VL16}"); a("v_lshlrev_b32 v5, 6, v5"); a(f"s_lshl_b32 s20, s{W}, 12"); a("v_add_u32 v5, s20, v5")
    a("s_mov_b32 s34, 0x00ff00ff"); a("s_mov_b32 s35, 0x00ff00ff")
    a("s_mov_b32 s36, 0xff00ff00"); a("s_mov_b32 s37, 0xff00ff00")
    a(f"s_mov_b32 s38, {f2u(CEXP):#x}")
    def kv_prefetch():
        if kv_wait: kv_wait(a)
        a(f"s_lshl_b32 s20, s{S_STEP}, 5"); a("s_add_u32 s20, s20, s26"); a("s_lshl_b32 s20, s20, 13")
        a(f"s_add_u32 s21, s20, {VT_OFF}"); a(f"s_add_u32 s20, s20, {K_OFF}")
        for t in range(2):
            a(f"s_add_u32 m0, s27, {A_KX+1024*t}"); a("s_nop 0")
            a(f"buffer_load_dwordx4 v{VKX}, {sr(S_WS,4)}, s20 offen sc1 lds")
            a(f"s_add_u32 m0, s27, {A_VX+1024*t}"); a("s_nop 0")
            a(f"buffer_load_dwordx4 v{VKX}, {sr(S_WS,4)}, s21 offen sc1 lds")
            if t == 0: a("s_add_u32 s20, s20, 4096"); a("s_add_u32 s21, s21, 4096")
    a(f"s_mov_b32 s{S_STEP}, 0")
    rts(a, 1)
    if INIT_WAIT:
        a("v_mov_b32 v60, v14"); INIT_WAIT(a); a("v_mov_b32 v14, v60")
        A_READY(a)
    kv_prefetch()
    a("s_waitcnt vmcnt(0)")
    a("s_barrier")
    if PROF: a("s_memrealtime s[94:95]")
    def k1read(ks):
        st = STG[ks % 3]; base = VT0 if ks < 8 else VT1
        return [f"ds_read_b128 {vr(st+4*q,4)}, v{base} offset:{(ks%8)*8192+1024*q}" for q in range(2)]
    a.label("L_A_step")
    a("s_mov_b32 s30, 0"); a("s_mov_b32 s32, 0")
    a(f"s_and_b32 s39, s{S_STEP}, 3"); a("s_lshl_b32 s39, s39, 16")
    a(f"s_lshl_b32 s21, s{S_X}, 14"); a("s_add_u32 s25, s39, s21")
    a(f"s_add_u32 s20, s25, {CH_MEM}")
    for i in range(1, 4): a(f"s_add_u32 s{20+i}, s20, {4096*i}")
    for i in range(16): a(f"v_mov_b32 v{ACC+i}, 0")
    for x in k1read(0) + k1read(1): a(x)
    def pload(i):
        a(f"buffer_load_dwordx4 {vr(PIECE+4*i,4)}, v{VL16}, {sr(S_WS,4)}, s{20+i//4} offen offset:{(i%4)*1024} sc1")
    def pcheck(i):
        a(f"v_cmp_eq_u32 vcc, -1, v{PIECE+4*i}")
    def look(n):
        if n-1+WIN < 16 and n > 0: pload(n-1+WIN)
        a(f"s_waitcnt vmcnt({min(WIN-1, 15-n)})")
        pcheck(n)
    a("s_mov_b32 s33, 0")
    def sload(k): a(f"buffer_load_dword v{PIECE+k}, v5, {sr(S_WS,4)}, s20 offen sc1")
    for k in range(NFLY):
        sload(k)
        if k < NFLY-1: a("s_sleep 1")
    a.label("L_A_poll")
    for k in range(NFLY):
        a(f"s_waitcnt vmcnt({NFLY-1})")
        a(f"v_cmp_eq_u32 vcc, -1, v{PIECE+k}")
        a("s_cbranch_vccz L_A_go")
        sload(k)
    poll_tail(a, "L_A_poll", abort)
    a.label("L_A_redo")
    a("s_nop 7")
    for i in range(16): a(f"v_mov_b32 v{ACC+i}, 0")
    for x in k1read(0) + k1read(1): a(x)
    a("s_add_u32 s32, s32, 1"); a(f"s_cmp_ge_u32 s32, {POLL_MAX}"); a(f"s_cbranch_scc1 {abort}")
    if PROF: a("s_add_u32 s30, s30, 0x10000")
    a("s_branch L_A_go2")
    a.label("L_A_go")
    a("s_barrier")
    a.label("L_A_go2")
    ts(a, 0)
    sched = {}
    nxt = WIN
    for ks in range(16):
        k = []
        for _ in range(PER):
            if nxt < 16: k.append(nxt); nxt += 1
        sched[ks] = k
    for i in range(WIN): pload(i)
    issued = WIN
    for ks in range(16):
        P = vr(PIECE+4*ks, 4)
        if ks in (0, 4, 8, 12): ts(a, 5+ks//4)
        a(f"s_waitcnt vmcnt({issued-1-ks}) lgkmcnt({0 if (ks == 15 or (PROF and ks % 4 == 0)) else 2})")
        a(f"v_smfmac_f32_16x16x64_bf16 {vr(ACC,4)}, {P}, {Wq(ks,0)}, v{VI}")
        for k in sched[ks][:1]: pload(k)
        a(f"v_smfmac_f32_16x16x64_bf16 {vr(ACC+12,4)}, {P}, {vr(STG[ks % 3],8)}, v{VI}")
        rd = k1read(ks+2) if ks+2 < 16 else []
        for x in rd[:1]: a(x)
        for k in sched[ks][1:]: pload(k)
        issued += len(sched[ks])
        a(f"v_smfmac_f32_16x16x64_bf16 {vr(ACC+4,4)}, {P}, {Wq(ks,1)}, v{VI}")
        for x in rd[1:]: a(x)
        if ks == 1: a(f"v_max_u32 v15, v{PIECE}, v{PIECE+4}")
        elif ks % 2 == 1: a(f"v_max3_u32 v15, v15, v{PIECE+4*ks-4}, v{PIECE+4*ks}")
        if ks == 15: a("v_cmp_eq_u32 vcc, -1, v15")
        a(f"v_smfmac_f32_16x16x64_bf16 {vr(ACC+8,4)}, {P}, {Wk0(ks)}, v{VI}")
    a("s_cbranch_vccnz L_A_redo")
    ts(a, 1)
    KX = 48; VX = 56; VM = 64; Y = 68; X = 72; T = 72; SX = 84; SM = 96+8
    for t in range(2): a(f"ds_read_b128 {vr(KX+4*t,4)}, v{VKA} offset:{1024*t}")
    for t in range(2): a(f"ds_read_b128 {vr(VX+4*t,4)}, v{VKA} offset:{A_VX-A_KX+1024*t}")
    a("s_lshl_b32 s21, s26, 11"); a("s_add_u32 s20, s39, s21"); a(f"s_add_u32 s24, s20, {CH_VM}")
    a("s_nop 1")
    for t in range(2):
        a(f"v_cvt_pk_bf16_f32 v{X+4*t}, v{ACC+4*t}, v{ACC+4*t+1}"); a(f"v_cvt_pk_bf16_f32 v{X+4*t+1}, v{ACC+4*t+2}, v{ACC+4*t+3}")
        a(f"v_cvt_pk_bf16_f32 v{X+4*t+2}, v{ACC+8+4*t}, v{ACC+8+4*t+1}"); a(f"v_cvt_pk_bf16_f32 v{X+4*t+3}, v{ACC+8+4*t+2}, v{ACC+8+4*t+3}")
    a("s_nop 0")
    a(f"v_mfma_f32_16x16x32_bf16 {vr(ACC+8,4)}, {vr(X,4)}, {vr(VID,4)}, 0")
    a(f"v_mfma_f32_16x16x32_bf16 {vr(ACC+12,4)}, {vr(X+4,4)}, {vr(VID,4)}, 0")
    a("s_nop 0")
    a(f"v_mov_b32 v{VM+1}, 0"); a(f"v_mov_b32 v{VM+3}, 0")
    a(f"s_lshl_b32 s20, s{S_STEP}, 5"); a("s_add_u32 s20, s20, s26"); a("s_lshl_b32 s20, s20, 12"); a(f"s_add_u32 s20, s20, {KVM_OFF}")
    a(f"v_cvt_pk_bf16_f32 v{Y}, v{ACC+8}, v{ACC+9}"); a(f"v_cvt_pk_bf16_f32 v{Y+1}, v{ACC+10}, v{ACC+11}")
    a(f"v_cvt_pk_bf16_f32 v{Y+2}, v{ACC+12}, v{ACC+13}"); a(f"v_cvt_pk_bf16_f32 v{Y+3}, v{ACC+14}, v{ACC+15}")
    a("s_waitcnt lgkmcnt(0)")
    a("s_nop 0")
    a(f"v_mfma_f32_16x16x32_bf16 {vr(T,4)}, {vr(KX,4)}, {vr(Y,4)}, 0")
    a(f"v_mfma_f32_16x16x32_bf16 {vr(T+4,4)}, {vr(KX+4,4)}, {vr(Y,4)}, 0")
    a(f"v_mfma_f32_16x16x32_bf16 {vr(T+8,4)}, {vr(Y,4)}, {vr(Y,4)}, 0")
    a(f"s_cmp_eq_u32 s{S_STEP}, {NSTEP-1}")
    a("s_cbranch_scc1 L_A_last")
    a("s_nop 3")
    a(f"ds_write_b128 v{VSW}, {vr(T,4)}")
    a(f"ds_write_b128 v{VSW}, {vr(T+4,4)} offset:1024")
    a(f"ds_write_b128 v{VSW}, {vr(T+8,4)} offset:2048")
    ts(a, 2)
    a(f"buffer_load_dword v{VM}, v{VVM}, {sr(S_WS,4)}, s24 offen sc1")
    a(f"buffer_load_dword v{VM+2}, v{VVM}, {sr(S_WS,4)}, s24 offen offset:1024 sc1")
    a("s_mov_b64 exec, s[36:37]")
    a(f"buffer_store_dwordx4 {vr(Y,4)}, v{VKM}, {sr(S_WS,4)}, s20 offen sc1")
    a("s_mov_b64 exec, -1")
    a("s_waitcnt lgkmcnt(0)")
    a("s_barrier")
    for pw in range(4):
        a(f"ds_read_b128 {vr(SX+4*pw,4)}, v{VSR} offset:{pw*3072}")
        a(f"ds_read_b32 v{SM+pw}, v{VSM} offset:{pw*3072}")
    a("s_waitcnt lgkmcnt(4)")
    a(f"v_pk_add_f32 {vr(SX,2)}, {vr(SX,2)}, {vr(SX+4,2)}"); a(f"v_pk_add_f32 {vr(SX+2,2)}, {vr(SX+2,2)}, {vr(SX+6,2)}")
    a(f"v_add_f32 v{SM}, v{SM}, v{SM+1}")
    a("s_waitcnt lgkmcnt(0)")
    a(f"v_pk_add_f32 {vr(SX+8,2)}, {vr(SX+8,2)}, {vr(SX+12,2)}"); a(f"v_pk_add_f32 {vr(SX+10,2)}, {vr(SX+10,2)}, {vr(SX+14,2)}")
    a(f"v_add_f32 v{SM+2}, v{SM+2}, v{SM+3}")
    a(f"v_pk_add_f32 {vr(SX,2)}, {vr(SX,2)}, {vr(SX+8,2)}"); a(f"v_pk_add_f32 {vr(SX+2,2)}, {vr(SX+2,2)}, {vr(SX+10,2)}")
    a(f"v_add_f32 v{SM}, v{SM}, v{SM+2}")
    M = SX+4; TM = SX+5
    def fold(op, r):
        a("s_nop 1")
        a(f"{op}_dpp v{r}, v{r}, v{r} row_ror:8 row_mask:0xf bank_mask:0xf")
        for sw in ("v_permlane16_swap_b32", "v_permlane32_swap_b32"):
            a(f"v_mov_b32 v{TM}, v{r}"); a("s_nop 1"); a(f"{sw} v{r}, v{TM}"); a(f"{op} v{r}, v{r}, v{TM}")
    a(f"v_max3_f32 v{M}, v{SX}, v{SX+1}, v{SX+2}"); a(f"v_max3_f32 v{M}, v{M}, v{SX+3}, v{SM}")
    fold("v_max_f32", M)
    a(f"v_mul_f32 v{M}, s38, v{M}")
    for r in (SX, SX+1, SX+2, SX+3, SM): a(f"v_fma_f32 v{r}, v{r}, s38, -v{M}")
    for r in (SX, SX+1, SX+2, SX+3, SM): a(f"v_exp_f32 v{r}, v{r}")
    a("s_waitcnt vmcnt(1)")
    a(f"v_max_u32 v{TM}, v{VM}, v{VM+2}")
    a(f"v_cmp_eq_u32 vcc, -1, v{TM}")
    PX = SX+8; PM = SX+12
    a(f"v_mov_b32 v{PM+1}, 0")
    a(f"v_cvt_pk_bf16_f32 v{PX}, v{SX}, v{SX+1}"); a(f"v_cvt_pk_bf16_f32 v{PX+1}, v{SX+2}, v{SX+3}")
    a(f"v_mov_b32_dpp v{SM+1}, v{SM} row_ror:8 row_mask:0xf bank_mask:0xf")
    a(f"v_add_f32 v{M}, v{SX}, v{SX+1}")
    a(f"v_mov_b32_dpp v{PX+2}, v{PX} row_ror:8 row_mask:0xf bank_mask:0xf")
    a(f"v_mov_b32_dpp v{PX+3}, v{PX+1} row_ror:8 row_mask:0xf bank_mask:0xf")
    a(f"v_cvt_pk_bf16_f32 v{PM}, v{SM}, v{SM+1}")
    a(f"v_add_f32 v{SX+2}, v{SX+2}, v{SX+3}")
    ts(a, 3)
    a(f"v_mfma_f32_16x16x32_bf16 {vr(T,4)}, {vr(VX,4)}, {vr(PX,4)}, 0")
    a(f"v_add_f32 v{M}, v{M}, v{SM}")
    a(f"v_mfma_f32_16x16x32_bf16 {vr(T+4,4)}, {vr(VX+4,4)}, {vr(PX,4)}, 0")
    a(f"v_add_f32 v{M}, v{M}, v{SX+2}")
    a(f"s_cbranch_vccnz L_A_vmfix")
    a.label("L_A_vmok")
    a(f"v_mfma_f32_16x16x16_bf16 {vr(T,4)}, {vr(VM,2)}, {vr(PM,2)}, {vr(T,4)}")
    a(f"v_add_f32_dpp v{M}, v{M}, v{M} row_ror:8 row_mask:0xf bank_mask:0xf")
    a(f"v_mfma_f32_16x16x16_bf16 {vr(T+4,4)}, {vr(VM+2,2)}, {vr(PM,2)}, {vr(T+4,4)}")
    for sw in ("v_permlane16_swap_b32", "v_permlane32_swap_b32"):
        a(f"v_mov_b32 v{TM}, v{M}"); a("s_nop 1"); a(f"{sw} v{M}, v{TM}"); a(f"v_add_f32 v{M}, v{M}, v{TM}")
    a(f"v_rcp_f32 v{M}, v{M}")
    a(f"s_add_u32 s20, s25, {CH_OX}")
    for i in range(8): a(f"v_mul_f32 v{T+i}, v{T+i}, v{M}")
    for i in range(4): a(f"v_cvt_pk_bf16_f32 v{Y+i}, v{T+2*i}, v{T+2*i+1}")
    a("s_mov_b64 exec, s[34:35]")
    local_store(a, f"buffer_store_dwordx4 {vr(Y,4)}, v{VO}, {sr(S_WS,4)}, s20 offen")
    ts(a, 4); rts(a, 0)
    for i in range(4): a(f"v_mov_b32 v{T+i}, -1")
    a(f"s_add_u32 s21, s25, {3*65536}"); a(f"s_and_b32 s21, s21, {4*65536-1}"); a(f"s_add_u32 s21, s21, {CH_OX}")
    local_store(a, f"buffer_store_dwordx4 {vr(T,4)}, v{VO}, {sr(S_WS,4)}, s21 offen")
    a("s_mov_b64 exec, -1")
    if step_done: step_done(a, "A")
    ts_store(a, 26, 60)
    a(f"s_add_u32 s{S_STEP}, s{S_STEP}, 1")
    kv_prefetch()
    a("s_branch L_A_step")
    a.label("L_A_vmfix")
    a(f"buffer_load_dword v{VM}, v{VVM}, {sr(S_WS,4)}, s24 offen sc1")
    a(f"buffer_load_dword v{VM+2}, v{VVM}, {sr(S_WS,4)}, s24 offen offset:1024 sc1")
    a("s_waitcnt vmcnt(0)")
    a(f"v_max_u32 v{TM}, v{VM}, v{VM+2}")
    a(f"v_cmp_eq_u32 vcc, -1, v{TM}")
    a("s_cbranch_vccz L_A_vmok")
    poll_tail(a, "L_A_vmfix", abort)
    a.label("L_A_last")
    a("s_mov_b64 exec, s[36:37]")
    a(f"buffer_store_dwordx4 {vr(Y,4)}, v{VKM}, {sr(S_WS,4)}, s20 offen sc1")
    a("s_mov_b64 exec, -1")
    if step_done: step_done(a, "Alast")

R_PS, R_HS, R_GS, R_CS = 2368, 1184, 288, 144
VR_V = 0; VR_R = 16384; VR_X = 40960
SCP = 52
def role_VR(a, abort, step_done=None):
    L = V_LANE; W = S_WAVE
    VI, VL16, VWV, VRV, VWR, VRR, VSV, VSP, VPL2, VSM, VPL = 3, 4, 5, 6, 7, 8, 9, 10, 12, 13, 16
    PIECE = 32; ACC = 48; RD = 64; POIS = 96
    a(f"s_sub_u32 s{S_R}, s{S_R}, 8")
    a(f"s_lshl_b32 s26, s{S_X}, 3"); a(f"s_lshr_b32 s20, s{S_R}, 1"); a("s_add_u32 s26, s26, s20")
    a(f"s_lshl_b32 s27, s{W}, 15")
    a(f"v_lshrrev_b32 v2, 4, v{L}"); a(f"v_bfe_u32 v3, v{L}, 2, 2")
    a(f"v_and_b32 v5, 3, v{L}"); a("v_lshlrev_b32 v5, 3, v5"); a("v_add_u32 v5, s27, v5")
    a("v_and_b32 v6, 1, v2")
    a("v_lshrrev_b32 v7, 1, v3"); a("v_lshl_or_b32 v8, v6, 1, v7")
    a("v_lshl_add_u32 v4, v2, 3, v3"); a("v_lshl_add_u32 v9, v4, 7, v5")
    a("v_lshrrev_b32 v4, 1, v2"); a("v_lshlrev_b32 v4, 3, v4"); a("v_lshl_add_u32 v4, v6, 6, v4"); a("v_lshl_add_u32 v4, v7, 2, v4")
    a("v_and_b32 v10, 1, v3"); a("v_add_u32 v4, v4, v10"); a("v_lshl_add_u32 v10, v4, 7, v5")
    for t in range(4):
        a(f"v_xor_b32 v4, {t}, v8"); a("v_lshlrev_b32 v4, 5, v4")
        a(f"v_add_u32 v{32+t}, v9, v4"); a(f"v_add_u32 v{36+t}, v10, v4")
    for part in range(2):
        stride = 8192 if part == 0 else 2048
        a(f"v_lshrrev_b32 v2, 3, v{L}"); a(f"v_and_b32 v3, 7, v{L}")
        a(f"v_bfe_u32 v4, v{L}, {4 if part == 0 else 5}, 1"); a("v_lshlrev_b32 v4, 1, v4"); a("v_xor_b32 v3, v3, v4")
        a(f"v_lshlrev_b32 v2, {13 if part == 0 else 11}, v2"); a("v_lshlrev_b32 v3, 4, v3")
        a("v_add_u32 v40, v2, v3"); a("v_xor_b32 v3, 64, v3"); a("v_add_u32 v41, v2, v3")
        if part == 0:
            load_srd(a, S_WT, 48, 0, DM*4096*2)
            a("s_lshl_b32 s22, s26, 8"); a(f"s_and_b32 s20, s{S_R}, 1"); a("s_lshl_b32 s20, s20, 7"); a("s_add_u32 s22, s22, s20")
            a(f"s_lshl_b32 s20, s{W}, 21"); a("s_add_u32 s22, s22, s20")
        else:
            load_srd(a, S_WT, 50, 0, 4096*DM*2)
            a(f"s_lshl_b32 s22, s{S_X}, 21"); a(f"s_lshl_b32 s20, s{W}, 19"); a("s_add_u32 s22, s22, s20")
            a(f"s_lshl_b32 s20, s{S_R}, 7"); a("s_add_u32 s22, s22, s20")
        for j in range(32):
            odd = (j & 1) if part == 0 else ((j >> 3) & 1)
            a(f"s_add_u32 m0, s27, {1024*j}"); a("s_nop 0")
            a(f"buffer_load_dwordx4 v{40+odd}, {sr(S_WT,4)}, s22 offen lds")
            a(f"s_add_u32 s22, s22, {8*stride}")
            if part == 0 and j == 5 and INIT_ARRIVE:
                a(f"s_waitcnt vmcnt({6+NYOUNG})"); a("s_barrier"); INIT_ARRIVE(a)
        a("s_waitcnt vmcnt(0)")
        for kk in range(4):
            for t in range(4):
                for q in range(4):
                    if part == 0: off = (64*kk + 32*(q >> 1) + 4*(q & 1))*128
                    else: off = (128*(kk >> 1) + 32*(kk & 1) + 16*(q >> 1) + 2*(q & 1))*128
                    a(f"ds_read_b64_tr_b16 {ar(part*128+(kk*4+t)*8+2*q,2)}, v{32+4*part+t} offset:{off}")
            a("s_waitcnt lgkmcnt(0)")
    a("s_barrier")
    idx_reg(a, VI)
    a(f"v_lshlrev_b32 v{VL16}, 4, v{L}")
    a(f"s_lshl_b32 s20, s{W}, 12")
    a(f"v_add_u32 v{VWV}, s20, v{VL16}")
    a(f"v_add_u32 v2, s20, v{VL16}")
    a(f"s_and_b32 s21, s{W}, 1"); a("s_lshl_b32 s22, s21, 11")
    a(f"v_lshrrev_b32 v14, 5, v{L}"); a(f"v_and_b32 v15, 31, v{L}"); a("v_lshlrev_b32 v15, 4, v15")
    a(f"v_lshl_add_u32 v{VRV}, v14, 10, v15"); a(f"v_add_u32 v{VRV}, s22, v{VRV}")
    a(f"v_and_b32 v15, 15, v{L}"); a("v_lshl_add_u32 v15, v14, 4, v15"); a("v_lshlrev_b32 v15, 4, v15")
    a(f"v_bfe_u32 v14, v{L}, 4, 1"); a(f"v_lshl_add_u32 v{VSV}, v14, 3, v15")
    a("s_lshl_b32 s22, s21, 9"); a(f"s_and_b32 s23, s{S_R}, 1"); a("s_lshl_b32 s23, s23, 10"); a("s_add_u32 s22, s22, s23")
    a(f"v_add_u32 v{VSV}, s22, v{VSV}")
    a(f"s_mul_i32 s22, s{W}, {R_PS}"); a(f"s_add_u32 s22, s22, {VR_R}")
    a(f"v_lshrrev_b32 v14, 5, v{L}"); a(f"v_mul_u32_u24 v{VWR}, {R_GS}, v14")
    a(f"v_bfe_u32 v14, v{L}, 3, 1"); a(f"v_mul_u32_u24 v14, {R_HS}, v14"); a(f"v_add_u32 v{VWR}, v{VWR}, v14")
    a(f"v_bfe_u32 v14, v{L}, 1, 1"); a(f"v_mul_u32_u24 v14, {R_CS}, v14"); a(f"v_add_u32 v{VWR}, v{VWR}, v14")
    a(f"v_bfe_u32 v14, v{L}, 4, 1"); a(f"v_lshl_add_u32 v{VWR}, v14, 6, v{VWR}")
    a(f"v_bfe_u32 v14, v{L}, 2, 1"); a(f"v_lshl_add_u32 v{VWR}, v14, 3, v{VWR}")
    a(f"v_and_b32 v14, 1, v{L}"); a(f"v_lshl_add_u32 v{VWR}, v14, 2, v{VWR}")
    a(f"v_add_u32 v{VWR}, s22, v{VWR}")
    a(f"s_mul_i32 s22, s21, {R_HS}"); a(f"s_add_u32 s22, s22, {VR_R}")
    a(f"v_lshrrev_b32 v14, 4, v{L}"); a(f"v_mul_u32_u24 v{VRR}, {R_GS}, v14")
    a(f"v_bfe_u32 v14, v{L}, 3, 1"); a(f"v_mul_u32_u24 v14, {R_CS}, v14"); a(f"v_add_u32 v{VRR}, v{VRR}, v14")
    a(f"v_and_b32 v14, 7, v{L}"); a(f"v_lshl_add_u32 v{VRR}, v14, 4, v{VRR}")
    a(f"v_add_u32 v{VPL2}, {VR_R}, v{VRR}")
    a(f"v_add_u32 v{VRR}, s22, v{VRR}")
    a(f"s_lshl_b32 s22, s{S_R}, 14")
    for k in range(3):
        a(f"s_add_u32 s23, s{S_X}, {k+1}"); a("s_and_b32 s23, s23, 3"); a("s_lshl_b32 s23, s23, 11"); a("s_add_u32 s23, s23, s22")
        a(f"v_add_u32 v{VPL+k}, s23, v{VL16}")
    a("s_lshl_b32 s23, s21, 10"); a("s_add_u32 s22, s22, s23")
    a(f"s_lshl_b32 s23, s{S_X}, 11"); a("s_add_u32 s22, s22, s23"); a(f"v_add_u32 v{VSP}, s22, v{VL16}")
    a(f"s_lshl_b32 s22, s{S_R}, 10"); a(f"v_add_u32 v{VSM}, s22, v{VL16}")
    for i in range(4): a(f"v_mov_b32 v{POIS+i}, -1")
    if PROF: a("s_memrealtime s[6:7]")
    if INIT_WAIT: INIT_WAIT(a)
    Lc, Lp = a.newlabel("Cal"), a.newlabel("Cal")
    a(f"s_or_b32 s22, s{S_X}, s{S_R}"); a(f"s_or_b32 s22, s22, s{W}"); a("s_cmp_lg_u32 s22, 0"); a(f"s_cbranch_scc1 {Lc}")
    a("s_mov_b32 s34, 0x100")
    for pg in range(NCOPY//2):
        for c in range(2):
            for k in range(4):
                a(f"s_mov_b32 s23, {CH_PART + pg*2*MB + c*8192 + k*16384 + 1024*k}")
                a("s_memtime s[36:37]")
                a("s_waitcnt lgkmcnt(0)")
                a(f"buffer_load_dword v14, off, {sr(S_WS,4)}, s23 sc1")
                a("s_waitcnt vmcnt(0)")
                a("s_memtime s[38:39]")
                a("s_waitcnt lgkmcnt(0)")
                a("s_sub_u32 s36, s38, s36")
                if k == 0: a(f"s_mov_b32 s{20+c}, s36")
                else: a(f"s_min_u32 s{20+c}, s{20+c}, s36")
        a("s_cmp_lt_u32 s21, s20"); a(f"s_cselect_b32 s36, {1 << pg}, 0"); a("s_or_b32 s34, s34, s36")
    a("v_mov_b32 v14, s34"); a(f"s_mov_b32 s23, {FL_NEAR}")
    a(f"buffer_store_dword v14, off, {sr(S_WS,4)}, s23 sc1")
    a.label(Lc)
    a("s_mov_b32 s30, 0"); a(f"s_mov_b32 s23, {FL_NEAR}")
    a.label(Lp)
    a(f"buffer_load_dword v14, off, {sr(S_WS,4)}, s23 sc1")
    a("s_waitcnt vmcnt(0)")
    a("v_readfirstlane_b32 s34, v14")
    a("s_nop 3")
    a("s_cmp_lg_u32 s34, 0")
    Lq = a.newlabel("Cal")
    a(f"s_cbranch_scc1 {Lq}")
    a("s_sleep 8")
    poll_tail(a, Lp, abort)
    a.label(Lq)
    for c in range(NCOPY):
        a(f"s_bfe_u32 s22, s34, {(c//2) | (1 << 16):#x}"); a("s_lshl_b32 s22, s22, 13"); a(f"s_add_u32 s{SCP+c}, s22, {CH_PART + c*MB}")
    a(f"s_lshl_b32 s28, s{S_X}, 4"); a(f"s_add_u32 s28, s28, s{S_R}"); a("s_add_u32 s28, s28, 32")
    a(f"s_mov_b32 s{S_STEP}, 0")
    if PROF: a("s_memrealtime s[94:95]")

    def gemv(sbase, wbase, tag):
        Lp = a.newlabel("VRp")
        def pl(i): a(f"buffer_load_dwordx4 {vr(PIECE+4*i,4)}, v2, {sr(S_WS,4)}, s{sbase} offen offset:{i*1024} sc1")
        def pc(i):
            a(f"v_cmp_eq_u32 vcc, -1, v{PIECE+4*i}")
        for i in range(16): a(f"v_mov_b32 v{ACC+i}, 0")
        def mm(h):
            for kk in (2*h, 2*h+1):
                for t in range(4):
                    a(f"v_smfmac_f32_16x16x64_bf16 {vr(ACC+4*t,4)}, {vr(PIECE+4*kk,4)}, {ar(wbase+(kk*4+t)*8,8)}, v{VI}")
        def ck(h):
            a(f"v_max_u32 v15, v{PIECE+8*h}, v{PIECE+8*h+4}"); a("v_cmp_eq_u32 vcc, -1, v15")
        Lf = [a.newlabel("VRf") for _ in range(2)]; Lo = [a.newlabel("VRo") for _ in range(2)]; Lr = [a.newlabel("VRr") for _ in range(2)]
        Le = a.newlabel("VRe")
        pl(0); pl(1)
        a("s_sleep 2")
        pl(2); pl(3)
        a.label(Lp)
        for h in range(2):
            a("s_waitcnt vmcnt(2)")
            ck(h)
            a(f"s_cbranch_vccz {Lf[h]}")
            pl(2*h); pl(2*h+1)
        poll_tail(a, Lp, abort)
        for h in (1, 0):
            o = 1-h
            a.label(Lr[h])
            pl(2*o); pl(2*o+1)
            a("s_add_u32 s30, s30, 1"); a(f"s_cmp_ge_u32 s30, {POLL_MAX*(8 if PROF else 1)}"); a(f"s_cbranch_scc1 {abort}")
            a(f"s_branch {Lo[h]}")
            a.label(Lf[h])
            mm(h)
            a.label(Lo[h])
            a("s_waitcnt vmcnt(0)")
            ck(o)
            a(f"s_cbranch_vccnz {Lr[h]}")
            mm(o)
            if h == 1: a(f"s_branch {Le}")
        a.label(Le)
    def sum8():
        for i in range(1, 8):
            a(f"s_waitcnt lgkmcnt({7-i})")
            a(f"v_pk_add_f32 {vr(RD,2)}, {vr(RD,2)}, {vr(RD+4*i,2)}"); a(f"v_pk_add_f32 {vr(RD+2,2)}, {vr(RD+2,2)}, {vr(RD+4*i+2,2)}")

    a.label("L_VR_step")
    a("s_mov_b32 s30, 0")
    a(f"s_and_b32 s35, s{S_STEP}, 3"); a("s_lshl_b32 s39, s35, 16")
    a(f"s_lshl_b32 s21, s{S_X}, 14"); a("s_add_u32 s25, s39, s21")
    a(f"s_add_u32 s20, s25, {CH_MEM}")
    gemv(20, 0, "V")
    ts(a, 0)
    a("s_lshl_b32 s21, s26, 11"); a("s_add_u32 s20, s39, s21"); a(f"s_add_u32 s20, s20, {CH_VM}"); a("s_nop 0")
    a(f"s_lshl_b32 s21, s{S_STEP}, 5"); a("s_add_u32 s21, s21, s26"); a("s_lshl_b32 s21, s21, 12"); a(f"s_add_u32 s21, s21, {KVM_OFF+2048}")
    a(f"ds_write_b128 v{VWV}, {vr(ACC,4)}")
    for t in range(1, 4): a(f"ds_write_b128 v{VWV}, {vr(ACC+4*t,4)} offset:{1024*t}")
    a("s_waitcnt lgkmcnt(0)")
    a("s_barrier")
    for i in range(8): a(f"ds_read_b128 {vr(RD+4*i,4)}, v{VRV} offset:{(i>>1)*4096+(i&1)*512}")
    sum8()
    a(f"v_cvt_pk_bf16_f32 v{RD}, v{RD}, v{RD+1}"); a(f"v_cvt_pk_bf16_f32 v{RD+1}, v{RD+2}, v{RD+3}")
    Lk, Le = a.newlabel("VRk"), a.newlabel("VRe")
    a(f"s_cmp_ge_u32 s{W}, 2"); a(f"s_cbranch_scc1 {Lk}")
    local_store(a, f"buffer_store_dwordx2 {vr(RD,2)}, v{VSV}, {sr(S_WS,4)}, s20 offen")
    a(f"s_branch {Le}")
    a.label(Lk)
    a(f"buffer_store_dwordx2 {vr(RD,2)}, v{VSV}, {sr(S_WS,4)}, s21 offen sc1")
    a.label(Le)
    ts(a, 1)
    a(f"s_cmp_eq_u32 s{S_STEP}, {NSTEP-1}")
    a("s_cbranch_scc1 L_VR_last")
    a(f"s_add_u32 s22, s35, 2"); a("s_and_b32 s22, s22, 3"); a("s_lshl_b32 s22, s22, 18")
    Lq, Lq2 = a.newlabel("VRq"), a.newlabel("VRq")
    a(f"s_cmp_lt_u32 s{S_STEP}, 2"); a(f"s_cbranch_scc1 {Lq}")
    a(f"s_cmp_ge_u32 s{W}, 2"); a(f"s_cbranch_scc1 {Lq2}")
    for c in range(NCOPY):
        if c == NCOPY//2:
            a(f"s_branch {Lq}"); a.label(Lq2)
        a(f"s_add_u32 s23, s22, s{SCP+c}")
        a(f"buffer_store_dwordx4 {vr(POIS,4)}, v{VSP}, {sr(S_WS,4)}, s23 offen sc1")
    a.label(Lq)
    Lq = a.newlabel("VRq")
    a(f"s_cmp_eq_u32 s{W}, 3"); a(f"s_cbranch_scc1 {Lq}")
    a(f"s_cmp_eq_u32 s{S_STEP}, 0"); a(f"s_cbranch_scc1 {Lq}")
    Lq2 = a.newlabel("VRq")
    a(f"s_cmp_eq_u32 s{W}, 2"); a(f"s_cbranch_scc1 {Lq2}")
    a(f"s_sub_u32 s22, s20, {CH_VM}"); a(f"s_add_u32 s22, s22, {3*65536}"); a(f"s_and_b32 s22, s22, {4*65536-1}"); a(f"s_add_u32 s22, s22, {CH_VM}")
    local_store(a, f"buffer_store_dwordx2 {vr(POIS,2)}, v{VSV}, {sr(S_WS,4)}, s22 offen")
    a(f"s_branch {Lq}")
    a.label(Lq2)
    a(f"s_add_u32 s22, s25, {3*65536}"); a(f"s_and_b32 s22, s22, {4*65536-1}"); a(f"s_add_u32 s22, s22, {CH_MEM}")
    local_store(a, f"buffer_store_dwordx4 {vr(POIS,4)}, v{VSM}, {sr(S_WS,4)}, s22 offen")
    a.label(Lq)
    a(f"s_add_u32 s20, s25, {CH_OX}")
    gemv(20, 128, "R")
    ts(a, 2)
    a(f"s_lshl_b32 s20, s35, 18")
    for c in range(NCOPY): a(f"s_add_u32 s{84+c}, s20, s{SCP+c}")
    a("s_nop 0")
    for p in range(2):
        for r in range(4): a(f"v_permlane32_swap_b32 v{ACC+8*p+r}, v{ACC+8*p+4+r}")
        for r in range(0, 4, 2): a(f"v_pk_add_f32 {vr(ACC+8*p+r,2)}, {vr(ACC+8*p+r,2)}, {vr(ACC+8*p+4+r,2)}")
        for r in range(4): a(f"ds_write_b32 v{VWR}, v{ACC+8*p+r} offset:{2*p*R_GS+r*16}")
    a(f"s_add_u32 s22, s25, {65536}"); a(f"s_and_b32 s22, s22, {4*65536-1}"); a(f"s_add_u32 s22, s22, {CH_MEM}")
    Lx = a.newlabel("Xe"); Lpo = a.newlabel("Xpo")
    a(f"s_cmp_ge_u32 s{W}, 2")
    a("s_waitcnt lgkmcnt(0)")
    a("s_barrier")
    a(f"s_cbranch_scc1 {Lpo}")
    for i in range(4): a(f"ds_read_b128 {vr(RD+4*i,4)}, v{VRR} offset:{i*R_PS}")
    a("s_waitcnt lgkmcnt(2)")
    a(f"v_pk_add_f32 {vr(RD,2)}, {vr(RD,2)}, {vr(RD+4,2)}"); a(f"v_pk_add_f32 {vr(RD+2,2)}, {vr(RD+2,2)}, {vr(RD+6,2)}")
    a("s_waitcnt lgkmcnt(0)")
    a(f"v_pk_add_f32 {vr(RD+8,2)}, {vr(RD+8,2)}, {vr(RD+12,2)}"); a(f"v_pk_add_f32 {vr(RD+10,2)}, {vr(RD+10,2)}, {vr(RD+14,2)}")
    a(f"v_pk_add_f32 {vr(RD,2)}, {vr(RD,2)}, {vr(RD+8,2)}"); a(f"v_pk_add_f32 {vr(RD+2,2)}, {vr(RD+2,2)}, {vr(RD+10,2)}")
    for c in range(NCOPY):
        a(f"buffer_store_dwordx4 {vr(RD,4)}, v{VSP}, {sr(S_WS,4)}, s{84+c} offen sc1")
        if c == 0: ts(a, 3); rts(a, 0)
    a(f"s_branch {Lx}")
    a.label(Lpo)
    L3 = a.newlabel("X3")
    a(f"s_cmp_lg_u32 s{W}, 3"); a(f"s_cbranch_scc1 {L3}")
    if step_done: step_done(a, "V3")
    a(f"s_branch {Lx}")
    a.label(L3)
    XS = lambda c: 100 + 24*c
    def xl(c):
        for k in range(3):
            for h in range(2): a(f"buffer_load_dwordx4 {vr(XS(c)+8*k+4*h,4)}, v{VPL+k}, {sr(S_WS,4)}, s{84+c} offen offset:{h*1024} sc1")
    for h in range(2):
        for i in range(4): a(f"ds_read_b128 {vr(RD+16*h+4*i,4)}, v{VPL2} offset:{i*R_PS+h*R_HS}")
    for h in range(2):
        b = RD+16*h
        a(f"s_waitcnt lgkmcnt({4-4*h})")
        for k in (0, 2): a(f"v_pk_add_f32 {vr(b+k,2)}, {vr(b+k,2)}, {vr(b+4+k,2)}")
        for k in (0, 2): a(f"v_pk_add_f32 {vr(b+8+k,2)}, {vr(b+8+k,2)}, {vr(b+12+k,2)}")
        for k in (0, 2): a(f"v_pk_add_f32 {vr(RD+4*h+k,2)}, {vr(b+k,2)}, {vr(b+8+k,2)}")
    ts(a, 3); rts(a, 0)
    if XSLEEP: a(f"s_sleep {XSLEEP}")
    Lg = [a.newlabel("Xg") for _ in range(NCOPY)]; Lj = a.newlabel("Xj"); Lp = a.newlabel("Xp")
    def xc(c):
        b = XS(c)
        a(f"v_max3_u32 v15, v{b}, v{b+4}, v{b+8}")
        a(f"v_max3_u32 v15, v15, v{b+12}, v{b+16}")
        a(f"v_max_u32 v15, v15, v{b+20}")
        a("v_cmp_eq_u32 vcc, -1, v15")
        a(f"s_cbranch_vccz {Lg[c]}")
    for c in range(XAHEAD):
        xl(c)
        if c < XAHEAD-1: a(f"s_sleep {XGAP}")
    for c in range(NCOPY):
        a(f"s_waitcnt vmcnt({6*(min(c+XAHEAD, NCOPY)-1-c)})")
        xc(c)
        if c+XAHEAD < NCOPY: xl(c+XAHEAD)
        if PROF: a("s_add_u32 s30, s30, 0x10000")
    a.label(Lp)
    xl(NCOPY-1)
    a("s_waitcnt vmcnt(0)")
    xc(NCOPY-1)
    poll_tail(a, Lp, abort)
    for c in range(NCOPY):
        a.label(Lg[c])
        b = XS(c)
        for k in range(0, 8, 2): a(f"v_pk_add_f32 {vr(RD+k,2)}, {vr(RD+k,2)}, {vr(b+8+k,2)}")
        for k in range(0, 8, 2): a(f"v_pk_add_f32 {vr(RD+8+k,2)}, {vr(b+k,2)}, {vr(b+16+k,2)}")
        if c < NCOPY-1: a(f"s_branch {Lj}")
    a.label(Lj)
    for k in range(0, 8, 2): a(f"v_pk_add_f32 {vr(RD+k,2)}, {vr(RD+k,2)}, {vr(RD+8+k,2)}")
    for k in range(4): a(f"v_cvt_pk_bf16_f32 v{RD+k}, v{RD+2*k}, v{RD+2*k+1}")
    local_store(a, f"buffer_store_dwordx4 {vr(RD,4)}, v{VSM}, {sr(S_WS,4)}, s22 offen")
    a.label(Lx)
    ts(a, 4); rts(a, 1)
    ts_store(a, 28, 60)
    a(f"s_add_u32 s{S_STEP}, s{S_STEP}, 1")
    a("s_branch L_VR_step")
    a.label("L_VR_last")
    if step_done: step_done(a, "Vlast")

NCH = 24
def assign_roles(a, abort, lds_scratch):
    a("s_getreg_b32 s31, hwreg(HW_REG_XCC_ID)"); a("s_and_b32 s31, s31, 7")
    Lw, Lp, Lg, Lt, Lt2 = [a.newlabel("R") for _ in range(5)]
    L0 = a.newlabel("R")
    a(f"s_cmp_eq_u32 s{S_WAVE}, 0"); a(f"s_cbranch_scc1 {L0}")
    if IDLE: IDLE(a)
    a(f"s_branch {Lw}")
    a.label(L0)
    load_srd(a, 20, 64, 0, 256)
    a("s_mov_b32 s30, 0")
    a("s_cmp_lg_u32 s2, 0"); a(f"s_cbranch_scc1 {Lt}")
    a("s_memrealtime s[24:25]"); a("s_waitcnt lgkmcnt(0)")
    a("s_lshl_b32 s24, s24, 3"); a("s_bitset1_b32 s24, 31")
    a("v_mov_b32 v2, s24")
    a("buffer_store_dword v2, off, s[20:23], 0 sc1")
    a(f"s_branch {Lt2}")
    a.label(Lt)
    a("buffer_load_dword v60, off, s[20:23], 0 sc1")
    a("s_waitcnt vmcnt(0)")
    a("v_readfirstlane_b32 s24, v60")
    a("s_nop 3")
    a("s_cmp_lg_u32 s24, 0"); a(f"s_cbranch_scc1 {Lt2}")
    a("s_sleep 2")
    poll_tail(a, Lt, abort)
    a.label(Lt2)
    a("s_mov_b32 s101, s24")
    a("s_or_b32 s25, s24, s31"); a("v_mov_b32 v2, s25"); a("s_lshl_b32 s26, s2, 2"); a(f"s_add_u32 s26, s26, {TBL_OFF}")
    a("s_mov_b64 exec, 1")
    a(f"buffer_store_dword v2, off, {sr(S_WS,4)}, s26 sc1")
    a("s_mov_b64 exec, -1")
    a(f"v_lshlrev_b32 v3, 2, v{V_LANE}"); a(f"s_mov_b32 s26, {TBL_OFF}"); a("s_mov_b32 s30, 0")
    Lf, Lf2 = a.newlabel("R"), a.newlabel("R")
    a("s_cmp_eq_u32 s2, 0"); a(f"s_cbranch_scc1 {Lp}")
    a("s_mov_b32 s25, 128")
    a.label(Lf)
    a("s_sleep 4")
    a("buffer_load_dword v5, off, s[20:23], s25 sc1")
    a("s_waitcnt vmcnt(0)")
    a("v_cmp_eq_u32 vcc, 0, v5")
    a(f"s_cbranch_vccz {Lp}")
    poll_tail(a, Lf, abort)
    a.label(Lp)
    for k in range(4): a(f"buffer_load_dword v{8+k}, v3, {sr(S_WS,4)}, s26 offen offset:{256*k} sc1")
    a("s_waitcnt vmcnt(0)")
    for k in range(4): a(f"v_xor_b32 v{8+k}, s24, v{8+k}")
    a("v_or_b32 v5, v8, v9"); a("v_or3_b32 v5, v5, v10, v11")
    a("v_cmp_lt_u32 vcc, 7, v5")
    a(f"s_cbranch_vccz {Lg}")
    a("s_sleep 2")
    poll_tail(a, Lp, abort)
    a.label(Lg)
    a("s_cmp_lg_u32 s2, 0"); a(f"s_cbranch_scc1 {Lf2}")
    a("v_mov_b32 v5, 1"); a("s_mov_b32 s25, 128")
    a("buffer_store_dword v5, off, s[20:23], s25 sc1")
    a.label(Lf2)
    a("s_mov_b32 s32, 0")
    for x in range(8):
        a("s_mov_b32 s25, 0")
        for k in range(4):
            a(f"v_cmp_eq_u32 vcc, {x}, v{8+k}"); a("s_nop 0"); a("s_bcnt1_i32_b64 s27, vcc"); a("s_add_u32 s25, s25, s27")
        a(f"v_writelane_b32 v5, s25, {x}")
    for k in range(4):
        a(f"v_add_u32 v2, {64*k}, v{V_LANE}")
        a(f"v_cmp_eq_u32 vcc, s31, v{8+k}"); a("v_cmp_gt_u32 s[26:27], s2, v2"); a("s_nop 0")
        a("s_and_b64 vcc, vcc, s[26:27]"); a("s_bcnt1_i32_b64 s27, vcc"); a("s_add_u32 s32, s32, s27")
    a("v_writelane_b32 v5, s32, 8")
    a(f"v_mov_b32 v4, {lds_scratch}")
    a(f"v_lshl_add_u32 v3, v{V_LANE}, 2, v4")
    a("s_mov_b64 exec, 0x1ff")
    a("ds_write_b32 v3, v5")
    a("s_mov_b64 exec, -1")
    a("s_waitcnt lgkmcnt(0)")
    a.label(Lw)
    a("s_barrier")
    a("s_getreg_b32 s31, hwreg(HW_REG_XCC_ID)"); a("s_and_b32 s31, s31, 7")
    a(f"v_mov_b32 v12, {lds_scratch}")
    a(f"v_and_b32 v3, 15, v{V_LANE}"); a("v_lshl_add_u32 v3, v3, 2, v12")
    a("ds_read_b32 v13, v3")
    a("s_waitcnt lgkmcnt(0)")
    a("v_readlane_b32 s32, v13, 8")
    a("s_mov_b32 s33, 0"); a("s_mov_b32 s25, 256")
    for i in range(8):
        a(f"v_readlane_b32 s24, v13, {i}"); a("s_nop 0")
        a("s_min_u32 s25, s25, s24")
        a(f"s_cmp_gt_u32 s31, {i}"); a("s_cselect_b32 s24, s24, 0"); a("s_add_u32 s33, s33, s24")
    a("s_add_u32 s33, s33, s32")
    a("s_barrier")
    Ls, Le = a.newlabel("Rs"), a.newlabel("Re")
    if FORCE_FALLBACK: a("s_mov_b32 s25, 0")
    a("s_cmp_lt_u32 s25, 32"); a(f"s_cbranch_scc1 {Ls}")
    a(f"s_mov_b32 s{S_MODE}, 0"); a(f"s_mov_b32 s{S_X}, s31"); a(f"s_mov_b32 s{S_R}, s32")
    a("s_cmp_lt_u32 s31, 4"); a("s_cselect_b32 s29, 1, 0")
    a(f"s_cmp_lt_u32 s32, {NCH}"); a("s_cselect_b32 s29, s29, 0")
    a(f"s_branch {Le}")
    a.label(Ls)
    a(f"s_mov_b32 s{S_MODE}, 1")
    a(f"s_mul_i32 s{S_X}, s33, 2731"); a(f"s_lshr_b32 s{S_X}, s{S_X}, 16")
    a(f"s_mul_i32 s24, s{S_X}, {NCH}"); a(f"s_sub_u32 s{S_R}, s33, s24")
    a(f"s_cmp_lt_u32 s33, {4*NCH}"); a("s_cselect_b32 s29, 1, 0")
    a.label(Le)
```

```python
from common import *

V_LANE = 1
V_DX = 16
V_DW = 24
V_RA = 32
V_FR = 64
V_T  = 128
S_SRDX = 8; S_SRDW = 12
S_OFFX = 16; S_OFFW = 17; S_M0X = 18; S_M0W = 19; S_LOOP = 20; S_WAVE = 3

KNOB = dict(nodma=False, noread=False, stagger=False, shift=0, m16=False, place=2)
class Gemm:
    def __init__(s, a, tag, MT, NT, NST, strX, strW, wmap, swap=False, xflags="", wflags="", xr4=False, wperm=False):
        s.a, s.tag, s.MT, s.NT, s.NST = a, tag, MT, NT, NST
        s.strX, s.strW, s.wmap, s.swap = strX, strW, wmap, swap
        s.xflags, s.wflags = xflags, wflags
        s.xr4, s.wperm = xr4, wperm
        s.junk = None
        s.XS = 8192*MT; s.WS = 8192*NT; s.SS = s.XS + s.WS
        s.RB = 64*NT
        s.D = 2*MT + 2*NT
        assert NT in (2, 4) and s.SS*NST <= 160*1024

    def acc(s, mt, nt): return (mt*s.NT + nt)*16
    def fx(s, st, mt): return V_FR + st*32 + mt*4
    def fw(s, st, nt): return V_FR + st*32 + 16 + nt*4

    def setup(s):
        a = s.a; MT, NT = s.MT, s.NT; L = V_LANE
        if not s.xr4:
            a(f"v_lshrrev_b32 v3, 4, v{L}")
            a(f"v_and_b32 v4, 7, v{L}")
            a(f"v_xor_b32 v3, v3, v4")
            a(f"v_lshrrev_b32 v2, 3, v{L}")
            a(f"s_mul_i32 s21, s{S_WAVE}, {16*MT}")
            a(f"v_add_u32 v2, s21, v2")
            a(f"s_mov_b32 s22, {s.strX}")
            a(f"v_mul_lo_u32 v2, v2, s22")
            a(f"v_lshlrev_b32 v3, 4, v3")
            a(f"v_xor_b32 v4, 64, v3")
        else:
            a(f"v_lshrrev_b32 v2, 5, v{L}")
            a(f"v_and_b32 v3, 31, v{L}"); a("v_lshlrev_b32 v3, 4, v3"); a("v_lshlrev_b32 v4, 7, v2"); a("v_xor_b32 v3, v3, v4")
            a(f"s_mul_i32 s21, s{S_WAVE}, {4*MT}")
            a(f"v_add_u32 v2, s21, v2")
            a(f"s_mov_b32 s22, {4*s.strX}")
            a(f"v_mul_lo_u32 v2, v2, s22")
            a(f"v_xor_b32 v4, 16, v3")
        a(f"v_add_u32 v3, v2, v3"); a(f"v_add_u32 v4, v2, v4")
        for j in range(2*MT):
            a(f"v_add_u32 v{V_DX+j}, {8*j*s.strX}, v{3+(j&1)}")
        lpr = s.RB//16; rpi = 64//lpr; sh = {16: 4, 8: 3}[lpr]
        a(f"v_lshrrev_b32 v2, {sh}, v{L}")
        a(f"v_and_b32 v3, {lpr-1}, v{L}")
        if NT == 4: a(f"v_lshlrev_b32 v4, 2, v2")
        else:
            a(f"v_and_b32 v4, 2, v2"); a(f"v_lshlrev_b32 v4, 1, v4")
        a(f"v_xor_b32 v3, v3, v4")
        a(f"s_and_b32 s21, s{S_WAVE}, 1"); a(f"s_lshl_b32 s21, s21, 5")
        if s.wperm and rpi == 8:
            a(f"v_lshrrev_b32 v4, 2, v2"); a("v_lshlrev_b32 v4, 4, v4"); a("v_and_b32 v2, 3, v2"); a("v_add_u32 v2, v2, v4")
        a(f"v_add_u32 v2, s21, v2")
        a(f"s_mov_b32 s22, {s.strW}")
        a(f"v_mul_lo_u32 v2, v2, s22")
        a(f"s_lshr_b32 s23, s{S_WAVE}, 1")
        if s.wmap == "head":
            a(f"v_lshrrev_b32 v4, 3, v3"); a(f"v_lshlrev_b32 v4, 8, v4")
            a(f"v_and_b32 v3, 7, v3"); a(f"v_lshlrev_b32 v3, 4, v3")
            a(f"v_add_u32 v3, v3, v4")
            a(f"s_lshl_b32 s23, s23, 7")
            a(f"v_add_u32 v3, s23, v3")
        elif s.wmap == "plain":
            a(f"v_lshlrev_b32 v3, 4, v3")
            a(f"s_mul_i32 s23, s23, {s.RB}")
            a(f"v_add_u32 v3, s23, v3")
        else:
            a(f"v_lshlrev_b32 v3, 4, v3")
        a(f"v_add_u32 v2, v2, v3")
        for j in range(2*NT):
            if not s.wperm: row = rpi*j
            elif rpi == 8: row = 4*j
            else: row = 16*(j & 1) + 4*(j >> 1)
            a(f"v_add_u32 v{V_DW+j}, {row*s.strW}, v2")
        a(f"s_mul_i32 s{S_M0X}, s{S_WAVE}, {2048*MT}")
        a(f"s_mul_i32 s{S_M0W}, s{S_WAVE}, {2048*NT}")
        a(f"s_add_u32 s{S_M0W}, s{S_M0W}, {s.XS}")
        a(f"s_lshr_b32 s21, s{S_WAVE}, 1"); a(f"s_mul_i32 s21, s21, {32*MT}")
        if not s.xr4:
            a(f"v_and_b32 v2, 31, v{L}")
            a(f"v_lshrrev_b32 v3, 1, v2"); a(f"v_and_b32 v3, 7, v3")
            a(f"v_lshrrev_b32 v4, 5, v{L}")
            a(f"v_xor_b32 v3, v3, v4")
            a(f"v_add_u32 v2, s21, v2"); a(f"v_lshlrev_b32 v2, 7, v2")
            for ks in range(4):
                a(f"v_xor_b32 v4, {2*ks}, v3"); a(f"v_lshlrev_b32 v4, 4, v4")
                a(f"v_add_u32 v{V_RA+ks}, v2, v4")
        else:
            a(f"v_bfe_u32 v2, v{L}, 2, 3"); a("v_lshlrev_b32 v2, 9, v2"); a("s_lshl_b32 s21, s21, 7"); a("v_add_u32 v2, s21, v2")
            a(f"v_and_b32 v3, 3, v{L}"); a("v_lshl_add_u32 v2, v3, 5, v2")
            a(f"v_lshrrev_b32 v3, 5, v{L}"); a(f"v_bfe_u32 v4, v{L}, 3, 1"); a("v_xor_b32 v3, v3, v4"); a("v_lshl_add_u32 v2, v3, 4, v2")
            a(f"v_bfe_u32 v3, v{L}, 2, 1")
            for ks in range(4):
                a(f"v_xor_b32 v4, {ks}, v3"); a(f"v_lshl_add_u32 v{V_RA+ks}, v4, 7, v2")
        a(f"v_lshrrev_b32 v2, 5, v{L}"); a(f"v_lshlrev_b32 v2, 3, v2")
        a(f"v_bfe_u32 v3, v{L}, 2, 2")
        a(f"v_add_u32 v2, v2, v3")
        a(f"v_mul_u32_u24 v2, {s.RB}, v2")
        a(f"v_bfe_u32 v4, v{L}, 4, 1"); a(f"v_lshlrev_b32 v4, 5, v4"); a(f"v_add_u32 v2, v2, v4")
        a(f"v_and_b32 v4, 3, v{L}"); a(f"v_lshlrev_b32 v4, 3, v4"); a(f"v_add_u32 v2, v2, v4")
        a(f"v_add_u32 v2, {s.XS}, v2")
        a(f"s_and_b32 s21, s{S_WAVE}, 1")
        if NT == 4:
            a(f"s_lshl_b32 s21, s21, 1")
            for p in range(2):
                a(f"v_xor_b32 v4, s21, v3")
                if p: a(f"v_xor_b32 v4, 1, v4")
                a(f"v_lshlrev_b32 v4, 6, v4"); a(f"v_add_u32 v{V_RA+4+p}, v2, v4")
        else:
            a(f"v_lshrrev_b32 v4, 1, v3"); a(f"v_xor_b32 v4, s21, v4")
            a(f"v_lshlrev_b32 v4, 6, v4"); a(f"v_add_u32 v{V_RA+4}, v2, v4")
        for b in range(1, s.NST):
            for r in range(6 if NT == 4 else 5):
                a(f"v_add_u32 v{V_RA+6*b+r}, {b*s.SS}, v{V_RA+r}")

    def dma_groups(s, buf):
        g = []
        for j in range(2*s.MT):
            g.append([f"s_add_u32 m0, s{S_M0X}, {buf*s.SS + 1024*j}", None,
                      f"buffer_load_dwordx4 v{V_DX+j}, {sr(S_SRDX,4)}, s{S_OFFX} offen {s.xflags} lds"])
        for j in range(2*s.NT):
            g.append([f"s_add_u32 m0, s{S_M0W}, {buf*s.SS + 1024*j}", None,
                      f"buffer_load_dwordx4 v{V_DW+j}, {sr(S_SRDW,4)}, s{S_OFFW} offen {s.wflags} lds"])
        x, w = g[:2*s.MT], g[2*s.MT:]
        out = []
        for i in range(max(len(x), len(w))):
            if i < len(x): out.append(x[i])
            if i < len(w): out.append(w[i])
        return out
    def advance(s):
        return [f"s_add_u32 s{S_OFFX}, s{S_OFFX}, {512 if s.xr4 else 128}", f"s_add_u32 s{S_OFFW}, s{S_OFFW}, {64*s.strW}"]
    def reads(s, buf, ks, st):
        r = []
        ra = V_RA + 6*buf
        xs = [f"ds_read_b128 {vr(s.fx(st,mt),4)}, v{ra+ks} offset:{mt*4096}" for mt in range(s.MT)]
        ws = []
        for nt in range(s.NT):
            half = nt // (s.NT//2); p = (nt % 2) if s.NT == 4 else 0
            for q in range(2):
                off = half*(s.WS//2) + (16*ks + 4*q)*s.RB
                ws.append(f"ds_read_b64_tr_b16 {vr(s.fw(st,nt)+2*q,2)}, v{ra+4+p} offset:{off}")
        r += ws[0:2] + xs[0:1]
        xi, wi = 1, 2
        while xi < len(xs) or wi < len(ws):
            if xi < len(xs): r.append(xs[xi]); xi += 1
            if wi < len(ws): r += ws[wi:wi+2]; wi += 2
        return r
    def mfmas(s, st, zero=False):
        m = []
        for nt in range(s.NT):
            for mt in range(s.MT):
                c = s.acc(mt, nt)
                A, B = vr(s.fw(st,nt),4), vr(s.fx(st,mt),4)
                if s.swap: A, B = B, A
                if KNOB['m16']:
                    st2 = 4*(st & 1)*2
                    m.append(f"v_mfma_f32_16x16x32_bf16 {ar(c+st2,4)}, {A}, {B}, {'0' if zero else ar(c+st2,4)}")
                    m.append(f"v_mfma_f32_16x16x32_bf16 {ar(c+st2+4,4)}, {B}, {A}, {'0' if zero else ar(c+st2+4,4)}")
                else:
                    m.append(f"v_mfma_f32_32x32x16_bf16 {ar(c,16)}, {A}, {B}, {'0' if zero else ar(c,16)}")
        return m

    def kstep(s, st, reads, dmas, zero=False, tail=None, pre=None):
        a = s.a
        m = s.mfmas(st, zero); n = len(m)
        gaps = [[] for _ in range(n)]
        ngap = n if tail is None else max(1, n - max(1, n//4))
        rg = max(1, min(ngap, len(reads))) if tail is None else max(1, min(ngap - (1 if ngap > 2 else 0), len(reads)))
        if n >= 16: rg = min(rg, 12 if tail is None else 8)
        pl = KNOB['place'] if n >= 16 else 0
        if KNOB['nodma']: dmas = []
        if KNOB['noread']: reads = []
        if KNOB['m16']:
            for i, g in enumerate(dmas): gaps[2*i+1].append(g)
            o = 2*len(dmas)
            for i, r in enumerate(reads): gaps[o + i].append(r)
        elif pl == 0:
            for i, r in enumerate(reads): gaps[i*rg//len(reads)].append(r)
            for i, g in enumerate(dmas): gaps[(2*i+1)*ngap//(2*len(dmas))].append(g)
        elif pl == 1:
            for i, r in enumerate(reads): gaps[i//2].append(r)
            for i, g in enumerate(dmas): gaps[6 + (i*10)//len(dmas) + (1 if len(dmas) <= 5 else 0)].append(g)
        elif pl == 2:
            if dmas:
                for i, g in enumerate(dmas): gaps[i].append(g)
                for i, r in enumerate(reads): gaps[len(dmas) + i//2 + (0 if len(dmas) > 5 else 1)].append(r)
            else:
                for i, r in enumerate(reads): gaps[i*rg//len(reads)].append(r)
        elif pl == 3:
            if dmas:
                for i, r in enumerate(reads): gaps[2*(i//2)].append(r)
                for i, g in enumerate(dmas): gaps[2*i+1 + (2 if len(dmas) <= 5 else 0)].append(g)
            else:
                for i, r in enumerate(reads): gaps[i*rg//len(reads)].append(r)
        a("s_waitcnt lgkmcnt(0)")
        if pre:
            for x in pre: a(x)
        early = False
        for i in range(n):
            if tail is not None and i == ngap:
                for x in tail: a(x)
            a(m[i])
            grp = [x for x in gaps[i] if isinstance(x, list)]
            rds = [x for x in gaps[i] if not isinstance(x, list)]
            for gi, g in enumerate(grp):
                if not (gi == 0 and early):
                    a(g[0])
                    if rds: a(rds.pop(0))
                    else: a("s_nop 0")
                a(g[2])
            for r in rds: a(r)
            nx = [x for x in gaps[i+1] if isinstance(x, list)] if i+1 < n else []
            early = bool(nx) and KNOB['place'] > 0 and not (tail is not None and i+1 == ngap)
            if early: a(nx[0][0])

    def issue_stage(s, buf):
        a = s.a
        for g in s.dma_groups(buf):
            a(g[0]); a("s_nop 0"); a(g[2])
        for x in s.advance(): a(x)

    def phase(s, bcur, dma, vm, last_barrier=True):
        bn = (bcur+1) % s.NST
        d = s.dma_groups(bcur) if dma else []
        k = (len(d)+2)//3
        parts = [d[0:k], d[k:2*k], d[2*k:]]
        nj = 0
        if dma and s.junk:
            m0, v, srds, so = s.junk; nj = len(srds)
            parts[2] = parts[2] + [[f"s_mov_b32 m0, {m0}", None, f"buffer_load_dwordx4 v{v}, {sr(r,4)}, s{so} offen lds"] for r in srds]
        s.kstep(1, s.reads(bn, 0, 0), parts[0])
        s.kstep(0, s.reads(bn, 1, 1), parts[1])
        s.kstep(1, s.reads(bn, 2, 0), parts[2])
        tail = []
        if vm is not None: tail.append(f"s_waitcnt vmcnt({vm+nj}) lgkmcnt(0)")
        else: tail.append("s_waitcnt lgkmcnt(0)")
        if last_barrier: tail.append("s_barrier")
        pre = s.advance() if dma else None
        if nj: pre.append(f"s_add_u32 s{s.junk[3]}, s{s.junk[3]}, 1024")
        s.kstep(0, s.reads(bn, 3, 1), [], tail=tail, pre=pre)

    def prologue_dma(s):
        for b in range(s.NST): s.issue_stage(b)

    def main(s, T, dma_issued=False, extra_vm=0, hook_first=None, hook_tail=None, hook_second=None):
        a = s.a; N = s.NST; D = s.D
        assert T >= 2*N
        rem = (T - N) % N
        if not dma_issued: s.prologue_dma()
        a(f"s_waitcnt vmcnt({min(63,(N-1)*D + extra_vm)})")
        a("s_barrier")
        for r in s.reads(0, 0, 0): a(r)
        if hook_first: hook_first()
        s.kstep(0, s.reads(0, 1, 1), [], zero=True)
        s.kstep(1, s.reads(0, 2, 0), [])
        s.kstep(0, s.reads(0, 3, 1), [], tail=[f"s_waitcnt vmcnt({min(63,(N-2)*D + extra_vm)}) lgkmcnt(0)", "s_barrier"])
        if hook_second: hook_second()
        a(f"s_mov_b32 s{S_LOOP}, {(T-N)//N}")
        ncopy = 3 if KNOB['stagger'] else 1
        Ls = [a.newlabel(f"G{s.tag}") for _ in range(ncopy)]
        Le = a.newlabel(f"GE{s.tag}")
        if ncopy > 1:
            a(f"s_cmp_eq_u32 s{S_WAVE}, 1"); a(f"s_cbranch_scc1 {Ls[1]}")
            a(f"s_cmp_eq_u32 s{S_WAVE}, 2"); a(f"s_cbranch_scc1 {Ls[2]}")
            a(f"s_cmp_eq_u32 s{S_WAVE}, 3"); a(f"s_cbranch_scc1 {Ls[1]}")
        for c in range(ncopy):
            s.shift = c
            a.label(Ls[c])
            for b in range(N):
                s.phase(b, True, (N-2)*D)
            a(f"s_sub_u32 s{S_LOOP}, s{S_LOOP}, 1")
            a(f"s_cmp_lg_u32 s{S_LOOP}, 0")
            a(f"s_cbranch_scc1 {Ls[c]}")
            if c < ncopy-1: a(f"s_branch {Le}")
        a.label(Le)
        for b in range(rem): s.phase(b, True, (N-2)*D)
        for i in range(N-1):
            p = T-N+i
            if p+2 <= T-1: s.phase((rem+i) % N, False, (T-1-(p+2))*D)
            else:
                if hook_tail: hook_tail()
                s.phase((rem+i) % N, False, None)
        s.kstep(1, [], [])

    def accread(s, dst, src):
        s.a(f"v_accvgpr_read_b32 v{dst}, a{src}")

    def epi_qk(s, srd, s_base, flags=""):
        a = s.a; L = V_LANE; T = V_T
        a("s_nop 15")
        a(f"v_bfe_u32 v2, v{L}, 4, 1"); a("v_lshlrev_b32 v2, 12, v2")
        a(f"v_and_b32 v3, 15, v{L}"); a("v_lshl_add_u32 v2, v3, 4, v2")
        a(f"v_lshrrev_b32 v3, 5, v{L}"); a("v_lshl_add_u32 v2, v3, 8, v2")
        a(f"s_lshr_b32 s21, s{S_WAVE}, 1"); a(f"s_mul_i32 s21, s21, {s.MT*32*8192}")
        a(f"s_and_b32 s22, s{S_WAVE}, 1"); a("s_lshl_b32 s22, s22, 13"); a("s_add_u32 s21, s21, s22")
        a(f"s_add_u32 s21, s21, s{s_base}")
        k = 0
        for mt in range(s.MT):
            for t in range(2):
                for q in range(4):
                    R = T + (k % 4)*12; k += 1
                    for i in range(4): s.accread(R+4+i, s.acc(mt,t)+4*q+i)
                    for i in range(4): s.accread(R+8+i, s.acc(mt,t+2)+4*q+i)
                    for i in range(4): a(f"v_cvt_pk_bf16_f32 v{R+i}, v{R+4+2*i}, v{R+5+2*i}")
                    a(f"buffer_store_dwordx4 {vr(R,4)}, v2, {sr(srd,4)}, s21 offen offset:{512*(4*t+q)} {flags}")
            if mt < s.MT-1: a(f"s_add_u32 s21, s21, {32*8192}")

    def epi_v(s, srd, s_base, flags=""):
        a = s.a; L = V_LANE; T = V_T
        a("s_nop 15")
        a(f"v_bfe_u32 v2, v{L}, 4, 1"); a("v_lshlrev_b32 v2, 10, v2")
        a(f"v_and_b32 v3, 15, v{L}"); a("v_lshl_add_u32 v2, v3, 4, v2")
        a(f"v_lshrrev_b32 v3, 5, v{L}"); a("v_lshl_add_u32 v2, v3, 8, v2")
        a("v_add_u32 v3, 4096, v2")
        a(f"s_lshr_b32 s21, s{S_WAVE}, 1"); a(f"s_mul_i32 s21, s21, {s.MT*32*8192}")
        a(f"s_and_b32 s22, s{S_WAVE}, 1"); a("s_lshl_b32 s22, s22, 13"); a("s_add_u32 s21, s21, s22")
        a(f"s_add_u32 s21, s21, s{s_base}")
        k = 0
        for mt in range(s.MT):
            for nt in range(4):
                for qp in range(2):
                    R = T + (k % 4)*12; k += 1
                    for i in range(4): s.accread(R+4+i, s.acc(mt,nt)+4*qp+i)
                    for i in range(4): s.accread(R+8+i, s.acc(mt,nt)+8+4*qp+i)
                    for i in range(4): a(f"v_cvt_pk_bf16_f32 v{R+i}, v{R+4+2*i}, v{R+5+2*i}")
                    a(f"buffer_store_dwordx4 {vr(R,4)}, v{2+(nt>>1)}, {sr(srd,4)}, s21 offen offset:{(nt&1)*2048+512*qp} {flags}")
            if mt < s.MT-1: a(f"s_add_u32 s21, s21, {32*8192}")

    def row_voffset(s, stride, wn_bytes, r4, dst=2):
        a = s.a; L = V_LANE; d = dst
        a(f"s_lshr_b32 s21, s{S_WAVE}, 1"); a(f"s_mul_i32 s21, s21, {32*s.MT*stride}")
        a(f"s_and_b32 s22, s{S_WAVE}, 1"); a(f"s_mul_i32 s22, s22, {wn_bytes*(4 if r4 else 1)}")
        a("s_add_u32 s21, s21, s22")
        if r4:
            a(f"v_bfe_u32 v{d}, v{L}, 2, 3"); a(f"s_mov_b32 s22, {4*stride}"); a(f"v_mul_lo_u32 v{d}, v{d}, s22")
            a(f"v_and_b32 v3, 3, v{L}"); a("v_lshlrev_b32 v3, 5, v3"); a(f"v_add_u32 v{d}, v{d}, v3")
        else:
            a(f"v_and_b32 v{d}, 31, v{L}"); a(f"s_mov_b32 s22, {stride}"); a(f"v_mul_lo_u32 v{d}, v{d}, s22")
        a(f"v_lshrrev_b32 v3, 5, v{L}"); a("v_lshlrev_b32 v3, 4, v3"); a(f"v_add_u32 v{d}, v{d}, v3")
        a(f"v_add_u32 v{d}, s21, v{d}")

    def epi_gu(s, srd, s_base, flags=""):
        import math
        a = s.a; T = V_T
        a("s_nop 15")
        s.row_voffset(H_STR, 128, True)
        c0 = -2.0*math.sqrt(2.0/math.pi)*math.log2(math.e); c1 = c0*0.044715
        a(f"v_mov_b32 v4, {f2u(c0):#x}"); a(f"v_mov_b32 v5, {f2u(c0):#x}")
        a(f"v_mov_b32 v6, {f2u(c1):#x}"); a(f"v_mov_b32 v7, {f2u(c1):#x}")
        a("v_mov_b32 v8, 1.0"); a("v_mov_b32 v9, 1.0")
        a(f"s_mov_b32 s21, s{s_base}")
        k = 0
        for mt in range(s.MT):
            for t in range(2):
                for qq in range(2):
                    R = T + (k % 2)*40; k += 1
                    G, U, P, O = R, R+8, R+16, R+32
                    for i in range(8): s.accread(G+i, s.acc(mt,t)+8*qq+i)
                    for i in range(8): s.accread(U+i, s.acc(mt,t+2)+8*qq+i)
                    for i in range(0, 8, 2): a(f"v_pk_mul_f32 {vr(P+i,2)}, {vr(G+i,2)}, {vr(G+i,2)}")
                    for i in range(0, 8, 2): a(f"v_pk_fma_f32 {vr(P+i,2)}, {vr(P+i,2)}, v[6:7], v[4:5]")
                    for i in range(0, 8, 2): a(f"v_pk_mul_f32 {vr(P+i,2)}, {vr(P+i,2)}, {vr(G+i,2)}")
                    for i in range(8): a(f"v_exp_f32 v{P+i}, v{P+i}")
                    for i in range(0, 8, 2): a(f"v_pk_mul_f32 {vr(G+i,2)}, {vr(G+i,2)}, {vr(U+i,2)}")
                    for i in range(0, 8, 2): a(f"v_pk_add_f32 {vr(P+i,2)}, {vr(P+i,2)}, v[8:9]")
                    for i in range(8): a(f"v_rcp_f32 v{P+i}, v{P+i}")
                    a("s_nop 0")
                    for i in range(0, 8, 2): a(f"v_pk_mul_f32 {vr(G+i,2)}, {vr(G+i,2)}, {vr(P+i,2)}")
                    for i in range(4): a(f"v_cvt_pk_bf16_f32 v{O+i}, v{G+2*i}, v{G+2*i+1}")
                    a("s_nop 1")
                    a(f"v_permlane32_swap_b32 v{O}, v{O+2}")
                    a(f"v_permlane32_swap_b32 v{O+1}, v{O+3}")
                    a(f"buffer_store_dwordx4 {vr(O,4)}, v2, {sr(srd,4)}, s21 offen offset:{4*(64*t+32*qq)} {flags}")
            if mt < s.MT-1: a(f"s_add_u32 s21, s21, {32*H_STR}")

    def epi_plain(s, srd, s_row0, s_col0, flags="", final=None):
        a = s.a; T = V_T; NT = s.NT
        s.row_voffset(2048, 32*NT, True, 10)
        if final: s.row_voffset(2048, 32*NT, False, 2)
        groups = []
        for mt in range(s.MT):
            for nt in range(NT):
                for qq in range(2):
                    off = (nt//(NT//2))*64*NT + (nt % (NT//2))*64 + 32*qq
                    groups.append((mt, nt, qq, off))
        def srow(mt): return 84 + mt
        def srow4(mt): return 88 + mt
        a(f"s_lshl_b32 s21, s{s_col0}, 2"); a(f"s_add_u32 s21, s21, s{s_row0}")
        a(f"s_add_u32 s22, s{s_col0}, s{s_row0}")
        for mt in range(s.MT):
            a(f"s_add_u32 s{srow(mt)}, s22, {mt*32*2048}")
            a(f"s_add_u32 s{srow4(mt)}, s21, {mt*32*2048}")
        LD = T + 32
        NB = 12
        def issue(i):
            mt, nt, qq, off = groups[i]
            Rr = LD + (i % NB)*8
            a(f"buffer_load_dwordx4 {vr(Rr,4)}, v2, {sr(final[0],4)}, s{srow(mt)} offen offset:{off}")
            a(f"buffer_load_dwordx4 {vr(Rr+4,4)}, v10, {sr(final[1],4)}, s{srow4(mt)} offen offset:{4*off} {final[2]}")
        if final:
            for i in range(min(NB-1, len(groups))): issue(i)
        a("s_nop 15")
        for gi, (mt, nt, qq, off) in enumerate(groups):
            R = T + (gi % 2)*16
            G, O = R, R+8
            for i in range(8): s.accread(G+i, s.acc(mt,nt)+8*qq+i)
            for i in range(4): a(f"v_cvt_pk_bf16_f32 v{O+i}, v{G+2*i}, v{G+2*i+1}")
            a("s_nop 1")
            a(f"v_permlane32_swap_b32 v{O}, v{O+2}")
            a(f"v_permlane32_swap_b32 v{O+1}, v{O+3}")
            if final:
                nxt = gi + NB - 1
                if nxt < len(groups): issue(nxt)
                lo = 2*(min(nxt, len(groups)-1) - gi)
                a(f"s_waitcnt vmcnt({lo})")
                X = LD + (gi % NB)*8
                for i in range(4):
                    a(f"v_lshlrev_b32 v{G}, 16, v{O+i}"); a(f"v_and_b32 v{G+1}, 0xffff0000, v{O+i}")
                    a(f"v_lshlrev_b32 v{G+2}, 16, v{X+i}"); a(f"v_and_b32 v{G+3}, 0xffff0000, v{X+i}")
                    a(f"v_pk_add_f32 {vr(G,2)}, {vr(G,2)}, {vr(G+2,2)}")
                    a(f"v_cvt_pk_bf16_f32 v{G+4}, v{G}, v{G+1}")
                    a(f"v_lshlrev_b32 v{G}, 16, v{G+4}"); a(f"v_and_b32 v{G+1}, 0xffff0000, v{G+4}")
                    a(f"v_lshlrev_b32 v{G+2}, 16, v{X+4+i}"); a(f"v_and_b32 v{G+3}, 0xffff0000, v{X+4+i}")
                    a(f"v_pk_add_f32 {vr(G,2)}, {vr(G,2)}, {vr(G+2,2)}")
                    a(f"v_cvt_pk_bf16_f32 v{O+i}, v{G}, v{G+1}")
                a(f"buffer_store_dwordx4 {vr(O,4)}, v2, {sr(srd,4)}, s{srow(mt)} offen offset:{off} {flags}")
            else:
                a(f"buffer_store_dwordx4 {vr(O,4)}, v10, {sr(srd,4)}, s{srow4(mt)} offen offset:{4*off} {flags}")
```

```python
from common import *

def emit_ln_row(a, srd_x, srd_xn, s_row, vb, store_flags="", preloaded=None, vm=0):
    L = vb; X = vb+2; F = vb+12; T = vb+30
    assert X % 2 == 0
    st = s_row+1
    if preloaded is None:
        a(f"s_lshl_b32 s{st}, s{s_row}, 11")
        a(f"buffer_load_dwordx4 {vr(X,4)}, v{L}, {sr(srd_x,4)}, s{st} offen")
        a(f"buffer_load_dwordx4 {vr(X+4,4)}, v{L}, {sr(srd_x,4)}, s{st} offen offset:1024")
    else: X = preloaded
    a(f"s_waitcnt vmcnt({vm})")
    for i in range(8):
        a(f"v_lshlrev_b32 v{F+2*i}, 16, v{X+i}")
        a(f"v_and_b32 v{F+2*i+1}, 0xffff0000, v{X+i}")
    a(f"v_add_f32 v{T}, v{F}, v{F+1}")
    for i in range(2, 16): a(f"v_add_f32 v{T}, v{T}, v{F+i}")
    wave_reduce(a, "v_add_f32", T, T+1)
    a(f"v_mul_f32 v{T}, {f2u(1/1024):#x}, v{T}")
    a(f"v_sub_f32 v{T+2}, v{F}, v{T}")
    a(f"v_mul_f32 v{T+3}, v{T+2}, v{T+2}")
    for i in range(1, 16):
        a(f"v_sub_f32 v{T+2}, v{F+i}, v{T}")
        a(f"v_fmac_f32 v{T+3}, v{T+2}, v{T+2}")
    wave_reduce(a, "v_add_f32", T+3, T+1)
    a(f"v_mul_f32 v{T+3}, {f2u(1/1024):#x}, v{T+3}")
    round_bf16(a, T, T)
    round_bf16(a, T+3, T+3)
    a(f"v_add_f32 v{T+3}, {f2u(1e-5):#x}, v{T+3}")
    round_bf16(a, T+3, T+3)
    a(f"v_sqrt_f32 v{T+3}, v{T+3}")
    a("s_nop 0")
    round_bf16(a, T+3, T+3)
    a(f"v_rcp_f32 v{T+4}, v{T+3}")
    for i in range(8):
        a(f"v_sub_f32 v{F+2*i}, v{F+2*i}, v{T}")
        a(f"v_sub_f32 v{F+2*i+1}, v{F+2*i+1}, v{T}")
        a(f"v_cvt_pk_bf16_f32 v{X+i}, v{F+2*i}, v{F+2*i+1}")
        a(f"v_lshlrev_b32 v{F+2*i}, 16, v{X+i}")
        a(f"v_and_b32 v{F+2*i+1}, 0xffff0000, v{X+i}")
        for j in (0, 1):
            f = F+2*i+j
            a(f"v_mul_f32 v{T+5+j}, v{f}, v{T+4}")
            a(f"v_fma_f32 v{f}, -v{T+5+j}, v{T+3}, v{f}")
            a(f"v_fma_f32 v{T+5+j}, v{f}, v{T+4}, v{T+5+j}")
        a(f"v_cvt_pk_bf16_f32 v{X+i}, v{T+5}, v{T+6}")
    a(f"s_mul_i32 s{st}, s{s_row}, {XN_STR}")
    a(f"buffer_store_dwordx4 {vr(X,4)}, v{L}, {sr(srd_xn,4)}, s{st} offen {store_flags}")
    a(f"buffer_store_dwordx4 {vr(X+4,4)}, v{L}, {sr(srd_xn,4)}, s{st} offen offset:1024 {store_flags}")

def emit_ln_kernel(a, name):
    kernel_header(a, name)
    a("s_cmp_ge_u32 s2, 512"); a(f"s_cbranch_scc1 {name}_end")
    a(f"s_load_dwordx2 s[4:5], s[0:1], {KA_X}")
    a(f"s_load_dwordx2 s[6:7], s[0:1], {KA_WS}")
    a("v_lshrrev_b32 v1, 6, v0")
    a("v_and_b32 v2, 63, v0")
    a("v_readfirstlane_b32 s3, v1")
    a("v_lshlrev_b32 v2, 4, v2")
    a("s_waitcnt lgkmcnt(0)")
    load_srd(a, 8, 4, 0, S*DM*2)
    load_srd(a, 12, 6, XN_OFF, S*XN_STR)
    a("s_lshl_b32 s16, s2, 2"); a("s_add_u32 s16, s16, s3")
    emit_ln_row(a, 8, 12, 16, 2)
    a.label(f"{name}_end")
    a("s_endpgm")

NPOIS = (CH_END - CH_BASE)//65536 - 1
PRE_GRID = 512 + 64 + NPOIS + 1
def emit_pre_kernel(a, name):
    kernel_header(a, name)
    a(f"s_cmp_ge_u32 s2, {PRE_GRID}"); a(f"s_cbranch_scc1 {name}_end")
    a(f"s_load_dwordx4 s[4:7], s[0:1], {KA_X}")
    a(f"s_load_dwordx2 s[20:21], s[0:1], {KA_WS}")
    a("v_lshrrev_b32 v1, 6, v0")
    a("v_and_b32 v2, 63, v0")
    a("v_readfirstlane_b32 s3, v1")
    a("v_lshlrev_b32 v2, 4, v2")
    a("s_waitcnt lgkmcnt(0)")
    a(f"s_cmp_ge_u32 s2, 576"); a(f"s_cbranch_scc1 {name}_fill")
    a(f"s_cmp_ge_u32 s2, 512"); a(f"s_cbranch_scc1 {name}_mem")
    load_srd(a, 8, 4, 0, S*DM*2)
    load_srd(a, 12, 20, XN_OFF, S*XN_STR)
    a("s_lshl_b32 s16, s2, 2"); a("s_add_u32 s16, s16, s3")
    emit_ln_row(a, 8, 12, 16, 2)
    a("s_endpgm")
    a.label(f"{name}_mem")
    load_srd(a, 8, 6, 0, 8*DM*2)
    load_srd(a, 12, 20, CH_MEM, 65536)
    a("s_sub_u32 s16, s2, 512"); a("s_and_b32 s17, s16, 15"); a("s_lshl_b32 s17, s17, 7")
    a("v_bfe_u32 v1, v0, 2, 3"); a("v_lshlrev_b32 v1, 11, v1")
    a("v_lshrrev_b32 v2, 6, v0"); a("v_lshl_add_u32 v1, v2, 5, v1")
    a("v_and_b32 v2, 3, v0"); a("v_lshl_add_u32 v1, v2, 3, v1")
    a("v_bfe_u32 v2, v0, 5, 1"); a("v_lshl_add_u32 v1, v2, 2, v1")
    a("buffer_load_dword v3, v1, s[8:11], s17 offen")
    a("v_lshlrev_b32 v2, 2, v0"); a("s_lshl_b32 s16, s16, 10")
    a("s_waitcnt vmcnt(0)")
    a("buffer_store_dword v3, v2, s[12:15], s16 offen")
    a("s_endpgm")
    a.label(f"{name}_fill")
    load_srd(a, 12, 20, 0, WS_SIZE)
    a("s_sub_u32 s16, s2, 576"); a(f"s_cmp_ge_u32 s16, {NCOPY*16}"); a("s_addc_u32 s16, s16, 0")
    a("s_lshl_b32 s16, s16, 16"); a(f"s_add_u32 s16, s16, {CH_BASE}")
    a(f"s_cmp_eq_u32 s2, {PRE_GRID-1}")
    a(f"s_cselect_b32 s16, {FLAGS}, s16"); a("s_cselect_b32 s17, 0, -1")
    for i in range(4): a(f"v_mov_b32 v{4+i}, s17")
    a("v_lshlrev_b32 v2, 4, v0")
    for i in range(16):
        a("buffer_store_dwordx4 v[4:7], v2, s[12:15], s16 offen")
        if i < 15: a("s_add_u32 s16, s16, 4096")
    a.label(f"{name}_end")
    a("s_endpgm")

def emit_ln_pair(a, srd_xn, s_row, L, X0, vb, store_flags, vm):
    streams = []
    for k in range(2):
        b = Asm()
        b(f"s_add_u32 s{s_row+1+2*k}, s{s_row}, {k}")
        b(f"v_mov_b32 v{vb+52*k}, v{L}")
        emit_ln_row(b, None, srd_xn, s_row+1+2*k, vb+52*k, store_flags, preloaded=X0+8*k, vm=vm)
        streams.append([x for x in b.lines if x.strip()])
    for x, y in zip(*streams):
        if "s_nop 1" in x: a.raw("    s_nop 0"); continue
        a.raw(x); a.raw(y)

def emit_ln_multi(a, srd_xn, rows, L, X0, vb, store_flags, vm):
    streams = []
    for k, r in enumerate(rows):
        b = Asm()
        b(f"v_mov_b32 v{vb+52*k}, v{L}")
        emit_ln_row(b, None, srd_xn, r, vb+52*k, store_flags, preloaded=X0+8*k, vm=vm)
        streams.append([x for x in b.lines if x.strip()])
    assert len(rows) >= 3
    for xs in zip(*streams):
        if "s_nop" in xs[0]: continue
        if "s_waitcnt" in xs[0]: a.raw(xs[0]); continue
        for x in xs: a.raw(x)
```

```python
from common import *
from ln import *
from gemm import *
from att import att_item
import chain, gemm
from chain import role_A, role_VR, assign_roles, poll_tail, S_WS

LDS_SCR = 156*1024
S_PH, S_CTR, S_B, S_ITEM = 96, 97, 98, 99
S_T0 = 83
S_EPI, S_EP0, S_EP1, S_RET = 82, 78, 77, 4
S_PRE, S_POFF, S_PVAL = 39, 68, 69
S_FL = 92
PROFW = False
TSW_OFF = 216*MB

BATCH = {"S0": [("KS",0,0,4)], "S1": [("KS",0,4,4)], "S2": [("KS",0,8,4)], "S3": [("KS",0,12,4)], "K1": [("K1",0,0,4)], "KV1a": [("KV",1,0,4)], "KV1b": [("KV",1,4,4)], "KV2a": [("KV",2,0,4)], "KV2b": [("KV",2,4,4)],
         "KV3a": [("KV",3,0,4)], "KV3b": [("KV",3,4,4)], "Q0": [("Q",0,0,4)], "Q1": [("Q",1,0,4)], "Q2": [("Q",2,0,4)], "Q3": [("Q",3,0,4)],
         "G1": [("GU",0,0,4)], "G2": [("GU",0,4,3),("GU",1,0,1)], "G3": [("GU",1,1,4)], "G4": [("GU",1,5,2),("GU",2,0,2)],
         "G5": [("GU",2,2,4)], "G6": [("GU",2,6,1),("GU",3,0,3)], "G7": [("GU",3,3,4)],
         "KVa": [("K4",2,0,4)], "KVb": [("K4",2,4,4)], "KVc": [("K4",2,8,4)], "KVd": [("K4",2,12,4)],
         "Ga1": [("G4",0,0,4)], "Ga2": [("G4",0,4,4)], "Ga3": [("G4",0,8,4)], "Gb1": [("G4",4,0,4)], "Gb2": [("G4",4,4,4)], "Gb3": [("G4",4,8,4)],
         "Gm": [("G8",0,24,4)],
         "DNa": [("DN",0,0,4)], "DNb": [("DN",0,4,4)], "W2x": [("W2",0,0,4)], "W1x": [("W1",0,8,4)], "WR": [("WR",0,0,4)], "WRa": [("WR",0,0,2),("W1",0,8,2)], "WRb": [("WR",0,2,2),("W1",0,10,2)], "": [("QA",0,0,4)]}
LISTS = [['KVa', 'Gm', 'Ga3', 'KV3a', 'W2x'], ['KVd', 'Ga2', 'Gb1', 'Q2', 'WR'], ['KVb', 'Gb2', 'Q1', 'DNb', 'W1x'], ['KVc', 'Ga1', 'Gb3', 'KV3b', 'DNa']]
SMALL = ['K1', 'Q0', 'Q3']
def q1_list():
    out = []
    LL = [[f'S{i}'] + l for i, l in enumerate(LISTS)]
    for r in range(max(map(len, LL))):
        for l in LL: out += BATCH[l[r] if r < len(l) else ""]
    for b in SMALL: out += BATCH[b]
    return out
NBLK = 12
WRPOS = 44
NQA = 32 + NBLK*16 + (64-4*NBLK)*8
NROT = 4

def load_ptrs(a):
    a("s_load_dwordx8 s[40:47], s[0:1], 0")
    a("s_load_dwordx4 s[48:51], s[0:1], 32")
    a("s_load_dwordx8 s[56:63], s[0:1], 64")
    a("s_load_dwordx4 s[64:67], s[0:1], 96")

def atomic_ret(a, vdst, s_off, val):
    a(f"v_mov_b32 v{vdst}, {val}")
    a("s_mov_b64 exec, 1")
    a(f"buffer_atomic_add v{vdst}, off, {sr(S_FL,4)}, s{s_off} sc0 sc1")
    a("s_mov_b64 exec, -1")
    a("s_waitcnt vmcnt(0)")

def signal(a, s_off, val, srd=S_FL, vtmp=4):
    a(f"v_mov_b32 v{vtmp}, {val}")
    a("s_mov_b64 exec, 1")
    a(f"buffer_atomic_add v{vtmp}, off, {sr(srd,4)}, s{s_off} sc1")
    a("s_mov_b64 exec, -1")

def wait_flags(a, voff_setup, s_base, mask, target, abort, nlanes, vd=4, vo=5, sleep=8):
    Lw, Lp = a.newlabel("Wf"), a.newlabel("Wp")
    a(f"s_cmp_lg_u32 s{S_WAVE}, 0"); a(f"s_cbranch_scc1 {Lw}")
    voff_setup()
    a("s_mov_b32 s30, 0"); a(f"s_mov_b32 s21, {target:#x}")
    a.label(Lp)
    a(f"buffer_load_dword v{vd}, v{vo}, {sr(S_FL,4)}, s{s_base} offen sc1")
    a("s_waitcnt vmcnt(0)")
    if mask != 0xffffffff: a(f"v_and_b32 v{vd}, {mask:#x}, v{vd}")
    a(f"v_cmp_ne_u32 vcc, s21, v{vd}")
    a(f"s_cbranch_vccz {Lw}")
    if sleep: a(f"s_sleep {sleep}")
    poll_tail(a, Lp, abort)
    a.label(Lw)
    a("s_barrier")

def finish(a, s_off, val):
    a("s_waitcnt vmcnt(0)")
    a("s_barrier")
    L = a.newlabel("Fin")
    a(f"s_cmp_lg_u32 s{S_WAVE}, 0"); a(f"s_cbranch_scc1 {L}")
    signal(a, s_off, val)
    a.label(L)

def wstamp(a, i):
    if PROFW: a(f"s_memrealtime s[{70+2*i}:{71+2*i}]")

def xstamp(a, i):
    r = [88,6,52,54,80][i]
    if PROFW: a(f"s_memrealtime s[{r}:{r+1}]")

def wor_item(a, END):
    L = V_LANE; W = S_WAVE
    load_srd(a, S_SRDW, 50, 0, 4096*DM*2)
    a("s_and_b32 s36, s37, 1"); a("s_lshr_b32 s34, s37, 1")
    a(f"v_lshrrev_b32 v2, 5, v{L}"); a("v_lshlrev_b32 v2, 4, v2")
    a(f"v_bfe_u32 v3, v{L}, 3, 2"); a("v_add_u32 v2, v2, v3"); a("v_lshlrev_b32 v2, 11, v2")
    a(f"v_and_b32 v3, 7, v{L}"); a("v_lshl_add_u32 v2, v3, 4, v2")
    a(f"s_lshl_b32 s27, s{W}, 15")
    a(f"v_lshrrev_b32 v4, 5, v{L}"); a(f"v_bfe_u32 v5, v{L}, 2, 2"); a("v_lshl_add_u32 v4, v4, 3, v5"); a("v_lshlrev_b32 v4, 7, v4")
    a(f"v_bfe_u32 v5, v{L}, 4, 1"); a("v_lshl_add_u32 v4, v5, 5, v4"); a(f"v_and_b32 v3, 3, v{L}"); a("v_lshl_add_u32 v4, v3, 3, v4"); a("v_add_u32 v4, s27, v4")
    a(f"s_lshl_b32 s22, s{W}, 20"); a("s_lshl_b32 s23, s36, 22"); a("s_add_u32 s22, s22, s23"); a("s_lshl_b32 s23, s34, 7"); a("s_add_u32 s22, s22, s23")
    for rnd_ in range(2):
        for j in range(32):
            a(f"s_add_u32 m0, s27, {1024*j}"); a("s_nop 0")
            a(f"buffer_load_dwordx4 v2, {sr(S_SRDW,4)}, s22 offen lds")
            a(f"s_add_u32 s22, s22, {(4 if (j & 3) < 3 else 20)*2048}")
        a("s_waitcnt vmcnt(0)")
        for ks in range(16):
            for t in range(2):
                for q in range(2):
                    a(f"ds_read_b64_tr_b16 {ar(((rnd_*16+ks)*2+t)*4+2*q,2)}, v4 offset:{(16*ks+4*q)*128+64*t}")
            if ks % 2 == 1: a("s_waitcnt lgkmcnt(0)")
    a(f"s_mov_b32 s32, {FL_EX}")
    wait_flags(a, lambda: a("v_mov_b32 v15, 0"), 32, 0xffffffff, 32, END, 1, 14, 15)
    load_srd(a, S_SRDX, 66, OL_OFF, 16*MB)
    load_srd(a, 84, 62, 0, S*DM*2)
    load_srd(a, S_SRDW, 40, 0, S*DM*2)
    VX0, VO, VB, VW, VR, VE, VP = 64, 3, 6, 7, 8, 10, 11
    a("s_lshl_b32 s37, s34, 1"); a("s_add_u32 s37, s37, s36")
    a(f"v_bfe_u32 v10, v{L}, 2, 3"); a(f"v_and_b32 v11, 3, v{L}"); a(f"v_lshrrev_b32 v12, 5, v{L}")
    a(f"v_and_b32 v13, 31, v{L}"); a(f"v_lshlrev_b32 v{VO}, 11, v13"); a(f"v_lshl_add_u32 v{VO}, v12, 3, v{VO}")
    a("s_lshl_b32 s22, s37, 6"); a(f"s_lshl_b32 s23, s{W}, 4"); a("s_add_u32 s22, s22, s23"); a(f"v_add_u32 v{VO}, s22, v{VO}")
    a(f"v_lshlrev_b32 v{VB}, 13, v10"); a(f"v_lshl_add_u32 v{VB}, v11, 5, v{VB}"); a(f"v_lshl_add_u32 v{VB}, v12, 3, v{VB}")
    a("s_lshl_b32 s22, s37, 8"); a(f"s_lshr_b32 s23, s{W}, 1"); a("s_lshl_b32 s23, s23, 7"); a("s_add_u32 s22, s22, s23")
    a(f"s_and_b32 s23, s{W}, 1"); a("s_lshl_b32 s23, s23, 4"); a("s_add_u32 s22, s22, s23"); a(f"s_add_u32 s22, s22, {BP_OFF}")
    a(f"v_add_u32 v{VB}, s22, v{VB}")
    a(f"v_lshlrev_b32 v13, 4, v{L}")
    a(f"s_lshl_b32 s22, s{W}, 15"); a("s_lshl_b32 s23, s36, 17"); a("s_add_u32 s22, s22, s23"); a(f"v_add_u32 v{VX0}, s22, v13")
    for i in range(1, 8): a(f"v_add_u32 v{VX0+i}, {4096*i}, v{VX0}")
    a(f"s_lshl_b32 s22, s{W}, 13"); a(f"v_add_u32 v{VW}, s22, v13")
    a(f"s_lshl_b32 s22, s{W}, 10"); a("s_lshl_b32 s23, s36, 12"); a("s_add_u32 s23, s23, s22"); a(f"v_add_u32 v{VR}, s23, v13")
    a("s_lshl_b32 s23, s37, 12"); a("s_add_u32 s22, s22, s23"); a(f"s_add_u32 s22, s22, {EX_OFF - 4*NBLK*131072}")
    a(f"v_add_u32 v{VE}, s22, v13"); a(f"v_xor_b32 v{VP}, 4096, v{VE}")
    a(f"s_mov_b32 s38, {4*NBLK}"); a("s_mov_b32 s35, 0")
    a(f"v_mov_b32 v9, {LDS_SCR+64}")
    wstamp(a, 1)
    ACC = 16; XR = 128; RD = 80
    a.label("L_WORseg")
    Ld = a.newlabel("Wd")
    a("s_and_b32 s32, s38, 7"); a(f"s_cmp_eq_u32 s38, {4*NBLK}"); a("s_cselect_b32 s32, 0, s32"); a("s_cmp_lg_u32 s32, 0"); a(f"s_cbranch_scc1 {Ld}")
    a("s_lshr_b32 s32, s38, 3"); a("s_lshl_b32 s32, s32, 3"); a("s_lshr_b32 s33, s37, 2"); a("s_add_u32 s32, s32, s33")
    a("s_lshl_b32 s32, s32, 6"); a(f"s_add_u32 s32, s32, {FL_DN}")
    wait_flags(a, lambda: a("v_mov_b32 v15, 0"), 32, 0xffffffff, 1, END, 1, 14, 15)
    a.label(Ld)
    a("s_lshl_b32 s33, s38, 16")
    a(f"s_sub_u32 s32, s38, {4*NBLK}"); a("s_lshl_b32 s32, s32, 7"); a("s_lshl_b32 s34, s36, 6"); a("s_add_u32 s32, s32, s34"); a(f"s_add_u32 s32, s32, {FL_ATS}")
    a("s_lshl_b32 s34, s38, 18"); a("s_lshl_b32 s26, s38, 17")
    Lr = a.newlabel("Wr")
    a("s_cmp_eq_u32 s35, 16"); a(f"s_cbranch_scc1 {Lr}")
    wait_flags(a, lambda: a("v_mov_b32 v15, 0"), 32, 0xffffffff, 16, END, 1, 14, 15, 1)
    a.label(Lr)
    a("s_add_u32 s32, s32, 128")
    wstamp(a, 2)
    a(f"s_bfe_u32 s22, s37, {1 | (2 << 16):#x}")
    for e in range(1, NROT): a(f"s_cmp_eq_u32 s22, {e}"); a(f"s_cbranch_scc1 L_WORe{e}")
    for e in range(NROT):
        a.label(f"L_WORe{e}")
        order = [(32//NROT*e + i) % 32 for i in range(32)]
        WN = 8
        lds = [f"buffer_load_dwordx4 {vr(XR+ks*4,4)}, v{VX0+ks//4}, {sr(S_SRDX,4)}, s34 offen offset:{(ks%4)*1024} sc1" for ks in order]
        lds += [f"buffer_load_dwordx2 v[48:49], v{VO}, {sr(S_SRDW,4)}, s33 offen", f"buffer_load_dwordx2 v[50:51], v{VB}, {sr(S_FL,4)}, s33 offen sc1",
                f"buffer_load_dword v14, off, {sr(S_FL,4)}, s32 sc1"]
        for x in lds[:WN]: a(x)
        n = WN
        for i, ks in enumerate(order):
            a(f"s_waitcnt vmcnt({n-1-i})")
            if i == 0: xstamp(a, 0)
            for t in range(2):
                a(f"v_mfma_f32_32x32x16_bf16 {vr(ACC+16*t,16)}, {ar((ks*2+t)*4,4)}, {vr(XR+ks*4,4)}, {'0' if i == 0 else vr(ACC+16*t,16)}")
                if n < len(lds) and (t == 0 or i < 8): a(lds[n]); n += 1
        if e < NROT-1: a("s_branch L_WORj")
    a.label("L_WORj")
    xstamp(a, 1)
    a("s_nop 10")
    for q in range(8): a(f"ds_write_b128 v{VW}, {vr(ACC+4*q,4)} offset:{1024*q}")
    a("s_waitcnt vmcnt(0)")
    xstamp(a, 2)
    Lz = a.newlabel("Wz")
    a(f"s_cmp_lg_u32 s{W}, 0"); a(f"s_cbranch_scc1 {Lz}")
    a("ds_write_b32 v9, v14")
    a.label(Lz)
    a(f"v_xor_b32 v13, 4096, v{VR}")
    a("s_waitcnt lgkmcnt(0)")
    a("s_barrier")
    for i in range(4): a(f"ds_read_b128 {vr(RD+16+4*i,4)}, v13 offset:{8192*i}")
    for i in range(4): a(f"ds_read_b128 {vr(RD+4*i,4)}, v{VR} offset:{8192*i}")
    a("ds_read_b32 v14, v9")
    a(f"v_xor_b32 v{VW}, 32768, v{VW}"); a(f"v_xor_b32 v{VR}, 32768, v{VR}"); a("v_xor_b32 v9, 4, v9")
    def sum4(b):
        for k in (0, 2):
            a(f"v_pk_add_f32 {vr(b+k,2)}, {vr(b+k,2)}, {vr(b+4+k,2)}"); a(f"v_pk_add_f32 {vr(b+8+k,2)}, {vr(b+8+k,2)}, {vr(b+12+k,2)}")
        for k in (0, 2): a(f"v_pk_add_f32 {vr(b+k,2)}, {vr(b+k,2)}, {vr(b+8+k,2)}")
    a("s_waitcnt lgkmcnt(5)")
    sum4(RD+16)
    xstamp(a, 3)
    a(f"buffer_store_dwordx4 {vr(RD+16,4)}, v{VE}, {sr(S_FL,4)}, s26 offen sc1")
    a("s_waitcnt lgkmcnt(0)")
    sum4(RD)
    a("v_readfirstlane_b32 s35, v14")
    a("v_lshlrev_b32 v52, 16, v48"); a("v_and_b32 v53, 0xffff0000, v48"); a("v_lshlrev_b32 v54, 16, v49"); a("v_and_b32 v55, 0xffff0000, v49")
    a("v_lshlrev_b32 v56, 16, v50"); a("v_and_b32 v57, 0xffff0000, v50"); a("v_lshlrev_b32 v58, 16, v51"); a("v_and_b32 v59, 0xffff0000, v51")
    a("s_mov_b32 s30, 0")
    a("s_sleep 4")
    Lp, Lg = a.newlabel("Wp"), a.newlabel("Wg")
    a.label(Lp)
    a(f"buffer_load_dwordx4 {vr(RD+8,4)}, v{VP}, {sr(S_FL,4)}, s26 offen sc1")
    a("s_waitcnt vmcnt(0)")
    a(f"v_max3_u32 v15, v{RD+8}, v{RD+9}, v{RD+10}"); a(f"v_max_u32 v15, v15, v{RD+11}")
    a("v_cmp_eq_u32 vcc, -1, v15")
    a(f"s_cbranch_vccz {Lg}")
    poll_tail(a, Lp, END)
    a.label(Lg)
    xstamp(a, 4)
    for k in (0, 2): a(f"v_pk_add_f32 {vr(RD+k,2)}, {vr(RD+k,2)}, {vr(RD+8+k,2)}")
    def rnd():
        a(f"v_cvt_pk_bf16_f32 v{RD+4}, v{RD}, v{RD+1}"); a(f"v_cvt_pk_bf16_f32 v{RD+5}, v{RD+2}, v{RD+3}")
    def unp():
        a(f"v_lshlrev_b32 v{RD}, 16, v{RD+4}"); a(f"v_and_b32 v{RD+1}, 0xffff0000, v{RD+4}")
        a(f"v_lshlrev_b32 v{RD+2}, 16, v{RD+5}"); a(f"v_and_b32 v{RD+3}, 0xffff0000, v{RD+5}")
    rnd(); unp()
    a(f"v_pk_add_f32 {vr(RD,2)}, {vr(RD,2)}, v[52:53]"); a(f"v_pk_add_f32 {vr(RD+2,2)}, {vr(RD+2,2)}, v[54:55]")
    rnd(); unp()
    a(f"v_pk_add_f32 {vr(RD,2)}, {vr(RD,2)}, v[56:57]"); a(f"v_pk_add_f32 {vr(RD+2,2)}, {vr(RD+2,2)}, v[58:59]")
    rnd()
    a(f"buffer_store_dwordx2 {vr(RD+4,2)}, v{VO}, s[84:87], s33 offen")
    a("s_add_u32 s38, s38, 1"); a("s_cmp_lt_u32 s38, 64"); a("s_cbranch_scc1 L_WORseg")

NW1, NW2, NW3 = 0, 0, 21
def warm(a, s_unit, n, per, base):
    if n == 0: return
    load_srd(a, 84, 46, 0, DM*4096*2)
    a(f"s_mul_i32 s79, s{s_unit}, {per*1024}"); a(f"s_add_u32 s79, s79, {base*1024}")
    a(f"s_mov_b32 m0, {LDS_SCR+1024}")
    for i in range(n):
        a("s_nop 0" if i == 0 else "s_add_u32 s79, s79, 1024")
        a("buffer_load_dwordx4 v2, s[84:87], s79 offen lds")

NRDY = 0
ROT = False
HELP = 0
def setup_phase(a):
    L = V_LANE; W = S_WAVE
    load_srd(a, 24, 40, 0, S*DM*2)
    load_srd(a, 12, 66, XN_OFF, S*XN_STR)
    a(f"v_lshlrev_b32 v2, 4, v{L}")
    a(f"s_sub_u32 s18, s{W}, 1")
    a("s_lshl_b32 s16, s2, 3"); a("s_mul_i32 s17, s18, 3"); a("s_add_u32 s34, s16, s17"); a("s_add_u32 s36, s34, 1")
    a("s_add_u32 s38, s34, 2"); a("s_add_u32 s16, s16, 7"); a("s_min_u32 s38, s38, s16")
    for k in range(3):
        a(f"s_lshl_b32 s17, s{34+2*k}, 11")
        for h in range(2): a(f"buffer_load_dwordx4 {vr(64+8*k+4*h,4)}, v2, s[24:27], s17 offen offset:{1024*h}")
    load_srd(a, 28, 42, 0, 8*DM*2)
    a("s_mul_i32 s19, s2, 3"); a("s_add_u32 s19, s19, s18")
    a(f"s_bfe_u32 s17, s19, {2 | (4 << 16):#x}"); a("s_lshl_b32 s17, s17, 7"); a("s_and_b32 s16, s19, 3"); a("s_lshl_b32 s16, s16, 5"); a("s_add_u32 s17, s17, s16")
    a(f"v_bfe_u32 v8, v{L}, 2, 3"); a("v_lshlrev_b32 v8, 11, v8")
    a(f"v_and_b32 v9, 3, v{L}"); a("v_lshl_add_u32 v8, v9, 3, v8")
    a(f"v_lshrrev_b32 v9, 5, v{L}"); a("v_lshl_add_u32 v8, v9, 2, v8")
    a("buffer_load_dword v10, v8, s[28:31], s17 offen")
    warm(a, 19, NW1, NW1, 0)
    emit_ln_multi(a, 12, [34, 36, 38], 2, 64, 96, "sc1", 1+NW1)
    tot = CH_END - CH_BASE - 65536
    assert tot % 1024 == 0 and tot//1024 <= 256*12
    for i in range(4): a(f"v_mov_b32 v{4+i}, -1")
    a("s_lshl_b32 s16, s19, 2")
    for i in range(4):
        Ls = a.newlabel("Ps")
        a(f"s_cmp_ge_u32 s16, {tot//1024}"); a(f"s_cbranch_scc1 {Ls}")
        a(f"s_cmp_ge_u32 s16, {(CH_MEM-CH_BASE)//1024}"); a("s_cselect_b32 s17, 64, 0"); a("s_add_u32 s17, s17, s16")
        a("s_lshl_b32 s17, s17, 10"); a(f"s_add_u32 s17, s17, {CH_BASE}")
        a(f"buffer_store_dwordx4 v[4:7], v2, {sr(S_WS,4)}, s17 offen sc1")
        a.label(Ls)
        a("s_add_u32 s16, s16, 1")
    Lz, Lm = a.newlabel("Pz"), a.newlabel("Pm")
    a(f"v_lshlrev_b32 v9, 2, v{L}")
    a(f"s_cmp_lg_u32 s{W}, 3"); a(f"s_cbranch_scc1 {Lz}")
    a("v_mov_b32 v8, 0"); a("s_lshl_b32 s17, s2, 8"); a(f"s_add_u32 s17, s17, {FLAGS}")
    a(f"buffer_store_dword v8, v9, {sr(S_WS,4)}, s17 offen sc1")
    a.label(Lz)
    a("s_cmp_ge_u32 s19, 256"); a(f"s_cbranch_scc1 {Lm}")
    a("s_lshl_b32 s16, s19, 8"); a(f"s_add_u32 s16, s16, {CH_MEM}")
    a("s_waitcnt vmcnt(6)")
    a(f"buffer_store_dword v10, v9, {sr(S_WS,4)}, s16 offen sc1")
    a.label(Lm)
    warm(a, 19, NW2, NW2, 384*NW1)

def init_arrive(a, srd, vt=61):
    L = a.newlabel("Ia")
    a(f"s_cmp_lg_u32 s{S_WAVE}, 0"); a(f"s_cbranch_scc1 {L}")
    a(f"v_mov_b32 v{vt}, s101"); a("s_lshl_b32 s21, s2, 2"); a(f"s_add_u32 s21, s21, {TBL_OFF+1024}")
    a("s_mov_b64 exec, 1")
    a(f"buffer_store_dword v{vt}, off, {sr(srd,4)}, s21 sc1")
    a("s_mov_b64 exec, -1")
    a.label(L)

def init_wait(a, abort):
    load_srd(a, 20, 64, 0, 256)
    Lp, Lg = a.newlabel("Ip"), a.newlabel("Ig")
    a("s_mov_b32 s30, 0"); a("s_mov_b32 s24, 192")
    a.label(Lp)
    a("buffer_load_dword v14, off, s[20:23], s24 sc1")
    a("s_waitcnt vmcnt(0)")
    a("v_cmp_eq_u32 vcc, 0, v14")
    a(f"s_cbranch_vccz {Lg}")
    a("s_sleep 4")
    poll_tail(a, Lp, abort)
    a.label(Lg)

def worker_start(a, abort):
    a(f"s_waitcnt vmcnt({NW2})")
    a("s_barrier")
    init_arrive(a, S_FL)
    Lw, Ln, Lp, Lg = [a.newlabel("Ws") for _ in range(4)]
    L0 = a.newlabel("Ws")
    a(f"s_cmp_eq_u32 s{S_WAVE}, 0"); a(f"s_cbranch_scc1 {L0}")
    Lb = a.newlabel("Ws")
    a(f"s_cmp_lg_u32 s{S_B}, 5"); a(f"s_cbranch_scc1 {Lb}")
    a(f"v_lshrrev_b32 v2, 4, v{V_LANE}"); a("v_lshlrev_b32 v2, 13, v2"); a(f"v_and_b32 v3, 15, v{V_LANE}"); a("v_lshl_add_u32 v2, v3, 4, v2")
    a(f"s_mov_b32 m0, {LDS_SCR+1024}")
    nper = HELP // 3
    for p in ((44, 46) if HELP else ()):
        load_srd(a, 84, p, 0, DM*4096*2)
        a(f"s_sub_u32 s79, s{S_WAVE}, 1"); a(f"s_mul_i32 s79, s79, {nper*4*8192}"); a("s_lshl_b32 s78, s34, 8"); a("s_add_u32 s79, s79, s78")
        a(f"s_add_u32 s79, s79, {(1024-12*nper)*8192}"); a(f"s_mov_b32 s78, {nper}")
        Ll = a.newlabel("Ws")
        a.label(Ll)
        a("buffer_load_dwordx4 v2, s[84:87], s79 offen lds")
        a(f"s_add_u32 s79, s79, {4*8192}"); a("s_sub_u32 s78, s78, 1"); a("s_cmp_lg_u32 s78, 0"); a(f"s_cbranch_scc1 {Ll}")
    a(f"s_branch {Lw}")
    a.label(Lb)
    a("s_sub_u32 s19, s33, 128"); a("s_mul_i32 s19, s19, 3"); a(f"s_add_u32 s19, s19, s{S_WAVE}"); a("s_sub_u32 s19, s19, 1")
    a(f"v_lshlrev_b32 v2, 4, v{V_LANE}")
    warm(a, 19, NW3, NW3, 8192 - 384*NW3)
    a(f"s_branch {Lw}")
    a.label(L0)
    a("s_cmp_lg_u32 s33, 255"); a(f"s_cbranch_scc1 {Ln}")
    a(f"v_lshlrev_b32 v3, 2, v{V_LANE}"); a(f"s_mov_b32 s26, {TBL_OFF+1024}"); a("s_mov_b32 s30, 0")
    a.label(Lp)
    for k in range(4): a(f"buffer_load_dword v{8+k}, v3, {sr(S_FL,4)}, s26 offen offset:{256*k} sc1")
    a("s_waitcnt vmcnt(0)")
    for k in range(4): a(f"v_xor_b32 v{8+k}, s101, v{8+k}")
    a("v_or_b32 v5, v8, v9"); a("v_or3_b32 v5, v5, v10, v11")
    a("v_cmp_ne_u32 vcc, 0, v5")
    a(f"s_cbranch_vccz {Lg}")
    a("s_sleep 2")
    poll_tail(a, Lp, abort)
    a.label(Lg)
    load_srd(a, 20, 64, 0, 256)
    a("v_mov_b32 v5, 1"); a("s_mov_b32 s24, 192")
    a("buffer_store_dword v5, off, s[20:23], s24 sc1")
    a(f"s_branch {Lw}")
    a.label(Ln)
    Lsm, Lq = a.newlabel("Ws"), a.newlabel("Ws")
    a(f"s_cmp_eq_u32 s{S_B}, 5"); a(f"s_cbranch_scc1 {Lsm}")
    a(f"v_and_b32 v3, 7, v{V_LANE}"); a("v_lshlrev_b32 v3, 2, v3"); a("s_and_b32 s26, s34, 3"); a("s_lshl_b32 s26, s26, 5"); a(f"s_add_u32 s26, s26, {TBL_OFF+1024}")
    a("s_mov_b32 s30, 0")
    a.label(Lq)
    a("s_sleep 6")
    a(f"buffer_load_dword v8, v3, {sr(S_FL,4)}, s26 offen sc1")
    a("s_waitcnt vmcnt(0)")
    a("v_cmp_ne_u32 vcc, s101, v8")
    a(f"s_cbranch_vccz {Lw}")
    poll_tail(a, Lq, abort)
    a.label(Lsm)
    init_wait(a, abort)
    if NRDY == 0: a(f"s_branch {Lw}")
    a(f"s_mov_b32 s26, {FL_RDY}"); a("s_mov_b32 s30, 0")
    Lr = a.newlabel("Ws")
    a.label(Lr)
    a("s_sleep 16")
    a(f"buffer_load_dword v8, off, {sr(S_FL,4)}, s26 sc1")
    a("s_waitcnt vmcnt(0)")
    a(f"v_cmp_gt_u32 vcc, {NRDY}, v8")
    a(f"s_cbranch_vccz {Lw}")
    poll_tail(a, Lr, abort)
    a.label(Lw)
    a("s_barrier")

def emit_mega(a, name, force_slow=False):
    END = "L_abort"
    Q1 = q1_list(); NSM = 32*len(SMALL); NQ1 = 8*sum(x[3] for x in Q1) - NSM
    kernel_header(a, name)
    a(f"s_cmp_ge_u32 s2, 256"); a(f"s_cbranch_scc1 L_end")
    xstamp(a, 0)
    load_ptrs(a)
    a("v_lshrrev_b32 v2, 6, v0")
    a(f"v_and_b32 v{V_LANE}, 63, v0")
    a(f"v_readfirstlane_b32 s{S_WAVE}, v2")
    a("s_waitcnt lgkmcnt(0)")
    load_srd(a, S_WS, 66, 0, WS_SIZE)
    chain.IDLE = lambda a: (xstamp(a, 2), setup_phase(a), xstamp(a, 3))
    chain.INIT_WAIT = lambda a: init_wait(a, END)
    chain.INIT_ARRIVE = lambda a: init_arrive(a, S_WS)
    chain.NYOUNG = NW2
    def rdy(a):
        L = a.newlabel("Rd")
        a(f"s_cmp_lg_u32 s{S_WAVE}, 0"); a(f"s_cbranch_scc1 {L}")
        a(f"s_mov_b32 s20, {FL_RDY}"); signal(a, 20, 1, S_WS, 61)
        a.label(L)
    chain.A_READY = rdy
    assign_roles(a, END, LDS_SCR)
    xstamp(a, 1)
    a(f"s_mov_b32 s35, s{chain.S_MODE}")
    if force_slow: a(f"s_mov_b32 s{chain.S_MODE}, 1")
    a(f"s_mov_b32 s{S_PH}, 0")
    a(f"s_sub_u32 s{S_B}, s31, 4"); a("s_cmp_lt_u32 s31, 4"); a(f"s_cselect_b32 s{S_B}, 5, s{S_B}")
    a(f"s_mov_b32 s{S_PH}, 1")

    Lf = a.newlabel("Cl")
    a(f"s_cmp_eq_u32 s{chain.S_MODE}, 0"); a(f"s_cbranch_scc1 {Lf}")
    a("s_cmp_lt_u32 s33, 128"); a(f"s_cselect_b32 s{S_B}, 5, 4")
    a.label(Lf)
    a(f"s_lshl_b32 s{S_CTR}, s{S_B}, 7"); a(f"s_add_u32 s{S_CTR}, s{S_CTR}, {FL_Q1L}")
    a("s_mov_b32 s100, 0")
    a(f"s_cmp_eq_u32 s{S_B}, 4"); a(f"s_cselect_b32 s{S_T0}, 128, 32")
    a("s_lshl_b32 s34, s31, 3"); a("s_add_u32 s34, s34, s32"); a("s_sub_u32 s34, s34, 24")
    a("s_cmp_ge_u32 s31, 4"); a("s_cselect_b32 s34, s32, s34")
    Lp5 = a.newlabel("Cl")
    a("s_cmp_eq_u32 s35, 0"); a(f"s_cbranch_scc1 {Lp5}")
    a("s_sub_u32 s34, s33, 96"); a(f"s_cmp_eq_u32 s{S_B}, 4"); a("s_cselect_b32 s20, 32, 0"); a("s_sub_u32 s34, s34, s20")
    a.label(Lp5)
    a("s_cmp_eq_u32 s29, 0"); a(f"s_cbranch_scc1 L_worker0")
    a("s_setprio 3")
    a(f"s_cmp_ge_u32 s{chain.S_R}, 8"); a(f"s_cbranch_scc1 L_vr")
    def kv_wait(a):
        Ls, Lp = a.newlabel("Kw"), a.newlabel("Kp")
        Lc = a.newlabel("Kc")
        a(f"s_and_b32 s20, s{chain.S_STEP}, 7"); a(f"s_cbranch_scc1 {Ls}")
        a.label(Lc)
        a(f"s_lshr_b32 s20, s{chain.S_STEP}, 3"); a("s_lshl_b32 s20, s20, 10"); a("s_lshr_b32 s21, s26, 1"); a("s_lshl_b32 s21, s21, 6"); a("s_add_u32 s20, s20, s21")
        a(f"s_add_u32 s20, s20, {FL_QKV}"); a("s_mov_b32 s30, 0")
        a("s_mov_b32 s21, 0xffff"); a("s_movk_i32 s22, 0x404")
        a.label(Lp)
        a(f"buffer_load_dword v15, off, {sr(S_WS,4)}, s20 sc1")
        a("s_waitcnt vmcnt(0)")
        a("v_and_b32 v15, s21, v15")
        a("v_cmp_ne_u32 vcc, s22, v15")
        a(f"s_cbranch_vccz {Ls}")
        a("s_sleep 4")
        poll_tail(a, Lp, END)
        a.label(Ls)
    def step_addr(delta):
        a(f"s_lshl_b32 s20, s{chain.S_STEP}, 2"); a(f"s_add_u32 s20, s20, s{chain.S_X}"); a("s_lshl_b32 s20, s20, 7")
        a(f"s_add_u32 s20, s20, {FL_STEP + delta*512}")
    def step_done(a, kind):
        L = a.newlabel("Sd")
        if kind in ("A", "Alast"):
            a("s_waitcnt vmcnt(0)"); a("s_barrier")
            a(f"s_cmp_lg_u32 s{S_WAVE}, 0"); a(f"s_cbranch_scc1 {L}")
            step_addr(0); signal(a, 20, 1, S_WS, 60)
        elif kind == "V3":
            step_addr(0); signal(a, 20, 1, S_WS, 60)
        elif kind == "Vlast":
            a("s_waitcnt vmcnt(0)"); a("s_barrier")
            a(f"s_cmp_lg_u32 s{S_WAVE}, 0"); a(f"s_cbranch_scc1 {L}")
            step_addr(0); signal(a, 20, 1, S_WS, 60)
        a.label(L)
    role_A(a, END, kv_wait, step_done)
    a("s_branch L_retire")
    a.label("L_vr")
    role_VR(a, END, step_done)
    a.label("L_retire")
    a("s_setprio 0")
    a(f"s_mov_b32 s{S_PH}, 2")
    load_ptrs(a)
    a(f"v_mbcnt_lo_u32_b32 v{V_LANE}, -1, 0"); a(f"v_mbcnt_hi_u32_b32 v{V_LANE}, -1, v{V_LANE}")
    a("s_waitcnt vmcnt(0) lgkmcnt(0)")
    a("s_barrier")
    load_srd(a, S_FL, 66, 0, WS_SIZE)
    a("s_branch L_worker")
    a.label("L_worker0")
    load_srd(a, S_FL, 66, 0, WS_SIZE)
    worker_start(a, END)
    a.label("L_worker")
    a(f"s_mov_b32 s{S_PRE}, 0"); a(f"s_mov_b32 s{S_PVAL}, 0"); a(f"s_mov_b32 s{S_EPI}, 0")
    def run_epi(): a(f"s_call_b64 s[{S_RET}:{S_RET+1}], L_epi")
    def q1_index():
        L, L5 = a.newlabel("N"), a.newlabel("N")
        a(f"s_add_u32 s25, s25, s{S_T0}")
        a(f"s_cmp_eq_u32 s{S_B}, 5"); a(f"s_cbranch_scc1 {L5}")
        a(f"s_cmp_eq_u32 s{S_B}, 4"); a(f"s_cbranch_scc1 {L}")
        a("s_lshr_b32 s22, s25, 5"); a("s_and_b32 s25, s25, 31"); a("s_lshl_b32 s22, s22, 2"); a(f"s_add_u32 s22, s22, s{S_B}")
        a("s_lshl_b32 s22, s22, 5"); a("s_add_u32 s25, s25, s22")
        a.label(L)
        a(f"s_cmp_lt_u32 s25, {NQ1}"); a(f"s_cselect_b32 s25, s25, {NSM}"); a(f"s_cbranch_scc1 {L5}_e")
        a.label(L5)
        a(f"s_add_u32 s25, s25, {NQ1}"); a(f"s_cmp_lt_u32 s25, {NQ1+NSM}")
        a.label(f"{L5}_e")
    def publish_item():
        a("v_mov_b32 v14, s25"); a(f"v_mov_b32 v15, {LDS_SCR}")
        a("ds_write_b32 v15, v14")
    def flush():
        L, L2 = a.newlabel("Fl"), a.newlabel("Fl")
        run_epi()
        a(f"s_cmp_eq_u32 s{S_PVAL}, 0"); a(f"s_cbranch_scc1 {L}")
        finish(a, S_POFF, f"s{S_PVAL}")
        a(f"s_mov_b32 s{S_PVAL}, 0")
        a.label(L)
    def hook_first():
        L = a.newlabel("Hf")
        a(f"s_cmp_eq_u32 s{S_PVAL}, 0"); a(f"s_cbranch_scc1 {L}")
        a(f"s_mov_b32 s21, s{S_PVAL}"); a(f"s_mov_b32 s{S_PVAL}, 0")
        a(f"s_cmp_lg_u32 s{S_WAVE}, 0"); a(f"s_cbranch_scc1 {L}")
        signal(a, S_POFF, "s21", vtmp=14)
        a.label(L)
    def hook_tail():
        L = a.newlabel("Ht")
        a(f"s_cmp_lg_u32 s{S_WAVE}, 0"); a(f"s_cbranch_scc1 {L}")
        a("v_mov_b32 v14, 1")
        a("s_mov_b64 exec, 1")
        a(f"buffer_atomic_add v14, off, {sr(S_FL,4)}, s{S_CTR} sc0 sc1")
        a("s_mov_b64 exec, -1")
        a.label(L)
    def hook_tail_first():
        L = a.newlabel("Ht")
        a(f"s_cmp_lg_u32 s{S_WAVE}, 0"); a(f"s_cbranch_scc1 {L}")
        a(f"s_mov_b32 s25, s{S_LOOP}"); init_wait(a, END); a(f"s_mov_b32 s{S_LOOP}, s25")
        a.label(L)
        hook_tail()
    def after_main():
        L = a.newlabel("Am")
        wstamp(a, 2)
        a(f"s_cmp_lg_u32 s{S_WAVE}, 0"); a(f"s_cbranch_scc1 {L}")
        a("s_waitcnt vmcnt(0)")
        a("v_readfirstlane_b32 s25, v14")
        a("s_nop 3")
        q1_index()
        a(f"s_cselect_b32 s{S_PRE}, 1, 0"); a(f"s_cselect_b32 s{S_PH}, 1, 2")
        publish_item()
        a.label(L)
    HK = dict(hook_second=hook_first, hook_tail=hook_tail) if ROT else dict(hook_first=hook_first, hook_tail=hook_tail)
    Lft = a.newlabel("Ft")
    a(f"s_cmp_eq_u32 s{S_PH}, 2"); a(f"s_cbranch_scc1 {Lft}")
    a(f"s_cmp_lg_u32 s{S_WAVE}, 0"); a(f"s_cbranch_scc1 {Lft}")
    a(f"s_sub_u32 s25, s34, s{S_T0}")
    q1_index()
    publish_item()
    a(f"s_mov_b32 s{S_PRE}, 1")
    a.label(Lft)
    a.label("L_next")
    wstamp(a, 0)
    Lb, Lpub, L1, L2 = [a.newlabel("N") for _ in range(4)]
    a(f"s_cmp_lg_u32 s{S_WAVE}, 0"); a(f"s_cbranch_scc1 {Lb}")
    a(f"s_cmp_lg_u32 s{S_PRE}, 0"); a(f"s_mov_b32 s{S_PRE}, 0"); a(f"s_cbranch_scc1 {Lb}")
    a(f"s_cmp_eq_u32 s{S_PH}, 2"); a(f"s_cbranch_scc1 {L2}")
    a.label(L1)
    atomic_ret(a, 4, S_CTR, 1)
    a("v_readfirstlane_b32 s25, v4")
    a("s_nop 3")
    q1_index()
    a(f"s_cbranch_scc1 {Lpub}")
    a(f"s_mov_b32 s{S_PH}, 2")
    a.label(L2)
    a(f"s_mov_b32 s20, {FL_Q2G}")
    atomic_ret(a, 4, 20, 1)
    a("v_readfirstlane_b32 s25, v4")
    a("s_nop 3")
    a("s_min_u32 s25, s25, 0xfff"); a("s_add_u32 s25, s25, 0x1000")
    a.label(Lpub)
    publish_item()
    a.label(Lb)
    a("s_waitcnt lgkmcnt(0)")
    a("s_barrier")
    a(f"v_mov_b32 v5, {LDS_SCR}")
    a("ds_read_b32 v4, v5")
    a("s_waitcnt lgkmcnt(0)")
    a(f"v_readfirstlane_b32 s{S_ITEM}, v4")
    a("s_nop 3")
    a(f"s_cmp_ge_u32 s{S_ITEM}, 0x1000"); a(f"s_cbranch_scc1 L_qa")
    a(f"s_lshr_b32 s20, s{S_ITEM}, 3"); a(f"s_and_b32 s21, s{S_ITEM}, 7")
    base = 0
    for typ, p, c0, n in Q1:
        Ln = a.newlabel("D")
        a(f"s_cmp_ge_u32 s20, {base+n}"); a(f"s_cbranch_scc1 {Ln}")
        a(f"s_sub_u32 s20, s20, {base-c0}") if base >= c0 else a(f"s_add_u32 s20, s20, {c0-base}")
        if typ in ("DN", "W2", "W1"): a("s_mov_b32 s36, s20"); a("s_mov_b32 s37, s21")
        elif typ == "WR": a("s_lshl_b32 s37, s20, 3"); a("s_add_u32 s37, s37, s21")
        elif typ == "KS":
            a("s_lshr_b32 s38, s20, 3"); a("s_add_u32 s38, s38, 1"); a("s_and_b32 s37, s20, 7"); a("s_lshl_b32 s37, s37, 1")
            a("s_lshr_b32 s22, s21, 2"); a("s_add_u32 s37, s37, s22"); a("s_and_b32 s36, s21, 3")
        elif typ in ("K4", "G4"):
            a("s_and_b32 s36, s21, 3"); a(f"s_add_u32 s36, s36, {p}"); a("s_lshr_b32 s21, s21, 2"); a("s_lshl_b32 s37, s20, 1"); a("s_add_u32 s37, s37, s21")
            if typ == "K4": a("s_lshr_b32 s38, s37, 4"); a("s_add_u32 s38, s38, 1"); a("s_and_b32 s37, s37, 15")
        elif typ == "G8": a("s_mov_b32 s36, s21"); a("s_mov_b32 s37, s20")
        elif typ == "QA": pass
        elif typ == "K1":
            a("s_and_b32 s38, s20, 1"); a("s_add_u32 s38, s38, 1"); a("s_lshr_b32 s37, s20, 1"); a("s_lshl_b32 s37, s37, 3")
            a("s_add_u32 s37, s37, s21"); a("s_mov_b32 s36, 1")
        else:
            a(f"s_mov_b32 s36, {2*p}")
            if typ == "KV": a("s_and_b32 s38, s20, 1"); a("s_add_u32 s38, s38, 1"); a("s_lshr_b32 s20, s20, 1")
            if typ == "Q": a("s_mov_b32 s38, 0")
        a(f"s_branch L_{dict(KV='QKV', Q='QKV', K1='QKV2', K4='QKV2', G4='GU2', G8='GU2').get(typ, typ)}")
        a.label(Ln)
        base += n
    a(f"s_branch {END}")
    a.label("L_QA")
    a(f"s_cmp_eq_u32 s{S_B}, 4"); a(f"s_cselect_b32 s{S_PH}, 1, 2")
    a("s_barrier")
    a("s_branch L_next")
    def coords():
        a("s_and_b32 s22, s21, 1"); a("s_add_u32 s36, s36, s22")
        a("s_lshr_b32 s21, s21, 1"); a("s_lshl_b32 s37, s20, 2"); a("s_add_u32 s37, s37, s21")
    def done():
        if PROFW:
            wstamp(a, 3)
            a("s_waitcnt lgkmcnt(0)")
            for i in range(4): a(f"v_writelane_b32 v4, s{70+2*i}, {i}")
            a(f"v_writelane_b32 v4, s{S_ITEM}, 4"); a(f"v_writelane_b32 v4, s{S_B}, 5")
            for i in range(5): a(f"v_writelane_b32 v4, s{[88,6,52,54,80][i]}, {8+i}")
            a("s_lshl_b32 s20, s2, 5"); a("s_add_u32 s20, s20, s100"); a("s_lshl_b32 s20, s20, 6"); a(f"s_add_u32 s20, s20, {TSW_OFF}")
            a(f"v_lshlrev_b32 v5, 2, v{V_LANE}")
            a("s_mov_b64 exec, 0xffff")
            a(f"buffer_store_dword v4, v5, {sr(S_FL,4)}, s20 offen")
            a("s_mov_b64 exec, -1")
            a("s_add_u32 s100, s100, 1"); a("s_min_u32 s100, s100, 31")
        a("s_branch L_next")
    a.label("L_QKV")
    coords()
    a.label("L_QKV2")
    wstamp(a, 1)
    load_srd(a, S_SRDX, 66, XN_OFF, S*XN_STR)
    a("s_cmp_eq_u32 s38, 1"); a("s_cselect_b32 s34, s46, s44"); a("s_cselect_b32 s35, s47, s45")
    a("s_cmp_eq_u32 s38, 2"); a("s_cselect_b32 s34, s48, s34"); a("s_cselect_b32 s35, s49, s35")
    load_srd(a, S_SRDW, 34, 0, DM*4096*2)
    gq = Gemm(a, "qk", 4, 4, 2, XN_STR, 8192, "head", xflags="sc1")
    gv = Gemm(a, "v", 4, 4, 2, XN_STR, 8192, "head", swap=True, xflags="sc1")
    gq.setup()
    a(f"s_mul_i32 s{S_OFFX}, s36, {256*XN_STR}"); a(f"s_lshl_b32 s{S_OFFW}, s37, 9")
    assert K_OFF == Q_OFF + 16*MB and VT_OFF == Q_OFF + 32*MB
    gq.prologue_dma()
    run_epi()
    gq.junk = gv.junk = (LDS_SCR+1024, 13, [24, 28, 84], 79)
    for r, p in ((24, 56), (28, 58), (84, 60)): load_srd(a, r, p, 0, DM*DF*2)
    a(f"s_sub_u32 s79, s{S_ITEM}, 128"); a("s_cmp_lt_u32 s79, 128")
    for r in (24, 28, 84): a(f"s_cselect_b32 s{r+2}, s{r+2}, 0")
    a("s_cselect_b32 s79, s79, 0")
    a("s_lshl_b32 s79, s79, 2"); a(f"s_add_u32 s79, s79, s{S_WAVE}"); a(f"s_mul_i32 s79, s79, {14*1024}")
    a(f"v_lshlrev_b32 v13, 4, v{V_LANE}")
    a("s_cmp_eq_u32 s38, 2"); a("s_cbranch_scc1 L_V")
    gq.main(16, dma_issued=True, **HK)
    a(f"s_mov_b32 s{S_EPI}, 1")
    a("s_branch L_QKVfin")
    a.label("L_V")
    gv.main(16, dma_issued=True, **HK)
    a(f"s_mov_b32 s{S_EPI}, 2")
    a.label("L_QKVfin")
    after_main()
    a("s_lshl_b32 s32, s36, 21"); a("s_lshl_b32 s33, s37, 14"); a("s_add_u32 s32, s32, s33")
    a("s_lshl_b32 s33, s38, 24"); a("s_add_u32 s32, s32, s33"); a(f"s_add_u32 s{S_EP0}, s32, {Q_OFF}")
    a("s_lshl_b32 s32, s36, 10"); a("s_lshl_b32 s33, s37, 6"); a("s_add_u32 s32, s32, s33"); a(f"s_add_u32 s32, s32, {FL_QKV}")
    a("s_add_u32 s33, s38, 2"); a("s_cmp_ge_u32 s33, 3"); a("s_cselect_b32 s34, 3, 0"); a("s_sub_u32 s33, s33, s34")
    a("s_lshl_b32 s33, s33, 3"); a(f"s_lshl_b32 s{S_PVAL}, 4, s33"); a(f"s_mov_b32 s{S_POFF}, s32")
    if not ROT: run_epi()
    done()
    gQ, gV = gq, gv
    a.label("L_KS")
    wstamp(a, 1)
    load_srd(a, S_SRDX, 66, XN_OFF, S*XN_STR)
    a("s_cmp_eq_u32 s38, 2"); a("s_cselect_b32 s34, s48, s46"); a("s_cselect_b32 s35, s49, s47")
    load_srd(a, S_SRDW, 34, 0, DM*4096*2)
    gq = Gemm(a, "ks", 1, 4, 3, XN_STR, 8192, "head", xflags="sc1")
    gv = Gemm(a, "vs", 1, 4, 3, XN_STR, 8192, "head", swap=True, xflags="sc1")
    gq.setup()
    a(f"s_mul_i32 s{S_OFFX}, s36, {64*XN_STR}"); a(f"s_lshl_b32 s{S_OFFW}, s37, 9")
    a("s_lshl_b32 s32, s36, 19"); a("s_lshl_b32 s33, s37, 14"); a("s_add_u32 s32, s32, s33")
    a("s_lshl_b32 s33, s38, 24"); a("s_add_u32 s32, s32, s33"); a(f"s_add_u32 s32, s32, {Q_OFF}")
    gq.prologue_dma()
    a("s_cmp_eq_u32 s38, 2"); a("s_cbranch_scc1 L_VS")
    gq.main(16, dma_issued=True, hook_tail=hook_tail_first)
    after_main()
    gq.epi_qk(S_FL, 32, "sc1")
    a("s_branch L_KSfin")
    a.label("L_VS")
    gv.main(16, dma_issued=True, hook_tail=hook_tail_first)
    after_main()
    gv.epi_v(S_FL, 32, "sc1")
    a.label("L_KSfin")
    a("s_lshl_b32 s32, s37, 6"); a(f"s_add_u32 s32, s32, {FL_QKV}")
    a("s_sub_u32 s33, s38, 1"); a("s_lshl_b32 s33, s33, 3"); a("s_lshl_b32 s33, 1, s33")
    finish(a, 32, "s33")
    done()
    a.label("L_GU")
    coords()
    a.label("L_GU2")
    wstamp(a, 1)
    g = Gemm(a, "gu", 4, 4, 2, XN_STR, DF*2, "gu", xflags="sc1")
    load_srd(a, S_SRDX, 66, XN_OFF, S*XN_STR)
    a(f"s_cmp_ge_u32 s{S_WAVE}, 2"); a("s_cselect_b32 s34, s58, s56"); a("s_cselect_b32 s35, s59, s57")
    load_srd(a, S_SRDW, 34, 0, DM*DF*2)
    g.setup()
    a(f"s_mul_i32 s{S_OFFX}, s36, {256*XN_STR}"); a(f"s_lshl_b32 s{S_OFFW}, s37, 8")
    g.prologue_dma()
    run_epi()
    g.main(16, dma_issued=True, **HK)
    after_main()
    a(f"s_mul_i32 s32, s36, {256*H_STR}"); a("s_lshl_b32 s33, s37, 10"); a("s_add_u32 s32, s32, s33"); a(f"s_add_u32 s{S_EP0}, s32, {H_OFF}")
    a(f"s_mov_b32 s{S_EPI}, 3")
    a(f"s_lshl_b32 s{S_POFF}, s36, 7"); a(f"s_add_u32 s{S_POFF}, s{S_POFF}, {FL_GU}"); a(f"s_mov_b32 s{S_PVAL}, 1")
    if not ROT: run_epi()
    done()
    a.label("L_epi")
    a(f"s_cmp_eq_u32 s{S_EPI}, 0"); a("s_cbranch_scc1 L_epi_ret")
    a(f"s_cmp_eq_u32 s{S_EPI}, 2"); a("s_cbranch_scc1 L_epi2")
    a(f"s_cmp_eq_u32 s{S_EPI}, 3"); a("s_cbranch_scc1 L_epi3")
    gQ.epi_qk(S_FL, S_EP0, "sc1")
    a("s_branch L_epi_end")
    a.label("L_epi2")
    gV.epi_v(S_FL, S_EP0, "sc1")
    a("s_branch L_epi_end")
    a.label("L_epi3")
    g.epi_gu(S_FL, S_EP0, "sc1")
    a.label("L_epi_end")
    a(f"s_mov_b32 s{S_EPI}, 0")
    a.label("L_epi_ret")
    a(f"s_setpc_b64 s[{S_RET}:{S_RET+1}]")
    a.label("L_DN")
    flush()
    a("s_lshl_b32 s32, s36, 7"); a(f"s_add_u32 s32, s32, {FL_GU}")
    wait_flags(a, lambda: a("v_mov_b32 v5, 0"), 32, 0xffffffff, 28, END, 1)
    wstamp(a, 1)
    g = Gemm(a, "dn", 4, 2, 3, H_STR, 2048, "plain", xflags="sc1", xr4=True)
    load_srd(a, S_SRDX, 66, H_OFF, S*H_STR)
    load_srd(a, S_SRDW, 60, 0, DF*DM*2)
    g.setup()
    a(f"s_mul_i32 s{S_OFFX}, s36, {256*H_STR}"); a(f"s_lshl_b32 s{S_OFFW}, s37, 8")
    g.main(56, hook_tail=hook_tail)
    after_main()
    load_srd(a, 28, 66, BP_OFF, S*DM*2)
    a("s_lshl_b32 s32, s36, 19"); a("s_lshl_b32 s33, s37, 8")
    g.epi_plain(28, 32, 33, "sc1")
    a("s_lshl_b32 s32, s36, 3"); a("s_add_u32 s32, s32, s37"); a("s_lshl_b32 s32, s32, 6"); a(f"s_add_u32 s{S_POFF}, s32, {FL_DN}")
    a(f"s_mov_b32 s{S_PVAL}, 1")
    done()
    for nm, MT, NST in (("W2", 4, 3), ("W1", 2, 4)):
        a.label(f"L_{nm}")
        flush()
        sh = 0 if MT == 4 else 1
        a(f"s_lshl_b32 s32, s36, {8-sh}"); a(f"s_add_u32 s32, s32, {FL_AT}")
        if MT == 4: wait_flags(a, lambda: (a(f"v_and_b32 v5, 1, v{V_LANE}"), a("v_lshlrev_b32 v5, 7, v5")), 32, 0xffffffff, 128, END, 2)
        else: wait_flags(a, lambda: a("v_mov_b32 v5, 0"), 32, 0xffffffff, 128, END, 1)
        wstamp(a, 1)
        g = Gemm(a, nm, MT, 2, NST, OA_STR, 2048, "plain", xflags="sc1", xr4=True, wperm=True)
        load_srd(a, S_SRDX, 66, OA_OFF, S*OA_STR)
        load_srd(a, S_SRDW, 50, 0, 4096*DM*2)
        g.setup()
        a(f"s_mul_i32 s{S_OFFX}, s36, {64*MT*OA_STR}"); a(f"s_lshl_b32 s{S_OFFW}, s37, 8")
        g.main(64, hook_tail=hook_tail)
        after_main()
        a(f"s_lshr_b32 s32, s36, {sh}"); a("s_lshl_b32 s32, s32, 3"); a("s_add_u32 s32, s32, s37"); a("s_lshl_b32 s32, s32, 6"); a(f"s_add_u32 s32, s32, {FL_DN}")
        wait_flags(a, lambda: a("v_mov_b32 v5, 0"), 32, 0xffffffff, 1, END, 1)
        load_srd(a, 28, 62, 0, S*DM*2)
        load_srd(a, S_SRDX, 40, 0, S*DM*2)
        load_srd(a, S_SRDW, 66, BP_OFF, S*DM*2)
        a(f"s_lshl_b32 s32, s36, {19-sh}"); a("s_lshl_b32 s33, s37, 8")
        g.epi_plain(28, 32, 33, "", final=(S_SRDX, S_SRDW, "sc1"))
        done()
    a.label("L_WR")
    flush()
    wor_item(a, END)
    done()
    a.label("L_qa")
    flush()
    a(f"s_sub_u32 s20, s{S_ITEM}, 0x1000")
    a(f"s_cmp_ge_u32 s20, {NQA}"); a(f"s_cbranch_scc1 {END}")
    Lq = a.newlabel("Px")
    a("s_cmp_ge_u32 s20, 32"); a(f"s_cbranch_scc1 {Lq}")
    for i in range(4): a(f"v_mov_b32 v{4+i}, -1")
    a(f"v_lshlrev_b32 v3, 4, v{V_LANE}"); a("s_lshl_b32 s21, s20, 16"); a(f"s_lshl_b32 s22, s{S_WAVE}, 14"); a("s_add_u32 s21, s21, s22"); a(f"s_add_u32 s21, s21, {EX_OFF}")
    for i in range(16):
        a(f"buffer_store_dwordx4 v[4:7], v3, {sr(S_FL,4)}, s21 offen offset:{(i%4)*1024} sc1")
        if i % 4 == 3: a("s_add_u32 s21, s21, 4096")
    a(f"s_mov_b32 s36, {FL_EX}")
    wstamp(a, 1); wstamp(a, 2)
    finish(a, 36, 1)
    done()
    a.label(Lq)
    a("s_sub_u32 s20, s20, 32")
    a(f"s_cmp_ge_u32 s20, {NBLK*16}"); a("s_cbranch_scc1 L_AT4")
    def attention(npair):
        sh = 0 if npair == 2 else 1
        a("s_lshr_b32 s32, s38, 3"); a("s_lshl_b32 s32, s32, 10"); a(f"s_lshr_b32 s34, s37, {sh}"); a("s_lshl_b32 s33, s34, 8")
        a("s_add_u32 s32, s32, s33"); a(f"s_add_u32 s32, s32, {FL_QKV}")
        wait_flags(a, lambda: (a(f"v_and_b32 v5, 3, v{V_LANE}"), a("v_lshlrev_b32 v5, 6, v5")), 32, 0xffffff, 0x40404, END, 4)
        a("s_lshl_b32 s32, s38, 2"); a("s_add_u32 s32, s32, s34"); a("s_lshl_b32 s32, s32, 7"); a(f"s_add_u32 s32, s32, {FL_STEP}")
        def w():
            wait_flags(a, lambda: a("v_mov_b32 v15, 0"), 32, 0xffffffff, 24, END, 1, 14, 15, 2)
            if PROFW: a("s_memrealtime s[84:85]")
        att_item(a, S_FL, 38, 37, "sc1", "sc1", npair, w, late=(npair == 1))
        if PROFW: a("s_waitcnt lgkmcnt(0)"); a("s_mov_b32 s72, s84"); a("s_mov_b32 s74, s84")
        finish(a, 36, 4*npair)
        done()
    a("s_lshr_b32 s38, s20, 2"); a("s_and_b32 s37, s20, 3")
    a("s_lshr_b32 s36, s20, 4"); a("s_lshl_b32 s36, s36, 7"); a(f"s_add_u32 s36, s36, {FL_AT}")
    attention(2)
    a.label("L_AT4")
    a(f"s_sub_u32 s20, s20, {NBLK*16}"); a("s_lshr_b32 s38, s20, 3"); a("s_and_b32 s37, s20, 7")
    a("s_lshl_b32 s36, s38, 7"); a("s_lshr_b32 s21, s37, 2"); a("s_lshl_b32 s21, s21, 6"); a("s_add_u32 s36, s36, s21")
    a(f"s_add_u32 s36, s36, {FL_ATS}"); a(f"s_add_u32 s38, s38, {4*NBLK}")
    attention(1)
    a.label(END)
    a("s_mov_b64 exec, -1")
    a(f"v_mov_b32 v4, 0x1fff"); a(f"v_mov_b32 v5, {LDS_SCR}")
    a("ds_write_b32 v5, v4")
    a("s_waitcnt lgkmcnt(0)")
    a.label("L_end")
    a("s_endpgm")

def build(path, prof=False, profw=False, force_slow=False, header=""):
    global PROFW
    chain.PROF = prof; PROFW = profw
    a = Asm()
    if header: a.raw(header)
    a.raw("; @launch grid=(256,1,1) block=(256,1,1) lds=163840")
    a.raw('.amdgcn_target "amdgcn-amd-amdhsa--gfx950"')
    a.raw(".text")
    emit_mega(a, MAIN, force_slow)
    a.raw('.section .rodata,"a"')
    kernel_desc(a, MAIN, 512, 256)
    open(path, "w").write(a.text())

if __name__ == "__main__":
    build("parallel_sum__memory_aug_recurrent_mem_tr__glu_gated_geglu__prompt.s", header=open("header.txt").read())
    build("m1.s")
    build("m1_prof.s", prof=True, profw=True)
    for xs, xg in ((4,4),(5,5),(7,3),(8,5)):
        chain.XSLEEP, chain.XGAP = xs, xg
        build(f"m1_x{xs}g{xg}_prof.s", prof=True, profw=True)
    chain.XSLEEP, chain.XGAP = 6, 4
    chain.FORCE_FALLBACK = True
    build("m1_fb.s")
```

```python
from common import *
from gemm import V_LANE, S_WAVE
import math
S_WS = 8; S_WT = 12; S_X = 16; S_R = 17; S_MODE = 18; S_STEP = 19
CEXP = (DH**-0.5)*math.log2(math.e)
PROF = False
NSTEP = 64
INIT_WAIT = None
FORCE_FALLBACK = False
STAMP = None
IDLE = None
A_READY = None
NYOUNG = 0
INIT_ARRIVE = None
NPOLL = 4
NFLY = 3
PSLEEP = 1
WIN2 = 2
PER2 = 1
RS = 0
RSETS = 1
VLIGHT = False
VS = 0
AS = 0
WIN = 4
PER = 2
GBAR = True
GATE = 'all'
XSLEEP = 6
XGAP = 4
XAHEAD = 2

def ts(a, i):
    if PROF: a(f"s_memtime s[{70+2*i}:{71+2*i}]")
def rts(a, i):
    if PROF: a(f"s_memrealtime s[{90+2*i}:{91+2*i}]")
def ts_store(a, role_id_sreg, tmpv):
    if not PROF: return
    a("s_waitcnt lgkmcnt(0)")
    for i in range(10): a(f"v_writelane_b32 v{tmpv}, s{70+2*i}, {i}")
    a(f"v_writelane_b32 v{tmpv}, s90, 10"); a(f"v_writelane_b32 v{tmpv}, s92, 11")
    a(f"v_writelane_b32 v{tmpv}, s30, 12"); a(f"v_writelane_b32 v{tmpv}, s94, 13"); a(f"v_writelane_b32 v{tmpv}, s4, 14"); a(f"v_writelane_b32 v{tmpv}, s6, 15")
    a(f"s_lshl_b32 s20, s{role_id_sreg}, 6"); a(f"s_add_u32 s20, s20, s{S_STEP}"); a("s_lshl_b32 s20, s20, 2")
    a(f"s_add_u32 s20, s20, s{S_WAVE}"); a("s_lshl_b32 s20, s20, 6"); a(f"s_add_u32 s20, s20, {TS2_OFF}")
    a(f"v_mbcnt_lo_u32_b32 v{tmpv+1}, -1, 0"); a(f"v_lshlrev_b32 v{tmpv+1}, 2, v{tmpv+1}")
    a("s_mov_b64 exec, 0xffff")
    a(f"buffer_store_dword v{tmpv}, v{tmpv+1}, {sr(S_WS,4)}, s20 offen")
    a("s_mov_b64 exec, -1")

def local_store(a, instr):
    L1, L2 = a.newlabel("ls"), a.newlabel("ls")
    a(f"s_cmp_lg_u32 s{S_MODE}, 0")
    a(f"s_cbranch_scc1 {L1}")
    a(instr)
    a(f"s_branch {L2}")
    a.label(L1)
    a(instr + " sc1")
    a.label(L2)

def poll_tail(a, Lretry, abort):
    a("s_add_u32 s30, s30, 1")
    a(f"s_cmp_lt_u32 s30, {POLL_MAX*(8 if PROF else 1)}")
    a(f"s_cbranch_scc1 {Lretry}")
    a(f"s_branch {abort}")

def idx_reg(a, v):
    a(f"v_bfe_u32 v{v}, v{V_LANE}, 3, 1")
    a(f"v_mov_b32 v15, 0x44444444")
    a(f"v_mul_u32_u24 v{v}, 0xaaaa, v{v}")
    a(f"v_lshl_or_b32 v{v}, v{v}, 16, v{v}")
    a(f"v_add_u32 v{v}, v15, v{v}")

def tr_base(a, dst, rowbytes, row_expr, chunk_expr):
    pass

A_SC = 128*1024; A_KX = 140*1024; A_VX = 148*1024
def role_A(a, abort, kv_wait=None, step_done=None):
    L = V_LANE; W = S_WAVE
    VK1, VI, VID, VT0, VT1, VKX, VVX, VVM, VO, VKM, VSW, VSR, VSM, VL16, VKA = 15, 3, 24, 6, 7, 8, 9, 10, 11, 12, 13, 14, 0, 2, 1
    PIECE = 32; STG = [96, 104, 16]; ACC = 112
    Wq = lambda ks, t: ar((ks*2+t)*8, 8)
    Wk0 = lambda ks: vr(128+ks*8, 8)
    head = 21
    a(f"s_lshl_b32 s26, s{S_X}, 3"); a(f"s_add_u32 s26, s26, s{S_R}")
    a(f"v_lshrrev_b32 v2, 4, v{L}"); a(f"v_and_b32 v3, 15, v{L}")
    a("v_lshlrev_b32 v4, 1, v2"); a("v_xor_b32 v3, v3, v4")
    a(f"s_lshl_b32 s20, s{W}, 4"); a("v_add_u32 v2, s20, v2"); a("v_lshlrev_b32 v2, 13, v2")
    a("v_lshlrev_b32 v3, 4, v3")
    for j in range(4):
        if j >= 2: a(f"v_xor_b32 v4, 128, v3")
        else: a("v_mov_b32 v4, v3")
        a(f"v_add_u32 v4, v2, v4"); a(f"v_add_u32 v{32+j}, {4*j*8192}, v4")
    a(f"v_lshrrev_b32 v2, 3, v{L}"); a(f"v_and_b32 v3, 7, v{L}")
    a(f"v_bfe_u32 v4, v{L}, 4, 1"); a("v_lshlrev_b32 v4, 1, v4"); a("v_xor_b32 v3, v3, v4")
    a("v_add_u32 v2, s20, v2"); a("v_lshlrev_b32 v2, 13, v2")
    a("v_lshlrev_b32 v3, 4, v3")
    a("v_add_u32 v36, v2, v3")
    a("v_xor_b32 v3, 64, v3"); a("v_add_u32 v37, v2, v3"); a(f"v_add_u32 v37, {8*8192}, v37")
    a(f"v_lshrrev_b32 v2, 4, v{L}"); a(f"v_bfe_u32 v3, v{L}, 2, 2")
    a("v_lshl_add_u32 v4, v2, 3, v3")
    a(f"v_and_b32 v5, 3, v{L}"); a("v_lshlrev_b32 v5, 3, v5")
    a("v_and_b32 v2, 1, v2")
    a("v_lshl_or_b32 v15, v2, 2, v3"); a(f"v_xor_b32 v15, s{W}, v15")
    a("v_lshlrev_b32 v15, 5, v15"); a("v_lshl_add_u32 v38, v4, 8, v5"); a("v_add_u32 v39, v38, v15")
    a("v_xor_b32 v15, 128, v15"); a("v_add_u32 v40, v38, v15")
    a("v_lshrrev_b32 v3, 1, v3"); a("v_lshl_or_b32 v15, v2, 1, v3"); a(f"v_xor_b32 v15, s{W}, v15")
    a("v_lshlrev_b32 v15, 5, v15"); a(f"v_lshl_add_u32 v{VT0}, v4, 7, v5"); a(f"v_add_u32 v{VT0}, v{VT0}, v15")
    a(f"v_add_u32 v{VT1}, 65536, v{VT0}")
    load_srd(a, S_WT, 44, 0, DM*4096*2)
    load_srd(a, 28, 46, 0, DM*4096*2)
    a("s_lshl_b32 s22, s26, 8")
    a(f"s_lshl_b32 s23, s{W}, 12"); a(f"s_lshl_b32 s24, s{W}, 11"); a("s_add_u32 s24, s24, 16384")
    SLOT = 24576; NSL = 6
    def issue(ks):
        b = (ks % NSL)*SLOT
        for j in range(4):
            a(f"s_add_u32 m0, s23, {b+1024*j}"); a("s_nop 0")
            a(f"buffer_load_dwordx4 v{32+j}, {sr(S_WT,4)}, s22 offen lds")
        for j in range(2):
            a(f"s_add_u32 m0, s24, {b+1024*j}"); a("s_nop 0")
            a(f"buffer_load_dwordx4 v{36+j}, s[28:31], s22 offen lds")
        a(f"s_add_u32 s22, s22, {64*8192}")
    for ks in range(NSL-1):
        issue(ks)
        if ks == 0 and INIT_ARRIVE:
            a(f"s_waitcnt vmcnt({6+NYOUNG})"); a("s_barrier"); INIT_ARRIVE(a)
    for ks in range(16):
        nxt = ks + NSL - 1
        if nxt < 16: issue(nxt)
        a(f"s_waitcnt vmcnt({6*(min(nxt,15)-ks)})")
        a("s_barrier")
        if ks == -99: pass
        b = (ks % NSL)*SLOT
        a(f"v_add_u32 v41, {b}, v39"); a(f"v_add_u32 v42, {b}, v40"); a(f"v_add_u32 v43, {b+16384}, v{VT0}")
        for q in range(4):
            ro = 32*(q >> 1) + 4*(q & 1)
            a(f"ds_read_b64_tr_b16 {ar((ks*2)*8+2*q,2)}, v41 offset:{ro*256}")
            a(f"ds_read_b64_tr_b16 {ar((ks*2+1)*8+2*q,2)}, v42 offset:{ro*256}")
            a(f"ds_read_b64_tr_b16 {vr(128+ks*8+2*q,2)}, v43 offset:{ro*128}")
        a("s_waitcnt lgkmcnt(0)")
        a("s_barrier")
    a("s_lshl_b32 s22, s26, 8"); a("s_add_u32 s22, s22, 128")
    a(f"s_lshl_b32 s24, s{W}, 11")
    for ks in range(16):
        for j in range(2):
            a(f"s_add_u32 m0, s24, {ks*8192+1024*j}"); a("s_nop 0")
            a(f"buffer_load_dwordx4 v{36+j}, s[28:31], s22 offen lds")
        a(f"s_add_u32 s22, s22, {64*8192}")
    a(f"v_lshlrev_b32 v{VL16}, 4, v{L}")
    a(f"v_add_u32 v{VK1}, s24, v{VL16}")
    a("s_waitcnt vmcnt(0)")
    a("s_barrier")
    for half in range(2):
        for k8 in range(8):
            for q in range(4):
                a(f"ds_read_b64_tr_b16 {vr(32+k8*8+2*q,2)}, v{VT0+half} offset:{k8*8192+4096*(q>>1)+512*(q&1)}")
        a("s_waitcnt lgkmcnt(0)")
        a("s_barrier")
        for k8 in range(8):
            for q in range(2):
                a(f"ds_write_b128 v{VK1}, {vr(32+k8*8+4*q,4)} offset:{k8*8192+1024*q}")
        a("s_waitcnt lgkmcnt(0)")
        if half == 0: a(f"v_add_u32 v{VK1}, 65536, v{VK1}")
    a(f"v_mov_b32 v{VT1}, v{VK1}"); a(f"v_subrev_u32 v{VT0}, 65536, v{VK1}")
    idx_reg(a, VI)
    a(f"v_and_b32 v32, 15, v{L}"); a(f"v_bfe_u32 v33, v{L}, 4, 1"); a("v_lshlrev_b32 v33, 2, v33"); a("v_sub_u32 v32, v32, v33")
    a("v_mov_b32 v33, 0x3f80"); a("v_mov_b32 v34, 0x3f800000")
    for h in range(4):
        e = 2*(h & 1) + 8*(h >> 1)
        a(f"v_cmp_eq_u32 vcc, {e}, v32"); a("s_nop 1"); a(f"v_cndmask_b32 v{VID+h}, 0, v33, vcc")
        a(f"v_cmp_eq_u32 vcc, {e+1}, v32"); a("s_nop 1"); a(f"v_cndmask_b32 v{VID+h}, v{VID+h}, v34, vcc")
    a(f"s_lshl_b32 s20, s{W}, 8"); a(f"s_lshl_b32 s21, s{W}, 10")
    a(f"v_add_u32 v{VKX}, s21, v{VL16}")
    a(f"v_lshrrev_b32 v34, 4, v{L}"); a(f"v_and_b32 v33, 7, v{L}"); a("v_lshlrev_b32 v33, 4, v33"); a(f"v_lshl_add_u32 v{VKM}, v34, 7, v33")
    a(f"s_lshl_b32 s21, s{W}, 9"); a(f"v_add_u32 v{VKM}, s21, v{VKM}")
    a(f"v_and_b32 v33, 15, v{L}"); a(f"v_lshrrev_b32 v34, 4, v{L}")
    a(f"v_lshlrev_b32 v{VVM}, 4, v33"); a(f"v_lshl_add_u32 v{VVM}, v34, 2, v{VVM}"); a(f"v_add_u32 v{VVM}, s20, v{VVM}")
    a(f"v_lshlrev_b32 v{VO}, 4, v33"); a(f"v_lshl_add_u32 v{VO}, v34, 7, v{VO}")
    a(f"s_lshl_b32 s21, s{W}, 9"); a(f"s_lshl_b32 s22, s{S_R}, 11"); a("s_add_u32 s21, s21, s22"); a(f"v_add_u32 v{VO}, s21, v{VO}")
    a(f"s_mul_i32 s21, s{W}, 3072"); a(f"s_add_u32 s21, s21, {A_SC}"); a(f"v_add_u32 v{VSW}, s21, v{VL16}")
    a(f"v_and_b32 v35, 7, v{L}"); a(f"v_bfe_u32 v36, v{L}, 3, 1")
    a("v_lshl_add_u32 v37, v34, 4, v35"); a("v_lshlrev_b32 v37, 4, v37"); a(f"v_lshl_add_u32 v{VSR}, v36, 10, v37")
    a(f"v_add_u32 v{VSR}, {A_SC}, v{VSR}")
    a("v_lshl_add_u32 v37, v34, 1, v36")
    a("v_lshrrev_b32 v38, 2, v37"); a("v_add_u32 v38, 2, v38"); a("v_lshl_add_u32 v38, v38, 4, v35"); a("v_lshlrev_b32 v38, 4, v38")
    a("v_and_b32 v37, 3, v37"); a(f"v_lshl_add_u32 v{VSM}, v37, 2, v38"); a(f"v_add_u32 v{VSM}, {A_SC+2048}, v{VSM}")
    a(f"s_lshl_b32 s27, s{W}, 11")
    a(f"v_add_u32 v{VKA}, s27, v{VL16}"); a(f"v_add_u32 v{VKA}, {A_KX}, v{VKA}")
    a(f"v_and_b32 v5, 0x30, v{VL16}"); a("v_lshlrev_b32 v5, 6, v5"); a(f"s_lshl_b32 s20, s{W}, 12"); a("v_add_u32 v5, s20, v5")
    a("s_mov_b32 s34, 0x00ff00ff"); a("s_mov_b32 s35, 0x00ff00ff")
    a("s_mov_b32 s36, 0xff00ff00"); a("s_mov_b32 s37, 0xff00ff00")
    a(f"s_mov_b32 s38, {f2u(CEXP):#x}")
    def kv_prefetch():
        if kv_wait: kv_wait(a)
        a(f"s_lshl_b32 s20, s{S_STEP}, 5"); a("s_add_u32 s20, s20, s26"); a("s_lshl_b32 s20, s20, 13")
        a(f"s_add_u32 s21, s20, {VT_OFF}"); a(f"s_add_u32 s20, s20, {K_OFF}")
        for t in range(2):
            a(f"s_add_u32 m0, s27, {A_KX+1024*t}"); a("s_nop 0")
            a(f"buffer_load_dwordx4 v{VKX}, {sr(S_WS,4)}, s20 offen sc1 lds")
            a(f"s_add_u32 m0, s27, {A_VX+1024*t}"); a("s_nop 0")
            a(f"buffer_load_dwordx4 v{VKX}, {sr(S_WS,4)}, s21 offen sc1 lds")
            if t == 0: a("s_add_u32 s20, s20, 4096"); a("s_add_u32 s21, s21, 4096")
    a(f"s_mov_b32 s{S_STEP}, 0")
    rts(a, 1)
    if INIT_WAIT:
        a("v_mov_b32 v60, v14"); INIT_WAIT(a); a("v_mov_b32 v14, v60")
        A_READY(a)
    kv_prefetch()
    a("s_waitcnt vmcnt(0)")
    a("s_barrier")
    if PROF: a("s_memrealtime s[94:95]")
    def k1read(ks):
        st = STG[ks % 3]; base = VT0 if ks < 8 else VT1
        return [f"ds_read_b128 {vr(st+4*q,4)}, v{base} offset:{(ks%8)*8192+1024*q}" for q in range(2)]
    a.label("L_A_step")
    a("s_mov_b32 s30, 0"); a("s_mov_b32 s32, 0")
    a(f"s_and_b32 s39, s{S_STEP}, 3"); a("s_lshl_b32 s39, s39, 16")
    a(f"s_lshl_b32 s21, s{S_X}, 14"); a("s_add_u32 s25, s39, s21")
    a(f"s_add_u32 s20, s25, {CH_MEM}")
    for i in range(1, 4): a(f"s_add_u32 s{20+i}, s20, {4096*i}")
    for i in range(16): a(f"v_mov_b32 v{ACC+i}, 0")
    def pload(i):
        a(f"buffer_load_dwordx4 {vr(PIECE+4*i,4)}, v{VL16}, {sr(S_WS,4)}, s{20+i//4} offen offset:{(i%4)*1024} sc1")
    def k1r(ks, pos):
        st = STG[pos % 3]; base = VT0 if ks < 8 else VT1
        return [f"ds_read_b128 {vr(st+4*q,4)}, v{base} offset:{(ks%8)*8192+1024*q}" for q in range(2)]
    Lk = [a.newlabel("Ak") for _ in range(5)]
    for q in range(1, 4): a(f"s_cmp_eq_u32 s{W}, {q}"); a(f"s_cbranch_scc1 {Lk[q]}")
    for q in range(4):
        a.label(Lk[q])
        for x in k1r(4*q, 0) + k1r(4*q+1, 1): a(x)
        if q < 3: a(f"s_branch {Lk[4]}")
    a.label(Lk[4])
    def sload(k): a(f"buffer_load_dword v{28+k}, v5, {sr(S_WS,4)}, s20 offen sc1")
    def polls():
        for k in range(NFLY):
            sload(k)
            if k < NFLY-1: a(f"s_sleep {PSLEEP}")
    polls()
    a.label("L_A_poll")
    for k in range(NFLY):
        a(f"s_waitcnt vmcnt({NFLY-1})")
        a(f"v_cmp_eq_u32 vcc, -1, v{28+k}")
        a("s_cbranch_vccz L_A_pre")
        sload(k)
    poll_tail(a, "L_A_poll", abort)
    a.label("L_A_pre")
    for q in range(1, 4): a(f"s_cmp_eq_u32 s{W}, {q}"); a(f"s_cbranch_scc1 L_A_pre{q}")
    for q in range(4):
        a.label(f"L_A_pre{q}")
        for i in range(4): pload(4*q+i)
        a("s_barrier")
        a(f"s_branch L_A_go{q}")
    a.label("L_A_redo")
    a("s_nop 7")
    for i in range(16): a(f"v_mov_b32 v{ACC+i}, 0")
    a("s_add_u32 s32, s32, 1"); a(f"s_cmp_ge_u32 s32, {POLL_MAX}"); a(f"s_cbranch_scc1 {abort}")
    if PROF: a("s_add_u32 s30, s30, 0x10000")
    for i in range(4): pload(i)
    for x in k1r(0, 0) + k1r(1, 1): a(x)
    for q in range(4):
        a.label(f"L_A_go{q}")
        ts(a, 0)
        order = [(4*q + i) % 16 for i in range(16)]
        issued = 4
        for _ in range(WIN2): pload(order[issued]); issued += 1
        for pos, ks in enumerate(order):
            P = vr(PIECE+4*ks, 4)
            if pos in (0, 4, 8, 12): ts(a, 5+pos//4)
            a(f"s_waitcnt vmcnt({issued-1-pos}) lgkmcnt({0 if (pos == 15 or (PROF and pos % 4 == 0)) else 2})")
            a(f"v_smfmac_f32_16x16x64_bf16 {vr(ACC,4)}, {P}, {Wq(ks,0)}, v{VI}")
            if issued < 16: pload(order[issued]); issued += 1
            a(f"v_smfmac_f32_16x16x64_bf16 {vr(ACC+12,4)}, {P}, {vr(STG[pos % 3],8)}, v{VI}")
            rd = k1r(order[pos+2], pos+2) if pos+2 < 16 else []
            for x in rd[:1]: a(x)
            if PER2 > 1 and issued < 16: pload(order[issued]); issued += 1
            a(f"v_smfmac_f32_16x16x64_bf16 {vr(ACC+4,4)}, {P}, {Wq(ks,1)}, v{VI}")
            for x in rd[1:]: a(x)
            if pos == 1: a(f"v_max_u32 v15, v{PIECE+4*order[0]}, v{PIECE+4*ks}")
            elif pos % 2 == 1: a(f"v_max3_u32 v15, v15, v{PIECE+4*order[pos-1]}, v{PIECE+4*ks}")
            if pos == 15: a("v_cmp_eq_u32 vcc, -1, v15")
            a(f"v_smfmac_f32_16x16x64_bf16 {vr(ACC+8,4)}, {P}, {Wk0(ks)}, v{VI}")
        if q < 3: a("s_branch L_A_g1")
    a.label("L_A_g1")
    a("s_cbranch_vccnz L_A_redo")
    ts(a, 1)
    KX = 48; VX = 56; VM = 64; Y = 68; X = 72; T = 72; SX = 84; SM = 96+8
    for t in range(2): a(f"ds_read_b128 {vr(KX+4*t,4)}, v{VKA} offset:{1024*t}")
    for t in range(2): a(f"ds_read_b128 {vr(VX+4*t,4)}, v{VKA} offset:{A_VX-A_KX+1024*t}")
    a("s_lshl_b32 s21, s26, 11"); a("s_add_u32 s20, s39, s21"); a(f"s_add_u32 s24, s20, {CH_VM}")
    a("s_nop 1")
    for t in range(2):
        a(f"v_cvt_pk_bf16_f32 v{X+4*t}, v{ACC+4*t}, v{ACC+4*t+1}"); a(f"v_cvt_pk_bf16_f32 v{X+4*t+1}, v{ACC+4*t+2}, v{ACC+4*t+3}")
        a(f"v_cvt_pk_bf16_f32 v{X+4*t+2}, v{ACC+8+4*t}, v{ACC+8+4*t+1}"); a(f"v_cvt_pk_bf16_f32 v{X+4*t+3}, v{ACC+8+4*t+2}, v{ACC+8+4*t+3}")
    a("s_nop 0")
    a(f"v_mfma_f32_16x16x32_bf16 {vr(ACC+8,4)}, {vr(X,4)}, {vr(VID,4)}, 0")
    a(f"v_mfma_f32_16x16x32_bf16 {vr(ACC+12,4)}, {vr(X+4,4)}, {vr(VID,4)}, 0")
    a("s_nop 0")
    a(f"v_mov_b32 v{VM+1}, 0"); a(f"v_mov_b32 v{VM+3}, 0")
    a(f"s_lshl_b32 s20, s{S_STEP}, 5"); a("s_add_u32 s20, s20, s26"); a("s_lshl_b32 s20, s20, 12"); a(f"s_add_u32 s20, s20, {KVM_OFF}")
    a(f"v_cvt_pk_bf16_f32 v{Y}, v{ACC+8}, v{ACC+9}"); a(f"v_cvt_pk_bf16_f32 v{Y+1}, v{ACC+10}, v{ACC+11}")
    a(f"v_cvt_pk_bf16_f32 v{Y+2}, v{ACC+12}, v{ACC+13}"); a(f"v_cvt_pk_bf16_f32 v{Y+3}, v{ACC+14}, v{ACC+15}")
    a("s_waitcnt lgkmcnt(0)")
    a("s_nop 0")
    a(f"v_mfma_f32_16x16x32_bf16 {vr(T,4)}, {vr(KX,4)}, {vr(Y,4)}, 0")
    a(f"v_mfma_f32_16x16x32_bf16 {vr(T+4,4)}, {vr(KX+4,4)}, {vr(Y,4)}, 0")
    a(f"v_mfma_f32_16x16x32_bf16 {vr(T+8,4)}, {vr(Y,4)}, {vr(Y,4)}, 0")
    a(f"s_cmp_eq_u32 s{S_STEP}, {NSTEP-1}")
    a("s_cbranch_scc1 L_A_last")
    a("s_nop 3")
    a(f"ds_write_b128 v{VSW}, {vr(T,4)}")
    a(f"ds_write_b128 v{VSW}, {vr(T+4,4)} offset:1024")
    a(f"ds_write_b128 v{VSW}, {vr(T+8,4)} offset:2048")
    ts(a, 2)
    a(f"buffer_load_dword v{VM}, v{VVM}, {sr(S_WS,4)}, s24 offen sc1")
    a(f"buffer_load_dword v{VM+2}, v{VVM}, {sr(S_WS,4)}, s24 offen offset:1024 sc1")
    a("s_mov_b64 exec, s[36:37]")
    a(f"buffer_store_dwordx4 {vr(Y,4)}, v{VKM}, {sr(S_WS,4)}, s20 offen sc1")
    a("s_mov_b64 exec, -1")
    a("s_waitcnt lgkmcnt(0)")
    a("s_barrier")
    for pw in range(4):
        a(f"ds_read_b128 {vr(SX+4*pw,4)}, v{VSR} offset:{pw*3072}")
        a(f"ds_read_b32 v{SM+pw}, v{VSM} offset:{pw*3072}")
    a("s_waitcnt lgkmcnt(4)")
    a(f"v_pk_add_f32 {vr(SX,2)}, {vr(SX,2)}, {vr(SX+4,2)}"); a(f"v_pk_add_f32 {vr(SX+2,2)}, {vr(SX+2,2)}, {vr(SX+6,2)}")
    a(f"v_add_f32 v{SM}, v{SM}, v{SM+1}")
    a("s_waitcnt lgkmcnt(0)")
    a(f"v_pk_add_f32 {vr(SX+8,2)}, {vr(SX+8,2)}, {vr(SX+12,2)}"); a(f"v_pk_add_f32 {vr(SX+10,2)}, {vr(SX+10,2)}, {vr(SX+14,2)}")
    a(f"v_add_f32 v{SM+2}, v{SM+2}, v{SM+3}")
    a(f"v_pk_add_f32 {vr(SX,2)}, {vr(SX,2)}, {vr(SX+8,2)}"); a(f"v_pk_add_f32 {vr(SX+2,2)}, {vr(SX+2,2)}, {vr(SX+10,2)}")
    a(f"v_add_f32 v{SM}, v{SM}, v{SM+2}")
    M = SX+4; TM = SX+5
    def fold(op, r):
        a("s_nop 1")
        a(f"{op}_dpp v{r}, v{r}, v{r} row_ror:8 row_mask:0xf bank_mask:0xf")
        for sw in ("v_permlane16_swap_b32", "v_permlane32_swap_b32"):
            a(f"v_mov_b32 v{TM}, v{r}"); a("s_nop 1"); a(f"{sw} v{r}, v{TM}"); a(f"{op} v{r}, v{r}, v{TM}")
    a(f"v_max3_f32 v{M}, v{SX}, v{SX+1}, v{SX+2}"); a(f"v_max3_f32 v{M}, v{M}, v{SX+3}, v{SM}")
    fold("v_max_f32", M)
    a(f"v_mul_f32 v{M}, s38, v{M}")
    for r in (SX, SX+1, SX+2, SX+3, SM): a(f"v_fma_f32 v{r}, v{r}, s38, -v{M}")
    for r in (SX, SX+1, SX+2, SX+3, SM): a(f"v_exp_f32 v{r}, v{r}")
    a("s_waitcnt vmcnt(1)")
    a(f"v_max_u32 v{TM}, v{VM}, v{VM+2}")
    a(f"v_cmp_eq_u32 vcc, -1, v{TM}")
    PX = SX+8; PM = SX+12
    a(f"v_mov_b32 v{PM+1}, 0")
    a(f"v_cvt_pk_bf16_f32 v{PX}, v{SX}, v{SX+1}"); a(f"v_cvt_pk_bf16_f32 v{PX+1}, v{SX+2}, v{SX+3}")
    a(f"v_mov_b32_dpp v{SM+1}, v{SM} row_ror:8 row_mask:0xf bank_mask:0xf")
    a(f"v_add_f32 v{M}, v{SX}, v{SX+1}")
    a(f"v_mov_b32_dpp v{PX+2}, v{PX} row_ror:8 row_mask:0xf bank_mask:0xf")
    a(f"v_mov_b32_dpp v{PX+3}, v{PX+1} row_ror:8 row_mask:0xf bank_mask:0xf")
    a(f"v_cvt_pk_bf16_f32 v{PM}, v{SM}, v{SM+1}")
    a(f"v_add_f32 v{SX+2}, v{SX+2}, v{SX+3}")
    ts(a, 3)
    a(f"v_mfma_f32_16x16x32_bf16 {vr(T,4)}, {vr(VX,4)}, {vr(PX,4)}, 0")
    a(f"v_add_f32 v{M}, v{M}, v{SM}")
    a(f"v_mfma_f32_16x16x32_bf16 {vr(T+4,4)}, {vr(VX+4,4)}, {vr(PX,4)}, 0")
    a(f"v_add_f32 v{M}, v{M}, v{SX+2}")
    a(f"s_cbranch_vccnz L_A_vmfix")
    a.label("L_A_vmok")
    a(f"v_mfma_f32_16x16x16_bf16 {vr(T,4)}, {vr(VM,2)}, {vr(PM,2)}, {vr(T,4)}")
    a(f"v_add_f32_dpp v{M}, v{M}, v{M} row_ror:8 row_mask:0xf bank_mask:0xf")
    a(f"v_mfma_f32_16x16x16_bf16 {vr(T+4,4)}, {vr(VM+2,2)}, {vr(PM,2)}, {vr(T+4,4)}")
    for sw in ("v_permlane16_swap_b32", "v_permlane32_swap_b32"):
        a(f"v_mov_b32 v{TM}, v{M}"); a("s_nop 1"); a(f"{sw} v{M}, v{TM}"); a(f"v_add_f32 v{M}, v{M}, v{TM}")
    a(f"v_rcp_f32 v{M}, v{M}")
    a(f"s_add_u32 s20, s25, {CH_OX}")
    for i in range(8): a(f"v_mul_f32 v{T+i}, v{T+i}, v{M}")
    for i in range(4): a(f"v_cvt_pk_bf16_f32 v{Y+i}, v{T+2*i}, v{T+2*i+1}")
    a("s_mov_b64 exec, s[34:35]")
    local_store(a, f"buffer_store_dwordx4 {vr(Y,4)}, v{VO}, {sr(S_WS,4)}, s20 offen")
    ts(a, 4); rts(a, 0)
    for i in range(4): a(f"v_mov_b32 v{T+i}, -1")
    a(f"s_add_u32 s21, s25, {3*65536}"); a(f"s_and_b32 s21, s21, {4*65536-1}"); a(f"s_add_u32 s21, s21, {CH_OX}")
    local_store(a, f"buffer_store_dwordx4 {vr(T,4)}, v{VO}, {sr(S_WS,4)}, s21 offen")
    a("s_mov_b64 exec, -1")
    if step_done: step_done(a, "A")
    ts_store(a, 26, 60)
    a(f"s_add_u32 s{S_STEP}, s{S_STEP}, 1")
    kv_prefetch()
    if AS: a(f"s_sleep {AS}")
    a("s_branch L_A_step")
    a.label("L_A_vmfix")
    a(f"buffer_load_dword v{VM}, v{VVM}, {sr(S_WS,4)}, s24 offen sc1")
    a(f"buffer_load_dword v{VM+2}, v{VVM}, {sr(S_WS,4)}, s24 offen offset:1024 sc1")
    a("s_waitcnt vmcnt(0)")
    a(f"v_max_u32 v{TM}, v{VM}, v{VM+2}")
    a(f"v_cmp_eq_u32 vcc, -1, v{TM}")
    a("s_cbranch_vccz L_A_vmok")
    poll_tail(a, "L_A_vmfix", abort)
    a.label("L_A_last")
    a("s_mov_b64 exec, s[36:37]")
    a(f"buffer_store_dwordx4 {vr(Y,4)}, v{VKM}, {sr(S_WS,4)}, s20 offen sc1")
    a("s_mov_b64 exec, -1")
    if step_done: step_done(a, "Alast")

R_PS, R_HS, R_GS, R_CS = 2368, 1184, 288, 144
VR_V = 0; VR_R = 16384; VR_X = 40960
SCP = 52
def role_VR(a, abort, step_done=None):
    L = V_LANE; W = S_WAVE
    VI, VL16, VWV, VRV, VWR, VRR, VSV, VSP, VPL2, VSM, VPL = 3, 4, 5, 6, 7, 8, 9, 10, 12, 13, 16
    PIECE = 32; ACC = 48; RD = 64; POIS = 96
    a(f"s_sub_u32 s{S_R}, s{S_R}, 8")
    a(f"s_lshl_b32 s26, s{S_X}, 3"); a(f"s_lshr_b32 s20, s{S_R}, 1"); a("s_add_u32 s26, s26, s20")
    a(f"s_lshl_b32 s27, s{W}, 15")
    a(f"v_lshrrev_b32 v2, 4, v{L}"); a(f"v_bfe_u32 v3, v{L}, 2, 2")
    a(f"v_and_b32 v5, 3, v{L}"); a("v_lshlrev_b32 v5, 3, v5"); a("v_add_u32 v5, s27, v5")
    a("v_and_b32 v6, 1, v2")
    a("v_lshrrev_b32 v7, 1, v3"); a("v_lshl_or_b32 v8, v6, 1, v7")
    a("v_lshl_add_u32 v4, v2, 3, v3"); a("v_lshl_add_u32 v9, v4, 7, v5")
    a("v_lshrrev_b32 v4, 1, v2"); a("v_lshlrev_b32 v4, 3, v4"); a("v_lshl_add_u32 v4, v6, 6, v4"); a("v_lshl_add_u32 v4, v7, 2, v4")
    a("v_and_b32 v10, 1, v3"); a("v_add_u32 v4, v4, v10"); a("v_lshl_add_u32 v10, v4, 7, v5")
    for t in range(4):
        a(f"v_xor_b32 v4, {t}, v8"); a("v_lshlrev_b32 v4, 5, v4")
        a(f"v_add_u32 v{32+t}, v9, v4"); a(f"v_add_u32 v{36+t}, v10, v4")
    for part in range(2):
        stride = 8192 if part == 0 else 2048
        a(f"v_lshrrev_b32 v2, 3, v{L}"); a(f"v_and_b32 v3, 7, v{L}")
        a(f"v_bfe_u32 v4, v{L}, {4 if part == 0 else 5}, 1"); a("v_lshlrev_b32 v4, 1, v4"); a("v_xor_b32 v3, v3, v4")
        a(f"v_lshlrev_b32 v2, {13 if part == 0 else 11}, v2"); a("v_lshlrev_b32 v3, 4, v3")
        a("v_add_u32 v40, v2, v3"); a("v_xor_b32 v3, 64, v3"); a("v_add_u32 v41, v2, v3")
        if part == 0:
            load_srd(a, S_WT, 48, 0, DM*4096*2)
            a("s_lshl_b32 s22, s26, 8"); a(f"s_and_b32 s20, s{S_R}, 1"); a("s_lshl_b32 s20, s20, 7"); a("s_add_u32 s22, s22, s20")
            a(f"s_lshl_b32 s20, s{W}, 21"); a("s_add_u32 s22, s22, s20")
        else:
            load_srd(a, S_WT, 50, 0, 4096*DM*2)
            a(f"s_lshl_b32 s22, s{S_X}, 21"); a(f"s_lshl_b32 s20, s{W}, 19"); a("s_add_u32 s22, s22, s20")
            a(f"s_lshl_b32 s20, s{S_R}, 7"); a("s_add_u32 s22, s22, s20")
        for j in range(32):
            odd = (j & 1) if part == 0 else ((j >> 3) & 1)
            a(f"s_add_u32 m0, s27, {1024*j}"); a("s_nop 0")
            a(f"buffer_load_dwordx4 v{40+odd}, {sr(S_WT,4)}, s22 offen lds")
            a(f"s_add_u32 s22, s22, {8*stride}")
            if part == 0 and j == 5 and INIT_ARRIVE:
                a(f"s_waitcnt vmcnt({6+NYOUNG})"); a("s_barrier"); INIT_ARRIVE(a)
        a("s_waitcnt vmcnt(0)")
        for kk in range(4):
            for t in range(4):
                for q in range(4):
                    if part == 0: off = (64*kk + 32*(q >> 1) + 4*(q & 1))*128
                    else: off = (128*(kk >> 1) + 32*(kk & 1) + 16*(q >> 1) + 2*(q & 1))*128
                    a(f"ds_read_b64_tr_b16 {ar(part*128+(kk*4+t)*8+2*q,2)}, v{32+4*part+t} offset:{off}")
            a("s_waitcnt lgkmcnt(0)")
    a("s_barrier")
    idx_reg(a, VI)
    a(f"v_lshlrev_b32 v{VL16}, 4, v{L}")
    a(f"s_lshl_b32 s20, s{W}, 12")
    a(f"v_add_u32 v{VWV}, s20, v{VL16}")
    a(f"v_add_u32 v2, s20, v{VL16}")
    a(f"s_and_b32 s21, s{W}, 1"); a("s_lshl_b32 s22, s21, 11")
    a(f"v_lshrrev_b32 v14, 5, v{L}"); a(f"v_and_b32 v15, 31, v{L}"); a("v_lshlrev_b32 v15, 4, v15")
    a(f"v_lshl_add_u32 v{VRV}, v14, 10, v15"); a(f"v_add_u32 v{VRV}, s22, v{VRV}")
    a(f"v_and_b32 v15, 15, v{L}"); a("v_lshl_add_u32 v15, v14, 4, v15"); a("v_lshlrev_b32 v15, 4, v15")
    a(f"v_bfe_u32 v14, v{L}, 4, 1"); a(f"v_lshl_add_u32 v{VSV}, v14, 3, v15")
    a("s_lshl_b32 s22, s21, 9"); a(f"s_and_b32 s23, s{S_R}, 1"); a("s_lshl_b32 s23, s23, 10"); a("s_add_u32 s22, s22, s23")
    a(f"v_add_u32 v{VSV}, s22, v{VSV}")
    a(f"s_mul_i32 s22, s{W}, {R_PS}"); a(f"s_add_u32 s22, s22, {VR_R}")
    a(f"v_lshrrev_b32 v14, 5, v{L}"); a(f"v_mul_u32_u24 v{VWR}, {R_GS}, v14")
    a(f"v_bfe_u32 v14, v{L}, 3, 1"); a(f"v_mul_u32_u24 v14, {R_HS}, v14"); a(f"v_add_u32 v{VWR}, v{VWR}, v14")
    a(f"v_bfe_u32 v14, v{L}, 1, 1"); a(f"v_mul_u32_u24 v14, {R_CS}, v14"); a(f"v_add_u32 v{VWR}, v{VWR}, v14")
    a(f"v_bfe_u32 v14, v{L}, 4, 1"); a(f"v_lshl_add_u32 v{VWR}, v14, 6, v{VWR}")
    a(f"v_bfe_u32 v14, v{L}, 2, 1"); a(f"v_lshl_add_u32 v{VWR}, v14, 3, v{VWR}")
    a(f"v_and_b32 v14, 1, v{L}"); a(f"v_lshl_add_u32 v{VWR}, v14, 2, v{VWR}")
    a(f"v_add_u32 v{VWR}, s22, v{VWR}")
    a(f"s_mul_i32 s22, s21, {R_HS}"); a(f"s_add_u32 s22, s22, {VR_R}")
    a(f"v_lshrrev_b32 v14, 4, v{L}"); a(f"v_mul_u32_u24 v{VRR}, {R_GS}, v14")
    a(f"v_bfe_u32 v14, v{L}, 3, 1"); a(f"v_mul_u32_u24 v14, {R_CS}, v14"); a(f"v_add_u32 v{VRR}, v{VRR}, v14")
    a(f"v_and_b32 v14, 7, v{L}"); a(f"v_lshl_add_u32 v{VRR}, v14, 4, v{VRR}")
    a(f"v_add_u32 v{VPL2}, {VR_R}, v{VRR}")
    a(f"v_add_u32 v{VRR}, s22, v{VRR}")
    a(f"s_lshl_b32 s22, s{S_R}, 14")
    for k in range(3):
        a(f"s_add_u32 s23, s{S_X}, {k+1}"); a("s_and_b32 s23, s23, 3"); a("s_lshl_b32 s23, s23, 11"); a("s_add_u32 s23, s23, s22")
        a(f"v_add_u32 v{VPL+k}, s23, v{VL16}")
    a("s_lshl_b32 s23, s21, 10"); a("s_add_u32 s22, s22, s23")
    a(f"s_lshl_b32 s23, s{S_X}, 11"); a("s_add_u32 s22, s22, s23"); a(f"v_add_u32 v{VSP}, s22, v{VL16}")
    a(f"s_lshl_b32 s22, s{S_R}, 10"); a(f"v_add_u32 v{VSM}, s22, v{VL16}")
    for i in range(4): a(f"v_mov_b32 v{POIS+i}, -1")
    a(f"v_and_b32 v23, 7, v{L}"); a("v_lshlrev_b32 v23, 9, v23"); a(f"s_lshl_b32 s22, s{W}, 12"); a("v_add_u32 v23, s22, v23")
    if PROF: a("s_memrealtime s[6:7]")
    if INIT_WAIT: INIT_WAIT(a)
    Lc, Lp = a.newlabel("Cal"), a.newlabel("Cal")
    a(f"s_or_b32 s22, s{S_X}, s{S_R}"); a(f"s_or_b32 s22, s22, s{W}"); a("s_cmp_lg_u32 s22, 0"); a(f"s_cbranch_scc1 {Lc}")
    a("s_mov_b32 s34, 0x100")
    for pg in range(NCOPY//2):
        for c in range(2):
            for k in range(4):
                a(f"s_mov_b32 s23, {CH_PART + pg*2*MB + c*8192 + k*16384 + 1024*k}")
                a("s_memtime s[36:37]")
                a("s_waitcnt lgkmcnt(0)")
                a(f"buffer_load_dword v14, off, {sr(S_WS,4)}, s23 sc1")
                a("s_waitcnt vmcnt(0)")
                a("s_memtime s[38:39]")
                a("s_waitcnt lgkmcnt(0)")
                a("s_sub_u32 s36, s38, s36")
                if k == 0: a(f"s_mov_b32 s{20+c}, s36")
                else: a(f"s_min_u32 s{20+c}, s{20+c}, s36")
        a("s_cmp_lt_u32 s21, s20"); a(f"s_cselect_b32 s36, {1 << pg}, 0"); a("s_or_b32 s34, s34, s36")
    a("v_mov_b32 v14, s34"); a(f"s_mov_b32 s23, {FL_NEAR}")
    a(f"buffer_store_dword v14, off, {sr(S_WS,4)}, s23 sc1")
    a.label(Lc)
    a("s_mov_b32 s30, 0"); a(f"s_mov_b32 s23, {FL_NEAR}")
    a.label(Lp)
    a(f"buffer_load_dword v14, off, {sr(S_WS,4)}, s23 sc1")
    a("s_waitcnt vmcnt(0)")
    a("v_readfirstlane_b32 s34, v14")
    a("s_nop 3")
    a("s_cmp_lg_u32 s34, 0")
    Lq = a.newlabel("Cal")
    a(f"s_cbranch_scc1 {Lq}")
    a("s_sleep 8")
    poll_tail(a, Lp, abort)
    a.label(Lq)
    for c in range(NCOPY):
        a(f"s_bfe_u32 s22, s34, {(c//2) | (1 << 16):#x}"); a("s_lshl_b32 s22, s22, 13"); a(f"s_add_u32 s{SCP+c}, s22, {CH_PART + c*MB}")
    a(f"s_lshl_b32 s28, s{S_X}, 4"); a(f"s_add_u32 s28, s28, s{S_R}"); a("s_add_u32 s28, s28, 32")
    a(f"s_mov_b32 s{S_STEP}, 0")
    if PROF: a("s_memrealtime s[94:95]")

    def gemv(sbase, wbase, tag):
        Lp = a.newlabel("VRp")
        def pl(i): a(f"buffer_load_dwordx4 {vr(PIECE+4*i,4)}, v2, {sr(S_WS,4)}, s{sbase} offen offset:{i*1024} sc1")
        def pc(i):
            a(f"v_cmp_eq_u32 vcc, -1, v{PIECE+4*i}")
        for i in range(16): a(f"v_mov_b32 v{ACC+i}, 0")
        if (tag == "R" and RSETS == 0) or (tag == "V" and VLIGHT):
            Lg, Lr = a.newlabel("VRl"), a.newlabel("VRl")
            def sl(k): a(f"buffer_load_dword v{24+k}, v23, {sr(S_WS,4)}, s{sbase} offen sc1")
            for k in range(3):
                sl(k)
                if k < 2: a("s_sleep 1")
            a.label(Lp)
            for k in range(3):
                a("s_waitcnt vmcnt(2)")
                a(f"v_cmp_eq_u32 vcc, -1, v{24+k}")
                a(f"s_cbranch_vccz {Lg}")
                sl(k)
            poll_tail(a, Lp, abort)
            a.label(Lr)
            a("s_nop 7")
            for i in range(16): a(f"v_mov_b32 v{ACC+i}, 0")
            a("s_add_u32 s30, s30, 1"); a(f"s_cmp_ge_u32 s30, {POLL_MAX*(8 if PROF else 1)}"); a(f"s_cbranch_scc1 {abort}")
            a.label(Lg)
            for i in range(4): pl(i)
            for kk in range(4):
                a(f"s_waitcnt vmcnt({3-kk})")
                for t in range(4):
                    a(f"v_smfmac_f32_16x16x64_bf16 {vr(ACC+4*t,4)}, {vr(PIECE+4*kk,4)}, {ar(wbase+(kk*4+t)*8,8)}, v{VI}")
                    if kk == 3 and t == 0: a(f"v_max3_u32 v15, v{PIECE}, v{PIECE+4}, v{PIECE+8}")
                    if kk == 3 and t == 1: a(f"v_max_u32 v15, v15, v{PIECE+12}")
                    if kk == 3 and t == 2: a("v_cmp_eq_u32 vcc, -1, v15")
            a(f"s_cbranch_vccnz {Lr}")
            return
        PB = [PIECE, 148]
        def pp(h, st):
            for i in (2*h, 2*h+1): a(f"buffer_load_dwordx4 {vr(PB[st]+4*i,4)}, v2, {sr(S_WS,4)}, s{sbase} offen offset:{i*1024} sc1")
        def mm(h, st):
            for kk in (2*h, 2*h+1):
                for t in range(4):
                    a(f"v_smfmac_f32_16x16x64_bf16 {vr(ACC+4*t,4)}, {vr(PB[st]+4*kk,4)}, {ar(wbase+(kk*4+t)*8,8)}, v{VI}")
        def ck(h, st):
            a(f"v_max_u32 v15, v{PB[st]+8*h}, v{PB[st]+8*h+4}"); a("v_cmp_eq_u32 vcc, -1, v15")
        nset = 2 if (tag == "R" and RSETS == 2) else 1
        slots = [(h, st) for st in range(nset) for h in range(2)]
        Lf = {x: a.newlabel("VRf") for x in slots}; Le = a.newlabel("VRe")
        for n, (h, st) in enumerate(slots):
            pp(h, st)
            if n < len(slots)-1: a(f"s_sleep {2 if nset == 1 else 1}")
        a.label(Lp)
        for h, st in slots:
            a(f"s_waitcnt vmcnt({2*len(slots)-2})")
            ck(h, st)
            a(f"s_cbranch_vccz {Lf[(h, st)]}")
            pp(h, st)
        poll_tail(a, Lp, abort)
        for n, (h, st) in enumerate(slots):
            o = 1-h
            a.label(Lf[(h, st)])
            mm(h, st)
            rest = [slots[(n+k) % len(slots)] for k in range(1, len(slots))]
            mine = [(k, x) for k, x in enumerate(rest) if x[0] == o]
            Lg = {x[1]: a.newlabel("VRg") for _, x in mine}
            for k, x in mine:
                a(f"s_waitcnt vmcnt({2*(len(rest)-1-k) + 2*sum(1 for k2, _ in mine if k2 < k)})")
                ck(*x)
                a(f"s_cbranch_vccz {Lg[x[1]]}")
                pp(*x)
            Lq = a.newlabel("VRq")
            a.label(Lq)
            for k, x in mine:
                a(f"s_waitcnt vmcnt({2*len(mine)-2})")
                ck(*x)
                a(f"s_cbranch_vccz {Lg[x[1]]}")
                pp(*x)
            poll_tail(a, Lq, abort)
            for k, x in mine:
                a.label(Lg[x[1]])
                mm(*x)
                a(f"s_branch {Le}")
        a.label(Le)
    def sum8():
        for i in range(1, 8):
            a(f"s_waitcnt lgkmcnt({7-i})")
            a(f"v_pk_add_f32 {vr(RD,2)}, {vr(RD,2)}, {vr(RD+4*i,2)}"); a(f"v_pk_add_f32 {vr(RD+2,2)}, {vr(RD+2,2)}, {vr(RD+4*i+2,2)}")

    a.label("L_VR_step")
    a("s_mov_b32 s30, 0")
    a(f"s_and_b32 s35, s{S_STEP}, 3"); a("s_lshl_b32 s39, s35, 16")
    a(f"s_lshl_b32 s21, s{S_X}, 14"); a("s_add_u32 s25, s39, s21")
    a(f"s_add_u32 s20, s25, {CH_MEM}")
    gemv(20, 0, "V")
    ts(a, 0)
    a("s_lshl_b32 s21, s26, 11"); a("s_add_u32 s20, s39, s21"); a(f"s_add_u32 s20, s20, {CH_VM}"); a("s_nop 0")
    a(f"s_lshl_b32 s21, s{S_STEP}, 5"); a("s_add_u32 s21, s21, s26"); a("s_lshl_b32 s21, s21, 12"); a(f"s_add_u32 s21, s21, {KVM_OFF+2048}")
    a(f"ds_write_b128 v{VWV}, {vr(ACC,4)}")
    for t in range(1, 4): a(f"ds_write_b128 v{VWV}, {vr(ACC+4*t,4)} offset:{1024*t}")
    a("s_waitcnt lgkmcnt(0)")
    a("s_barrier")
    for i in range(8): a(f"ds_read_b128 {vr(RD+4*i,4)}, v{VRV} offset:{(i>>1)*4096+(i&1)*512}")
    sum8()
    a(f"v_cvt_pk_bf16_f32 v{RD}, v{RD}, v{RD+1}"); a(f"v_cvt_pk_bf16_f32 v{RD+1}, v{RD+2}, v{RD+3}")
    Lk, Le = a.newlabel("VRk"), a.newlabel("VRe")
    a(f"s_cmp_ge_u32 s{W}, 2"); a(f"s_cbranch_scc1 {Lk}")
    local_store(a, f"buffer_store_dwordx2 {vr(RD,2)}, v{VSV}, {sr(S_WS,4)}, s20 offen")
    a(f"s_branch {Le}")
    a.label(Lk)
    a(f"buffer_store_dwordx2 {vr(RD,2)}, v{VSV}, {sr(S_WS,4)}, s21 offen sc1")
    a.label(Le)
    ts(a, 1)
    a(f"s_cmp_eq_u32 s{S_STEP}, {NSTEP-1}")
    a("s_cbranch_scc1 L_VR_last")
    a(f"s_add_u32 s22, s35, 2"); a("s_and_b32 s22, s22, 3"); a("s_lshl_b32 s22, s22, 18")
    Lq, Lq2 = a.newlabel("VRq"), a.newlabel("VRq")
    a(f"s_cmp_lt_u32 s{S_STEP}, 2"); a(f"s_cbranch_scc1 {Lq}")
    a(f"s_cmp_ge_u32 s{W}, 2"); a(f"s_cbranch_scc1 {Lq2}")
    for c in range(NCOPY):
        if c == NCOPY//2:
            a(f"s_branch {Lq}"); a.label(Lq2)
        a(f"s_add_u32 s23, s22, s{SCP+c}")
        a(f"buffer_store_dwordx4 {vr(POIS,4)}, v{VSP}, {sr(S_WS,4)}, s23 offen sc1")
    a.label(Lq)
    Lq = a.newlabel("VRq")
    a(f"s_cmp_eq_u32 s{W}, 3"); a(f"s_cbranch_scc1 {Lq}")
    a(f"s_cmp_eq_u32 s{S_STEP}, 0"); a(f"s_cbranch_scc1 {Lq}")
    Lq2 = a.newlabel("VRq")
    a(f"s_cmp_eq_u32 s{W}, 2"); a(f"s_cbranch_scc1 {Lq2}")
    a(f"s_sub_u32 s22, s20, {CH_VM}"); a(f"s_add_u32 s22, s22, {3*65536}"); a(f"s_and_b32 s22, s22, {4*65536-1}"); a(f"s_add_u32 s22, s22, {CH_VM}")
    local_store(a, f"buffer_store_dwordx2 {vr(POIS,2)}, v{VSV}, {sr(S_WS,4)}, s22 offen")
    a(f"s_branch {Lq}")
    a.label(Lq2)
    a(f"s_add_u32 s22, s25, {3*65536}"); a(f"s_and_b32 s22, s22, {4*65536-1}"); a(f"s_add_u32 s22, s22, {CH_MEM}")
    local_store(a, f"buffer_store_dwordx4 {vr(POIS,4)}, v{VSM}, {sr(S_WS,4)}, s22 offen")
    a.label(Lq)
    if RS: a(f"s_sleep {RS}")
    a(f"s_add_u32 s20, s25, {CH_OX}")
    gemv(20, 128, "R")
    ts(a, 2)
    a(f"s_lshl_b32 s20, s35, 18")
    for c in range(NCOPY): a(f"s_add_u32 s{84+c}, s20, s{SCP+c}")
    a("s_nop 0")
    for p in range(2):
        for r in range(4): a(f"v_permlane32_swap_b32 v{ACC+8*p+r}, v{ACC+8*p+4+r}")
        for r in range(0, 4, 2): a(f"v_pk_add_f32 {vr(ACC+8*p+r,2)}, {vr(ACC+8*p+r,2)}, {vr(ACC+8*p+4+r,2)}")
        for r in range(4): a(f"ds_write_b32 v{VWR}, v{ACC+8*p+r} offset:{2*p*R_GS+r*16}")
    a(f"s_add_u32 s22, s25, {65536}"); a(f"s_and_b32 s22, s22, {4*65536-1}"); a(f"s_add_u32 s22, s22, {CH_MEM}")
    Lx = a.newlabel("Xe"); Lpo = a.newlabel("Xpo")
    a(f"s_cmp_ge_u32 s{W}, 2")
    a("s_waitcnt lgkmcnt(0)")
    a("s_barrier")
    a(f"s_cbranch_scc1 {Lpo}")
    for i in range(4): a(f"ds_read_b128 {vr(RD+4*i,4)}, v{VRR} offset:{i*R_PS}")
    a("s_waitcnt lgkmcnt(2)")
    a(f"v_pk_add_f32 {vr(RD,2)}, {vr(RD,2)}, {vr(RD+4,2)}"); a(f"v_pk_add_f32 {vr(RD+2,2)}, {vr(RD+2,2)}, {vr(RD+6,2)}")
    a("s_waitcnt lgkmcnt(0)")
    a(f"v_pk_add_f32 {vr(RD+8,2)}, {vr(RD+8,2)}, {vr(RD+12,2)}"); a(f"v_pk_add_f32 {vr(RD+10,2)}, {vr(RD+10,2)}, {vr(RD+14,2)}")
    a(f"v_pk_add_f32 {vr(RD,2)}, {vr(RD,2)}, {vr(RD+8,2)}"); a(f"v_pk_add_f32 {vr(RD+2,2)}, {vr(RD+2,2)}, {vr(RD+10,2)}")
    for c in range(NCOPY):
        a(f"buffer_store_dwordx4 {vr(RD,4)}, v{VSP}, {sr(S_WS,4)}, s{84+c} offen sc1")
        if c == 0: ts(a, 3); rts(a, 0)
    if VS: a(f"s_sleep {VS}")
    a(f"s_branch {Lx}")
    a.label(Lpo)
    L3 = a.newlabel("X3")
    a(f"s_cmp_lg_u32 s{W}, 3"); a(f"s_cbranch_scc1 {L3}")
    if step_done: step_done(a, "V3")
    if VS: a(f"s_sleep {VS+3}")
    a(f"s_branch {Lx}")
    a.label(L3)
    XS = lambda c: 100 + 24*c
    def xl(c):
        for k in range(3):
            for h in range(2): a(f"buffer_load_dwordx4 {vr(XS(c)+8*k+4*h,4)}, v{VPL+k}, {sr(S_WS,4)}, s{84+c} offen offset:{h*1024} sc1")
    for h in range(2):
        for i in range(4): a(f"ds_read_b128 {vr(RD+16*h+4*i,4)}, v{VPL2} offset:{i*R_PS+h*R_HS}")
    for h in range(2):
        b = RD+16*h
        a(f"s_waitcnt lgkmcnt({4-4*h})")
        for k in (0, 2): a(f"v_pk_add_f32 {vr(b+k,2)}, {vr(b+k,2)}, {vr(b+4+k,2)}")
        for k in (0, 2): a(f"v_pk_add_f32 {vr(b+8+k,2)}, {vr(b+8+k,2)}, {vr(b+12+k,2)}")
        for k in (0, 2): a(f"v_pk_add_f32 {vr(RD+4*h+k,2)}, {vr(b+k,2)}, {vr(b+8+k,2)}")
    ts(a, 3); rts(a, 0)
    if XSLEEP: a(f"s_sleep {XSLEEP}")
    Lg = [a.newlabel("Xg") for _ in range(NCOPY)]; Lj = a.newlabel("Xj"); Lp = a.newlabel("Xp")
    def xc(c):
        b = XS(c)
        a(f"v_max3_u32 v15, v{b}, v{b+4}, v{b+8}")
        a(f"v_max3_u32 v15, v15, v{b+12}, v{b+16}")
        a(f"v_max_u32 v15, v15, v{b+20}")
        a("v_cmp_eq_u32 vcc, -1, v15")
        a(f"s_cbranch_vccz {Lg[c]}")
    for c in range(XAHEAD):
        xl(c)
        if c < XAHEAD-1: a(f"s_sleep {XGAP}")
    for c in range(NCOPY):
        a(f"s_waitcnt vmcnt({6*(min(c+XAHEAD, NCOPY)-1-c)})")
        xc(c)
        if c+XAHEAD < NCOPY: xl(c+XAHEAD)
        if PROF: a("s_add_u32 s30, s30, 0x10000")
    a.label(Lp)
    xl(NCOPY-1)
    a("s_waitcnt vmcnt(0)")
    xc(NCOPY-1)
    poll_tail(a, Lp, abort)
    for c in range(NCOPY):
        a.label(Lg[c])
        b = XS(c)
        for k in range(0, 8, 2): a(f"v_pk_add_f32 {vr(RD+k,2)}, {vr(RD+k,2)}, {vr(b+8+k,2)}")
        for k in range(0, 8, 2): a(f"v_pk_add_f32 {vr(RD+8+k,2)}, {vr(b+k,2)}, {vr(b+16+k,2)}")
        if c < NCOPY-1: a(f"s_branch {Lj}")
    a.label(Lj)
    for k in range(0, 8, 2): a(f"v_pk_add_f32 {vr(RD+k,2)}, {vr(RD+k,2)}, {vr(RD+8+k,2)}")
    for k in range(4): a(f"v_cvt_pk_bf16_f32 v{RD+k}, v{RD+2*k}, v{RD+2*k+1}")
    local_store(a, f"buffer_store_dwordx4 {vr(RD,4)}, v{VSM}, {sr(S_WS,4)}, s22 offen")
    a.label(Lx)
    ts(a, 4); rts(a, 1)
    ts_store(a, 28, 60)
    a(f"s_add_u32 s{S_STEP}, s{S_STEP}, 1")
    a("s_branch L_VR_step")
    a.label("L_VR_last")
    if step_done: step_done(a, "Vlast")

NCH = 24
def assign_roles(a, abort, lds_scratch):
    a("s_getreg_b32 s31, hwreg(HW_REG_XCC_ID)"); a("s_and_b32 s31, s31, 7")
    Lw, Lp, Lg, Lt, Lt2 = [a.newlabel("R") for _ in range(5)]
    L0 = a.newlabel("R")
    a(f"s_cmp_eq_u32 s{S_WAVE}, 0"); a(f"s_cbranch_scc1 {L0}")
    if IDLE: IDLE(a)
    a(f"s_branch {Lw}")
    a.label(L0)
    load_srd(a, 20, 64, 0, 256)
    a("s_mov_b32 s30, 0")
    a("s_cmp_lg_u32 s2, 0"); a(f"s_cbranch_scc1 {Lt}")
    a("s_memrealtime s[24:25]"); a("s_waitcnt lgkmcnt(0)")
    a("s_lshl_b32 s24, s24, 3"); a("s_bitset1_b32 s24, 31")
    a("v_mov_b32 v2, s24")
    a("buffer_store_dword v2, off, s[20:23], 0 sc1")
    a(f"s_branch {Lt2}")
    a.label(Lt)
    a("buffer_load_dword v60, off, s[20:23], 0 sc1")
    a("s_waitcnt vmcnt(0)")
    a("v_readfirstlane_b32 s24, v60")
    a("s_nop 3")
    a("s_cmp_lg_u32 s24, 0"); a(f"s_cbranch_scc1 {Lt2}")
    a("s_sleep 2")
    poll_tail(a, Lt, abort)
    a.label(Lt2)
    a("s_mov_b32 s101, s24")
    a("s_or_b32 s25, s24, s31"); a("v_mov_b32 v2, s25"); a("s_lshl_b32 s26, s2, 2"); a(f"s_add_u32 s26, s26, {TBL_OFF}")
    a("s_mov_b64 exec, 1")
    a(f"buffer_store_dword v2, off, {sr(S_WS,4)}, s26 sc1")
    a("s_mov_b64 exec, -1")
    a(f"v_lshlrev_b32 v3, 2, v{V_LANE}"); a(f"s_mov_b32 s26, {TBL_OFF}"); a("s_mov_b32 s30, 0")
    Lf, Lf2 = a.newlabel("R"), a.newlabel("R")
    a("s_cmp_eq_u32 s2, 0"); a(f"s_cbranch_scc1 {Lp}")
    a("s_mov_b32 s25, 128")
    a.label(Lf)
    a("s_sleep 4")
    a("buffer_load_dword v5, off, s[20:23], s25 sc1")
    a("s_waitcnt vmcnt(0)")
    a("v_cmp_eq_u32 vcc, 0, v5")
    a(f"s_cbranch_vccz {Lp}")
    poll_tail(a, Lf, abort)
    a.label(Lp)
    for k in range(4): a(f"buffer_load_dword v{8+k}, v3, {sr(S_WS,4)}, s26 offen offset:{256*k} sc1")
    a("s_waitcnt vmcnt(0)")
    for k in range(4): a(f"v_xor_b32 v{8+k}, s24, v{8+k}")
    a("v_or_b32 v5, v8, v9"); a("v_or3_b32 v5, v5, v10, v11")
    a("v_cmp_lt_u32 vcc, 7, v5")
    a(f"s_cbranch_vccz {Lg}")
    a("s_sleep 2")
    poll_tail(a, Lp, abort)
    a.label(Lg)
    a("s_cmp_lg_u32 s2, 0"); a(f"s_cbranch_scc1 {Lf2}")
    a("v_mov_b32 v5, 1"); a("s_mov_b32 s25, 128")
    a("buffer_store_dword v5, off, s[20:23], s25 sc1")
    a.label(Lf2)
    a("s_mov_b32 s32, 0")
    for x in range(8):
        a("s_mov_b32 s25, 0")
        for k in range(4):
            a(f"v_cmp_eq_u32 vcc, {x}, v{8+k}"); a("s_nop 0"); a("s_bcnt1_i32_b64 s27, vcc"); a("s_add_u32 s25, s25, s27")
        a(f"v_writelane_b32 v5, s25, {x}")
    for k in range(4):
        a(f"v_add_u32 v2, {64*k}, v{V_LANE}")
        a(f"v_cmp_eq_u32 vcc, s31, v{8+k}"); a("v_cmp_gt_u32 s[26:27], s2, v2"); a("s_nop 0")
        a("s_and_b64 vcc, vcc, s[26:27]"); a("s_bcnt1_i32_b64 s27, vcc"); a("s_add_u32 s32, s32, s27")
    a("v_writelane_b32 v5, s32, 8")
    a(f"v_mov_b32 v4, {lds_scratch}")
    a(f"v_lshl_add_u32 v3, v{V_LANE}, 2, v4")
    a("s_mov_b64 exec, 0x1ff")
    a("ds_write_b32 v3, v5")
    a("s_mov_b64 exec, -1")
    a("s_waitcnt lgkmcnt(0)")
    a.label(Lw)
    a("s_barrier")
    a("s_getreg_b32 s31, hwreg(HW_REG_XCC_ID)"); a("s_and_b32 s31, s31, 7")
    a(f"v_mov_b32 v12, {lds_scratch}")
    a(f"v_and_b32 v3, 15, v{V_LANE}"); a("v_lshl_add_u32 v3, v3, 2, v12")
    a("ds_read_b32 v13, v3")
    a("s_waitcnt lgkmcnt(0)")
    a("v_readlane_b32 s32, v13, 8")
    a("s_mov_b32 s33, 0"); a("s_mov_b32 s25, 256")
    for i in range(8):
        a(f"v_readlane_b32 s24, v13, {i}"); a("s_nop 0")
        a("s_min_u32 s25, s25, s24")
        a(f"s_cmp_gt_u32 s31, {i}"); a("s_cselect_b32 s24, s24, 0"); a("s_add_u32 s33, s33, s24")
    a("s_add_u32 s33, s33, s32")
    a("s_barrier")
    Ls, Le = a.newlabel("Rs"), a.newlabel("Re")
    if FORCE_FALLBACK: a("s_mov_b32 s25, 0")
    a("s_cmp_lt_u32 s25, 32"); a(f"s_cbranch_scc1 {Ls}")
    a(f"s_mov_b32 s{S_MODE}, 0"); a(f"s_mov_b32 s{S_X}, s31"); a(f"s_mov_b32 s{S_R}, s32")
    a("s_cmp_lt_u32 s31, 4"); a("s_cselect_b32 s29, 1, 0")
    a(f"s_cmp_lt_u32 s32, {NCH}"); a("s_cselect_b32 s29, s29, 0")
    a(f"s_branch {Le}")
    a.label(Ls)
    a(f"s_mov_b32 s{S_MODE}, 1")
    a(f"s_mul_i32 s{S_X}, s33, 2731"); a(f"s_lshr_b32 s{S_X}, s{S_X}, 16")
    a(f"s_mul_i32 s24, s{S_X}, {NCH}"); a(f"s_sub_u32 s{S_R}, s33, s24")
    a(f"s_cmp_lt_u32 s33, {4*NCH}"); a("s_cselect_b32 s29, 1, 0")
    a.label(Le)
```

```python
from common import *
from ln import *
from gemm import *
from att import att_item
import chain, gemm
from chain import role_A, role_VR, assign_roles, poll_tail, S_WS

LDS_SCR = 156*1024
S_PH, S_CTR, S_B, S_ITEM = 96, 97, 98, 99
S_T0 = 83
S_EPI, S_EP0, S_EP1, S_RET = 82, 78, 77, 4
S_PRE, S_POFF, S_PVAL = 39, 68, 69
S_FL = 92
PROFW = False
TSW_OFF = 216*MB

BATCH = {"S0": [("KS",0,0,4)], "S1": [("KS",0,4,4)], "S2": [("KS",0,8,4)], "S3": [("KS",0,12,4)], "K1": [("K1",0,0,4)], "KV1a": [("KV",1,0,4)], "KV1b": [("KV",1,4,4)], "KV2a": [("KV",2,0,4)], "KV2b": [("KV",2,4,4)],
         "KV3a": [("KV",3,0,4)], "KV3b": [("KV",3,4,4)], "Q0": [("Q",0,0,4)], "Q1": [("Q",1,0,4)], "Q2": [("Q",2,0,4)], "Q3": [("Q",3,0,4)],
         "G1": [("GU",0,0,4)], "G2": [("GU",0,4,3),("GU",1,0,1)], "G3": [("GU",1,1,4)], "G4": [("GU",1,5,2),("GU",2,0,2)],
         "G5": [("GU",2,2,4)], "G6": [("GU",2,6,1),("GU",3,0,3)], "G7": [("GU",3,3,4)],
         "KVa": [("K4",2,0,4)], "KVb": [("K4",2,4,4)], "KVc": [("K4",2,8,4)], "KVd": [("K4",2,12,4)],
         "Ga1": [("G4",0,0,4)], "Ga2": [("G4",0,4,4)], "Ga3": [("G4",0,8,4)], "Gb1": [("G4",4,0,4)], "Gb2": [("G4",4,4,4)], "Gb3": [("G4",4,8,4)],
         "Gm": [("G8",0,24,4)],
         "DNa": [("DN",0,0,4)], "DNb": [("DN",0,4,4)], "W2x": [("W2",0,0,4)], "W1x": [("W1",0,8,4)], "WR": [("WR",0,0,4)], "WRa": [("WR",0,0,2),("W1",0,8,2)], "WRb": [("WR",0,2,2),("W1",0,10,2)], "": [("QA",0,0,4)]}
LISTS = [['KVa', 'Gm', 'Ga3', 'KV3a', 'W2x'], ['KVd', 'Ga2', 'Gb1', 'Q2', 'WR'], ['KVb', 'Gb2', 'Q1', 'DNb', 'W1x'], ['KVc', 'Ga1', 'Gb3', 'KV3b', 'DNa']]
SMALL = ['K1', 'Q0', 'Q3']
def q1_list():
    out = []
    LL = [[f'S{i}'] + l for i, l in enumerate(LISTS)]
    for r in range(max(map(len, LL))):
        for l in LL: out += BATCH[l[r] if r < len(l) else ""]
    for b in SMALL: out += BATCH[b]
    return out
NBLK = 12
WRPOS = 44
NQA = 32 + NBLK*16 + (64-4*NBLK)*8
NROT = 4

def load_ptrs(a):
    a("s_load_dwordx8 s[40:47], s[0:1], 0")
    a("s_load_dwordx4 s[48:51], s[0:1], 32")
    a("s_load_dwordx8 s[56:63], s[0:1], 64")
    a("s_load_dwordx4 s[64:67], s[0:1], 96")

def atomic_ret(a, vdst, s_off, val):
    a(f"v_mov_b32 v{vdst}, {val}")
    a("s_mov_b64 exec, 1")
    a(f"buffer_atomic_add v{vdst}, off, {sr(S_FL,4)}, s{s_off} sc0 sc1")
    a("s_mov_b64 exec, -1")
    a("s_waitcnt vmcnt(0)")

def signal(a, s_off, val, srd=S_FL, vtmp=4):
    a(f"v_mov_b32 v{vtmp}, {val}")
    a("s_mov_b64 exec, 1")
    a(f"buffer_atomic_add v{vtmp}, off, {sr(srd,4)}, s{s_off} sc1")
    a("s_mov_b64 exec, -1")

def wait_flags(a, voff_setup, s_base, mask, target, abort, nlanes, vd=4, vo=5, sleep=8):
    Lw, Lp = a.newlabel("Wf"), a.newlabel("Wp")
    a(f"s_cmp_lg_u32 s{S_WAVE}, 0"); a(f"s_cbranch_scc1 {Lw}")
    voff_setup()
    a("s_mov_b32 s30, 0"); a(f"s_mov_b32 s21, {target:#x}")
    a.label(Lp)
    a(f"buffer_load_dword v{vd}, v{vo}, {sr(S_FL,4)}, s{s_base} offen sc1")
    a("s_waitcnt vmcnt(0)")
    if mask != 0xffffffff: a(f"v_and_b32 v{vd}, {mask:#x}, v{vd}")
    a(f"v_cmp_ne_u32 vcc, s21, v{vd}")
    a(f"s_cbranch_vccz {Lw}")
    if sleep: a(f"s_sleep {sleep}")
    poll_tail(a, Lp, abort)
    a.label(Lw)
    a("s_barrier")

def finish(a, s_off, val):
    a("s_waitcnt vmcnt(0)")
    a("s_barrier")
    L = a.newlabel("Fin")
    a(f"s_cmp_lg_u32 s{S_WAVE}, 0"); a(f"s_cbranch_scc1 {L}")
    signal(a, s_off, val)
    a.label(L)

def wstamp(a, i):
    if PROFW: a(f"s_memrealtime s[{70+2*i}:{71+2*i}]")

def xstamp(a, i):
    r = [24,6,52,54,80][i]
    if PROFW: a(f"s_memrealtime s[{r}:{r+1}]")

def wor_item(a, END):
    L = V_LANE; W = S_WAVE
    load_srd(a, S_SRDW, 50, 0, 4096*DM*2)
    a("s_and_b32 s36, s37, 1"); a("s_lshr_b32 s34, s37, 1")
    a(f"v_lshrrev_b32 v2, 5, v{L}"); a("v_lshlrev_b32 v2, 4, v2")
    a(f"v_bfe_u32 v3, v{L}, 3, 2"); a("v_add_u32 v2, v2, v3"); a("v_lshlrev_b32 v2, 11, v2")
    a(f"v_and_b32 v3, 7, v{L}"); a("v_lshl_add_u32 v2, v3, 4, v2")
    a(f"s_lshl_b32 s27, s{W}, 15")
    a(f"v_lshrrev_b32 v4, 5, v{L}"); a(f"v_bfe_u32 v5, v{L}, 2, 2"); a("v_lshl_add_u32 v4, v4, 3, v5"); a("v_lshlrev_b32 v4, 7, v4")
    a(f"v_bfe_u32 v5, v{L}, 4, 1"); a("v_lshl_add_u32 v4, v5, 5, v4"); a(f"v_and_b32 v3, 3, v{L}"); a("v_lshl_add_u32 v4, v3, 3, v4"); a("v_add_u32 v4, s27, v4")
    a(f"s_lshl_b32 s22, s{W}, 20"); a("s_lshl_b32 s23, s36, 22"); a("s_add_u32 s22, s22, s23"); a("s_lshl_b32 s23, s34, 7"); a("s_add_u32 s22, s22, s23")
    for rnd_ in range(2):
        for j in range(32):
            a(f"s_add_u32 m0, s27, {1024*j}"); a("s_nop 0")
            a(f"buffer_load_dwordx4 v2, {sr(S_SRDW,4)}, s22 offen lds")
            a(f"s_add_u32 s22, s22, {(4 if (j & 3) < 3 else 20)*2048}")
        a("s_waitcnt vmcnt(0)")
        for ks in range(16):
            for t in range(2):
                for q in range(2):
                    a(f"ds_read_b64_tr_b16 {ar(((rnd_*16+ks)*2+t)*4+2*q,2)}, v4 offset:{(16*ks+4*q)*128+64*t}")
            if ks % 2 == 1: a("s_waitcnt lgkmcnt(0)")
    a(f"s_mov_b32 s32, {FL_EX}")
    wait_flags(a, lambda: a("v_mov_b32 v15, 0"), 32, 0xffffffff, 32, END, 1, 14, 15)
    load_srd(a, S_SRDX, 66, OL_OFF, 16*MB)
    load_srd(a, 84, 62, 0, S*DM*2)
    load_srd(a, S_SRDW, 40, 0, S*DM*2)
    VX0, VO, VB, VW, VR, VE, VP = 64, 3, 6, 7, 8, 10, 11
    a("s_lshl_b32 s37, s34, 1"); a("s_add_u32 s37, s37, s36")
    a(f"v_bfe_u32 v10, v{L}, 2, 3"); a(f"v_and_b32 v11, 3, v{L}"); a(f"v_lshrrev_b32 v12, 5, v{L}")
    a(f"v_and_b32 v13, 31, v{L}"); a(f"v_lshlrev_b32 v{VO}, 11, v13"); a(f"v_lshl_add_u32 v{VO}, v12, 3, v{VO}")
    a("s_lshl_b32 s22, s37, 6"); a(f"s_lshl_b32 s23, s{W}, 4"); a("s_add_u32 s22, s22, s23"); a(f"v_add_u32 v{VO}, s22, v{VO}")
    a(f"v_lshlrev_b32 v{VB}, 13, v10"); a(f"v_lshl_add_u32 v{VB}, v11, 5, v{VB}"); a(f"v_lshl_add_u32 v{VB}, v12, 3, v{VB}")
    a("s_lshl_b32 s22, s37, 8"); a(f"s_lshr_b32 s23, s{W}, 1"); a("s_lshl_b32 s23, s23, 7"); a("s_add_u32 s22, s22, s23")
    a(f"s_and_b32 s23, s{W}, 1"); a("s_lshl_b32 s23, s23, 4"); a("s_add_u32 s22, s22, s23"); a(f"s_add_u32 s22, s22, {BP_OFF}")
    a(f"v_add_u32 v{VB}, s22, v{VB}")
    a(f"v_lshlrev_b32 v13, 4, v{L}")
    a(f"s_lshl_b32 s22, s{W}, 15"); a("s_lshl_b32 s23, s36, 17"); a("s_add_u32 s22, s22, s23"); a(f"v_add_u32 v{VX0}, s22, v13")
    for i in range(1, 8): a(f"v_add_u32 v{VX0+i}, {4096*i}, v{VX0}")
    a(f"s_lshl_b32 s22, s{W}, 13"); a(f"v_add_u32 v{VW}, s22, v13")
    a(f"s_lshl_b32 s22, s{W}, 10"); a("s_lshl_b32 s23, s36, 12"); a("s_add_u32 s23, s23, s22"); a(f"v_add_u32 v{VR}, s23, v13")
    a("s_lshl_b32 s23, s37, 12"); a("s_add_u32 s22, s22, s23"); a(f"s_add_u32 s22, s22, {EX_OFF - 4*NBLK*131072}")
    a(f"v_add_u32 v{VE}, s22, v13"); a(f"v_xor_b32 v{VP}, 4096, v{VE}")
    a(f"s_mov_b32 s38, {4*NBLK}"); a("s_mov_b32 s35, 0"); a("s_mov_b32 s90, 0")
    a(f"v_mov_b32 v9, {LDS_SCR+64}")
    wstamp(a, 1)
    ACC = 16; XR = 128; RD = 80
    a.label("L_WORseg")
    Ld = a.newlabel("Wd")
    a("s_and_b32 s32, s38, 7"); a(f"s_cmp_eq_u32 s38, {4*NBLK}"); a("s_cselect_b32 s32, 0, s32"); a("s_cmp_lg_u32 s32, 0"); a(f"s_cbranch_scc1 {Ld}")
    a("s_lshr_b32 s32, s38, 3"); a("s_lshl_b32 s32, s32, 3"); a("s_lshr_b32 s33, s37, 2"); a("s_add_u32 s32, s32, s33")
    a("s_lshl_b32 s32, s32, 6"); a(f"s_add_u32 s32, s32, {FL_DN}")
    wait_flags(a, lambda: a("v_mov_b32 v15, 0"), 32, 0xffffffff, 1, END, 1, 14, 15)
    a.label(Ld)
    a("s_lshl_b32 s33, s38, 16")
    a(f"s_sub_u32 s32, s38, {4*NBLK}"); a("s_lshl_b32 s32, s32, 7"); a("s_lshl_b32 s34, s36, 6"); a("s_add_u32 s32, s32, s34"); a(f"s_add_u32 s32, s32, {FL_ATS}")
    a("s_lshl_b32 s34, s38, 18"); a("s_lshl_b32 s26, s38, 17")
    Lr = a.newlabel("Wr")
    a("s_cmp_eq_u32 s35, 16"); a(f"s_cbranch_scc1 {Lr}")
    wait_flags(a, lambda: a("v_mov_b32 v15, 0"), 32, 0xffffffff, 16, END, 1, 14, 15, 1)
    a.label(Lr)
    a("s_add_u32 s32, s32, 128")
    wstamp(a, 2)
    a(f"s_bfe_u32 s22, s37, {1 | (2 << 16):#x}")
    for e in range(1, NROT): a(f"s_cmp_eq_u32 s22, {e}"); a(f"s_cbranch_scc1 L_WORe{e}")
    for e in range(NROT):
        a.label(f"L_WORe{e}")
        order = [(32//NROT*e + i) % 32 for i in range(32)]
        WN = 8
        lds = [f"buffer_load_dwordx4 {vr(XR+ks*4,4)}, v{VX0+ks//4}, {sr(S_SRDX,4)}, s34 offen offset:{(ks%4)*1024} sc1" for ks in order]
        lds += [f"buffer_load_dwordx2 v[48:49], v{VO}, {sr(S_SRDW,4)}, s33 offen", f"buffer_load_dwordx2 v[50:51], v{VB}, {sr(S_FL,4)}, s33 offen sc1",
                f"buffer_load_dwordx4 v[116:119], v{VP}, {sr(S_FL,4)}, s26 offen sc1",
                f"buffer_load_dword v14, off, {sr(S_FL,4)}, s32 sc1"]
        for x in lds[:WN]: a(x)
        n = WN
        for i, ks in enumerate(order):
            a(f"s_waitcnt vmcnt({n-1-i})")
            if i == 0: xstamp(a, 0)
            for t in range(2):
                a(f"v_mfma_f32_32x32x16_bf16 {vr(ACC+16*t,16)}, {ar((ks*2+t)*4,4)}, {vr(XR+ks*4,4)}, {'0' if i == 0 else vr(ACC+16*t,16)}")
                if n < len(lds) and (t == 0 or i < 8): a(lds[n]); n += 1
        if e < NROT-1: a("s_branch L_WORj")
    a.label("L_WORj")
    xstamp(a, 1)
    a("s_nop 10")
    for q in range(8): a(f"ds_write_b128 v{VW}, {vr(ACC+4*q,4)} offset:{1024*q}")
    a("s_waitcnt vmcnt(0)")
    xstamp(a, 2)
    Lz = a.newlabel("Wz")
    a(f"s_cmp_lg_u32 s{W}, 0"); a(f"s_cbranch_scc1 {Lz}")
    a("ds_write_b32 v9, v14")
    a.label(Lz)
    a(f"v_xor_b32 v13, 4096, v{VR}")
    a("s_waitcnt lgkmcnt(0)")
    a("s_barrier")
    for i in range(4): a(f"ds_read_b128 {vr(RD+16+4*i,4)}, v13 offset:{8192*i}")
    for i in range(4): a(f"ds_read_b128 {vr(RD+4*i,4)}, v{VR} offset:{8192*i}")
    a("ds_read_b32 v14, v9")
    a(f"v_xor_b32 v{VW}, 32768, v{VW}"); a(f"v_xor_b32 v{VR}, 32768, v{VR}"); a("v_xor_b32 v9, 4, v9")
    def sum4(b):
        for k in (0, 2):
            a(f"v_pk_add_f32 {vr(b+k,2)}, {vr(b+k,2)}, {vr(b+4+k,2)}"); a(f"v_pk_add_f32 {vr(b+8+k,2)}, {vr(b+8+k,2)}, {vr(b+12+k,2)}")
        for k in (0, 2): a(f"v_pk_add_f32 {vr(b+k,2)}, {vr(b+k,2)}, {vr(b+8+k,2)}")
    a("s_waitcnt lgkmcnt(5)")
    sum4(RD+16)
    xstamp(a, 3)
    L1, L2 = a.newlabel("We"), a.newlabel("We")
    a(f"s_cmp_eq_u32 s{S_B}, 4"); a(f"s_cbranch_scc1 {L1}")
    a(f"buffer_store_dwordx4 {vr(RD+16,4)}, v{VE}, {sr(S_FL,4)}, s26 offen")
    a(f"s_branch {L2}")
    a.label(L1)
    a(f"buffer_store_dwordx4 {vr(RD+16,4)}, v{VE}, {sr(S_FL,4)}, s26 offen sc1")
    a.label(L2)
    a("s_waitcnt lgkmcnt(0)")
    sum4(RD)
    a("v_readfirstlane_b32 s35, v14")
    PO = 120
    def finish_seg(nap):
        a(f"v_lshlrev_b32 v52, 16, v{PO+4}"); a(f"v_and_b32 v53, 0xffff0000, v{PO+4}"); a(f"v_lshlrev_b32 v54, 16, v{PO+5}"); a(f"v_and_b32 v55, 0xffff0000, v{PO+5}")
        a(f"v_lshlrev_b32 v56, 16, v{PO+6}"); a(f"v_and_b32 v57, 0xffff0000, v{PO+6}"); a(f"v_lshlrev_b32 v58, 16, v{PO+7}"); a(f"v_and_b32 v59, 0xffff0000, v{PO+7}")
        a("s_mov_b32 s30, 0")
        if nap: a(f"s_sleep {nap}")
        Lp, Lg = a.newlabel("Wp"), a.newlabel("Wg")
        R = 108
        a.label(Lp)
        a(f"buffer_load_dwordx4 {vr(R,4)}, v{VP}, {sr(S_FL,4)}, s89 offen sc1")
        a("s_waitcnt vmcnt(0)")
        a(f"v_max3_u32 v15, v{R}, v{R+1}, v{R+2}"); a(f"v_max_u32 v15, v15, v{R+3}")
        a("v_cmp_eq_u32 vcc, -1, v15")
        a(f"s_cbranch_vccz {Lg}")
        poll_tail(a, Lp, END)
        a.label(Lg)
        if nap: xstamp(a, 4)
        for k in (0, 2): a(f"v_pk_add_f32 {vr(R+k,2)}, {vr(R+k,2)}, {vr(PO+k,2)}")
        def rnd():
            a(f"v_cvt_pk_bf16_f32 v{R+4}, v{R}, v{R+1}"); a(f"v_cvt_pk_bf16_f32 v{R+5}, v{R+2}, v{R+3}")
        def unp():
            a(f"v_lshlrev_b32 v{R}, 16, v{R+4}"); a(f"v_and_b32 v{R+1}, 0xffff0000, v{R+4}")
            a(f"v_lshlrev_b32 v{R+2}, 16, v{R+5}"); a(f"v_and_b32 v{R+3}, 0xffff0000, v{R+5}")
        rnd(); unp()
        a(f"v_pk_add_f32 {vr(R,2)}, {vr(R,2)}, v[52:53]"); a(f"v_pk_add_f32 {vr(R+2,2)}, {vr(R+2,2)}, v[54:55]")
        rnd(); unp()
        a(f"v_pk_add_f32 {vr(R,2)}, {vr(R,2)}, v[56:57]"); a(f"v_pk_add_f32 {vr(R+2,2)}, {vr(R+2,2)}, v[58:59]")
        rnd()
        a(f"buffer_store_dwordx2 {vr(R+4,2)}, v{VO}, s[84:87], s88 offen")
    Ln = a.newlabel("Wn")
    a("s_cmp_eq_u32 s90, 0"); a(f"s_cbranch_scc1 {Ln}")
    finish_seg(0)
    a.label(Ln)
    for k in range(4): a(f"v_mov_b32 v{PO+k}, v{RD+k}"); a(f"v_mov_b32 v{PO+4+k}, v{48+k}")
    a("s_mov_b32 s88, s33"); a("s_mov_b32 s89, s26"); a("s_mov_b32 s90, 1")
    a("s_add_u32 s38, s38, 1")
    a("s_and_b32 s34, s38, 7"); a("s_cselect_b32 s34, s35, 0"); a("s_cmp_eq_u32 s34, 16"); a("s_cbranch_scc1 L_WORseg")
    Lv, Lf = a.newlabel("Wv"), a.newlabel("Wv")
    a("s_and_b32 s34, s38, 7"); a(f"s_cbranch_scc0 {Lf}")
    a(f"s_cmp_lg_u32 s{W}, 0"); a(f"s_cbranch_scc1 {Lv}")
    a(f"buffer_load_dword v14, off, {sr(S_FL,4)}, s32 sc1")
    a("s_waitcnt vmcnt(0)")
    a("ds_write_b32 v9, v14 offset:8")
    a("s_waitcnt lgkmcnt(0)")
    a.label(Lv)
    a("s_barrier")
    a("ds_read_b32 v14, v9 offset:8")
    a("s_waitcnt lgkmcnt(0)")
    a("v_readfirstlane_b32 s35, v14")
    a("s_nop 3")
    a("s_cmp_eq_u32 s35, 16"); a("s_cbranch_scc1 L_WORseg")
    a.label(Lf)
    finish_seg(1)
    a("s_mov_b32 s90, 0")
    a("s_cmp_lt_u32 s38, 64"); a("s_cbranch_scc1 L_WORseg")

NW1, NW2, NW3 = 0, 0, 21
def warm(a, s_unit, n, per, base):
    if n == 0: return
    load_srd(a, 84, 46, 0, DM*4096*2)
    a(f"s_mul_i32 s79, s{s_unit}, {per*1024}"); a(f"s_add_u32 s79, s79, {base*1024}")
    a(f"s_mov_b32 m0, {LDS_SCR+1024}")
    for i in range(n):
        a("s_nop 0" if i == 0 else "s_add_u32 s79, s79, 1024")
        a("buffer_load_dwordx4 v2, s[84:87], s79 offen lds")

NRDY = 0
ROT = False
NPRE = 0
NJUNK = 3
GJUNK = False
HELP = 0
def setup_phase(a):
    L = V_LANE; W = S_WAVE
    a("s_and_b32 s16, s2, 7"); a("s_lshr_b32 s17, s2, 3"); a("s_lshl_b32 s17, s17, 2"); a("s_add_u32 s17, s17, s16"); a("s_sub_u32 s17, s17, 4")
    a("s_sub_u32 s18, s2, 96"); a("s_cmp_ge_u32 s2, 192"); a("s_cselect_b32 s19, s18, s17"); a("s_cbranch_scc1 L_su_go")
    a("s_cmp_lt_u32 s16, 4"); a("s_cbranch_scc1 L_su_pre")
    a.label("L_su_go")
    load_srd(a, 24, 40, 0, S*DM*2)
    load_srd(a, 12, 66, XN_OFF, S*XN_STR)
    a(f"v_lshlrev_b32 v2, 4, v{L}")
    a("s_mul_i32 s19, s19, 3"); a(f"s_add_u32 s19, s19, s{W}"); a("s_sub_u32 s19, s19, 1")
    a("s_mul_i32 s34, s19, 3"); a("s_add_u32 s36, s34, 1"); a("s_add_u32 s38, s34, 2")
    def rows(X0):
        for k in range(3):
            a(f"s_lshl_b32 s17, s{34+2*k}, 11")
            for h in range(2): a(f"buffer_load_dwordx4 {vr(X0+8*k+4*h,4)}, v2, s[24:27], s17 offen offset:{1024*h}")
    rows(64)
    a("s_sub_u32 s18, s19, 277"); a("s_mul_i32 s18, s18, 3"); a("s_add_u32 s18, s18, 1440"); a("s_cmp_ge_u32 s19, 277"); a("s_cselect_b32 s18, s18, 4096")
    for k in range(3):
        a(f"s_add_u32 s17, s18, {k}"); a("s_lshl_b32 s17, s17, 11")
        for h in range(2): a(f"buffer_load_dwordx4 {vr(16+8*k+4*h,4)}, v2, s[24:27], s17 offen offset:{1024*h}")
    load_srd(a, 28, 42, 0, 8*DM*2)
    a(f"s_bfe_u32 s17, s19, {2 | (4 << 16):#x}"); a("s_lshl_b32 s17, s17, 7"); a("s_and_b32 s16, s19, 3"); a("s_lshl_b32 s16, s16, 5"); a("s_add_u32 s17, s17, s16")
    a(f"v_bfe_u32 v8, v{L}, 2, 3"); a("v_lshlrev_b32 v8, 11, v8")
    a(f"v_and_b32 v9, 3, v{L}"); a("v_lshl_add_u32 v8, v9, 3, v8")
    a(f"v_lshrrev_b32 v9, 5, v{L}"); a("v_lshl_add_u32 v8, v9, 2, v8")
    a("buffer_load_dword v10, v8, s[28:31], s17 offen")
    emit_ln_multi(a, 12, [34, 36, 38], 2, 64, 96, "sc1", 7)
    a("s_cmp_lt_u32 s19, 277"); a("s_cbranch_scc1 L_su_one")
    a("s_mov_b32 s34, s18"); a("s_add_u32 s36, s18, 1"); a("s_add_u32 s38, s18, 2")
    emit_ln_multi(a, 12, [34, 36, 38], 2, 16, 96, "sc1", 7)
    a.label("L_su_one")
    tot = CH_END - CH_BASE - 65536
    assert tot % 1024 == 0 and tot//1024 <= 480*6
    for i in range(4): a(f"v_mov_b32 v{4+i}, -1")
    a("s_mul_i32 s16, s19, 6")
    for i in range(6):
        Ls = a.newlabel("Ps")
        a(f"s_cmp_ge_u32 s16, {tot//1024}"); a(f"s_cbranch_scc1 {Ls}")
        a(f"s_cmp_ge_u32 s16, {(CH_MEM-CH_BASE)//1024}"); a("s_cselect_b32 s17, 64, 0"); a("s_add_u32 s17, s17, s16")
        a("s_lshl_b32 s17, s17, 10"); a(f"s_add_u32 s17, s17, {CH_BASE}")
        a(f"buffer_store_dwordx4 v[4:7], v2, {sr(S_WS,4)}, s17 offen sc1")
        a.label(Ls)
        a("s_add_u32 s16, s16, 1")
    Lz, Lm = a.newlabel("Pz"), a.newlabel("Pm")
    a(f"v_lshlrev_b32 v9, 2, v{L}")
    a("s_cmp_lt_u32 s19, 224"); a(f"s_cbranch_scc1 {Lz}")
    a("v_mov_b32 v8, 0"); a("s_sub_u32 s17, s19, 224"); a("s_lshl_b32 s17, s17, 8"); a(f"s_add_u32 s17, s17, {FLAGS}")
    a(f"buffer_store_dword v8, v9, {sr(S_WS,4)}, s17 offen sc1")
    a.label(Lz)
    a("s_cmp_ge_u32 s19, 256"); a(f"s_cbranch_scc1 {Lm}")
    a("s_lshl_b32 s16, s19, 8"); a(f"s_add_u32 s16, s16, {CH_MEM}")
    a("s_waitcnt vmcnt(6)")
    a(f"buffer_store_dword v10, v9, {sr(S_WS,4)}, s16 offen sc1")
    a.label(Lm)
    a("s_branch L_su_end")
    a.label("L_su_pre")
    if NPRE:
        a("s_cmp_ge_u32 s31, 4"); a("s_cbranch_scc1 L_su_end")
        a(f"s_mov_b32 m0, {LDS_SCR+1024}"); a("s_lshr_b32 s17, s2, 3"); a("s_lshl_b32 s18, s31, 3")
        a("s_cmp_ge_u32 s17, 8"); a("s_cbranch_scc1 L_su_pv")
        a(f"s_cmp_eq_u32 s{W}, 3"); a("s_cselect_b32 s34, s46, s44"); a("s_cselect_b32 s35, s47, s45")
        load_srd(a, 84, 34, 0, DM*4096*2)
        a(f"v_lshrrev_b32 v2, 4, v{L}"); a("v_lshlrev_b32 v2, 13, v2"); a(f"v_and_b32 v3, 15, v{L}"); a("v_lshl_add_u32 v2, v3, 4, v2")
        a("s_add_u32 s17, s17, s18"); a("s_lshl_b32 s79, s17, 8")
        a(f"s_cmp_eq_u32 s{W}, 2"); a(f"s_cselect_b32 s17, {4*8192}, 0"); a("s_add_u32 s79, s79, s17")
        a(f"s_mov_b32 s78, {8*8192}")
        a(f"s_cmp_eq_u32 s{W}, 3"); a(f"s_cselect_b32 s78, {4*8192}, s78")
        a("s_branch L_su_pl")
        a.label("L_su_pv")
        load_srd(a, 84, 48, 0, DM*4096*2)
        a(f"v_lshrrev_b32 v2, 3, v{L}"); a("v_lshlrev_b32 v2, 13, v2"); a(f"v_and_b32 v3, 7, v{L}"); a("v_lshl_add_u32 v2, v3, 4, v2")
        a("s_sub_u32 s17, s17, 8"); a("s_lshl_b32 s18, s18, 1"); a("s_add_u32 s17, s17, s18"); a("s_lshl_b32 s79, s17, 7")
        a(f"s_lshl_b32 s17, s{W}, 21"); a("s_add_u32 s79, s79, s17"); a(f"s_mov_b32 s78, {8*8192}")
        a.label("L_su_pl")
        for i in range(NPRE):
            a("buffer_load_dwordx4 v2, s[84:87], s79 offen lds")
            a("s_add_u32 s79, s79, s78")
    a.label("L_su_end")

def init_arrive(a, srd, vt=61):
    L = a.newlabel("Ia")
    a(f"s_cmp_lg_u32 s{S_WAVE}, 0"); a(f"s_cbranch_scc1 {L}")
    a(f"v_mov_b32 v{vt}, s101"); a("s_lshl_b32 s21, s2, 2"); a(f"s_add_u32 s21, s21, {TBL_OFF+1024}")
    a("s_mov_b64 exec, 1")
    a(f"buffer_store_dword v{vt}, off, {sr(srd,4)}, s21 sc1")
    a("s_mov_b64 exec, -1")
    a.label(L)

def init_wait(a, abort):
    load_srd(a, 20, 64, 0, 256)
    Lp, Lg = a.newlabel("Ip"), a.newlabel("Ig")
    a("s_mov_b32 s30, 0"); a("s_mov_b32 s24, 192")
    a.label(Lp)
    a("buffer_load_dword v14, off, s[20:23], s24 sc1")
    a("s_waitcnt vmcnt(0)")
    a("v_cmp_ne_u32 vcc, s101, v14")
    a(f"s_cbranch_vccz {Lg}")
    a("s_sleep 4")
    poll_tail(a, Lp, abort)
    a.label(Lg)

def worker_start(a, abort):
    a(f"s_waitcnt vmcnt({NW2})")
    a("s_barrier")
    init_arrive(a, S_FL)
    Lw, Ln, Lp, Lg = [a.newlabel("Ws") for _ in range(4)]
    L0 = a.newlabel("Ws")
    a(f"s_cmp_eq_u32 s{S_WAVE}, 0"); a(f"s_cbranch_scc1 {L0}")
    Lb = a.newlabel("Ws")
    a(f"s_cmp_lg_u32 s{S_B}, 5"); a(f"s_cbranch_scc1 {Lb}")
    a(f"v_lshrrev_b32 v2, 4, v{V_LANE}"); a("v_lshlrev_b32 v2, 13, v2"); a(f"v_and_b32 v3, 15, v{V_LANE}"); a("v_lshl_add_u32 v2, v3, 4, v2")
    a(f"s_mov_b32 m0, {LDS_SCR+1024}")
    nper = HELP // 3
    for p in ((44, 46) if HELP else ()):
        load_srd(a, 84, p, 0, DM*4096*2)
        a(f"s_sub_u32 s79, s{S_WAVE}, 1"); a(f"s_mul_i32 s79, s79, {nper*4*8192}"); a("s_lshl_b32 s78, s34, 8"); a("s_add_u32 s79, s79, s78")
        a(f"s_add_u32 s79, s79, {(1024-12*nper)*8192}"); a(f"s_mov_b32 s78, {nper}")
        Ll = a.newlabel("Ws")
        a.label(Ll)
        a("buffer_load_dwordx4 v2, s[84:87], s79 offen lds")
        a(f"s_add_u32 s79, s79, {4*8192}"); a("s_sub_u32 s78, s78, 1"); a("s_cmp_lg_u32 s78, 0"); a(f"s_cbranch_scc1 {Ll}")
    a(f"s_branch {Lw}")
    a.label(Lb)
    a("s_sub_u32 s19, s33, 128"); a("s_mul_i32 s19, s19, 3"); a(f"s_add_u32 s19, s19, s{S_WAVE}"); a("s_sub_u32 s19, s19, 1")
    a(f"v_lshlrev_b32 v2, 4, v{V_LANE}")
    warm(a, 19, NW3, NW3, 8192 - 384*NW3)
    a(f"s_branch {Lw}")
    a.label(L0)
    a("s_cmp_lg_u32 s33, 255"); a(f"s_cbranch_scc1 {Ln}")
    a(f"v_lshlrev_b32 v3, 2, v{V_LANE}"); a(f"s_mov_b32 s26, {TBL_OFF+1024}"); a("s_mov_b32 s30, 0")
    a.label(Lp)
    for k in range(4): a(f"buffer_load_dword v{8+k}, v3, {sr(S_FL,4)}, s26 offen offset:{256*k} sc1")
    a("s_waitcnt vmcnt(0)")
    for k in range(4): a(f"v_xor_b32 v{8+k}, s101, v{8+k}")
    a("v_or_b32 v5, v8, v9"); a("v_or3_b32 v5, v5, v10, v11")
    a("v_cmp_ne_u32 vcc, 0, v5")
    a(f"s_cbranch_vccz {Lg}")
    a("s_sleep 2")
    poll_tail(a, Lp, abort)
    a.label(Lg)
    load_srd(a, 20, 64, 0, 256)
    a("v_mov_b32 v5, s101"); a("s_mov_b32 s24, 192")
    a("buffer_store_dword v5, off, s[20:23], s24 sc1")
    a(f"s_branch {Lw}")
    a.label(Ln)
    Lsm, Lq = a.newlabel("Ws"), a.newlabel("Ws")
    a(f"s_cmp_eq_u32 s{S_B}, 5"); a(f"s_cbranch_scc1 {Lsm}")
    a(f"v_and_b32 v3, 7, v{V_LANE}"); a("s_and_b32 s26, s34, 3"); a("s_mul_i32 s26, s26, 7"); a("v_add_u32 v3, s26, v3")
    a("v_and_b32 v4, 3, v3"); a("v_lshrrev_b32 v3, 2, v3"); a("v_lshl_add_u32 v3, v3, 3, v4"); a("v_add_u32 v3, 4, v3"); a("v_lshlrev_b32 v3, 2, v3")
    a(f"s_mov_b32 s26, {TBL_OFF+1024}")
    a("s_mov_b32 s30, 0")
    a.label(Lq)
    a("s_sleep 6")
    a(f"buffer_load_dword v8, v3, {sr(S_FL,4)}, s26 offen sc1")
    a("s_waitcnt vmcnt(0)")
    a("v_cmp_ne_u32 vcc, s101, v8")
    a(f"s_cbranch_vccz {Lw}")
    poll_tail(a, Lq, abort)
    a.label(Lsm)
    init_wait(a, abort)
    if NRDY == 0: a(f"s_branch {Lw}")
    a(f"s_mov_b32 s26, {FL_RDY}"); a("s_mov_b32 s30, 0")
    Lr = a.newlabel("Ws")
    a.label(Lr)
    a("s_sleep 16")
    a(f"buffer_load_dword v8, off, {sr(S_FL,4)}, s26 sc1")
    a("s_waitcnt vmcnt(0)")
    a(f"v_cmp_gt_u32 vcc, {NRDY}, v8")
    a(f"s_cbranch_vccz {Lw}")
    poll_tail(a, Lr, abort)
    a.label(Lw)
    a("s_barrier")

def emit_mega(a, name, force_slow=False):
    END = "L_abort"
    Q1 = q1_list(); NSM = 32*len(SMALL); NQ1 = 8*sum(x[3] for x in Q1) - NSM
    kernel_header(a, name)
    a(f"s_cmp_ge_u32 s2, 256"); a(f"s_cbranch_scc1 L_end")
    xstamp(a, 2)
    load_ptrs(a)
    a("v_lshrrev_b32 v2, 6, v0")
    a(f"v_and_b32 v{V_LANE}, 63, v0")
    a(f"v_readfirstlane_b32 s{S_WAVE}, v2")
    a("s_waitcnt lgkmcnt(0)")
    load_srd(a, S_WS, 66, 0, WS_SIZE)
    chain.IDLE = setup_phase
    chain.INIT_WAIT = lambda a: init_wait(a, END)
    chain.INIT_ARRIVE = lambda a: init_arrive(a, S_WS)
    chain.NYOUNG = NW2
    def rdy(a):
        L = a.newlabel("Rd")
        a(f"s_cmp_lg_u32 s{S_WAVE}, 0"); a(f"s_cbranch_scc1 {L}")
        a(f"s_mov_b32 s20, {FL_RDY}"); signal(a, 20, 1, S_WS, 61)
        a.label(L)
    chain.A_READY = rdy
    assign_roles(a, END, LDS_SCR)
    xstamp(a, 1)
    a(f"s_mov_b32 s35, s{chain.S_MODE}")
    if force_slow: a(f"s_mov_b32 s{chain.S_MODE}, 1")
    a(f"s_mov_b32 s{S_PH}, 0")
    a(f"s_sub_u32 s{S_B}, s31, 4"); a("s_cmp_lt_u32 s31, 4"); a(f"s_cselect_b32 s{S_B}, 5, s{S_B}")
    a(f"s_mov_b32 s{S_PH}, 1")

    Lf = a.newlabel("Cl")
    a(f"s_cmp_eq_u32 s{chain.S_MODE}, 0"); a(f"s_cbranch_scc1 {Lf}")
    a("s_cmp_lt_u32 s33, 128"); a(f"s_cselect_b32 s{S_B}, 5, 4")
    a.label(Lf)
    a(f"s_lshl_b32 s{S_CTR}, s{S_B}, 7"); a(f"s_add_u32 s{S_CTR}, s{S_CTR}, {FL_Q1L}")
    a("s_mov_b32 s100, 0")
    a(f"s_cmp_eq_u32 s{S_B}, 4"); a(f"s_cselect_b32 s{S_T0}, 128, 32")
    a("s_lshl_b32 s34, s31, 3"); a("s_add_u32 s34, s34, s32"); a("s_sub_u32 s34, s34, 24")
    a("s_cmp_ge_u32 s31, 4"); a("s_cselect_b32 s34, s32, s34")
    Lp5 = a.newlabel("Cl")
    a("s_cmp_eq_u32 s35, 0"); a(f"s_cbranch_scc1 {Lp5}")
    a("s_sub_u32 s34, s33, 96"); a(f"s_cmp_eq_u32 s{S_B}, 4"); a("s_cselect_b32 s20, 32, 0"); a("s_sub_u32 s34, s34, s20")
    a.label(Lp5)
    a("s_cmp_eq_u32 s29, 0"); a(f"s_cbranch_scc1 L_worker0")
    a("s_setprio 3")
    a(f"s_cmp_ge_u32 s{chain.S_R}, 8"); a(f"s_cbranch_scc1 L_vr")
    def kv_wait(a):
        Ls, Lp = a.newlabel("Kw"), a.newlabel("Kp")
        Lc = a.newlabel("Kc")
        a(f"s_and_b32 s20, s{chain.S_STEP}, 7"); a(f"s_cbranch_scc1 {Ls}")
        a.label(Lc)
        a(f"s_lshr_b32 s20, s{chain.S_STEP}, 3"); a("s_lshl_b32 s20, s20, 10"); a("s_lshr_b32 s21, s26, 1"); a("s_lshl_b32 s21, s21, 6"); a("s_add_u32 s20, s20, s21")
        a(f"s_add_u32 s20, s20, {FL_QKV}"); a("s_mov_b32 s30, 0")
        a("s_mov_b32 s21, 0xffff"); a("s_movk_i32 s22, 0x404")
        a.label(Lp)
        a(f"buffer_load_dword v15, off, {sr(S_WS,4)}, s20 sc1")
        a("s_waitcnt vmcnt(0)")
        a("v_and_b32 v15, s21, v15")
        a("v_cmp_ne_u32 vcc, s22, v15")
        a(f"s_cbranch_vccz {Ls}")
        a("s_sleep 4")
        poll_tail(a, Lp, END)
        a.label(Ls)
    def step_addr(delta):
        a(f"s_lshl_b32 s20, s{chain.S_STEP}, 2"); a(f"s_add_u32 s20, s20, s{chain.S_X}"); a("s_lshl_b32 s20, s20, 7")
        a(f"s_add_u32 s20, s20, {FL_STEP + delta*512}")
    def step_done(a, kind):
        L = a.newlabel("Sd")
        if kind in ("A", "Alast"):
            a("s_waitcnt vmcnt(0)"); a("s_barrier")
            a(f"s_cmp_lg_u32 s{S_WAVE}, 0"); a(f"s_cbranch_scc1 {L}")
            step_addr(0); signal(a, 20, 1, S_WS, 60)
        elif kind == "V3":
            step_addr(0); signal(a, 20, 1, S_WS, 60)
        elif kind == "Vlast":
            a("s_waitcnt vmcnt(0)"); a("s_barrier")
            a(f"s_cmp_lg_u32 s{S_WAVE}, 0"); a(f"s_cbranch_scc1 {L}")
            step_addr(0); signal(a, 20, 1, S_WS, 60)
        a.label(L)
    role_A(a, END, kv_wait, step_done)
    a("s_branch L_retire")
    a.label("L_vr")
    role_VR(a, END, step_done)
    a.label("L_retire")
    a("s_setprio 0")
    a(f"s_mov_b32 s{S_PH}, 2")
    load_ptrs(a)
    a(f"v_mbcnt_lo_u32_b32 v{V_LANE}, -1, 0"); a(f"v_mbcnt_hi_u32_b32 v{V_LANE}, -1, v{V_LANE}")
    a("s_waitcnt vmcnt(0) lgkmcnt(0)")
    a("s_barrier")
    load_srd(a, S_FL, 66, 0, WS_SIZE)
    a("s_branch L_worker")
    a.label("L_worker0")
    load_srd(a, S_FL, 66, 0, WS_SIZE)
    worker_start(a, END)
    a.label("L_worker")
    a(f"s_mov_b32 s{S_PRE}, 0"); a(f"s_mov_b32 s{S_PVAL}, 0"); a(f"s_mov_b32 s{S_EPI}, 0")
    def run_epi(): a(f"s_call_b64 s[{S_RET}:{S_RET+1}], L_epi")
    def q1_index():
        L, L5 = a.newlabel("N"), a.newlabel("N")
        a(f"s_add_u32 s25, s25, s{S_T0}")
        a(f"s_cmp_eq_u32 s{S_B}, 5"); a(f"s_cbranch_scc1 {L5}")
        a(f"s_cmp_eq_u32 s{S_B}, 4"); a(f"s_cbranch_scc1 {L}")
        a("s_lshr_b32 s22, s25, 5"); a("s_and_b32 s25, s25, 31"); a("s_lshl_b32 s22, s22, 2"); a(f"s_add_u32 s22, s22, s{S_B}")
        a("s_lshl_b32 s22, s22, 5"); a("s_add_u32 s25, s25, s22")
        a.label(L)
        a(f"s_cmp_lt_u32 s25, {NQ1}"); a(f"s_cselect_b32 s25, s25, {NSM}"); a(f"s_cbranch_scc1 {L5}_e")
        a.label(L5)
        a(f"s_add_u32 s25, s25, {NQ1}"); a(f"s_cmp_lt_u32 s25, {NQ1+NSM}")
        a.label(f"{L5}_e")
    def publish_item():
        a("v_mov_b32 v14, s25"); a(f"v_mov_b32 v15, {LDS_SCR}")
        a("ds_write_b32 v15, v14")
    def flush():
        L, L2 = a.newlabel("Fl"), a.newlabel("Fl")
        run_epi()
        a(f"s_cmp_eq_u32 s{S_PVAL}, 0"); a(f"s_cbranch_scc1 {L}")
        finish(a, S_POFF, f"s{S_PVAL}")
        a(f"s_mov_b32 s{S_PVAL}, 0")
        a.label(L)
    def hook_first():
        L = a.newlabel("Hf")
        a(f"s_cmp_eq_u32 s{S_PVAL}, 0"); a(f"s_cbranch_scc1 {L}")
        a(f"s_mov_b32 s21, s{S_PVAL}"); a(f"s_mov_b32 s{S_PVAL}, 0")
        a(f"s_cmp_lg_u32 s{S_WAVE}, 0"); a(f"s_cbranch_scc1 {L}")
        signal(a, S_POFF, "s21", vtmp=14)
        a.label(L)
    def hook_tail():
        L = a.newlabel("Ht")
        a(f"s_cmp_lg_u32 s{S_WAVE}, 0"); a(f"s_cbranch_scc1 {L}")
        a("v_mov_b32 v14, 1")
        a("s_mov_b64 exec, 1")
        a(f"buffer_atomic_add v14, off, {sr(S_FL,4)}, s{S_CTR} sc0 sc1")
        a("s_mov_b64 exec, -1")
        a.label(L)
    def hook_tail_first():
        L = a.newlabel("Ht")
        a(f"s_cmp_lg_u32 s{S_WAVE}, 0"); a(f"s_cbranch_scc1 {L}")
        a(f"s_mov_b32 s25, s{S_LOOP}"); init_wait(a, END); a(f"s_mov_b32 s{S_LOOP}, s25")
        a.label(L)
        hook_tail()
    def after_main():
        L = a.newlabel("Am")
        wstamp(a, 2)
        a(f"s_cmp_lg_u32 s{S_WAVE}, 0"); a(f"s_cbranch_scc1 {L}")
        a("s_waitcnt vmcnt(0)")
        a("v_readfirstlane_b32 s25, v14")
        a("s_nop 3")
        q1_index()
        a(f"s_cselect_b32 s{S_PRE}, 1, 0"); a(f"s_cselect_b32 s{S_PH}, 1, 2")
        publish_item()
        a.label(L)
    HK = dict(hook_second=hook_first, hook_tail=hook_tail) if ROT else dict(hook_first=hook_first, hook_tail=hook_tail)
    Lft = a.newlabel("Ft")
    a(f"s_cmp_eq_u32 s{S_PH}, 2"); a(f"s_cbranch_scc1 {Lft}")
    a(f"s_cmp_lg_u32 s{S_WAVE}, 0"); a(f"s_cbranch_scc1 {Lft}")
    a(f"s_sub_u32 s25, s34, s{S_T0}")
    q1_index()
    publish_item()
    a(f"s_mov_b32 s{S_PRE}, 1")
    a.label(Lft)
    a.label("L_next")
    wstamp(a, 0)
    Lb, Lpub, L1, L2 = [a.newlabel("N") for _ in range(4)]
    a(f"s_cmp_lg_u32 s{S_WAVE}, 0"); a(f"s_cbranch_scc1 {Lb}")
    a(f"s_cmp_lg_u32 s{S_PRE}, 0"); a(f"s_mov_b32 s{S_PRE}, 0"); a(f"s_cbranch_scc1 {Lb}")
    a(f"s_cmp_eq_u32 s{S_PH}, 2"); a(f"s_cbranch_scc1 {L2}")
    a.label(L1)
    atomic_ret(a, 4, S_CTR, 1)
    a("v_readfirstlane_b32 s25, v4")
    a("s_nop 3")
    q1_index()
    a(f"s_cbranch_scc1 {Lpub}")
    a(f"s_mov_b32 s{S_PH}, 2")
    a.label(L2)
    a(f"s_mov_b32 s20, {FL_Q2G}")
    atomic_ret(a, 4, 20, 1)
    a("v_readfirstlane_b32 s25, v4")
    a("s_nop 3")
    a("s_min_u32 s25, s25, 0xfff"); a("s_add_u32 s25, s25, 0x1000")
    a.label(Lpub)
    publish_item()
    a.label(Lb)
    a("s_waitcnt lgkmcnt(0)")
    a("s_barrier")
    a(f"v_mov_b32 v5, {LDS_SCR}")
    a("ds_read_b32 v4, v5")
    a("s_waitcnt lgkmcnt(0)")
    a(f"v_readfirstlane_b32 s{S_ITEM}, v4")
    a("s_nop 3")
    a(f"s_cmp_ge_u32 s{S_ITEM}, 0x1000"); a(f"s_cbranch_scc1 L_qa")
    a(f"s_lshr_b32 s20, s{S_ITEM}, 3"); a(f"s_and_b32 s21, s{S_ITEM}, 7")
    base = 0
    for typ, p, c0, n in Q1:
        Ln = a.newlabel("D")
        a(f"s_cmp_ge_u32 s20, {base+n}"); a(f"s_cbranch_scc1 {Ln}")
        a(f"s_sub_u32 s20, s20, {base-c0}") if base >= c0 else a(f"s_add_u32 s20, s20, {c0-base}")
        if typ in ("DN", "W2", "W1"): a("s_mov_b32 s36, s20"); a("s_mov_b32 s37, s21")
        elif typ == "WR": a("s_lshl_b32 s37, s20, 3"); a("s_add_u32 s37, s37, s21")
        elif typ == "KS":
            a("s_lshr_b32 s38, s20, 3"); a("s_add_u32 s38, s38, 1"); a("s_and_b32 s37, s20, 7"); a("s_lshl_b32 s37, s37, 1")
            a("s_lshr_b32 s22, s21, 2"); a("s_add_u32 s37, s37, s22"); a("s_and_b32 s36, s21, 3")
        elif typ in ("K4", "G4"):
            a("s_and_b32 s36, s21, 3"); a(f"s_add_u32 s36, s36, {p}"); a("s_lshr_b32 s21, s21, 2"); a("s_lshl_b32 s37, s20, 1"); a("s_add_u32 s37, s37, s21")
            if typ == "K4": a("s_lshr_b32 s38, s37, 4"); a("s_add_u32 s38, s38, 1"); a("s_and_b32 s37, s37, 15")
        elif typ == "G8": a("s_mov_b32 s36, s21"); a("s_mov_b32 s37, s20")
        elif typ == "QA": pass
        elif typ == "K1":
            a("s_and_b32 s38, s20, 1"); a("s_add_u32 s38, s38, 1"); a("s_lshr_b32 s37, s20, 1"); a("s_lshl_b32 s37, s37, 3")
            a("s_add_u32 s37, s37, s21"); a("s_mov_b32 s36, 1")
        else:
            a(f"s_mov_b32 s36, {2*p}")
            if typ == "KV": a("s_and_b32 s38, s20, 1"); a("s_add_u32 s38, s38, 1"); a("s_lshr_b32 s20, s20, 1")
            if typ == "Q": a("s_mov_b32 s38, 0")
        a(f"s_branch L_{dict(KV='QKV', Q='QKV', K1='QKV2', K4='QKV2', G4='GU2', G8='GU2').get(typ, typ)}")
        a.label(Ln)
        base += n
    a(f"s_branch {END}")
    a.label("L_QA")
    a(f"s_cmp_eq_u32 s{S_B}, 4"); a(f"s_cselect_b32 s{S_PH}, 1, 2")
    a("s_barrier")
    a("s_branch L_next")
    def coords():
        a("s_and_b32 s22, s21, 1"); a("s_add_u32 s36, s36, s22")
        a("s_lshr_b32 s21, s21, 1"); a("s_lshl_b32 s37, s20, 2"); a("s_add_u32 s37, s37, s21")
    def done():
        if PROFW:
            wstamp(a, 3)
            a("s_waitcnt lgkmcnt(0)")
            for i in range(4): a(f"v_writelane_b32 v4, s{70+2*i}, {i}")
            a(f"v_writelane_b32 v4, s{S_ITEM}, 4"); a(f"v_writelane_b32 v4, s{S_B}, 5")
            for i in range(5): a(f"v_writelane_b32 v4, s{[24,6,52,54,80][i]}, {8+i}")
            a("s_lshl_b32 s20, s2, 5"); a("s_add_u32 s20, s20, s100"); a("s_lshl_b32 s20, s20, 6"); a(f"s_add_u32 s20, s20, {TSW_OFF}")
            a(f"v_lshlrev_b32 v5, 2, v{V_LANE}")
            a("s_mov_b64 exec, 0xffff")
            a(f"buffer_store_dword v4, v5, {sr(S_FL,4)}, s20 offen")
            a("s_mov_b64 exec, -1")
            a("s_add_u32 s100, s100, 1"); a("s_min_u32 s100, s100, 31")
        a("s_branch L_next")
    a.label("L_QKV")
    coords()
    a.label("L_QKV2")
    wstamp(a, 1)
    load_srd(a, S_SRDX, 66, XN_OFF, S*XN_STR)
    a("s_cmp_eq_u32 s38, 1"); a("s_cselect_b32 s34, s46, s44"); a("s_cselect_b32 s35, s47, s45")
    a("s_cmp_eq_u32 s38, 2"); a("s_cselect_b32 s34, s48, s34"); a("s_cselect_b32 s35, s49, s35")
    load_srd(a, S_SRDW, 34, 0, DM*4096*2)
    gq = Gemm(a, "qk", 4, 4, 2, XN_STR, 8192, "head", xflags="sc1")
    gv = Gemm(a, "v", 4, 4, 2, XN_STR, 8192, "head", swap=True, xflags="sc1")
    gq.setup()
    a(f"s_mul_i32 s{S_OFFX}, s36, {256*XN_STR}"); a(f"s_lshl_b32 s{S_OFFW}, s37, 9")
    assert K_OFF == Q_OFF + 16*MB and VT_OFF == Q_OFF + 32*MB
    gq.prologue_dma()
    run_epi()
    gq.junk = gv.junk = (LDS_SCR+1024, 13, [24, 28, 84][:NJUNK], 79) if NJUNK else None
    for r, p in ((24, 56), (28, 58), (84, 60)): load_srd(a, r, p, 0, DM*DF*2)
    a(f"s_sub_u32 s79, s{S_ITEM}, 128"); a("s_cmp_lt_u32 s79, 128")
    for r in (24, 28, 84): a(f"s_cselect_b32 s{r+2}, s{r+2}, 0")
    a("s_cselect_b32 s79, s79, 0")
    a("s_lshl_b32 s79, s79, 2"); a(f"s_add_u32 s79, s79, s{S_WAVE}"); a(f"s_mul_i32 s79, s79, {14*1024}")
    a(f"v_lshlrev_b32 v13, 4, v{V_LANE}")
    a("s_cmp_eq_u32 s38, 2"); a("s_cbranch_scc1 L_V")
    gq.main(16, dma_issued=True, **HK)
    a(f"s_mov_b32 s{S_EPI}, 1")
    a("s_branch L_QKVfin")
    a.label("L_V")
    gv.main(16, dma_issued=True, **HK)
    a(f"s_mov_b32 s{S_EPI}, 2")
    a.label("L_QKVfin")
    after_main()
    a("s_lshl_b32 s32, s36, 21"); a("s_lshl_b32 s33, s37, 14"); a("s_add_u32 s32, s32, s33")
    a("s_lshl_b32 s33, s38, 24"); a("s_add_u32 s32, s32, s33"); a(f"s_add_u32 s{S_EP0}, s32, {Q_OFF}")
    a("s_lshl_b32 s32, s36, 10"); a("s_lshl_b32 s33, s37, 6"); a("s_add_u32 s32, s32, s33"); a(f"s_add_u32 s32, s32, {FL_QKV}")
    a("s_add_u32 s33, s38, 2"); a("s_cmp_ge_u32 s33, 3"); a("s_cselect_b32 s34, 3, 0"); a("s_sub_u32 s33, s33, s34")
    a("s_lshl_b32 s33, s33, 3"); a(f"s_lshl_b32 s{S_PVAL}, 4, s33"); a(f"s_mov_b32 s{S_POFF}, s32")
    if not ROT: run_epi()
    done()
    gQ, gV = gq, gv
    a.label("L_KS")
    wstamp(a, 1)
    load_srd(a, S_SRDX, 66, XN_OFF, S*XN_STR)
    a("s_cmp_eq_u32 s38, 2"); a("s_cselect_b32 s34, s48, s46"); a("s_cselect_b32 s35, s49, s47")
    load_srd(a, S_SRDW, 34, 0, DM*4096*2)
    gq = Gemm(a, "ks", 1, 4, 3, XN_STR, 8192, "head", xflags="sc1")
    gv = Gemm(a, "vs", 1, 4, 3, XN_STR, 8192, "head", swap=True, xflags="sc1")
    gq.setup()
    a(f"s_mul_i32 s{S_OFFX}, s36, {64*XN_STR}"); a(f"s_lshl_b32 s{S_OFFW}, s37, 9")
    a("s_lshl_b32 s32, s36, 19"); a("s_lshl_b32 s33, s37, 14"); a("s_add_u32 s32, s32, s33")
    a("s_lshl_b32 s33, s38, 24"); a("s_add_u32 s32, s32, s33"); a(f"s_add_u32 s32, s32, {Q_OFF}")
    gq.prologue_dma()
    a("s_cmp_eq_u32 s38, 2"); a("s_cbranch_scc1 L_VS")
    gq.main(16, dma_issued=True, hook_tail=hook_tail_first)
    after_main()
    gq.epi_qk(S_FL, 32, "sc1")
    a("s_branch L_KSfin")
    a.label("L_VS")
    gv.main(16, dma_issued=True, hook_tail=hook_tail_first)
    after_main()
    gv.epi_v(S_FL, 32, "sc1")
    a.label("L_KSfin")
    a("s_lshl_b32 s32, s37, 6"); a(f"s_add_u32 s32, s32, {FL_QKV}")
    a("s_sub_u32 s33, s38, 1"); a("s_lshl_b32 s33, s33, 3"); a("s_lshl_b32 s33, 1, s33")
    finish(a, 32, "s33")
    done()
    a.label("L_GU")
    coords()
    a.label("L_GU2")
    wstamp(a, 1)
    g = Gemm(a, "gu", 4, 4, 2, XN_STR, DF*2, "gu", xflags="sc1")
    load_srd(a, S_SRDX, 66, XN_OFF, S*XN_STR)
    a(f"s_cmp_ge_u32 s{S_WAVE}, 2"); a("s_cselect_b32 s34, s58, s56"); a("s_cselect_b32 s35, s59, s57")
    load_srd(a, S_SRDW, 34, 0, DM*DF*2)
    g.setup()
    a(f"s_mul_i32 s{S_OFFX}, s36, {256*XN_STR}"); a(f"s_lshl_b32 s{S_OFFW}, s37, 8")
    g.prologue_dma()
    run_epi()
    if GJUNK:
        g.junk = (LDS_SCR+1024, 13, [84], 79)
        load_srd(a, 84, 60, 0, DM*DF*2)
        a(f"s_sub_u32 s79, s{S_ITEM}, 256"); a("s_cmp_lt_u32 s79, 128"); a("s_cselect_b32 s86, s86, 0"); a("s_cselect_b32 s79, s79, 0")
        a("s_lshl_b32 s79, s79, 2"); a(f"s_add_u32 s79, s79, s{S_WAVE}"); a(f"s_mul_i32 s79, s79, {14*1024}")
        a(f"v_lshlrev_b32 v13, 4, v{V_LANE}")
    g.main(16, dma_issued=True, **HK)
    after_main()
    a(f"s_mul_i32 s32, s36, {256*H_STR}"); a("s_lshl_b32 s33, s37, 10"); a("s_add_u32 s32, s32, s33"); a(f"s_add_u32 s{S_EP0}, s32, {H_OFF}")
    a(f"s_mov_b32 s{S_EPI}, 3")
    a(f"s_lshl_b32 s{S_POFF}, s36, 7"); a(f"s_add_u32 s{S_POFF}, s{S_POFF}, {FL_GU}"); a(f"s_mov_b32 s{S_PVAL}, 1")
    if not ROT: run_epi()
    done()
    a.label("L_epi")
    a(f"s_cmp_eq_u32 s{S_EPI}, 0"); a("s_cbranch_scc1 L_epi_ret")
    a(f"s_cmp_eq_u32 s{S_EPI}, 2"); a("s_cbranch_scc1 L_epi2")
    a(f"s_cmp_eq_u32 s{S_EPI}, 3"); a("s_cbranch_scc1 L_epi3")
    gQ.epi_qk(S_FL, S_EP0, "sc1")
    a("s_branch L_epi_end")
    a.label("L_epi2")
    gV.epi_v(S_FL, S_EP0, "sc1")
    a("s_branch L_epi_end")
    a.label("L_epi3")
    g.epi_gu(S_FL, S_EP0, "sc1")
    a.label("L_epi_end")
    a(f"s_mov_b32 s{S_EPI}, 0")
    a.label("L_epi_ret")
    a(f"s_setpc_b64 s[{S_RET}:{S_RET+1}]")
    a.label("L_DN")
    flush()
    a("s_lshl_b32 s32, s36, 7"); a(f"s_add_u32 s32, s32, {FL_GU}")
    wait_flags(a, lambda: a("v_mov_b32 v5, 0"), 32, 0xffffffff, 28, END, 1)
    wstamp(a, 1)
    g = Gemm(a, "dn", 4, 2, 3, H_STR, 2048, "plain", xflags="sc1", xr4=True)
    load_srd(a, S_SRDX, 66, H_OFF, S*H_STR)
    load_srd(a, S_SRDW, 60, 0, DF*DM*2)
    g.setup()
    a(f"s_mul_i32 s{S_OFFX}, s36, {256*H_STR}"); a(f"s_lshl_b32 s{S_OFFW}, s37, 8")
    g.main(56, hook_tail=hook_tail)
    after_main()
    load_srd(a, 28, 66, BP_OFF, S*DM*2)
    a("s_lshl_b32 s32, s36, 19"); a("s_lshl_b32 s33, s37, 8")
    g.epi_plain(28, 32, 33, "sc1")
    a("s_lshl_b32 s32, s36, 3"); a("s_add_u32 s32, s32, s37"); a("s_lshl_b32 s32, s32, 6"); a(f"s_add_u32 s{S_POFF}, s32, {FL_DN}")
    a(f"s_mov_b32 s{S_PVAL}, 1")
    done()
    for nm, MT, NST in (("W2", 4, 3), ("W1", 2, 4)):
        a.label(f"L_{nm}")
        flush()
        sh = 0 if MT == 4 else 1
        a(f"s_lshl_b32 s32, s36, {8-sh}"); a(f"s_add_u32 s32, s32, {FL_AT}")
        if MT == 4: wait_flags(a, lambda: (a(f"v_and_b32 v5, 1, v{V_LANE}"), a("v_lshlrev_b32 v5, 7, v5")), 32, 0xffffffff, 128, END, 2)
        else: wait_flags(a, lambda: a("v_mov_b32 v5, 0"), 32, 0xffffffff, 128, END, 1)
        wstamp(a, 1)
        g = Gemm(a, nm, MT, 2, NST, OA_STR, 2048, "plain", xflags="sc1", xr4=True, wperm=True)
        load_srd(a, S_SRDX, 66, OA_OFF, S*OA_STR)
        load_srd(a, S_SRDW, 50, 0, 4096*DM*2)
        g.setup()
        a(f"s_mul_i32 s{S_OFFX}, s36, {64*MT*OA_STR}"); a(f"s_lshl_b32 s{S_OFFW}, s37, 8")
        g.main(64, hook_tail=hook_tail)
        after_main()
        a(f"s_lshr_b32 s32, s36, {sh}"); a("s_lshl_b32 s32, s32, 3"); a("s_add_u32 s32, s32, s37"); a("s_lshl_b32 s32, s32, 6"); a(f"s_add_u32 s32, s32, {FL_DN}")
        wait_flags(a, lambda: a("v_mov_b32 v5, 0"), 32, 0xffffffff, 1, END, 1)
        load_srd(a, 28, 62, 0, S*DM*2)
        load_srd(a, S_SRDX, 40, 0, S*DM*2)
        load_srd(a, S_SRDW, 66, BP_OFF, S*DM*2)
        a(f"s_lshl_b32 s32, s36, {19-sh}"); a("s_lshl_b32 s33, s37, 8")
        g.epi_plain(28, 32, 33, "", final=(S_SRDX, S_SRDW, "sc1"))
        done()
    a.label("L_WR")
    flush()
    wor_item(a, END)
    done()
    a.label("L_qa")
    flush()
    a(f"s_sub_u32 s20, s{S_ITEM}, 0x1000")
    a(f"s_cmp_ge_u32 s20, {NQA}"); a(f"s_cbranch_scc1 {END}")
    Lq = a.newlabel("Px")
    a("s_cmp_ge_u32 s20, 32"); a(f"s_cbranch_scc1 {Lq}")
    for i in range(4): a(f"v_mov_b32 v{4+i}, -1")
    a(f"v_lshlrev_b32 v3, 4, v{V_LANE}"); a("s_lshl_b32 s21, s20, 16"); a(f"s_lshl_b32 s22, s{S_WAVE}, 14"); a("s_add_u32 s21, s21, s22"); a(f"s_add_u32 s21, s21, {EX_OFF}")
    for i in range(16):
        a(f"buffer_store_dwordx4 v[4:7], v3, {sr(S_FL,4)}, s21 offen offset:{(i%4)*1024} sc1")
        if i % 4 == 3: a("s_add_u32 s21, s21, 4096")
    a(f"s_mov_b32 s36, {FL_EX}")
    wstamp(a, 1); wstamp(a, 2)
    finish(a, 36, 1)
    done()
    a.label(Lq)
    a("s_sub_u32 s20, s20, 32")
    a(f"s_cmp_ge_u32 s20, {NBLK*16}"); a("s_cbranch_scc1 L_AT4")
    def attention(npair):
        sh = 0 if npair == 2 else 1
        a("s_lshr_b32 s32, s38, 3"); a("s_lshl_b32 s32, s32, 10"); a(f"s_lshr_b32 s34, s37, {sh}"); a("s_lshl_b32 s33, s34, 8")
        a("s_add_u32 s32, s32, s33"); a(f"s_add_u32 s32, s32, {FL_QKV}")
        wait_flags(a, lambda: (a(f"v_and_b32 v5, 3, v{V_LANE}"), a("v_lshlrev_b32 v5, 6, v5")), 32, 0xffffff, 0x40404, END, 4)
        a("s_lshl_b32 s32, s38, 2"); a("s_add_u32 s32, s32, s34"); a("s_lshl_b32 s32, s32, 7"); a(f"s_add_u32 s32, s32, {FL_STEP}")
        def w():
            wait_flags(a, lambda: a("v_mov_b32 v15, 0"), 32, 0xffffffff, 24, END, 1, 14, 15, 2)
            if PROFW: a("s_memrealtime s[84:85]")
        att_item(a, S_FL, 38, 37, "sc1", "sc1", npair, w, late=(npair == 1))
        if PROFW: a("s_waitcnt lgkmcnt(0)"); a("s_mov_b32 s72, s84"); a("s_mov_b32 s74, s84")
        finish(a, 36, 4*npair)
        done()
    a("s_lshr_b32 s38, s20, 2"); a("s_and_b32 s37, s20, 3")
    a("s_lshr_b32 s36, s20, 4"); a("s_lshl_b32 s36, s36, 7"); a(f"s_add_u32 s36, s36, {FL_AT}")
    attention(2)
    a.label("L_AT4")
    a(f"s_sub_u32 s20, s20, {NBLK*16}"); a("s_lshr_b32 s38, s20, 3"); a("s_and_b32 s37, s20, 7")
    a("s_lshl_b32 s36, s38, 7"); a("s_lshr_b32 s21, s37, 2"); a("s_lshl_b32 s21, s21, 6"); a("s_add_u32 s36, s36, s21")
    a(f"s_add_u32 s36, s36, {FL_ATS}"); a(f"s_add_u32 s38, s38, {4*NBLK}")
    attention(1)
    a.label(END)
    a("s_mov_b64 exec, -1")
    a(f"v_mov_b32 v4, 0x1fff"); a(f"v_mov_b32 v5, {LDS_SCR}")
    a("ds_write_b32 v5, v4")
    a("s_waitcnt lgkmcnt(0)")
    a.label("L_end")
    a("s_endpgm")

def build(path, prof=False, profw=False, force_slow=False, header=""):
    global PROFW
    chain.PROF = prof; PROFW = profw
    a = Asm()
    if header: a.raw(header)
    a.raw("; @launch grid=(256,1,1) block=(256,1,1) lds=163840")
    a.raw('.amdgcn_target "amdgcn-amd-amdhsa--gfx950"')
    a.raw(".text")
    emit_mega(a, MAIN, force_slow)
    a.raw('.section .rodata,"a"')
    kernel_desc(a, MAIN, 512, 256)
    open(path, "w").write(a.text())

if __name__ == "__main__":
    build("parallel_sum__memory_aug_recurrent_mem_tr__glu_gated_geglu__prompt.s", header=open("header.txt").read())
    build("m1.s")
    build("m1_prof.s", prof=True, profw=True)
    chain.FORCE_FALLBACK = True
    build("m1_fb.s")
```

```python
from common import *
from gemm import V_LANE, S_WAVE
import math
S_WS = 8; S_WT = 12; S_X = 16; S_R = 17; S_MODE = 18; S_STEP = 19
CEXP = (DH**-0.5)*math.log2(math.e)
PROF = False
NSTEP = 64
INIT_WAIT = None
FORCE_FALLBACK = False
STAMP = None
IDLE = None
A_READY = None
NYOUNG = 0
INIT_ARRIVE = None
NPOLL = 4
NFLY = 3
PSLEEP = 1
WIN2 = 2
PER2 = 1
RS = 0
RSETS = 1
VLIGHT = False
VS = 0
AS = 0
WIN = 4
PER = 2
GBAR = True
GATE = 'all'
XSLEEP = 6
XGAP = 4
XAHEAD = 2

def ts(a, i):
    if PROF: a(f"s_memtime s[{70+2*i}:{71+2*i}]")
def rts(a, i):
    if PROF: a(f"s_memrealtime s[{90+2*i}:{91+2*i}]")
def ts_store(a, role_id_sreg, tmpv):
    if not PROF: return
    a("s_waitcnt lgkmcnt(0)")
    for i in range(10): a(f"v_writelane_b32 v{tmpv}, s{70+2*i}, {i}")
    a(f"v_writelane_b32 v{tmpv}, s90, 10"); a(f"v_writelane_b32 v{tmpv}, s92, 11")
    a(f"v_writelane_b32 v{tmpv}, s30, 12"); a(f"v_writelane_b32 v{tmpv}, s94, 13"); a(f"v_writelane_b32 v{tmpv}, s4, 14"); a(f"v_writelane_b32 v{tmpv}, s6, 15")
    a(f"s_lshl_b32 s20, s{role_id_sreg}, 6"); a(f"s_add_u32 s20, s20, s{S_STEP}"); a("s_lshl_b32 s20, s20, 2")
    a(f"s_add_u32 s20, s20, s{S_WAVE}"); a("s_lshl_b32 s20, s20, 6"); a(f"s_add_u32 s20, s20, {TS2_OFF}")
    a(f"v_mbcnt_lo_u32_b32 v{tmpv+1}, -1, 0"); a(f"v_lshlrev_b32 v{tmpv+1}, 2, v{tmpv+1}")
    a("s_mov_b64 exec, 0xffff")
    a(f"buffer_store_dword v{tmpv}, v{tmpv+1}, {sr(S_WS,4)}, s20 offen")
    a("s_mov_b64 exec, -1")

def local_store(a, instr):
    L1, L2 = a.newlabel("ls"), a.newlabel("ls")
    a(f"s_cmp_lg_u32 s{S_MODE}, 0")
    a(f"s_cbranch_scc1 {L1}")
    a(instr)
    a(f"s_branch {L2}")
    a.label(L1)
    a(instr + " sc1")
    a.label(L2)

def poll_tail(a, Lretry, abort):
    a("s_add_u32 s30, s30, 1")
    a(f"s_cmp_lt_u32 s30, {POLL_MAX*(8 if PROF else 1)}")
    a(f"s_cbranch_scc1 {Lretry}")
    a(f"s_branch {abort}")

def idx_reg(a, v):
    a(f"v_bfe_u32 v{v}, v{V_LANE}, 3, 1")
    a(f"v_mov_b32 v15, 0x44444444")
    a(f"v_mul_u32_u24 v{v}, 0xaaaa, v{v}")
    a(f"v_lshl_or_b32 v{v}, v{v}, 16, v{v}")
    a(f"v_add_u32 v{v}, v15, v{v}")

def tr_base(a, dst, rowbytes, row_expr, chunk_expr):
    pass

A_SC = 128*1024; A_KX = 140*1024; A_VX = 148*1024
def role_A(a, abort, kv_wait=None, step_done=None):
    L = V_LANE; W = S_WAVE
    VK1, VI, VID, VT0, VT1, VKX, VVX, VVM, VO, VKM, VSW, VSR, VSM, VL16, VKA = 15, 3, 24, 6, 7, 8, 9, 10, 11, 12, 13, 14, 0, 2, 1
    PIECE = 32; STG = [96, 104, 16]; ACC = 112
    Wq = lambda ks, t: ar((ks*2+t)*8, 8)
    Wk0 = lambda ks: vr(128+ks*8, 8)
    head = 21
    a(f"s_lshl_b32 s26, s{S_X}, 3"); a(f"s_add_u32 s26, s26, s{S_R}")
    a(f"v_lshrrev_b32 v2, 4, v{L}"); a(f"v_and_b32 v3, 15, v{L}")
    a("v_lshlrev_b32 v4, 1, v2"); a("v_xor_b32 v3, v3, v4")
    a(f"s_lshl_b32 s20, s{W}, 4"); a("v_add_u32 v2, s20, v2"); a("v_lshlrev_b32 v2, 13, v2")
    a("v_lshlrev_b32 v3, 4, v3")
    for j in range(4):
        if j >= 2: a(f"v_xor_b32 v4, 128, v3")
        else: a("v_mov_b32 v4, v3")
        a(f"v_add_u32 v4, v2, v4"); a(f"v_add_u32 v{32+j}, {4*j*8192}, v4")
    a(f"v_lshrrev_b32 v2, 3, v{L}"); a(f"v_and_b32 v3, 7, v{L}")
    a(f"v_bfe_u32 v4, v{L}, 4, 1"); a("v_lshlrev_b32 v4, 1, v4"); a("v_xor_b32 v3, v3, v4")
    a("v_add_u32 v2, s20, v2"); a("v_lshlrev_b32 v2, 13, v2")
    a("v_lshlrev_b32 v3, 4, v3")
    a("v_add_u32 v36, v2, v3")
    a("v_xor_b32 v3, 64, v3"); a("v_add_u32 v37, v2, v3"); a(f"v_add_u32 v37, {8*8192}, v37")
    a(f"v_lshrrev_b32 v2, 4, v{L}"); a(f"v_bfe_u32 v3, v{L}, 2, 2")
    a("v_lshl_add_u32 v4, v2, 3, v3")
    a(f"v_and_b32 v5, 3, v{L}"); a("v_lshlrev_b32 v5, 3, v5")
    a("v_and_b32 v2, 1, v2")
    a("v_lshl_or_b32 v15, v2, 2, v3"); a(f"v_xor_b32 v15, s{W}, v15")
    a("v_lshlrev_b32 v15, 5, v15"); a("v_lshl_add_u32 v38, v4, 8, v5"); a("v_add_u32 v39, v38, v15")
    a("v_xor_b32 v15, 128, v15"); a("v_add_u32 v40, v38, v15")
    a("v_lshrrev_b32 v3, 1, v3"); a("v_lshl_or_b32 v15, v2, 1, v3"); a(f"v_xor_b32 v15, s{W}, v15")
    a("v_lshlrev_b32 v15, 5, v15"); a(f"v_lshl_add_u32 v{VT0}, v4, 7, v5"); a(f"v_add_u32 v{VT0}, v{VT0}, v15")
    a(f"v_add_u32 v{VT1}, 65536, v{VT0}")
    load_srd(a, S_WT, 44, 0, DM*4096*2)
    load_srd(a, 28, 46, 0, DM*4096*2)
    a("s_lshl_b32 s22, s26, 8")
    a(f"s_lshl_b32 s23, s{W}, 12"); a(f"s_lshl_b32 s24, s{W}, 11"); a("s_add_u32 s24, s24, 16384")
    SLOT = 24576; NSL = 6
    def issue(ks):
        b = (ks % NSL)*SLOT
        for j in range(4):
            a(f"s_add_u32 m0, s23, {b+1024*j}"); a("s_nop 0")
            a(f"buffer_load_dwordx4 v{32+j}, {sr(S_WT,4)}, s22 offen lds")
        for j in range(2):
            a(f"s_add_u32 m0, s24, {b+1024*j}"); a("s_nop 0")
            a(f"buffer_load_dwordx4 v{36+j}, s[28:31], s22 offen lds")
        a(f"s_add_u32 s22, s22, {64*8192}")
    for ks in range(NSL-1):
        issue(ks)
        if ks == 0 and INIT_ARRIVE:
            a(f"s_waitcnt vmcnt({6+NYOUNG})"); a("s_barrier"); INIT_ARRIVE(a)
    for ks in range(16):
        nxt = ks + NSL - 1
        if nxt < 16: issue(nxt)
        a(f"s_waitcnt vmcnt({6*(min(nxt,15)-ks)})")
        a("s_barrier")
        if ks == -99: pass
        b = (ks % NSL)*SLOT
        a(f"v_add_u32 v41, {b}, v39"); a(f"v_add_u32 v42, {b}, v40"); a(f"v_add_u32 v43, {b+16384}, v{VT0}")
        for q in range(4):
            ro = 32*(q >> 1) + 4*(q & 1)
            a(f"ds_read_b64_tr_b16 {ar((ks*2)*8+2*q,2)}, v41 offset:{ro*256}")
            a(f"ds_read_b64_tr_b16 {ar((ks*2+1)*8+2*q,2)}, v42 offset:{ro*256}")
            a(f"ds_read_b64_tr_b16 {vr(128+ks*8+2*q,2)}, v43 offset:{ro*128}")
        a("s_waitcnt lgkmcnt(0)")
        a("s_barrier")
    a("s_lshl_b32 s22, s26, 8"); a("s_add_u32 s22, s22, 128")
    a(f"s_lshl_b32 s24, s{W}, 11")
    for ks in range(16):
        for j in range(2):
            a(f"s_add_u32 m0, s24, {ks*8192+1024*j}"); a("s_nop 0")
            a(f"buffer_load_dwordx4 v{36+j}, s[28:31], s22 offen lds")
        a(f"s_add_u32 s22, s22, {64*8192}")
    a(f"v_lshlrev_b32 v{VL16}, 4, v{L}")
    a(f"v_add_u32 v{VK1}, s24, v{VL16}")
    a("s_waitcnt vmcnt(0)")
    a("s_barrier")
    for half in range(2):
        for k8 in range(8):
            for q in range(4):
                a(f"ds_read_b64_tr_b16 {vr(32+k8*8+2*q,2)}, v{VT0+half} offset:{k8*8192+4096*(q>>1)+512*(q&1)}")
        a("s_waitcnt lgkmcnt(0)")
        a("s_barrier")
        for k8 in range(8):
            for q in range(2):
                a(f"ds_write_b128 v{VK1}, {vr(32+k8*8+4*q,4)} offset:{k8*8192+1024*q}")
        a("s_waitcnt lgkmcnt(0)")
        if half == 0: a(f"v_add_u32 v{VK1}, 65536, v{VK1}")
    a(f"v_mov_b32 v{VT1}, v{VK1}"); a(f"v_subrev_u32 v{VT0}, 65536, v{VK1}")
    idx_reg(a, VI)
    a(f"v_and_b32 v32, 15, v{L}"); a(f"v_bfe_u32 v33, v{L}, 4, 1"); a("v_lshlrev_b32 v33, 2, v33"); a("v_sub_u32 v32, v32, v33")
    a("v_mov_b32 v33, 0x3f80"); a("v_mov_b32 v34, 0x3f800000")
    for h in range(4):
        e = 2*(h & 1) + 8*(h >> 1)
        a(f"v_cmp_eq_u32 vcc, {e}, v32"); a("s_nop 1"); a(f"v_cndmask_b32 v{VID+h}, 0, v33, vcc")
        a(f"v_cmp_eq_u32 vcc, {e+1}, v32"); a("s_nop 1"); a(f"v_cndmask_b32 v{VID+h}, v{VID+h}, v34, vcc")
    a(f"s_lshl_b32 s20, s{W}, 8"); a(f"s_lshl_b32 s21, s{W}, 10")
    a(f"v_add_u32 v{VKX}, s21, v{VL16}")
    a(f"v_lshrrev_b32 v34, 4, v{L}"); a(f"v_and_b32 v33, 7, v{L}"); a("v_lshlrev_b32 v33, 4, v33"); a(f"v_lshl_add_u32 v{VKM}, v34, 7, v33")
    a(f"s_lshl_b32 s21, s{W}, 9"); a(f"v_add_u32 v{VKM}, s21, v{VKM}")
    a(f"v_and_b32 v33, 15, v{L}"); a(f"v_lshrrev_b32 v34, 4, v{L}")
    a(f"v_lshlrev_b32 v{VVM}, 4, v33"); a(f"v_lshl_add_u32 v{VVM}, v34, 2, v{VVM}"); a(f"v_add_u32 v{VVM}, s20, v{VVM}")
    a(f"v_lshlrev_b32 v{VO}, 4, v33"); a(f"v_lshl_add_u32 v{VO}, v34, 7, v{VO}")
    a(f"s_lshl_b32 s21, s{W}, 9"); a(f"s_lshl_b32 s22, s{S_R}, 11"); a("s_add_u32 s21, s21, s22"); a(f"v_add_u32 v{VO}, s21, v{VO}")
    a(f"s_mul_i32 s21, s{W}, 3072"); a(f"s_add_u32 s21, s21, {A_SC}"); a(f"v_add_u32 v{VSW}, s21, v{VL16}")
    a(f"v_and_b32 v35, 7, v{L}"); a(f"v_bfe_u32 v36, v{L}, 3, 1")
    a("v_lshl_add_u32 v37, v34, 4, v35"); a("v_lshlrev_b32 v37, 4, v37"); a(f"v_lshl_add_u32 v{VSR}, v36, 10, v37")
    a(f"v_add_u32 v{VSR}, {A_SC}, v{VSR}")
    a("v_lshl_add_u32 v37, v34, 1, v36")
    a("v_lshrrev_b32 v38, 2, v37"); a("v_add_u32 v38, 2, v38"); a("v_lshl_add_u32 v38, v38, 4, v35"); a("v_lshlrev_b32 v38, 4, v38")
    a("v_and_b32 v37, 3, v37"); a(f"v_lshl_add_u32 v{VSM}, v37, 2, v38"); a(f"v_add_u32 v{VSM}, {A_SC+2048}, v{VSM}")
    a(f"s_lshl_b32 s27, s{W}, 11")
    a(f"v_add_u32 v{VKA}, s27, v{VL16}"); a(f"v_add_u32 v{VKA}, {A_KX}, v{VKA}")
    a(f"v_and_b32 v5, 0x30, v{VL16}"); a("v_lshlrev_b32 v5, 6, v5"); a(f"s_lshl_b32 s20, s{W}, 12"); a("v_add_u32 v5, s20, v5")
    a("s_mov_b32 s34, 0x00ff00ff"); a("s_mov_b32 s35, 0x00ff00ff")
    a("s_mov_b32 s36, 0xff00ff00"); a("s_mov_b32 s37, 0xff00ff00")
    a(f"s_mov_b32 s38, {f2u(CEXP):#x}")
    def kv_prefetch():
        if kv_wait: kv_wait(a)
        a(f"s_lshl_b32 s20, s{S_STEP}, 5"); a("s_add_u32 s20, s20, s26"); a("s_lshl_b32 s20, s20, 13")
        a(f"s_add_u32 s21, s20, {VT_OFF}"); a(f"s_add_u32 s20, s20, {K_OFF}")
        for t in range(2):
            a(f"s_add_u32 m0, s27, {A_KX+1024*t}"); a("s_nop 0")
            a(f"buffer_load_dwordx4 v{VKX}, {sr(S_WS,4)}, s20 offen sc1 lds")
            a(f"s_add_u32 m0, s27, {A_VX+1024*t}"); a("s_nop 0")
            a(f"buffer_load_dwordx4 v{VKX}, {sr(S_WS,4)}, s21 offen sc1 lds")
            if t == 0: a("s_add_u32 s20, s20, 4096"); a("s_add_u32 s21, s21, 4096")
    a(f"s_mov_b32 s{S_STEP}, 0")
    rts(a, 1)
    if INIT_WAIT:
        a("v_mov_b32 v60, v14"); INIT_WAIT(a); a("v_mov_b32 v14, v60")
        A_READY(a)
    kv_prefetch()
    a("s_waitcnt vmcnt(0)")
    a("s_barrier")
    if PROF: a("s_memrealtime s[94:95]")
    def k1read(ks):
        st = STG[ks % 3]; base = VT0 if ks < 8 else VT1
        return [f"ds_read_b128 {vr(st+4*q,4)}, v{base} offset:{(ks%8)*8192+1024*q}" for q in range(2)]
    a.label("L_A_step")
    a("s_mov_b32 s30, 0"); a("s_mov_b32 s32, 0")
    a(f"s_and_b32 s39, s{S_STEP}, 3"); a("s_lshl_b32 s39, s39, 16")
    a(f"s_lshl_b32 s21, s{S_X}, 14"); a("s_add_u32 s25, s39, s21")
    a(f"s_add_u32 s20, s25, {CH_MEM}")
    for i in range(1, 4): a(f"s_add_u32 s{20+i}, s20, {4096*i}")
    for i in range(16): a(f"v_mov_b32 v{ACC+i}, 0")
    def pload(i):
        a(f"buffer_load_dwordx4 {vr(PIECE+4*i,4)}, v{VL16}, {sr(S_WS,4)}, s{20+i//4} offen offset:{(i%4)*1024} sc1")
    def k1r(ks, pos):
        st = STG[pos % 3]; base = VT0 if ks < 8 else VT1
        return [f"ds_read_b128 {vr(st+4*q,4)}, v{base} offset:{(ks%8)*8192+1024*q}" for q in range(2)]
    Lk = [a.newlabel("Ak") for _ in range(5)]
    for q in range(1, 4): a(f"s_cmp_eq_u32 s{W}, {q}"); a(f"s_cbranch_scc1 {Lk[q]}")
    for q in range(4):
        a.label(Lk[q])
        for x in k1r(4*q, 0) + k1r(4*q+1, 1): a(x)
        if q < 3: a(f"s_branch {Lk[4]}")
    a.label(Lk[4])
    def sload(k): a(f"buffer_load_dword v{28+k}, v5, {sr(S_WS,4)}, s20 offen sc1")
    def polls():
        for k in range(NFLY):
            sload(k)
            if k < NFLY-1: a(f"s_sleep {PSLEEP}")
    polls()
    a.label("L_A_poll")
    for k in range(NFLY):
        a(f"s_waitcnt vmcnt({NFLY-1})")
        a(f"v_cmp_eq_u32 vcc, -1, v{28+k}")
        a("s_cbranch_vccz L_A_pre")
        sload(k)
    poll_tail(a, "L_A_poll", abort)
    a.label("L_A_pre")
    for q in range(1, 4): a(f"s_cmp_eq_u32 s{W}, {q}"); a(f"s_cbranch_scc1 L_A_pre{q}")
    for q in range(4):
        a.label(f"L_A_pre{q}")
        for i in range(4): pload(4*q+i)
        a("s_barrier")
        a(f"s_branch L_A_go{q}")
    a.label("L_A_redo")
    a("s_nop 7")
    for i in range(16): a(f"v_mov_b32 v{ACC+i}, 0")
    a("s_add_u32 s32, s32, 1"); a(f"s_cmp_ge_u32 s32, {POLL_MAX}"); a(f"s_cbranch_scc1 {abort}")
    if PROF: a("s_add_u32 s30, s30, 0x10000")
    for i in range(4): pload(i)
    for x in k1r(0, 0) + k1r(1, 1): a(x)
    for q in range(4):
        a.label(f"L_A_go{q}")
        ts(a, 0)
        order = [(4*q + i) % 16 for i in range(16)]
        issued = 4
        for _ in range(WIN2): pload(order[issued]); issued += 1
        for pos, ks in enumerate(order):
            P = vr(PIECE+4*ks, 4)
            if pos in (0, 4, 8, 12): ts(a, 5+pos//4)
            a(f"s_waitcnt vmcnt({issued-1-pos}) lgkmcnt({0 if (pos == 15 or (PROF and pos % 4 == 0)) else 2})")
            a(f"v_smfmac_f32_16x16x64_bf16 {vr(ACC,4)}, {P}, {Wq(ks,0)}, v{VI}")
            if issued < 16: pload(order[issued]); issued += 1
            a(f"v_smfmac_f32_16x16x64_bf16 {vr(ACC+12,4)}, {P}, {vr(STG[pos % 3],8)}, v{VI}")
            rd = k1r(order[pos+2], pos+2) if pos+2 < 16 else []
            for x in rd[:1]: a(x)
            if PER2 > 1 and issued < 16: pload(order[issued]); issued += 1
            a(f"v_smfmac_f32_16x16x64_bf16 {vr(ACC+4,4)}, {P}, {Wq(ks,1)}, v{VI}")
            for x in rd[1:]: a(x)
            if pos == 1: a(f"v_max_u32 v15, v{PIECE+4*order[0]}, v{PIECE+4*ks}")
            elif pos % 2 == 1: a(f"v_max3_u32 v15, v15, v{PIECE+4*order[pos-1]}, v{PIECE+4*ks}")
            if pos == 15: a("v_cmp_eq_u32 vcc, -1, v15")
            a(f"v_smfmac_f32_16x16x64_bf16 {vr(ACC+8,4)}, {P}, {Wk0(ks)}, v{VI}")
        if q < 3: a("s_branch L_A_g1")
    a.label("L_A_g1")
    a("s_cbranch_vccnz L_A_redo")
    ts(a, 1)
    KX = 48; VX = 56; VM = 64; Y = 68; X = 72; T = 72; SX = 84; SM = 96+8
    for t in range(2): a(f"ds_read_b128 {vr(KX+4*t,4)}, v{VKA} offset:{1024*t}")
    for t in range(2): a(f"ds_read_b128 {vr(VX+4*t,4)}, v{VKA} offset:{A_VX-A_KX+1024*t}")
    a("s_lshl_b32 s21, s26, 11"); a("s_add_u32 s20, s39, s21"); a(f"s_add_u32 s24, s20, {CH_VM}")
    a("s_nop 1")
    for t in range(2):
        a(f"v_cvt_pk_bf16_f32 v{X+4*t}, v{ACC+4*t}, v{ACC+4*t+1}"); a(f"v_cvt_pk_bf16_f32 v{X+4*t+1}, v{ACC+4*t+2}, v{ACC+4*t+3}")
        a(f"v_cvt_pk_bf16_f32 v{X+4*t+2}, v{ACC+8+4*t}, v{ACC+8+4*t+1}"); a(f"v_cvt_pk_bf16_f32 v{X+4*t+3}, v{ACC+8+4*t+2}, v{ACC+8+4*t+3}")
    a("s_nop 0")
    a(f"v_mfma_f32_16x16x32_bf16 {vr(ACC+8,4)}, {vr(X,4)}, {vr(VID,4)}, 0")
    a(f"v_mfma_f32_16x16x32_bf16 {vr(ACC+12,4)}, {vr(X+4,4)}, {vr(VID,4)}, 0")
    a("s_nop 0")
    a(f"v_mov_b32 v{VM+1}, 0"); a(f"v_mov_b32 v{VM+3}, 0")
    a(f"s_lshl_b32 s20, s{S_STEP}, 5"); a("s_add_u32 s20, s20, s26"); a("s_lshl_b32 s20, s20, 12"); a(f"s_add_u32 s20, s20, {KVM_OFF}")
    a(f"v_cvt_pk_bf16_f32 v{Y}, v{ACC+8}, v{ACC+9}"); a(f"v_cvt_pk_bf16_f32 v{Y+1}, v{ACC+10}, v{ACC+11}")
    a(f"v_cvt_pk_bf16_f32 v{Y+2}, v{ACC+12}, v{ACC+13}"); a(f"v_cvt_pk_bf16_f32 v{Y+3}, v{ACC+14}, v{ACC+15}")
    a("s_waitcnt lgkmcnt(0)")
    a("s_nop 0")
    a(f"v_mfma_f32_16x16x32_bf16 {vr(T,4)}, {vr(KX,4)}, {vr(Y,4)}, 0")
    a(f"v_mfma_f32_16x16x32_bf16 {vr(T+4,4)}, {vr(KX+4,4)}, {vr(Y,4)}, 0")
    a(f"v_mfma_f32_16x16x32_bf16 {vr(T+8,4)}, {vr(Y,4)}, {vr(Y,4)}, 0")
    a(f"s_cmp_eq_u32 s{S_STEP}, {NSTEP-1}")
    a("s_cbranch_scc1 L_A_last")
    a("s_nop 3")
    a(f"ds_write_b128 v{VSW}, {vr(T,4)}")
    a(f"ds_write_b128 v{VSW}, {vr(T+4,4)} offset:1024")
    a(f"ds_write_b128 v{VSW}, {vr(T+8,4)} offset:2048")
    ts(a, 2)
    a(f"buffer_load_dword v{VM}, v{VVM}, {sr(S_WS,4)}, s24 offen sc1")
    a(f"buffer_load_dword v{VM+2}, v{VVM}, {sr(S_WS,4)}, s24 offen offset:1024 sc1")
    a("s_mov_b64 exec, s[36:37]")
    a(f"buffer_store_dwordx4 {vr(Y,4)}, v{VKM}, {sr(S_WS,4)}, s20 offen sc1")
    a("s_mov_b64 exec, -1")
    a("s_waitcnt lgkmcnt(0)")
    a("s_barrier")
    for pw in range(4):
        a(f"ds_read_b128 {vr(SX+4*pw,4)}, v{VSR} offset:{pw*3072}")
        a(f"ds_read_b32 v{SM+pw}, v{VSM} offset:{pw*3072}")
    a("s_waitcnt lgkmcnt(4)")
    a(f"v_pk_add_f32 {vr(SX,2)}, {vr(SX,2)}, {vr(SX+4,2)}"); a(f"v_pk_add_f32 {vr(SX+2,2)}, {vr(SX+2,2)}, {vr(SX+6,2)}")
    a(f"v_add_f32 v{SM}, v{SM}, v{SM+1}")
    a("s_waitcnt lgkmcnt(0)")
    a(f"v_pk_add_f32 {vr(SX+8,2)}, {vr(SX+8,2)}, {vr(SX+12,2)}"); a(f"v_pk_add_f32 {vr(SX+10,2)}, {vr(SX+10,2)}, {vr(SX+14,2)}")
    a(f"v_add_f32 v{SM+2}, v{SM+2}, v{SM+3}")
    a(f"v_pk_add_f32 {vr(SX,2)}, {vr(SX,2)}, {vr(SX+8,2)}"); a(f"v_pk_add_f32 {vr(SX+2,2)}, {vr(SX+2,2)}, {vr(SX+10,2)}")
    a(f"v_add_f32 v{SM}, v{SM}, v{SM+2}")
    M = SX+4; TM = SX+5
    def fold(op, r):
        a("s_nop 1")
        a(f"{op}_dpp v{r}, v{r}, v{r} row_ror:8 row_mask:0xf bank_mask:0xf")
        for sw in ("v_permlane16_swap_b32", "v_permlane32_swap_b32"):
            a(f"v_mov_b32 v{TM}, v{r}"); a("s_nop 1"); a(f"{sw} v{r}, v{TM}"); a(f"{op} v{r}, v{r}, v{TM}")
    a(f"v_max3_f32 v{M}, v{SX}, v{SX+1}, v{SX+2}"); a(f"v_max3_f32 v{M}, v{M}, v{SX+3}, v{SM}")
    fold("v_max_f32", M)
    a(f"v_mul_f32 v{M}, s38, v{M}")
    for r in (SX, SX+1, SX+2, SX+3, SM): a(f"v_fma_f32 v{r}, v{r}, s38, -v{M}")
    for r in (SX, SX+1, SX+2, SX+3, SM): a(f"v_exp_f32 v{r}, v{r}")
    a("s_waitcnt vmcnt(1)")
    a(f"v_max_u32 v{TM}, v{VM}, v{VM+2}")
    a(f"v_cmp_eq_u32 vcc, -1, v{TM}")
    PX = SX+8; PM = SX+12
    a(f"v_mov_b32 v{PM+1}, 0")
    a(f"v_cvt_pk_bf16_f32 v{PX}, v{SX}, v{SX+1}"); a(f"v_cvt_pk_bf16_f32 v{PX+1}, v{SX+2}, v{SX+3}")
    a(f"v_mov_b32_dpp v{SM+1}, v{SM} row_ror:8 row_mask:0xf bank_mask:0xf")
    a(f"v_add_f32 v{M}, v{SX}, v{SX+1}")
    a(f"v_mov_b32_dpp v{PX+2}, v{PX} row_ror:8 row_mask:0xf bank_mask:0xf")
    a(f"v_mov_b32_dpp v{PX+3}, v{PX+1} row_ror:8 row_mask:0xf bank_mask:0xf")
    a(f"v_cvt_pk_bf16_f32 v{PM}, v{SM}, v{SM+1}")
    a(f"v_add_f32 v{SX+2}, v{SX+2}, v{SX+3}")
    ts(a, 3)
    a(f"v_mfma_f32_16x16x32_bf16 {vr(T,4)}, {vr(VX,4)}, {vr(PX,4)}, 0")
    a(f"v_add_f32 v{M}, v{M}, v{SM}")
    a(f"v_mfma_f32_16x16x32_bf16 {vr(T+4,4)}, {vr(VX+4,4)}, {vr(PX,4)}, 0")
    a(f"v_add_f32 v{M}, v{M}, v{SX+2}")
    a(f"s_cbranch_vccnz L_A_vmfix")
    a.label("L_A_vmok")
    a(f"v_mfma_f32_16x16x16_bf16 {vr(T,4)}, {vr(VM,2)}, {vr(PM,2)}, {vr(T,4)}")
    a(f"v_add_f32_dpp v{M}, v{M}, v{M} row_ror:8 row_mask:0xf bank_mask:0xf")
    a(f"v_mfma_f32_16x16x16_bf16 {vr(T+4,4)}, {vr(VM+2,2)}, {vr(PM,2)}, {vr(T+4,4)}")
    for sw in ("v_permlane16_swap_b32", "v_permlane32_swap_b32"):
        a(f"v_mov_b32 v{TM}, v{M}"); a("s_nop 1"); a(f"{sw} v{M}, v{TM}"); a(f"v_add_f32 v{M}, v{M}, v{TM}")
    a(f"v_rcp_f32 v{M}, v{M}")
    a(f"s_add_u32 s20, s25, {CH_OX}")
    for i in range(8): a(f"v_mul_f32 v{T+i}, v{T+i}, v{M}")
    for i in range(4): a(f"v_cvt_pk_bf16_f32 v{Y+i}, v{T+2*i}, v{T+2*i+1}")
    a("s_mov_b64 exec, s[34:35]")
    local_store(a, f"buffer_store_dwordx4 {vr(Y,4)}, v{VO}, {sr(S_WS,4)}, s20 offen")
    ts(a, 4); rts(a, 0)
    for i in range(4): a(f"v_mov_b32 v{T+i}, -1")
    a(f"s_add_u32 s21, s25, {3*65536}"); a(f"s_and_b32 s21, s21, {4*65536-1}"); a(f"s_add_u32 s21, s21, {CH_OX}")
    local_store(a, f"buffer_store_dwordx4 {vr(T,4)}, v{VO}, {sr(S_WS,4)}, s21 offen")
    a("s_mov_b64 exec, -1")
    if step_done: step_done(a, "A")
    ts_store(a, 26, 60)
    a(f"s_add_u32 s{S_STEP}, s{S_STEP}, 1")
    kv_prefetch()
    if AS: a(f"s_sleep {AS}")
    a("s_branch L_A_step")
    a.label("L_A_vmfix")
    a(f"buffer_load_dword v{VM}, v{VVM}, {sr(S_WS,4)}, s24 offen sc1")
    a(f"buffer_load_dword v{VM+2}, v{VVM}, {sr(S_WS,4)}, s24 offen offset:1024 sc1")
    a("s_waitcnt vmcnt(0)")
    a(f"v_max_u32 v{TM}, v{VM}, v{VM+2}")
    a(f"v_cmp_eq_u32 vcc, -1, v{TM}")
    a("s_cbranch_vccz L_A_vmok")
    poll_tail(a, "L_A_vmfix", abort)
    a.label("L_A_last")
    a("s_mov_b64 exec, s[36:37]")
    a(f"buffer_store_dwordx4 {vr(Y,4)}, v{VKM}, {sr(S_WS,4)}, s20 offen sc1")
    a("s_mov_b64 exec, -1")
    if step_done: step_done(a, "Alast")

R_PS, R_HS, R_GS, R_CS = 2368, 1184, 288, 144
VR_V = 0; VR_R = 16384; VR_X = 40960
SCP = 52
def role_VR(a, abort, step_done=None):
    L = V_LANE; W = S_WAVE
    VI, VL16, VWV, VRV, VWR, VRR, VSV, VSP, VPL2, VSM, VPL = 3, 4, 5, 6, 7, 8, 9, 10, 12, 13, 16
    PIECE = 32; ACC = 48; RD = 64; POIS = 96
    a(f"s_sub_u32 s{S_R}, s{S_R}, 8")
    a(f"s_lshl_b32 s26, s{S_X}, 3"); a(f"s_lshr_b32 s20, s{S_R}, 1"); a("s_add_u32 s26, s26, s20")
    a(f"s_lshl_b32 s27, s{W}, 15")
    a(f"v_lshrrev_b32 v2, 4, v{L}"); a(f"v_bfe_u32 v3, v{L}, 2, 2")
    a(f"v_and_b32 v5, 3, v{L}"); a("v_lshlrev_b32 v5, 3, v5"); a("v_add_u32 v5, s27, v5")
    a("v_and_b32 v6, 1, v2")
    a("v_lshrrev_b32 v7, 1, v3"); a("v_lshl_or_b32 v8, v6, 1, v7")
    a("v_lshl_add_u32 v4, v2, 3, v3"); a("v_lshl_add_u32 v9, v4, 7, v5")
    a("v_lshrrev_b32 v4, 1, v2"); a("v_lshlrev_b32 v4, 3, v4"); a("v_lshl_add_u32 v4, v6, 6, v4"); a("v_lshl_add_u32 v4, v7, 2, v4")
    a("v_and_b32 v10, 1, v3"); a("v_add_u32 v4, v4, v10"); a("v_lshl_add_u32 v10, v4, 7, v5")
    for t in range(4):
        a(f"v_xor_b32 v4, {t}, v8"); a("v_lshlrev_b32 v4, 5, v4")
        a(f"v_add_u32 v{32+t}, v9, v4"); a(f"v_add_u32 v{36+t}, v10, v4")
    for part in range(2):
        stride = 8192 if part == 0 else 2048
        a(f"v_lshrrev_b32 v2, 3, v{L}"); a(f"v_and_b32 v3, 7, v{L}")
        a(f"v_bfe_u32 v4, v{L}, {4 if part == 0 else 5}, 1"); a("v_lshlrev_b32 v4, 1, v4"); a("v_xor_b32 v3, v3, v4")
        a(f"v_lshlrev_b32 v2, {13 if part == 0 else 11}, v2"); a("v_lshlrev_b32 v3, 4, v3")
        a("v_add_u32 v40, v2, v3"); a("v_xor_b32 v3, 64, v3"); a("v_add_u32 v41, v2, v3")
        if part == 0:
            load_srd(a, S_WT, 48, 0, DM*4096*2)
            a("s_lshl_b32 s22, s26, 8"); a(f"s_and_b32 s20, s{S_R}, 1"); a("s_lshl_b32 s20, s20, 7"); a("s_add_u32 s22, s22, s20")
            a(f"s_lshl_b32 s20, s{W}, 21"); a("s_add_u32 s22, s22, s20")
        else:
            load_srd(a, S_WT, 50, 0, 4096*DM*2)
            a(f"s_lshl_b32 s22, s{S_X}, 21"); a(f"s_lshl_b32 s20, s{W}, 19"); a("s_add_u32 s22, s22, s20")
            a(f"s_lshl_b32 s20, s{S_R}, 7"); a("s_add_u32 s22, s22, s20")
        for j in range(32):
            odd = (j & 1) if part == 0 else ((j >> 3) & 1)
            a(f"s_add_u32 m0, s27, {1024*j}"); a("s_nop 0")
            a(f"buffer_load_dwordx4 v{40+odd}, {sr(S_WT,4)}, s22 offen lds")
            a(f"s_add_u32 s22, s22, {8*stride}")
            if part == 0 and j == 5 and INIT_ARRIVE:
                a(f"s_waitcnt vmcnt({6+NYOUNG})"); a("s_barrier"); INIT_ARRIVE(a)
        a("s_waitcnt vmcnt(0)")
        for kk in range(4):
            for t in range(4):
                for q in range(4):
                    if part == 0: off = (64*kk + 32*(q >> 1) + 4*(q & 1))*128
                    else: off = (128*(kk >> 1) + 32*(kk & 1) + 16*(q >> 1) + 2*(q & 1))*128
                    a(f"ds_read_b64_tr_b16 {ar(part*128+(kk*4+t)*8+2*q,2)}, v{32+4*part+t} offset:{off}")
            a("s_waitcnt lgkmcnt(0)")
    a("s_barrier")
    idx_reg(a, VI)
    a(f"v_lshlrev_b32 v{VL16}, 4, v{L}")
    a(f"s_lshl_b32 s20, s{W}, 12")
    a(f"v_add_u32 v{VWV}, s20, v{VL16}")
    a(f"v_add_u32 v2, s20, v{VL16}")
    a(f"s_and_b32 s21, s{W}, 1"); a("s_lshl_b32 s22, s21, 11")
    a(f"v_lshrrev_b32 v14, 5, v{L}"); a(f"v_and_b32 v15, 31, v{L}"); a("v_lshlrev_b32 v15, 4, v15")
    a(f"v_lshl_add_u32 v{VRV}, v14, 10, v15"); a(f"v_add_u32 v{VRV}, s22, v{VRV}")
    a(f"v_and_b32 v15, 15, v{L}"); a("v_lshl_add_u32 v15, v14, 4, v15"); a("v_lshlrev_b32 v15, 4, v15")
    a(f"v_bfe_u32 v14, v{L}, 4, 1"); a(f"v_lshl_add_u32 v{VSV}, v14, 3, v15")
    a("s_lshl_b32 s22, s21, 9"); a(f"s_and_b32 s23, s{S_R}, 1"); a("s_lshl_b32 s23, s23, 10"); a("s_add_u32 s22, s22, s23")
    a(f"v_add_u32 v{VSV}, s22, v{VSV}")
    a(f"s_mul_i32 s22, s{W}, {R_PS}"); a(f"s_add_u32 s22, s22, {VR_R}")
    a(f"v_lshrrev_b32 v14, 5, v{L}"); a(f"v_mul_u32_u24 v{VWR}, {R_GS}, v14")
    a(f"v_bfe_u32 v14, v{L}, 3, 1"); a(f"v_mul_u32_u24 v14, {R_HS}, v14"); a(f"v_add_u32 v{VWR}, v{VWR}, v14")
    a(f"v_bfe_u32 v14, v{L}, 1, 1"); a(f"v_mul_u32_u24 v14, {R_CS}, v14"); a(f"v_add_u32 v{VWR}, v{VWR}, v14")
    a(f"v_bfe_u32 v14, v{L}, 4, 1"); a(f"v_lshl_add_u32 v{VWR}, v14, 6, v{VWR}")
    a(f"v_bfe_u32 v14, v{L}, 2, 1"); a(f"v_lshl_add_u32 v{VWR}, v14, 3, v{VWR}")
    a(f"v_and_b32 v14, 1, v{L}"); a(f"v_lshl_add_u32 v{VWR}, v14, 2, v{VWR}")
    a(f"v_add_u32 v{VWR}, s22, v{VWR}")
    a(f"s_mul_i32 s22, s21, {R_HS}"); a(f"s_add_u32 s22, s22, {VR_R}")
    a(f"v_lshrrev_b32 v14, 4, v{L}"); a(f"v_mul_u32_u24 v{VRR}, {R_GS}, v14")
    a(f"v_bfe_u32 v14, v{L}, 3, 1"); a(f"v_mul_u32_u24 v14, {R_CS}, v14"); a(f"v_add_u32 v{VRR}, v{VRR}, v14")
    a(f"v_and_b32 v14, 7, v{L}"); a(f"v_lshl_add_u32 v{VRR}, v14, 4, v{VRR}")
    a(f"v_add_u32 v{VPL2}, {VR_R}, v{VRR}")
    a(f"v_add_u32 v{VRR}, s22, v{VRR}")
    a(f"s_lshl_b32 s22, s{S_R}, 14")
    for k in range(3):
        a(f"s_add_u32 s23, s{S_X}, {k+1}"); a("s_and_b32 s23, s23, 3"); a("s_lshl_b32 s23, s23, 11"); a("s_add_u32 s23, s23, s22")
        a(f"v_add_u32 v{VPL+k}, s23, v{VL16}")
    a("s_lshl_b32 s23, s21, 10"); a("s_add_u32 s22, s22, s23")
    a(f"s_lshl_b32 s23, s{S_X}, 11"); a("s_add_u32 s22, s22, s23"); a(f"v_add_u32 v{VSP}, s22, v{VL16}")
    a(f"s_lshl_b32 s22, s{S_R}, 10"); a(f"v_add_u32 v{VSM}, s22, v{VL16}")
    for i in range(4): a(f"v_mov_b32 v{POIS+i}, -1")
    a(f"v_and_b32 v23, 7, v{L}"); a("v_lshlrev_b32 v23, 9, v23"); a(f"s_lshl_b32 s22, s{W}, 12"); a("v_add_u32 v23, s22, v23")
    if PROF: a("s_memrealtime s[6:7]")
    if INIT_WAIT: INIT_WAIT(a)
    Lc, Lp = a.newlabel("Cal"), a.newlabel("Cal")
    a(f"s_or_b32 s22, s{S_X}, s{S_R}"); a(f"s_or_b32 s22, s22, s{W}"); a("s_cmp_lg_u32 s22, 0"); a(f"s_cbranch_scc1 {Lc}")
    a("s_mov_b32 s34, 0x100")
    for pg in range(NCOPY//2):
        for c in range(2):
            for k in range(4):
                a(f"s_mov_b32 s23, {CH_PART + pg*2*MB + c*8192 + k*16384 + 1024*k}")
                a("s_memtime s[36:37]")
                a("s_waitcnt lgkmcnt(0)")
                a(f"buffer_load_dword v14, off, {sr(S_WS,4)}, s23 sc1")
                a("s_waitcnt vmcnt(0)")
                a("s_memtime s[38:39]")
                a("s_waitcnt lgkmcnt(0)")
                a("s_sub_u32 s36, s38, s36")
                if k == 0: a(f"s_mov_b32 s{20+c}, s36")
                else: a(f"s_min_u32 s{20+c}, s{20+c}, s36")
        a("s_cmp_lt_u32 s21, s20"); a(f"s_cselect_b32 s36, {1 << pg}, 0"); a("s_or_b32 s34, s34, s36")
    a("v_mov_b32 v14, s34"); a(f"s_mov_b32 s23, {FL_NEAR}")
    a(f"buffer_store_dword v14, off, {sr(S_WS,4)}, s23 sc1")
    a.label(Lc)
    a("s_mov_b32 s30, 0"); a(f"s_mov_b32 s23, {FL_NEAR}")
    a.label(Lp)
    a(f"buffer_load_dword v14, off, {sr(S_WS,4)}, s23 sc1")
    a("s_waitcnt vmcnt(0)")
    a("v_readfirstlane_b32 s34, v14")
    a("s_nop 3")
    a("s_cmp_lg_u32 s34, 0")
    Lq = a.newlabel("Cal")
    a(f"s_cbranch_scc1 {Lq}")
    a("s_sleep 8")
    poll_tail(a, Lp, abort)
    a.label(Lq)
    for c in range(NCOPY):
        a(f"s_bfe_u32 s22, s34, {(c//2) | (1 << 16):#x}"); a("s_lshl_b32 s22, s22, 13"); a(f"s_add_u32 s{SCP+c}, s22, {CH_PART + c*MB}")
    a(f"s_lshl_b32 s28, s{S_X}, 4"); a(f"s_add_u32 s28, s28, s{S_R}"); a("s_add_u32 s28, s28, 32")
    a(f"s_mov_b32 s{S_STEP}, 0")
    if PROF: a("s_memrealtime s[94:95]")

    def gemv(sbase, wbase, tag):
        Lp = a.newlabel("VRp")
        def pl(i): a(f"buffer_load_dwordx4 {vr(PIECE+4*i,4)}, v2, {sr(S_WS,4)}, s{sbase} offen offset:{i*1024} sc1")
        def pc(i):
            a(f"v_cmp_eq_u32 vcc, -1, v{PIECE+4*i}")
        for i in range(16): a(f"v_mov_b32 v{ACC+i}, 0")
        if (tag == "R" and RSETS == 0) or (tag == "V" and VLIGHT):
            Lg, Lr = a.newlabel("VRl"), a.newlabel("VRl")
            def sl(k): a(f"buffer_load_dword v{24+k}, v23, {sr(S_WS,4)}, s{sbase} offen sc1")
            for k in range(3):
                sl(k)
                if k < 2: a("s_sleep 1")
            a.label(Lp)
            for k in range(3):
                a("s_waitcnt vmcnt(2)")
                a(f"v_cmp_eq_u32 vcc, -1, v{24+k}")
                a(f"s_cbranch_vccz {Lg}")
                sl(k)
            poll_tail(a, Lp, abort)
            a.label(Lr)
            a("s_nop 7")
            for i in range(16): a(f"v_mov_b32 v{ACC+i}, 0")
            a("s_add_u32 s30, s30, 1"); a(f"s_cmp_ge_u32 s30, {POLL_MAX*(8 if PROF else 1)}"); a(f"s_cbranch_scc1 {abort}")
            a.label(Lg)
            for i in range(4): pl(i)
            for kk in range(4):
                a(f"s_waitcnt vmcnt({3-kk})")
                for t in range(4):
                    a(f"v_smfmac_f32_16x16x64_bf16 {vr(ACC+4*t,4)}, {vr(PIECE+4*kk,4)}, {ar(wbase+(kk*4+t)*8,8)}, v{VI}")
                    if kk == 3 and t == 0: a(f"v_max3_u32 v15, v{PIECE}, v{PIECE+4}, v{PIECE+8}")
                    if kk == 3 and t == 1: a(f"v_max_u32 v15, v15, v{PIECE+12}")
                    if kk == 3 and t == 2: a("v_cmp_eq_u32 vcc, -1, v15")
            a(f"s_cbranch_vccnz {Lr}")
            return
        PB = [PIECE, 148]
        def pp(h, st):
            for i in (2*h, 2*h+1): a(f"buffer_load_dwordx4 {vr(PB[st]+4*i,4)}, v2, {sr(S_WS,4)}, s{sbase} offen offset:{i*1024} sc1")
        def mm(h, st):
            for kk in (2*h, 2*h+1):
                for t in range(4):
                    a(f"v_smfmac_f32_16x16x64_bf16 {vr(ACC+4*t,4)}, {vr(PB[st]+4*kk,4)}, {ar(wbase+(kk*4+t)*8,8)}, v{VI}")
        def ck(h, st):
            a(f"v_max_u32 v15, v{PB[st]+8*h}, v{PB[st]+8*h+4}"); a("v_cmp_eq_u32 vcc, -1, v15")
        nset = 2 if (tag == "R" and RSETS == 2) else 1
        slots = [(h, st) for st in range(nset) for h in range(2)]
        Lf = {x: a.newlabel("VRf") for x in slots}; Le = a.newlabel("VRe")
        for n, (h, st) in enumerate(slots):
            pp(h, st)
            if n < len(slots)-1: a(f"s_sleep {2 if nset == 1 else 1}")
        a.label(Lp)
        for h, st in slots:
            a(f"s_waitcnt vmcnt({2*len(slots)-2})")
            ck(h, st)
            a(f"s_cbranch_vccz {Lf[(h, st)]}")
            pp(h, st)
        poll_tail(a, Lp, abort)
        for n, (h, st) in enumerate(slots):
            o = 1-h
            a.label(Lf[(h, st)])
            mm(h, st)
            rest = [slots[(n+k) % len(slots)] for k in range(1, len(slots))]
            mine = [(k, x) for k, x in enumerate(rest) if x[0] == o]
            Lg = {x[1]: a.newlabel("VRg") for _, x in mine}
            for k, x in mine:
                a(f"s_waitcnt vmcnt({2*(len(rest)-1-k) + 2*sum(1 for k2, _ in mine if k2 < k)})")
                ck(*x)
                a(f"s_cbranch_vccz {Lg[x[1]]}")
                pp(*x)
            Lq = a.newlabel("VRq")
            a.label(Lq)
            for k, x in mine:
                a(f"s_waitcnt vmcnt({2*len(mine)-2})")
                ck(*x)
                a(f"s_cbranch_vccz {Lg[x[1]]}")
                pp(*x)
            poll_tail(a, Lq, abort)
            for k, x in mine:
                a.label(Lg[x[1]])
                mm(*x)
                a(f"s_branch {Le}")
        a.label(Le)
    def sum8():
        for i in range(1, 8):
            a(f"s_waitcnt lgkmcnt({7-i})")
            a(f"v_pk_add_f32 {vr(RD,2)}, {vr(RD,2)}, {vr(RD+4*i,2)}"); a(f"v_pk_add_f32 {vr(RD+2,2)}, {vr(RD+2,2)}, {vr(RD+4*i+2,2)}")

    a.label("L_VR_step")
    a("s_mov_b32 s30, 0")
    a(f"s_and_b32 s35, s{S_STEP}, 3"); a("s_lshl_b32 s39, s35, 16")
    a(f"s_lshl_b32 s21, s{S_X}, 14"); a("s_add_u32 s25, s39, s21")
    a(f"s_add_u32 s20, s25, {CH_MEM}")
    gemv(20, 0, "V")
    ts(a, 0)
    a("s_lshl_b32 s21, s26, 11"); a("s_add_u32 s20, s39, s21"); a(f"s_add_u32 s20, s20, {CH_VM}"); a("s_nop 0")
    a(f"s_lshl_b32 s21, s{S_STEP}, 5"); a("s_add_u32 s21, s21, s26"); a("s_lshl_b32 s21, s21, 12"); a(f"s_add_u32 s21, s21, {KVM_OFF+2048}")
    a(f"ds_write_b128 v{VWV}, {vr(ACC,4)}")
    for t in range(1, 4): a(f"ds_write_b128 v{VWV}, {vr(ACC+4*t,4)} offset:{1024*t}")
    a("s_waitcnt lgkmcnt(0)")
    a("s_barrier")
    for i in range(8): a(f"ds_read_b128 {vr(RD+4*i,4)}, v{VRV} offset:{(i>>1)*4096+(i&1)*512}")
    sum8()
    a(f"v_cvt_pk_bf16_f32 v{RD}, v{RD}, v{RD+1}"); a(f"v_cvt_pk_bf16_f32 v{RD+1}, v{RD+2}, v{RD+3}")
    Lk, Le = a.newlabel("VRk"), a.newlabel("VRe")
    a(f"s_cmp_ge_u32 s{W}, 2"); a(f"s_cbranch_scc1 {Lk}")
    local_store(a, f"buffer_store_dwordx2 {vr(RD,2)}, v{VSV}, {sr(S_WS,4)}, s20 offen")
    a(f"s_branch {Le}")
    a.label(Lk)
    a(f"buffer_store_dwordx2 {vr(RD,2)}, v{VSV}, {sr(S_WS,4)}, s21 offen sc1")
    a.label(Le)
    ts(a, 1)
    a(f"s_cmp_eq_u32 s{S_STEP}, {NSTEP-1}")
    a("s_cbranch_scc1 L_VR_last")
    a(f"s_add_u32 s22, s35, 2"); a("s_and_b32 s22, s22, 3"); a("s_lshl_b32 s22, s22, 18")
    Lq, Lq2 = a.newlabel("VRq"), a.newlabel("VRq")
    a(f"s_cmp_lt_u32 s{S_STEP}, 2"); a(f"s_cbranch_scc1 {Lq}")
    a(f"s_cmp_ge_u32 s{W}, 2"); a(f"s_cbranch_scc1 {Lq2}")
    for c in range(NCOPY):
        if c == NCOPY//2:
            a(f"s_branch {Lq}"); a.label(Lq2)
        a(f"s_add_u32 s23, s22, s{SCP+c}")
        a(f"buffer_store_dwordx4 {vr(POIS,4)}, v{VSP}, {sr(S_WS,4)}, s23 offen sc1")
    a.label(Lq)
    Lq = a.newlabel("VRq")
    a(f"s_cmp_eq_u32 s{W}, 3"); a(f"s_cbranch_scc1 {Lq}")
    a(f"s_cmp_eq_u32 s{S_STEP}, 0"); a(f"s_cbranch_scc1 {Lq}")
    Lq2 = a.newlabel("VRq")
    a(f"s_cmp_eq_u32 s{W}, 2"); a(f"s_cbranch_scc1 {Lq2}")
    a(f"s_sub_u32 s22, s20, {CH_VM}"); a(f"s_add_u32 s22, s22, {3*65536}"); a(f"s_and_b32 s22, s22, {4*65536-1}"); a(f"s_add_u32 s22, s22, {CH_VM}")
    local_store(a, f"buffer_store_dwordx2 {vr(POIS,2)}, v{VSV}, {sr(S_WS,4)}, s22 offen")
    a(f"s_branch {Lq}")
    a.label(Lq2)
    a(f"s_add_u32 s22, s25, {3*65536}"); a(f"s_and_b32 s22, s22, {4*65536-1}"); a(f"s_add_u32 s22, s22, {CH_MEM}")
    local_store(a, f"buffer_store_dwordx4 {vr(POIS,4)}, v{VSM}, {sr(S_WS,4)}, s22 offen")
    a.label(Lq)
    if RS: a(f"s_sleep {RS}")
    a(f"s_add_u32 s20, s25, {CH_OX}")
    gemv(20, 128, "R")
    ts(a, 2)
    a(f"s_lshl_b32 s20, s35, 18")
    for c in range(NCOPY): a(f"s_add_u32 s{84+c}, s20, s{SCP+c}")
    a("s_nop 0")
    for p in range(2):
        for r in range(4): a(f"v_permlane32_swap_b32 v{ACC+8*p+r}, v{ACC+8*p+4+r}")
        for r in range(0, 4, 2): a(f"v_pk_add_f32 {vr(ACC+8*p+r,2)}, {vr(ACC+8*p+r,2)}, {vr(ACC+8*p+4+r,2)}")
        for r in range(4): a(f"ds_write_b32 v{VWR}, v{ACC+8*p+r} offset:{2*p*R_GS+r*16}")
    a(f"s_add_u32 s22, s25, {65536}"); a(f"s_and_b32 s22, s22, {4*65536-1}"); a(f"s_add_u32 s22, s22, {CH_MEM}")
    Lx = a.newlabel("Xe"); Lpo = a.newlabel("Xpo")
    a(f"s_cmp_ge_u32 s{W}, 2")
    a("s_waitcnt lgkmcnt(0)")
    a("s_barrier")
    a(f"s_cbranch_scc1 {Lpo}")
    for i in range(4): a(f"ds_read_b128 {vr(RD+4*i,4)}, v{VRR} offset:{i*R_PS}")
    a("s_waitcnt lgkmcnt(2)")
    a(f"v_pk_add_f32 {vr(RD,2)}, {vr(RD,2)}, {vr(RD+4,2)}"); a(f"v_pk_add_f32 {vr(RD+2,2)}, {vr(RD+2,2)}, {vr(RD+6,2)}")
    a("s_waitcnt lgkmcnt(0)")
    a(f"v_pk_add_f32 {vr(RD+8,2)}, {vr(RD+8,2)}, {vr(RD+12,2)}"); a(f"v_pk_add_f32 {vr(RD+10,2)}, {vr(RD+10,2)}, {vr(RD+14,2)}")
    a(f"v_pk_add_f32 {vr(RD,2)}, {vr(RD,2)}, {vr(RD+8,2)}"); a(f"v_pk_add_f32 {vr(RD+2,2)}, {vr(RD+2,2)}, {vr(RD+10,2)}")
    for c in range(NCOPY):
        a(f"buffer_store_dwordx4 {vr(RD,4)}, v{VSP}, {sr(S_WS,4)}, s{84+c} offen sc1")
        if c == 0: ts(a, 3); rts(a, 0)
    if VS: a(f"s_sleep {VS}")
    a(f"s_branch {Lx}")
    a.label(Lpo)
    L3 = a.newlabel("X3")
    a(f"s_cmp_lg_u32 s{W}, 3"); a(f"s_cbranch_scc1 {L3}")
    if step_done: step_done(a, "V3")
    if VS: a(f"s_sleep {VS+3}")
    a(f"s_branch {Lx}")
    a.label(L3)
    XS = lambda c: 100 + 24*c
    def xl(c):
        for k in range(3):
            for h in range(2): a(f"buffer_load_dwordx4 {vr(XS(c)+8*k+4*h,4)}, v{VPL+k}, {sr(S_WS,4)}, s{84+c} offen offset:{h*1024} sc1")
    for h in range(2):
        for i in range(4): a(f"ds_read_b128 {vr(RD+16*h+4*i,4)}, v{VPL2} offset:{i*R_PS+h*R_HS}")
    for h in range(2):
        b = RD+16*h
        a(f"s_waitcnt lgkmcnt({4-4*h})")
        for k in (0, 2): a(f"v_pk_add_f32 {vr(b+k,2)}, {vr(b+k,2)}, {vr(b+4+k,2)}")
        for k in (0, 2): a(f"v_pk_add_f32 {vr(b+8+k,2)}, {vr(b+8+k,2)}, {vr(b+12+k,2)}")
        for k in (0, 2): a(f"v_pk_add_f32 {vr(RD+4*h+k,2)}, {vr(b+k,2)}, {vr(b+8+k,2)}")
    ts(a, 3); rts(a, 0)
    if XSLEEP: a(f"s_sleep {XSLEEP}")
    Lg = [a.newlabel("Xg") for _ in range(NCOPY)]; Lj = a.newlabel("Xj"); Lp = a.newlabel("Xp")
    def xc(c):
        b = XS(c)
        a(f"v_max3_u32 v15, v{b}, v{b+4}, v{b+8}")
        a(f"v_max3_u32 v15, v15, v{b+12}, v{b+16}")
        a(f"v_max_u32 v15, v15, v{b+20}")
        a("v_cmp_eq_u32 vcc, -1, v15")
        a(f"s_cbranch_vccz {Lg[c]}")
    for c in range(XAHEAD):
        xl(c)
        if c < XAHEAD-1: a(f"s_sleep {XGAP}")
    for c in range(NCOPY):
        a(f"s_waitcnt vmcnt({6*(min(c+XAHEAD, NCOPY)-1-c)})")
        xc(c)
        if c+XAHEAD < NCOPY: xl(c+XAHEAD)
        if PROF: a("s_add_u32 s30, s30, 0x10000")
    a.label(Lp)
    xl(NCOPY-1)
    a("s_waitcnt vmcnt(0)")
    xc(NCOPY-1)
    poll_tail(a, Lp, abort)
    for c in range(NCOPY):
        a.label(Lg[c])
        b = XS(c)
        for k in range(0, 8, 2): a(f"v_pk_add_f32 {vr(RD+k,2)}, {vr(RD+k,2)}, {vr(b+8+k,2)}")
        for k in range(0, 8, 2): a(f"v_pk_add_f32 {vr(RD+8+k,2)}, {vr(b+k,2)}, {vr(b+16+k,2)}")
        if c < NCOPY-1: a(f"s_branch {Lj}")
    a.label(Lj)
    for k in range(0, 8, 2): a(f"v_pk_add_f32 {vr(RD+k,2)}, {vr(RD+k,2)}, {vr(RD+8+k,2)}")
    for k in range(4): a(f"v_cvt_pk_bf16_f32 v{RD+k}, v{RD+2*k}, v{RD+2*k+1}")
    local_store(a, f"buffer_store_dwordx4 {vr(RD,4)}, v{VSM}, {sr(S_WS,4)}, s22 offen")
    a.label(Lx)
    ts(a, 4); rts(a, 1)
    ts_store(a, 28, 60)
    a(f"s_add_u32 s{S_STEP}, s{S_STEP}, 1")
    a("s_branch L_VR_step")
    a.label("L_VR_last")
    if step_done: step_done(a, "Vlast")

NCH = 24
def assign_roles(a, abort, lds_scratch):
    a("s_getreg_b32 s31, hwreg(HW_REG_XCC_ID)"); a("s_and_b32 s31, s31, 7")
    Lw, Lp, Lg, Lt, Lt2 = [a.newlabel("R") for _ in range(5)]
    L0 = a.newlabel("R")
    a(f"s_cmp_eq_u32 s{S_WAVE}, 0"); a(f"s_cbranch_scc1 {L0}")
    if IDLE: IDLE(a)
    a(f"s_branch {Lw}")
    a.label(L0)
    load_srd(a, 20, 64, 0, 256)
    a("s_mov_b32 s30, 0")
    a("s_cmp_lg_u32 s2, 0"); a(f"s_cbranch_scc1 {Lt}")
    a("s_memrealtime s[24:25]"); a("s_waitcnt lgkmcnt(0)")
    a("s_lshl_b32 s24, s24, 3"); a("s_bitset1_b32 s24, 31")
    a("v_mov_b32 v2, s24")
    a("buffer_store_dword v2, off, s[20:23], 0 sc1")
    a(f"s_branch {Lt2}")
    a.label(Lt)
    a("buffer_load_dword v60, off, s[20:23], 0 sc1")
    a("s_waitcnt vmcnt(0)")
    a("v_readfirstlane_b32 s24, v60")
    a("s_memrealtime s[26:27]"); a("s_waitcnt lgkmcnt(0)")
    a("s_add_u32 s26, s26, 64"); a("s_lshl_b32 s26, s26, 3"); a("s_sub_u32 s26, s26, s24"); a("s_bitset0_b32 s26, 31")
    a("s_cmp_eq_u32 s24, 0"); a("s_cselect_b32 s26, -1, s26")
    a(f"s_cmp_lt_u32 s26, {15000*8}"); a(f"s_cbranch_scc1 {Lt2}")
    a("s_sleep 2")
    poll_tail(a, Lt, abort)
    a.label(Lt2)
    a("s_mov_b32 s101, s24")
    a("s_or_b32 s25, s24, s31"); a("v_mov_b32 v2, s25"); a("s_lshl_b32 s26, s2, 2"); a(f"s_add_u32 s26, s26, {TBL_OFF}")
    a("s_mov_b64 exec, 1")
    a(f"buffer_store_dword v2, off, {sr(S_WS,4)}, s26 sc1")
    a("s_mov_b64 exec, -1")
    a(f"v_lshlrev_b32 v3, 2, v{V_LANE}"); a(f"s_mov_b32 s26, {TBL_OFF}"); a("s_mov_b32 s30, 0")
    Lf, Lf2 = a.newlabel("R"), a.newlabel("R")
    a("s_cmp_eq_u32 s2, 0"); a(f"s_cbranch_scc1 {Lp}")
    a("s_mov_b32 s25, 128")
    a.label(Lf)
    a("s_sleep 4")
    a("buffer_load_dword v5, off, s[20:23], s25 sc1")
    a("s_waitcnt vmcnt(0)")
    a("v_cmp_ne_u32 vcc, s24, v5")
    a(f"s_cbranch_vccz {Lp}")
    poll_tail(a, Lf, abort)
    a.label(Lp)
    for k in range(4): a(f"buffer_load_dword v{8+k}, v3, {sr(S_WS,4)}, s26 offen offset:{256*k} sc1")
    a("s_waitcnt vmcnt(0)")
    for k in range(4): a(f"v_xor_b32 v{8+k}, s24, v{8+k}")
    a("v_or_b32 v5, v8, v9"); a("v_or3_b32 v5, v5, v10, v11")
    a("v_cmp_lt_u32 vcc, 7, v5")
    a(f"s_cbranch_vccz {Lg}")
    a("s_sleep 2")
    poll_tail(a, Lp, abort)
    a.label(Lg)
    a("s_cmp_lg_u32 s2, 0"); a(f"s_cbranch_scc1 {Lf2}")
    a("v_mov_b32 v5, s24"); a("s_mov_b32 s25, 128")
    a("buffer_store_dword v5, off, s[20:23], s25 sc1")
    a.label(Lf2)
    a("s_mov_b32 s32, 0")
    for x in range(8):
        a("s_mov_b32 s25, 0")
        for k in range(4):
            a(f"v_cmp_eq_u32 vcc, {x}, v{8+k}"); a("s_nop 0"); a("s_bcnt1_i32_b64 s27, vcc"); a("s_add_u32 s25, s25, s27")
        a(f"v_writelane_b32 v5, s25, {x}")
    for k in range(4):
        a(f"v_add_u32 v2, {64*k}, v{V_LANE}")
        a(f"v_cmp_eq_u32 vcc, s31, v{8+k}"); a("v_cmp_gt_u32 s[26:27], s2, v2"); a("s_nop 0")
        a("s_and_b64 vcc, vcc, s[26:27]"); a("s_bcnt1_i32_b64 s27, vcc"); a("s_add_u32 s32, s32, s27")
    a("v_writelane_b32 v5, s32, 8"); a("v_writelane_b32 v5, s101, 9")
    a(f"v_mov_b32 v4, {lds_scratch}")
    a(f"v_lshl_add_u32 v3, v{V_LANE}, 2, v4")
    a("s_mov_b64 exec, 0x3ff")
    a("ds_write_b32 v3, v5")
    a("s_mov_b64 exec, -1")
    a("s_waitcnt lgkmcnt(0)")
    a.label(Lw)
    a("s_barrier")
    a("s_getreg_b32 s31, hwreg(HW_REG_XCC_ID)"); a("s_and_b32 s31, s31, 7")
    a(f"v_mov_b32 v12, {lds_scratch}")
    a(f"v_and_b32 v3, 15, v{V_LANE}"); a("v_lshl_add_u32 v3, v3, 2, v12")
    a("ds_read_b32 v13, v3")
    a("s_waitcnt lgkmcnt(0)")
    a("v_readlane_b32 s32, v13, 8"); a("v_readlane_b32 s101, v13, 9")
    a("s_mov_b32 s33, 0"); a("s_mov_b32 s25, 256")
    for i in range(8):
        a(f"v_readlane_b32 s24, v13, {i}"); a("s_nop 0")
        a("s_min_u32 s25, s25, s24")
        a(f"s_cmp_gt_u32 s31, {i}"); a("s_cselect_b32 s24, s24, 0"); a("s_add_u32 s33, s33, s24")
    a("s_add_u32 s33, s33, s32")
    a("s_barrier")
    Ls, Le = a.newlabel("Rs"), a.newlabel("Re")
    if FORCE_FALLBACK: a("s_mov_b32 s25, 0")
    a("s_cmp_lt_u32 s25, 32"); a(f"s_cbranch_scc1 {Ls}")
    a(f"s_mov_b32 s{S_MODE}, 0"); a(f"s_mov_b32 s{S_X}, s31"); a(f"s_mov_b32 s{S_R}, s32")
    a("s_cmp_lt_u32 s31, 4"); a("s_cselect_b32 s29, 1, 0")
    a(f"s_cmp_lt_u32 s32, {NCH}"); a("s_cselect_b32 s29, s29, 0")
    a(f"s_branch {Le}")
    a.label(Ls)
    a(f"s_mov_b32 s{S_MODE}, 1")
    a(f"s_mul_i32 s{S_X}, s33, 2731"); a(f"s_lshr_b32 s{S_X}, s{S_X}, 16")
    a(f"s_mul_i32 s24, s{S_X}, {NCH}"); a(f"s_sub_u32 s{S_R}, s33, s24")
    a(f"s_cmp_lt_u32 s33, {4*NCH}"); a("s_cselect_b32 s29, 1, 0")
    a.label(Le)
```

```python
from gemm import *
import math

PLACE16 = 4
class Gemm16(Gemm):
    def __init__(s, a, tag, strX, strW, wmap, swap=False, xflags=""):
        super().__init__(a, tag, 4, 4, 2, strX, strW, wmap, swap=swap, xflags=xflags)
    def acc(s, mt, nt): return (mt*8 + nt)*4
    def fx(s, st, mt): return V_FR + st*64 + mt*4
    def fw(s, st, nt): return V_FR + st*64 + 32 + nt*4

    def setup(s):
        a = s.a; L = V_LANE
        a(f"v_lshrrev_b32 v3, 4, v{L}"); a(f"v_and_b32 v4, 7, v{L}"); a("v_xor_b32 v3, v3, v4")
        a(f"v_lshrrev_b32 v2, 3, v{L}"); a(f"s_lshl_b32 s21, s{S_WAVE}, 6"); a("v_add_u32 v2, s21, v2")
        a(f"s_mov_b32 s22, {s.strX}"); a("v_mul_lo_u32 v2, v2, s22")
        a("v_lshlrev_b32 v3, 4, v3"); a("v_xor_b32 v4, 64, v3")
        a("v_add_u32 v3, v2, v3"); a("v_add_u32 v4, v2, v4")
        for j in range(8): a(f"v_add_u32 v{V_DX+j}, {8*j*s.strX}, v{3+(j&1)}")
        a(f"v_lshrrev_b32 v2, 4, v{L}"); a(f"v_and_b32 v3, 15, v{L}"); a("v_lshlrev_b32 v4, 1, v2"); a("v_xor_b32 v3, v3, v4")
        a(f"s_and_b32 s21, s{S_WAVE}, 1"); a("s_lshl_b32 s21, s21, 5"); a("v_add_u32 v2, s21, v2")
        a(f"s_mov_b32 s22, {s.strW}"); a("v_mul_lo_u32 v2, v2, s22")
        if s.wmap == "head":
            a(f"s_lshr_b32 s23, s{S_WAVE}, 1"); a("s_lshl_b32 s23, s23, 7"); a("v_add_u32 v2, s23, v2")
            a("v_lshrrev_b32 v4, 3, v3"); a("v_lshlrev_b32 v4, 8, v4"); a("v_and_b32 v3, 7, v3"); a("v_lshl_add_u32 v3, v3, 4, v4")
            a("v_xor_b32 v4, 256, v3")
        else:
            a("v_lshlrev_b32 v3, 4, v3"); a("v_xor_b32 v4, 128, v3")
        a("v_add_u32 v3, v2, v3"); a("v_add_u32 v4, v2, v4")
        for j in range(8): a(f"v_add_u32 v{V_DW+j}, {4*j*s.strW}, v{3+((j>>1)&1)}")
        a(f"s_lshl_b32 s{S_M0X}, s{S_WAVE}, 13"); a(f"s_add_u32 s{S_M0W}, s{S_M0X}, {s.XS}")
        a(f"v_and_b32 v2, 15, v{L}"); a("v_lshrrev_b32 v3, 1, v2"); a(f"v_lshrrev_b32 v4, 4, v{L}"); a("v_xor_b32 v3, v3, v4")
        a(f"s_lshr_b32 s21, s{S_WAVE}, 1"); a("s_lshl_b32 s21, s21, 7"); a("v_add_u32 v2, s21, v2"); a("v_lshlrev_b32 v2, 7, v2")
        a(f"v_lshl_add_u32 v{V_RA}, v3, 4, v2"); a(f"v_xor_b32 v{V_RA+1}, 64, v{V_RA}")
        a(f"v_bfe_u32 v3, v{L}, 2, 2"); a("v_lshl_add_u32 v2, v4, 3, v3"); a("v_lshlrev_b32 v2, 8, v2")
        a(f"v_and_b32 v5, 3, v{L}"); a("v_lshl_add_u32 v2, v5, 3, v2"); a(f"v_add_u32 v2, {s.XS}, v2")
        a("v_and_b32 v4, 1, v4"); a("v_lshl_or_b32 v3, v4, 2, v3")
        a(f"s_and_b32 s21, s{S_WAVE}, 1"); a("s_lshl_b32 s21, s21, 2"); a("v_xor_b32 v3, s21, v3")
        for t in range(4):
            a(f"v_xor_b32 v4, {t}, v3"); a(f"v_lshl_add_u32 v{V_RA+2+t}, v4, 5, v2")
        for r in range(6): a(f"v_add_u32 v{V_RA+6+r}, {s.SS}, v{V_RA+r}")

    def reads(s, buf, ks, st):
        ra = V_RA + 6*buf
        xs = [f"ds_read_b128 {vr(s.fx(st,mt),4)}, v{ra+ks} offset:{mt*2048}" for mt in range(8)]
        ws = [f"ds_read_b64_tr_b16 {vr(s.fw(st,nt)+2*q,2)}, v{ra+2+(nt&3)} offset:{(nt>>2)*16384+(32*ks+4*q)*256}" for nt in range(8) for q in range(2)]
        return ws[:2] + xs + ws[2:]
    def mfmas(s, st, zero=False):
        m = []
        for nt in range(8):
            for mt in range(8):
                c = s.acc(mt, nt); A, B = vr(s.fw(st,nt),4), vr(s.fx(st,mt),4)
                if s.swap: A, B = B, A
                m.append(f"v_mfma_f32_16x16x32_bf16 {ar(c,4)}, {A}, {B}, {'0' if zero else ar(c,4)}")
        return m
    def kstep(s, st, reads, dmas, zero=False, tail=None, pre=None, late=None):
        a = s.a; m = s.mfmas(st, zero); gaps = [[] for _ in m]
        P = PLACE16
        if not dmas:
            for i, r in enumerate(reads): gaps[2*i].append(r)
        elif P == 0:
            for i, g in enumerate(dmas): gaps[2*i].append(g[0]); gaps[2*i+1].append(g[2])
            for i, r in enumerate(reads): gaps[2*i].append(r)
        elif P == 1:
            for i, r in enumerate(reads): gaps[i].append(r)
            for i, g in enumerate(dmas): gaps[24+2*i].append(g[0]); gaps[25+2*i].append(g[2])
        elif P == 2:
            for i, g in enumerate(dmas): gaps[2*i].append(g[0]); gaps[2*i+1].append(g[2])
            o = 2*len(dmas); per = (56-o)
            for i, r in enumerate(reads): gaps[o + i*per//24].append(r)
        elif P == 3:
            for i, g in enumerate(dmas): gaps[3*i].append(g[0]); gaps[3*i+1].append(g[2])
            slots = [x for x in range(58) if x % 3 != 1]
            for i, r in enumerate(reads): gaps[slots[i*len(slots)//26]].append(r)
        elif P >= 4:
            for i, g in enumerate(dmas): gaps[4*i].append(g[0]); gaps[4*i+1].append(g[2])
            slots = [x for x in range(56) if x % 4 >= 2]
            for i, r in enumerate(reads): gaps[slots[i]].append(r)
        for pos, g in (late or []): gaps[pos-1].append(g[0]); gaps[pos].append(g[2])
        a("s_waitcnt lgkmcnt(0)")
        for x in (pre or []): a(x)
        for i, x in enumerate(m):
            if tail is not None and i == 56:
                for y in tail: a(y)
            a(x)
            for y in gaps[i]: a(y)
    def phase(s, bcur, dma, vm, head=False, nexthead=False):
        bn = bcur ^ 1
        d = s.dma_groups(bcur) if dma else []
        if head: d = d[2:]
        junk = []
        if dma and s.junk:
            m0, v, srds, so = s.junk
            junk = [[f"s_mov_b32 m0, {m0}", None, f"buffer_load_dwordx4 v{v}, {sr(r,4)}, s{so} offen lds"] for r in srds]
        if PLACE16 < 4: d = d + junk
        s.kstep(1, s.reads(bn, 0, 0), d)
        tail = [f"s_waitcnt vmcnt({vm+len(junk)}) lgkmcnt(0)" if vm is not None else "s_waitcnt lgkmcnt(0)", "s_barrier"]
        pre = s.advance() if dma else []
        late = [(4*i+1, g) for i, g in enumerate(junk)] if PLACE16 >= 4 else []
        if nexthead: late += [(57+4*i, g) for i, g in enumerate(s.dma_groups(bn)[:2])]
        s.kstep(0, s.reads(bn, 1, 1), [], tail=tail, pre=pre, late=late)
        if junk: s.a(f"s_add_u32 s{s.junk[3]}, s{s.junk[3]}, 1024")
    def main(s, T, dma_issued=False, hook_first=None, hook_tail=None, hook_second=None):
        a = s.a; H = PLACE16 == 5
        if not dma_issued: s.prologue_dma()
        a(f"s_waitcnt vmcnt({s.D})")
        a("s_barrier")
        for r in s.reads(0, 0, 0): a(r)
        if hook_first: hook_first()
        s.kstep(0, s.reads(0, 1, 1), [], zero=True, tail=["s_waitcnt vmcnt(0) lgkmcnt(0)", "s_barrier"],
                late=[(57+4*i, g) for i, g in enumerate(s.dma_groups(0)[:2])] if H else None)
        if hook_second: hook_second()
        L = a.newlabel(f"G{s.tag}")
        n = (T-2)//2
        a(f"s_mov_b32 s{S_LOOP}, {n-1 if H else n}")
        a.label(L)
        for b in range(2): s.phase(b, True, 0, H, H)
        a(f"s_sub_u32 s{S_LOOP}, s{S_LOOP}, 1"); a(f"s_cmp_lg_u32 s{S_LOOP}, 0"); a(f"s_cbranch_scc1 {L}")
        if H:
            s.phase(0, True, 0, True, True); s.phase(1, True, 0, True, False)
        if hook_tail: hook_tail()
        s.phase(0, False, None)
        s.kstep(1, [], [])

    def _blk(s, s_base):
        a = s.a
        a("s_nop 7")
        a(f"v_lshlrev_b32 v2, 4, v{V_LANE}"); a("v_add_u32 v3, 4096, v2")
        a(f"s_lshr_b32 s21, s{S_WAVE}, 1"); a(f"s_mul_i32 s21, s21, {4*32*8192}")
        a(f"s_and_b32 s22, s{S_WAVE}, 1"); a("s_lshl_b32 s22, s22, 13"); a("s_add_u32 s21, s21, s22"); a(f"s_add_u32 s21, s21, s{s_base}")
    def _pack_store(s, k, c0, c1, voff, off, srd, flags):
        a = s.a; R = V_T + (k % 4)*12
        for i in range(4): s.accread(R+4+i, c0+i)
        for i in range(4): s.accread(R+8+i, c1+i)
        for i in range(4): a(f"v_cvt_pk_bf16_f32 v{R+i}, v{R+4+2*i}, v{R+5+2*i}")
        a(f"buffer_store_dwordx4 {vr(R,4)}, v{voff}, {sr(srd,4)}, s21 offen offset:{off} {flags}")
    def epi_qk(s, srd, s_base, flags=""):
        s._blk(s_base); k = 0
        for mt in range(8):
            for t in range(4):
                s._pack_store(k, s.acc(mt,t), s.acc(mt,t+4), 2+(mt&1), t*1024, srd, flags); k += 1
            if mt & 1 and mt < 7: s.a(f"s_add_u32 s21, s21, {32*8192}")
    def epi_v(s, srd, s_base, flags=""):
        s._blk(s_base); k = 0
        for sp in range(4):
            for nt in range(8):
                s._pack_store(k, s.acc(2*sp,nt), s.acc(2*sp+1,nt), 2+(nt>>2), (nt&3)*1024, srd, flags); k += 1
            if sp < 3: s.a(f"s_add_u32 s21, s21, {32*8192}")
    def epi_gu(s, srd, s_base, flags=""):
        a = s.a; T = V_T; L = V_LANE
        a("s_nop 7")
        a(f"v_bfe_u32 v2, v{L}, 2, 2"); a(f"s_mov_b32 s22, {4*H_STR}"); a("v_mul_lo_u32 v2, v2, s22")
        a(f"v_lshrrev_b32 v3, 5, v{L}"); a("v_lshl_add_u32 v2, v3, 7, v2"); a(f"v_and_b32 v3, 3, v{L}"); a("v_lshl_add_u32 v2, v3, 5, v2")
        a(f"v_bfe_u32 v3, v{L}, 4, 1"); a("v_lshl_add_u32 v2, v3, 4, v2")
        a(f"s_lshr_b32 s21, s{S_WAVE}, 1"); a(f"s_mul_i32 s21, s21, {128*H_STR}")
        a(f"s_and_b32 s22, s{S_WAVE}, 1"); a("s_lshl_b32 s22, s22, 9"); a("s_add_u32 s21, s21, s22"); a(f"s_add_u32 s21, s21, s{s_base}")
        c0 = -2.0*math.sqrt(2.0/math.pi)*math.log2(math.e); c1 = c0*0.044715
        a(f"v_mov_b32 v4, {f2u(c0):#x}"); a(f"v_mov_b32 v5, {f2u(c0):#x}")
        a(f"v_mov_b32 v6, {f2u(c1):#x}"); a(f"v_mov_b32 v7, {f2u(c1):#x}")
        a("v_mov_b32 v8, 1.0"); a("v_mov_b32 v9, 1.0")
        k = 0
        for mt in range(8):
            for pp in range(2):
                R = T + (k % 2)*40; k += 1
                G, U, P, O = R, R+8, R+16, R+32
                for i in range(8): s.accread(G+i, s.acc(mt, 2*pp)+i)
                for i in range(8): s.accread(U+i, s.acc(mt, 4+2*pp)+i)
                for i in range(0, 8, 2): a(f"v_pk_mul_f32 {vr(P+i,2)}, {vr(G+i,2)}, {vr(G+i,2)}")
                for i in range(0, 8, 2): a(f"v_pk_fma_f32 {vr(P+i,2)}, {vr(P+i,2)}, v[6:7], v[4:5]")
                for i in range(0, 8, 2): a(f"v_pk_mul_f32 {vr(P+i,2)}, {vr(P+i,2)}, {vr(G+i,2)}")
                for i in range(8): a(f"v_exp_f32 v{P+i}, v{P+i}")
                for i in range(0, 8, 2): a(f"v_pk_mul_f32 {vr(G+i,2)}, {vr(G+i,2)}, {vr(U+i,2)}")
                for i in range(0, 8, 2): a(f"v_pk_add_f32 {vr(P+i,2)}, {vr(P+i,2)}, v[8:9]")
                for i in range(8): a(f"v_rcp_f32 v{P+i}, v{P+i}")
                a("s_nop 0")
                for i in range(0, 8, 2): a(f"v_pk_mul_f32 {vr(G+i,2)}, {vr(G+i,2)}, {vr(P+i,2)}")
                for i in range(4): a(f"v_cvt_pk_bf16_f32 v{O+i}, v{G+2*i}, v{G+2*i+1}")
                a(f"buffer_store_dwordx4 {vr(O,4)}, v2, {sr(srd,4)}, s21 offen offset:{pp*256} {flags}")
            if mt < 7: a(f"s_add_u32 s21, s21, {16*H_STR}")

class Gemm16N(Gemm):
    def __init__(s, a, tag, MT, NST, strX, strW, xflags="", wperm=True):
        super().__init__(a, tag, MT, 2, NST, strX, strW, "plain", xflags=xflags, xr4=True, wperm=wperm)
        s.M16 = 2*MT
    def acc(s, mt, nt): return (mt*4 + nt)*4
    def fx(s, st, mt): return V_FR + st*64 + mt*4
    def fw(s, st, nt): return V_FR + st*64 + 32 + nt*4
    def setup(s):
        a = s.a; L = V_LANE; MT = s.MT
        a(f"v_lshrrev_b32 v2, 5, v{L}"); a(f"v_and_b32 v3, 31, v{L}"); a("v_lshlrev_b32 v3, 4, v3"); a("v_lshlrev_b32 v4, 7, v2"); a("v_xor_b32 v3, v3, v4")
        a(f"s_mul_i32 s21, s{S_WAVE}, {4*MT}"); a("v_add_u32 v2, s21, v2")
        a(f"s_mov_b32 s22, {4*s.strX}"); a("v_mul_lo_u32 v2, v2, s22"); a("v_add_u32 v3, v2, v3")
        for j in range(2*MT): a(f"v_add_u32 v{V_DX+j}, {8*j*s.strX}, v3")
        a(f"v_lshrrev_b32 v2, 3, v{L}"); a(f"v_and_b32 v3, 7, v{L}"); a(f"v_bfe_u32 v4, v{L}, 4, 1"); a("v_lshlrev_b32 v4, 1, v4"); a("v_xor_b32 v3, v3, v4")
        if s.wperm:
            a("v_lshrrev_b32 v4, 2, v2"); a("v_lshlrev_b32 v4, 4, v4"); a("v_and_b32 v2, 3, v2"); a("v_add_u32 v2, v2, v4")
        a(f"s_and_b32 s21, s{S_WAVE}, 1"); a("s_lshl_b32 s21, s21, 5"); a("v_add_u32 v2, s21, v2")
        a(f"s_mov_b32 s22, {s.strW}"); a("v_mul_lo_u32 v2, v2, s22")
        a(f"s_lshr_b32 s23, s{S_WAVE}, 1"); a("s_lshl_b32 s23, s23, 7"); a("v_add_u32 v2, s23, v2")
        a("v_lshlrev_b32 v3, 4, v3"); a("v_xor_b32 v4, 64, v3"); a("v_add_u32 v3, v2, v3"); a("v_add_u32 v4, v2, v4")
        for j in range(4): a(f"v_add_u32 v{V_DW+j}, {(4*j if s.wperm else 8*j)*s.strW}, v{3+(j&1)}")
        a(f"s_mul_i32 s{S_M0X}, s{S_WAVE}, {2048*MT}"); a(f"s_lshl_b32 s{S_M0W}, s{S_WAVE}, 12"); a(f"s_add_u32 s{S_M0W}, s{S_M0W}, {s.XS}")
        a(f"s_lshr_b32 s21, s{S_WAVE}, 1"); a(f"s_mul_i32 s21, s21, {4096*MT}")
        a(f"v_bfe_u32 v2, v{L}, 2, 2"); a("v_lshlrev_b32 v2, 9, v2"); a("v_add_u32 v2, s21, v2")
        a(f"v_and_b32 v3, 3, v{L}"); a("v_lshl_add_u32 v2, v3, 5, v2"); a(f"v_bfe_u32 v3, v{L}, 4, 1"); a("v_lshl_add_u32 v2, v3, 4, v2")
        a(f"v_lshrrev_b32 v4, 5, v{L}"); a(f"v_bfe_u32 v5, v{L}, 2, 1"); a("v_xor_b32 v4, v4, v5"); a(f"v_lshl_add_u32 v{V_RA}, v4, 7, v2")
        a(f"v_lshrrev_b32 v4, 4, v{L}"); a(f"v_bfe_u32 v5, v{L}, 2, 2"); a("v_lshl_add_u32 v2, v4, 3, v5"); a("v_lshlrev_b32 v2, 7, v2")
        a(f"v_and_b32 v4, 3, v{L}"); a("v_lshl_add_u32 v2, v4, 3, v2"); a(f"v_add_u32 v2, {s.XS}, v2")
        a("v_lshrrev_b32 v5, 1, v5"); a("v_lshl_or_b32 v3, v3, 1, v5")
        a(f"s_and_b32 s21, s{S_WAVE}, 1"); a("s_lshl_b32 s21, s21, 1"); a("v_xor_b32 v3, s21, v3")
        a(f"v_lshl_add_u32 v{V_RA+1}, v3, 5, v2"); a(f"v_xor_b32 v{V_RA+2}, 32, v{V_RA+1}")
        for b in range(1, s.NST):
            for r in range(3): a(f"v_add_u32 v{V_RA+6*b+r}, {b*s.SS}, v{V_RA+r}")
    def reads(s, buf, ks, st):
        ra = V_RA + 6*buf
        xs = [f"ds_read_b128 {vr(s.fx(st,mt),4)}, v{ra} offset:{mt*2048+ks*256}" for mt in range(s.M16)]
        ws = [f"ds_read_b64_tr_b16 {vr(s.fw(st,nt)+2*q,2)}, v{ra+1+(nt&1)} offset:{(nt>>1)*8192+(32*ks+4*q)*128}" for nt in range(4) for q in range(2)]
        return ws[:2] + xs + ws[2:]
    def mfmas(s, st, zero=False):
        return [f"v_mfma_f32_16x16x32_bf16 {ar(s.acc(mt,nt),4)}, {vr(s.fw(st,nt),4)}, {vr(s.fx(st,mt),4)}, {'0' if zero else ar(s.acc(mt,nt),4)}"
                for nt in range(4) for mt in range(s.M16)]
    def kstep(s, st, reads, dmas, zero=False, tail=None, pre=None):
        a = s.a; m = s.mfmas(st, zero); n = len(m); gaps = [[] for _ in m]
        for i, g in enumerate(dmas): gaps[4*i].append(g[0]); gaps[4*i+1].append(g[2])
        lim = n - (n//4 if tail is None else n//3)
        slots = [x for x in range(lim) if x % 4 != 1]
        for i, r in enumerate(reads): gaps[slots[i*len(slots)//len(reads)]].append(r)
        a("s_waitcnt lgkmcnt(0)")
        for x in (pre or []): a(x)
        for i, x in enumerate(m):
            if tail is not None and i == n - n//8:
                for y in tail: a(y)
            a(x)
            for y in gaps[i]: a(y)
    def phase(s, bcur, dma, vm):
        bn = (bcur+1) % s.NST
        d = s.dma_groups(bcur) if dma else []
        k = s.M16
        s.kstep(1, s.reads(bn, 0, 0), d[:k])
        tail = [f"s_waitcnt vmcnt({vm}) lgkmcnt(0)" if vm is not None else "s_waitcnt lgkmcnt(0)", "s_barrier"]
        late = d[k:]
        if late and 4*(len(late)-1)+1 >= 4*k - (4*k)//8: vmfix = True
        s.kstep(0, s.reads(bn, 1, 1), late, tail=tail)
        if dma:
            for x in s.advance(): s.a(x)
    def main(s, T, hook_tail=None):
        a = s.a; N = s.NST; D = s.D; rem = (T-N) % N
        s.prologue_dma()
        a(f"s_waitcnt vmcnt({(N-1)*D})")
        a("s_barrier")
        for r in s.reads(0, 0, 0): a(r)
        s.kstep(0, s.reads(0, 1, 1), [], zero=True, tail=[f"s_waitcnt vmcnt({(N-2)*D}) lgkmcnt(0)", "s_barrier"])
        L = a.newlabel(f"G{s.tag}")
        a(f"s_mov_b32 s{S_LOOP}, {(T-N)//N}")
        a.label(L)
        for b in range(N): s.phase(b, True, (N-2)*D)
        a(f"s_sub_u32 s{S_LOOP}, s{S_LOOP}, 1"); a(f"s_cmp_lg_u32 s{S_LOOP}, 0"); a(f"s_cbranch_scc1 {L}")
        for b in range(rem): s.phase(b, True, (N-2)*D)
        for i in range(N-1):
            p = T-N+i
            if p+2 <= T-1: s.phase((rem+i) % N, False, (T-1-(p+2))*D)
            else:
                if hook_tail: hook_tail()
                s.phase((rem+i) % N, False, None)
        s.kstep(1, [], [])
    def epi_plain(s, srd, s_row0, s_col0, flags="", final=None):
        a = s.a; T = V_T; L = V_LANE
        a(f"s_lshr_b32 s21, s{S_WAVE}, 1"); a(f"s_mul_i32 s21, s21, {32*s.MT*2048}"); a(f"s_add_u32 s21, s21, s{s_row0}")
        a(f"s_and_b32 s22, s{S_WAVE}, 1"); a("s_lshl_b32 s22, s22, 6"); a(f"s_add_u32 s22, s22, s{s_col0}")
        a(f"v_bfe_u32 v3, v{L}, 4, 1"); a(f"v_lshrrev_b32 v4, 5, v{L}")
        a(f"v_bfe_u32 v10, v{L}, 2, 2"); a("v_lshlrev_b32 v10, 13, v10"); a("v_lshl_add_u32 v10, v3, 7, v10"); a("v_lshl_add_u32 v10, v4, 4, v10")
        a(f"v_and_b32 v5, 3, v{L}"); a("v_lshl_add_u32 v10, v5, 5, v10")
        a(f"v_and_b32 v2, 15, v{L}"); a("v_lshlrev_b32 v2, 11, v2"); a("v_lshl_add_u32 v2, v3, 5, v2"); a("v_lshl_add_u32 v2, v4, 4, v2")
        a("s_lshl_b32 s23, s22, 2"); a("s_add_u32 s85, s21, s23"); a("s_add_u32 s84, s21, s22")
        groups = [(mt, h) for mt in range(s.M16) for h in range(2)]
        LD = T + 32; NB = 12
        def base(mt, r4):
            a(f"s_add_u32 s86, s{85 if r4 else 84}, {mt*16*2048}")
            return 86
        def issue(i):
            mt, h = groups[i]; Rr = LD + (i % NB)*8
            a(f"buffer_load_dwordx4 {vr(Rr,4)}, v2, {sr(final[0],4)}, s{base(mt, False)} offen offset:{h*128}")
            a(f"buffer_load_dwordx4 {vr(Rr+4,4)}, v10, {sr(final[1],4)}, s{base(mt, True)} offen offset:{h*512} {final[2]}")
        if final:
            for i in range(min(NB-1, len(groups))): issue(i)
        a("s_nop 7")
        for gi, (mt, h) in enumerate(groups):
            R = T + (gi % 2)*16; G, O = R, R+8
            for i in range(8): s.accread(G+i, s.acc(mt, 2*h)+i)
            for i in range(4): a(f"v_cvt_pk_bf16_f32 v{O+i}, v{G+2*i}, v{G+2*i+1}")
            a("s_nop 1")
            a(f"v_permlane16_swap_b32 v{O}, v{O+2}")
            a(f"v_permlane16_swap_b32 v{O+1}, v{O+3}")
            if final:
                nxt = gi + NB - 1
                if nxt < len(groups): issue(nxt)
                a(f"s_waitcnt vmcnt({2*(min(nxt, len(groups)-1) - gi)})")
                X = LD + (gi % NB)*8
                for i in range(4):
                    a(f"v_lshlrev_b32 v{G}, 16, v{O+i}"); a(f"v_and_b32 v{G+1}, 0xffff0000, v{O+i}")
                    a(f"v_lshlrev_b32 v{G+2}, 16, v{X+i}"); a(f"v_and_b32 v{G+3}, 0xffff0000, v{X+i}")
                    a(f"v_pk_add_f32 {vr(G,2)}, {vr(G,2)}, {vr(G+2,2)}")
                    a(f"v_cvt_pk_bf16_f32 v{G+4}, v{G}, v{G+1}")
                    a(f"v_lshlrev_b32 v{G}, 16, v{G+4}"); a(f"v_and_b32 v{G+1}, 0xffff0000, v{G+4}")
                    a(f"v_lshlrev_b32 v{G+2}, 16, v{X+4+i}"); a(f"v_and_b32 v{G+3}, 0xffff0000, v{X+4+i}")
                    a(f"v_pk_add_f32 {vr(G,2)}, {vr(G,2)}, {vr(G+2,2)}")
                    a(f"v_cvt_pk_bf16_f32 v{O+i}, v{G}, v{G+1}")
                a(f"buffer_store_dwordx4 {vr(O,4)}, v2, {sr(srd,4)}, s{base(mt, False)} offen offset:{h*128} {flags}")
            else:
                a(f"buffer_store_dwordx4 {vr(O,4)}, v10, {sr(srd,4)}, s{base(mt, True)} offen offset:{h*512} {flags}")
```

```python
from common import *
from ln import *
from gemm import *
from att import att_item
from gemm16 import Gemm16, Gemm16N
import chain, gemm
from chain import role_A, role_VR, assign_roles, poll_tail, S_WS

LDS_SCR = 156*1024
S_PH, S_CTR, S_B, S_ITEM = 96, 97, 98, 99
S_T0 = 83
S_EPI, S_EP0, S_EP1, S_RET = 82, 78, 77, 4
S_PRE, S_POFF, S_PVAL = 39, 68, 69
S_FL = 92
PROFW = False
TSW_OFF = 216*MB

BATCH = {"S0": [("KS",0,0,4)], "S1": [("KS",0,4,4)], "S2": [("KS",0,8,4)], "S3": [("KS",0,12,4)], "K1": [("K1",0,0,4)], "KV1a": [("KV",1,0,4)], "KV1b": [("KV",1,4,4)], "KV2a": [("KV",2,0,4)], "KV2b": [("KV",2,4,4)],
         "KV3a": [("KV",3,0,4)], "KV3b": [("KV",3,4,4)], "Q0": [("Q",0,0,4)], "Q1": [("Q",1,0,4)], "Q2": [("Q",2,0,4)], "Q3": [("Q",3,0,4)],
         "G1": [("GU",0,0,4)], "G2": [("GU",0,4,3),("GU",1,0,1)], "G3": [("GU",1,1,4)], "G4": [("GU",1,5,2),("GU",2,0,2)],
         "G5": [("GU",2,2,4)], "G6": [("GU",2,6,1),("GU",3,0,3)], "G7": [("GU",3,3,4)],
         "KVa": [("K4",2,0,4)], "KVb": [("K4",2,4,4)], "KVc": [("K4",2,8,4)], "KVd": [("K4",2,12,4)],
         "Ga1": [("G4",0,0,4)], "Ga2": [("G4",0,4,4)], "Ga3": [("G4",0,8,4)], "Gb1": [("G4",4,0,4)], "Gb2": [("G4",4,4,4)], "Gb3": [("G4",4,8,4)],
         "Gm": [("G8",0,24,4)],
         "DNa": [("DN",0,0,4)], "DNb": [("DN",0,4,4)], "W2x": [("W2",0,0,4)], "W1x": [("W1",0,8,4)], "WR": [("WR",0,0,4)], "WRa": [("WR",0,0,2),("W1",0,8,2)], "WRb": [("WR",0,2,2),("W1",0,10,2)], "": [("QA",0,0,4)]}
LISTS = [['KVd', 'Gb3', 'Q0', 'Ga1', 'DNa'], ['KVc', 'Gb1', 'Ga3', 'Ga2', 'Q3', 'W1x'], ['KVb', 'Gb2', 'KV3a', 'KV3b', 'Q2', 'WR'], ['KVa', 'Gm', 'Q1', 'DNb', 'W2x']]
SMALL = ['K1']
def q1_list():
    out = []
    LL = [[f'S{i}'] + l for i, l in enumerate(LISTS)]
    for r in range(max(map(len, LL))):
        for l in LL: out += BATCH[l[r] if r < len(l) else ""]
    for b in SMALL: out += BATCH[b]
    return out
NBLK = 12
WRPOS = 44
NQA = 32 + NBLK*16 + (64-4*NBLK)*8
NROT = 4

def load_ptrs(a):
    a("s_load_dwordx8 s[40:47], s[0:1], 0")
    a("s_load_dwordx4 s[48:51], s[0:1], 32")
    a("s_load_dwordx8 s[56:63], s[0:1], 64")
    a("s_load_dwordx4 s[64:67], s[0:1], 96")

def atomic_ret(a, vdst, s_off, val):
    a(f"v_mov_b32 v{vdst}, {val}")
    a("s_mov_b64 exec, 1")
    a(f"buffer_atomic_add v{vdst}, off, {sr(S_FL,4)}, s{s_off} sc0 sc1")
    a("s_mov_b64 exec, -1")
    a("s_waitcnt vmcnt(0)")

def signal(a, s_off, val, srd=S_FL, vtmp=4):
    a(f"v_mov_b32 v{vtmp}, {val}")
    a("s_mov_b64 exec, 1")
    a(f"buffer_atomic_add v{vtmp}, off, {sr(srd,4)}, s{s_off} sc1")
    a("s_mov_b64 exec, -1")

def wait_flags(a, voff_setup, s_base, mask, target, abort, nlanes, vd=4, vo=5, sleep=8):
    Lw, Lp = a.newlabel("Wf"), a.newlabel("Wp")
    a(f"s_cmp_lg_u32 s{S_WAVE}, 0"); a(f"s_cbranch_scc1 {Lw}")
    voff_setup()
    a("s_mov_b32 s30, 0"); a(f"s_mov_b32 s21, {target:#x}")
    a.label(Lp)
    a(f"buffer_load_dword v{vd}, v{vo}, {sr(S_FL,4)}, s{s_base} offen sc1")
    a("s_waitcnt vmcnt(0)")
    if mask != 0xffffffff: a(f"v_and_b32 v{vd}, {mask:#x}, v{vd}")
    a(f"v_cmp_ne_u32 vcc, s21, v{vd}")
    a(f"s_cbranch_vccz {Lw}")
    if sleep: a(f"s_sleep {sleep}")
    poll_tail(a, Lp, abort)
    a.label(Lw)
    a("s_barrier")

def finish(a, s_off, val):
    a("s_waitcnt vmcnt(0)")
    a("s_barrier")
    L = a.newlabel("Fin")
    a(f"s_cmp_lg_u32 s{S_WAVE}, 0"); a(f"s_cbranch_scc1 {L}")
    signal(a, s_off, val)
    a.label(L)

def wstamp(a, i):
    if PROFW: a(f"s_memrealtime s[{70+2*i}:{71+2*i}]")

def xstamp(a, i):
    r = [24,6,52,54,80][i]
    if PROFW: a(f"s_memrealtime s[{r}:{r+1}]")

def wor_item(a, END):
    L = V_LANE; W = S_WAVE
    load_srd(a, S_SRDW, 50, 0, 4096*DM*2)
    a("s_and_b32 s36, s37, 1"); a("s_lshr_b32 s34, s37, 1")
    a(f"v_lshrrev_b32 v2, 5, v{L}"); a("v_lshlrev_b32 v2, 4, v2")
    a(f"v_bfe_u32 v3, v{L}, 3, 2"); a("v_add_u32 v2, v2, v3"); a("v_lshlrev_b32 v2, 11, v2")
    a(f"v_and_b32 v3, 7, v{L}"); a("v_lshl_add_u32 v2, v3, 4, v2")
    a(f"s_lshl_b32 s27, s{W}, 15")
    a(f"v_lshrrev_b32 v4, 5, v{L}"); a(f"v_bfe_u32 v5, v{L}, 2, 2"); a("v_lshl_add_u32 v4, v4, 3, v5"); a("v_lshlrev_b32 v4, 7, v4")
    a(f"v_bfe_u32 v5, v{L}, 4, 1"); a("v_lshl_add_u32 v4, v5, 5, v4"); a(f"v_and_b32 v3, 3, v{L}"); a("v_lshl_add_u32 v4, v3, 3, v4"); a("v_add_u32 v4, s27, v4")
    a(f"s_lshl_b32 s22, s{W}, 20"); a("s_lshl_b32 s23, s36, 22"); a("s_add_u32 s22, s22, s23"); a("s_lshl_b32 s23, s34, 7"); a("s_add_u32 s22, s22, s23")
    for rnd_ in range(2):
        for j in range(32):
            a(f"s_add_u32 m0, s27, {1024*j}"); a("s_nop 0")
            a(f"buffer_load_dwordx4 v2, {sr(S_SRDW,4)}, s22 offen lds")
            a(f"s_add_u32 s22, s22, {(4 if (j & 3) < 3 else 20)*2048}")
        a("s_waitcnt vmcnt(0)")
        for ks in range(16):
            for t in range(2):
                for q in range(2):
                    a(f"ds_read_b64_tr_b16 {ar(((rnd_*16+ks)*2+t)*4+2*q,2)}, v4 offset:{(16*ks+4*q)*128+64*t}")
            if ks % 2 == 1: a("s_waitcnt lgkmcnt(0)")
    a(f"s_mov_b32 s32, {FL_EX}")
    wait_flags(a, lambda: a("v_mov_b32 v15, 0"), 32, 0xffffffff, 32, END, 1, 14, 15)
    load_srd(a, S_SRDX, 66, OL_OFF, 16*MB)
    load_srd(a, 84, 62, 0, S*DM*2)
    load_srd(a, S_SRDW, 40, 0, S*DM*2)
    VX0, VO, VB, VW, VR, VE, VP = 64, 3, 6, 7, 8, 10, 11
    a("s_lshl_b32 s37, s34, 1"); a("s_add_u32 s37, s37, s36")
    a(f"v_bfe_u32 v10, v{L}, 2, 3"); a(f"v_and_b32 v11, 3, v{L}"); a(f"v_lshrrev_b32 v12, 5, v{L}")
    a(f"v_and_b32 v13, 31, v{L}"); a(f"v_lshlrev_b32 v{VO}, 11, v13"); a(f"v_lshl_add_u32 v{VO}, v12, 3, v{VO}")
    a("s_lshl_b32 s22, s37, 6"); a(f"s_lshl_b32 s23, s{W}, 4"); a("s_add_u32 s22, s22, s23"); a(f"v_add_u32 v{VO}, s22, v{VO}")
    a(f"v_lshlrev_b32 v{VB}, 13, v10"); a(f"v_lshl_add_u32 v{VB}, v11, 5, v{VB}"); a(f"v_lshl_add_u32 v{VB}, v12, 3, v{VB}")
    a("s_lshl_b32 s22, s37, 8"); a(f"s_lshr_b32 s23, s{W}, 1"); a("s_lshl_b32 s23, s23, 7"); a("s_add_u32 s22, s22, s23")
    a(f"s_and_b32 s23, s{W}, 1"); a("s_lshl_b32 s23, s23, 4"); a("s_add_u32 s22, s22, s23"); a(f"s_add_u32 s22, s22, {BP_OFF}")
    a(f"v_add_u32 v{VB}, s22, v{VB}")
    a(f"v_lshlrev_b32 v13, 4, v{L}")
    a(f"s_lshl_b32 s22, s{W}, 15"); a("s_lshl_b32 s23, s36, 17"); a("s_add_u32 s22, s22, s23"); a(f"v_add_u32 v{VX0}, s22, v13")
    for i in range(1, 8): a(f"v_add_u32 v{VX0+i}, {4096*i}, v{VX0}")
    a(f"s_lshl_b32 s22, s{W}, 13"); a(f"v_add_u32 v{VW}, s22, v13")
    a(f"s_lshl_b32 s22, s{W}, 10"); a("s_lshl_b32 s23, s36, 12"); a("s_add_u32 s23, s23, s22"); a(f"v_add_u32 v{VR}, s23, v13")
    a("s_lshl_b32 s23, s37, 12"); a("s_add_u32 s22, s22, s23"); a(f"s_add_u32 s22, s22, {EX_OFF - 4*NBLK*131072}")
    a(f"v_add_u32 v{VE}, s22, v13"); a(f"v_xor_b32 v{VP}, 4096, v{VE}")
    a(f"s_mov_b32 s38, {4*NBLK}"); a("s_mov_b32 s35, 0"); a("s_mov_b32 s90, 0")
    a(f"v_mov_b32 v9, {LDS_SCR+64}")
    wstamp(a, 1)
    ACC = 16; XR = 128; RD = 80
    a.label("L_WORseg")
    Ld = a.newlabel("Wd")
    a("s_and_b32 s32, s38, 7"); a(f"s_cmp_eq_u32 s38, {4*NBLK}"); a("s_cselect_b32 s32, 0, s32"); a("s_cmp_lg_u32 s32, 0"); a(f"s_cbranch_scc1 {Ld}")
    a("s_lshr_b32 s32, s38, 3"); a("s_lshl_b32 s32, s32, 3"); a("s_lshr_b32 s33, s37, 2"); a("s_add_u32 s32, s32, s33")
    a("s_lshl_b32 s32, s32, 6"); a(f"s_add_u32 s32, s32, {FL_DN}")
    wait_flags(a, lambda: a("v_mov_b32 v15, 0"), 32, 0xffffffff, 1, END, 1, 14, 15)
    a.label(Ld)
    a("s_lshl_b32 s33, s38, 16")
    a(f"s_sub_u32 s32, s38, {4*NBLK}"); a("s_lshl_b32 s32, s32, 7"); a("s_lshl_b32 s34, s36, 6"); a("s_add_u32 s32, s32, s34"); a(f"s_add_u32 s32, s32, {FL_ATS}")
    a("s_lshl_b32 s34, s38, 18"); a("s_lshl_b32 s26, s38, 17")
    Lr = a.newlabel("Wr")
    a("s_cmp_eq_u32 s35, 16"); a(f"s_cbranch_scc1 {Lr}")
    wait_flags(a, lambda: a("v_mov_b32 v15, 0"), 32, 0xffffffff, 16, END, 1, 14, 15, 1)
    a.label(Lr)
    a("s_add_u32 s32, s32, 128")
    wstamp(a, 2)
    a(f"s_bfe_u32 s22, s37, {1 | (2 << 16):#x}")
    for e in range(1, NROT): a(f"s_cmp_eq_u32 s22, {e}"); a(f"s_cbranch_scc1 L_WORe{e}")
    for e in range(NROT):
        a.label(f"L_WORe{e}")
        order = [(32//NROT*e + i) % 32 for i in range(32)]
        WN = 8
        lds = [f"buffer_load_dwordx4 {vr(XR+ks*4,4)}, v{VX0+ks//4}, {sr(S_SRDX,4)}, s34 offen offset:{(ks%4)*1024} sc1" for ks in order]
        lds += [f"buffer_load_dwordx2 v[48:49], v{VO}, {sr(S_SRDW,4)}, s33 offen", f"buffer_load_dwordx2 v[50:51], v{VB}, {sr(S_FL,4)}, s33 offen sc1",
                f"buffer_load_dwordx4 v[116:119], v{VP}, {sr(S_FL,4)}, s26 offen sc1",
                f"buffer_load_dword v14, off, {sr(S_FL,4)}, s32 sc1"]
        for x in lds[:WN]: a(x)
        n = WN
        for i, ks in enumerate(order):
            a(f"s_waitcnt vmcnt({n-1-i})")
            if i == 0: xstamp(a, 0)
            for t in range(2):
                a(f"v_mfma_f32_32x32x16_bf16 {vr(ACC+16*t,16)}, {ar((ks*2+t)*4,4)}, {vr(XR+ks*4,4)}, {'0' if i == 0 else vr(ACC+16*t,16)}")
                if n < len(lds) and (t == 0 or i < 8): a(lds[n]); n += 1
        if e < NROT-1: a("s_branch L_WORj")
    a.label("L_WORj")
    xstamp(a, 1)
    a("s_nop 10")
    for q in range(8): a(f"ds_write_b128 v{VW}, {vr(ACC+4*q,4)} offset:{1024*q}")
    a("s_waitcnt vmcnt(0)")
    xstamp(a, 2)
    Lz = a.newlabel("Wz")
    a(f"s_cmp_lg_u32 s{W}, 0"); a(f"s_cbranch_scc1 {Lz}")
    a("ds_write_b32 v9, v14")
    a.label(Lz)
    a(f"v_xor_b32 v13, 4096, v{VR}")
    a("s_waitcnt lgkmcnt(0)")
    a("s_barrier")
    for i in range(4): a(f"ds_read_b128 {vr(RD+16+4*i,4)}, v13 offset:{8192*i}")
    for i in range(4): a(f"ds_read_b128 {vr(RD+4*i,4)}, v{VR} offset:{8192*i}")
    a("ds_read_b32 v14, v9")
    a(f"v_xor_b32 v{VW}, 32768, v{VW}"); a(f"v_xor_b32 v{VR}, 32768, v{VR}"); a("v_xor_b32 v9, 4, v9")
    def sum4(b):
        for k in (0, 2):
            a(f"v_pk_add_f32 {vr(b+k,2)}, {vr(b+k,2)}, {vr(b+4+k,2)}"); a(f"v_pk_add_f32 {vr(b+8+k,2)}, {vr(b+8+k,2)}, {vr(b+12+k,2)}")
        for k in (0, 2): a(f"v_pk_add_f32 {vr(b+k,2)}, {vr(b+k,2)}, {vr(b+8+k,2)}")
    a("s_waitcnt lgkmcnt(5)")
    sum4(RD+16)
    xstamp(a, 3)
    L1, L2 = a.newlabel("We"), a.newlabel("We")
    a(f"s_cmp_eq_u32 s{S_B}, 4"); a(f"s_cbranch_scc1 {L1}")
    a(f"buffer_store_dwordx4 {vr(RD+16,4)}, v{VE}, {sr(S_FL,4)}, s26 offen")
    a(f"s_branch {L2}")
    a.label(L1)
    a(f"buffer_store_dwordx4 {vr(RD+16,4)}, v{VE}, {sr(S_FL,4)}, s26 offen sc1")
    a.label(L2)
    a("s_waitcnt lgkmcnt(0)")
    sum4(RD)
    a("v_readfirstlane_b32 s35, v14")
    PO = 120
    def finish_seg(nap):
        a(f"v_lshlrev_b32 v52, 16, v{PO+4}"); a(f"v_and_b32 v53, 0xffff0000, v{PO+4}"); a(f"v_lshlrev_b32 v54, 16, v{PO+5}"); a(f"v_and_b32 v55, 0xffff0000, v{PO+5}")
        a(f"v_lshlrev_b32 v56, 16, v{PO+6}"); a(f"v_and_b32 v57, 0xffff0000, v{PO+6}"); a(f"v_lshlrev_b32 v58, 16, v{PO+7}"); a(f"v_and_b32 v59, 0xffff0000, v{PO+7}")
        a("s_mov_b32 s30, 0")
        if nap: a(f"s_sleep {nap}")
        Lp, Lg = a.newlabel("Wp"), a.newlabel("Wg")
        R = 108
        a.label(Lp)
        a(f"buffer_load_dwordx4 {vr(R,4)}, v{VP}, {sr(S_FL,4)}, s89 offen sc1")
        a("s_waitcnt vmcnt(0)")
        a(f"v_max3_u32 v15, v{R}, v{R+1}, v{R+2}"); a(f"v_max_u32 v15, v15, v{R+3}")
        a("v_cmp_eq_u32 vcc, -1, v15")
        a(f"s_cbranch_vccz {Lg}")
        poll_tail(a, Lp, END)
        a.label(Lg)
        if nap: xstamp(a, 4)
        for k in (0, 2): a(f"v_pk_add_f32 {vr(R+k,2)}, {vr(R+k,2)}, {vr(PO+k,2)}")
        def rnd():
            a(f"v_cvt_pk_bf16_f32 v{R+4}, v{R}, v{R+1}"); a(f"v_cvt_pk_bf16_f32 v{R+5}, v{R+2}, v{R+3}")
        def unp():
            a(f"v_lshlrev_b32 v{R}, 16, v{R+4}"); a(f"v_and_b32 v{R+1}, 0xffff0000, v{R+4}")
            a(f"v_lshlrev_b32 v{R+2}, 16, v{R+5}"); a(f"v_and_b32 v{R+3}, 0xffff0000, v{R+5}")
        rnd(); unp()
        a(f"v_pk_add_f32 {vr(R,2)}, {vr(R,2)}, v[52:53]"); a(f"v_pk_add_f32 {vr(R+2,2)}, {vr(R+2,2)}, v[54:55]")
        rnd(); unp()
        a(f"v_pk_add_f32 {vr(R,2)}, {vr(R,2)}, v[56:57]"); a(f"v_pk_add_f32 {vr(R+2,2)}, {vr(R+2,2)}, v[58:59]")
        rnd()
        a(f"buffer_store_dwordx2 {vr(R+4,2)}, v{VO}, s[84:87], s88 offen")
    Ln = a.newlabel("Wn")
    a("s_cmp_eq_u32 s90, 0"); a(f"s_cbranch_scc1 {Ln}")
    finish_seg(0)
    a.label(Ln)
    for k in range(4): a(f"v_mov_b32 v{PO+k}, v{RD+k}"); a(f"v_mov_b32 v{PO+4+k}, v{48+k}")
    a("s_mov_b32 s88, s33"); a("s_mov_b32 s89, s26"); a("s_mov_b32 s90, 1")
    a("s_add_u32 s38, s38, 1")
    a("s_and_b32 s34, s38, 7"); a("s_cselect_b32 s34, s35, 0"); a("s_cmp_eq_u32 s34, 16"); a("s_cbranch_scc1 L_WORseg")
    Lv, Lf = a.newlabel("Wv"), a.newlabel("Wv")
    a("s_and_b32 s34, s38, 7"); a(f"s_cbranch_scc0 {Lf}")
    a(f"s_cmp_lg_u32 s{W}, 0"); a(f"s_cbranch_scc1 {Lv}")
    a(f"buffer_load_dword v14, off, {sr(S_FL,4)}, s32 sc1")
    a("s_waitcnt vmcnt(0)")
    a("ds_write_b32 v9, v14 offset:8")
    a("s_waitcnt lgkmcnt(0)")
    a.label(Lv)
    a("s_barrier")
    a("ds_read_b32 v14, v9 offset:8")
    a("s_waitcnt lgkmcnt(0)")
    a("v_readfirstlane_b32 s35, v14")
    a("s_nop 3")
    a("s_cmp_eq_u32 s35, 16"); a("s_cbranch_scc1 L_WORseg")
    a.label(Lf)
    finish_seg(1)
    a("s_mov_b32 s90, 0")
    a("s_cmp_lt_u32 s38, 64"); a("s_cbranch_scc1 L_WORseg")

NW1, NW2, NW3 = 0, 0, 21
def warm(a, s_unit, n, per, base):
    if n == 0: return
    load_srd(a, 84, 46, 0, DM*4096*2)
    a(f"s_mul_i32 s79, s{s_unit}, {per*1024}"); a(f"s_add_u32 s79, s79, {base*1024}")
    a(f"s_mov_b32 m0, {LDS_SCR+1024}")
    for i in range(n):
        a("s_nop 0" if i == 0 else "s_add_u32 s79, s79, 1024")
        a("buffer_load_dwordx4 v2, s[84:87], s79 offen lds")

NRDY = 0
ROT = False
M16 = True
N16 = 2
NPRE = 0
NJUNK = 3
GJUNK = False
HELP = 0
def setup_phase(a):
    L = V_LANE; W = S_WAVE
    a("s_and_b32 s16, s2, 7"); a("s_lshr_b32 s17, s2, 3"); a("s_lshl_b32 s17, s17, 2"); a("s_add_u32 s17, s17, s16"); a("s_sub_u32 s17, s17, 4")
    a("s_sub_u32 s18, s2, 96"); a("s_cmp_ge_u32 s2, 192"); a("s_cselect_b32 s19, s18, s17"); a("s_cbranch_scc1 L_su_go")
    a("s_cmp_lt_u32 s16, 4"); a("s_cbranch_scc1 L_su_pre")
    a.label("L_su_go")
    load_srd(a, 24, 40, 0, S*DM*2)
    load_srd(a, 12, 66, XN_OFF, S*XN_STR)
    a(f"v_lshlrev_b32 v2, 4, v{L}")
    a("s_mul_i32 s19, s19, 3"); a(f"s_add_u32 s19, s19, s{W}"); a("s_sub_u32 s19, s19, 1")
    a("s_mul_i32 s34, s19, 3"); a("s_add_u32 s36, s34, 1"); a("s_add_u32 s38, s34, 2")
    def rows(X0):
        for k in range(3):
            a(f"s_lshl_b32 s17, s{34+2*k}, 11")
            for h in range(2): a(f"buffer_load_dwordx4 {vr(X0+8*k+4*h,4)}, v2, s[24:27], s17 offen offset:{1024*h}")
    rows(64)
    a("s_sub_u32 s18, s19, 277"); a("s_mul_i32 s18, s18, 3"); a("s_add_u32 s18, s18, 1440"); a("s_cmp_ge_u32 s19, 277"); a("s_cselect_b32 s18, s18, 4096")
    for k in range(3):
        a(f"s_add_u32 s17, s18, {k}"); a("s_lshl_b32 s17, s17, 11")
        for h in range(2): a(f"buffer_load_dwordx4 {vr(16+8*k+4*h,4)}, v2, s[24:27], s17 offen offset:{1024*h}")
    load_srd(a, 28, 42, 0, 8*DM*2)
    a(f"s_bfe_u32 s17, s19, {2 | (4 << 16):#x}"); a("s_lshl_b32 s17, s17, 7"); a("s_and_b32 s16, s19, 3"); a("s_lshl_b32 s16, s16, 5"); a("s_add_u32 s17, s17, s16")
    a(f"v_bfe_u32 v8, v{L}, 2, 3"); a("v_lshlrev_b32 v8, 11, v8")
    a(f"v_and_b32 v9, 3, v{L}"); a("v_lshl_add_u32 v8, v9, 3, v8")
    a(f"v_lshrrev_b32 v9, 5, v{L}"); a("v_lshl_add_u32 v8, v9, 2, v8")
    a("buffer_load_dword v10, v8, s[28:31], s17 offen")
    emit_ln_multi(a, 12, [34, 36, 38], 2, 64, 96, "sc1", 7)
    a("s_cmp_lt_u32 s19, 277"); a("s_cbranch_scc1 L_su_one")
    a("s_mov_b32 s34, s18"); a("s_add_u32 s36, s18, 1"); a("s_add_u32 s38, s18, 2")
    emit_ln_multi(a, 12, [34, 36, 38], 2, 16, 96, "sc1", 7)
    a.label("L_su_one")
    tot = CH_END - CH_BASE - 65536
    assert tot % 1024 == 0 and tot//1024 <= 480*6
    for i in range(4): a(f"v_mov_b32 v{4+i}, -1")
    a("s_mul_i32 s16, s19, 6")
    for i in range(6):
        Ls = a.newlabel("Ps")
        a(f"s_cmp_ge_u32 s16, {tot//1024}"); a(f"s_cbranch_scc1 {Ls}")
        a(f"s_cmp_ge_u32 s16, {(CH_MEM-CH_BASE)//1024}"); a("s_cselect_b32 s17, 64, 0"); a("s_add_u32 s17, s17, s16")
        a("s_lshl_b32 s17, s17, 10"); a(f"s_add_u32 s17, s17, {CH_BASE}")
        a(f"buffer_store_dwordx4 v[4:7], v2, {sr(S_WS,4)}, s17 offen sc1")
        a.label(Ls)
        a("s_add_u32 s16, s16, 1")
    Lz, Lm = a.newlabel("Pz"), a.newlabel("Pm")
    a(f"v_lshlrev_b32 v9, 2, v{L}")
    a("s_cmp_lt_u32 s19, 224"); a(f"s_cbranch_scc1 {Lz}")
    a("v_mov_b32 v8, 0"); a("s_sub_u32 s17, s19, 224"); a("s_lshl_b32 s17, s17, 8"); a(f"s_add_u32 s17, s17, {FLAGS}")
    a(f"buffer_store_dword v8, v9, {sr(S_WS,4)}, s17 offen sc1")
    a.label(Lz)
    a("s_cmp_ge_u32 s19, 256"); a(f"s_cbranch_scc1 {Lm}")
    a("s_lshl_b32 s16, s19, 8"); a(f"s_add_u32 s16, s16, {CH_MEM}")
    a("s_waitcnt vmcnt(6)")
    a(f"buffer_store_dword v10, v9, {sr(S_WS,4)}, s16 offen sc1")
    a.label(Lm)
    a("s_branch L_su_end")
    a.label("L_su_pre")
    if NPRE:
        a("s_cmp_ge_u32 s31, 4"); a("s_cbranch_scc1 L_su_end")
        a(f"s_mov_b32 m0, {LDS_SCR+1024}"); a("s_lshr_b32 s17, s2, 3"); a("s_lshl_b32 s18, s31, 3")
        a("s_cmp_ge_u32 s17, 8"); a("s_cbranch_scc1 L_su_pv")
        a(f"s_cmp_eq_u32 s{W}, 3"); a("s_cselect_b32 s34, s46, s44"); a("s_cselect_b32 s35, s47, s45")
        load_srd(a, 84, 34, 0, DM*4096*2)
        a(f"v_lshrrev_b32 v2, 4, v{L}"); a("v_lshlrev_b32 v2, 13, v2"); a(f"v_and_b32 v3, 15, v{L}"); a("v_lshl_add_u32 v2, v3, 4, v2")
        a("s_add_u32 s17, s17, s18"); a("s_lshl_b32 s79, s17, 8")
        a(f"s_cmp_eq_u32 s{W}, 2"); a(f"s_cselect_b32 s17, {4*8192}, 0"); a("s_add_u32 s79, s79, s17")
        a(f"s_mov_b32 s78, {8*8192}")
        a(f"s_cmp_eq_u32 s{W}, 3"); a(f"s_cselect_b32 s78, {4*8192}, s78")
        a("s_branch L_su_pl")
        a.label("L_su_pv")
        load_srd(a, 84, 48, 0, DM*4096*2)
        a(f"v_lshrrev_b32 v2, 3, v{L}"); a("v_lshlrev_b32 v2, 13, v2"); a(f"v_and_b32 v3, 7, v{L}"); a("v_lshl_add_u32 v2, v3, 4, v2")
        a("s_sub_u32 s17, s17, 8"); a("s_lshl_b32 s18, s18, 1"); a("s_add_u32 s17, s17, s18"); a("s_lshl_b32 s79, s17, 7")
        a(f"s_lshl_b32 s17, s{W}, 21"); a("s_add_u32 s79, s79, s17"); a(f"s_mov_b32 s78, {8*8192}")
        a.label("L_su_pl")
        for i in range(NPRE):
            a("buffer_load_dwordx4 v2, s[84:87], s79 offen lds")
            a("s_add_u32 s79, s79, s78")
    a.label("L_su_end")

def init_arrive(a, srd, vt=61):
    L = a.newlabel("Ia")
    a(f"s_cmp_lg_u32 s{S_WAVE}, 0"); a(f"s_cbranch_scc1 {L}")
    a(f"v_mov_b32 v{vt}, s101"); a("s_lshl_b32 s21, s2, 2"); a(f"s_add_u32 s21, s21, {TBL_OFF+1024}")
    a("s_mov_b64 exec, 1")
    a(f"buffer_store_dword v{vt}, off, {sr(srd,4)}, s21 sc1")
    a("s_mov_b64 exec, -1")
    a.label(L)

def init_wait(a, abort):
    load_srd(a, 20, 64, 0, 256)
    Lp, Lg = a.newlabel("Ip"), a.newlabel("Ig")
    a("s_mov_b32 s30, 0"); a("s_mov_b32 s24, 192")
    a.label(Lp)
    a("buffer_load_dword v14, off, s[20:23], s24 sc1")
    a("s_waitcnt vmcnt(0)")
    a("v_cmp_ne_u32 vcc, s101, v14")
    a(f"s_cbranch_vccz {Lg}")
    a("s_sleep 4")
    poll_tail(a, Lp, abort)
    a.label(Lg)

def worker_start(a, abort):
    a(f"s_waitcnt vmcnt({NW2})")
    a("s_barrier")
    init_arrive(a, S_FL)
    Lw, Ln, Lp, Lg = [a.newlabel("Ws") for _ in range(4)]
    L0 = a.newlabel("Ws")
    a(f"s_cmp_eq_u32 s{S_WAVE}, 0"); a(f"s_cbranch_scc1 {L0}")
    Lb = a.newlabel("Ws")
    a(f"s_cmp_lg_u32 s{S_B}, 5"); a(f"s_cbranch_scc1 {Lb}")
    a(f"v_lshrrev_b32 v2, 4, v{V_LANE}"); a("v_lshlrev_b32 v2, 13, v2"); a(f"v_and_b32 v3, 15, v{V_LANE}"); a("v_lshl_add_u32 v2, v3, 4, v2")
    a(f"s_mov_b32 m0, {LDS_SCR+1024}")
    nper = HELP // 3
    for p in ((44, 46) if HELP else ()):
        load_srd(a, 84, p, 0, DM*4096*2)
        a(f"s_sub_u32 s79, s{S_WAVE}, 1"); a(f"s_mul_i32 s79, s79, {nper*4*8192}"); a("s_lshl_b32 s78, s34, 8"); a("s_add_u32 s79, s79, s78")
        a(f"s_add_u32 s79, s79, {(1024-12*nper)*8192}"); a(f"s_mov_b32 s78, {nper}")
        Ll = a.newlabel("Ws")
        a.label(Ll)
        a("buffer_load_dwordx4 v2, s[84:87], s79 offen lds")
        a(f"s_add_u32 s79, s79, {4*8192}"); a("s_sub_u32 s78, s78, 1"); a("s_cmp_lg_u32 s78, 0"); a(f"s_cbranch_scc1 {Ll}")
    a(f"s_branch {Lw}")
    a.label(Lb)
    a("s_sub_u32 s19, s33, 128"); a("s_mul_i32 s19, s19, 3"); a(f"s_add_u32 s19, s19, s{S_WAVE}"); a("s_sub_u32 s19, s19, 1")
    a(f"v_lshlrev_b32 v2, 4, v{V_LANE}")
    warm(a, 19, NW3, NW3, 8192 - 384*NW3)
    a(f"s_branch {Lw}")
    a.label(L0)
    a("s_cmp_lg_u32 s33, 255"); a(f"s_cbranch_scc1 {Ln}")
    a(f"v_lshlrev_b32 v3, 2, v{V_LANE}"); a(f"s_mov_b32 s26, {TBL_OFF+1024}"); a("s_mov_b32 s30, 0")
    a.label(Lp)
    for k in range(4): a(f"buffer_load_dword v{8+k}, v3, {sr(S_FL,4)}, s26 offen offset:{256*k} sc1")
    a("s_waitcnt vmcnt(0)")
    for k in range(4): a(f"v_xor_b32 v{8+k}, s101, v{8+k}")
    a("v_or_b32 v5, v8, v9"); a("v_or3_b32 v5, v5, v10, v11")
    a("v_cmp_ne_u32 vcc, 0, v5")
    a(f"s_cbranch_vccz {Lg}")
    a("s_sleep 2")
    poll_tail(a, Lp, abort)
    a.label(Lg)
    load_srd(a, 20, 64, 0, 256)
    a("v_mov_b32 v5, s101"); a("s_mov_b32 s24, 192")
    a("buffer_store_dword v5, off, s[20:23], s24 sc1")
    a(f"s_branch {Lw}")
    a.label(Ln)
    Lsm, Lq = a.newlabel("Ws"), a.newlabel("Ws")
    a(f"s_cmp_eq_u32 s{S_B}, 5"); a(f"s_cbranch_scc1 {Lsm}")
    a(f"v_and_b32 v3, 7, v{V_LANE}"); a("s_and_b32 s26, s34, 3"); a("s_mul_i32 s26, s26, 7"); a("v_add_u32 v3, s26, v3")
    a("v_and_b32 v4, 3, v3"); a("v_lshrrev_b32 v3, 2, v3"); a("v_lshl_add_u32 v3, v3, 3, v4"); a("v_add_u32 v3, 4, v3"); a("v_lshlrev_b32 v3, 2, v3")
    a(f"s_mov_b32 s26, {TBL_OFF+1024}")
    a("s_mov_b32 s30, 0")
    a.label(Lq)
    a("s_sleep 6")
    a(f"buffer_load_dword v8, v3, {sr(S_FL,4)}, s26 offen sc1")
    a("s_waitcnt vmcnt(0)")
    a("v_cmp_ne_u32 vcc, s101, v8")
    a(f"s_cbranch_vccz {Lw}")
    poll_tail(a, Lq, abort)
    a.label(Lsm)
    init_wait(a, abort)
    if NRDY == 0: a(f"s_branch {Lw}")
    a(f"s_mov_b32 s26, {FL_RDY}"); a("s_mov_b32 s30, 0")
    Lr = a.newlabel("Ws")
    a.label(Lr)
    a("s_sleep 16")
    a(f"buffer_load_dword v8, off, {sr(S_FL,4)}, s26 sc1")
    a("s_waitcnt vmcnt(0)")
    a(f"v_cmp_gt_u32 vcc, {NRDY}, v8")
    a(f"s_cbranch_vccz {Lw}")
    poll_tail(a, Lr, abort)
    a.label(Lw)
    a("s_barrier")

def emit_mega(a, name, force_slow=False):
    END = "L_abort"
    Q1 = q1_list(); NSM = 32*len(SMALL); NQ1 = 8*sum(x[3] for x in Q1) - NSM
    kernel_header(a, name)
    a(f"s_cmp_lt_u32 s2, 256"); a(f"s_cbranch_scc1 L_start")
    a("s_endpgm")
    a.label("L_start")
    xstamp(a, 2)
    load_ptrs(a)
    a("v_lshrrev_b32 v2, 6, v0")
    a(f"v_and_b32 v{V_LANE}, 63, v0")
    a(f"v_readfirstlane_b32 s{S_WAVE}, v2")
    a("s_waitcnt lgkmcnt(0)")
    load_srd(a, S_WS, 66, 0, WS_SIZE)
    chain.IDLE = setup_phase
    chain.INIT_WAIT = lambda a: init_wait(a, END)
    chain.INIT_ARRIVE = lambda a: init_arrive(a, S_WS)
    chain.NYOUNG = NW2
    def rdy(a):
        L = a.newlabel("Rd")
        a(f"s_cmp_lg_u32 s{S_WAVE}, 0"); a(f"s_cbranch_scc1 {L}")
        a(f"s_mov_b32 s20, {FL_RDY}"); signal(a, 20, 1, S_WS, 61)
        a.label(L)
    chain.A_READY = rdy
    assign_roles(a, END, LDS_SCR)
    xstamp(a, 1)
    a(f"s_mov_b32 s35, s{chain.S_MODE}")
    if force_slow: a(f"s_mov_b32 s{chain.S_MODE}, 1")
    a(f"s_mov_b32 s{S_PH}, 0")
    a(f"s_sub_u32 s{S_B}, s31, 4"); a("s_cmp_lt_u32 s31, 4"); a(f"s_cselect_b32 s{S_B}, 5, s{S_B}")
    a(f"s_mov_b32 s{S_PH}, 1")

    Lf = a.newlabel("Cl")
    a(f"s_cmp_eq_u32 s{chain.S_MODE}, 0"); a(f"s_cbranch_scc1 {Lf}")
    a("s_cmp_lt_u32 s33, 128"); a(f"s_cselect_b32 s{S_B}, 5, 4")
    a.label(Lf)
    a(f"s_lshl_b32 s{S_CTR}, s{S_B}, 7"); a(f"s_add_u32 s{S_CTR}, s{S_CTR}, {FL_Q1L}")
    a("s_mov_b32 s100, 0")
    a(f"s_cmp_eq_u32 s{S_B}, 4"); a(f"s_cselect_b32 s{S_T0}, 128, 32")
    a("s_lshl_b32 s34, s31, 3"); a("s_add_u32 s34, s34, s32"); a("s_sub_u32 s34, s34, 24")
    a("s_cmp_ge_u32 s31, 4"); a("s_cselect_b32 s34, s32, s34")
    Lp5 = a.newlabel("Cl")
    a("s_cmp_eq_u32 s35, 0"); a(f"s_cbranch_scc1 {Lp5}")
    a("s_sub_u32 s34, s33, 96"); a(f"s_cmp_eq_u32 s{S_B}, 4"); a("s_cselect_b32 s20, 32, 0"); a("s_sub_u32 s34, s34, s20")
    a.label(Lp5)
    a("s_cmp_eq_u32 s29, 0"); a(f"s_cbranch_scc1 L_worker0")
    a("s_setprio 3")
    a(f"s_cmp_ge_u32 s{chain.S_R}, 8"); a(f"s_cbranch_scc1 L_vr")
    def kv_wait(a):
        Ls, Lp = a.newlabel("Kw"), a.newlabel("Kp")
        Lc = a.newlabel("Kc")
        a(f"s_and_b32 s20, s{chain.S_STEP}, 7"); a(f"s_cbranch_scc1 {Ls}")
        a.label(Lc)
        a(f"s_lshr_b32 s20, s{chain.S_STEP}, 3"); a("s_lshl_b32 s20, s20, 10"); a("s_lshr_b32 s21, s26, 1"); a("s_lshl_b32 s21, s21, 6"); a("s_add_u32 s20, s20, s21")
        a(f"s_add_u32 s20, s20, {FL_QKV}"); a("s_mov_b32 s30, 0")
        a("s_mov_b32 s21, 0xffff"); a("s_movk_i32 s22, 0x404")
        a.label(Lp)
        a(f"buffer_load_dword v15, off, {sr(S_WS,4)}, s20 sc1")
        a("s_waitcnt vmcnt(0)")
        a("v_and_b32 v15, s21, v15")
        a("v_cmp_ne_u32 vcc, s22, v15")
        a(f"s_cbranch_vccz {Ls}")
        a("s_sleep 4")
        poll_tail(a, Lp, END)
        a.label(Ls)
    def step_addr(delta):
        a(f"s_lshl_b32 s20, s{chain.S_STEP}, 2"); a(f"s_add_u32 s20, s20, s{chain.S_X}"); a("s_lshl_b32 s20, s20, 7")
        a(f"s_add_u32 s20, s20, {FL_STEP + delta*512}")
    def step_done(a, kind):
        L = a.newlabel("Sd")
        if kind in ("A", "Alast"):
            a("s_waitcnt vmcnt(0)"); a("s_barrier")
            a(f"s_cmp_lg_u32 s{S_WAVE}, 0"); a(f"s_cbranch_scc1 {L}")
            step_addr(0); signal(a, 20, 1, S_WS, 60)
        elif kind == "V3":
            step_addr(0); signal(a, 20, 1, S_WS, 60)
        elif kind == "Vlast":
            a("s_waitcnt vmcnt(0)"); a("s_barrier")
            a(f"s_cmp_lg_u32 s{S_WAVE}, 0"); a(f"s_cbranch_scc1 {L}")
            step_addr(0); signal(a, 20, 1, S_WS, 60)
        a.label(L)
    role_A(a, END, kv_wait, step_done)
    a("s_branch L_retire")
    a.label("L_vr")
    role_VR(a, END, step_done)
    a.label("L_retire")
    a("s_setprio 0")
    a(f"s_mov_b32 s{S_PH}, 2")
    load_ptrs(a)
    a(f"v_mbcnt_lo_u32_b32 v{V_LANE}, -1, 0"); a(f"v_mbcnt_hi_u32_b32 v{V_LANE}, -1, v{V_LANE}")
    a("s_waitcnt vmcnt(0) lgkmcnt(0)")
    a("s_barrier")
    load_srd(a, S_FL, 66, 0, WS_SIZE)
    a("s_branch L_worker")
    a.label(END)
    a("s_mov_b64 exec, -1")
    a(f"v_mov_b32 v4, 0x1fff"); a(f"v_mov_b32 v5, {LDS_SCR}")
    a("ds_write_b32 v5, v4")
    a("s_waitcnt lgkmcnt(0)")
    a("s_endpgm")
    a.label("L_worker0")
    load_srd(a, S_FL, 66, 0, WS_SIZE)
    worker_start(a, END)
    a.label("L_worker")
    a(f"s_mov_b32 s{S_PRE}, 0"); a(f"s_mov_b32 s{S_PVAL}, 0"); a(f"s_mov_b32 s{S_EPI}, 0")
    def run_epi(): a(f"s_call_b64 s[{S_RET}:{S_RET+1}], L_epi")
    def q1_index():
        L, L5 = a.newlabel("N"), a.newlabel("N")
        a(f"s_add_u32 s25, s25, s{S_T0}")
        a(f"s_cmp_eq_u32 s{S_B}, 5"); a(f"s_cbranch_scc1 {L5}")
        a(f"s_cmp_eq_u32 s{S_B}, 4"); a(f"s_cbranch_scc1 {L}")
        a("s_lshr_b32 s22, s25, 5"); a("s_and_b32 s25, s25, 31"); a("s_lshl_b32 s22, s22, 2"); a(f"s_add_u32 s22, s22, s{S_B}")
        a("s_lshl_b32 s22, s22, 5"); a("s_add_u32 s25, s25, s22")
        a.label(L)
        a(f"s_cmp_lt_u32 s25, {NQ1}"); a(f"s_cselect_b32 s25, s25, {NSM}"); a(f"s_cbranch_scc1 {L5}_e")
        a.label(L5)
        a(f"s_add_u32 s25, s25, {NQ1}"); a(f"s_cmp_lt_u32 s25, {NQ1+NSM}")
        a.label(f"{L5}_e")
    def publish_item():
        a("v_mov_b32 v14, s25"); a(f"v_mov_b32 v15, {LDS_SCR}")
        a("ds_write_b32 v15, v14")
    def flush():
        L, L2 = a.newlabel("Fl"), a.newlabel("Fl")
        run_epi()
        a(f"s_cmp_eq_u32 s{S_PVAL}, 0"); a(f"s_cbranch_scc1 {L}")
        finish(a, S_POFF, f"s{S_PVAL}")
        a(f"s_mov_b32 s{S_PVAL}, 0")
        a.label(L)
    def hook_first():
        L = a.newlabel("Hf")
        a(f"s_cmp_eq_u32 s{S_PVAL}, 0"); a(f"s_cbranch_scc1 {L}")
        a(f"s_mov_b32 s21, s{S_PVAL}"); a(f"s_mov_b32 s{S_PVAL}, 0")
        a(f"s_cmp_lg_u32 s{S_WAVE}, 0"); a(f"s_cbranch_scc1 {L}")
        signal(a, S_POFF, "s21", vtmp=14)
        a.label(L)
    def hook_tail():
        L = a.newlabel("Ht")
        a(f"s_cmp_lg_u32 s{S_WAVE}, 0"); a(f"s_cbranch_scc1 {L}")
        a("v_mov_b32 v14, 1")
        a("s_mov_b64 exec, 1")
        a(f"buffer_atomic_add v14, off, {sr(S_FL,4)}, s{S_CTR} sc0 sc1")
        a("s_mov_b64 exec, -1")
        a.label(L)
    def hook_tail_first():
        L = a.newlabel("Ht")
        a(f"s_cmp_lg_u32 s{S_WAVE}, 0"); a(f"s_cbranch_scc1 {L}")
        a(f"s_mov_b32 s25, s{S_LOOP}"); init_wait(a, END); a(f"s_mov_b32 s{S_LOOP}, s25")
        a.label(L)
        hook_tail()
    def after_main():
        L = a.newlabel("Am")
        wstamp(a, 2)
        a(f"s_cmp_lg_u32 s{S_WAVE}, 0"); a(f"s_cbranch_scc1 {L}")
        a("s_waitcnt vmcnt(0)")
        a("v_readfirstlane_b32 s25, v14")
        a("s_nop 3")
        q1_index()
        a(f"s_cselect_b32 s{S_PRE}, 1, 0"); a(f"s_cselect_b32 s{S_PH}, 1, 2")
        publish_item()
        a.label(L)
    HK = dict(hook_second=hook_first, hook_tail=hook_tail) if ROT else dict(hook_first=hook_first, hook_tail=hook_tail)
    Lft = a.newlabel("Ft")
    a(f"s_cmp_eq_u32 s{S_PH}, 2"); a(f"s_cbranch_scc1 {Lft}")
    a(f"s_cmp_lg_u32 s{S_WAVE}, 0"); a(f"s_cbranch_scc1 {Lft}")
    a(f"s_sub_u32 s25, s34, s{S_T0}")
    q1_index()
    publish_item()
    a(f"s_mov_b32 s{S_PRE}, 1")
    a.label(Lft)
    a.label("L_next")
    wstamp(a, 0)
    Lb, Lpub, L1, L2 = [a.newlabel("N") for _ in range(4)]
    a(f"s_cmp_lg_u32 s{S_WAVE}, 0"); a(f"s_cbranch_scc1 {Lb}")
    a(f"s_cmp_lg_u32 s{S_PRE}, 0"); a(f"s_mov_b32 s{S_PRE}, 0"); a(f"s_cbranch_scc1 {Lb}")
    a(f"s_cmp_eq_u32 s{S_PH}, 2"); a(f"s_cbranch_scc1 {L2}")
    a.label(L1)
    atomic_ret(a, 4, S_CTR, 1)
    a("v_readfirstlane_b32 s25, v4")
    a("s_nop 3")
    q1_index()
    a(f"s_cbranch_scc1 {Lpub}")
    a(f"s_mov_b32 s{S_PH}, 2")
    a.label(L2)
    a(f"s_mov_b32 s20, {FL_Q2G}")
    atomic_ret(a, 4, 20, 1)
    a("v_readfirstlane_b32 s25, v4")
    a("s_nop 3")
    a("s_min_u32 s25, s25, 0xfff"); a("s_add_u32 s25, s25, 0x1000")
    a.label(Lpub)
    publish_item()
    a.label(Lb)
    a("s_waitcnt lgkmcnt(0)")
    a("s_barrier")
    a(f"v_mov_b32 v5, {LDS_SCR}")
    a("ds_read_b32 v4, v5")
    a("s_waitcnt lgkmcnt(0)")
    a(f"v_readfirstlane_b32 s{S_ITEM}, v4")
    a("s_nop 3")
    a(f"s_cmp_ge_u32 s{S_ITEM}, 0x1000"); a(f"s_cbranch_scc1 L_qa")
    a(f"s_lshr_b32 s20, s{S_ITEM}, 3"); a(f"s_and_b32 s21, s{S_ITEM}, 7")
    base = 0
    for typ, p, c0, n in Q1:
        Ln = a.newlabel("D")
        a(f"s_cmp_ge_u32 s20, {base+n}"); a(f"s_cbranch_scc1 {Ln}")
        a(f"s_sub_u32 s20, s20, {base-c0}") if base >= c0 else a(f"s_add_u32 s20, s20, {c0-base}")
        if typ in ("DN", "W2", "W1"): a("s_mov_b32 s36, s20"); a("s_mov_b32 s37, s21")
        elif typ == "WR": a("s_lshl_b32 s37, s20, 3"); a("s_add_u32 s37, s37, s21")
        elif typ == "KS":
            a("s_lshr_b32 s38, s20, 3"); a("s_add_u32 s38, s38, 1"); a("s_and_b32 s37, s20, 7"); a("s_lshl_b32 s37, s37, 1")
            a("s_lshr_b32 s22, s21, 2"); a("s_add_u32 s37, s37, s22"); a("s_and_b32 s36, s21, 3")
        elif typ in ("K4", "G4"):
            a("s_and_b32 s36, s21, 3"); a(f"s_add_u32 s36, s36, {p}"); a("s_lshr_b32 s21, s21, 2"); a("s_lshl_b32 s37, s20, 1"); a("s_add_u32 s37, s37, s21")
            if typ == "K4": a("s_lshr_b32 s38, s37, 4"); a("s_add_u32 s38, s38, 1"); a("s_and_b32 s37, s37, 15")
        elif typ == "G8": a("s_mov_b32 s36, s21"); a("s_mov_b32 s37, s20")
        elif typ == "QA": pass
        elif typ == "K1":
            a("s_and_b32 s38, s20, 1"); a("s_add_u32 s38, s38, 1"); a("s_lshr_b32 s37, s20, 1"); a("s_lshl_b32 s37, s37, 3")
            a("s_add_u32 s37, s37, s21"); a("s_mov_b32 s36, 1")
        else:
            a(f"s_mov_b32 s36, {2*p}")
            if typ == "KV": a("s_and_b32 s38, s20, 1"); a("s_add_u32 s38, s38, 1"); a("s_lshr_b32 s20, s20, 1")
            if typ == "Q": a("s_mov_b32 s38, 0")
        a(f"s_branch L_{dict(KV='QKV', Q='QKV', K1='QKV2', K4='QKV2', G4='GU2', G8='GU2').get(typ, typ)}")
        a.label(Ln)
        base += n
    a(f"s_branch {END}")
    a.label("L_QA")
    a(f"s_cmp_eq_u32 s{S_B}, 4"); a(f"s_cselect_b32 s{S_PH}, 1, 2")
    a("s_barrier")
    a("s_branch L_next")
    def coords():
        a("s_and_b32 s22, s21, 1"); a("s_add_u32 s36, s36, s22")
        a("s_lshr_b32 s21, s21, 1"); a("s_lshl_b32 s37, s20, 2"); a("s_add_u32 s37, s37, s21")
    def done():
        if PROFW:
            wstamp(a, 3)
            a("s_waitcnt lgkmcnt(0)")
            for i in range(4): a(f"v_writelane_b32 v4, s{70+2*i}, {i}")
            a(f"v_writelane_b32 v4, s{S_ITEM}, 4"); a(f"v_writelane_b32 v4, s{S_B}, 5")
            for i in range(5): a(f"v_writelane_b32 v4, s{[24,6,52,54,80][i]}, {8+i}")
            a("s_lshl_b32 s20, s2, 5"); a("s_add_u32 s20, s20, s100"); a("s_lshl_b32 s20, s20, 6"); a(f"s_add_u32 s20, s20, {TSW_OFF}")
            a(f"v_lshlrev_b32 v5, 2, v{V_LANE}")
            a("s_mov_b64 exec, 0xffff")
            a(f"buffer_store_dword v4, v5, {sr(S_FL,4)}, s20 offen")
            a("s_mov_b64 exec, -1")
            a("s_add_u32 s100, s100, 1"); a("s_min_u32 s100, s100, 31")
        a("s_branch L_next")
    a.label("L_QKV")
    coords()
    a.label("L_QKV2")
    wstamp(a, 1)
    load_srd(a, S_SRDX, 66, XN_OFF, S*XN_STR)
    a("s_cmp_eq_u32 s38, 1"); a("s_cselect_b32 s34, s46, s44"); a("s_cselect_b32 s35, s47, s45")
    a("s_cmp_eq_u32 s38, 2"); a("s_cselect_b32 s34, s48, s34"); a("s_cselect_b32 s35, s49, s35")
    load_srd(a, S_SRDW, 34, 0, DM*4096*2)
    gq = Gemm16(a, "qk", XN_STR, 8192, "head", xflags="sc1") if M16 else Gemm(a, "qk", 4, 4, 2, XN_STR, 8192, "head", xflags="sc1")
    gv = Gemm16(a, "v", XN_STR, 8192, "head", swap=True, xflags="sc1") if M16 else Gemm(a, "v", 4, 4, 2, XN_STR, 8192, "head", swap=True, xflags="sc1")
    gq.setup()
    a(f"s_mul_i32 s{S_OFFX}, s36, {256*XN_STR}"); a(f"s_lshl_b32 s{S_OFFW}, s37, 9")
    assert K_OFF == Q_OFF + 16*MB and VT_OFF == Q_OFF + 32*MB
    gq.prologue_dma()
    run_epi()
    gq.junk = gv.junk = (LDS_SCR+1024, 13, [24, 28, 84][:NJUNK], 79) if NJUNK else None
    for r, p in ((24, 56), (28, 58), (84, 60)): load_srd(a, r, p, 0, DM*DF*2)
    a(f"s_sub_u32 s79, s{S_ITEM}, 128"); a("s_cmp_lt_u32 s79, 128")
    for r in (24, 28, 84): a(f"s_cselect_b32 s{r+2}, s{r+2}, 0")
    a("s_cselect_b32 s79, s79, 0")
    a("s_lshl_b32 s79, s79, 2"); a(f"s_add_u32 s79, s79, s{S_WAVE}"); a(f"s_mul_i32 s79, s79, {14*1024}")
    a(f"v_lshlrev_b32 v13, 4, v{V_LANE}")
    a("s_cmp_eq_u32 s38, 2"); a("s_cbranch_scc1 L_V")
    gq.main(16, dma_issued=True, **HK)
    a(f"s_mov_b32 s{S_EPI}, 1")
    a("s_branch L_QKVfin")
    a.label("L_V")
    gv.main(16, dma_issued=True, **HK)
    a(f"s_mov_b32 s{S_EPI}, 2")
    a.label("L_QKVfin")
    after_main()
    a("s_lshl_b32 s32, s36, 21"); a("s_lshl_b32 s33, s37, 14"); a("s_add_u32 s32, s32, s33")
    a("s_lshl_b32 s33, s38, 24"); a("s_add_u32 s32, s32, s33"); a(f"s_add_u32 s{S_EP0}, s32, {Q_OFF}")
    a("s_lshl_b32 s32, s36, 10"); a("s_lshl_b32 s33, s37, 6"); a("s_add_u32 s32, s32, s33"); a(f"s_add_u32 s32, s32, {FL_QKV}")
    a("s_add_u32 s33, s38, 2"); a("s_cmp_ge_u32 s33, 3"); a("s_cselect_b32 s34, 3, 0"); a("s_sub_u32 s33, s33, s34")
    a("s_lshl_b32 s33, s33, 3"); a(f"s_lshl_b32 s{S_PVAL}, 4, s33"); a(f"s_mov_b32 s{S_POFF}, s32")
    if not ROT: run_epi()
    done()
    gQ, gV = gq, gv
    a.label("L_KS")
    wstamp(a, 1)
    load_srd(a, S_SRDX, 66, XN_OFF, S*XN_STR)
    a("s_cmp_eq_u32 s38, 2"); a("s_cselect_b32 s34, s48, s46"); a("s_cselect_b32 s35, s49, s47")
    load_srd(a, S_SRDW, 34, 0, DM*4096*2)
    gq = Gemm(a, "ks", 1, 4, 3, XN_STR, 8192, "head", xflags="sc1")
    gv = Gemm(a, "vs", 1, 4, 3, XN_STR, 8192, "head", swap=True, xflags="sc1")
    gq.setup()
    a(f"s_mul_i32 s{S_OFFX}, s36, {64*XN_STR}"); a(f"s_lshl_b32 s{S_OFFW}, s37, 9")
    a("s_lshl_b32 s32, s36, 19"); a("s_lshl_b32 s33, s37, 14"); a("s_add_u32 s32, s32, s33")
    a("s_lshl_b32 s33, s38, 24"); a("s_add_u32 s32, s32, s33"); a(f"s_add_u32 s32, s32, {Q_OFF}")
    gq.prologue_dma()
    a("s_cmp_eq_u32 s38, 2"); a("s_cbranch_scc1 L_VS")
    gq.main(16, dma_issued=True, hook_tail=hook_tail_first)
    after_main()
    gq.epi_qk(S_FL, 32, "sc1")
    a("s_branch L_KSfin")
    a.label("L_VS")
    gv.main(16, dma_issued=True, hook_tail=hook_tail_first)
    after_main()
    gv.epi_v(S_FL, 32, "sc1")
    a.label("L_KSfin")
    a("s_lshl_b32 s32, s37, 6"); a(f"s_add_u32 s32, s32, {FL_QKV}")
    a("s_sub_u32 s33, s38, 1"); a("s_lshl_b32 s33, s33, 3"); a("s_lshl_b32 s33, 1, s33")
    finish(a, 32, "s33")
    done()
    a.label("L_GU")
    coords()
    a.label("L_GU2")
    wstamp(a, 1)
    g = Gemm16(a, "gu", XN_STR, DF*2, "gu", xflags="sc1") if M16 else Gemm(a, "gu", 4, 4, 2, XN_STR, DF*2, "gu", xflags="sc1")
    load_srd(a, S_SRDX, 66, XN_OFF, S*XN_STR)
    a(f"s_cmp_ge_u32 s{S_WAVE}, 2"); a("s_cselect_b32 s34, s58, s56"); a("s_cselect_b32 s35, s59, s57")
    load_srd(a, S_SRDW, 34, 0, DM*DF*2)
    g.setup()
    a(f"s_mul_i32 s{S_OFFX}, s36, {256*XN_STR}"); a(f"s_lshl_b32 s{S_OFFW}, s37, 8")
    g.prologue_dma()
    run_epi()
    if GJUNK:
        g.junk = (LDS_SCR+1024, 13, [84], 79)
        load_srd(a, 84, 60, 0, DM*DF*2)
        a(f"s_sub_u32 s79, s{S_ITEM}, 256"); a("s_cmp_lt_u32 s79, 128"); a("s_cselect_b32 s86, s86, 0"); a("s_cselect_b32 s79, s79, 0")
        a("s_lshl_b32 s79, s79, 2"); a(f"s_add_u32 s79, s79, s{S_WAVE}"); a(f"s_mul_i32 s79, s79, {14*1024}")
        a(f"v_lshlrev_b32 v13, 4, v{V_LANE}")
    g.main(16, dma_issued=True, **HK)
    after_main()
    a(f"s_mul_i32 s32, s36, {256*H_STR}"); a("s_lshl_b32 s33, s37, 10"); a("s_add_u32 s32, s32, s33"); a(f"s_add_u32 s{S_EP0}, s32, {H_OFF}")
    a(f"s_mov_b32 s{S_EPI}, 3")
    a(f"s_lshl_b32 s{S_POFF}, s36, 7"); a(f"s_add_u32 s{S_POFF}, s{S_POFF}, {FL_GU}"); a(f"s_mov_b32 s{S_PVAL}, 1")
    if not ROT: run_epi()
    done()
    a.label("L_epi")
    a(f"s_cmp_eq_u32 s{S_EPI}, 0"); a("s_cbranch_scc1 L_epi_ret")
    a(f"s_cmp_eq_u32 s{S_EPI}, 2"); a("s_cbranch_scc1 L_epi2")
    a(f"s_cmp_eq_u32 s{S_EPI}, 3"); a("s_cbranch_scc1 L_epi3")
    gQ.epi_qk(S_FL, S_EP0, "sc1")
    a("s_branch L_epi_end")
    a.label("L_epi2")
    gV.epi_v(S_FL, S_EP0, "sc1")
    a("s_branch L_epi_end")
    a.label("L_epi3")
    g.epi_gu(S_FL, S_EP0, "sc1")
    a.label("L_epi_end")
    a(f"s_mov_b32 s{S_EPI}, 0")
    a.label("L_epi_ret")
    a(f"s_setpc_b64 s[{S_RET}:{S_RET+1}]")
    a.label("L_DN")
    flush()
    a("s_lshl_b32 s32, s36, 7"); a(f"s_add_u32 s32, s32, {FL_GU}")
    wait_flags(a, lambda: a("v_mov_b32 v5, 0"), 32, 0xffffffff, 28, END, 1)
    wstamp(a, 1)
    g = Gemm16N(a, "dn", 4, 3, H_STR, 2048, xflags="sc1", wperm=M16) if N16 else Gemm(a, "dn", 4, 2, 3, H_STR, 2048, "plain", xflags="sc1", xr4=True, wperm=M16)
    load_srd(a, S_SRDX, 66, H_OFF, S*H_STR)
    load_srd(a, S_SRDW, 60, 0, DF*DM*2)
    g.setup()
    a(f"s_mul_i32 s{S_OFFX}, s36, {256*H_STR}"); a(f"s_lshl_b32 s{S_OFFW}, s37, 8")
    g.main(56, hook_tail=hook_tail)
    after_main()
    load_srd(a, 28, 66, BP_OFF, S*DM*2)
    a("s_lshl_b32 s32, s36, 19"); a("s_lshl_b32 s33, s37, 8")
    g.epi_plain(28, 32, 33, "sc1")
    a("s_lshl_b32 s32, s36, 3"); a("s_add_u32 s32, s32, s37"); a("s_lshl_b32 s32, s32, 6"); a(f"s_add_u32 s{S_POFF}, s32, {FL_DN}")
    a(f"s_mov_b32 s{S_PVAL}, 1")
    done()
    for nm, MT, NST in (("W2", 4, 3), ("W1", 2, 4)):
        a.label(f"L_{nm}")
        flush()
        sh = 0 if MT == 4 else 1
        a(f"s_lshl_b32 s32, s36, {8-sh}"); a(f"s_add_u32 s32, s32, {FL_AT}")
        if MT == 4: wait_flags(a, lambda: (a(f"v_and_b32 v5, 1, v{V_LANE}"), a("v_lshlrev_b32 v5, 7, v5")), 32, 0xffffffff, 128, END, 2)
        else: wait_flags(a, lambda: a("v_mov_b32 v5, 0"), 32, 0xffffffff, 128, END, 1)
        wstamp(a, 1)
        g = Gemm16N(a, nm, MT, NST, OA_STR, 2048, xflags="sc1") if (N16 and (MT == 4 or N16 > 1)) else Gemm(a, nm, MT, 2, NST, OA_STR, 2048, "plain", xflags="sc1", xr4=True, wperm=True)
        load_srd(a, S_SRDX, 66, OA_OFF, S*OA_STR)
        load_srd(a, S_SRDW, 50, 0, 4096*DM*2)
        g.setup()
        a(f"s_mul_i32 s{S_OFFX}, s36, {64*MT*OA_STR}"); a(f"s_lshl_b32 s{S_OFFW}, s37, 8")
        g.main(64, hook_tail=hook_tail)
        after_main()
        a(f"s_lshr_b32 s32, s36, {sh}"); a("s_lshl_b32 s32, s32, 3"); a("s_add_u32 s32, s32, s37"); a("s_lshl_b32 s32, s32, 6"); a(f"s_add_u32 s32, s32, {FL_DN}")
        wait_flags(a, lambda: a("v_mov_b32 v5, 0"), 32, 0xffffffff, 1, END, 1)
        load_srd(a, 28, 62, 0, S*DM*2)
        load_srd(a, S_SRDX, 40, 0, S*DM*2)
        load_srd(a, S_SRDW, 66, BP_OFF, S*DM*2)
        a(f"s_lshl_b32 s32, s36, {19-sh}"); a("s_lshl_b32 s33, s37, 8")
        g.epi_plain(28, 32, 33, "", final=(S_SRDX, S_SRDW, "sc1"))
        done()
    a.label("L_WR")
    flush()
    wor_item(a, END)
    done()
    a.label("L_qa")
    flush()
    a(f"s_sub_u32 s20, s{S_ITEM}, 0x1000")
    a(f"s_cmp_ge_u32 s20, {NQA}"); a(f"s_cbranch_scc1 {END}")
    Lq = a.newlabel("Px")
    a("s_cmp_ge_u32 s20, 32"); a(f"s_cbranch_scc1 {Lq}")
    for i in range(4): a(f"v_mov_b32 v{4+i}, -1")
    a(f"v_lshlrev_b32 v3, 4, v{V_LANE}"); a("s_lshl_b32 s21, s20, 16"); a(f"s_lshl_b32 s22, s{S_WAVE}, 14"); a("s_add_u32 s21, s21, s22"); a(f"s_add_u32 s21, s21, {EX_OFF}")
    for i in range(16):
        a(f"buffer_store_dwordx4 v[4:7], v3, {sr(S_FL,4)}, s21 offen offset:{(i%4)*1024} sc1")
        if i % 4 == 3: a("s_add_u32 s21, s21, 4096")
    a(f"s_mov_b32 s36, {FL_EX}")
    wstamp(a, 1); wstamp(a, 2)
    finish(a, 36, 1)
    done()
    a.label(Lq)
    a("s_sub_u32 s20, s20, 32")
    a(f"s_cmp_ge_u32 s20, {NBLK*16}"); a("s_cbranch_scc1 L_AT4")
    def attention(npair):
        sh = 0 if npair == 2 else 1
        a("s_lshr_b32 s32, s38, 3"); a("s_lshl_b32 s32, s32, 10"); a(f"s_lshr_b32 s34, s37, {sh}"); a("s_lshl_b32 s33, s34, 8")
        a("s_add_u32 s32, s32, s33"); a(f"s_add_u32 s32, s32, {FL_QKV}")
        wait_flags(a, lambda: (a(f"v_and_b32 v5, 3, v{V_LANE}"), a("v_lshlrev_b32 v5, 6, v5")), 32, 0xffffff, 0x40404, END, 4)
        a("s_lshl_b32 s32, s38, 2"); a("s_add_u32 s32, s32, s34"); a("s_lshl_b32 s32, s32, 7"); a(f"s_add_u32 s32, s32, {FL_STEP}")
        def w():
            wait_flags(a, lambda: a("v_mov_b32 v15, 0"), 32, 0xffffffff, 24, END, 1, 14, 15, 2)
            if PROFW: a("s_memrealtime s[84:85]")
        att_item(a, S_FL, 38, 37, "sc1", "sc1", npair, w, late=(npair == 1))
        if PROFW: a("s_waitcnt lgkmcnt(0)"); a("s_mov_b32 s72, s84"); a("s_mov_b32 s74, s84")
        finish(a, 36, 4*npair)
        done()
    a("s_lshr_b32 s38, s20, 2"); a("s_and_b32 s37, s20, 3")
    a("s_lshr_b32 s36, s20, 4"); a("s_lshl_b32 s36, s36, 7"); a(f"s_add_u32 s36, s36, {FL_AT}")
    attention(2)
    a.label("L_AT4")
    a(f"s_sub_u32 s20, s20, {NBLK*16}"); a("s_lshr_b32 s38, s20, 3"); a("s_and_b32 s37, s20, 7")
    a("s_lshl_b32 s36, s38, 7"); a("s_lshr_b32 s21, s37, 2"); a("s_lshl_b32 s21, s21, 6"); a("s_add_u32 s36, s36, s21")
    a(f"s_add_u32 s36, s36, {FL_ATS}"); a(f"s_add_u32 s38, s38, {4*NBLK}")
    attention(1)

def build(path, prof=False, profw=False, force_slow=False, header=""):
    global PROFW
    chain.PROF = prof; PROFW = profw
    a = Asm()
    if header: a.raw(header)
    a.raw("; @launch grid=(256,1,1) block=(256,1,1) lds=163840")
    a.raw('.amdgcn_target "amdgcn-amd-amdhsa--gfx950"')
    a.raw(".text")
    emit_mega(a, MAIN, force_slow)
    a.raw('.section .rodata,"a"')
    kernel_desc(a, MAIN, 512, 256)
    open(path, "w").write(a.text())

if __name__ == "__main__":
    build("parallel_sum__memory_aug_recurrent_mem_tr__glu_gated_geglu__prompt.s", header=open("header.txt").read())
    build("m1.s")
    build("m1_prof.s", prof=True, profw=True)
    for n in (0, 1):
        N16 = n
        build(f"m1_n{n}_prof.s", prof=True, profw=True)
    N16 = 2
    chain.FORCE_FALLBACK = True
    build("m1_fb.s")
```

```python
from common import *
from gemm import V_LANE, S_WAVE
import math
S_WS = 8; S_WT = 12; S_X = 16; S_R = 17; S_MODE = 18; S_STEP = 19
CEXP = (DH**-0.5)*math.log2(math.e)
PROF = False
NCP = 1
def NC(): return NCP
NSTEP = 64
INIT_WAIT = None
FORCE_FALLBACK = False
STAMP = None
IDLE = None
A_READY = None
NYOUNG = 0
INIT_ARRIVE = None
NPOLL = 4
NFLY = 3
PSLEEP = 1
WIN2 = 2
PER2 = 1
RS = 0
NT = 0
LATEP = False
PDELAY = 0
RSETS = 1
VLIGHT = False
VS = 0
AS = 0
WIN = 4
PER = 2
GBAR = True
GATE = 'all'
XSLEEP = 6
XGAP = 4
XAHEAD = 1

def ts(a, i):
    if PROF: a(f"s_memtime s[{70+2*i}:{71+2*i}]")
def rts(a, i):
    if PROF: a(f"s_memrealtime s[{90+2*i}:{91+2*i}]")
def ts_store(a, role_id_sreg, tmpv):
    if not PROF: return
    a("s_waitcnt lgkmcnt(0)")
    for i in range(10): a(f"v_writelane_b32 v{tmpv}, s{70+2*i}, {i}")
    a(f"v_writelane_b32 v{tmpv}, s90, 10"); a(f"v_writelane_b32 v{tmpv}, s92, 11")
    a(f"v_writelane_b32 v{tmpv}, s30, 12"); a(f"v_writelane_b32 v{tmpv}, s94, 13"); a(f"v_writelane_b32 v{tmpv}, s4, 14"); a(f"v_writelane_b32 v{tmpv}, s6, 15")
    a(f"s_lshl_b32 s20, s{role_id_sreg}, 6"); a(f"s_add_u32 s20, s20, s{S_STEP}"); a("s_lshl_b32 s20, s20, 2")
    a(f"s_add_u32 s20, s20, s{S_WAVE}"); a("s_lshl_b32 s20, s20, 6"); a(f"s_add_u32 s20, s20, {TS2_OFF}")
    a(f"v_mbcnt_lo_u32_b32 v{tmpv+1}, -1, 0"); a(f"v_lshlrev_b32 v{tmpv+1}, 2, v{tmpv+1}")
    a("s_mov_b64 exec, 0xffff")
    a(f"buffer_store_dword v{tmpv}, v{tmpv+1}, {sr(S_WS,4)}, s20 offen")
    a("s_mov_b64 exec, -1")

def local_store(a, instr):
    L1, L2 = a.newlabel("ls"), a.newlabel("ls")
    a(f"s_cmp_lg_u32 s{S_MODE}, 0")
    a(f"s_cbranch_scc1 {L1}")
    a(instr)
    a(f"s_branch {L2}")
    a.label(L1)
    a(instr + " sc1")
    a.label(L2)

def poll_tail(a, Lretry, abort):
    a("s_add_u32 s30, s30, 1")
    a(f"s_cmp_lt_u32 s30, {POLL_MAX*(8 if PROF else 1)}")
    a(f"s_cbranch_scc1 {Lretry}")
    a(f"s_branch {abort}")

def idx_reg(a, v):
    a(f"v_bfe_u32 v{v}, v{V_LANE}, 3, 1")
    a(f"v_mov_b32 v15, 0x44444444")
    a(f"v_mul_u32_u24 v{v}, 0xaaaa, v{v}")
    a(f"v_lshl_or_b32 v{v}, v{v}, 16, v{v}")
    a(f"v_add_u32 v{v}, v15, v{v}")

def tr_base(a, dst, rowbytes, row_expr, chunk_expr):
    pass

A_SC = 128*1024; A_KX = 140*1024; A_VX = 148*1024
def role_A(a, abort, kv_wait=None, step_done=None):
    L = V_LANE; W = S_WAVE
    VK1, VI, VID, VT0, VT1, VKX, VVX, VVM, VO, VKM, VSW, VSR, VSM, VL16, VKA = 15, 3, 24, 6, 7, 8, 9, 10, 11, 12, 13, 14, 0, 2, 1
    PIECE = 32; STG = [96, 104, 16]; ACC = 112
    Wq = lambda ks, t: ar((ks*2+t)*8, 8)
    Wk0 = lambda ks: vr(128+ks*8, 8)
    head = 21
    a(f"s_lshl_b32 s26, s{S_X}, 3"); a(f"s_add_u32 s26, s26, s{S_R}")
    a(f"v_lshrrev_b32 v2, 4, v{L}"); a(f"v_and_b32 v3, 15, v{L}")
    a("v_lshlrev_b32 v4, 1, v2"); a("v_xor_b32 v3, v3, v4")
    a(f"s_lshl_b32 s20, s{W}, 4"); a("v_add_u32 v2, s20, v2"); a("v_lshlrev_b32 v2, 13, v2")
    a("v_lshlrev_b32 v3, 4, v3")
    for j in range(4):
        if j >= 2: a(f"v_xor_b32 v4, 128, v3")
        else: a("v_mov_b32 v4, v3")
        a(f"v_add_u32 v4, v2, v4"); a(f"v_add_u32 v{32+j}, {4*j*8192}, v4")
    a(f"v_lshrrev_b32 v2, 3, v{L}"); a(f"v_and_b32 v3, 7, v{L}")
    a(f"v_bfe_u32 v4, v{L}, 4, 1"); a("v_lshlrev_b32 v4, 1, v4"); a("v_xor_b32 v3, v3, v4")
    a("v_add_u32 v2, s20, v2"); a("v_lshlrev_b32 v2, 13, v2")
    a("v_lshlrev_b32 v3, 4, v3")
    a("v_add_u32 v36, v2, v3")
    a("v_xor_b32 v3, 64, v3"); a("v_add_u32 v37, v2, v3"); a(f"v_add_u32 v37, {8*8192}, v37")
    a(f"v_lshrrev_b32 v2, 4, v{L}"); a(f"v_bfe_u32 v3, v{L}, 2, 2")
    a("v_lshl_add_u32 v4, v2, 3, v3")
    a(f"v_and_b32 v5, 3, v{L}"); a("v_lshlrev_b32 v5, 3, v5")
    a("v_and_b32 v2, 1, v2")
    a("v_lshl_or_b32 v15, v2, 2, v3"); a(f"v_xor_b32 v15, s{W}, v15")
    a("v_lshlrev_b32 v15, 5, v15"); a("v_lshl_add_u32 v38, v4, 8, v5"); a("v_add_u32 v39, v38, v15")
    a("v_xor_b32 v15, 128, v15"); a("v_add_u32 v40, v38, v15")
    a("v_lshrrev_b32 v3, 1, v3"); a("v_lshl_or_b32 v15, v2, 1, v3"); a(f"v_xor_b32 v15, s{W}, v15")
    a("v_lshlrev_b32 v15, 5, v15"); a(f"v_lshl_add_u32 v{VT0}, v4, 7, v5"); a(f"v_add_u32 v{VT0}, v{VT0}, v15")
    a(f"v_add_u32 v{VT1}, 65536, v{VT0}")
    load_srd(a, S_WT, 44, 0, DM*4096*2)
    load_srd(a, 28, 46, 0, DM*4096*2)
    a("s_lshl_b32 s22, s26, 8")
    a(f"s_lshl_b32 s23, s{W}, 12"); a(f"s_lshl_b32 s24, s{W}, 11"); a("s_add_u32 s24, s24, 16384")
    SLOT = 24576; NSL = 6
    def issue(ks):
        b = (ks % NSL)*SLOT
        for j in range(4):
            a(f"s_add_u32 m0, s23, {b+1024*j}"); a("s_nop 0")
            a(f"buffer_load_dwordx4 v{32+j}, {sr(S_WT,4)}, s22 offen {'nt ' if NT & 1 else ''}lds")
        for j in range(2):
            a(f"s_add_u32 m0, s24, {b+1024*j}"); a("s_nop 0")
            a(f"buffer_load_dwordx4 v{36+j}, s[28:31], s22 offen {'nt ' if NT & 4 else ''}lds")
        a(f"s_add_u32 s22, s22, {64*8192}")
    for ks in range(NSL-1):
        issue(ks)
        if ks == 0 and INIT_ARRIVE:
            a(f"s_waitcnt vmcnt({6+NYOUNG})"); a("s_barrier"); INIT_ARRIVE(a)
    a("s_lshl_b32 s25, s26, 8"); a("s_add_u32 s25, s25, 128"); a(f"s_lshl_b32 s27, s{W}, 11")
    late = 0
    def k1issue(slot):
        n = 0
        for k in range(3*slot, min(16, 3*slot+3)):
            a(f"s_add_u32 s21, s25, {k*64*8192}")
            for j in range(2):
                a(f"s_add_u32 m0, s27, {k*8192+1024*j}"); a("s_nop 0")
                a(f"buffer_load_dwordx4 v{36+j}, s[28:31], s21 offen {'nt ' if NT & 4 else ''}lds"); n += 1
        return n
    for ks in range(16):
        nxt = ks + NSL - 1
        if nxt < 16: issue(nxt)
        else: late += k1issue((ks-1) % NSL)
        a(f"s_waitcnt vmcnt({6*(min(nxt,15)-ks) + late})")
        a("s_barrier")
        b = (ks % NSL)*SLOT
        a(f"v_add_u32 v41, {b}, v39"); a(f"v_add_u32 v42, {b}, v40"); a(f"v_add_u32 v43, {b+16384}, v{VT0}")
        for q in range(4):
            ro = 32*(q >> 1) + 4*(q & 1)
            a(f"ds_read_b64_tr_b16 {ar((ks*2)*8+2*q,2)}, v41 offset:{ro*256}")
            a(f"ds_read_b64_tr_b16 {ar((ks*2+1)*8+2*q,2)}, v42 offset:{ro*256}")
            a(f"ds_read_b64_tr_b16 {vr(128+ks*8+2*q,2)}, v43 offset:{ro*128}")
        a("s_waitcnt lgkmcnt(0)")
        a("s_barrier")
    k1issue(15 % NSL)
    a(f"s_lshl_b32 s24, s{W}, 11")
    a(f"v_lshlrev_b32 v{VL16}, 4, v{L}")
    a(f"v_add_u32 v{VK1}, s24, v{VL16}")
    a("s_waitcnt vmcnt(0)")
    a("s_barrier")
    for half in range(2):
        for k8 in range(8):
            for q in range(4):
                a(f"ds_read_b64_tr_b16 {vr(32+k8*8+2*q,2)}, v{VT0+half} offset:{k8*8192+4096*(q>>1)+512*(q&1)}")
        a("s_waitcnt lgkmcnt(0)")
        a("s_barrier")
        for k8 in range(8):
            for q in range(2):
                a(f"ds_write_b128 v{VK1}, {vr(32+k8*8+4*q,4)} offset:{k8*8192+1024*q}")
        a("s_waitcnt lgkmcnt(0)")
        if half == 0: a(f"v_add_u32 v{VK1}, 65536, v{VK1}")
    a(f"v_mov_b32 v{VT1}, v{VK1}"); a(f"v_subrev_u32 v{VT0}, 65536, v{VK1}")
    idx_reg(a, VI)
    a(f"v_and_b32 v32, 15, v{L}"); a(f"v_bfe_u32 v33, v{L}, 4, 1"); a("v_lshlrev_b32 v33, 2, v33"); a("v_sub_u32 v32, v32, v33")
    a("v_mov_b32 v33, 0x3f80"); a("v_mov_b32 v34, 0x3f800000")
    for h in range(4):
        e = 2*(h & 1) + 8*(h >> 1)
        a(f"v_cmp_eq_u32 vcc, {e}, v32"); a("s_nop 1"); a(f"v_cndmask_b32 v{VID+h}, 0, v33, vcc")
        a(f"v_cmp_eq_u32 vcc, {e+1}, v32"); a("s_nop 1"); a(f"v_cndmask_b32 v{VID+h}, v{VID+h}, v34, vcc")
    a(f"s_lshl_b32 s20, s{W}, 8"); a(f"s_lshl_b32 s21, s{W}, 10")
    a(f"v_add_u32 v{VKX}, s21, v{VL16}")
    a(f"v_lshrrev_b32 v34, 4, v{L}"); a(f"v_and_b32 v33, 7, v{L}"); a("v_lshlrev_b32 v33, 4, v33"); a(f"v_lshl_add_u32 v{VKM}, v34, 7, v33")
    a(f"s_lshl_b32 s21, s{W}, 9"); a(f"v_add_u32 v{VKM}, s21, v{VKM}")
    a(f"v_and_b32 v33, 15, v{L}"); a(f"v_lshrrev_b32 v34, 4, v{L}")
    a(f"v_lshlrev_b32 v{VVM}, 4, v33"); a(f"v_lshl_add_u32 v{VVM}, v34, 2, v{VVM}"); a(f"v_add_u32 v{VVM}, s20, v{VVM}")
    a(f"v_lshlrev_b32 v{VO}, 4, v33"); a(f"v_lshl_add_u32 v{VO}, v34, 7, v{VO}")
    a(f"s_lshl_b32 s21, s{W}, 9"); a(f"s_lshl_b32 s22, s{S_R}, 11"); a("s_add_u32 s21, s21, s22"); a(f"v_add_u32 v{VO}, s21, v{VO}")
    a(f"s_mul_i32 s21, s{W}, 3072"); a(f"s_add_u32 s21, s21, {A_SC}"); a(f"v_add_u32 v{VSW}, s21, v{VL16}")
    a(f"v_and_b32 v35, 7, v{L}"); a(f"v_bfe_u32 v36, v{L}, 3, 1")
    a("v_lshl_add_u32 v37, v34, 4, v35"); a("v_lshlrev_b32 v37, 4, v37"); a(f"v_lshl_add_u32 v{VSR}, v36, 10, v37")
    a(f"v_add_u32 v{VSR}, {A_SC}, v{VSR}")
    a("v_lshl_add_u32 v37, v34, 1, v36")
    a("v_lshrrev_b32 v38, 2, v37"); a("v_add_u32 v38, 2, v38"); a("v_lshl_add_u32 v38, v38, 4, v35"); a("v_lshlrev_b32 v38, 4, v38")
    a("v_and_b32 v37, 3, v37"); a(f"v_lshl_add_u32 v{VSM}, v37, 2, v38"); a(f"v_add_u32 v{VSM}, {A_SC+2048}, v{VSM}")
    a(f"s_lshl_b32 s27, s{W}, 11")
    a(f"v_add_u32 v{VKA}, s27, v{VL16}"); a(f"v_add_u32 v{VKA}, {A_KX}, v{VKA}")
    a(f"v_and_b32 v5, 0x30, v{VL16}"); a("v_lshlrev_b32 v5, 6, v5"); a(f"s_lshl_b32 s20, s{W}, 12"); a("v_add_u32 v5, s20, v5")
    a("s_mov_b32 s34, 0x00ff00ff"); a("s_mov_b32 s35, 0x00ff00ff")
    a("s_mov_b32 s36, 0xff00ff00"); a("s_mov_b32 s37, 0xff00ff00")
    a(f"s_mov_b32 s38, {f2u(CEXP):#x}")
    def kv_prefetch():
        if kv_wait: kv_wait(a)
        a(f"s_lshl_b32 s20, s{S_STEP}, 5"); a("s_add_u32 s20, s20, s26"); a("s_lshl_b32 s20, s20, 13")
        a(f"s_add_u32 s21, s20, {VT_OFF}"); a(f"s_add_u32 s20, s20, {K_OFF}")
        for t in range(2):
            a(f"s_add_u32 m0, s27, {A_KX+1024*t}"); a("s_nop 0")
            a(f"buffer_load_dwordx4 v{VKX}, {sr(S_WS,4)}, s20 offen sc1 lds")
            a(f"s_add_u32 m0, s27, {A_VX+1024*t}"); a("s_nop 0")
            a(f"buffer_load_dwordx4 v{VKX}, {sr(S_WS,4)}, s21 offen sc1 lds")
            if t == 0: a("s_add_u32 s20, s20, 4096"); a("s_add_u32 s21, s21, 4096")
    a(f"s_mov_b32 s{S_STEP}, 0")
    rts(a, 1)
    if INIT_WAIT:
        a("v_mov_b32 v60, v14"); INIT_WAIT(a); a("v_mov_b32 v14, v60")
        A_READY(a)
    kv_prefetch()
    a("s_waitcnt vmcnt(0)")
    a("s_barrier")
    if PROF: a("s_memrealtime s[94:95]")
    def k1read(ks):
        st = STG[ks % 3]; base = VT0 if ks < 8 else VT1
        return [f"ds_read_b128 {vr(st+4*q,4)}, v{base} offset:{(ks%8)*8192+1024*q}" for q in range(2)]
    a.label("L_A_step")
    a("s_mov_b32 s30, 0"); a("s_mov_b32 s32, 0")
    a(f"s_and_b32 s39, s{S_STEP}, 3"); a("s_lshl_b32 s39, s39, 16")
    a(f"s_lshl_b32 s21, s{S_X}, 14"); a("s_add_u32 s25, s39, s21")
    a(f"s_add_u32 s20, s25, {CH_MEM}")
    for i in range(1, 4): a(f"s_add_u32 s{20+i}, s20, {4096*i}")
    for i in range(16): a(f"v_mov_b32 v{ACC+i}, 0")
    def pload(i):
        a(f"buffer_load_dwordx4 {vr(PIECE+4*i,4)}, v{VL16}, {sr(S_WS,4)}, s{20+i//4} offen offset:{(i%4)*1024} sc1")
    def k1r(ks, pos):
        st = STG[pos % 3]; base = VT0 if ks < 8 else VT1
        return [f"ds_read_b128 {vr(st+4*q,4)}, v{base} offset:{(ks%8)*8192+1024*q}" for q in range(2)]
    Lk = [a.newlabel("Ak") for _ in range(5)]
    for q in range(1, 4): a(f"s_cmp_eq_u32 s{W}, {q}"); a(f"s_cbranch_scc1 {Lk[q]}")
    for q in range(4):
        a.label(Lk[q])
        for x in k1r(4*q, 0) + k1r(4*q+1, 1): a(x)
        if q < 3: a(f"s_branch {Lk[4]}")
    a.label(Lk[4])
    def sload(k): a(f"buffer_load_dword v{28+k}, v5, {sr(S_WS,4)}, s20 offen sc1")
    def polls():
        for k in range(NFLY):
            sload(k)
            if k < NFLY-1: a(f"s_sleep {PSLEEP}")
    polls()
    a.label("L_A_poll")
    for k in range(NFLY):
        a(f"s_waitcnt vmcnt({NFLY-1})")
        a(f"v_cmp_eq_u32 vcc, -1, v{28+k}")
        a("s_cbranch_vccz L_A_pre")
        sload(k)
    poll_tail(a, "L_A_poll", abort)
    a.label("L_A_pre")
    for q in range(1, 4): a(f"s_cmp_eq_u32 s{W}, {q}"); a(f"s_cbranch_scc1 L_A_pre{q}")
    for q in range(4):
        a.label(f"L_A_pre{q}")
        for i in range(4): pload(4*q+i)
        a("s_barrier")
        a(f"s_branch L_A_go{q}")
    a.label("L_A_redo")
    a("s_nop 7")
    for i in range(16): a(f"v_mov_b32 v{ACC+i}, 0")
    a("s_add_u32 s32, s32, 1"); a(f"s_cmp_ge_u32 s32, {POLL_MAX}"); a(f"s_cbranch_scc1 {abort}")
    if PROF: a("s_add_u32 s30, s30, 0x10000")
    for i in range(4): pload(i)
    for x in k1r(0, 0) + k1r(1, 1): a(x)
    for q in range(4):
        a.label(f"L_A_go{q}")
        ts(a, 0)
        order = [(4*q + i) % 16 for i in range(16)]
        issued = 4
        for _ in range(WIN2): pload(order[issued]); issued += 1
        for pos, ks in enumerate(order):
            P = vr(PIECE+4*ks, 4)
            if pos in (0, 4, 8, 12): ts(a, 5+pos//4)
            a(f"s_waitcnt vmcnt({issued-1-pos}) lgkmcnt({0 if (pos == 15 or (PROF and pos % 4 == 0)) else 2})")
            a(f"v_smfmac_f32_16x16x64_bf16 {vr(ACC,4)}, {P}, {Wq(ks,0)}, v{VI}")
            if issued < 16: pload(order[issued]); issued += 1
            a(f"v_smfmac_f32_16x16x64_bf16 {vr(ACC+12,4)}, {P}, {vr(STG[pos % 3],8)}, v{VI}")
            rd = k1r(order[pos+2], pos+2) if pos+2 < 16 else []
            for x in rd[:1]: a(x)
            if PER2 > 1 and issued < 16: pload(order[issued]); issued += 1
            a(f"v_smfmac_f32_16x16x64_bf16 {vr(ACC+4,4)}, {P}, {Wq(ks,1)}, v{VI}")
            for x in rd[1:]: a(x)
            if pos == 1: a(f"v_max_u32 v15, v{PIECE+4*order[0]}, v{PIECE+4*ks}")
            elif pos % 2 == 1: a(f"v_max3_u32 v15, v15, v{PIECE+4*order[pos-1]}, v{PIECE+4*ks}")
            if pos == 15: a("v_cmp_eq_u32 vcc, -1, v15")
            a(f"v_smfmac_f32_16x16x64_bf16 {vr(ACC+8,4)}, {P}, {Wk0(ks)}, v{VI}")
        if q < 3: a("s_branch L_A_g1")
    a.label("L_A_g1")
    a("s_cbranch_vccnz L_A_redo")
    ts(a, 1)
    KX = 48; VX = 56; VM = 64; Y = 68; X = 72; T = 72; SX = 84; SM = 96+8
    for t in range(2): a(f"ds_read_b128 {vr(KX+4*t,4)}, v{VKA} offset:{1024*t}")
    for t in range(2): a(f"ds_read_b128 {vr(VX+4*t,4)}, v{VKA} offset:{A_VX-A_KX+1024*t}")
    a("s_lshl_b32 s21, s26, 11"); a("s_add_u32 s20, s39, s21"); a(f"s_add_u32 s24, s20, {CH_VM}")
    a("s_nop 1")
    for t in range(2):
        a(f"v_cvt_pk_bf16_f32 v{X+4*t}, v{ACC+4*t}, v{ACC+4*t+1}"); a(f"v_cvt_pk_bf16_f32 v{X+4*t+1}, v{ACC+4*t+2}, v{ACC+4*t+3}")
        a(f"v_cvt_pk_bf16_f32 v{X+4*t+2}, v{ACC+8+4*t}, v{ACC+8+4*t+1}"); a(f"v_cvt_pk_bf16_f32 v{X+4*t+3}, v{ACC+8+4*t+2}, v{ACC+8+4*t+3}")
    a("s_nop 0")
    a(f"v_mfma_f32_16x16x32_bf16 {vr(ACC+8,4)}, {vr(X,4)}, {vr(VID,4)}, 0")
    a(f"v_mfma_f32_16x16x32_bf16 {vr(ACC+12,4)}, {vr(X+4,4)}, {vr(VID,4)}, 0")
    a("s_nop 0")
    a(f"v_mov_b32 v{VM+1}, 0"); a(f"v_mov_b32 v{VM+3}, 0")
    a(f"s_lshl_b32 s20, s{S_STEP}, 5"); a("s_add_u32 s20, s20, s26"); a("s_lshl_b32 s20, s20, 12"); a(f"s_add_u32 s20, s20, {KVM_OFF}")
    a(f"v_cvt_pk_bf16_f32 v{Y}, v{ACC+8}, v{ACC+9}"); a(f"v_cvt_pk_bf16_f32 v{Y+1}, v{ACC+10}, v{ACC+11}")
    a(f"v_cvt_pk_bf16_f32 v{Y+2}, v{ACC+12}, v{ACC+13}"); a(f"v_cvt_pk_bf16_f32 v{Y+3}, v{ACC+14}, v{ACC+15}")
    a("s_waitcnt lgkmcnt(0)")
    a("s_nop 0")
    a(f"v_mfma_f32_16x16x32_bf16 {vr(T,4)}, {vr(KX,4)}, {vr(Y,4)}, 0")
    a(f"v_mfma_f32_16x16x32_bf16 {vr(T+4,4)}, {vr(KX+4,4)}, {vr(Y,4)}, 0")
    a(f"v_mfma_f32_16x16x32_bf16 {vr(T+8,4)}, {vr(Y,4)}, {vr(Y,4)}, 0")
    a(f"s_cmp_eq_u32 s{S_STEP}, {NSTEP-1}")
    a("s_cbranch_scc1 L_A_last")
    a("s_nop 3")
    a(f"ds_write_b128 v{VSW}, {vr(T,4)}")
    a(f"ds_write_b128 v{VSW}, {vr(T+4,4)} offset:1024")
    a(f"ds_write_b128 v{VSW}, {vr(T+8,4)} offset:2048")
    ts(a, 2)
    a(f"buffer_load_dword v{VM}, v{VVM}, {sr(S_WS,4)}, s24 offen sc1")
    a(f"buffer_load_dword v{VM+2}, v{VVM}, {sr(S_WS,4)}, s24 offen offset:1024 sc1")
    a("s_mov_b64 exec, s[36:37]")
    a(f"buffer_store_dwordx4 {vr(Y,4)}, v{VKM}, {sr(S_WS,4)}, s20 offen sc1")
    a("s_mov_b64 exec, -1")
    a("s_waitcnt lgkmcnt(0)")
    a("s_barrier")
    for pw in range(4):
        a(f"ds_read_b128 {vr(SX+4*pw,4)}, v{VSR} offset:{pw*3072}")
        a(f"ds_read_b32 v{SM+pw}, v{VSM} offset:{pw*3072}")
    a("s_waitcnt lgkmcnt(4)")
    a(f"v_pk_add_f32 {vr(SX,2)}, {vr(SX,2)}, {vr(SX+4,2)}"); a(f"v_pk_add_f32 {vr(SX+2,2)}, {vr(SX+2,2)}, {vr(SX+6,2)}")
    a(f"v_add_f32 v{SM}, v{SM}, v{SM+1}")
    a("s_waitcnt lgkmcnt(0)")
    a(f"v_pk_add_f32 {vr(SX+8,2)}, {vr(SX+8,2)}, {vr(SX+12,2)}"); a(f"v_pk_add_f32 {vr(SX+10,2)}, {vr(SX+10,2)}, {vr(SX+14,2)}")
    a(f"v_add_f32 v{SM+2}, v{SM+2}, v{SM+3}")
    a(f"v_pk_add_f32 {vr(SX,2)}, {vr(SX,2)}, {vr(SX+8,2)}"); a(f"v_pk_add_f32 {vr(SX+2,2)}, {vr(SX+2,2)}, {vr(SX+10,2)}")
    a(f"v_add_f32 v{SM}, v{SM}, v{SM+2}")
    M = SX+4; TM = SX+5
    def fold(op, r):
        a("s_nop 1")
        a(f"{op}_dpp v{r}, v{r}, v{r} row_ror:8 row_mask:0xf bank_mask:0xf")
        for sw in ("v_permlane16_swap_b32", "v_permlane32_swap_b32"):
            a(f"v_mov_b32 v{TM}, v{r}"); a("s_nop 1"); a(f"{sw} v{r}, v{TM}"); a(f"{op} v{r}, v{r}, v{TM}")
    a(f"v_max3_f32 v{M}, v{SX}, v{SX+1}, v{SX+2}"); a(f"v_max3_f32 v{M}, v{M}, v{SX+3}, v{SM}")
    fold("v_max_f32", M)
    a(f"v_mul_f32 v{M}, s38, v{M}")
    for r in (SX, SX+1, SX+2, SX+3, SM): a(f"v_fma_f32 v{r}, v{r}, s38, -v{M}")
    for r in (SX, SX+1, SX+2, SX+3, SM): a(f"v_exp_f32 v{r}, v{r}")
    a("s_waitcnt vmcnt(1)")
    a(f"v_max_u32 v{TM}, v{VM}, v{VM+2}")
    a(f"v_cmp_eq_u32 vcc, -1, v{TM}")
    PX = SX+8; PM = SX+12
    a(f"v_mov_b32 v{PM+1}, 0")
    a(f"v_cvt_pk_bf16_f32 v{PX}, v{SX}, v{SX+1}"); a(f"v_cvt_pk_bf16_f32 v{PX+1}, v{SX+2}, v{SX+3}")
    a(f"v_mov_b32_dpp v{SM+1}, v{SM} row_ror:8 row_mask:0xf bank_mask:0xf")
    a(f"v_add_f32 v{M}, v{SX}, v{SX+1}")
    a(f"v_mov_b32_dpp v{PX+2}, v{PX} row_ror:8 row_mask:0xf bank_mask:0xf")
    a(f"v_mov_b32_dpp v{PX+3}, v{PX+1} row_ror:8 row_mask:0xf bank_mask:0xf")
    a(f"v_cvt_pk_bf16_f32 v{PM}, v{SM}, v{SM+1}")
    a(f"v_add_f32 v{SX+2}, v{SX+2}, v{SX+3}")
    ts(a, 3)
    a(f"v_mfma_f32_16x16x32_bf16 {vr(T,4)}, {vr(VX,4)}, {vr(PX,4)}, 0")
    a(f"v_add_f32 v{M}, v{M}, v{SM}")
    a(f"v_mfma_f32_16x16x32_bf16 {vr(T+4,4)}, {vr(VX+4,4)}, {vr(PX,4)}, 0")
    a(f"v_add_f32 v{M}, v{M}, v{SX+2}")
    a(f"s_cbranch_vccnz L_A_vmfix")
    a.label("L_A_vmok")
    a(f"v_mfma_f32_16x16x16_bf16 {vr(T,4)}, {vr(VM,2)}, {vr(PM,2)}, {vr(T,4)}")
    a(f"v_add_f32_dpp v{M}, v{M}, v{M} row_ror:8 row_mask:0xf bank_mask:0xf")
    a(f"v_mfma_f32_16x16x16_bf16 {vr(T+4,4)}, {vr(VM+2,2)}, {vr(PM,2)}, {vr(T+4,4)}")
    for sw in ("v_permlane16_swap_b32", "v_permlane32_swap_b32"):
        a(f"v_mov_b32 v{TM}, v{M}"); a("s_nop 1"); a(f"{sw} v{M}, v{TM}"); a(f"v_add_f32 v{M}, v{M}, v{TM}")
    a(f"v_rcp_f32 v{M}, v{M}")
    a(f"s_add_u32 s20, s25, {CH_OX}")
    for i in range(8): a(f"v_mul_f32 v{T+i}, v{T+i}, v{M}")
    for i in range(4): a(f"v_cvt_pk_bf16_f32 v{Y+i}, v{T+2*i}, v{T+2*i+1}")
    a("s_mov_b64 exec, s[34:35]")
    local_store(a, f"buffer_store_dwordx4 {vr(Y,4)}, v{VO}, {sr(S_WS,4)}, s20 offen")
    ts(a, 4); rts(a, 0)
    for i in range(4): a(f"v_mov_b32 v{T+i}, -1")
    a(f"s_add_u32 s21, s25, {3*65536}"); a(f"s_and_b32 s21, s21, {4*65536-1}"); a(f"s_add_u32 s21, s21, {CH_OX}")
    local_store(a, f"buffer_store_dwordx4 {vr(T,4)}, v{VO}, {sr(S_WS,4)}, s21 offen")
    a("s_mov_b64 exec, -1")
    if step_done: step_done(a, "A")
    ts_store(a, 26, 60)
    a(f"s_add_u32 s{S_STEP}, s{S_STEP}, 1")
    kv_prefetch()
    if AS: a(f"s_sleep {AS}")
    a("s_branch L_A_step")
    a.label("L_A_vmfix")
    a(f"buffer_load_dword v{VM}, v{VVM}, {sr(S_WS,4)}, s24 offen sc1")
    a(f"buffer_load_dword v{VM+2}, v{VVM}, {sr(S_WS,4)}, s24 offen offset:1024 sc1")
    a("s_waitcnt vmcnt(0)")
    a(f"v_max_u32 v{TM}, v{VM}, v{VM+2}")
    a(f"v_cmp_eq_u32 vcc, -1, v{TM}")
    a("s_cbranch_vccz L_A_vmok")
    poll_tail(a, "L_A_vmfix", abort)
    a.label("L_A_last")
    a("s_mov_b64 exec, s[36:37]")
    a(f"buffer_store_dwordx4 {vr(Y,4)}, v{VKM}, {sr(S_WS,4)}, s20 offen sc1")
    a("s_mov_b64 exec, -1")
    if step_done: step_done(a, "Alast")

R_PS, R_HS, R_GS, R_CS = 2368, 1184, 288, 144
VR_V = 0; VR_R = 16384; VR_X = 40960
SCP = 52
def role_VR(a, abort, step_done=None):
    L = V_LANE; W = S_WAVE
    VI, VL16, VWV, VRV, VWR, VRR, VSV, VSP, VPL2, VSM, VPL = 3, 4, 5, 6, 7, 8, 9, 10, 12, 13, 16
    PIECE = 32; ACC = 48; RD = 64; POIS = 96
    a(f"s_sub_u32 s{S_R}, s{S_R}, 8")
    a(f"s_lshl_b32 s26, s{S_X}, 3"); a(f"s_lshr_b32 s20, s{S_R}, 1"); a("s_add_u32 s26, s26, s20")
    a(f"s_lshl_b32 s27, s{W}, 15")
    a(f"v_lshrrev_b32 v2, 4, v{L}"); a(f"v_bfe_u32 v3, v{L}, 2, 2")
    a(f"v_and_b32 v5, 3, v{L}"); a("v_lshlrev_b32 v5, 3, v5"); a("v_add_u32 v5, s27, v5")
    a("v_and_b32 v6, 1, v2")
    a("v_lshrrev_b32 v7, 1, v3"); a("v_lshl_or_b32 v8, v6, 1, v7")
    a("v_lshl_add_u32 v4, v2, 3, v3"); a("v_lshl_add_u32 v9, v4, 7, v5")
    a("v_lshrrev_b32 v4, 1, v2"); a("v_lshlrev_b32 v4, 3, v4"); a("v_lshl_add_u32 v4, v6, 6, v4"); a("v_lshl_add_u32 v4, v7, 2, v4")
    a("v_and_b32 v10, 1, v3"); a("v_add_u32 v4, v4, v10"); a("v_lshl_add_u32 v10, v4, 7, v5")
    for t in range(4):
        a(f"v_xor_b32 v4, {t}, v8"); a("v_lshlrev_b32 v4, 5, v4")
        a(f"v_add_u32 v{32+t}, v9, v4"); a(f"v_add_u32 v{36+t}, v10, v4")
    for part in range(2):
        stride = 8192 if part == 0 else 2048
        a(f"v_lshrrev_b32 v2, 3, v{L}"); a(f"v_and_b32 v3, 7, v{L}")
        a(f"v_bfe_u32 v4, v{L}, {4 if part == 0 else 5}, 1"); a("v_lshlrev_b32 v4, 1, v4"); a("v_xor_b32 v3, v3, v4")
        a(f"v_lshlrev_b32 v2, {13 if part == 0 else 11}, v2"); a("v_lshlrev_b32 v3, 4, v3")
        a("v_add_u32 v40, v2, v3"); a("v_xor_b32 v3, 64, v3"); a("v_add_u32 v41, v2, v3")
        if part == 0:
            load_srd(a, S_WT, 48, 0, DM*4096*2)
            a("s_lshl_b32 s22, s26, 8"); a(f"s_and_b32 s20, s{S_R}, 1"); a("s_lshl_b32 s20, s20, 7"); a("s_add_u32 s22, s22, s20")
            a(f"s_lshl_b32 s20, s{W}, 21"); a("s_add_u32 s22, s22, s20")
        else:
            load_srd(a, S_WT, 50, 0, 4096*DM*2)
            a(f"s_lshl_b32 s22, s{S_X}, 21"); a(f"s_lshl_b32 s20, s{W}, 19"); a("s_add_u32 s22, s22, s20")
            a(f"s_lshl_b32 s20, s{S_R}, 7"); a("s_add_u32 s22, s22, s20")
        for j in range(32):
            odd = (j & 1) if part == 0 else ((j >> 3) & 1)
            a(f"s_add_u32 m0, s27, {1024*j}"); a("s_nop 0")
            a(f"buffer_load_dwordx4 v{40+odd}, {sr(S_WT,4)}, s22 offen {'nt ' if (NT & 2 and part == 1) or (NT & 4 and part == 0) else ''}lds")
            a(f"s_add_u32 s22, s22, {8*stride}")
            if part == 0 and j == 5 and INIT_ARRIVE:
                a(f"s_waitcnt vmcnt({6+NYOUNG})"); a("s_barrier"); INIT_ARRIVE(a)
        a("s_waitcnt vmcnt(0)")
        for kk in range(4):
            for t in range(4):
                for q in range(4):
                    if part == 0: off = (64*kk + 32*(q >> 1) + 4*(q & 1))*128
                    else: off = (128*(kk >> 1) + 32*(kk & 1) + 16*(q >> 1) + 2*(q & 1))*128
                    a(f"ds_read_b64_tr_b16 {ar(part*128+(kk*4+t)*8+2*q,2)}, v{32+4*part+t} offset:{off}")
            a("s_waitcnt lgkmcnt(0)")
    a("s_barrier")
    idx_reg(a, VI)
    a(f"v_lshlrev_b32 v{VL16}, 4, v{L}")
    a(f"s_lshl_b32 s20, s{W}, 12")
    a(f"v_add_u32 v{VWV}, s20, v{VL16}")
    a(f"v_add_u32 v2, s20, v{VL16}")
    a(f"s_and_b32 s21, s{W}, 1"); a("s_lshl_b32 s22, s21, 11")
    a(f"v_lshrrev_b32 v14, 5, v{L}"); a(f"v_and_b32 v15, 31, v{L}"); a("v_lshlrev_b32 v15, 4, v15")
    a(f"v_lshl_add_u32 v{VRV}, v14, 10, v15"); a(f"v_add_u32 v{VRV}, s22, v{VRV}")
    a(f"v_and_b32 v15, 15, v{L}"); a("v_lshl_add_u32 v15, v14, 4, v15"); a("v_lshlrev_b32 v15, 4, v15")
    a(f"v_bfe_u32 v14, v{L}, 4, 1"); a(f"v_lshl_add_u32 v{VSV}, v14, 3, v15")
    a("s_lshl_b32 s22, s21, 9"); a(f"s_and_b32 s23, s{S_R}, 1"); a("s_lshl_b32 s23, s23, 10"); a("s_add_u32 s22, s22, s23")
    a(f"v_add_u32 v{VSV}, s22, v{VSV}")
    a(f"s_mul_i32 s22, s{W}, {R_PS}"); a(f"s_add_u32 s22, s22, {VR_R}")
    a(f"v_lshrrev_b32 v14, 5, v{L}"); a(f"v_mul_u32_u24 v{VWR}, {R_GS}, v14")
    a(f"v_bfe_u32 v14, v{L}, 3, 1"); a(f"v_mul_u32_u24 v14, {R_HS}, v14"); a(f"v_add_u32 v{VWR}, v{VWR}, v14")
    a(f"v_bfe_u32 v14, v{L}, 1, 1"); a(f"v_mul_u32_u24 v14, {R_CS}, v14"); a(f"v_add_u32 v{VWR}, v{VWR}, v14")
    a(f"v_bfe_u32 v14, v{L}, 4, 1"); a(f"v_lshl_add_u32 v{VWR}, v14, 6, v{VWR}")
    a(f"v_bfe_u32 v14, v{L}, 2, 1"); a(f"v_lshl_add_u32 v{VWR}, v14, 3, v{VWR}")
    a(f"v_and_b32 v14, 1, v{L}"); a(f"v_lshl_add_u32 v{VWR}, v14, 2, v{VWR}")
    a(f"v_add_u32 v{VWR}, s22, v{VWR}")
    a(f"s_mul_i32 s22, s21, {R_HS}"); a(f"s_add_u32 s22, s22, {VR_R}")
    a(f"v_lshrrev_b32 v14, 4, v{L}"); a(f"v_mul_u32_u24 v{VRR}, {R_GS}, v14")
    a(f"v_bfe_u32 v14, v{L}, 3, 1"); a(f"v_mul_u32_u24 v14, {R_CS}, v14"); a(f"v_add_u32 v{VRR}, v{VRR}, v14")
    a(f"v_and_b32 v14, 7, v{L}"); a(f"v_lshl_add_u32 v{VRR}, v14, 4, v{VRR}")
    a(f"v_add_u32 v{VPL2}, {VR_R}, v{VRR}")
    a(f"v_add_u32 v{VRR}, s22, v{VRR}")
    a(f"s_lshl_b32 s22, s{S_R}, 14")
    for k in range(3):
        a(f"s_add_u32 s23, s{S_X}, {k+1}"); a("s_and_b32 s23, s23, 3"); a("s_lshl_b32 s23, s23, 11"); a("s_add_u32 s23, s23, s22")
        a(f"v_add_u32 v{VPL+k}, s23, v{VL16}")
    a("s_lshl_b32 s23, s21, 10"); a("s_add_u32 s22, s22, s23")
    a(f"s_lshl_b32 s23, s{S_X}, 11"); a("s_add_u32 s22, s22, s23"); a(f"v_add_u32 v{VSP}, s22, v{VL16}")
    a(f"s_lshl_b32 s22, s{S_R}, 10"); a(f"v_add_u32 v{VSM}, s22, v{VL16}")
    for i in range(4): a(f"v_mov_b32 v{POIS+i}, -1")
    a(f"v_and_b32 v23, 7, v{L}"); a("v_lshlrev_b32 v23, 9, v23"); a(f"s_lshl_b32 s22, s{W}, 12"); a("v_add_u32 v23, s22, v23")
    if PROF: a("s_memrealtime s[6:7]")
    if INIT_WAIT: INIT_WAIT(a)
    Lc, Lp = a.newlabel("Cal"), a.newlabel("Cal")
    a(f"s_or_b32 s22, s{S_X}, s{S_R}"); a(f"s_or_b32 s22, s22, s{W}"); a("s_cmp_lg_u32 s22, 0"); a(f"s_cbranch_scc1 {Lc}")
    a("s_mov_b32 s34, 0x100")
    for pg in range(1):
        for c in range(2):
            for k in range(4):
                a(f"s_mov_b32 s23, {CH_PART + pg*2*MB + c*8192 + k*16384 + 1024*k}")
                a("s_memtime s[36:37]")
                a("s_waitcnt lgkmcnt(0)")
                a(f"buffer_load_dword v14, off, {sr(S_WS,4)}, s23 sc1")
                a("s_waitcnt vmcnt(0)")
                a("s_memtime s[38:39]")
                a("s_waitcnt lgkmcnt(0)")
                a("s_sub_u32 s36, s38, s36")
                if k == 0: a(f"s_mov_b32 s{20+c}, s36")
                else: a(f"s_min_u32 s{20+c}, s{20+c}, s36")
        a("s_cmp_lt_u32 s21, s20"); a(f"s_cselect_b32 s36, {1 << pg}, 0"); a("s_or_b32 s34, s34, s36")
    a("v_mov_b32 v14, s34"); a(f"s_mov_b32 s23, {FL_NEAR}")
    a(f"buffer_store_dword v14, off, {sr(S_WS,4)}, s23 sc1")
    a.label(Lc)
    a("s_mov_b32 s30, 0"); a(f"s_mov_b32 s23, {FL_NEAR}")
    a.label(Lp)
    a(f"buffer_load_dword v14, off, {sr(S_WS,4)}, s23 sc1")
    a("s_waitcnt vmcnt(0)")
    a("v_readfirstlane_b32 s34, v14")
    a("s_nop 3")
    a("s_cmp_lg_u32 s34, 0")
    Lq = a.newlabel("Cal")
    a(f"s_cbranch_scc1 {Lq}")
    a("s_sleep 8")
    poll_tail(a, Lp, abort)
    a.label(Lq)
    for c in range(NC()):
        a(f"s_bfe_u32 s22, s34, {(c//2) | (1 << 16):#x}"); a("s_lshl_b32 s22, s22, 13"); a(f"s_add_u32 s{SCP+c}, s22, {CH_PART + c*MB}")
    a(f"s_lshl_b32 s28, s{S_X}, 4"); a(f"s_add_u32 s28, s28, s{S_R}"); a("s_add_u32 s28, s28, 32")
    a(f"s_mov_b32 s{S_STEP}, 0")
    if PROF: a("s_memrealtime s[94:95]")

    def gemv(sbase, wbase, tag):
        Lp = a.newlabel("VRp")
        def pl(i): a(f"buffer_load_dwordx4 {vr(PIECE+4*i,4)}, v2, {sr(S_WS,4)}, s{sbase} offen offset:{i*1024} sc1")
        def pc(i):
            a(f"v_cmp_eq_u32 vcc, -1, v{PIECE+4*i}")
        for i in range(16): a(f"v_mov_b32 v{ACC+i}, 0")
        if (tag == "R" and RSETS == 0) or (tag == "V" and VLIGHT):
            Lg, Lr = a.newlabel("VRl"), a.newlabel("VRl")
            def sl(k): a(f"buffer_load_dword v{24+k}, v23, {sr(S_WS,4)}, s{sbase} offen sc1")
            for k in range(3):
                sl(k)
                if k < 2: a("s_sleep 1")
            a.label(Lp)
            for k in range(3):
                a("s_waitcnt vmcnt(2)")
                a(f"v_cmp_eq_u32 vcc, -1, v{24+k}")
                a(f"s_cbranch_vccz {Lg}")
                sl(k)
            poll_tail(a, Lp, abort)
            a.label(Lr)
            a("s_nop 7")
            for i in range(16): a(f"v_mov_b32 v{ACC+i}, 0")
            a("s_add_u32 s30, s30, 1"); a(f"s_cmp_ge_u32 s30, {POLL_MAX*(8 if PROF else 1)}"); a(f"s_cbranch_scc1 {abort}")
            a.label(Lg)
            for i in range(4): pl(i)
            for kk in range(4):
                a(f"s_waitcnt vmcnt({3-kk})")
                for t in range(4):
                    a(f"v_smfmac_f32_16x16x64_bf16 {vr(ACC+4*t,4)}, {vr(PIECE+4*kk,4)}, {ar(wbase+(kk*4+t)*8,8)}, v{VI}")
                    if kk == 3 and t == 0: a(f"v_max3_u32 v15, v{PIECE}, v{PIECE+4}, v{PIECE+8}")
                    if kk == 3 and t == 1: a(f"v_max_u32 v15, v15, v{PIECE+12}")
                    if kk == 3 and t == 2: a("v_cmp_eq_u32 vcc, -1, v15")
            a(f"s_cbranch_vccnz {Lr}")
            return
        PB = [PIECE, 148]
        def pp(h, st):
            for i in (2*h, 2*h+1): a(f"buffer_load_dwordx4 {vr(PB[st]+4*i,4)}, v2, {sr(S_WS,4)}, s{sbase} offen offset:{i*1024} sc1")
        def mm(h, st):
            for kk in (2*h, 2*h+1):
                for t in range(4):
                    a(f"v_smfmac_f32_16x16x64_bf16 {vr(ACC+4*t,4)}, {vr(PB[st]+4*kk,4)}, {ar(wbase+(kk*4+t)*8,8)}, v{VI}")
        def ck(h, st):
            a(f"v_max_u32 v15, v{PB[st]+8*h}, v{PB[st]+8*h+4}"); a("v_cmp_eq_u32 vcc, -1, v15")
        nset = 2 if (tag == "R" and RSETS == 2) else 1
        slots = [(h, st) for st in range(nset) for h in range(2)]
        Lf = {x: a.newlabel("VRf") for x in slots}; Le = a.newlabel("VRe")
        for n, (h, st) in enumerate(slots):
            pp(h, st)
            if n < len(slots)-1: a(f"s_sleep {2 if nset == 1 else 1}")
        a.label(Lp)
        for h, st in slots:
            a(f"s_waitcnt vmcnt({2*len(slots)-2})")
            ck(h, st)
            a(f"s_cbranch_vccz {Lf[(h, st)]}")
            pp(h, st)
        poll_tail(a, Lp, abort)
        for n, (h, st) in enumerate(slots):
            o = 1-h
            a.label(Lf[(h, st)])
            mm(h, st)
            rest = [slots[(n+k) % len(slots)] for k in range(1, len(slots))]
            mine = [(k, x) for k, x in enumerate(rest) if x[0] == o]
            Lg = {x[1]: a.newlabel("VRg") for _, x in mine}
            for k, x in mine:
                a(f"s_waitcnt vmcnt({2*(len(rest)-1-k) + 2*sum(1 for k2, _ in mine if k2 < k)})")
                ck(*x)
                a(f"s_cbranch_vccz {Lg[x[1]]}")
                pp(*x)
            Lq = a.newlabel("VRq")
            a.label(Lq)
            for k, x in mine:
                a(f"s_waitcnt vmcnt({2*len(mine)-2})")
                ck(*x)
                a(f"s_cbranch_vccz {Lg[x[1]]}")
                pp(*x)
            poll_tail(a, Lq, abort)
            for k, x in mine:
                a.label(Lg[x[1]])
                mm(*x)
                a(f"s_branch {Le}")
        a.label(Le)
    def sum8():
        for i in range(1, 8):
            a(f"s_waitcnt lgkmcnt({7-i})")
            a(f"v_pk_add_f32 {vr(RD,2)}, {vr(RD,2)}, {vr(RD+4*i,2)}"); a(f"v_pk_add_f32 {vr(RD+2,2)}, {vr(RD+2,2)}, {vr(RD+4*i+2,2)}")

    a.label("L_VR_step")
    a("s_mov_b32 s30, 0")
    a(f"s_and_b32 s35, s{S_STEP}, 3"); a("s_lshl_b32 s39, s35, 16")
    a(f"s_lshl_b32 s21, s{S_X}, 14"); a("s_add_u32 s25, s39, s21")
    a(f"s_add_u32 s20, s25, {CH_MEM}")
    gemv(20, 0, "V")
    ts(a, 0)
    a("s_lshl_b32 s21, s26, 11"); a("s_add_u32 s20, s39, s21"); a(f"s_add_u32 s20, s20, {CH_VM}"); a("s_nop 0")
    a(f"s_lshl_b32 s21, s{S_STEP}, 5"); a("s_add_u32 s21, s21, s26"); a("s_lshl_b32 s21, s21, 12"); a(f"s_add_u32 s21, s21, {KVM_OFF+2048}")
    a(f"ds_write_b128 v{VWV}, {vr(ACC,4)}")
    for t in range(1, 4): a(f"ds_write_b128 v{VWV}, {vr(ACC+4*t,4)} offset:{1024*t}")
    a("s_waitcnt lgkmcnt(0)")
    a("s_barrier")
    for i in range(8): a(f"ds_read_b128 {vr(RD+4*i,4)}, v{VRV} offset:{(i>>1)*4096+(i&1)*512}")
    sum8()
    a(f"v_cvt_pk_bf16_f32 v{RD}, v{RD}, v{RD+1}"); a(f"v_cvt_pk_bf16_f32 v{RD+1}, v{RD+2}, v{RD+3}")
    Lk, Le = a.newlabel("VRk"), a.newlabel("VRe")
    a(f"s_cmp_ge_u32 s{W}, 2"); a(f"s_cbranch_scc1 {Lk}")
    local_store(a, f"buffer_store_dwordx2 {vr(RD,2)}, v{VSV}, {sr(S_WS,4)}, s20 offen")
    a(f"s_branch {Le}")
    a.label(Lk)
    a(f"buffer_store_dwordx2 {vr(RD,2)}, v{VSV}, {sr(S_WS,4)}, s21 offen sc1")
    a.label(Le)
    ts(a, 1)
    a(f"s_cmp_eq_u32 s{S_STEP}, {NSTEP-1}")
    a("s_cbranch_scc1 L_VR_last")
    if not LATEP:
        a(f"s_add_u32 s22, s35, 2"); a("s_and_b32 s22, s22, 3"); a("s_lshl_b32 s22, s22, 18")
        Lq, Lq2 = a.newlabel("VRq"), a.newlabel("VRq")
        a(f"s_cmp_lt_u32 s{S_STEP}, 2"); a(f"s_cbranch_scc1 {Lq}")
        a(f"s_cmp_ge_u32 s{W}, 2"); a(f"s_cbranch_scc1 {Lq2}")
        for c in range(NC()):
            if c == (NC()+1)//2:
                a(f"s_branch {Lq}"); a.label(Lq2)
            a(f"s_add_u32 s23, s22, s{SCP+c}")
            a(f"buffer_store_dwordx4 {vr(POIS,4)}, v{VSP}, {sr(S_WS,4)}, s23 offen sc1")
        if NC() == 1: a.label(Lq2)
        a.label(Lq)
    Lq = a.newlabel("VRq")
    a(f"s_cmp_eq_u32 s{W}, 3"); a(f"s_cbranch_scc1 {Lq}")
    a(f"s_cmp_eq_u32 s{S_STEP}, 0"); a(f"s_cbranch_scc1 {Lq}")
    Lq2 = a.newlabel("VRq")
    a(f"s_cmp_eq_u32 s{W}, 2"); a(f"s_cbranch_scc1 {Lq2}")
    a(f"s_sub_u32 s22, s20, {CH_VM}"); a(f"s_add_u32 s22, s22, {3*65536}"); a(f"s_and_b32 s22, s22, {4*65536-1}"); a(f"s_add_u32 s22, s22, {CH_VM}")
    local_store(a, f"buffer_store_dwordx2 {vr(POIS,2)}, v{VSV}, {sr(S_WS,4)}, s22 offen")
    a(f"s_branch {Lq}")
    a.label(Lq2)
    a(f"s_add_u32 s22, s25, {3*65536}"); a(f"s_and_b32 s22, s22, {4*65536-1}"); a(f"s_add_u32 s22, s22, {CH_MEM}")
    local_store(a, f"buffer_store_dwordx4 {vr(POIS,4)}, v{VSM}, {sr(S_WS,4)}, s22 offen")
    a.label(Lq)
    if RS: a(f"s_sleep {RS}")
    a(f"s_add_u32 s20, s25, {CH_OX}")
    gemv(20, 128, "R")
    ts(a, 2)
    a(f"s_lshl_b32 s20, s35, 18")
    for c in range(NC()): a(f"s_add_u32 s{84+c}, s20, s{SCP+c}")
    a("s_nop 0")
    for p in range(2):
        for r in range(4): a(f"v_permlane32_swap_b32 v{ACC+8*p+r}, v{ACC+8*p+4+r}")
        for r in range(0, 4, 2): a(f"v_pk_add_f32 {vr(ACC+8*p+r,2)}, {vr(ACC+8*p+r,2)}, {vr(ACC+8*p+4+r,2)}")
        for r in range(4): a(f"ds_write_b32 v{VWR}, v{ACC+8*p+r} offset:{2*p*R_GS+r*16}")
    a(f"s_add_u32 s22, s25, {65536}"); a(f"s_and_b32 s22, s22, {4*65536-1}"); a(f"s_add_u32 s22, s22, {CH_MEM}")
    Lx = a.newlabel("Xe"); Lpo = a.newlabel("Xpo")
    a(f"s_cmp_ge_u32 s{W}, 2")
    a("s_waitcnt lgkmcnt(0)")
    a("s_barrier")
    a(f"s_cbranch_scc1 {Lpo}")
    for i in range(4): a(f"ds_read_b128 {vr(RD+4*i,4)}, v{VRR} offset:{i*R_PS}")
    a("s_waitcnt lgkmcnt(2)")
    a(f"v_pk_add_f32 {vr(RD,2)}, {vr(RD,2)}, {vr(RD+4,2)}"); a(f"v_pk_add_f32 {vr(RD+2,2)}, {vr(RD+2,2)}, {vr(RD+6,2)}")
    a("s_waitcnt lgkmcnt(0)")
    a(f"v_pk_add_f32 {vr(RD+8,2)}, {vr(RD+8,2)}, {vr(RD+12,2)}"); a(f"v_pk_add_f32 {vr(RD+10,2)}, {vr(RD+10,2)}, {vr(RD+14,2)}")
    a(f"v_pk_add_f32 {vr(RD,2)}, {vr(RD,2)}, {vr(RD+8,2)}"); a(f"v_pk_add_f32 {vr(RD+2,2)}, {vr(RD+2,2)}, {vr(RD+10,2)}")
    for c in range(NC()):
        a(f"buffer_store_dwordx4 {vr(RD,4)}, v{VSP}, {sr(S_WS,4)}, s{84+c} offen sc1")
        if c == 0: ts(a, 3); rts(a, 0)
    if LATEP:
        Lq = a.newlabel("VRq")
        a(f"s_cmp_lt_u32 s{S_STEP}, 2"); a(f"s_cbranch_scc1 {Lq}")
        a(f"s_add_u32 s22, s35, 2"); a("s_and_b32 s22, s22, 3"); a("s_lshl_b32 s22, s22, 18")
        if PDELAY: a(f"s_sleep {PDELAY}")
        for c in range(NC()):
            a(f"s_add_u32 s23, s22, s{SCP+c}")
            a(f"buffer_store_dwordx4 {vr(POIS,4)}, v{VSP}, {sr(S_WS,4)}, s23 offen sc1")
        a.label(Lq)
    if VS: a(f"s_sleep {VS}")
    a(f"s_branch {Lx}")
    a.label(Lpo)
    L3 = a.newlabel("X3")
    a(f"s_cmp_lg_u32 s{W}, 3"); a(f"s_cbranch_scc1 {L3}")
    if step_done: step_done(a, "V3")
    if VS: a(f"s_sleep {VS+3}")
    a(f"s_branch {Lx}")
    a.label(L3)
    XS = lambda c: 100 + 24*c
    def xl(c):
        for k in range(3):
            for h in range(2): a(f"buffer_load_dwordx4 {vr(XS(c)+8*k+4*h,4)}, v{VPL+k}, {sr(S_WS,4)}, s{84+c} offen offset:{h*1024} sc1")
    for h in range(2):
        for i in range(4): a(f"ds_read_b128 {vr(RD+16*h+4*i,4)}, v{VPL2} offset:{i*R_PS+h*R_HS}")
    for h in range(2):
        b = RD+16*h
        a(f"s_waitcnt lgkmcnt({4-4*h})")
        for k in (0, 2): a(f"v_pk_add_f32 {vr(b+k,2)}, {vr(b+k,2)}, {vr(b+4+k,2)}")
        for k in (0, 2): a(f"v_pk_add_f32 {vr(b+8+k,2)}, {vr(b+8+k,2)}, {vr(b+12+k,2)}")
        for k in (0, 2): a(f"v_pk_add_f32 {vr(RD+4*h+k,2)}, {vr(b+k,2)}, {vr(b+8+k,2)}")
    ts(a, 3); rts(a, 0)
    if XSLEEP: a(f"s_sleep {XSLEEP}")
    Lg = [a.newlabel("Xg") for _ in range(NC())]; Lj = a.newlabel("Xj"); Lp = a.newlabel("Xp")
    def xc(c):
        b = XS(c)
        a(f"v_max3_u32 v15, v{b}, v{b+4}, v{b+8}")
        a(f"v_max3_u32 v15, v15, v{b+12}, v{b+16}")
        a(f"v_max_u32 v15, v15, v{b+20}")
        a("v_cmp_eq_u32 vcc, -1, v15")
        a(f"s_cbranch_vccz {Lg[c]}")
    for c in range(XAHEAD):
        xl(c)
        if c < XAHEAD-1: a(f"s_sleep {XGAP}")
    for c in range(NC()):
        a(f"s_waitcnt vmcnt({6*(min(c+XAHEAD, NC())-1-c)})")
        xc(c)
        if c+XAHEAD < NC(): xl(c+XAHEAD)
        if PROF: a("s_add_u32 s30, s30, 0x10000")
    a.label(Lp)
    xl(NC()-1)
    a("s_waitcnt vmcnt(0)")
    xc(NC()-1)
    poll_tail(a, Lp, abort)
    for c in range(NC()):
        a.label(Lg[c])
        b = XS(c)
        for k in range(0, 8, 2): a(f"v_pk_add_f32 {vr(RD+k,2)}, {vr(RD+k,2)}, {vr(b+8+k,2)}")
        for k in range(0, 8, 2): a(f"v_pk_add_f32 {vr(RD+8+k,2)}, {vr(b+k,2)}, {vr(b+16+k,2)}")
        if c < NC()-1: a(f"s_branch {Lj}")
    a.label(Lj)
    for k in range(0, 8, 2): a(f"v_pk_add_f32 {vr(RD+k,2)}, {vr(RD+k,2)}, {vr(RD+8+k,2)}")
    for k in range(4): a(f"v_cvt_pk_bf16_f32 v{RD+k}, v{RD+2*k}, v{RD+2*k+1}")
    local_store(a, f"buffer_store_dwordx4 {vr(RD,4)}, v{VSM}, {sr(S_WS,4)}, s22 offen")
    a.label(Lx)
    ts(a, 4); rts(a, 1)
    ts_store(a, 28, 60)
    a(f"s_add_u32 s{S_STEP}, s{S_STEP}, 1")
    a("s_branch L_VR_step")
    a.label("L_VR_last")
    if step_done: step_done(a, "Vlast")

NCH = 24
def assign_roles(a, abort, lds_scratch):
    a("s_getreg_b32 s31, hwreg(HW_REG_XCC_ID)"); a("s_and_b32 s31, s31, 7")
    Lw, Lp, Lg, Lt, Lt2 = [a.newlabel("R") for _ in range(5)]
    L0 = a.newlabel("R")
    a(f"s_cmp_eq_u32 s{S_WAVE}, 0"); a(f"s_cbranch_scc1 {L0}")
    if IDLE: IDLE(a)
    a(f"s_branch {Lw}")
    a.label(L0)
    load_srd(a, 20, 64, 0, 256)
    a("s_mov_b32 s30, 0")
    a("s_cmp_lg_u32 s2, 0"); a(f"s_cbranch_scc1 {Lt}")
    a("s_memrealtime s[24:25]"); a("s_waitcnt lgkmcnt(0)")
    a("s_lshl_b32 s24, s24, 3"); a("s_bitset1_b32 s24, 31")
    a("v_mov_b32 v2, s24")
    a("buffer_store_dword v2, off, s[20:23], 0 sc1")
    a(f"s_branch {Lt2}")
    a.label(Lt)
    a("buffer_load_dword v60, off, s[20:23], 0 sc1")
    a("s_waitcnt vmcnt(0)")
    a("v_readfirstlane_b32 s24, v60")
    a("s_memrealtime s[26:27]"); a("s_waitcnt lgkmcnt(0)")
    a("s_add_u32 s26, s26, 64"); a("s_lshl_b32 s26, s26, 3"); a("s_sub_u32 s26, s26, s24"); a("s_bitset0_b32 s26, 31")
    a("s_cmp_eq_u32 s24, 0"); a("s_cselect_b32 s26, -1, s26")
    a(f"s_cmp_lt_u32 s26, {15000*8}"); a(f"s_cbranch_scc1 {Lt2}")
    a("s_sleep 2")
    poll_tail(a, Lt, abort)
    a.label(Lt2)
    a("s_mov_b32 s101, s24")
    a("s_or_b32 s25, s24, s31"); a("v_mov_b32 v2, s25"); a("s_lshl_b32 s26, s2, 2"); a(f"s_add_u32 s26, s26, {TBL_OFF}")
    a("s_mov_b64 exec, 1")
    a(f"buffer_store_dword v2, off, {sr(S_WS,4)}, s26 sc1")
    a("s_mov_b64 exec, -1")
    a(f"v_lshlrev_b32 v3, 2, v{V_LANE}"); a(f"s_mov_b32 s26, {TBL_OFF}"); a("s_mov_b32 s30, 0")
    Lf, Lf2 = a.newlabel("R"), a.newlabel("R")
    a("s_cmp_eq_u32 s2, 0"); a(f"s_cbranch_scc1 {Lp}")
    a("s_mov_b32 s25, 128")
    a.label(Lf)
    a("s_sleep 4")
    a("buffer_load_dword v5, off, s[20:23], s25 sc1")
    a("s_waitcnt vmcnt(0)")
    a("v_cmp_ne_u32 vcc, s24, v5")
    a(f"s_cbranch_vccz {Lp}")
    poll_tail(a, Lf, abort)
    a.label(Lp)
    for k in range(4): a(f"buffer_load_dword v{8+k}, v3, {sr(S_WS,4)}, s26 offen offset:{256*k} sc1")
    a("s_waitcnt vmcnt(0)")
    for k in range(4): a(f"v_xor_b32 v{8+k}, s24, v{8+k}")
    a("v_or_b32 v5, v8, v9"); a("v_or3_b32 v5, v5, v10, v11")
    a("v_cmp_lt_u32 vcc, 7, v5")
    a(f"s_cbranch_vccz {Lg}")
    a("s_sleep 2")
    poll_tail(a, Lp, abort)
    a.label(Lg)
    a("s_cmp_lg_u32 s2, 0"); a(f"s_cbranch_scc1 {Lf2}")
    a("v_mov_b32 v5, s24"); a("s_mov_b32 s25, 128")
    a("buffer_store_dword v5, off, s[20:23], s25 sc1")
    a.label(Lf2)
    a("s_mov_b32 s32, 0")
    for x in range(8):
        a("s_mov_b32 s25, 0")
        for k in range(4):
            a(f"v_cmp_eq_u32 vcc, {x}, v{8+k}"); a("s_nop 0"); a("s_bcnt1_i32_b64 s27, vcc"); a("s_add_u32 s25, s25, s27")
        a(f"v_writelane_b32 v5, s25, {x}")
    for k in range(4):
        a(f"v_add_u32 v2, {64*k}, v{V_LANE}")
        a(f"v_cmp_eq_u32 vcc, s31, v{8+k}"); a("v_cmp_gt_u32 s[26:27], s2, v2"); a("s_nop 0")
        a("s_and_b64 vcc, vcc, s[26:27]"); a("s_bcnt1_i32_b64 s27, vcc"); a("s_add_u32 s32, s32, s27")
    a("v_writelane_b32 v5, s32, 8"); a("v_writelane_b32 v5, s101, 9")
    a(f"v_mov_b32 v4, {lds_scratch}")
    a(f"v_lshl_add_u32 v3, v{V_LANE}, 2, v4")
    a("s_mov_b64 exec, 0x3ff")
    a("ds_write_b32 v3, v5")
    a("s_mov_b64 exec, -1")
    a("s_waitcnt lgkmcnt(0)")
    a.label(Lw)
    a("s_barrier")
    a("s_getreg_b32 s31, hwreg(HW_REG_XCC_ID)"); a("s_and_b32 s31, s31, 7")
    a(f"v_mov_b32 v12, {lds_scratch}")
    a(f"v_and_b32 v3, 15, v{V_LANE}"); a("v_lshl_add_u32 v3, v3, 2, v12")
    a("ds_read_b32 v13, v3")
    a("s_waitcnt lgkmcnt(0)")
    a("v_readlane_b32 s32, v13, 8"); a("v_readlane_b32 s101, v13, 9")
    a("s_mov_b32 s33, 0"); a("s_mov_b32 s25, 256")
    for i in range(8):
        a(f"v_readlane_b32 s24, v13, {i}"); a("s_nop 0")
        a("s_min_u32 s25, s25, s24")
        a(f"s_cmp_gt_u32 s31, {i}"); a("s_cselect_b32 s24, s24, 0"); a("s_add_u32 s33, s33, s24")
    a("s_add_u32 s33, s33, s32")
    a("s_barrier")
    Ls, Le = a.newlabel("Rs"), a.newlabel("Re")
    if FORCE_FALLBACK: a("s_mov_b32 s25, 0")
    a("s_cmp_lt_u32 s25, 32"); a(f"s_cbranch_scc1 {Ls}")
    a(f"s_mov_b32 s{S_MODE}, 0"); a(f"s_mov_b32 s{S_X}, s31"); a(f"s_mov_b32 s{S_R}, s32")
    a("s_cmp_lt_u32 s31, 4"); a("s_cselect_b32 s29, 1, 0")
    a(f"s_cmp_lt_u32 s32, {NCH}"); a("s_cselect_b32 s29, s29, 0")
    a(f"s_branch {Le}")
    a.label(Ls)
    a(f"s_mov_b32 s{S_MODE}, 1")
    a(f"s_mul_i32 s{S_X}, s33, 2731"); a(f"s_lshr_b32 s{S_X}, s{S_X}, 16")
    a(f"s_mul_i32 s24, s{S_X}, {NCH}"); a(f"s_sub_u32 s{S_R}, s33, s24")
    a(f"s_cmp_lt_u32 s33, {4*NCH}"); a("s_cselect_b32 s29, 1, 0")
    a.label(Le)
```

```python
from common import *
from ln import *
from gemm import *
from att import att_item
from gemm16 import Gemm16, Gemm16N
import chain, gemm
from chain import role_A, role_VR, assign_roles, poll_tail, S_WS

LDS_SCR = 156*1024
S_PH, S_CTR, S_B, S_ITEM = 96, 97, 98, 99
S_T0 = 83
S_EPI, S_EP0, S_EP1, S_RET = 82, 78, 77, 4
S_PRE, S_POFF, S_PVAL = 39, 68, 69
S_FL = 92
PROFW = False
TSW_OFF = 216*MB

BATCH = {"S0": [("KS",0,0,4)], "S1": [("KS",0,4,4)], "S2": [("KS",0,8,4)], "S3": [("KS",0,12,4)], "K1": [("K1",0,0,4)], "KV1a": [("KV",1,0,4)], "KV1b": [("KV",1,4,4)], "KV2a": [("KV",2,0,4)], "KV2b": [("KV",2,4,4)],
         "KV3a": [("KV",3,0,4)], "KV3b": [("KV",3,4,4)], "Q0": [("Q",0,0,4)], "Q1": [("Q",1,0,4)], "Q2": [("Q",2,0,4)], "Q3": [("Q",3,0,4)],
         "G1": [("GU",0,0,4)], "G2": [("GU",0,4,3),("GU",1,0,1)], "G3": [("GU",1,1,4)], "G4": [("GU",1,5,2),("GU",2,0,2)],
         "G5": [("GU",2,2,4)], "G6": [("GU",2,6,1),("GU",3,0,3)], "G7": [("GU",3,3,4)],
         "KVa": [("K4",2,0,4)], "KVb": [("K4",2,4,4)], "KVc": [("K4",2,8,4)], "KVd": [("K4",2,12,4)],
         "Ga1": [("G4",0,0,4)], "Ga2": [("G4",0,4,4)], "Ga3": [("G4",0,8,4)], "Gb1": [("G4",4,0,4)], "Gb2": [("G4",4,4,4)], "Gb3": [("G4",4,8,4)],
         "Gm": [("G8",0,24,4)],
         "DNa": [("DN",0,0,4)], "DNb": [("DN",0,4,4)], "W2x": [("W2",0,0,4)], "W1x": [("W1",0,8,4)], "WR": [("WR",0,0,4)], "WRa": [("WR",0,0,2),("W1",0,8,2)], "WRb": [("WR",0,2,2),("W1",0,10,2)], "": [("QA",0,0,4)]}
LISTS = [['KVd', 'Gb3', 'Q0', 'Ga1', 'DNa'], ['KVc', 'Gb1', 'Ga3', 'Ga2', 'Q3', 'W1x'], ['KVb', 'Gb2', 'KV3a', 'KV3b', 'Q2', 'WR'], ['KVa', 'Gm', 'Q1', 'DNb', 'W2x']]
SMALL = ['K1']
def q1_list():
    out = []
    LL = [[f'S{i}'] + l for i, l in enumerate(LISTS)]
    for r in range(max(map(len, LL))):
        for l in LL: out += BATCH[l[r] if r < len(l) else ""]
    for b in SMALL: out += BATCH[b]
    return out
NBLK = 12
WRPOS = 44
NQA = 32 + NBLK*16 + (64-4*NBLK)*8
NROT = 4

def load_ptrs(a):
    a("s_load_dwordx8 s[40:47], s[0:1], 0")
    a("s_load_dwordx4 s[48:51], s[0:1], 32")
    a("s_load_dwordx8 s[56:63], s[0:1], 64")
    a("s_load_dwordx4 s[64:67], s[0:1], 96")

def atomic_ret(a, vdst, s_off, val):
    a(f"v_mov_b32 v{vdst}, {val}")
    a("s_mov_b64 exec, 1")
    a(f"buffer_atomic_add v{vdst}, off, {sr(S_FL,4)}, s{s_off} sc0 sc1")
    a("s_mov_b64 exec, -1")
    a("s_waitcnt vmcnt(0)")

def signal(a, s_off, val, srd=S_FL, vtmp=4):
    a(f"v_mov_b32 v{vtmp}, {val}")
    a("s_mov_b64 exec, 1")
    a(f"buffer_atomic_add v{vtmp}, off, {sr(srd,4)}, s{s_off} sc1")
    a("s_mov_b64 exec, -1")

def wait_flags(a, voff_setup, s_base, mask, target, abort, nlanes, vd=4, vo=5, sleep=8, barrier=True):
    Lw, Lp = a.newlabel("Wf"), a.newlabel("Wp")
    a(f"s_cmp_lg_u32 s{S_WAVE}, 0"); a(f"s_cbranch_scc1 {Lw}")
    voff_setup()
    a("s_mov_b32 s30, 0"); a(f"s_mov_b32 s21, {target:#x}")
    a.label(Lp)
    a(f"buffer_load_dword v{vd}, v{vo}, {sr(S_FL,4)}, s{s_base} offen sc1")
    a("s_waitcnt vmcnt(0)")
    if mask != 0xffffffff: a(f"v_and_b32 v{vd}, {mask:#x}, v{vd}")
    a(f"v_cmp_ne_u32 vcc, s21, v{vd}")
    a(f"s_cbranch_vccz {Lw}")
    if sleep: a(f"s_sleep {sleep}")
    poll_tail(a, Lp, abort)
    a.label(Lw)
    if barrier: a("s_barrier")

def finish(a, s_off, val):
    a("s_waitcnt vmcnt(0)")
    a("s_barrier")
    L = a.newlabel("Fin")
    a(f"s_cmp_lg_u32 s{S_WAVE}, 0"); a(f"s_cbranch_scc1 {L}")
    signal(a, s_off, val)
    a.label(L)

DBG = False
def dbgmax(a, s_slot, vt=4):
    if not DBG: return
    L = a.newlabel("Db")
    a(f"s_cmp_lg_u32 s{S_WAVE}, 0"); a(f"s_cbranch_scc1 {L}")
    a("s_memrealtime s[24:25]"); load_srd(a, 20, 64, 0, 256); a("s_waitcnt lgkmcnt(0)")
    a("s_lshl_b32 s24, s24, 3"); a("s_sub_u32 s24, s24, s101"); a("s_bitset0_b32 s24, 31"); a("s_lshr_b32 s24, s24, 3")
    a(f"v_mov_b32 v{vt}, s24"); a(f"s_lshl_b32 s25, s{s_slot}, 2")
    a("s_mov_b64 exec, 1")
    a(f"buffer_atomic_umax v{vt}, off, s[20:23], s25 sc1")
    a("s_mov_b64 exec, -1")
    a.label(L)

def wstamp(a, i):
    if PROFW: a(f"s_memrealtime s[{70+2*i}:{71+2*i}]")

def xstamp(a, i):
    r = [24,6,52,54,80][i]
    if PROFW: a(f"s_memrealtime s[{r}:{r+1}]")

def wor_item(a, END):
    L = V_LANE; W = S_WAVE
    load_srd(a, S_SRDW, 50, 0, 4096*DM*2)
    a("s_and_b32 s36, s37, 1"); a("s_lshr_b32 s34, s37, 1")
    a(f"v_lshrrev_b32 v2, 5, v{L}"); a("v_lshlrev_b32 v2, 4, v2")
    a(f"v_bfe_u32 v3, v{L}, 3, 2"); a("v_add_u32 v2, v2, v3"); a("v_lshlrev_b32 v2, 11, v2")
    a(f"v_and_b32 v3, 7, v{L}"); a("v_lshl_add_u32 v2, v3, 4, v2")
    a(f"s_lshl_b32 s27, s{W}, 15")
    a(f"v_lshrrev_b32 v4, 5, v{L}"); a(f"v_bfe_u32 v5, v{L}, 2, 2"); a("v_lshl_add_u32 v4, v4, 3, v5"); a("v_lshlrev_b32 v4, 7, v4")
    a(f"v_bfe_u32 v5, v{L}, 4, 1"); a("v_lshl_add_u32 v4, v5, 5, v4"); a(f"v_and_b32 v3, 3, v{L}"); a("v_lshl_add_u32 v4, v3, 3, v4"); a("v_add_u32 v4, s27, v4")
    a(f"s_lshl_b32 s22, s{W}, 20"); a("s_lshl_b32 s23, s36, 22"); a("s_add_u32 s22, s22, s23"); a("s_lshl_b32 s23, s34, 7"); a("s_add_u32 s22, s22, s23")
    for rnd_ in range(2):
        for j in range(32):
            a(f"s_add_u32 m0, s27, {1024*j}"); a("s_nop 0")
            a(f"buffer_load_dwordx4 v2, {sr(S_SRDW,4)}, s22 offen lds")
            a(f"s_add_u32 s22, s22, {(4 if (j & 3) < 3 else 20)*2048}")
        a("s_waitcnt vmcnt(0)")
        for ks in range(16):
            for t in range(2):
                for q in range(2):
                    a(f"ds_read_b64_tr_b16 {ar(((rnd_*16+ks)*2+t)*4+2*q,2)}, v4 offset:{(16*ks+4*q)*128+64*t}")
            if ks % 2 == 1: a("s_waitcnt lgkmcnt(0)")
    a(f"s_mov_b32 s32, {FL_EX}")
    wait_flags(a, lambda: a("v_mov_b32 v15, 0"), 32, 0xffffffff, 32, END, 1, 14, 15)
    load_srd(a, S_SRDX, 66, OL_OFF, 16*MB)
    load_srd(a, 84, 62, 0, S*DM*2)
    load_srd(a, S_SRDW, 40, 0, S*DM*2)
    VX0, VO, VB, VW, VR, VE, VP = 64, 3, 6, 7, 8, 10, 11
    a("s_lshl_b32 s37, s34, 1"); a("s_add_u32 s37, s37, s36")
    a(f"v_bfe_u32 v10, v{L}, 2, 3"); a(f"v_and_b32 v11, 3, v{L}"); a(f"v_lshrrev_b32 v12, 5, v{L}")
    a(f"v_and_b32 v13, 31, v{L}"); a(f"v_lshlrev_b32 v{VO}, 11, v13"); a(f"v_lshl_add_u32 v{VO}, v12, 3, v{VO}")
    a("s_lshl_b32 s22, s37, 6"); a(f"s_lshl_b32 s23, s{W}, 4"); a("s_add_u32 s22, s22, s23"); a(f"v_add_u32 v{VO}, s22, v{VO}")
    a(f"v_lshlrev_b32 v{VB}, 13, v10"); a(f"v_lshl_add_u32 v{VB}, v11, 5, v{VB}"); a(f"v_lshl_add_u32 v{VB}, v12, 3, v{VB}")
    a("s_lshl_b32 s22, s37, 8"); a(f"s_lshr_b32 s23, s{W}, 1"); a("s_lshl_b32 s23, s23, 7"); a("s_add_u32 s22, s22, s23")
    a(f"s_and_b32 s23, s{W}, 1"); a("s_lshl_b32 s23, s23, 4"); a("s_add_u32 s22, s22, s23"); a(f"s_add_u32 s22, s22, {BP_OFF}")
    a(f"v_add_u32 v{VB}, s22, v{VB}")
    a(f"v_lshlrev_b32 v13, 4, v{L}")
    a(f"s_lshl_b32 s22, s{W}, 15"); a("s_lshl_b32 s23, s36, 17"); a("s_add_u32 s22, s22, s23"); a(f"v_add_u32 v{VX0}, s22, v13")
    for i in range(1, 8): a(f"v_add_u32 v{VX0+i}, {4096*i}, v{VX0}")
    a(f"s_lshl_b32 s22, s{W}, 13"); a(f"v_add_u32 v{VW}, s22, v13")
    a(f"s_lshl_b32 s22, s{W}, 10"); a("s_lshl_b32 s23, s36, 12"); a("s_add_u32 s23, s23, s22"); a(f"v_add_u32 v{VR}, s23, v13")
    a("s_lshl_b32 s23, s37, 12"); a("s_add_u32 s22, s22, s23"); a(f"s_add_u32 s22, s22, {EX_OFF - 4*NBLK*131072}")
    a(f"v_add_u32 v{VE}, s22, v13"); a(f"v_xor_b32 v{VP}, 4096, v{VE}")
    a(f"s_mov_b32 s38, {4*NBLK}"); a("s_mov_b32 s35, 0"); a("s_mov_b32 s90, 0")
    a(f"v_mov_b32 v9, {LDS_SCR+64}")
    wstamp(a, 1)
    ACC = 16; XR = 128; RD = 80
    a.label("L_WORseg")
    Ld = a.newlabel("Wd")
    a("s_and_b32 s32, s38, 7"); a(f"s_cmp_eq_u32 s38, {4*NBLK}"); a("s_cselect_b32 s32, 0, s32"); a("s_cmp_lg_u32 s32, 0"); a(f"s_cbranch_scc1 {Ld}")
    a("s_lshr_b32 s32, s38, 3"); a("s_lshl_b32 s32, s32, 3"); a("s_lshr_b32 s33, s37, 2"); a("s_add_u32 s32, s32, s33")
    a("s_lshl_b32 s32, s32, 6"); a(f"s_add_u32 s32, s32, {FL_DN}")
    wait_flags(a, lambda: a("v_mov_b32 v15, 0"), 32, 0xffffffff, 1, END, 1, 14, 15)
    a.label(Ld)
    a("s_lshl_b32 s33, s38, 16")
    a(f"s_sub_u32 s32, s38, {4*NBLK}"); a("s_lshl_b32 s32, s32, 7"); a("s_lshl_b32 s34, s36, 6"); a("s_add_u32 s32, s32, s34"); a(f"s_add_u32 s32, s32, {FL_ATS}")
    a("s_lshl_b32 s34, s38, 18"); a("s_lshl_b32 s26, s38, 17")
    Lr = a.newlabel("Wr")
    a("s_cmp_eq_u32 s35, 16"); a(f"s_cbranch_scc1 {Lr}")
    wait_flags(a, lambda: a("v_mov_b32 v15, 0"), 32, 0xffffffff, 16, END, 1, 14, 15, WSLEEP)
    a.label(Lr)
    a("s_add_u32 s32, s32, 128")
    wstamp(a, 2)
    a(f"s_bfe_u32 s22, s37, {1 | (2 << 16):#x}")
    for e in range(1, NROT): a(f"s_cmp_eq_u32 s22, {e}"); a(f"s_cbranch_scc1 L_WORe{e}")
    for e in range(NROT):
        a.label(f"L_WORe{e}")
        order = [(32//NROT*e + i) % 32 for i in range(32)]
        WN = 8
        lds = [f"buffer_load_dwordx4 {vr(XR+ks*4,4)}, v{VX0+ks//4}, {sr(S_SRDX,4)}, s34 offen offset:{(ks%4)*1024} sc1" for ks in order]
        lds += [f"buffer_load_dwordx2 v[48:49], v{VO}, {sr(S_SRDW,4)}, s33 offen", f"buffer_load_dwordx2 v[50:51], v{VB}, {sr(S_FL,4)}, s33 offen sc1",
                f"buffer_load_dwordx4 v[116:119], v{VP}, {sr(S_FL,4)}, s26 offen sc1",
                f"buffer_load_dword v14, off, {sr(S_FL,4)}, s32 sc1"]
        for x in lds[:WN]: a(x)
        n = WN
        for i, ks in enumerate(order):
            a(f"s_waitcnt vmcnt({n-1-i})")
            if i == 0: xstamp(a, 0)
            for t in range(2):
                a(f"v_mfma_f32_32x32x16_bf16 {vr(ACC+16*t,16)}, {ar((ks*2+t)*4,4)}, {vr(XR+ks*4,4)}, {'0' if i == 0 else vr(ACC+16*t,16)}")
                if n < len(lds) and (t == 0 or i < 8): a(lds[n]); n += 1
        if e < NROT-1: a("s_branch L_WORj")
    a.label("L_WORj")
    xstamp(a, 1)
    a("s_nop 10")
    for q in range(8): a(f"ds_write_b128 v{VW}, {vr(ACC+4*q,4)} offset:{1024*q}")
    a("s_waitcnt vmcnt(0)")
    xstamp(a, 2)
    Lz = a.newlabel("Wz")
    a(f"s_cmp_lg_u32 s{W}, 0"); a(f"s_cbranch_scc1 {Lz}")
    a("ds_write_b32 v9, v14")
    a.label(Lz)
    a(f"v_xor_b32 v13, 4096, v{VR}")
    a("s_waitcnt lgkmcnt(0)")
    a("s_barrier")
    for i in range(4): a(f"ds_read_b128 {vr(RD+16+4*i,4)}, v13 offset:{8192*i}")
    for i in range(4): a(f"ds_read_b128 {vr(RD+4*i,4)}, v{VR} offset:{8192*i}")
    a("ds_read_b32 v14, v9")
    a(f"v_xor_b32 v{VW}, 32768, v{VW}"); a(f"v_xor_b32 v{VR}, 32768, v{VR}"); a("v_xor_b32 v9, 4, v9")
    def sum4(b):
        for k in (0, 2):
            a(f"v_pk_add_f32 {vr(b+k,2)}, {vr(b+k,2)}, {vr(b+4+k,2)}"); a(f"v_pk_add_f32 {vr(b+8+k,2)}, {vr(b+8+k,2)}, {vr(b+12+k,2)}")
        for k in (0, 2): a(f"v_pk_add_f32 {vr(b+k,2)}, {vr(b+k,2)}, {vr(b+8+k,2)}")
    a("s_waitcnt lgkmcnt(5)")
    sum4(RD+16)
    xstamp(a, 3)
    L1, L2 = a.newlabel("We"), a.newlabel("We")
    a(f"s_cmp_eq_u32 s{S_B}, 4"); a(f"s_cbranch_scc1 {L1}")
    a(f"buffer_store_dwordx4 {vr(RD+16,4)}, v{VE}, {sr(S_FL,4)}, s26 offen")
    a(f"s_branch {L2}")
    a.label(L1)
    a(f"buffer_store_dwordx4 {vr(RD+16,4)}, v{VE}, {sr(S_FL,4)}, s26 offen sc1")
    a.label(L2)
    a("s_waitcnt lgkmcnt(0)")
    sum4(RD)
    a("v_readfirstlane_b32 s35, v14")
    PO = 120
    def finish_seg(nap):
        a(f"v_lshlrev_b32 v52, 16, v{PO+4}"); a(f"v_and_b32 v53, 0xffff0000, v{PO+4}"); a(f"v_lshlrev_b32 v54, 16, v{PO+5}"); a(f"v_and_b32 v55, 0xffff0000, v{PO+5}")
        a(f"v_lshlrev_b32 v56, 16, v{PO+6}"); a(f"v_and_b32 v57, 0xffff0000, v{PO+6}"); a(f"v_lshlrev_b32 v58, 16, v{PO+7}"); a(f"v_and_b32 v59, 0xffff0000, v{PO+7}")
        a("s_mov_b32 s30, 0")
        if nap: a(f"s_sleep {nap}")
        Lp, Lg = a.newlabel("Wp"), a.newlabel("Wg")
        R = 108
        a.label(Lp)
        a(f"buffer_load_dwordx4 {vr(R,4)}, v{VP}, {sr(S_FL,4)}, s89 offen sc1")
        a("s_waitcnt vmcnt(0)")
        a(f"v_max3_u32 v15, v{R}, v{R+1}, v{R+2}"); a(f"v_max_u32 v15, v15, v{R+3}")
        a("v_cmp_eq_u32 vcc, -1, v15")
        a(f"s_cbranch_vccz {Lg}")
        poll_tail(a, Lp, END)
        a.label(Lg)
        if nap: xstamp(a, 4)
        for k in (0, 2): a(f"v_pk_add_f32 {vr(R+k,2)}, {vr(R+k,2)}, {vr(PO+k,2)}")
        def rnd():
            a(f"v_cvt_pk_bf16_f32 v{R+4}, v{R}, v{R+1}"); a(f"v_cvt_pk_bf16_f32 v{R+5}, v{R+2}, v{R+3}")
        def unp():
            a(f"v_lshlrev_b32 v{R}, 16, v{R+4}"); a(f"v_and_b32 v{R+1}, 0xffff0000, v{R+4}")
            a(f"v_lshlrev_b32 v{R+2}, 16, v{R+5}"); a(f"v_and_b32 v{R+3}, 0xffff0000, v{R+5}")
        rnd(); unp()
        a(f"v_pk_add_f32 {vr(R,2)}, {vr(R,2)}, v[52:53]"); a(f"v_pk_add_f32 {vr(R+2,2)}, {vr(R+2,2)}, v[54:55]")
        rnd(); unp()
        a(f"v_pk_add_f32 {vr(R,2)}, {vr(R,2)}, v[56:57]"); a(f"v_pk_add_f32 {vr(R+2,2)}, {vr(R+2,2)}, v[58:59]")
        rnd()
        a(f"buffer_store_dwordx2 {vr(R+4,2)}, v{VO}, s[84:87], s88 offen")
    Ln = a.newlabel("Wn")
    a("s_cmp_eq_u32 s90, 0"); a(f"s_cbranch_scc1 {Ln}")
    finish_seg(0)
    a.label(Ln)
    for k in range(4): a(f"v_mov_b32 v{PO+k}, v{RD+k}"); a(f"v_mov_b32 v{PO+4+k}, v{48+k}")
    a("s_mov_b32 s88, s33"); a("s_mov_b32 s89, s26"); a("s_mov_b32 s90, 1")
    a("s_add_u32 s38, s38, 1")
    a("s_and_b32 s34, s38, 7"); a("s_cselect_b32 s34, s35, 0"); a("s_cmp_eq_u32 s34, 16"); a("s_cbranch_scc1 L_WORseg")
    Lv, Lf = a.newlabel("Wv"), a.newlabel("Wv")
    a("s_and_b32 s34, s38, 7"); a(f"s_cbranch_scc0 {Lf}")
    a(f"s_cmp_lg_u32 s{W}, 0"); a(f"s_cbranch_scc1 {Lv}")
    a(f"buffer_load_dword v14, off, {sr(S_FL,4)}, s32 sc1")
    a("s_waitcnt vmcnt(0)")
    a("ds_write_b32 v9, v14 offset:8")
    a("s_waitcnt lgkmcnt(0)")
    a.label(Lv)
    a("s_barrier")
    a("ds_read_b32 v14, v9 offset:8")
    a("s_waitcnt lgkmcnt(0)")
    a("v_readfirstlane_b32 s35, v14")
    a("s_nop 3")
    a("s_cmp_eq_u32 s35, 16"); a("s_cbranch_scc1 L_WORseg")
    a.label(Lf)
    finish_seg(1)
    a("s_mov_b32 s90, 0")
    a("s_cmp_lt_u32 s38, 64"); a("s_cbranch_scc1 L_WORseg")

NW1, NW2, NW3 = 0, 0, 21
def warm(a, s_unit, n, per, base):
    if n == 0: return
    load_srd(a, 84, 46, 0, DM*4096*2)
    a(f"s_mul_i32 s79, s{s_unit}, {per*1024}"); a(f"s_add_u32 s79, s79, {base*1024}")
    a(f"s_mov_b32 m0, {LDS_SCR+1024}")
    for i in range(n):
        a("s_nop 0" if i == 0 else "s_add_u32 s79, s79, 1024")
        a("buffer_load_dwordx4 v2, s[84:87], s79 offen lds")

NRDY = 0
ROT = False
QAORD = [(0, 128), (192, 16), (128, 32), (208, 8), (160, 16), (216, 8), (176, 16)]
SLOW1 = 0
FAST1 = 2
WSLEEP = 1
M16 = True
N16 = 2
NPRE = 0
NJUNK = 3
GJUNK = False
PFLIST = []
PFDEPTH = 8
XNT = ''
HELP = 0
def setup_phase(a):
    L = V_LANE; W = S_WAVE
    a("s_and_b32 s16, s2, 7"); a("s_lshr_b32 s17, s2, 3"); a("s_lshl_b32 s17, s17, 2"); a("s_add_u32 s17, s17, s16"); a("s_sub_u32 s17, s17, 4")
    a("s_sub_u32 s18, s2, 96"); a("s_cmp_ge_u32 s2, 192"); a("s_cselect_b32 s19, s18, s17"); a("s_cbranch_scc1 L_su_go")
    a("s_cmp_lt_u32 s16, 4"); a("s_cbranch_scc1 L_su_pre")
    a.label("L_su_go")
    load_srd(a, 24, 40, 0, S*DM*2)
    load_srd(a, 12, 66, XN_OFF, S*XN_STR)
    a(f"v_lshlrev_b32 v2, 4, v{L}")
    a("s_mul_i32 s19, s19, 3"); a(f"s_add_u32 s19, s19, s{W}"); a("s_sub_u32 s19, s19, 1")
    a("s_mul_i32 s34, s19, 3"); a("s_add_u32 s36, s34, 1"); a("s_add_u32 s38, s34, 2")
    def rows(X0):
        for k in range(3):
            a(f"s_lshl_b32 s17, s{34+2*k}, 11")
            for h in range(2): a(f"buffer_load_dwordx4 {vr(X0+8*k+4*h,4)}, v2, s[24:27], s17 offen offset:{1024*h} {XNT}")
    rows(64)
    a("s_sub_u32 s18, s19, 277"); a("s_mul_i32 s18, s18, 3"); a("s_add_u32 s18, s18, 1440"); a("s_cmp_ge_u32 s19, 277"); a("s_cselect_b32 s18, s18, 4096")
    for k in range(3):
        a(f"s_add_u32 s17, s18, {k}"); a("s_lshl_b32 s17, s17, 11")
        for h in range(2): a(f"buffer_load_dwordx4 {vr(16+8*k+4*h,4)}, v2, s[24:27], s17 offen offset:{1024*h} {XNT}")
    load_srd(a, 28, 42, 0, 8*DM*2)
    a(f"s_bfe_u32 s17, s19, {2 | (4 << 16):#x}"); a("s_lshl_b32 s17, s17, 7"); a("s_and_b32 s16, s19, 3"); a("s_lshl_b32 s16, s16, 5"); a("s_add_u32 s17, s17, s16")
    a(f"v_bfe_u32 v8, v{L}, 2, 3"); a("v_lshlrev_b32 v8, 11, v8")
    a(f"v_and_b32 v9, 3, v{L}"); a("v_lshl_add_u32 v8, v9, 3, v8")
    a(f"v_lshrrev_b32 v9, 5, v{L}"); a("v_lshl_add_u32 v8, v9, 2, v8")
    a("buffer_load_dword v10, v8, s[28:31], s17 offen")
    emit_ln_multi(a, 12, [34, 36, 38], 2, 64, 96, "sc1", 7)
    a("s_cmp_lt_u32 s19, 277"); a("s_cbranch_scc1 L_su_one")
    a("s_mov_b32 s34, s18"); a("s_add_u32 s36, s18, 1"); a("s_add_u32 s38, s18, 2")
    emit_ln_multi(a, 12, [34, 36, 38], 2, 16, 96, "sc1", 7)
    a.label("L_su_one")
    tot = CH_END - CH_BASE - 65536
    assert tot % 1024 == 0 and tot//1024 <= 480*6
    for i in range(4): a(f"v_mov_b32 v{4+i}, -1")
    a("s_mul_i32 s16, s19, 6")
    for i in range(6):
        Ls = a.newlabel("Ps")
        a(f"s_cmp_ge_u32 s16, {tot//1024}"); a(f"s_cbranch_scc1 {Ls}")
        a(f"s_cmp_ge_u32 s16, {(CH_MEM-CH_BASE)//1024}"); a("s_cselect_b32 s17, 64, 0"); a("s_add_u32 s17, s17, s16")
        a("s_lshl_b32 s17, s17, 10"); a(f"s_add_u32 s17, s17, {CH_BASE}")
        a(f"buffer_store_dwordx4 v[4:7], v2, {sr(S_WS,4)}, s17 offen sc1")
        a.label(Ls)
        a("s_add_u32 s16, s16, 1")
    Lz, Lm = a.newlabel("Pz"), a.newlabel("Pm")
    a(f"v_lshlrev_b32 v9, 2, v{L}")
    a("s_cmp_lt_u32 s19, 224"); a(f"s_cbranch_scc1 {Lz}")
    a("v_mov_b32 v8, 0"); a("s_sub_u32 s17, s19, 224"); a("s_lshl_b32 s17, s17, 8"); a(f"s_add_u32 s17, s17, {FLAGS}")
    a(f"buffer_store_dword v8, v9, {sr(S_WS,4)}, s17 offen sc1")
    a.label(Lz)
    a("s_cmp_ge_u32 s19, 256"); a(f"s_cbranch_scc1 {Lm}")
    a("s_lshl_b32 s16, s19, 8"); a(f"s_add_u32 s16, s16, {CH_MEM}")
    a("s_waitcnt vmcnt(6)")
    a(f"buffer_store_dword v10, v9, {sr(S_WS,4)}, s16 offen sc1")
    a.label(Lm)
    a("s_branch L_su_end")
    a.label("L_su_pre")
    if NPRE:
        a("s_cmp_ge_u32 s31, 4"); a("s_cbranch_scc1 L_su_end")
        a(f"s_mov_b32 m0, {LDS_SCR+1024}"); a("s_lshr_b32 s17, s2, 3"); a("s_lshl_b32 s18, s31, 3")
        a("s_cmp_ge_u32 s17, 8"); a("s_cbranch_scc1 L_su_pv")
        a(f"s_cmp_eq_u32 s{W}, 3"); a("s_cselect_b32 s34, s46, s44"); a("s_cselect_b32 s35, s47, s45")
        load_srd(a, 84, 34, 0, DM*4096*2)
        a(f"v_lshrrev_b32 v2, 4, v{L}"); a("v_lshlrev_b32 v2, 13, v2"); a(f"v_and_b32 v3, 15, v{L}"); a("v_lshl_add_u32 v2, v3, 4, v2")
        a("s_add_u32 s17, s17, s18"); a("s_lshl_b32 s79, s17, 8")
        a(f"s_cmp_eq_u32 s{W}, 2"); a(f"s_cselect_b32 s17, {4*8192}, 0"); a("s_add_u32 s79, s79, s17")
        a(f"s_mov_b32 s78, {8*8192}")
        a(f"s_cmp_eq_u32 s{W}, 3"); a(f"s_cselect_b32 s78, {4*8192}, s78")
        a("s_branch L_su_pl")
        a.label("L_su_pv")
        load_srd(a, 84, 48, 0, DM*4096*2)
        a(f"v_lshrrev_b32 v2, 3, v{L}"); a("v_lshlrev_b32 v2, 13, v2"); a(f"v_and_b32 v3, 7, v{L}"); a("v_lshl_add_u32 v2, v3, 4, v2")
        a("s_sub_u32 s17, s17, 8"); a("s_lshl_b32 s18, s18, 1"); a("s_add_u32 s17, s17, s18"); a("s_lshl_b32 s79, s17, 7")
        a(f"s_lshl_b32 s17, s{W}, 21"); a("s_add_u32 s79, s79, s17"); a(f"s_mov_b32 s78, {8*8192}")
        a.label("L_su_pl")
        for i in range(NPRE):
            a("buffer_load_dwordx4 v2, s[84:87], s79 offen lds")
            a("s_add_u32 s79, s79, s78")
    a.label("L_su_end")

def init_arrive(a, srd, vt=61):
    L = a.newlabel("Ia")
    a(f"s_cmp_lg_u32 s{S_WAVE}, 0"); a(f"s_cbranch_scc1 {L}")
    a(f"v_mov_b32 v{vt}, s101"); a("s_lshl_b32 s21, s2, 2"); a(f"s_add_u32 s21, s21, {TBL_OFF+1024}")
    a("s_mov_b64 exec, 1")
    a(f"buffer_store_dword v{vt}, off, {sr(srd,4)}, s21 sc1")
    a("s_mov_b64 exec, -1")
    a.label(L)

def init_wait(a, abort):
    load_srd(a, 20, 64, 0, 256)
    Lp, Lg = a.newlabel("Ip"), a.newlabel("Ig")
    a("s_mov_b32 s30, 0"); a("s_mov_b32 s24, 192")
    a.label(Lp)
    a("buffer_load_dword v14, off, s[20:23], s24 sc1")
    a("s_waitcnt vmcnt(0)")
    a("v_cmp_ne_u32 vcc, s101, v14")
    a(f"s_cbranch_vccz {Lg}")
    a("s_sleep 4")
    poll_tail(a, Lp, abort)
    a.label(Lg)

def worker_start(a, abort):
    a(f"s_waitcnt vmcnt({NW2})")
    a("s_barrier")
    init_arrive(a, S_FL)
    Lw, Ln, Lp, Lg = [a.newlabel("Ws") for _ in range(4)]
    L0 = a.newlabel("Ws")
    a(f"s_cmp_eq_u32 s{S_WAVE}, 0"); a(f"s_cbranch_scc1 {L0}")
    Lb = a.newlabel("Ws")
    a(f"s_cmp_lg_u32 s{S_B}, 5"); a(f"s_cbranch_scc1 {Lb}")
    a(f"v_lshrrev_b32 v2, 4, v{V_LANE}"); a("v_lshlrev_b32 v2, 13, v2"); a(f"v_and_b32 v3, 15, v{V_LANE}"); a("v_lshl_add_u32 v2, v3, 4, v2")
    a(f"s_mov_b32 m0, {LDS_SCR+1024}")
    nper = HELP // 3
    for p in ((44, 46) if HELP else ()):
        load_srd(a, 84, p, 0, DM*4096*2)
        a(f"s_sub_u32 s79, s{S_WAVE}, 1"); a(f"s_mul_i32 s79, s79, {nper*4*8192}"); a("s_lshl_b32 s78, s34, 8"); a("s_add_u32 s79, s79, s78")
        a(f"s_add_u32 s79, s79, {(1024-12*nper)*8192}"); a(f"s_mov_b32 s78, {nper}")
        Ll = a.newlabel("Ws")
        a.label(Ll)
        a("buffer_load_dwordx4 v2, s[84:87], s79 offen lds")
        a(f"s_add_u32 s79, s79, {4*8192}"); a("s_sub_u32 s78, s78, 1"); a("s_cmp_lg_u32 s78, 0"); a(f"s_cbranch_scc1 {Ll}")
    a(f"s_branch {Lw}")
    a.label(Lb)
    a("s_sub_u32 s19, s33, 128"); a("s_mul_i32 s19, s19, 3"); a(f"s_add_u32 s19, s19, s{S_WAVE}"); a("s_sub_u32 s19, s19, 1")
    a(f"v_lshlrev_b32 v2, 4, v{V_LANE}")
    warm(a, 19, NW3, NW3, 8192 - 384*NW3)
    a(f"s_branch {Lw}")
    a.label(L0)
    a("s_cmp_lg_u32 s33, 255"); a(f"s_cbranch_scc1 {Ln}")
    a(f"v_lshlrev_b32 v3, 2, v{V_LANE}"); a(f"s_mov_b32 s26, {TBL_OFF+1024}"); a("s_mov_b32 s30, 0")
    a.label(Lp)
    for k in range(4): a(f"buffer_load_dword v{8+k}, v3, {sr(S_FL,4)}, s26 offen offset:{256*k} sc1")
    a("s_waitcnt vmcnt(0)")
    for k in range(4): a(f"v_xor_b32 v{8+k}, s101, v{8+k}")
    a("v_or_b32 v5, v8, v9"); a("v_or3_b32 v5, v5, v10, v11")
    a("v_cmp_ne_u32 vcc, 0, v5")
    a(f"s_cbranch_vccz {Lg}")
    a("s_sleep 2")
    poll_tail(a, Lp, abort)
    a.label(Lg)
    load_srd(a, 20, 64, 0, 256)
    a("v_mov_b32 v5, s101"); a("s_mov_b32 s24, 192")
    a("buffer_store_dword v5, off, s[20:23], s24 sc1")
    a(f"s_branch {Lw}")
    a.label(Ln)
    Lsm, Lq = a.newlabel("Ws"), a.newlabel("Ws")
    a(f"s_cmp_eq_u32 s{S_B}, 5"); a(f"s_cbranch_scc1 {Lsm}")
    a(f"v_and_b32 v3, 7, v{V_LANE}"); a("s_and_b32 s26, s34, 3"); a("s_mul_i32 s26, s26, 7"); a("v_add_u32 v3, s26, v3")
    a("v_and_b32 v4, 3, v3"); a("v_lshrrev_b32 v3, 2, v3"); a("v_lshl_add_u32 v3, v3, 3, v4"); a("v_add_u32 v3, 4, v3"); a("v_lshlrev_b32 v3, 2, v3")
    a(f"s_mov_b32 s26, {TBL_OFF+1024}")
    a("s_mov_b32 s30, 0")
    a.label(Lq)
    a("s_sleep 6")
    a(f"buffer_load_dword v8, v3, {sr(S_FL,4)}, s26 offen sc1")
    a("s_waitcnt vmcnt(0)")
    a("v_cmp_ne_u32 vcc, s101, v8")
    a(f"s_cbranch_vccz {Lw}")
    poll_tail(a, Lq, abort)
    a.label(Lsm)
    init_wait(a, abort)
    if NRDY == 0: a(f"s_branch {Lw}")
    a(f"s_mov_b32 s26, {FL_RDY}"); a("s_mov_b32 s30, 0")
    Lr = a.newlabel("Ws")
    a.label(Lr)
    a("s_sleep 16")
    a(f"buffer_load_dword v8, off, {sr(S_FL,4)}, s26 sc1")
    a("s_waitcnt vmcnt(0)")
    a(f"v_cmp_gt_u32 vcc, {NRDY}, v8")
    a(f"s_cbranch_vccz {Lw}")
    poll_tail(a, Lr, abort)
    a.label(Lw)
    a("s_barrier")

def emit_mega(a, name, force_slow=False):
    END = "L_abort"
    Q1 = q1_list(); NSM = 32*len(SMALL); NQ1 = 8*sum(x[3] for x in Q1) - NSM
    kernel_header(a, name)
    a(f"s_cmp_lt_u32 s2, 256"); a(f"s_cbranch_scc1 L_start")
    a("s_endpgm")
    a.label("L_start")
    xstamp(a, 2)
    load_ptrs(a)
    a("v_lshrrev_b32 v2, 6, v0")
    a(f"v_and_b32 v{V_LANE}, 63, v0")
    a(f"v_readfirstlane_b32 s{S_WAVE}, v2")
    a("s_waitcnt lgkmcnt(0)")
    load_srd(a, S_WS, 66, 0, WS_SIZE)
    chain.IDLE = setup_phase
    chain.INIT_WAIT = lambda a: init_wait(a, END)
    chain.INIT_ARRIVE = lambda a: init_arrive(a, S_WS)
    chain.NYOUNG = NW2
    def rdy(a):
        L = a.newlabel("Rd")
        a(f"s_cmp_lg_u32 s{S_WAVE}, 0"); a(f"s_cbranch_scc1 {L}")
        a(f"s_mov_b32 s20, {FL_RDY}"); signal(a, 20, 1, S_WS, 61)
        a.label(L)
    chain.A_READY = rdy
    assign_roles(a, END, LDS_SCR)
    xstamp(a, 1)
    a(f"s_mov_b32 s35, s{chain.S_MODE}")
    if force_slow: a(f"s_mov_b32 s{chain.S_MODE}, 1")
    a(f"s_mov_b32 s{S_PH}, 0")
    a(f"s_sub_u32 s{S_B}, s31, 4"); a("s_cmp_lt_u32 s31, 4"); a(f"s_cselect_b32 s{S_B}, 5, s{S_B}")
    a(f"s_mov_b32 s{S_PH}, 1")

    Lf = a.newlabel("Cl")
    a(f"s_cmp_eq_u32 s{chain.S_MODE}, 0"); a(f"s_cbranch_scc1 {Lf}")
    a("s_cmp_lt_u32 s33, 128"); a(f"s_cselect_b32 s{S_B}, 5, 4")
    a.label(Lf)
    a(f"s_lshl_b32 s{S_CTR}, s{S_B}, 7"); a(f"s_add_u32 s{S_CTR}, s{S_CTR}, {FL_Q1L}")
    a("s_mov_b32 s100, 0")
    a(f"s_cmp_eq_u32 s{S_B}, 4"); a(f"s_cselect_b32 s{S_T0}, 128, 32")
    a("s_lshl_b32 s34, s31, 3"); a("s_add_u32 s34, s34, s32"); a("s_sub_u32 s34, s34, 24")
    a("s_cmp_ge_u32 s31, 4"); a("s_cselect_b32 s34, s32, s34")
    Lp5 = a.newlabel("Cl")
    a("s_cmp_eq_u32 s35, 0"); a(f"s_cbranch_scc1 {Lp5}")
    a("s_sub_u32 s34, s33, 96"); a(f"s_cmp_eq_u32 s{S_B}, 4"); a("s_cselect_b32 s20, 32, 0"); a("s_sub_u32 s34, s34, s20")
    a.label(Lp5)
    a("s_cmp_eq_u32 s29, 0"); a(f"s_cbranch_scc1 L_worker0")
    a("s_setprio 3")
    a(f"s_cmp_ge_u32 s{chain.S_R}, 8"); a(f"s_cbranch_scc1 L_vr")
    def kv_wait(a):
        Ls, Lp = a.newlabel("Kw"), a.newlabel("Kp")
        Lc = a.newlabel("Kc")
        a(f"s_and_b32 s20, s{chain.S_STEP}, 7"); a(f"s_cbranch_scc1 {Ls}")
        a.label(Lc)
        a(f"s_lshr_b32 s20, s{chain.S_STEP}, 3"); a("s_lshl_b32 s20, s20, 10"); a("s_lshr_b32 s21, s26, 1"); a("s_lshl_b32 s21, s21, 6"); a("s_add_u32 s20, s20, s21")
        a(f"s_add_u32 s20, s20, {FL_QKV}"); a("s_mov_b32 s30, 0")
        a("s_mov_b32 s21, 0xffff"); a("s_movk_i32 s22, 0x404")
        a.label(Lp)
        a(f"buffer_load_dword v15, off, {sr(S_WS,4)}, s20 sc1")
        a("s_waitcnt vmcnt(0)")
        a("v_and_b32 v15, s21, v15")
        a("v_cmp_ne_u32 vcc, s22, v15")
        a(f"s_cbranch_vccz {Ls}")
        a("s_sleep 4")
        poll_tail(a, Lp, END)
        a.label(Ls)
    def step_addr(delta):
        a(f"s_lshl_b32 s20, s{chain.S_STEP}, 2"); a(f"s_add_u32 s20, s20, s{chain.S_X}"); a("s_lshl_b32 s20, s20, 7")
        a(f"s_add_u32 s20, s20, {FL_STEP + delta*512}")
    def step_done(a, kind):
        L = a.newlabel("Sd")
        if kind in ("A", "Alast"):
            a("s_waitcnt vmcnt(0)"); a("s_barrier")
            a(f"s_cmp_lg_u32 s{S_WAVE}, 0"); a(f"s_cbranch_scc1 {L}")
            step_addr(0); signal(a, 20, 1, S_WS, 60)
            if DBG:
                a(f"s_lshr_b32 s28, s{chain.S_STEP}, 4"); a("s_add_u32 s28, s28, 12"); a(f"s_cmp_eq_u32 s{chain.S_STEP}, 0"); a("s_cselect_b32 s28, 11, s28")
                a("s_mov_b32 s29, s25"); dbgmax(a, 28, 60); a("s_mov_b32 s25, s29")
        elif kind == "V3":
            step_addr(0); signal(a, 20, 1, S_WS, 60)
        elif kind == "Vlast":
            a("s_waitcnt vmcnt(0)"); a("s_barrier")
            a(f"s_cmp_lg_u32 s{S_WAVE}, 0"); a(f"s_cbranch_scc1 {L}")
            step_addr(0); signal(a, 20, 1, S_WS, 60)
        a.label(L)
    role_A(a, END, kv_wait, step_done)
    a("s_branch L_retire")
    a.label("L_vr")
    role_VR(a, END, step_done)
    a.label("L_retire")
    a("s_setprio 0")
    a(f"s_mov_b32 s{S_PH}, 2")
    load_ptrs(a)
    a(f"v_mbcnt_lo_u32_b32 v{V_LANE}, -1, 0"); a(f"v_mbcnt_hi_u32_b32 v{V_LANE}, -1, v{V_LANE}")
    a("s_waitcnt vmcnt(0) lgkmcnt(0)")
    a("s_barrier")
    load_srd(a, S_FL, 66, 0, WS_SIZE)
    a("s_branch L_worker")
    a.label(END)
    a("s_mov_b64 exec, -1")
    a(f"v_mov_b32 v4, 0x1fff"); a(f"v_mov_b32 v5, {LDS_SCR}")
    a("ds_write_b32 v5, v4")
    a("s_waitcnt lgkmcnt(0)")
    a("s_endpgm")
    a.label("L_worker0")
    load_srd(a, S_FL, 66, 0, WS_SIZE)
    worker_start(a, END)
    a.label("L_worker")
    a(f"s_mov_b32 s{S_PRE}, 0"); a(f"s_mov_b32 s{S_PVAL}, 0"); a(f"s_mov_b32 s{S_EPI}, 0")
    def run_epi(): a(f"s_call_b64 s[{S_RET}:{S_RET+1}], L_epi")
    def q1_index():
        L, L5 = a.newlabel("N"), a.newlabel("N")
        a(f"s_add_u32 s25, s25, s{S_T0}")
        a(f"s_cmp_eq_u32 s{S_B}, 5"); a(f"s_cbranch_scc1 {L5}")
        a(f"s_cmp_eq_u32 s{S_B}, 4"); a(f"s_cbranch_scc1 {L}")
        a("s_lshr_b32 s22, s25, 5"); a("s_and_b32 s25, s25, 31"); a("s_lshl_b32 s22, s22, 2"); a(f"s_add_u32 s22, s22, s{S_B}")
        a("s_lshl_b32 s22, s22, 5"); a("s_add_u32 s25, s25, s22")
        a.label(L)
        a(f"s_cmp_lt_u32 s25, {NQ1}"); a(f"s_cselect_b32 s25, s25, {NSM}"); a(f"s_cbranch_scc1 {L5}_e")
        a.label(L5)
        a(f"s_add_u32 s25, s25, {NQ1}"); a(f"s_cmp_lt_u32 s25, {NQ1+NSM}")
        a.label(f"{L5}_e")
    def publish_item():
        a("v_mov_b32 v14, s25"); a(f"v_mov_b32 v15, {LDS_SCR}")
        a("ds_write_b32 v15, v14")
    def flush():
        L, L2 = a.newlabel("Fl"), a.newlabel("Fl")
        run_epi()
        a(f"s_cmp_eq_u32 s{S_PVAL}, 0"); a(f"s_cbranch_scc1 {L}")
        finish(a, S_POFF, f"s{S_PVAL}")
        a(f"s_mov_b32 s{S_PVAL}, 0")
        a.label(L)
    def hook_first():
        L = a.newlabel("Hf")
        a(f"s_cmp_eq_u32 s{S_PVAL}, 0"); a(f"s_cbranch_scc1 {L}")
        a(f"s_mov_b32 s21, s{S_PVAL}"); a(f"s_mov_b32 s{S_PVAL}, 0")
        a(f"s_cmp_lg_u32 s{S_WAVE}, 0"); a(f"s_cbranch_scc1 {L}")
        signal(a, S_POFF, "s21", vtmp=14)
        a.label(L)
    def hook_tail():
        L = a.newlabel("Ht")
        a(f"s_cmp_lg_u32 s{S_WAVE}, 0"); a(f"s_cbranch_scc1 {L}")
        a("v_mov_b32 v14, 1")
        a("s_mov_b64 exec, 1")
        a(f"buffer_atomic_add v14, off, {sr(S_FL,4)}, s{S_CTR} sc0 sc1")
        a("s_mov_b64 exec, -1")
        a.label(L)
    def hook_tail_first():
        L = a.newlabel("Ht")
        a(f"s_cmp_lg_u32 s{S_WAVE}, 0"); a(f"s_cbranch_scc1 {L}")
        a(f"s_mov_b32 s25, s{S_LOOP}"); init_wait(a, END); a(f"s_mov_b32 s{S_LOOP}, s25")
        a.label(L)
        hook_tail()
    def after_main():
        L = a.newlabel("Am")
        wstamp(a, 2)
        a(f"s_cmp_lg_u32 s{S_WAVE}, 0"); a(f"s_cbranch_scc1 {L}")
        a("s_waitcnt vmcnt(0)")
        a("v_readfirstlane_b32 s25, v14")
        a("s_nop 3")
        q1_index()
        a(f"s_cselect_b32 s{S_PRE}, 1, 0"); a(f"s_cselect_b32 s{S_PH}, 1, 2")
        publish_item()
        a.label(L)
    HK = dict(hook_second=hook_first, hook_tail=hook_tail) if ROT else dict(hook_first=hook_first, hook_tail=hook_tail)
    Lft = a.newlabel("Ft")
    a(f"s_cmp_eq_u32 s{S_PH}, 2"); a(f"s_cbranch_scc1 {Lft}")
    a(f"s_cmp_lg_u32 s{S_WAVE}, 0"); a(f"s_cbranch_scc1 {Lft}")
    a(f"s_sub_u32 s25, s34, s{S_T0}")
    q1_index()
    publish_item()
    a(f"s_mov_b32 s{S_PRE}, 1")
    a.label(Lft)
    a.label("L_next")
    wstamp(a, 0)
    Lb, Lpub, L1, L2 = [a.newlabel("N") for _ in range(4)]
    a(f"s_cmp_lg_u32 s{S_WAVE}, 0"); a(f"s_cbranch_scc1 {Lb}")
    a(f"s_cmp_lg_u32 s{S_PRE}, 0"); a(f"s_mov_b32 s{S_PRE}, 0"); a(f"s_cbranch_scc1 {Lb}")
    a(f"s_cmp_eq_u32 s{S_PH}, 2"); a(f"s_cbranch_scc1 {L2}")
    a.label(L1)
    atomic_ret(a, 4, S_CTR, 1)
    a("v_readfirstlane_b32 s25, v4")
    a("s_nop 3")
    q1_index()
    a(f"s_cbranch_scc1 {Lpub}")
    a(f"s_mov_b32 s{S_PH}, 2")
    a.label(L2)
    a(f"s_mov_b32 s20, {FL_Q2G}")
    atomic_ret(a, 4, 20, 1)
    a("v_readfirstlane_b32 s25, v4")
    a("s_nop 3")
    a("s_min_u32 s25, s25, 0xfff"); a("s_add_u32 s25, s25, 0x1000")
    a.label(Lpub)
    publish_item()
    a.label(Lb)
    a("s_waitcnt lgkmcnt(0)")
    a("s_barrier")
    a(f"v_mov_b32 v5, {LDS_SCR}")
    a("ds_read_b32 v4, v5")
    a("s_waitcnt lgkmcnt(0)")
    a(f"v_readfirstlane_b32 s{S_ITEM}, v4")
    a("s_nop 3")
    a(f"s_cmp_ge_u32 s{S_ITEM}, 0x1000"); a(f"s_cbranch_scc1 L_qa")
    a(f"s_lshr_b32 s20, s{S_ITEM}, 3"); a(f"s_and_b32 s21, s{S_ITEM}, 7")
    base = 0
    for typ, p, c0, n in Q1:
        Ln = a.newlabel("D")
        a(f"s_cmp_ge_u32 s20, {base+n}"); a(f"s_cbranch_scc1 {Ln}")
        a(f"s_sub_u32 s20, s20, {base-c0}") if base >= c0 else a(f"s_add_u32 s20, s20, {c0-base}")
        if typ in ("DN", "W2", "W1"): a("s_mov_b32 s36, s20"); a("s_mov_b32 s37, s21")
        elif typ == "WR": a("s_lshl_b32 s37, s20, 3"); a("s_add_u32 s37, s37, s21")
        elif typ == "KS":
            a("s_lshr_b32 s38, s20, 3"); a("s_add_u32 s38, s38, 1"); a("s_and_b32 s37, s20, 7"); a("s_lshl_b32 s37, s37, 1")
            a("s_lshr_b32 s22, s21, 2"); a("s_add_u32 s37, s37, s22"); a("s_and_b32 s36, s21, 3")
        elif typ in ("K4", "G4"):
            a("s_and_b32 s36, s21, 3"); a(f"s_add_u32 s36, s36, {p}"); a("s_lshr_b32 s21, s21, 2"); a("s_lshl_b32 s37, s20, 1"); a("s_add_u32 s37, s37, s21")
            if typ == "K4": a("s_lshr_b32 s38, s37, 4"); a("s_add_u32 s38, s38, 1"); a("s_and_b32 s37, s37, 15")
        elif typ == "G8": a("s_mov_b32 s36, s21"); a("s_mov_b32 s37, s20")
        elif typ == "QA": pass
        elif typ == "K1":
            a("s_and_b32 s38, s20, 1"); a("s_add_u32 s38, s38, 1"); a("s_lshr_b32 s37, s20, 1"); a("s_lshl_b32 s37, s37, 3")
            a("s_add_u32 s37, s37, s21"); a("s_mov_b32 s36, 1")
        else:
            a(f"s_mov_b32 s36, {2*p}")
            if typ == "KV": a("s_and_b32 s38, s20, 1"); a("s_add_u32 s38, s38, 1"); a("s_lshr_b32 s20, s20, 1")
            if typ == "Q": a("s_mov_b32 s38, 0")
        a(f"s_branch L_{dict(KV='QKV', Q='QKV', K1='QKV2', K4='QKV2', G4='GU2', G8='GU2').get(typ, typ)}")
        a.label(Ln)
        base += n
    a(f"s_branch {END}")
    a.label("L_QA")
    a(f"s_cmp_eq_u32 s{S_B}, 4"); a(f"s_cselect_b32 s{S_PH}, 1, 2")
    a("s_barrier")
    a("s_branch L_next")
    def coords():
        a("s_and_b32 s22, s21, 1"); a("s_add_u32 s36, s36, s22")
        a("s_lshr_b32 s21, s21, 1"); a("s_lshl_b32 s37, s20, 2"); a("s_add_u32 s37, s37, s21")
    def done():
        if PROFW:
            wstamp(a, 3)
            a("s_waitcnt lgkmcnt(0)")
            for i in range(4): a(f"v_writelane_b32 v4, s{70+2*i}, {i}")
            a(f"v_writelane_b32 v4, s{S_ITEM}, 4"); a(f"v_writelane_b32 v4, s{S_B}, 5")
            for i in range(5): a(f"v_writelane_b32 v4, s{[24,6,52,54,80][i]}, {8+i}")
            a("s_lshl_b32 s20, s2, 5"); a("s_add_u32 s20, s20, s100"); a("s_lshl_b32 s20, s20, 6"); a(f"s_add_u32 s20, s20, {TSW_OFF}")
            a(f"v_lshlrev_b32 v5, 2, v{V_LANE}")
            a("s_mov_b64 exec, 0xffff")
            a(f"buffer_store_dword v4, v5, {sr(S_FL,4)}, s20 offen")
            a("s_mov_b64 exec, -1")
            a("s_add_u32 s100, s100, 1"); a("s_min_u32 s100, s100, 31")
        if DBG:
            a(f"s_lshr_b32 s26, s{S_ITEM}, 7"); a("s_add_u32 s26, s26, 1"); a(f"s_cmp_ge_u32 s{S_ITEM}, {NQ1}"); a("s_cselect_b32 s26, 9, s26")
            a(f"s_cmp_ge_u32 s{S_ITEM}, 0x1000"); a("s_cselect_b32 s26, 10, s26")
            dbgmax(a, 26)
        a("s_branch L_next")
    a.label("L_QKV")
    coords()
    a.label("L_QKV2")
    wstamp(a, 1)
    load_srd(a, S_SRDX, 66, XN_OFF, S*XN_STR)
    a("s_cmp_eq_u32 s38, 1"); a("s_cselect_b32 s34, s46, s44"); a("s_cselect_b32 s35, s47, s45")
    a("s_cmp_eq_u32 s38, 2"); a("s_cselect_b32 s34, s48, s34"); a("s_cselect_b32 s35, s49, s35")
    load_srd(a, S_SRDW, 34, 0, DM*4096*2)
    gq = Gemm16(a, "qk", XN_STR, 8192, "head", xflags="sc1") if M16 else Gemm(a, "qk", 4, 4, 2, XN_STR, 8192, "head", xflags="sc1")
    gv = Gemm16(a, "v", XN_STR, 8192, "head", swap=True, xflags="sc1") if M16 else Gemm(a, "v", 4, 4, 2, XN_STR, 8192, "head", swap=True, xflags="sc1")
    gq.setup()
    a(f"s_mul_i32 s{S_OFFX}, s36, {256*XN_STR}"); a(f"s_lshl_b32 s{S_OFFW}, s37, 9")
    assert K_OFF == Q_OFF + 16*MB and VT_OFF == Q_OFF + 32*MB
    gq.prologue_dma()
    run_epi()
    gq.junk = gv.junk = (LDS_SCR+1024, 13, [24, 28, 84][:NJUNK], 79) if NJUNK else None
    for r, p in ((24, 56), (28, 58), (84, 60)): load_srd(a, r, p, 0, DM*DF*2)
    a(f"s_sub_u32 s79, s{S_ITEM}, 128"); a("s_cmp_lt_u32 s79, 128")
    for r in (24, 28, 84): a(f"s_cselect_b32 s{r+2}, s{r+2}, 0")
    a("s_cselect_b32 s79, s79, 0")
    a("s_lshl_b32 s79, s79, 2"); a(f"s_add_u32 s79, s79, s{S_WAVE}"); a(f"s_mul_i32 s79, s79, {14*1024}")
    a(f"v_lshlrev_b32 v13, 4, v{V_LANE}")
    a("s_cmp_eq_u32 s38, 2"); a("s_cbranch_scc1 L_V")
    gq.main(16, dma_issued=True, **HK)
    a(f"s_mov_b32 s{S_EPI}, 1")
    a("s_branch L_QKVfin")
    a.label("L_V")
    gv.main(16, dma_issued=True, **HK)
    a(f"s_mov_b32 s{S_EPI}, 2")
    a.label("L_QKVfin")
    after_main()
    a("s_lshl_b32 s32, s36, 21"); a("s_lshl_b32 s33, s37, 14"); a("s_add_u32 s32, s32, s33")
    a("s_lshl_b32 s33, s38, 24"); a("s_add_u32 s32, s32, s33"); a(f"s_add_u32 s{S_EP0}, s32, {Q_OFF}")
    a("s_lshl_b32 s32, s36, 10"); a("s_lshl_b32 s33, s37, 6"); a("s_add_u32 s32, s32, s33"); a(f"s_add_u32 s32, s32, {FL_QKV}")
    a("s_add_u32 s33, s38, 2"); a("s_cmp_ge_u32 s33, 3"); a("s_cselect_b32 s34, 3, 0"); a("s_sub_u32 s33, s33, s34")
    a("s_lshl_b32 s33, s33, 3"); a(f"s_lshl_b32 s{S_PVAL}, 4, s33"); a(f"s_mov_b32 s{S_POFF}, s32")
    if not ROT: run_epi()
    done()
    gQ, gV = gq, gv
    a.label("L_KS")
    wstamp(a, 1)
    load_srd(a, S_SRDX, 66, XN_OFF, S*XN_STR)
    a("s_cmp_eq_u32 s38, 2"); a("s_cselect_b32 s34, s48, s46"); a("s_cselect_b32 s35, s49, s47")
    load_srd(a, S_SRDW, 34, 0, DM*4096*2)
    gq = Gemm(a, "ks", 1, 4, 3, XN_STR, 8192, "head", xflags="sc1")
    gv = Gemm(a, "vs", 1, 4, 3, XN_STR, 8192, "head", swap=True, xflags="sc1")
    gq.setup()
    a(f"s_mul_i32 s{S_OFFX}, s36, {64*XN_STR}"); a(f"s_lshl_b32 s{S_OFFW}, s37, 9")
    a("s_lshl_b32 s32, s36, 19"); a("s_lshl_b32 s33, s37, 14"); a("s_add_u32 s32, s32, s33")
    a("s_lshl_b32 s33, s38, 24"); a("s_add_u32 s32, s32, s33"); a(f"s_add_u32 s32, s32, {Q_OFF}")
    gq.prologue_dma()
    a("s_cmp_eq_u32 s38, 2"); a("s_cbranch_scc1 L_VS")
    gq.main(16, dma_issued=True, hook_tail=hook_tail_first)
    after_main()
    gq.epi_qk(S_FL, 32, "sc1")
    a("s_branch L_KSfin")
    a.label("L_VS")
    gv.main(16, dma_issued=True, hook_tail=hook_tail_first)
    after_main()
    gv.epi_v(S_FL, 32, "sc1")
    a.label("L_KSfin")
    a("s_lshl_b32 s32, s37, 6"); a(f"s_add_u32 s32, s32, {FL_QKV}")
    a("s_sub_u32 s33, s38, 1"); a("s_lshl_b32 s33, s33, 3"); a("s_lshl_b32 s33, 1, s33")
    finish(a, 32, "s33")
    done()
    a.label("L_GU")
    coords()
    a.label("L_GU2")
    wstamp(a, 1)
    g = Gemm16(a, "gu", XN_STR, DF*2, "gu", xflags="sc1") if M16 else Gemm(a, "gu", 4, 4, 2, XN_STR, DF*2, "gu", xflags="sc1")
    load_srd(a, S_SRDX, 66, XN_OFF, S*XN_STR)
    a(f"s_cmp_ge_u32 s{S_WAVE}, 2"); a("s_cselect_b32 s34, s58, s56"); a("s_cselect_b32 s35, s59, s57")
    load_srd(a, S_SRDW, 34, 0, DM*DF*2)
    g.setup()
    a(f"s_mul_i32 s{S_OFFX}, s36, {256*XN_STR}"); a(f"s_lshl_b32 s{S_OFFW}, s37, 8")
    g.prologue_dma()
    run_epi()
    if GJUNK:
        g.junk = (LDS_SCR+1024, 13, [24, 84], 79)
        load_srd(a, 24, 44, 0, DM*4096*2); load_srd(a, 84, 50, 0, DM*4096*2)
        a(f"s_sub_u32 s79, s{S_ITEM}, 256"); a("s_cmp_lt_u32 s79, 128"); a("s_cselect_b32 s86, s86, 0"); a("s_cselect_b32 s26, s26, 0"); a("s_cselect_b32 s79, s79, 0")
        a("s_lshl_b32 s79, s79, 2"); a(f"s_add_u32 s79, s79, s{S_WAVE}"); a("s_lshl_b32 s79, s79, 14")
        a(f"v_lshlrev_b32 v13, 4, v{V_LANE}")
        L2 = a.newlabel("Gj")
        a("s_cmp_eq_u32 s26, 0"); a(f"s_cbranch_scc1 {L2}")
        a(f"s_mov_b32 m0, {LDS_SCR+1024}")
        for k in range(2):
            for r in (24, 84): a(f"buffer_load_dwordx4 v13, {sr(r,4)}, s79 offen lds")
            a("s_add_u32 s79, s79, 1024")
        a.label(L2)
    g.main(16, dma_issued=True, **HK)
    after_main()
    a(f"s_mul_i32 s32, s36, {256*H_STR}"); a("s_lshl_b32 s33, s37, 10"); a("s_add_u32 s32, s32, s33"); a(f"s_add_u32 s{S_EP0}, s32, {H_OFF}")
    a(f"s_mov_b32 s{S_EPI}, 3")
    a(f"s_lshl_b32 s{S_POFF}, s36, 7"); a(f"s_add_u32 s{S_POFF}, s{S_POFF}, {FL_GU}"); a(f"s_mov_b32 s{S_PVAL}, 1")
    if not ROT: run_epi()
    done()
    a.label("L_epi")
    a(f"s_cmp_eq_u32 s{S_EPI}, 0"); a("s_cbranch_scc1 L_epi_ret")
    a(f"s_cmp_eq_u32 s{S_EPI}, 2"); a("s_cbranch_scc1 L_epi2")
    a(f"s_cmp_eq_u32 s{S_EPI}, 3"); a("s_cbranch_scc1 L_epi3")
    gQ.epi_qk(S_FL, S_EP0, "sc1")
    a("s_branch L_epi_end")
    a.label("L_epi2")
    gV.epi_v(S_FL, S_EP0, "sc1")
    a("s_branch L_epi_end")
    a.label("L_epi3")
    g.epi_gu(S_FL, S_EP0, "sc1")
    a.label("L_epi_end")
    a(f"s_mov_b32 s{S_EPI}, 0")
    a.label("L_epi_ret")
    a(f"s_setpc_b64 s[{S_RET}:{S_RET+1}]")
    a.label("L_DN")
    flush()
    a("s_lshl_b32 s32, s36, 7"); a(f"s_add_u32 s32, s32, {FL_GU}")
    wait_flags(a, lambda: a("v_mov_b32 v5, 0"), 32, 0xffffffff, 28, END, 1)
    wstamp(a, 1)
    g = Gemm16N(a, "dn", 4, 3, H_STR, 2048, xflags="sc1", wperm=M16) if N16 else Gemm(a, "dn", 4, 2, 3, H_STR, 2048, "plain", xflags="sc1", xr4=True, wperm=M16)
    load_srd(a, S_SRDX, 66, H_OFF, S*H_STR)
    load_srd(a, S_SRDW, 60, 0, DF*DM*2)
    g.setup()
    a(f"s_mul_i32 s{S_OFFX}, s36, {256*H_STR}"); a(f"s_lshl_b32 s{S_OFFW}, s37, 8")
    g.main(56, hook_tail=hook_tail)
    after_main()
    load_srd(a, 28, 66, BP_OFF, S*DM*2)
    a("s_lshl_b32 s32, s36, 19"); a("s_lshl_b32 s33, s37, 8")
    g.epi_plain(28, 32, 33, "sc1")
    a("s_lshl_b32 s32, s36, 3"); a("s_add_u32 s32, s32, s37"); a("s_lshl_b32 s32, s32, 6"); a(f"s_add_u32 s{S_POFF}, s32, {FL_DN}")
    a(f"s_mov_b32 s{S_PVAL}, 1")
    done()
    for nm, MT, NST in (("W2", 4, 3), ("W1", 2, 4)):
        a.label(f"L_{nm}")
        flush()
        sh = 0 if MT == 4 else 1
        a(f"s_lshl_b32 s32, s36, {8-sh}"); a(f"s_add_u32 s32, s32, {FL_AT}")
        if MT == 4: wait_flags(a, lambda: (a(f"v_and_b32 v5, 1, v{V_LANE}"), a("v_lshlrev_b32 v5, 7, v5")), 32, 0xffffffff, 128, END, 2)
        else: wait_flags(a, lambda: a("v_mov_b32 v5, 0"), 32, 0xffffffff, 128, END, 1)
        wstamp(a, 1)
        g = Gemm16N(a, nm, MT, NST, OA_STR, 2048, xflags="sc1") if (N16 and (MT == 4 or N16 > 1)) else Gemm(a, nm, MT, 2, NST, OA_STR, 2048, "plain", xflags="sc1", xr4=True, wperm=True)
        load_srd(a, S_SRDX, 66, OA_OFF, S*OA_STR)
        load_srd(a, S_SRDW, 50, 0, 4096*DM*2)
        g.setup()
        a(f"s_mul_i32 s{S_OFFX}, s36, {64*MT*OA_STR}"); a(f"s_lshl_b32 s{S_OFFW}, s37, 8")
        g.main(64, hook_tail=hook_tail)
        after_main()
        a(f"s_lshr_b32 s32, s36, {sh}"); a("s_lshl_b32 s32, s32, 3"); a("s_add_u32 s32, s32, s37"); a("s_lshl_b32 s32, s32, 6"); a(f"s_add_u32 s32, s32, {FL_DN}")
        wait_flags(a, lambda: a("v_mov_b32 v5, 0"), 32, 0xffffffff, 1, END, 1)
        load_srd(a, 28, 62, 0, S*DM*2)
        load_srd(a, S_SRDX, 40, 0, S*DM*2)
        load_srd(a, S_SRDW, 66, BP_OFF, S*DM*2)
        a(f"s_lshl_b32 s32, s36, {19-sh}"); a("s_lshl_b32 s33, s37, 8")
        g.epi_plain(28, 32, 33, "", final=(S_SRDX, S_SRDW, "sc1"))
        done()
    a.label("L_WR")
    flush()
    wor_item(a, END)
    done()
    a.label("L_qa")
    flush()
    a(f"s_sub_u32 s20, s{S_ITEM}, 0x1000")
    a(f"s_cmp_ge_u32 s20, {NQA}"); a(f"s_cbranch_scc1 {END}")
    Lq = a.newlabel("Px")
    a("s_cmp_ge_u32 s20, 32"); a(f"s_cbranch_scc1 {Lq}")
    for i in range(4): a(f"v_mov_b32 v{4+i}, -1")
    a(f"v_lshlrev_b32 v3, 4, v{V_LANE}"); a("s_lshl_b32 s21, s20, 16"); a(f"s_lshl_b32 s22, s{S_WAVE}, 14"); a("s_add_u32 s21, s21, s22"); a(f"s_add_u32 s21, s21, {EX_OFF}")
    for i in range(16):
        a(f"buffer_store_dwordx4 v[4:7], v3, {sr(S_FL,4)}, s21 offen offset:{(i%4)*1024} sc1")
        if i % 4 == 3: a("s_add_u32 s21, s21, 4096")
    a(f"s_mov_b32 s36, {FL_EX}")
    wstamp(a, 1)
    finish(a, 36, 1)
    a(f"s_mov_b32 m0, {LDS_SCR+1024}"); a("s_lshl_b32 s21, s20, 2"); a(f"s_add_u32 s21, s21, s{S_WAVE}")
    for p, size in PFLIST:
        n = size//(128*1024)
        load_srd(a, 28, p, 0, size)
        a(f"s_mul_i32 s22, s21, {n*1024}"); a(f"s_mov_b32 s23, {n//4}")
        Ll = a.newlabel("Pf")
        a.label(Ll)
        for i in range(4): a(f"buffer_load_dwordx4 v3, s[28:31], s22 offen lds"); a("s_add_u32 s22, s22, 1024")
        a(f"s_waitcnt vmcnt({PFDEPTH})")
        a("s_sub_u32 s23, s23, 1"); a("s_cmp_lg_u32 s23, 0"); a(f"s_cbranch_scc1 {Ll}")
    wstamp(a, 2)
    done()
    a.label(Lq)
    a("s_sub_u32 s20, s20, 32")
    if QAORD:
        pos = 0; Lo = a.newlabel("Qo")
        for first, n in QAORD:
            Ln = a.newlabel("Qo")
            a(f"s_cmp_ge_u32 s20, {pos+n}"); a(f"s_cbranch_scc1 {Ln}")
            a(f"s_add_u32 s20, s20, {(first-pos) & 0xffffffff:#x}"); a(f"s_branch {Lo}")
            a.label(Ln)
            pos += n
        a.label(Lo)
        assert sorted(x for f, n in QAORD for x in range(f, f+n)) == list(range(pos))
    a(f"s_cmp_ge_u32 s20, {NBLK*16}"); a("s_cbranch_scc1 L_AT4")
    def attention(npair):
        sh = 0 if npair == 2 else 1
        a("s_lshr_b32 s32, s38, 3"); a("s_lshl_b32 s32, s32, 10"); a(f"s_lshr_b32 s34, s37, {sh}"); a("s_lshl_b32 s33, s34, 8")
        a("s_add_u32 s32, s32, s33"); a(f"s_add_u32 s32, s32, {FL_QKV}")
        wait_flags(a, lambda: (a(f"v_and_b32 v5, 3, v{V_LANE}"), a("v_lshlrev_b32 v5, 6, v5")), 32, 0xffffff, 0x40404, END, 4)
        a("s_lshl_b32 s32, s38, 2"); a("s_add_u32 s32, s32, s34"); a("s_lshl_b32 s32, s32, 7"); a(f"s_add_u32 s32, s32, {FL_STEP}")
        def w():
            if SLOW1:
                a("s_cmp_eq_u32 s38, 0"); a("s_cselect_b32 s33, 0, 512"); a("s_sub_u32 s33, s32, s33")
                wait_flags(a, lambda: a("v_mov_b32 v15, 0"), 33, 0xffffffff, 24, END, 1, 14, 15, SLOW1, barrier=False)
            wait_flags(a, lambda: a("v_mov_b32 v15, 0"), 32, 0xffffffff, 24, END, 1, 14, 15, FAST1)
            if PROFW: a("s_memrealtime s[84:85]")
        att_item(a, S_FL, 38, 37, "sc1", "sc1", npair, w, late=(npair == 1))
        if PROFW: a("s_waitcnt lgkmcnt(0)"); a("s_mov_b32 s72, s84"); a("s_mov_b32 s74, s84")
        finish(a, 36, 4*npair)
        done()
    a("s_lshr_b32 s38, s20, 2"); a("s_and_b32 s37, s20, 3")
    a("s_lshr_b32 s36, s20, 4"); a("s_lshl_b32 s36, s36, 7"); a(f"s_add_u32 s36, s36, {FL_AT}")
    attention(2)
    a.label("L_AT4")
    a(f"s_sub_u32 s20, s20, {NBLK*16}"); a("s_lshr_b32 s38, s20, 3"); a("s_and_b32 s37, s20, 7")
    a("s_lshl_b32 s36, s38, 7"); a("s_lshr_b32 s21, s37, 2"); a("s_lshl_b32 s21, s21, 6"); a("s_add_u32 s36, s36, s21")
    a(f"s_add_u32 s36, s36, {FL_ATS}"); a(f"s_add_u32 s38, s38, {4*NBLK}")
    attention(1)

def build(path, prof=False, profw=False, force_slow=False, header=""):
    global PROFW
    chain.PROF = prof; PROFW = profw
    a = Asm()
    if header: a.raw(header)
    a.raw("; @launch grid=(256,1,1) block=(256,1,1) lds=163840")
    a.raw('.amdgcn_target "amdgcn-amd-amdhsa--gfx950"')
    a.raw(".text")
    emit_mega(a, MAIN, force_slow)
    a.raw('.section .rodata,"a"')
    kernel_desc(a, MAIN, 512, 256)
    open(path, "w").write(a.text())

if __name__ == "__main__":
    build("parallel_sum__memory_aug_recurrent_mem_tr__glu_gated_geglu__prompt.s", header=open("header.txt").read())
    build("m1.s")
    build("m1_prof.s", prof=True, profw=True)
    L0, S0 = LISTS, SMALL
    H = open("header.txt").read()
    LISTS = [['KVd', 'Q0', 'Gb3', 'Ga1', 'DNa'], ['KVc', 'KV3a', 'Gb1', 'Ga2', 'Q3', 'W1x'], ['KVb', 'KV3b', 'Gb2', 'Ga3', 'Q2', 'WR'], ['KVa', 'Q1', 'Gm', 'DNb', 'W2x']]
    NJUNK = 0
    F = DM*DF*2; Wb = DM*4096*2
    PFLIST = [(56, F), (58, F), (60, F)]
    build(f"m1_pf_prof.s", prof=True, profw=True); build(f"t_pf.s", header=H)
    PFDEPTH = 4
    build(f"m1_pf4_prof.s", prof=True, profw=True)
    PFDEPTH = 8; chain.NT = 3; PFLIST = [(44, Wb), (56, F), (58, F), (60, F), (50, Wb)]
    build(f"m1_pfnt_prof.s", prof=True, profw=True); build(f"t_pfnt.s", header=H)
    chain.NT = 0; PFLIST = []; NJUNK = 3; LISTS = L0
    chain.FORCE_FALLBACK = True
    build("m1_fb.s")
```

```python
from common import *
from gemm import V_LANE, S_WAVE
import math
S_WS = 8; S_WT = 12; S_X = 16; S_R = 17; S_MODE = 18; S_STEP = 19
CEXP = (DH**-0.5)*math.log2(math.e)
PROF = False
NCP = 1
def NC(): return NCP
NSTEP = 64
INIT_WAIT = None
FORCE_FALLBACK = False
STAMP = None
IDLE = None
A_READY = None
NYOUNG = 0
INIT_ARRIVE = None
NPOLL = 4
NFLY = 3
PSLEEP = 1
WIN2 = 3
PER2 = 1
RS = 0
KVR = False
K1POS = 15
VMLATE = True
KMLAST = False
KVEARLY = 0
ADELAY = 0
VDELAY = 0
G1ORD = 'q0 L k1 r0 q1 r1 m k0'
NANCHK = False
NT = 0
LATEP = False
PDELAY = 0
RSETS = 1
VLIGHT = False
VS = 0
AS = 0
WIN = 4
PER = 2
GBAR = True
GATE = 'all'
XSLEEP = 6
XGAP = 4
XAHEAD = 1

def ts(a, i):
    if PROF: a(f"s_memtime s[{70+2*i}:{71+2*i}]")
def rts(a, i):
    if PROF: a(f"s_memrealtime s[{90+2*i}:{91+2*i}]")
def ts_store(a, role_id_sreg, tmpv):
    if not PROF: return
    a("s_waitcnt lgkmcnt(0)")
    for i in range(10): a(f"v_writelane_b32 v{tmpv}, s{70+2*i}, {i}")
    a(f"v_writelane_b32 v{tmpv}, s90, 10"); a(f"v_writelane_b32 v{tmpv}, s92, 11")
    a(f"v_writelane_b32 v{tmpv}, s30, 12"); a(f"v_writelane_b32 v{tmpv}, s94, 13"); a(f"v_writelane_b32 v{tmpv}, s4, 14"); a(f"v_writelane_b32 v{tmpv}, s6, 15")
    a(f"s_lshl_b32 s20, s{role_id_sreg}, 6"); a(f"s_add_u32 s20, s20, s{S_STEP}"); a("s_lshl_b32 s20, s20, 2")
    a(f"s_add_u32 s20, s20, s{S_WAVE}"); a("s_lshl_b32 s20, s20, 6"); a(f"s_add_u32 s20, s20, {TS2_OFF}")
    a(f"v_mbcnt_lo_u32_b32 v{tmpv+1}, -1, 0"); a(f"v_lshlrev_b32 v{tmpv+1}, 2, v{tmpv+1}")
    a("s_mov_b64 exec, 0xffff")
    a(f"buffer_store_dword v{tmpv}, v{tmpv+1}, {sr(S_WS,4)}, s20 offen")
    a("s_mov_b64 exec, -1")

def local_store(a, instr):
    L1, L2 = a.newlabel("ls"), a.newlabel("ls")
    a(f"s_cmp_lg_u32 s{S_MODE}, 0")
    a(f"s_cbranch_scc1 {L1}")
    a(instr)
    a(f"s_branch {L2}")
    a.label(L1)
    a(instr + " sc1")
    a.label(L2)

def poll_tail(a, Lretry, abort):
    a("s_add_u32 s30, s30, 1")
    a(f"s_cmp_lt_u32 s30, {POLL_MAX*(8 if PROF else 1)}")
    a(f"s_cbranch_scc1 {Lretry}")
    a(f"s_branch {abort}")

def idx_reg(a, v):
    a(f"v_bfe_u32 v{v}, v{V_LANE}, 3, 1")
    a(f"v_mov_b32 v15, 0x44444444")
    a(f"v_mul_u32_u24 v{v}, 0xaaaa, v{v}")
    a(f"v_lshl_or_b32 v{v}, v{v}, 16, v{v}")
    a(f"v_add_u32 v{v}, v15, v{v}")

def tr_base(a, dst, rowbytes, row_expr, chunk_expr):
    pass

A_SC = 128*1024; A_KX = 140*1024; A_VX = 148*1024
def role_A(a, abort, kv_wait=None, step_done=None):
    L = V_LANE; W = S_WAVE
    VK1, VI, VID, VT0, VT1, VKX, VVX, VVM, VO, VKM, VSW, VSR, VSM, VL16, VKA = 15, 3, 24, 6, 7, 8, 9, 10, 11, 12, 13, 14, 0, 2, 1
    PIECE = 32; STG = [96, 104, 16]; ACC = 112
    Wq = lambda ks, t: ar((ks*2+t)*8, 8)
    Wk0 = lambda ks: vr(128+ks*8, 8)
    head = 21
    a(f"s_lshl_b32 s26, s{S_X}, 3"); a(f"s_add_u32 s26, s26, s{S_R}")
    a(f"v_lshrrev_b32 v2, 4, v{L}"); a(f"v_and_b32 v3, 15, v{L}")
    a("v_lshlrev_b32 v4, 1, v2"); a("v_xor_b32 v3, v3, v4")
    a(f"s_lshl_b32 s20, s{W}, 4"); a("v_add_u32 v2, s20, v2"); a("v_lshlrev_b32 v2, 13, v2")
    a("v_lshlrev_b32 v3, 4, v3")
    for j in range(4):
        if j >= 2: a(f"v_xor_b32 v4, 128, v3")
        else: a("v_mov_b32 v4, v3")
        a(f"v_add_u32 v4, v2, v4"); a(f"v_add_u32 v{32+j}, {4*j*8192}, v4")
    a(f"v_lshrrev_b32 v2, 3, v{L}"); a(f"v_and_b32 v3, 7, v{L}")
    a(f"v_bfe_u32 v4, v{L}, 4, 1"); a("v_lshlrev_b32 v4, 1, v4"); a("v_xor_b32 v3, v3, v4")
    a("v_add_u32 v2, s20, v2"); a("v_lshlrev_b32 v2, 13, v2")
    a("v_lshlrev_b32 v3, 4, v3")
    a("v_add_u32 v36, v2, v3")
    a("v_xor_b32 v3, 64, v3"); a("v_add_u32 v37, v2, v3"); a(f"v_add_u32 v37, {8*8192}, v37")
    a(f"v_lshrrev_b32 v2, 4, v{L}"); a(f"v_bfe_u32 v3, v{L}, 2, 2")
    a("v_lshl_add_u32 v4, v2, 3, v3")
    a(f"v_and_b32 v5, 3, v{L}"); a("v_lshlrev_b32 v5, 3, v5")
    a("v_and_b32 v2, 1, v2")
    a("v_lshl_or_b32 v15, v2, 2, v3"); a(f"v_xor_b32 v15, s{W}, v15")
    a("v_lshlrev_b32 v15, 5, v15"); a("v_lshl_add_u32 v38, v4, 8, v5"); a("v_add_u32 v39, v38, v15")
    a("v_xor_b32 v15, 128, v15"); a("v_add_u32 v40, v38, v15")
    a("v_lshrrev_b32 v3, 1, v3"); a("v_lshl_or_b32 v15, v2, 1, v3"); a(f"v_xor_b32 v15, s{W}, v15")
    a("v_lshlrev_b32 v15, 5, v15"); a(f"v_lshl_add_u32 v{VT0}, v4, 7, v5"); a(f"v_add_u32 v{VT0}, v{VT0}, v15")
    a(f"v_add_u32 v{VT1}, 65536, v{VT0}")
    load_srd(a, S_WT, 44, 0, DM*4096*2)
    load_srd(a, 28, 46, 0, DM*4096*2)
    a("s_lshl_b32 s22, s26, 8")
    a(f"s_lshl_b32 s23, s{W}, 12"); a(f"s_lshl_b32 s24, s{W}, 11"); a("s_add_u32 s24, s24, 16384")
    SLOT = 24576; NSL = 6
    def issue(ks):
        b = (ks % NSL)*SLOT
        for j in range(4):
            a(f"s_add_u32 m0, s23, {b+1024*j}"); a("s_nop 0")
            a(f"buffer_load_dwordx4 v{32+j}, {sr(S_WT,4)}, s22 offen {'nt ' if NT & 1 else ''}lds")
        for j in range(2):
            a(f"s_add_u32 m0, s24, {b+1024*j}"); a("s_nop 0")
            a(f"buffer_load_dwordx4 v{36+j}, s[28:31], s22 offen {'nt ' if NT & 4 else ''}lds")
        a(f"s_add_u32 s22, s22, {64*8192}")
    for ks in range(NSL-1):
        issue(ks)
        if ks == 0 and INIT_ARRIVE:
            a(f"s_waitcnt vmcnt({6+NYOUNG})"); a("s_barrier"); INIT_ARRIVE(a)
    a("s_lshl_b32 s25, s26, 8"); a("s_add_u32 s25, s25, 128"); a(f"s_lshl_b32 s27, s{W}, 11")
    late = 0
    def k1issue(slot):
        n = 0
        for k in range(3*slot, min(16, 3*slot+3)):
            a(f"s_add_u32 s21, s25, {k*64*8192}")
            for j in range(2):
                a(f"s_add_u32 m0, s27, {k*8192+1024*j}"); a("s_nop 0")
                a(f"buffer_load_dwordx4 v{36+j}, s[28:31], s21 offen {'nt ' if NT & 4 else ''}lds"); n += 1
        return n
    for ks in range(16):
        nxt = ks + NSL - 1
        if nxt < 16: issue(nxt)
        elif not KVR: late += k1issue((ks-1) % NSL)
        a(f"s_waitcnt vmcnt({6*(min(nxt,15)-ks) + late})")
        a("s_barrier")
        b = (ks % NSL)*SLOT
        a(f"v_add_u32 v41, {b}, v39"); a(f"v_add_u32 v42, {b}, v40"); a(f"v_add_u32 v43, {b+16384}, v{VT0}")
        for q in range(4):
            ro = 32*(q >> 1) + 4*(q & 1)
            a(f"ds_read_b64_tr_b16 {ar((ks*2)*8+2*q,2)}, v41 offset:{ro*256}")
            a(f"ds_read_b64_tr_b16 {ar((ks*2+1)*8+2*q,2)}, v42 offset:{ro*256}")
            a(f"ds_read_b64_tr_b16 {vr(128+ks*8+2*q,2)}, v43 offset:{ro*128}")
        a("s_waitcnt lgkmcnt(0)")
        a("s_barrier")
    a(f"v_lshlrev_b32 v{VL16}, 4, v{L}")
    if not KVR:
        k1issue(15 % NSL)
        a(f"s_lshl_b32 s24, s{W}, 11")
        a(f"v_lshlrev_b32 v{VL16}, 4, v{L}")
        a(f"v_add_u32 v{VK1}, s24, v{VL16}")
        a("s_waitcnt vmcnt(0)")
        a("s_barrier")
        for half in range(2):
            for k8 in range(8):
                for q in range(4):
                    a(f"ds_read_b64_tr_b16 {vr(32+k8*8+2*q,2)}, v{VT0+half} offset:{k8*8192+4096*(q>>1)+512*(q&1)}")
            a("s_waitcnt lgkmcnt(0)")
            a("s_barrier")
            for k8 in range(8):
                for q in range(2):
                    a(f"ds_write_b128 v{VK1}, {vr(32+k8*8+4*q,4)} offset:{k8*8192+1024*q}")
            a("s_waitcnt lgkmcnt(0)")
            if half == 0: a(f"v_add_u32 v{VK1}, 65536, v{VK1}")
        a(f"v_mov_b32 v{VT1}, v{VK1}"); a(f"v_subrev_u32 v{VT0}, 65536, v{VK1}")
    idx_reg(a, VI)
    a(f"v_and_b32 v32, 15, v{L}"); a(f"v_bfe_u32 v33, v{L}, 4, 1"); a("v_lshlrev_b32 v33, 2, v33"); a("v_sub_u32 v32, v32, v33")
    a("v_mov_b32 v33, 0x3f80"); a("v_mov_b32 v34, 0x3f800000")
    for h in range(4):
        e = 2*(h & 1) + 8*(h >> 1)
        a(f"v_cmp_eq_u32 vcc, {e}, v32"); a("s_nop 1"); a(f"v_cndmask_b32 v{VID+h}, 0, v33, vcc")
        a(f"v_cmp_eq_u32 vcc, {e+1}, v32"); a("s_nop 1"); a(f"v_cndmask_b32 v{VID+h}, v{VID+h}, v34, vcc")
    a(f"s_lshl_b32 s20, s{W}, 8"); a(f"s_lshl_b32 s21, s{W}, 10")
    a(f"v_add_u32 v{VKX}, s21, v{VL16}")
    a(f"v_lshrrev_b32 v34, 4, v{L}"); a(f"v_and_b32 v33, 7, v{L}"); a("v_lshlrev_b32 v33, 4, v33"); a(f"v_lshl_add_u32 v{VKM}, v34, 7, v33")
    a(f"s_lshl_b32 s21, s{W}, 9"); a(f"v_add_u32 v{VKM}, s21, v{VKM}")
    a(f"v_and_b32 v33, 15, v{L}"); a(f"v_lshrrev_b32 v34, 4, v{L}")
    a(f"v_lshlrev_b32 v{VVM}, 4, v33"); a(f"v_lshl_add_u32 v{VVM}, v34, 2, v{VVM}"); a(f"v_add_u32 v{VVM}, s20, v{VVM}")
    a(f"v_lshlrev_b32 v{VO}, 4, v33"); a(f"v_lshl_add_u32 v{VO}, v34, 7, v{VO}")
    a(f"s_lshl_b32 s21, s{W}, 9"); a(f"s_lshl_b32 s22, s{S_R}, 11"); a("s_add_u32 s21, s21, s22"); a(f"v_add_u32 v{VO}, s21, v{VO}")
    a(f"s_mul_i32 s21, s{W}, 3072"); a(f"s_add_u32 s21, s21, {A_SC}"); a(f"v_add_u32 v{VSW}, s21, v{VL16}")
    a(f"v_and_b32 v35, 7, v{L}"); a(f"v_bfe_u32 v36, v{L}, 3, 1")
    a("v_lshl_add_u32 v37, v34, 4, v35"); a("v_lshlrev_b32 v37, 4, v37"); a(f"v_lshl_add_u32 v{VSR}, v36, 10, v37")
    a(f"v_add_u32 v{VSR}, {A_SC}, v{VSR}")
    a("v_lshl_add_u32 v37, v34, 1, v36")
    a("v_lshrrev_b32 v38, 2, v37"); a("v_add_u32 v38, 2, v38"); a("v_lshl_add_u32 v38, v38, 4, v35"); a("v_lshlrev_b32 v38, 4, v38")
    a("v_and_b32 v37, 3, v37"); a(f"v_lshl_add_u32 v{VSM}, v37, 2, v38"); a(f"v_add_u32 v{VSM}, {A_SC+2048}, v{VSM}")
    a(f"s_lshl_b32 s27, s{W}, 11")
    a(f"v_add_u32 v{VKA}, s27, v{VL16}"); a(f"v_add_u32 v{VKA}, {A_KX}, v{VKA}")
    a(f"v_and_b32 v5, 0x30, v{VL16}"); a("v_lshlrev_b32 v5, 6, v5"); a(f"s_lshl_b32 s20, s{W}, 12"); a("v_add_u32 v5, s20, v5")
    if KVR:
        a(f"v_lshrrev_b32 v32, 8, v{VL16}"); a(f"v_bfe_u32 v33, v{VL16}, 4, 3"); a("v_lshlrev_b32 v33, 3, v33"); a(f"v_lshl_add_u32 v{VT0}, v32, 6, v33")
        a("s_lshl_b32 s20, s26, 10"); a(f"s_lshl_b32 s21, s{W}, 8"); a("s_add_u32 s20, s20, s21"); a(f"v_add_u32 v{VT0}, s20, v{VT0}")
        a("v_mov_b32 v18, 0"); a("v_mov_b32 v19, 0")
    a("s_mov_b32 s34, 0x00ff00ff"); a("s_mov_b32 s35, 0x00ff00ff")
    a("s_mov_b32 s36, 0xff00ff00"); a("s_mov_b32 s37, 0xff00ff00")
    a(f"s_mov_b32 s38, {f2u(CEXP):#x}")
    def kv_prefetch():
        if kv_wait: kv_wait(a)
        a(f"s_lshl_b32 s20, s{S_STEP}, 5"); a("s_add_u32 s20, s20, s26"); a("s_lshl_b32 s20, s20, 13")
        a(f"s_add_u32 s21, s20, {VT_OFF}"); a(f"s_add_u32 s20, s20, {K_OFF}")
        for t in range(2):
            a(f"s_add_u32 m0, s27, {A_KX+1024*t}"); a("s_nop 0")
            a(f"buffer_load_dwordx4 v{VKX}, {sr(S_WS,4)}, s20 offen sc1 lds")
            a(f"s_add_u32 m0, s27, {A_VX+1024*t}"); a("s_nop 0")
            a(f"buffer_load_dwordx4 v{VKX}, {sr(S_WS,4)}, s21 offen sc1 lds")
            if t == 0: a("s_add_u32 s20, s20, 4096"); a("s_add_u32 s21, s21, 4096")
    def kv_early():
        for t in range(2):
            a(f"s_add_u32 m0, s27, {A_KX+1024*t}"); a(f"s_add_u32 s21, s68, {4096*t}")
            a(f"buffer_load_dwordx4 v{VKX}, {sr(S_WS,4)}, s21 offen sc1 lds")
            a(f"s_add_u32 m0, s27, {A_VX+1024*t}"); a(f"s_add_u32 s21, s68, {VT_OFF-K_OFF+4096*t}")
            a(f"buffer_load_dwordx4 v{VKX}, {sr(S_WS,4)}, s21 offen sc1 lds")
    a(f"s_mov_b32 s{S_STEP}, 0")
    rts(a, 1)
    if INIT_WAIT:
        a("v_mov_b32 v60, v14"); INIT_WAIT(a); a("v_mov_b32 v14, v60")
        A_READY(a)
    kv_prefetch()
    a("s_waitcnt vmcnt(0)")
    a("s_barrier")
    if PROF: a("s_memrealtime s[94:95]")
    def k1read(ks):
        st = STG[ks % 3]; base = VT0 if ks < 8 else VT1
        return [f"ds_read_b128 {vr(st+4*q,4)}, v{base} offset:{(ks%8)*8192+1024*q}" for q in range(2)]
    a.label("L_A_step")
    a("s_mov_b32 s30, 0"); a("s_mov_b32 s32, 0")
    a(f"s_and_b32 s39, s{S_STEP}, 3"); a("s_lshl_b32 s39, s39, 16")
    a(f"s_lshl_b32 s21, s{S_X}, 14"); a("s_add_u32 s25, s39, s21")
    a(f"s_add_u32 s20, s25, {CH_MEM}")
    for i in range(1, 4): a(f"s_add_u32 s{20+i}, s20, {4096*i}")
    for i in range(16): a(f"v_mov_b32 v{ACC+i}, 0")
    def pload(i):
        a(f"buffer_load_dwordx4 {vr(PIECE+4*i,4)}, v{VL16}, {sr(S_WS,4)}, s{20+i//4} offen offset:{(i%4)*1024} sc1")
    def k1r(ks, pos):
        if KVR: return []
        st = STG[pos % 3]; base = VT0 if ks < 8 else VT1
        return [f"ds_read_b128 {vr(st+4*q,4)}, v{base} offset:{(ks%8)*8192+1024*q}" for q in range(2)]
    YK = 20
    def k1load(): a(f"buffer_load_dwordx2 {vr(YK+2,2)}, v{VT0}, {sr(S_WS,4)}, s28 offen sc1")
    a("s_lshr_b32 s28, s39, 1"); a(f"s_add_u32 s28, s28, {CH_K1}")
    a(f"s_lshl_b32 s68, s{S_STEP}, 5"); a("s_add_u32 s68, s68, s26"); a("s_lshl_b32 s68, s68, 13"); a(f"s_add_u32 s68, s68, {K_OFF + 32*8192}")
    def sload(k): a(f"buffer_load_dword v{28+k}, v5, {sr(S_WS,4)}, s20 offen sc1")
    for q in range(1, 4): a(f"s_cmp_eq_u32 s{W}, {q}"); a(f"s_cbranch_scc1 L_A_w{q}")
    for q in range(4):
        a.label(f"L_A_w{q}")
        for x in k1r(4*q, 0) + k1r(4*q+1, 1): a(x)
        for k in range(NFLY):
            sload(k)
            if k < NFLY-1: a(f"s_sleep {PSLEEP}")
        a.label(f"L_A_poll{q}")
        for k in range(NFLY):
            a(f"s_waitcnt vmcnt({NFLY-1})")
            a(f"v_cmp_eq_u32 vcc, -1, v{28+k}")
            a(f"s_cbranch_vccz L_A_pre{q}")
            sload(k)
        poll_tail(a, f"L_A_poll{q}", abort)
    a.label("L_A_redo")
    a("s_nop 7")
    a(f"s_add_u32 s20, s25, {CH_MEM}")
    for i in range(1, 4): a(f"s_add_u32 s{20+i}, s20, {4096*i}")
    for i in range(16): a(f"v_mov_b32 v{ACC+i}, 0")
    a("s_add_u32 s32, s32, 1"); a(f"s_cmp_ge_u32 s32, {POLL_MAX}"); a(f"s_cbranch_scc1 {abort}")
    if PROF: a("s_add_u32 s30, s30, 0x10000")
    for i in range(4): pload(i)
    for x in k1r(0, 0) + k1r(1, 1): a(x)
    a("s_branch L_A_go0")
    for q in range(4):
        a.label(f"L_A_pre{q}")
        for i in range(4): pload(4*q+i)
        a("s_barrier")
        a.label(f"L_A_go{q}")
        ts(a, 0)
        order = [(4*q + i) % 16 for i in range(16)]
        issued = 4
        for _ in range(WIN2): pload(order[issued]); issued += 1
        for pos, ks in enumerate(order):
            P = vr(PIECE+4*ks, 4)
            if pos in (0, 4, 8, 12): ts(a, 5+pos//4)
            if KVR:
                a(f"s_waitcnt vmcnt({issued-1-pos + (1 if pos > K1POS else 0)})")
                a(f"v_smfmac_f32_16x16x64_bf16 {vr(ACC,4)}, {P}, {Wq(ks,0)}, v{VI}")
                if issued < 16: pload(order[issued]); issued += 1
                if pos == K1POS: assert issued == 16; a("s_mov_b64 exec, s[36:37]"); k1load(); a("s_mov_b64 exec, -1")
                if pos == 15: a(f"v_max3_u32 v15, v15, v{PIECE+4*order[pos-1]}, v{PIECE+4*ks}")
                a(f"v_smfmac_f32_16x16x64_bf16 {vr(ACC+8,4)}, {P}, {Wk0(ks)}, v{VI}")
                if pos == 1: a(f"v_max_u32 v15, v{PIECE+4*order[0]}, v{PIECE+4*ks}")
                elif pos == 15: a("v_cmp_eq_u32 vcc, -1, v15")
                elif pos % 2 == 1: a(f"v_max3_u32 v15, v15, v{PIECE+4*order[pos-1]}, v{PIECE+4*ks}")
                a(f"v_smfmac_f32_16x16x64_bf16 {vr(ACC+4,4)}, {P}, {Wq(ks,1)}, v{VI}")
                continue
            a(f"s_waitcnt vmcnt({issued-1-pos}) lgkmcnt({0 if (pos == 15 or (PROF and pos % 4 == 0)) else 2})")
            if pos == 15:
                a(f"v_smfmac_f32_16x16x64_bf16 {vr(ACC,4)}, {P}, {Wq(ks,0)}, v{VI}")
                if not NANCHK: a(f"v_max3_u32 v15, v15, v{PIECE+4*order[pos-1]}, v{PIECE+4*ks}")
                a(f"v_smfmac_f32_16x16x64_bf16 {vr(ACC+8,4)}, {P}, {Wk0(ks)}, v{VI}")
                if not NANCHK: a("v_cmp_eq_u32 vcc, -1, v15")
                a(f"v_smfmac_f32_16x16x64_bf16 {vr(ACC+4,4)}, {P}, {Wq(ks,1)}, v{VI}")
                a(f"v_smfmac_f32_16x16x64_bf16 {vr(ACC+12,4)}, {P}, {vr(STG[pos % 3],8)}, v{VI}")
                continue
            sm = {"q0": f"v_smfmac_f32_16x16x64_bf16 {vr(ACC,4)}, {P}, {Wq(ks,0)}, v{VI}", "q1": f"v_smfmac_f32_16x16x64_bf16 {vr(ACC+4,4)}, {P}, {Wq(ks,1)}, v{VI}",
                  "k0": f"v_smfmac_f32_16x16x64_bf16 {vr(ACC+8,4)}, {P}, {Wk0(ks)}, v{VI}", "k1": f"v_smfmac_f32_16x16x64_bf16 {vr(ACC+12,4)}, {P}, {vr(STG[pos % 3],8)}, v{VI}"}
            rd = k1r(order[pos+2], pos+2) if pos+2 < 16 else []
            for tok in G1ORD.split():
                if tok in sm: a(sm[tok])
                elif tok == "L":
                    if issued < 16: pload(order[issued]); issued += 1
                elif tok in ("r0", "r1"):
                    for x in rd[int(tok[1]):int(tok[1])+1]: a(x)
                elif tok == "m":
                    if NANCHK: pass
                    elif pos == 1: a(f"v_max_u32 v15, v{PIECE+4*order[0]}, v{PIECE+4*ks}")
                    elif pos % 2 == 1: a(f"v_max3_u32 v15, v15, v{PIECE+4*order[pos-1]}, v{PIECE+4*ks}")
        if q < 3: a("s_branch L_A_g1")
    a.label("L_A_g1")
    a("s_nop 0" if NANCHK else "s_cbranch_vccnz L_A_redo")
    ts(a, 1)
    KX = 48; VX = 56; VM = 64; Y = 68; X = 72; T = 72; SX = 84; SM = 96+8
    for t in range(2): a(f"ds_read_b128 {vr(KX+4*t,4)}, v{VKA} offset:{1024*t}")
    for t in range(2): a(f"ds_read_b128 {vr(VX+4*t,4)}, v{VKA} offset:{A_VX-A_KX+1024*t}")
    def cv(d, s_): a(f"v_cvt_pk_bf16_f32 v{d}, v{s_}, v{s_+1}")
    if KVR:
        Y = YK
        a("s_nop 0")
        cv(X, ACC); cv(X+1, ACC+2); cv(X+2, ACC+8); cv(X+3, ACC+10)
        cv(16, ACC+4); cv(17, ACC+6)
        a(f"v_mfma_f32_16x16x32_bf16 {vr(ACC,4)}, {vr(X,4)}, {vr(VID,4)}, 0")
        a("s_lshl_b32 s21, s26, 11")
        a(f"v_mfma_f32_16x16x32_bf16 {vr(ACC+4,4)}, v[16:19], {vr(VID,4)}, 0")
        a("s_add_u32 s20, s39, s21"); a(f"s_add_u32 s24, s20, {CH_VM}")
        a(f"s_lshl_b32 s20, s{S_STEP}, 5"); a("s_add_u32 s20, s20, s26")
        a(f"v_mov_b32 v{VM+1}, 0"); a(f"v_mov_b32 v{VM+3}, 0")
        cv(Y, ACC); cv(Y+1, ACC+2)
        a("s_mov_b64 exec, s[34:35]")
        cv(Y+2, ACC+4); cv(Y+3, ACC+6)
        a("s_mov_b64 exec, -1")
        a("s_waitcnt lgkmcnt(0)")
        a(f"v_mfma_f32_16x16x32_bf16 {vr(T,4)}, {vr(KX,4)}, {vr(Y,4)}, 0")
        a("s_waitcnt vmcnt(0)")
        a(f"v_cmp_eq_u32 vcc, -1, v{Y+2}")
        a(f"v_mfma_f32_16x16x32_bf16 {vr(T+4,4)}, {vr(KX+4,4)}, {vr(Y,4)}, 0")
        a("s_lshl_b32 s20, s20, 12"); a(f"s_add_u32 s20, s20, {KVM_OFF}")
        a("s_cbranch_vccnz L_A_k1fix")
        a.label("L_A_k1ok")
        a(f"v_mfma_f32_16x16x32_bf16 {vr(T+8,4)}, {vr(Y,4)}, {vr(Y,4)}, 0")
    else:
        if not PROF: a("s_nop 0")
        cv(X, ACC); cv(X+1, ACC+2); cv(X+2, ACC+8); cv(X+3, ACC+10)
        cv(X+4, ACC+4); cv(X+5, ACC+6)
        a(f"v_mfma_f32_16x16x32_bf16 {vr(ACC,4)}, {vr(X,4)}, {vr(VID,4)}, 0")
        cv(X+6, ACC+12); cv(X+7, ACC+14)
        a("s_lshl_b32 s21, s26, 11"); a("s_add_u32 s20, s39, s21")
        a(f"v_mfma_f32_16x16x32_bf16 {vr(ACC+4,4)}, {vr(X+4,4)}, {vr(VID,4)}, 0")
        a(f"s_add_u32 s24, s20, {CH_VM}")
        a(f"s_lshl_b32 s20, s{S_STEP}, 5"); a("s_add_u32 s20, s20, s26")
        cv(Y, ACC); cv(Y+1, ACC+2)
        a("s_lshl_b32 s20, s20, 12"); a(f"s_add_u32 s20, s20, {KVM_OFF}")
        a("s_waitcnt lgkmcnt(0)")
        cv(Y+2, ACC+4); cv(Y+3, ACC+6)
        a(f"v_mov_b32 v{VM+1}, 0")
        a(f"v_cmp_u_f32 vcc, v{ACC}, v{ACC}" if NANCHK else f"v_mov_b32 v{VM+3}, 0")
        a(f"v_mfma_f32_16x16x32_bf16 {vr(T,4)}, {vr(KX,4)}, {vr(Y,4)}, 0")
        if NANCHK: a(f"v_mov_b32 v{VM+3}, 0")
        a(f"v_mfma_f32_16x16x32_bf16 {vr(T+4,4)}, {vr(KX+4,4)}, {vr(Y,4)}, 0")
        a(f"v_mfma_f32_16x16x32_bf16 {vr(T+8,4)}, {vr(Y,4)}, {vr(Y,4)}, 0")
        if NANCHK: a("s_cbranch_vccnz L_A_redo")
    a(f"s_cmp_eq_u32 s{S_STEP}, {NSTEP-1}")
    a("s_cbranch_scc1 L_A_last")
    def vmkm():
        a(f"buffer_load_dword v{VM}, v{VVM}, {sr(S_WS,4)}, s24 offen sc1")
        a(f"buffer_load_dword v{VM+2}, v{VVM}, {sr(S_WS,4)}, s24 offen offset:1024 sc1")
    if VMLATE: a("s_nop 1")
    else: vmkm()
    a(f"s_add_u32 s29, s25, {CH_OX}")
    if not NANCHK: a("s_nop 0")
    a(f"ds_write_b128 v{VSW}, {vr(T,4)}")
    a(f"ds_write_b128 v{VSW}, {vr(T+4,4)} offset:1024")
    a(f"ds_write_b128 v{VSW}, {vr(T+8,4)} offset:2048")
    ts(a, 2)
    def kmst():
        a("s_mov_b64 exec, s[36:37]")
        a(f"buffer_store_dwordx4 {vr(Y,4)}, v{VKM}, {sr(S_WS,4)}, s20 offen sc1")
        a("s_mov_b64 exec, -1")
    if not VMLATE: kmst()
    a("s_waitcnt lgkmcnt(0)")
    a("s_barrier")
    for h in range(2):
        for pw in (2*h, 2*h+1): a(f"ds_read_b128 {vr(SX+4*pw,4)}, v{VSR} offset:{pw*3072}")
        a(f"ds_read2st64_b32 {vr(SM+2*h,2)}, v{VSM} offset0:{24*h} offset1:{24*h+12}")
    if VMLATE:
        vmkm()
        if not KMLAST: kmst()
        if KVEARLY == 1: kv_early()
    a("s_waitcnt lgkmcnt(3)")
    a(f"v_pk_add_f32 {vr(SX,2)}, {vr(SX,2)}, {vr(SX+4,2)}"); a(f"v_pk_add_f32 {vr(SX+2,2)}, {vr(SX+2,2)}, {vr(SX+6,2)}")
    a(f"v_add_f32 v{SM}, v{SM}, v{SM+1}")
    a("s_waitcnt lgkmcnt(0)")
    a(f"v_pk_add_f32 {vr(SX+8,2)}, {vr(SX+8,2)}, {vr(SX+12,2)}"); a(f"v_pk_add_f32 {vr(SX+10,2)}, {vr(SX+10,2)}, {vr(SX+14,2)}")
    a(f"v_add_f32 v{SM+2}, v{SM+2}, v{SM+3}")
    a(f"v_pk_add_f32 {vr(SX,2)}, {vr(SX,2)}, {vr(SX+8,2)}"); a(f"v_pk_add_f32 {vr(SX+2,2)}, {vr(SX+2,2)}, {vr(SX+10,2)}")
    a(f"v_add_f32 v{SM}, v{SM}, v{SM+2}")
    M = SX+4; TM = SX+5
    def fold(op, r):
        a("s_nop 1")
        a(f"{op}_dpp v{r}, v{r}, v{r} row_ror:8 row_mask:0xf bank_mask:0xf")
        for sw in ("v_permlane16_swap_b32", "v_permlane32_swap_b32"):
            a(f"v_mov_b32 v{TM}, v{r}"); a("s_nop 1"); a(f"{sw} v{r}, v{TM}"); a(f"{op} v{r}, v{r}, v{TM}")
    a(f"v_max3_f32 v{M}, v{SX}, v{SX+1}, v{SX+2}"); a(f"v_max3_f32 v{M}, v{M}, v{SX+3}, v{SM}")
    PX = SX+8; PM = SX+12; TV = SM+2
    if VMLATE: a("s_nop 1")
    else: a("s_waitcnt vmcnt(1)"); a(f"v_max_u32 v{TV}, v{VM}, v{VM+2}")
    a(f"v_max_f32_dpp v{M}, v{M}, v{M} row_ror:8 row_mask:0xf bank_mask:0xf")
    a(f"v_mov_b32 v{TM}, v{M}")
    a("s_nop 0" if VMLATE else f"v_cmp_eq_u32 vcc, -1, v{TV}")
    a(f"v_mov_b32 v{PM+1}, 0")
    a(f"v_permlane16_swap_b32 v{M}, v{TM}"); a(f"v_max_f32 v{M}, v{M}, v{TM}")
    a(f"v_mov_b32 v{TM}, v{M}"); a("s_nop 1"); a(f"v_permlane32_swap_b32 v{M}, v{TM}"); a(f"v_max_f32 v{M}, v{M}, v{TM}")
    a(f"v_mul_f32 v{M}, s38, v{M}")
    for r in (SX, SX+1, SX+2, SX+3, SM): a(f"v_fma_f32 v{r}, v{r}, s38, -v{M}")
    for r in (SM, SX, SX+1, SX+2, SX+3): a(f"v_exp_f32 v{r}, v{r}")
    a(f"v_mov_b32_dpp v{SM+1}, v{SM} row_ror:8 row_mask:0xf bank_mask:0xf")
    a(f"v_cvt_pk_bf16_f32 v{PX}, v{SX}, v{SX+1}"); a(f"v_cvt_pk_bf16_f32 v{PX+1}, v{SX+2}, v{SX+3}")
    a(f"v_add_f32 v{M}, v{SX}, v{SX+1}")
    a(f"v_mov_b32_dpp v{PX+2}, v{PX} row_ror:8 row_mask:0xf bank_mask:0xf")
    a(f"v_mov_b32_dpp v{PX+3}, v{PX+1} row_ror:8 row_mask:0xf bank_mask:0xf")
    a(f"v_cvt_pk_bf16_f32 v{PM}, v{SM}, v{SM+1}")
    a(f"v_add_f32 v{SX+2}, v{SX+2}, v{SX+3}")
    ts(a, 3)
    a(f"v_mfma_f32_16x16x32_bf16 {vr(T,4)}, {vr(VX,4)}, {vr(PX,4)}, 0")
    if VMLATE: a(f"s_waitcnt vmcnt({(0 if KMLAST else 1) + (4 if KVEARLY == 1 else 0)})"); a(f"v_max_u32 v{TV}, v{VM}, v{VM+2}"); a(f"v_cmp_eq_u32 vcc, -1, v{TV}")
    a(f"v_add_f32 v{M}, v{M}, v{SM}")
    a(f"v_mfma_f32_16x16x32_bf16 {vr(T+4,4)}, {vr(VX+4,4)}, {vr(PX,4)}, 0")
    a(f"v_add_f32 v{M}, v{M}, v{SX+2}")
    a(f"s_cbranch_vccnz L_A_vmfix")
    a.label("L_A_vmok")
    a(f"v_mfma_f32_16x16x16_bf16 {vr(T,4)}, {vr(VM,2)}, {vr(PM,2)}, {vr(T,4)}")
    a(f"v_add_f32_dpp v{M}, v{M}, v{M} row_ror:8 row_mask:0xf bank_mask:0xf")
    a(f"v_mfma_f32_16x16x16_bf16 {vr(T+4,4)}, {vr(VM+2,2)}, {vr(PM,2)}, {vr(T+4,4)}")
    a(f"v_mov_b32 v{TM}, v{M}"); a(f"s_cmp_lg_u32 s{S_MODE}, 0"); a("s_nop 0"); a(f"v_permlane16_swap_b32 v{M}, v{TM}"); a(f"v_add_f32 v{M}, v{M}, v{TM}")
    a(f"v_mov_b32 v{TM}, v{M}"); a("s_cbranch_scc1 L_A_slowpub"); a("s_nop 0")
    for slow in range(2):
        if slow: a.label("L_A_slowpub"); a("s_nop 0")
        a(f"v_permlane32_swap_b32 v{M}, v{TM}"); a(f"v_add_f32 v{M}, v{M}, v{TM}")
        a(f"v_rcp_f32 v{M}, v{M}")
        a("s_mov_b64 exec, s[34:35]")
        for i in range(0, 8, 2): a(f"v_pk_mul_f32 {vr(T+i,2)}, {vr(T+i,2)}, {vr(M,2)} op_sel_hi:[1,0]")
        for i in range(4): a(f"v_cvt_pk_bf16_f32 v{T+8+i}, v{T+2*i}, v{T+2*i+1}")
        a(f"buffer_store_dwordx4 {vr(T+8,4)}, v{VO}, {sr(S_WS,4)}, s29 offen{' sc1' if slow else ''}")
        if not slow: a("s_branch L_A_pubd")
    a.label("L_A_pubd")
    ts(a, 4); rts(a, 0)
    if KVEARLY == 2:
        a("s_mov_b64 exec, -1"); kv_early(); a("s_mov_b64 exec, s[34:35]")
    if ADELAY: a(f"s_sleep {ADELAY}")
    for i in range(4): a(f"v_mov_b32 v{T+i}, -1")
    a(f"s_add_u32 s21, s25, {3*65536}"); a(f"s_and_b32 s21, s21, {4*65536-1}"); a(f"s_add_u32 s21, s21, {CH_OX}")
    local_store(a, f"buffer_store_dwordx4 {vr(T,4)}, v{VO}, {sr(S_WS,4)}, s21 offen")
    if KMLAST: kmst()
    a("s_mov_b64 exec, -1")
    if step_done: step_done(a, "A")
    ts_store(a, 26, 60)
    a(f"s_add_u32 s{S_STEP}, s{S_STEP}, 1")
    if KVEARLY:
        Lk = a.newlabel("Ke")
        a(f"s_cmp_eq_u32 s{S_STEP}, {NSTEP-1}"); a(f"s_cbranch_scc1 {Lk}")
        a(f"s_add_u32 s{S_STEP}, s{S_STEP}, 1"); kv_wait(a); a(f"s_sub_u32 s{S_STEP}, s{S_STEP}, 1")
        a.label(Lk)
    else: kv_prefetch()
    if AS: a(f"s_sleep {AS}")
    a("s_branch L_A_step")
    a.label("L_A_vmfix")
    a(f"buffer_load_dword v{VM}, v{VVM}, {sr(S_WS,4)}, s24 offen sc1")
    a(f"buffer_load_dword v{VM+2}, v{VVM}, {sr(S_WS,4)}, s24 offen offset:1024 sc1")
    a("s_waitcnt vmcnt(0)")
    a(f"v_max_u32 v{TM}, v{VM}, v{VM+2}")
    a(f"v_cmp_eq_u32 vcc, -1, v{TM}")
    a("s_cbranch_vccz L_A_vmok")
    poll_tail(a, "L_A_vmfix", abort)
    if KVR:
        a.label("L_A_k1fix")
        a("s_mov_b64 exec, s[36:37]"); k1load(); a("s_mov_b64 exec, -1")
        if PROF: a("s_add_u32 s30, s30, 0x10000")
        a("s_waitcnt vmcnt(0)")
        a(f"v_cmp_eq_u32 vcc, -1, v{Y+2}")
        a("s_cbranch_vccz L_A_k1ok")
        poll_tail(a, "L_A_k1fix", abort)
    a.label("L_A_last")
    a("s_mov_b64 exec, s[36:37]")
    a(f"buffer_store_dwordx4 {vr(Y,4)}, v{VKM}, {sr(S_WS,4)}, s20 offen sc1")
    a("s_mov_b64 exec, -1")
    if step_done: step_done(a, "Alast")

R_PS, R_HS, R_GS, R_CS = 2368, 1184, 288, 144
VR_V = 0; VR_R = 16384; VR_X = 40960
SCP = 52
def role_VR(a, abort, step_done=None):
    L = V_LANE; W = S_WAVE
    VI, VL16, VWV, VRV, VWR, VRR, VSV, VSP, VPL2, VSM, VPL = 3, 4, 5, 6, 7, 8, 9, 10, 12, 13, 16
    PIECE = 32; ACC = 48; RD = 64; POIS = 96
    a(f"s_sub_u32 s{S_R}, s{S_R}, 8")
    a(f"s_lshl_b32 s26, s{S_X}, 3"); a(f"s_lshr_b32 s20, s{S_R}, 1"); a("s_add_u32 s26, s26, s20")
    a(f"s_lshl_b32 s27, s{W}, 15")
    a(f"v_lshrrev_b32 v2, 4, v{L}"); a(f"v_bfe_u32 v3, v{L}, 2, 2")
    a(f"v_and_b32 v5, 3, v{L}"); a("v_lshlrev_b32 v5, 3, v5"); a("v_add_u32 v5, s27, v5")
    a("v_and_b32 v6, 1, v2")
    a("v_lshrrev_b32 v7, 1, v3"); a("v_lshl_or_b32 v8, v6, 1, v7")
    a("v_lshl_add_u32 v4, v2, 3, v3"); a("v_lshl_add_u32 v9, v4, 7, v5")
    a("v_lshrrev_b32 v4, 1, v2"); a("v_lshlrev_b32 v4, 3, v4"); a("v_lshl_add_u32 v4, v6, 6, v4"); a("v_lshl_add_u32 v4, v7, 2, v4")
    a("v_and_b32 v10, 1, v3"); a("v_add_u32 v4, v4, v10"); a("v_lshl_add_u32 v10, v4, 7, v5")
    for t in range(4):
        a(f"v_xor_b32 v4, {t}, v8"); a("v_lshlrev_b32 v4, 5, v4")
        a(f"v_add_u32 v{32+t}, v9, v4"); a(f"v_add_u32 v{36+t}, v10, v4")
    WK = 160; ACK = 224
    for part in range(2):
        a(f"v_lshrrev_b32 v11, 3, v{L}"); a(f"v_and_b32 v12, 7, v{L}")
        a(f"v_bfe_u32 v4, v{L}, {4 if part == 0 else 5}, 1"); a("v_lshlrev_b32 v4, 1, v4"); a("v_xor_b32 v12, v12, v4")
        a(f"v_lshlrev_b32 v11, {13 if part == 0 else 11}, v11"); a("v_lshlrev_b32 v12, 4, v12")
        a(f"v_add_u32 v{40+2*part}, v11, v12"); a("v_xor_b32 v12, 64, v12"); a(f"v_add_u32 v{41+2*part}, v11, v12")
    a(f"v_lshrrev_b32 v11, 2, v{L}"); a("v_lshlrev_b32 v11, 13, v11"); a(f"v_lshrrev_b32 v12, 5, v{L}"); a("v_lshlrev_b32 v12, 1, v12")
    a(f"v_and_b32 v4, 3, v{L}"); a("v_xor_b32 v12, v12, v4"); a("v_lshl_add_u32 v44, v12, 4, v11")
    a("v_lshl_add_u32 v4, v2, 3, v3"); a("v_lshl_add_u32 v4, v4, 6, v5"); a("v_lshl_add_u32 v45, v6, 5, v4"); a("v_xor_b32 v46, 32, v45")
    chunks = [("V", 0), ("V", 1)] + ([("K", 0)] if KVR else []) + [("R", 0), ("R", 1)]
    def cissue(n):
        kind, h = chunks[n]; b = (n & 1)*16384
        load_srd(a, S_WT, dict(V=48, K=46, R=50)[kind], 0, DM*4096*2)
        if kind == "R":
            a(f"s_lshl_b32 s22, s{S_X}, 21"); a(f"s_lshl_b32 s20, s{W}, 19"); a("s_add_u32 s22, s22, s20")
            a(f"s_lshl_b32 s20, s{S_R}, 7"); a("s_add_u32 s22, s22, s20"); a(f"s_add_u32 s22, s22, {h*128*2048}")
        else:
            a("s_lshl_b32 s22, s26, 8"); a(f"s_and_b32 s20, s{S_R}, 1"); a(f"s_lshl_b32 s20, s20, {7 if kind == 'V' else 6}"); a("s_add_u32 s22, s22, s20")
            a(f"s_lshl_b32 s20, s{W}, 21"); a("s_add_u32 s22, s22, s20"); a(f"s_add_u32 s22, s22, {h*128*8192 if kind == 'V' else 128}")
        for j in range(16):
            v = {"V": 40+(j & 1), "R": 42+((j >> 3) & 1), "K": 44}[kind]
            a(f"s_add_u32 m0, s27, {b+1024*j}"); a("s_nop 0")
            a(f"buffer_load_dwordx4 v{v}, {sr(S_WT,4)}, s22 offen {'nt ' if (NT & 2 and kind == 'R') else ''}lds")
            a(f"s_add_u32 s22, s22, {dict(V=8*8192, R=8*2048, K=16*8192)[kind]}")
            if n == 0 and j == 5 and INIT_ARRIVE:
                a(f"s_waitcnt vmcnt({6+NYOUNG})"); a("s_barrier"); INIT_ARRIVE(a)
    cissue(0); cissue(1)
    for n, (kind, h) in enumerate(chunks):
        b = (n & 1)*16384
        a(f"s_waitcnt vmcnt({16 if n+1 < len(chunks) else 0})")
        if kind == "K":
            for kk in range(4):
                for t in range(2):
                    for q in range(4): a(f"ds_read_b64_tr_b16 {vr(WK+(kk*2+t)*8+2*q,2)}, v{45+t} offset:{b+(64*kk+32*(q >> 1)+4*(q & 1))*64}")
                a("s_waitcnt lgkmcnt(0)")
        else:
            for k2 in range(2):
                for t in range(4):
                    for q in range(4):
                        off = (64*k2 + 32*(q >> 1) + 4*(q & 1))*128 if kind == "V" else (32*k2 + 16*(q >> 1) + 2*(q & 1))*128
                        a(f"ds_read_b64_tr_b16 {ar((128 if kind == 'R' else 0)+((2*h+k2)*4+t)*8+2*q,2)}, v{(36 if kind == 'R' else 32)+t} offset:{b+off}")
                a("s_waitcnt lgkmcnt(0)")
        if n+2 < len(chunks): cissue(n+2)
    a("s_barrier")
    idx_reg(a, VI)
    a(f"v_lshlrev_b32 v{VL16}, 4, v{L}")
    a(f"s_lshl_b32 s20, s{W}, 12")
    a(f"v_add_u32 v{VWV}, s20, v{VL16}")
    a(f"v_add_u32 v2, s20, v{VL16}")
    a(f"s_and_b32 s21, s{W}, 1"); a("s_lshl_b32 s22, s21, 10")
    a(f"v_lshrrev_b32 v14, 5, v{L}")
    a(f"v_add_u32 v{VRV}, s22, v{VL16}")
    a(f"v_and_b32 v15, 15, v{L}"); a("v_lshl_add_u32 v15, v14, 4, v15"); a("v_lshlrev_b32 v15, 4, v15")
    a(f"v_bfe_u32 v14, v{L}, 4, 1"); a(f"v_lshl_add_u32 v{VSV}, v14, 3, v15")
    a("s_lshl_b32 s22, s21, 9"); a(f"s_and_b32 s23, s{S_R}, 1"); a("s_lshl_b32 s23, s23, 10"); a("s_add_u32 s22, s22, s23")
    a(f"v_add_u32 v{VSV}, s22, v{VSV}")
    a(f"s_mul_i32 s22, s{W}, {R_PS}"); a(f"s_add_u32 s22, s22, {VR_R}")
    a(f"v_lshrrev_b32 v14, 5, v{L}"); a(f"v_mul_u32_u24 v{VWR}, {R_GS}, v14")
    a(f"v_bfe_u32 v14, v{L}, 3, 1"); a(f"v_mul_u32_u24 v14, {R_HS}, v14"); a(f"v_add_u32 v{VWR}, v{VWR}, v14")
    a(f"v_bfe_u32 v14, v{L}, 1, 1"); a(f"v_mul_u32_u24 v14, {R_CS}, v14"); a(f"v_add_u32 v{VWR}, v{VWR}, v14")
    a(f"v_bfe_u32 v14, v{L}, 4, 1"); a(f"v_lshl_add_u32 v{VWR}, v14, 6, v{VWR}")
    a(f"v_bfe_u32 v14, v{L}, 2, 1"); a(f"v_lshl_add_u32 v{VWR}, v14, 3, v{VWR}")
    a(f"v_and_b32 v14, 1, v{L}"); a(f"v_lshl_add_u32 v{VWR}, v14, 2, v{VWR}")
    a(f"v_add_u32 v{VWR}, s22, v{VWR}")
    a(f"s_mul_i32 s22, s21, {R_HS}"); a(f"s_add_u32 s22, s22, {VR_R}")
    a(f"v_lshrrev_b32 v14, 4, v{L}"); a(f"v_mul_u32_u24 v{VRR}, {R_GS}, v14")
    a(f"v_bfe_u32 v14, v{L}, 3, 1"); a(f"v_mul_u32_u24 v14, {R_CS}, v14"); a(f"v_add_u32 v{VRR}, v{VRR}, v14")
    a(f"v_and_b32 v14, 7, v{L}"); a(f"v_lshl_add_u32 v{VRR}, v14, 4, v{VRR}")
    a(f"v_add_u32 v{VPL2}, {VR_R}, v{VRR}")
    a(f"v_add_u32 v{VRR}, s22, v{VRR}")
    a(f"s_lshl_b32 s22, s{S_R}, 14")
    for k in range(3):
        a(f"s_add_u32 s23, s{S_X}, {k+1}"); a("s_and_b32 s23, s23, 3"); a("s_lshl_b32 s23, s23, 11"); a("s_add_u32 s23, s23, s22")
        a(f"v_add_u32 v{VPL+k}, s23, v{VL16}")
    a("s_lshl_b32 s23, s21, 10"); a("s_add_u32 s22, s22, s23")
    a(f"s_lshl_b32 s23, s{S_X}, 11"); a("s_add_u32 s22, s22, s23"); a(f"v_add_u32 v{VSP}, s22, v{VL16}")
    a(f"s_lshl_b32 s22, s{S_R}, 10"); a(f"v_add_u32 v{VSM}, s22, v{VL16}")
    VWK, VRK, VSK = 19, 20, 21
    a(f"s_mul_i32 s22, s{W}, 1152"); a(f"s_add_u32 s22, s22, {VR_X}")
    a(f"v_bfe_u32 v14, v{L}, 4, 1"); a(f"v_mul_u32_u24 v{VWK}, 576, v14"); a(f"v_and_b32 v14, 15, v{L}"); a(f"v_lshl_add_u32 v{VWK}, v14, 2, v{VWK}")
    a(f"v_lshrrev_b32 v14, 5, v{L}"); a(f"v_lshl_add_u32 v{VWK}, v14, 6, v{VWK}"); a(f"v_add_u32 v{VWK}, s22, v{VWK}")
    a(f"v_and_b32 v14, 7, v{L}"); a(f"v_mul_u32_u24 v{VRK}, 144, v14"); a(f"v_lshrrev_b32 v14, 3, v{L}"); a(f"v_lshl_add_u32 v{VRK}, v14, 4, v{VRK}")
    a(f"v_add_u32 v{VRK}, {VR_X}, v{VRK}")
    a(f"s_and_b32 s22, s{S_R}, 1"); a("s_lshl_b32 s22, s22, 9"); a("s_lshl_b32 s23, s26, 10"); a("s_add_u32 s22, s22, s23")
    a(f"v_lshlrev_b32 v{VSK}, 3, v{L}"); a(f"v_add_u32 v{VSK}, s22, v{VSK}")
    for i in range(4): a(f"v_mov_b32 v{POIS+i}, -1")
    a(f"v_and_b32 v23, 7, v{L}"); a("v_lshlrev_b32 v23, 9, v23"); a(f"s_lshl_b32 s22, s{W}, 12"); a("v_add_u32 v23, s22, v23")
    if PROF: a("s_memrealtime s[6:7]")
    if INIT_WAIT: INIT_WAIT(a)
    Lc, Lp = a.newlabel("Cal"), a.newlabel("Cal")
    a(f"s_or_b32 s22, s{S_X}, s{S_R}"); a(f"s_or_b32 s22, s22, s{W}"); a("s_cmp_lg_u32 s22, 0"); a(f"s_cbranch_scc1 {Lc}")
    a("s_mov_b32 s34, 0x100")
    for pg in range(1):
        for c in range(2):
            for k in range(4):
                a(f"s_mov_b32 s23, {CH_PART + pg*2*MB + c*8192 + k*16384 + 1024*k}")
                a("s_memtime s[36:37]")
                a("s_waitcnt lgkmcnt(0)")
                a(f"buffer_load_dword v14, off, {sr(S_WS,4)}, s23 sc1")
                a("s_waitcnt vmcnt(0)")
                a("s_memtime s[38:39]")
                a("s_waitcnt lgkmcnt(0)")
                a("s_sub_u32 s36, s38, s36")
                if k == 0: a(f"s_mov_b32 s{20+c}, s36")
                else: a(f"s_min_u32 s{20+c}, s{20+c}, s36")
        a("s_cmp_lt_u32 s21, s20"); a(f"s_cselect_b32 s36, {1 << pg}, 0"); a("s_or_b32 s34, s34, s36")
    a("v_mov_b32 v14, s34"); a(f"s_mov_b32 s23, {FL_NEAR}")
    a(f"buffer_store_dword v14, off, {sr(S_WS,4)}, s23 sc1")
    a.label(Lc)
    a("s_mov_b32 s30, 0"); a(f"s_mov_b32 s23, {FL_NEAR}")
    a.label(Lp)
    a(f"buffer_load_dword v14, off, {sr(S_WS,4)}, s23 sc1")
    a("s_waitcnt vmcnt(0)")
    a("v_readfirstlane_b32 s34, v14")
    a("s_nop 3")
    a("s_cmp_lg_u32 s34, 0")
    Lq = a.newlabel("Cal")
    a(f"s_cbranch_scc1 {Lq}")
    a("s_sleep 8")
    poll_tail(a, Lp, abort)
    a.label(Lq)
    for c in range(NC()):
        a(f"s_bfe_u32 s22, s34, {(c//2) | (1 << 16):#x}"); a("s_lshl_b32 s22, s22, 13"); a(f"s_add_u32 s{SCP+c}, s22, {CH_PART + c*MB}")
    a(f"s_lshl_b32 s28, s{S_X}, 4"); a(f"s_add_u32 s28, s28, s{S_R}"); a("s_add_u32 s28, s28, 32")
    a(f"s_mov_b32 s{S_STEP}, 0")
    if PROF: a("s_memrealtime s[94:95]")

    def gemv(sbase, wbase, tag, last=None):
        Lp = a.newlabel("VRp")
        def pl(i): a(f"buffer_load_dwordx4 {vr(PIECE+4*i,4)}, v2, {sr(S_WS,4)}, s{sbase} offen offset:{i*1024} sc1")
        def pc(i):
            a(f"v_cmp_eq_u32 vcc, -1, v{PIECE+4*i}")
        for i in range(16): a(f"v_mov_b32 v{ACC+i}, 0")
        if (tag == "R" and RSETS == 0) or (tag == "V" and VLIGHT):
            Lg, Lr = a.newlabel("VRl"), a.newlabel("VRl")
            def sl(k): a(f"buffer_load_dword v{24+k}, v23, {sr(S_WS,4)}, s{sbase} offen sc1")
            for k in range(3):
                sl(k)
                if k < 2: a("s_sleep 1")
            a.label(Lp)
            for k in range(3):
                a("s_waitcnt vmcnt(2)")
                a(f"v_cmp_eq_u32 vcc, -1, v{24+k}")
                a(f"s_cbranch_vccz {Lg}")
                sl(k)
            poll_tail(a, Lp, abort)
            a.label(Lr)
            a("s_nop 7")
            for i in range(16): a(f"v_mov_b32 v{ACC+i}, 0")
            a("s_add_u32 s30, s30, 1"); a(f"s_cmp_ge_u32 s30, {POLL_MAX*(8 if PROF else 1)}"); a(f"s_cbranch_scc1 {abort}")
            a.label(Lg)
            for i in range(4): pl(i)
            for kk in range(4):
                a(f"s_waitcnt vmcnt({3-kk})")
                for t in range(4):
                    a(f"v_smfmac_f32_16x16x64_bf16 {vr(ACC+4*t,4)}, {vr(PIECE+4*kk,4)}, {ar(wbase+(kk*4+t)*8,8)}, v{VI}")
                    if kk == 3 and t == 0: a(f"v_max3_u32 v15, v{PIECE}, v{PIECE+4}, v{PIECE+8}")
                    if kk == 3 and t == 1: a(f"v_max_u32 v15, v15, v{PIECE+12}")
                    if kk == 3 and t == 2: a("v_cmp_eq_u32 vcc, -1, v15")
            a(f"s_cbranch_vccnz {Lr}")
            return
        PB = [PIECE, 148]
        def pp(h, st):
            for i in (2*h, 2*h+1): a(f"buffer_load_dwordx4 {vr(PB[st]+4*i,4)}, v2, {sr(S_WS,4)}, s{sbase} offen offset:{i*1024} sc1")
        def mm(h, st):
            for kk in (2*h, 2*h+1):
                if tag == "V" and KVR:
                    for t in range(2): a(f"v_smfmac_f32_16x16x64_bf16 {vr(ACK+4*t,4)}, {vr(PB[st]+4*kk,4)}, {vr(WK+(kk*2+t)*8,8)}, v{VI}")
                    continue
                for t in range(4):
                    a(f"v_smfmac_f32_16x16x64_bf16 {vr(ACC+4*t,4)}, {vr(PB[st]+4*kk,4)}, {ar(wbase+(kk*4+t)*8,8)}, v{VI}")
        def ck(h, st):
            a(f"v_max_u32 v15, v{PB[st]+8*h}, v{PB[st]+8*h+4}"); a("v_cmp_eq_u32 vcc, -1, v15")
        nset = 2 if (tag == "R" and RSETS == 2) else 1
        slots = [(h, st) for st in range(nset) for h in range(2)]
        Lf = {x: a.newlabel("VRf") for x in slots}; Le = a.newlabel("VRe")
        for n, (h, st) in enumerate(slots):
            pp(h, st)
            if n < len(slots)-1: a(f"s_sleep {2 if nset == 1 else 1}")
        a.label(Lp)
        for h, st in slots:
            a(f"s_waitcnt vmcnt({2*len(slots)-2})")
            ck(h, st)
            a(f"s_cbranch_vccz {Lf[(h, st)]}")
            pp(h, st)
        poll_tail(a, Lp, abort)
        for n, (h, st) in enumerate(slots):
            o = 1-h
            a.label(Lf[(h, st)])
            mm(h, st)
            rest = [slots[(n+k) % len(slots)] for k in range(1, len(slots))]
            mine = [(k, x) for k, x in enumerate(rest) if x[0] == o]
            Lg = {x[1]: a.newlabel("VRg") for _, x in mine}
            for k, x in mine:
                a(f"s_waitcnt vmcnt({2*(len(rest)-1-k) + 2*sum(1 for k2, _ in mine if k2 < k)})")
                ck(*x)
                a(f"s_cbranch_vccz {Lg[x[1]]}")
                pp(*x)
            Lq = a.newlabel("VRq")
            a.label(Lq)
            for k, x in mine:
                a(f"s_waitcnt vmcnt({2*len(mine)-2})")
                ck(*x)
                a(f"s_cbranch_vccz {Lg[x[1]]}")
                pp(*x)
            poll_tail(a, Lq, abort)
            for k, x in mine:
                a.label(Lg[x[1]])
                if last: last([(PB[x[1]]+4*kk, [wbase+(kk*4+t)*8 for t in range(4)], kk) for kk in (2*x[0], 2*x[0]+1)])
                else: mm(*x)
                if n < len(slots)-1: a(f"s_branch {Le}")
        a.label(Le)
    def sum8():
        for i in range(1, 8):
            a(f"s_waitcnt lgkmcnt({7-i})")
            a(f"v_pk_add_f32 {vr(RD,2)}, {vr(RD,2)}, {vr(RD+4*i,2)}"); a(f"v_pk_add_f32 {vr(RD+2,2)}, {vr(RD+2,2)}, {vr(RD+4*i+2,2)}")

    a.label("L_VR_step")
    a("s_mov_b32 s30, 0")
    a(f"s_and_b32 s35, s{S_STEP}, 3"); a("s_lshl_b32 s39, s35, 16")
    a(f"s_lshl_b32 s21, s{S_X}, 14"); a("s_add_u32 s25, s39, s21")
    a(f"s_add_u32 s20, s25, {CH_MEM}")
    a("s_lshl_b32 s21, s26, 11"); a("s_add_u32 s24, s39, s21"); a(f"s_add_u32 s24, s24, {CH_VM}")
    a(f"s_lshl_b32 s21, s{S_STEP}, 5"); a("s_add_u32 s21, s21, s26"); a("s_lshl_b32 s21, s21, 12"); a(f"s_add_u32 s21, s21, {KVM_OFF+2048}")
    a("s_lshl_b32 s29, s35, 15"); a(f"s_add_u32 s29, s29, {CH_K1}")
    if KVR:
        for i in range(8): a(f"v_mov_b32 v{ACK+i}, 0")
    def sv(t, kk): a(f"v_smfmac_f32_16x16x64_bf16 {vr(ACC+4*t,4)}, {vr(PIECE+4*kk,4)}, {ar((kk*4+t)*8,8)}, v{VI}")
    def vlast(pcs):
        for t in range(2):
            for i in range(2): a(f"v_smfmac_f32_16x16x64_bf16 {vr(ACK+4*t,4)}, {vr(pcs[i][0],4)}, {vr(WK+(pcs[i][2]*2+t)*8,8)}, v{VI}")
        sv(0, 0); a("s_nop 1"); sv(0, 1); a("s_nop 1"); sv(0, 2); a("s_nop 0")
        for r in range(4):
            a(f"v_permlane32_swap_b32 v{ACK+r}, v{ACK+4+r}")
            if r == 1: sv(0, 3)
        for r in (0, 2): a(f"v_pk_add_f32 {vr(ACK+r,2)}, {vr(ACK+r,2)}, {vr(ACK+4+r,2)}")
        sv(1, 0)
        for r in (0, 2): a(f"ds_write2_b32 v{VWK}, v{ACK+r}, v{ACK+r+1} offset0:{36*r} offset1:{36*r+36}")
        sv(1, 1); sv(1, 2)
    gemv(20, 0, "V", vlast if KVR else None)
    ts(a, 0)
    a("s_mov_b32 s20, s24")
    def vfold(p, inter=()):
        inter = list(inter)
        for r in range(4):
            a(f"v_permlane32_swap_b32 v{ACC+8*p+r}, v{ACC+8*p+4+r}")
            if r & 1 and inter: sv(*inter.pop(0))
        for r in (0, 2): a(f"v_pk_add_f32 {vr(ACC+8*p+r,2)}, {vr(ACC+8*p+r,2)}, {vr(ACC+8*p+4+r,2)}")
        a(f"ds_write_b128 v{VWV}, {vr(ACC+8*p,4)} offset:{1024*p}")
    if KVR:
        Lnk, Lj = a.newlabel("Vk"), a.newlabel("Vk")
        a(f"s_cmp_lg_u32 s{W}, 3")
        a("s_waitcnt lgkmcnt(0)")
        a("s_barrier")
        a(f"s_cbranch_scc1 {Lnk}")
        for i in range(4): a(f"ds_read_b128 {vr(RD+4*i,4)}, v{VRK} offset:{1152*i}")
        sv(1, 3); sv(2, 0); sv(2, 1); sv(2, 2)
        a("s_waitcnt lgkmcnt(0)")
        for k in (0, 2):
            a(f"v_pk_add_f32 {vr(RD+k,2)}, {vr(RD+k,2)}, {vr(RD+4+k,2)}"); a(f"v_pk_add_f32 {vr(RD+8+k,2)}, {vr(RD+8+k,2)}, {vr(RD+12+k,2)}")
        for k in (0, 2): a(f"v_pk_add_f32 {vr(RD+k,2)}, {vr(RD+k,2)}, {vr(RD+8+k,2)}")
        a(f"v_cvt_pk_bf16_f32 v{RD}, v{RD}, v{RD+1}"); a(f"v_cvt_pk_bf16_f32 v{RD+1}, v{RD+2}, v{RD+3}")
        local_store(a, f"buffer_store_dwordx2 {vr(RD,2)}, v{VSK}, {sr(S_WS,4)}, s29 offen")
        a(f"s_branch {Lj}")
        a.label(Lnk)
        sv(1, 3); sv(2, 0); sv(2, 1); sv(2, 2)
        a.label(Lj)
        sv(2, 3); a("s_nop 1"); sv(3, 0); a("s_nop 0")
        vfold(0, [(3, 1), (3, 2)])
        sv(3, 3)
        a("s_nop 7")
        vfold(1)
    else:
        a("s_nop 4")
        vfold(0); vfold(1)
    a("s_waitcnt lgkmcnt(0)")
    a("s_barrier")
    for i in range(4): a(f"ds_read_b128 {vr(RD+4*i,4)}, v{VRV} offset:{i*4096}")
    a("s_waitcnt lgkmcnt(2)")
    for k in (0, 2): a(f"v_pk_add_f32 {vr(RD+k,2)}, {vr(RD+k,2)}, {vr(RD+4+k,2)}")
    a("s_waitcnt lgkmcnt(0)")
    for k in (0, 2): a(f"v_pk_add_f32 {vr(RD+8+k,2)}, {vr(RD+8+k,2)}, {vr(RD+12+k,2)}")
    for k in (0, 2): a(f"v_pk_add_f32 {vr(RD+k,2)}, {vr(RD+k,2)}, {vr(RD+8+k,2)}")
    a(f"v_cvt_pk_bf16_f32 v{RD}, v{RD}, v{RD+1}"); a(f"v_cvt_pk_bf16_f32 v{RD+1}, v{RD+2}, v{RD+3}")
    Lk, Le = a.newlabel("VRk"), a.newlabel("VRe")
    a(f"s_cmp_ge_u32 s{W}, 2"); a(f"s_cbranch_scc1 {Lk}")
    local_store(a, f"buffer_store_dwordx2 {vr(RD,2)}, v{VSV}, {sr(S_WS,4)}, s20 offen")
    a(f"s_branch {Le}")
    a.label(Lk)
    a(f"buffer_store_dwordx2 {vr(RD,2)}, v{VSV}, {sr(S_WS,4)}, s21 offen sc1")
    a.label(Le)
    ts(a, 1)
    a(f"s_cmp_eq_u32 s{S_STEP}, {NSTEP-1}")
    a("s_cbranch_scc1 L_VR_last")
    if VDELAY: a(f"s_sleep {VDELAY}")
    if not LATEP:
        a(f"s_add_u32 s22, s35, 2"); a("s_and_b32 s22, s22, 3"); a("s_lshl_b32 s22, s22, 18")
        Lq, Lq2 = a.newlabel("VRq"), a.newlabel("VRq")
        a(f"s_cmp_lt_u32 s{S_STEP}, 2"); a(f"s_cbranch_scc1 {Lq}")
        a(f"s_cmp_ge_u32 s{W}, 2"); a(f"s_cbranch_scc1 {Lq2}")
        for c in range(NC()):
            if c == (NC()+1)//2:
                a(f"s_branch {Lq}"); a.label(Lq2)
            a(f"s_add_u32 s23, s22, s{SCP+c}")
            a(f"buffer_store_dwordx4 {vr(POIS,4)}, v{VSP}, {sr(S_WS,4)}, s23 offen sc1")
        if NC() == 1: a.label(Lq2)
        a.label(Lq)
    Lq = a.newlabel("VRq")
    a(f"s_cmp_eq_u32 s{S_STEP}, 0"); a(f"s_cbranch_scc1 {Lq}")
    Lq3 = a.newlabel("VRq")
    a(f"s_cmp_lg_u32 s{W}, 3"); a(f"s_cbranch_scc1 {Lq3}")
    if KVR:
        a("s_add_u32 s22, s35, 3"); a("s_and_b32 s22, s22, 3"); a("s_lshl_b32 s22, s22, 15"); a(f"s_add_u32 s22, s22, {CH_K1}")
        local_store(a, f"buffer_store_dwordx2 {vr(POIS,2)}, v{VSK}, {sr(S_WS,4)}, s22 offen")
    a(f"s_branch {Lq}")
    a.label(Lq3)
    Lq2 = a.newlabel("VRq")
    a(f"s_cmp_eq_u32 s{W}, 2"); a(f"s_cbranch_scc1 {Lq2}")
    a(f"s_sub_u32 s22, s20, {CH_VM}"); a(f"s_add_u32 s22, s22, {3*65536}"); a(f"s_and_b32 s22, s22, {4*65536-1}"); a(f"s_add_u32 s22, s22, {CH_VM}")
    local_store(a, f"buffer_store_dwordx2 {vr(POIS,2)}, v{VSV}, {sr(S_WS,4)}, s22 offen")
    a(f"s_branch {Lq}")
    a.label(Lq2)
    a(f"s_add_u32 s22, s25, {3*65536}"); a(f"s_and_b32 s22, s22, {4*65536-1}"); a(f"s_add_u32 s22, s22, {CH_MEM}")
    local_store(a, f"buffer_store_dwordx4 {vr(POIS,4)}, v{VSM}, {sr(S_WS,4)}, s22 offen")
    a.label(Lq)
    if RS: a(f"s_sleep {RS}")
    a(f"s_add_u32 s20, s25, {CH_OX}")
    a(f"s_lshl_b32 s21, s35, 18")
    for c in range(NC()): a(f"s_add_u32 s{84+c}, s21, s{SCP+c}")
    a(f"s_add_u32 s22, s25, {65536}"); a(f"s_and_b32 s22, s22, {4*65536-1}"); a(f"s_add_u32 s22, s22, {CH_MEM}")
    def rlast(pcs):
        def sm(t, i): a(f"v_smfmac_f32_16x16x64_bf16 {vr(ACC+4*t,4)}, {vr(pcs[i][0],4)}, {ar(pcs[i][1][t],8)}, v{VI}")
        def fold(p, inter=None):
            for r in range(4):
                a(f"v_permlane32_swap_b32 v{ACC+8*p+r}, v{ACC+8*p+4+r}")
                if inter and r == 1: inter()
            for r in range(0, 4, 2): a(f"v_pk_add_f32 {vr(ACC+8*p+r,2)}, {vr(ACC+8*p+r,2)}, {vr(ACC+8*p+4+r,2)}")
            for r in range(0, 4, 2): a(f"ds_write2_b32 v{VWR}, v{ACC+8*p+r}, v{ACC+8*p+r+1} offset0:{(2*p*R_GS)//4+4*r} offset1:{(2*p*R_GS)//4+4*r+4}")
        sm(0, 0); sm(0, 1); sm(1, 0); sm(1, 1)
        sm(2, 0); a("s_nop 1"); sm(2, 1); a("s_nop 1"); sm(3, 0); a("s_nop 0")
        fold(0, lambda: sm(3, 1))
        a("s_nop 1")
        fold(1)
    gemv(20, 128, "R", rlast)
    ts(a, 2)
    Lx = a.newlabel("Xe"); Lpo = a.newlabel("Xpo")
    a(f"s_cmp_ge_u32 s{W}, 2")
    a("s_waitcnt lgkmcnt(0)")
    a("s_barrier")
    a(f"s_cbranch_scc1 {Lpo}")
    for i in range(4): a(f"ds_read_b128 {vr(RD+4*i,4)}, v{VRR} offset:{i*R_PS}")
    a("s_waitcnt lgkmcnt(2)")
    a(f"v_pk_add_f32 {vr(RD,2)}, {vr(RD,2)}, {vr(RD+4,2)}"); a(f"v_pk_add_f32 {vr(RD+2,2)}, {vr(RD+2,2)}, {vr(RD+6,2)}")
    a("s_waitcnt lgkmcnt(0)")
    a(f"v_pk_add_f32 {vr(RD+8,2)}, {vr(RD+8,2)}, {vr(RD+12,2)}"); a(f"v_pk_add_f32 {vr(RD+10,2)}, {vr(RD+10,2)}, {vr(RD+14,2)}")
    a(f"v_pk_add_f32 {vr(RD,2)}, {vr(RD,2)}, {vr(RD+8,2)}"); a(f"v_pk_add_f32 {vr(RD+2,2)}, {vr(RD+2,2)}, {vr(RD+10,2)}")
    for c in range(NC()):
        a(f"buffer_store_dwordx4 {vr(RD,4)}, v{VSP}, {sr(S_WS,4)}, s{84+c} offen sc1")
        if c == 0: ts(a, 3); rts(a, 0)
    if LATEP:
        Lq = a.newlabel("VRq")
        a(f"s_cmp_lt_u32 s{S_STEP}, 2"); a(f"s_cbranch_scc1 {Lq}")
        a(f"s_add_u32 s22, s35, 2"); a("s_and_b32 s22, s22, 3"); a("s_lshl_b32 s22, s22, 18")
        if PDELAY: a(f"s_sleep {PDELAY}")
        for c in range(NC()):
            a(f"s_add_u32 s23, s22, s{SCP+c}")
            a(f"buffer_store_dwordx4 {vr(POIS,4)}, v{VSP}, {sr(S_WS,4)}, s23 offen sc1")
        a.label(Lq)
    if VS: a(f"s_sleep {VS}")
    a(f"s_branch {Lx}")
    a.label(Lpo)
    L3 = a.newlabel("X3")
    a(f"s_cmp_lg_u32 s{W}, 3"); a(f"s_cbranch_scc1 {L3}")
    if step_done: step_done(a, "V3")
    if VS: a(f"s_sleep {VS+3}")
    a(f"s_branch {Lx}")
    a.label(L3)
    XS = lambda c: 100 + 24*c
    def xl(c):
        for k in (1, 0, 2):
            for h in range(2): a(f"buffer_load_dwordx4 {vr(XS(c)+8*k+4*h,4)}, v{VPL+k}, {sr(S_WS,4)}, s{84+c} offen offset:{h*1024} sc1")
    for h in range(2):
        for i in range(4): a(f"ds_read_b128 {vr(RD+16*h+4*i,4)}, v{VPL2} offset:{i*R_PS+h*R_HS}")
    for h in range(2):
        b = RD+16*h
        a(f"s_waitcnt lgkmcnt({4-4*h})")
        for k in (0, 2): a(f"v_pk_add_f32 {vr(b+k,2)}, {vr(b+k,2)}, {vr(b+4+k,2)}")
        for k in (0, 2): a(f"v_pk_add_f32 {vr(b+8+k,2)}, {vr(b+8+k,2)}, {vr(b+12+k,2)}")
        for k in (0, 2): a(f"v_pk_add_f32 {vr(RD+4*h+k,2)}, {vr(b+k,2)}, {vr(b+8+k,2)}")
    ts(a, 3); rts(a, 0)
    if XSLEEP: a(f"s_sleep {XSLEEP}")
    assert NC() == 1
    Lp, Lg, Ls = a.newlabel("Xp"), a.newlabel("Xg"), a.newlabel("Xs")
    b = XS(0); U = RD+16
    a.label(Lp)
    xl(0)
    a("s_waitcnt vmcnt(4)")
    for k in range(0, 8, 2): a(f"v_pk_add_f32 {vr(U+k,2)}, {vr(RD+k,2)}, {vr(b+8+k,2)}")
    a("s_waitcnt vmcnt(2)")
    a(f"v_max3_u32 v15, v{b}, v{b+4}, v{b+8}"); a(f"v_max_u32 v15, v15, v{b+12}")
    a(f"s_cmp_lg_u32 s{S_MODE}, 0")
    a("s_waitcnt vmcnt(0)")
    a(f"v_max3_u32 v15, v15, v{b+16}, v{b+20}")
    a("v_cmp_eq_u32 vcc, -1, v15")
    for k in range(0, 8, 2): a(f"v_pk_add_f32 {vr(RD+8+k,2)}, {vr(b+k,2)}, {vr(b+16+k,2)}")
    for k in range(0, 8, 2): a(f"v_pk_add_f32 {vr(U+k,2)}, {vr(U+k,2)}, {vr(RD+8+k,2)}")
    for k in range(4): a(f"v_cvt_pk_bf16_f32 v{U+k}, v{U+2*k}, v{U+2*k+1}")
    a(f"s_cbranch_vccz {Lg}")
    if PROF: a("s_or_b32 s30, s30, 0x10000")
    poll_tail(a, Lp, abort)
    a.label(Lg)
    a(f"s_cbranch_scc1 {Ls}")
    a(f"buffer_store_dwordx4 {vr(U,4)}, v{VSM}, {sr(S_WS,4)}, s22 offen")
    a(f"s_branch {Lx}")
    a.label(Ls)
    a(f"buffer_store_dwordx4 {vr(U,4)}, v{VSM}, {sr(S_WS,4)}, s22 offen sc1")
    a.label(Lx)
    ts(a, 4); rts(a, 1)
    ts_store(a, 28, 60)
    a(f"s_add_u32 s{S_STEP}, s{S_STEP}, 1")
    a("s_branch L_VR_step")
    a.label("L_VR_last")
    if step_done: step_done(a, "Vlast")

NCH = 24
def assign_roles(a, abort, lds_scratch):
    a("s_getreg_b32 s31, hwreg(HW_REG_XCC_ID)"); a("s_and_b32 s31, s31, 7")
    Lw, Lp, Lg, Lt, Lt2 = [a.newlabel("R") for _ in range(5)]
    L0 = a.newlabel("R")
    a(f"s_cmp_eq_u32 s{S_WAVE}, 0"); a(f"s_cbranch_scc1 {L0}")
    if IDLE: IDLE(a)
    a(f"s_branch {Lw}")
    a.label(L0)
    load_srd(a, 20, 64, 0, 256)
    a("s_mov_b32 s30, 0")
    a("s_cmp_lg_u32 s2, 0"); a(f"s_cbranch_scc1 {Lt}")
    a("s_memrealtime s[24:25]"); a("s_waitcnt lgkmcnt(0)")
    a("s_lshl_b32 s24, s24, 3"); a("s_bitset1_b32 s24, 31")
    a("v_mov_b32 v2, s24")
    a("buffer_store_dword v2, off, s[20:23], 0 sc1")
    a(f"s_branch {Lt2}")
    a.label(Lt)
    a("buffer_load_dword v60, off, s[20:23], 0 sc1")
    a("s_waitcnt vmcnt(0)")
    a("v_readfirstlane_b32 s24, v60")
    a("s_memrealtime s[26:27]"); a("s_waitcnt lgkmcnt(0)")
    a("s_add_u32 s26, s26, 64"); a("s_lshl_b32 s26, s26, 3"); a("s_sub_u32 s26, s26, s24"); a("s_bitset0_b32 s26, 31")
    a("s_cmp_eq_u32 s24, 0"); a("s_cselect_b32 s26, -1, s26")
    a(f"s_cmp_lt_u32 s26, {15000*8}"); a(f"s_cbranch_scc1 {Lt2}")
    a("s_sleep 2")
    poll_tail(a, Lt, abort)
    a.label(Lt2)
    a("s_mov_b32 s101, s24")
    a("s_or_b32 s25, s24, s31"); a("v_mov_b32 v2, s25"); a("s_lshl_b32 s26, s2, 2"); a(f"s_add_u32 s26, s26, {TBL_OFF}")
    a("s_mov_b64 exec, 1")
    a(f"buffer_store_dword v2, off, {sr(S_WS,4)}, s26 sc1")
    a("s_mov_b64 exec, -1")
    a(f"v_lshlrev_b32 v3, 2, v{V_LANE}"); a(f"s_mov_b32 s26, {TBL_OFF}"); a("s_mov_b32 s30, 0")
    Lf, Lf2 = a.newlabel("R"), a.newlabel("R")
    a("s_cmp_eq_u32 s2, 0"); a(f"s_cbranch_scc1 {Lp}")
    a("s_mov_b32 s25, 128")
    a.label(Lf)
    a("s_sleep 4")
    a("buffer_load_dword v5, off, s[20:23], s25 sc1")
    a("s_waitcnt vmcnt(0)")
    a("v_cmp_ne_u32 vcc, s24, v5")
    a(f"s_cbranch_vccz {Lp}")
    poll_tail(a, Lf, abort)
    a.label(Lp)
    for k in range(4): a(f"buffer_load_dword v{8+k}, v3, {sr(S_WS,4)}, s26 offen offset:{256*k} sc1")
    a("s_waitcnt vmcnt(0)")
    for k in range(4): a(f"v_xor_b32 v{8+k}, s24, v{8+k}")
    a("v_or_b32 v5, v8, v9"); a("v_or3_b32 v5, v5, v10, v11")
    a("v_cmp_lt_u32 vcc, 7, v5")
    a(f"s_cbranch_vccz {Lg}")
    a("s_sleep 2")
    poll_tail(a, Lp, abort)
    a.label(Lg)
    a("s_cmp_lg_u32 s2, 0"); a(f"s_cbranch_scc1 {Lf2}")
    a("v_mov_b32 v5, s24"); a("s_mov_b32 s25, 128")
    a("buffer_store_dword v5, off, s[20:23], s25 sc1")
    a.label(Lf2)
    a("s_mov_b32 s32, 0")
    for x in range(8):
        a("s_mov_b32 s25, 0")
        for k in range(4):
            a(f"v_cmp_eq_u32 vcc, {x}, v{8+k}"); a("s_nop 0"); a("s_bcnt1_i32_b64 s27, vcc"); a("s_add_u32 s25, s25, s27")
        a(f"v_writelane_b32 v5, s25, {x}")
    for k in range(4):
        a(f"v_add_u32 v2, {64*k}, v{V_LANE}")
        a(f"v_cmp_eq_u32 vcc, s31, v{8+k}"); a("v_cmp_gt_u32 s[26:27], s2, v2"); a("s_nop 0")
        a("s_and_b64 vcc, vcc, s[26:27]"); a("s_bcnt1_i32_b64 s27, vcc"); a("s_add_u32 s32, s32, s27")
    a("v_writelane_b32 v5, s32, 8"); a("v_writelane_b32 v5, s101, 9")
    a(f"v_mov_b32 v4, {lds_scratch}")
    a(f"v_lshl_add_u32 v3, v{V_LANE}, 2, v4")
    a("s_mov_b64 exec, 0x3ff")
    a("ds_write_b32 v3, v5")
    a("s_mov_b64 exec, -1")
    a("s_waitcnt lgkmcnt(0)")
    a.label(Lw)
    a("s_barrier")
    a("s_getreg_b32 s31, hwreg(HW_REG_XCC_ID)"); a("s_and_b32 s31, s31, 7")
    a(f"v_mov_b32 v12, {lds_scratch}")
    a(f"v_and_b32 v3, 15, v{V_LANE}"); a("v_lshl_add_u32 v3, v3, 2, v12")
    a("ds_read_b32 v13, v3")
    a("s_waitcnt lgkmcnt(0)")
    a("v_readlane_b32 s32, v13, 8"); a("v_readlane_b32 s101, v13, 9")
    a("s_mov_b32 s33, 0"); a("s_mov_b32 s25, 256")
    for i in range(8):
        a(f"v_readlane_b32 s24, v13, {i}"); a("s_nop 0")
        a("s_min_u32 s25, s25, s24")
        a(f"s_cmp_gt_u32 s31, {i}"); a("s_cselect_b32 s24, s24, 0"); a("s_add_u32 s33, s33, s24")
    a("s_add_u32 s33, s33, s32")
    a("s_barrier")
    Ls, Le = a.newlabel("Rs"), a.newlabel("Re")
    if FORCE_FALLBACK: a("s_mov_b32 s25, 0")
    a("s_cmp_lt_u32 s25, 32"); a(f"s_cbranch_scc1 {Ls}")
    a(f"s_mov_b32 s{S_MODE}, 0"); a(f"s_mov_b32 s{S_X}, s31"); a(f"s_mov_b32 s{S_R}, s32")
    a("s_cmp_lt_u32 s31, 4"); a("s_cselect_b32 s29, 1, 0")
    a(f"s_cmp_lt_u32 s32, {NCH}"); a("s_cselect_b32 s29, s29, 0")
    a(f"s_branch {Le}")
    a.label(Ls)
    a(f"s_mov_b32 s{S_MODE}, 1")
    a(f"s_mul_i32 s{S_X}, s33, 2731"); a(f"s_lshr_b32 s{S_X}, s{S_X}, 16")
    a(f"s_mul_i32 s24, s{S_X}, {NCH}"); a(f"s_sub_u32 s{S_R}, s33, s24")
    a(f"s_cmp_lt_u32 s33, {4*NCH}"); a("s_cselect_b32 s29, 1, 0")
    a.label(Le)
```

```python
from common import *
from ln import *
from gemm import *
from att import att_item
from gemm16 import Gemm16, Gemm16N
import chain, gemm
from chain import role_A, role_VR, assign_roles, poll_tail, S_WS

LDS_SCR = 156*1024
S_PH, S_CTR, S_B, S_ITEM = 96, 97, 98, 99
S_T0 = 83
S_EPI, S_EP0, S_EP1, S_RET = 82, 78, 77, 4
S_PRE, S_POFF, S_PVAL = 39, 68, 69
S_FL = 92
PROFW = False
TSW_OFF = 216*MB

BATCH = {"S0": [("KS",0,0,4)], "S1": [("KS",0,4,4)], "S2": [("KS",0,8,4)], "S3": [("KS",0,12,4)], "K1": [("K1",0,0,4)], "KV1a": [("KV",1,0,4)], "KV1b": [("KV",1,4,4)], "KV2a": [("KV",2,0,4)], "KV2b": [("KV",2,4,4)],
         "KV3a": [("KV",3,0,4)], "KV3b": [("KV",3,4,4)], "Q0": [("Q",0,0,4)], "Q1": [("Q",1,0,4)], "Q2": [("Q",2,0,4)], "Q3": [("Q",3,0,4)],
         "G1": [("GU",0,0,4)], "G2": [("GU",0,4,3),("GU",1,0,1)], "G3": [("GU",1,1,4)], "G4": [("GU",1,5,2),("GU",2,0,2)],
         "G5": [("GU",2,2,4)], "G6": [("GU",2,6,1),("GU",3,0,3)], "G7": [("GU",3,3,4)],
         "KVa": [("K4",2,0,4)], "KVb": [("K4",2,4,4)], "KVc": [("K4",2,8,4)], "KVd": [("K4",2,12,4)],
         "Ga1": [("G4",0,0,4)], "Ga2": [("G4",0,4,4)], "Ga3": [("G4",0,8,4)], "Gb1": [("G4",4,0,4)], "Gb2": [("G4",4,4,4)], "Gb3": [("G4",4,8,4)],
         "Gm": [("G8",0,24,4)],
         "A01": [("A8",0,0,4)], "A23": [("A8",0,4,4)], "A45": [("A8",0,8,4)], "A67": [("A8",0,12,4)], "A89": [("A8",0,16,4)], "AAB": [("A8",0,20,4)],
         "DNa": [("DN",0,0,4)], "DNb": [("DN",0,4,4)], "W2x": [("W2",0,0,4)], "W1x": [("W1",0,8,4)], "WR": [("WR",0,0,4)], "WRa": [("WR",0,0,2),("W1",0,8,2)], "WRb": [("WR",0,2,2),("W1",0,10,2)], "": [("QA",0,0,4)]}
LISTS = [['KVd','Gb3','Q0','Ga1','W2x'],['KVc','Gb1','Ga3','Ga2','Q2','A89','W1x'],['KVb','Gb2','KV3a','KV3b','DNa'],['KVa','Gm','Q1','DNb','WR']]
SMALL = ['K1', 'Q3']
def q1_list():
    out = []
    LL = [[f'S{i}'] + l for i, l in enumerate(LISTS)]
    for r in range(max(map(len, LL))):
        for l in LL: out += BATCH[l[r] if r < len(l) else ""]
    for b in SMALL: out += BATCH[b]
    return out
NBLK = 12
WRPOS = 44
NQA = 32 + NBLK*16 + (64-4*NBLK)*8
NROT = 4

def load_ptrs(a):
    a("s_load_dwordx8 s[40:47], s[0:1], 0")
    a("s_load_dwordx4 s[48:51], s[0:1], 32")
    a("s_load_dwordx8 s[56:63], s[0:1], 64")
    a("s_load_dwordx4 s[64:67], s[0:1], 96")

def atomic_ret(a, vdst, s_off, val):
    a(f"v_mov_b32 v{vdst}, {val}")
    a("s_mov_b64 exec, 1")
    a(f"buffer_atomic_add v{vdst}, off, {sr(S_FL,4)}, s{s_off} sc0 sc1")
    a("s_mov_b64 exec, -1")
    a("s_waitcnt vmcnt(0)")

def signal(a, s_off, val, srd=S_FL, vtmp=4):
    a(f"v_mov_b32 v{vtmp}, {val}")
    a("s_mov_b64 exec, 1")
    a(f"buffer_atomic_add v{vtmp}, off, {sr(srd,4)}, s{s_off} sc1")
    a("s_mov_b64 exec, -1")

def wait_flags(a, voff_setup, s_base, mask, target, abort, nlanes, vd=4, vo=5, sleep=8, barrier=True):
    Lw, Lp = a.newlabel("Wf"), a.newlabel("Wp")
    a(f"s_cmp_lg_u32 s{S_WAVE}, 0"); a(f"s_cbranch_scc1 {Lw}")
    voff_setup()
    a("s_mov_b32 s30, 0"); a(f"s_mov_b32 s21, {target:#x}")
    a.label(Lp)
    a(f"buffer_load_dword v{vd}, v{vo}, {sr(S_FL,4)}, s{s_base} offen sc1")
    a("s_waitcnt vmcnt(0)")
    if mask != 0xffffffff: a(f"v_and_b32 v{vd}, {mask:#x}, v{vd}")
    a(f"v_cmp_ne_u32 vcc, s21, v{vd}")
    a(f"s_cbranch_vccz {Lw}")
    if sleep: a(f"s_sleep {sleep}")
    poll_tail(a, Lp, abort)
    a.label(Lw)
    if barrier: a("s_barrier")

def finish(a, s_off, val):
    a("s_waitcnt vmcnt(0)")
    a("s_barrier")
    L = a.newlabel("Fin")
    a(f"s_cmp_lg_u32 s{S_WAVE}, 0"); a(f"s_cbranch_scc1 {L}")
    signal(a, s_off, val)
    a.label(L)

DBG = False
def dbgmax(a, s_slot, vt=4):
    if not DBG: return
    L = a.newlabel("Db")
    a(f"s_cmp_lg_u32 s{S_WAVE}, 0"); a(f"s_cbranch_scc1 {L}")
    a("s_memrealtime s[24:25]"); load_srd(a, 20, 64, 0, 256); a("s_waitcnt lgkmcnt(0)")
    a("s_lshl_b32 s24, s24, 3"); a("s_sub_u32 s24, s24, s101"); a("s_bitset0_b32 s24, 31"); a("s_lshr_b32 s24, s24, 3")
    a(f"v_mov_b32 v{vt}, s24"); a(f"s_lshl_b32 s25, s{s_slot}, 2")
    a("s_mov_b64 exec, 1")
    a(f"buffer_atomic_umax v{vt}, off, s[20:23], s25 sc1")
    a("s_mov_b64 exec, -1")
    a.label(L)

def wstamp(a, i):
    if PROFW: a(f"s_memrealtime s[{70+2*i}:{71+2*i}]")

def xstamp(a, i):
    r = [24,6,52,54,80][i]
    if PROFW: a(f"s_memrealtime s[{r}:{r+1}]")

def wor_item(a, END):
    L = V_LANE; W = S_WAVE
    load_srd(a, S_SRDW, 50, 0, 4096*DM*2)
    a("s_and_b32 s36, s37, 1"); a("s_lshr_b32 s34, s37, 1")
    a(f"v_lshrrev_b32 v2, 5, v{L}"); a("v_lshlrev_b32 v2, 4, v2")
    a(f"v_bfe_u32 v3, v{L}, 3, 2"); a("v_add_u32 v2, v2, v3"); a("v_lshlrev_b32 v2, 11, v2")
    a(f"v_and_b32 v3, 7, v{L}"); a("v_lshl_add_u32 v2, v3, 4, v2")
    a(f"s_lshl_b32 s27, s{W}, 15")
    a(f"v_lshrrev_b32 v4, 5, v{L}"); a(f"v_bfe_u32 v5, v{L}, 2, 2"); a("v_lshl_add_u32 v4, v4, 3, v5"); a("v_lshlrev_b32 v4, 7, v4")
    a(f"v_bfe_u32 v5, v{L}, 4, 1"); a("v_lshl_add_u32 v4, v5, 5, v4"); a(f"v_and_b32 v3, 3, v{L}"); a("v_lshl_add_u32 v4, v3, 3, v4"); a("v_add_u32 v4, s27, v4")
    a(f"s_lshl_b32 s22, s{W}, 20"); a("s_lshl_b32 s23, s36, 22"); a("s_add_u32 s22, s22, s23"); a("s_lshl_b32 s23, s34, 7"); a("s_add_u32 s22, s22, s23")
    for rnd_ in range(2):
        for j in range(32):
            a(f"s_add_u32 m0, s27, {1024*j}"); a("s_nop 0")
            a(f"buffer_load_dwordx4 v2, {sr(S_SRDW,4)}, s22 offen lds")
            a(f"s_add_u32 s22, s22, {(4 if (j & 3) < 3 else 20)*2048}")
        a("s_waitcnt vmcnt(0)")
        for ks in range(16):
            for t in range(2):
                for q in range(2):
                    a(f"ds_read_b64_tr_b16 {ar(((rnd_*16+ks)*2+t)*4+2*q,2)}, v4 offset:{(16*ks+4*q)*128+64*t}")
            if ks % 2 == 1: a("s_waitcnt lgkmcnt(0)")
    a(f"s_mov_b32 s32, {FL_EX}")
    wait_flags(a, lambda: a("v_mov_b32 v15, 0"), 32, 0xffffffff, 32, END, 1, 14, 15)
    load_srd(a, S_SRDX, 66, OL_OFF, 16*MB)
    load_srd(a, 84, 62, 0, S*DM*2)
    load_srd(a, S_SRDW, 40, 0, S*DM*2)
    VX0, VO, VB, VW, VR, VE, VP = 64, 3, 6, 7, 8, 10, 11
    a("s_lshl_b32 s37, s34, 1"); a("s_add_u32 s37, s37, s36")
    a(f"v_bfe_u32 v10, v{L}, 2, 3"); a(f"v_and_b32 v11, 3, v{L}"); a(f"v_lshrrev_b32 v12, 5, v{L}")
    a(f"v_and_b32 v13, 31, v{L}"); a(f"v_lshlrev_b32 v{VO}, 11, v13"); a(f"v_lshl_add_u32 v{VO}, v12, 3, v{VO}")
    a("s_lshl_b32 s22, s37, 6"); a(f"s_lshl_b32 s23, s{W}, 4"); a("s_add_u32 s22, s22, s23"); a(f"v_add_u32 v{VO}, s22, v{VO}")
    a(f"v_lshlrev_b32 v{VB}, 13, v10"); a(f"v_lshl_add_u32 v{VB}, v11, 5, v{VB}"); a(f"v_lshl_add_u32 v{VB}, v12, 3, v{VB}")
    a("s_lshl_b32 s22, s37, 8"); a(f"s_lshr_b32 s23, s{W}, 1"); a("s_lshl_b32 s23, s23, 7"); a("s_add_u32 s22, s22, s23")
    a(f"s_and_b32 s23, s{W}, 1"); a("s_lshl_b32 s23, s23, 4"); a("s_add_u32 s22, s22, s23"); a(f"s_add_u32 s22, s22, {BP_OFF}")
    a(f"v_add_u32 v{VB}, s22, v{VB}")
    a(f"v_lshlrev_b32 v13, 4, v{L}")
    a(f"s_lshl_b32 s22, s{W}, 15"); a("s_lshl_b32 s23, s36, 17"); a("s_add_u32 s22, s22, s23"); a(f"v_add_u32 v{VX0}, s22, v13")
    for i in range(1, 8): a(f"v_add_u32 v{VX0+i}, {4096*i}, v{VX0}")
    a(f"s_lshl_b32 s22, s{W}, 13"); a(f"v_add_u32 v{VW}, s22, v13")
    a(f"s_lshl_b32 s22, s{W}, 10"); a("s_lshl_b32 s23, s36, 12"); a("s_add_u32 s23, s23, s22"); a(f"v_add_u32 v{VR}, s23, v13")
    a("s_lshl_b32 s23, s37, 12"); a("s_add_u32 s22, s22, s23"); a(f"s_add_u32 s22, s22, {EX_OFF - 4*NBLK*131072}")
    a(f"v_add_u32 v{VE}, s22, v13"); a(f"v_xor_b32 v{VP}, 4096, v{VE}")
    a(f"s_mov_b32 s38, {4*NBLK}"); a("s_mov_b32 s35, 0"); a("s_mov_b32 s90, 0"); a("s_mov_b32 s91, 0")
    a(f"v_mov_b32 v9, {LDS_SCR+64}")
    wstamp(a, 1)
    ACC = 16; XR = 128; RD = 80
    a.label("L_WORseg")
    Ld = a.newlabel("Wd")
    a("s_and_b32 s32, s38, 7"); a(f"s_cmp_eq_u32 s38, {4*NBLK}"); a("s_cselect_b32 s32, 0, s32"); a("s_cmp_lg_u32 s32, 0"); a(f"s_cbranch_scc1 {Ld}")
    a("s_lshr_b32 s32, s38, 3"); a("s_lshl_b32 s32, s32, 3"); a("s_lshr_b32 s33, s37, 2"); a("s_add_u32 s32, s32, s33")
    a("s_lshl_b32 s32, s32, 6"); a(f"s_add_u32 s32, s32, {FL_DN}")
    wait_flags(a, lambda: a("v_mov_b32 v15, 0"), 32, 0xffffffff, 1, END, 1, 14, 15)
    a.label(Ld)
    a("s_lshl_b32 s33, s38, 16")
    a(f"s_sub_u32 s32, s38, {4*NBLK}"); a("s_lshl_b32 s32, s32, 7"); a("s_lshl_b32 s34, s36, 6"); a("s_add_u32 s32, s32, s34"); a(f"s_add_u32 s32, s32, {FL_ATS}")
    a("s_lshl_b32 s34, s38, 18"); a("s_lshl_b32 s26, s38, 17")
    Lr = a.newlabel("Wr")
    a("s_cmp_eq_u32 s35, 16"); a(f"s_cbranch_scc1 {Lr}")
    a("s_mov_b32 s91, 0")
    wait_flags(a, lambda: a("v_mov_b32 v15, 0"), 32, 0xffffffff, 16, END, 1, 14, 15, WSLEEP)
    a.label(Lr)
    a("s_add_u32 s32, s32, 128")
    wstamp(a, 2)
    a(f"s_bfe_u32 s22, s37, {1 | (2 << 16):#x}")
    for e in range(1, NROT): a(f"s_cmp_eq_u32 s22, {e}"); a(f"s_cbranch_scc1 L_WORe{e}")
    for e in range(NROT):
        a.label(f"L_WORe{e}")
        order = [(32//NROT*e + i) % 32 for i in range(32)]
        WN = 8
        lds = [f"buffer_load_dwordx4 {vr(XR+ks*4,4)}, v{VX0+ks//4}, {sr(S_SRDX,4)}, s34 offen offset:{(ks%4)*1024} sc1" for ks in order]
        lds += [f"buffer_load_dwordx2 v[48:49], v{VO}, {sr(S_SRDW,4)}, s33 offen", f"buffer_load_dwordx2 v[50:51], v{VB}, {sr(S_FL,4)}, s33 offen sc1",
                f"buffer_load_dwordx4 v[116:119], v{VP}, {sr(S_FL,4)}, s26 offen sc1",
                f"buffer_load_dword v14, off, {sr(S_FL,4)}, s32 sc1"]
        if EARLY: a("s_cmp_lg_u32 s91, 0"); a(f"s_cbranch_scc1 L_WORf{e}")
        for x in lds[:WN]: a(x)
        a.label(f"L_WORf{e}")
        n = WN
        for i, ks in enumerate(order):
            a(f"s_waitcnt vmcnt({n-1-i})")
            if i == 0: xstamp(a, 0)
            for t in range(2):
                a(f"v_mfma_f32_32x32x16_bf16 {vr(ACC+16*t,16)}, {ar((ks*2+t)*4,4)}, {vr(XR+ks*4,4)}, {'0' if i == 0 else vr(ACC+16*t,16)}")
                if n < len(lds) and (t == 0 or i < 8): a(lds[n]); n += 1
        if EARLY:
            a("s_waitcnt vmcnt(0)")
            a("v_readfirstlane_b32 s91, v14"); a("s_add_u32 s23, s38, 1"); a("s_and_b32 s23, s23, 7"); a("s_cselect_b32 s23, 16, 17")
            a("s_cmp_eq_u32 s91, s23"); a("s_cselect_b32 s91, 1, 0"); a("s_cbranch_scc0 L_WORj")
            a("s_add_u32 s23, s34, 262144")
            for x in lds[:WN]: a(x.replace("s34", "s23"))
        if e < NROT-1: a("s_branch L_WORj")
    a.label("L_WORj")
    xstamp(a, 1)
    a("s_nop 10")
    for q in range(8): a(f"ds_write_b128 v{VW}, {vr(ACC+4*q,4)} offset:{1024*q}")
    if not EARLY: a("s_waitcnt vmcnt(0)")
    xstamp(a, 2)
    Lz = a.newlabel("Wz")
    a(f"s_cmp_lg_u32 s{W}, 0"); a(f"s_cbranch_scc1 {Lz}")
    a("ds_write_b32 v9, v14")
    a.label(Lz)
    a(f"v_xor_b32 v13, 4096, v{VR}")
    a("s_waitcnt lgkmcnt(0)")
    a("s_barrier")
    for i in range(4): a(f"ds_read_b128 {vr(RD+16+4*i,4)}, v13 offset:{8192*i}")
    for i in range(4): a(f"ds_read_b128 {vr(RD+4*i,4)}, v{VR} offset:{8192*i}")
    a("ds_read_b32 v14, v9")
    a(f"v_xor_b32 v{VW}, 32768, v{VW}"); a(f"v_xor_b32 v{VR}, 32768, v{VR}"); a("v_xor_b32 v9, 4, v9")
    def sum4(b):
        for k in (0, 2):
            a(f"v_pk_add_f32 {vr(b+k,2)}, {vr(b+k,2)}, {vr(b+4+k,2)}"); a(f"v_pk_add_f32 {vr(b+8+k,2)}, {vr(b+8+k,2)}, {vr(b+12+k,2)}")
        for k in (0, 2): a(f"v_pk_add_f32 {vr(b+k,2)}, {vr(b+k,2)}, {vr(b+8+k,2)}")
    a("s_waitcnt lgkmcnt(5)")
    sum4(RD+16)
    xstamp(a, 3)
    L1, L2 = a.newlabel("We"), a.newlabel("We")
    a(f"s_cmp_eq_u32 s{S_B}, 4"); a(f"s_cbranch_scc1 {L1}")
    if EXLATE: a(f"s_cmp_lt_u32 s38, {EXLATE}"); a(f"s_cbranch_scc1 {L1}")
    a(f"buffer_store_dwordx4 {vr(RD+16,4)}, v{VE}, {sr(S_FL,4)}, s26 offen")
    a(f"s_branch {L2}")
    a.label(L1)
    a(f"buffer_store_dwordx4 {vr(RD+16,4)}, v{VE}, {sr(S_FL,4)}, s26 offen sc1")
    a.label(L2)
    a("s_waitcnt lgkmcnt(0)")
    sum4(RD)
    a("v_readfirstlane_b32 s35, v14")
    PO = 120
    def finish_seg(nap):
        a(f"v_lshlrev_b32 v52, 16, v{PO+4}"); a(f"v_and_b32 v53, 0xffff0000, v{PO+4}"); a(f"v_lshlrev_b32 v54, 16, v{PO+5}"); a(f"v_and_b32 v55, 0xffff0000, v{PO+5}")
        a(f"v_lshlrev_b32 v56, 16, v{PO+6}"); a(f"v_and_b32 v57, 0xffff0000, v{PO+6}"); a(f"v_lshlrev_b32 v58, 16, v{PO+7}"); a(f"v_and_b32 v59, 0xffff0000, v{PO+7}")
        a("s_mov_b32 s30, 0")
        if nap: a(f"s_sleep {nap}")
        Lp, Lg = a.newlabel("Wp"), a.newlabel("Wg")
        R = 108
        a.label(Lp)
        a(f"buffer_load_dwordx4 {vr(R,4)}, v{VP}, {sr(S_FL,4)}, s89 offen sc1")
        a("s_waitcnt vmcnt(0)")
        a(f"v_max3_u32 v15, v{R}, v{R+1}, v{R+2}"); a(f"v_max_u32 v15, v15, v{R+3}")
        a("v_cmp_eq_u32 vcc, -1, v15")
        a(f"s_cbranch_vccz {Lg}")
        poll_tail(a, Lp, END)
        a.label(Lg)
        if nap: xstamp(a, 4)
        for k in (0, 2): a(f"v_pk_add_f32 {vr(R+k,2)}, {vr(R+k,2)}, {vr(PO+k,2)}")
        def rnd():
            a(f"v_cvt_pk_bf16_f32 v{R+4}, v{R}, v{R+1}"); a(f"v_cvt_pk_bf16_f32 v{R+5}, v{R+2}, v{R+3}")
        def unp():
            a(f"v_lshlrev_b32 v{R}, 16, v{R+4}"); a(f"v_and_b32 v{R+1}, 0xffff0000, v{R+4}")
            a(f"v_lshlrev_b32 v{R+2}, 16, v{R+5}"); a(f"v_and_b32 v{R+3}, 0xffff0000, v{R+5}")
        rnd(); unp()
        a(f"v_pk_add_f32 {vr(R,2)}, {vr(R,2)}, v[52:53]"); a(f"v_pk_add_f32 {vr(R+2,2)}, {vr(R+2,2)}, v[54:55]")
        rnd(); unp()
        a(f"v_pk_add_f32 {vr(R,2)}, {vr(R,2)}, v[56:57]"); a(f"v_pk_add_f32 {vr(R+2,2)}, {vr(R+2,2)}, v[58:59]")
        rnd()
        a(f"buffer_store_dwordx2 {vr(R+4,2)}, v{VO}, s[84:87], s88 offen")
    Ln = a.newlabel("Wn")
    a("s_cmp_eq_u32 s90, 0"); a(f"s_cbranch_scc1 {Ln}")
    finish_seg(0)
    a.label(Ln)
    for k in range(4): a(f"v_mov_b32 v{PO+k}, v{RD+k}"); a(f"v_mov_b32 v{PO+4+k}, v{48+k}")
    a("s_mov_b32 s88, s33"); a("s_mov_b32 s89, s26"); a("s_mov_b32 s90, 1")
    a("s_add_u32 s38, s38, 1")
    a("s_and_b32 s34, s38, 7"); a("s_cselect_b32 s34, s35, 0"); a("s_cmp_eq_u32 s34, 16"); a("s_cbranch_scc1 L_WORseg")
    Lv, Lf = a.newlabel("Wv"), a.newlabel("Wv")
    a("s_and_b32 s34, s38, 7"); a(f"s_cbranch_scc0 {Lf}")
    a(f"s_cmp_lg_u32 s{W}, 0"); a(f"s_cbranch_scc1 {Lv}")
    a(f"buffer_load_dword v14, off, {sr(S_FL,4)}, s32 sc1")
    a("s_waitcnt vmcnt(0)")
    a("ds_write_b32 v9, v14 offset:8")
    a("s_waitcnt lgkmcnt(0)")
    a.label(Lv)
    a("s_barrier")
    a("ds_read_b32 v14, v9 offset:8")
    a("s_waitcnt lgkmcnt(0)")
    a("v_readfirstlane_b32 s35, v14")
    a("s_nop 3")
    a("s_cmp_eq_u32 s35, 16"); a("s_cbranch_scc1 L_WORseg")
    a.label(Lf)
    finish_seg(1)
    a("s_mov_b32 s90, 0")
    a("s_cmp_lt_u32 s38, 64"); a("s_cbranch_scc1 L_WORseg")

NW1, NW2, NW3 = 0, 0, 21
def warm(a, s_unit, n, per, base):
    if n == 0: return
    load_srd(a, 84, 46, 0, DM*4096*2)
    a(f"s_mul_i32 s79, s{s_unit}, {per*1024}"); a(f"s_add_u32 s79, s79, {base*1024}")
    a(f"s_mov_b32 m0, {LDS_SCR+1024}")
    for i in range(n):
        a("s_nop 0" if i == 0 else "s_add_u32 s79, s79, 1024")
        a("buffer_load_dwordx4 v2, s[84:87], s79 offen lds")

NRDY = 0
ROT = False
SIGL = 0
EARLY = True
QASKIP = 32
OUTF = ''
EXLATE = 0
WBL2 = False
QAORD = [(0, 128), (192, 16), (160, 32), (208, 112)]
SLOW1 = 0
FAST1 = 2
WSLEEP = 1
M16 = True
N16 = 2
NPRE = 0
NJUNK = 3
GJUNK = False
PFLIST = []
PFDEPTH = 8
XNT = ''
HELP = 0
def setup_phase(a):
    L = V_LANE; W = S_WAVE
    a("s_and_b32 s16, s2, 7"); a("s_lshr_b32 s17, s2, 3"); a("s_lshl_b32 s17, s17, 2"); a("s_add_u32 s17, s17, s16"); a("s_sub_u32 s17, s17, 4")
    a("s_sub_u32 s18, s2, 96"); a("s_cmp_ge_u32 s2, 192"); a("s_cselect_b32 s19, s18, s17"); a("s_cbranch_scc1 L_su_go")
    a("s_cmp_lt_u32 s16, 4"); a("s_cbranch_scc1 L_su_pre")
    a.label("L_su_go")
    load_srd(a, 24, 40, 0, S*DM*2)
    load_srd(a, 12, 66, XN_OFF, S*XN_STR)
    a(f"v_lshlrev_b32 v2, 4, v{L}")
    a("s_mul_i32 s19, s19, 3"); a(f"s_add_u32 s19, s19, s{W}"); a("s_sub_u32 s19, s19, 1")
    a("s_mul_i32 s34, s19, 3"); a("s_add_u32 s36, s34, 1"); a("s_add_u32 s38, s34, 2")
    def rows(X0):
        for k in range(3):
            a(f"s_lshl_b32 s17, s{34+2*k}, 11")
            for h in range(2): a(f"buffer_load_dwordx4 {vr(X0+8*k+4*h,4)}, v2, s[24:27], s17 offen offset:{1024*h} {XNT}")
    rows(64)
    a("s_sub_u32 s18, s19, 277"); a("s_mul_i32 s18, s18, 3"); a("s_add_u32 s18, s18, 1440"); a("s_cmp_ge_u32 s19, 277"); a("s_cselect_b32 s18, s18, 4096")
    for k in range(3):
        a(f"s_add_u32 s17, s18, {k}"); a("s_lshl_b32 s17, s17, 11")
        for h in range(2): a(f"buffer_load_dwordx4 {vr(16+8*k+4*h,4)}, v2, s[24:27], s17 offen offset:{1024*h} {XNT}")
    load_srd(a, 28, 42, 0, 8*DM*2)
    a(f"s_bfe_u32 s17, s19, {2 | (4 << 16):#x}"); a("s_lshl_b32 s17, s17, 7"); a("s_and_b32 s16, s19, 3"); a("s_lshl_b32 s16, s16, 5"); a("s_add_u32 s17, s17, s16")
    a(f"v_bfe_u32 v8, v{L}, 2, 3"); a("v_lshlrev_b32 v8, 11, v8")
    a(f"v_and_b32 v9, 3, v{L}"); a("v_lshl_add_u32 v8, v9, 3, v8")
    a(f"v_lshrrev_b32 v9, 5, v{L}"); a("v_lshl_add_u32 v8, v9, 2, v8")
    a("buffer_load_dword v10, v8, s[28:31], s17 offen")
    emit_ln_multi(a, 12, [34, 36, 38], 2, 64, 96, "sc1", 7)
    a("s_cmp_lt_u32 s19, 277"); a("s_cbranch_scc1 L_su_one")
    a("s_mov_b32 s34, s18"); a("s_add_u32 s36, s18, 1"); a("s_add_u32 s38, s18, 2")
    emit_ln_multi(a, 12, [34, 36, 38], 2, 16, 96, "sc1", 7)
    a.label("L_su_one")
    tot = CH_END - CH_BASE - 65536
    assert tot % 1024 == 0 and tot//1024 <= 480*6
    for i in range(4): a(f"v_mov_b32 v{4+i}, -1")
    a("s_mul_i32 s16, s19, 6")
    for i in range(6):
        Ls = a.newlabel("Ps")
        a(f"s_cmp_ge_u32 s16, {tot//1024}"); a(f"s_cbranch_scc1 {Ls}")
        a(f"s_cmp_ge_u32 s16, {(CH_MEM-CH_BASE)//1024}"); a("s_cselect_b32 s17, 64, 0"); a("s_add_u32 s17, s17, s16")
        a("s_lshl_b32 s17, s17, 10"); a(f"s_add_u32 s17, s17, {CH_BASE}")
        a(f"buffer_store_dwordx4 v[4:7], v2, {sr(S_WS,4)}, s17 offen sc1")
        a.label(Ls)
        a("s_add_u32 s16, s16, 1")
    Lz, Lm = a.newlabel("Pz"), a.newlabel("Pm")
    a(f"v_lshlrev_b32 v9, 2, v{L}")
    a("s_cmp_lt_u32 s19, 224"); a(f"s_cbranch_scc1 {Lz}")
    a("v_mov_b32 v8, 0"); a("s_sub_u32 s17, s19, 224"); a("s_lshl_b32 s17, s17, 8"); a(f"s_add_u32 s17, s17, {FLAGS}")
    a(f"buffer_store_dword v8, v9, {sr(S_WS,4)}, s17 offen sc1")
    a.label(Lz)
    a("s_cmp_ge_u32 s19, 256"); a(f"s_cbranch_scc1 {Lm}")
    a("s_lshl_b32 s16, s19, 8"); a(f"s_add_u32 s16, s16, {CH_MEM}")
    a("s_waitcnt vmcnt(6)")
    a(f"buffer_store_dword v10, v9, {sr(S_WS,4)}, s16 offen sc1")
    a.label(Lm)
    a("s_branch L_su_end")
    a.label("L_su_pre")
    if NPRE:
        a("s_cmp_ge_u32 s31, 4"); a("s_cbranch_scc1 L_su_end")
        a(f"s_mov_b32 m0, {LDS_SCR+1024}"); a("s_lshr_b32 s17, s2, 3"); a("s_lshl_b32 s18, s31, 3")
        a("s_cmp_ge_u32 s17, 8"); a("s_cbranch_scc1 L_su_pv")
        a(f"s_cmp_eq_u32 s{W}, 3"); a("s_cselect_b32 s34, s46, s44"); a("s_cselect_b32 s35, s47, s45")
        load_srd(a, 84, 34, 0, DM*4096*2)
        a(f"v_lshrrev_b32 v2, 4, v{L}"); a("v_lshlrev_b32 v2, 13, v2"); a(f"v_and_b32 v3, 15, v{L}"); a("v_lshl_add_u32 v2, v3, 4, v2")
        a("s_add_u32 s17, s17, s18"); a("s_lshl_b32 s79, s17, 8")
        a(f"s_cmp_eq_u32 s{W}, 2"); a(f"s_cselect_b32 s17, {4*8192}, 0"); a("s_add_u32 s79, s79, s17")
        a(f"s_mov_b32 s78, {8*8192}")
        a(f"s_cmp_eq_u32 s{W}, 3"); a(f"s_cselect_b32 s78, {4*8192}, s78")
        a("s_branch L_su_pl")
        a.label("L_su_pv")
        load_srd(a, 84, 48, 0, DM*4096*2)
        a(f"v_lshrrev_b32 v2, 3, v{L}"); a("v_lshlrev_b32 v2, 13, v2"); a(f"v_and_b32 v3, 7, v{L}"); a("v_lshl_add_u32 v2, v3, 4, v2")
        a("s_sub_u32 s17, s17, 8"); a("s_lshl_b32 s18, s18, 1"); a("s_add_u32 s17, s17, s18"); a("s_lshl_b32 s79, s17, 7")
        a(f"s_lshl_b32 s17, s{W}, 21"); a("s_add_u32 s79, s79, s17"); a(f"s_mov_b32 s78, {8*8192}")
        a.label("L_su_pl")
        for i in range(NPRE):
            a("buffer_load_dwordx4 v2, s[84:87], s79 offen lds")
            a("s_add_u32 s79, s79, s78")
    a.label("L_su_end")

def init_arrive(a, srd, vt=61):
    L = a.newlabel("Ia")
    a(f"s_cmp_lg_u32 s{S_WAVE}, 0"); a(f"s_cbranch_scc1 {L}")
    a(f"v_mov_b32 v{vt}, s101"); a("s_lshl_b32 s21, s2, 2"); a(f"s_add_u32 s21, s21, {TBL_OFF+1024}")
    a("s_mov_b64 exec, 1")
    a(f"buffer_store_dword v{vt}, off, {sr(srd,4)}, s21 sc1")
    a("s_mov_b64 exec, -1")
    a.label(L)

def init_wait(a, abort):
    load_srd(a, 20, 64, 0, 256)
    Lp, Lg = a.newlabel("Ip"), a.newlabel("Ig")
    a("s_mov_b32 s30, 0"); a("s_mov_b32 s24, 192")
    a.label(Lp)
    a("buffer_load_dword v14, off, s[20:23], s24 sc1")
    a("s_waitcnt vmcnt(0)")
    a("v_cmp_ne_u32 vcc, s101, v14")
    a(f"s_cbranch_vccz {Lg}")
    a("s_sleep 4")
    poll_tail(a, Lp, abort)
    a.label(Lg)

def worker_start(a, abort):
    a(f"s_waitcnt vmcnt({NW2})")
    a("s_barrier")
    init_arrive(a, S_FL)
    Lw, Ln, Lp, Lg = [a.newlabel("Ws") for _ in range(4)]
    L0 = a.newlabel("Ws")
    a(f"s_cmp_eq_u32 s{S_WAVE}, 0"); a(f"s_cbranch_scc1 {L0}")
    Lb = a.newlabel("Ws")
    a(f"s_cmp_lg_u32 s{S_B}, 5"); a(f"s_cbranch_scc1 {Lb}")
    a(f"v_lshrrev_b32 v2, 4, v{V_LANE}"); a("v_lshlrev_b32 v2, 13, v2"); a(f"v_and_b32 v3, 15, v{V_LANE}"); a("v_lshl_add_u32 v2, v3, 4, v2")
    a(f"s_mov_b32 m0, {LDS_SCR+1024}")
    nper = HELP // 3
    for p in ((44, 46) if HELP else ()):
        load_srd(a, 84, p, 0, DM*4096*2)
        a(f"s_sub_u32 s79, s{S_WAVE}, 1"); a(f"s_mul_i32 s79, s79, {nper*4*8192}"); a("s_lshl_b32 s78, s34, 8"); a("s_add_u32 s79, s79, s78")
        a(f"s_add_u32 s79, s79, {(1024-12*nper)*8192}"); a(f"s_mov_b32 s78, {nper}")
        Ll = a.newlabel("Ws")
        a.label(Ll)
        a("buffer_load_dwordx4 v2, s[84:87], s79 offen lds")
        a(f"s_add_u32 s79, s79, {4*8192}"); a("s_sub_u32 s78, s78, 1"); a("s_cmp_lg_u32 s78, 0"); a(f"s_cbranch_scc1 {Ll}")
    a(f"s_branch {Lw}")
    a.label(Lb)
    a("s_sub_u32 s19, s33, 128"); a("s_mul_i32 s19, s19, 3"); a(f"s_add_u32 s19, s19, s{S_WAVE}"); a("s_sub_u32 s19, s19, 1")
    a(f"v_lshlrev_b32 v2, 4, v{V_LANE}")
    warm(a, 19, NW3, NW3, 8192 - 384*NW3)
    a(f"s_branch {Lw}")
    a.label(L0)
    a("s_cmp_lg_u32 s33, 255"); a(f"s_cbranch_scc1 {Ln}")
    a(f"v_lshlrev_b32 v3, 2, v{V_LANE}"); a(f"s_mov_b32 s26, {TBL_OFF+1024}"); a("s_mov_b32 s30, 0")
    a.label(Lp)
    for k in range(4): a(f"buffer_load_dword v{8+k}, v3, {sr(S_FL,4)}, s26 offen offset:{256*k} sc1")
    a("s_waitcnt vmcnt(0)")
    for k in range(4): a(f"v_xor_b32 v{8+k}, s101, v{8+k}")
    a("v_or_b32 v5, v8, v9"); a("v_or3_b32 v5, v5, v10, v11")
    a("v_cmp_ne_u32 vcc, 0, v5")
    a(f"s_cbranch_vccz {Lg}")
    a("s_sleep 2")
    poll_tail(a, Lp, abort)
    a.label(Lg)
    load_srd(a, 20, 64, 0, 256)
    a("v_mov_b32 v5, s101"); a("s_mov_b32 s24, 192")
    a("buffer_store_dword v5, off, s[20:23], s24 sc1")
    a(f"s_branch {Lw}")
    a.label(Ln)
    Lsm, Lq = a.newlabel("Ws"), a.newlabel("Ws")
    a(f"s_cmp_eq_u32 s{S_B}, 5"); a(f"s_cbranch_scc1 {Lsm}")
    a(f"v_and_b32 v3, 7, v{V_LANE}"); a("s_and_b32 s26, s34, 3"); a("s_mul_i32 s26, s26, 7"); a("v_add_u32 v3, s26, v3")
    a("v_and_b32 v4, 3, v3"); a("v_lshrrev_b32 v3, 2, v3"); a("v_lshl_add_u32 v3, v3, 3, v4"); a("v_add_u32 v3, 4, v3"); a("v_lshlrev_b32 v3, 2, v3")
    a(f"s_mov_b32 s26, {TBL_OFF+1024}")
    a("s_mov_b32 s30, 0")
    a.label(Lq)
    a("s_sleep 6")
    a(f"buffer_load_dword v8, v3, {sr(S_FL,4)}, s26 offen sc1")
    a("s_waitcnt vmcnt(0)")
    a("v_cmp_ne_u32 vcc, s101, v8")
    a(f"s_cbranch_vccz {Lw}")
    poll_tail(a, Lq, abort)
    a.label(Lsm)
    init_wait(a, abort)
    if NRDY == 0: a(f"s_branch {Lw}")
    a(f"s_mov_b32 s26, {FL_RDY}"); a("s_mov_b32 s30, 0")
    Lr = a.newlabel("Ws")
    a.label(Lr)
    a("s_sleep 16")
    a(f"buffer_load_dword v8, off, {sr(S_FL,4)}, s26 sc1")
    a("s_waitcnt vmcnt(0)")
    a(f"v_cmp_gt_u32 vcc, {NRDY}, v8")
    a(f"s_cbranch_vccz {Lw}")
    poll_tail(a, Lr, abort)
    a.label(Lw)
    a("s_barrier")

def emit_mega(a, name, force_slow=False):
    END = "L_abort"
    Q1 = q1_list(); NSM = 32*len(SMALL); NQ1 = 8*sum(x[3] for x in Q1) - NSM
    kernel_header(a, name)
    a(f"s_cmp_lt_u32 s2, 256"); a(f"s_cbranch_scc1 L_start")
    a("s_endpgm")
    a.label("L_start")
    xstamp(a, 2)
    load_ptrs(a)
    a("v_lshrrev_b32 v2, 6, v0")
    a(f"v_and_b32 v{V_LANE}, 63, v0")
    a(f"v_readfirstlane_b32 s{S_WAVE}, v2")
    a("s_waitcnt lgkmcnt(0)")
    load_srd(a, S_WS, 66, 0, WS_SIZE)
    chain.IDLE = setup_phase
    chain.INIT_WAIT = lambda a: init_wait(a, END)
    chain.INIT_ARRIVE = lambda a: init_arrive(a, S_WS)
    chain.NYOUNG = NW2
    def rdy(a):
        L = a.newlabel("Rd")
        a(f"s_cmp_lg_u32 s{S_WAVE}, 0"); a(f"s_cbranch_scc1 {L}")
        a(f"s_mov_b32 s20, {FL_RDY}"); signal(a, 20, 1, S_WS, 61)
        a.label(L)
    chain.A_READY = rdy
    assign_roles(a, END, LDS_SCR)
    xstamp(a, 1)
    a(f"s_mov_b32 s35, s{chain.S_MODE}")
    if force_slow: a(f"s_mov_b32 s{chain.S_MODE}, 1")
    a(f"s_mov_b32 s{S_PH}, 0")
    a(f"s_sub_u32 s{S_B}, s31, 4"); a("s_cmp_lt_u32 s31, 4"); a(f"s_cselect_b32 s{S_B}, 5, s{S_B}")
    a(f"s_mov_b32 s{S_PH}, 1")

    Lf = a.newlabel("Cl")
    a(f"s_cmp_eq_u32 s{chain.S_MODE}, 0"); a(f"s_cbranch_scc1 {Lf}")
    a("s_cmp_lt_u32 s33, 128"); a(f"s_cselect_b32 s{S_B}, 5, 4")
    a.label(Lf)
    a(f"s_lshl_b32 s{S_CTR}, s{S_B}, 7"); a(f"s_add_u32 s{S_CTR}, s{S_CTR}, {FL_Q1L}")
    a("s_mov_b32 s100, 0")
    a(f"s_cmp_eq_u32 s{S_B}, 4"); a(f"s_cselect_b32 s{S_T0}, 128, 32")
    a("s_lshl_b32 s34, s31, 3"); a("s_add_u32 s34, s34, s32"); a("s_sub_u32 s34, s34, 24")
    a("s_cmp_ge_u32 s31, 4"); a("s_cselect_b32 s34, s32, s34")
    Lp5 = a.newlabel("Cl")
    a("s_cmp_eq_u32 s35, 0"); a(f"s_cbranch_scc1 {Lp5}")
    a("s_sub_u32 s34, s33, 96"); a(f"s_cmp_eq_u32 s{S_B}, 4"); a("s_cselect_b32 s20, 32, 0"); a("s_sub_u32 s34, s34, s20")
    a.label(Lp5)
    a("s_cmp_eq_u32 s29, 0"); a(f"s_cbranch_scc1 L_worker0")
    a("s_setprio 3")
    a(f"s_cmp_ge_u32 s{chain.S_R}, 8"); a(f"s_cbranch_scc1 L_vr")
    def kv_wait(a):
        Ls, Lp = a.newlabel("Kw"), a.newlabel("Kp")
        Lc = a.newlabel("Kc")
        a(f"s_and_b32 s20, s{chain.S_STEP}, 7"); a(f"s_cbranch_scc1 {Ls}")
        a.label(Lc)
        a(f"s_lshr_b32 s20, s{chain.S_STEP}, 3"); a("s_lshl_b32 s20, s20, 10"); a("s_lshr_b32 s21, s26, 1"); a("s_lshl_b32 s21, s21, 6"); a("s_add_u32 s20, s20, s21")
        a(f"s_add_u32 s20, s20, {FL_QKV}"); a("s_mov_b32 s30, 0")
        a("s_mov_b32 s21, 0xffff"); a("s_movk_i32 s22, 0x404")
        a.label(Lp)
        a(f"buffer_load_dword v15, off, {sr(S_WS,4)}, s20 sc1")
        a("s_waitcnt vmcnt(0)")
        a("v_and_b32 v15, s21, v15")
        a("v_cmp_ne_u32 vcc, s22, v15")
        a(f"s_cbranch_vccz {Ls}")
        a("s_sleep 4")
        poll_tail(a, Lp, END)
        a.label(Ls)
    def step_addr(delta):
        a(f"s_lshl_b32 s20, s{chain.S_STEP}, 2"); a(f"s_add_u32 s20, s20, s{chain.S_X}"); a("s_lshl_b32 s20, s20, 7")
        a(f"s_add_u32 s20, s20, {FL_STEP + delta*512}")
    def step_done(a, kind):
        L = a.newlabel("Sd")
        if kind in ("A", "Alast"):
            if kind == "A" and SIGL: a(f"s_cmp_lt_u32 s{chain.S_STEP}, {SIGL}"); a(f"s_cbranch_scc1 {L}")
            a("s_waitcnt vmcnt(0)"); a("s_barrier")
            a(f"s_cmp_lg_u32 s{S_WAVE}, 0"); a(f"s_cbranch_scc1 {L}")
            step_addr(0); signal(a, 20, 2, S_WS, 60)
            if DBG:
                a(f"s_lshr_b32 s28, s{chain.S_STEP}, 4"); a("s_add_u32 s28, s28, 12"); a(f"s_cmp_eq_u32 s{chain.S_STEP}, 0"); a("s_cselect_b32 s28, 11, s28")
                a("s_mov_b32 s29, s25"); dbgmax(a, 28, 60); a("s_mov_b32 s25, s29")
        elif kind == "V3":
            L2 = a.newlabel("Sd")
            step_addr(0)
            if SIGL:
                a(f"s_sub_u32 s21, s{chain.S_STEP}, 1"); a(f"s_cmp_ge_u32 s21, {SIGL}"); a(f"s_cbranch_scc1 {L2}")
                a("s_sub_u32 s21, s20, 512"); signal(a, 21, 3, S_WS, 60)
                a.label(L2)
                a(f"s_cmp_lt_u32 s{chain.S_STEP}, {SIGL}"); a(f"s_cbranch_scc1 {L}")
            signal(a, 20, 2, S_WS, 61)
        elif kind == "Vlast":
            a("s_waitcnt vmcnt(0)"); a("s_barrier")
            a(f"s_cmp_lg_u32 s{S_WAVE}, 0"); a(f"s_cbranch_scc1 {L}")
            step_addr(0); signal(a, 20, 2, S_WS, 60)
        a.label(L)
    role_A(a, END, kv_wait, step_done)
    a("s_branch L_retire")
    a.label("L_vr")
    role_VR(a, END, step_done)
    a.label("L_retire")
    a("s_setprio 0")
    if WBL2:
        Lwb = a.newlabel("Wb")
        a(f"s_or_b32 s20, s{S_WAVE}, s{chain.S_R}"); a("s_cmp_lg_u32 s20, 0"); a(f"s_cbranch_scc1 {Lwb}")
        a("buffer_wbl2 sc1")
        a.label(Lwb)
    a(f"s_mov_b32 s{S_PH}, 2")
    load_ptrs(a)
    a(f"v_mbcnt_lo_u32_b32 v{V_LANE}, -1, 0"); a(f"v_mbcnt_hi_u32_b32 v{V_LANE}, -1, v{V_LANE}")
    a("s_waitcnt vmcnt(0) lgkmcnt(0)")
    a("s_barrier")
    load_srd(a, S_FL, 66, 0, WS_SIZE)
    a("s_branch L_worker")
    a.label(END)
    a("s_mov_b64 exec, -1")
    a(f"v_mov_b32 v4, 0x1fff"); a(f"v_mov_b32 v5, {LDS_SCR}")
    a("ds_write_b32 v5, v4")
    a("s_waitcnt lgkmcnt(0)")
    a("s_endpgm")
    a.label("L_worker0")
    load_srd(a, S_FL, 66, 0, WS_SIZE)
    worker_start(a, END)
    a.label("L_worker")
    a(f"s_mov_b32 s{S_PRE}, 0"); a(f"s_mov_b32 s{S_PVAL}, 0"); a(f"s_mov_b32 s{S_EPI}, 0")
    def run_epi(): a(f"s_call_b64 s[{S_RET}:{S_RET+1}], L_epi")
    def q1_index():
        L, L5 = a.newlabel("N"), a.newlabel("N")
        a(f"s_add_u32 s25, s25, s{S_T0}")
        a(f"s_cmp_eq_u32 s{S_B}, 5"); a(f"s_cbranch_scc1 {L5}")
        a(f"s_cmp_eq_u32 s{S_B}, 4"); a(f"s_cbranch_scc1 {L}")
        a("s_lshr_b32 s22, s25, 5"); a("s_and_b32 s25, s25, 31"); a("s_lshl_b32 s22, s22, 2"); a(f"s_add_u32 s22, s22, s{S_B}")
        a("s_lshl_b32 s22, s22, 5"); a("s_add_u32 s25, s25, s22")
        a.label(L)
        a(f"s_cmp_lt_u32 s25, {NQ1}"); a(f"s_cselect_b32 s25, s25, {NSM}"); a(f"s_cbranch_scc1 {L5}_e")
        a.label(L5)
        a(f"s_add_u32 s25, s25, {NQ1}"); a(f"s_cmp_lt_u32 s25, {NQ1+NSM}")
        a.label(f"{L5}_e")
    def publish_item():
        a("v_mov_b32 v14, s25"); a(f"v_mov_b32 v15, {LDS_SCR}")
        a("ds_write_b32 v15, v14")
    def flush():
        L, L2 = a.newlabel("Fl"), a.newlabel("Fl")
        run_epi()
        a(f"s_cmp_eq_u32 s{S_PVAL}, 0"); a(f"s_cbranch_scc1 {L}")
        finish(a, S_POFF, f"s{S_PVAL}")
        a(f"s_mov_b32 s{S_PVAL}, 0")
        a.label(L)
    def hook_first():
        L = a.newlabel("Hf")
        a(f"s_cmp_eq_u32 s{S_PVAL}, 0"); a(f"s_cbranch_scc1 {L}")
        a(f"s_mov_b32 s21, s{S_PVAL}"); a(f"s_mov_b32 s{S_PVAL}, 0")
        a(f"s_cmp_lg_u32 s{S_WAVE}, 0"); a(f"s_cbranch_scc1 {L}")
        signal(a, S_POFF, "s21", vtmp=14)
        a.label(L)
    def hook_tail():
        L = a.newlabel("Ht")
        a(f"s_cmp_lg_u32 s{S_WAVE}, 0"); a(f"s_cbranch_scc1 {L}")
        a("v_mov_b32 v14, 1")
        a("s_mov_b64 exec, 1")
        a(f"buffer_atomic_add v14, off, {sr(S_FL,4)}, s{S_CTR} sc0 sc1")
        a("s_mov_b64 exec, -1")
        a.label(L)
    def hook_tail_first():
        L = a.newlabel("Ht")
        a(f"s_cmp_lg_u32 s{S_WAVE}, 0"); a(f"s_cbranch_scc1 {L}")
        a(f"s_mov_b32 s25, s{S_LOOP}"); init_wait(a, END); a(f"s_mov_b32 s{S_LOOP}, s25")
        a.label(L)
        hook_tail()
    def after_main():
        L = a.newlabel("Am")
        wstamp(a, 2)
        a(f"s_cmp_lg_u32 s{S_WAVE}, 0"); a(f"s_cbranch_scc1 {L}")
        a("s_waitcnt vmcnt(0)")
        a("v_readfirstlane_b32 s25, v14")
        a("s_nop 3")
        q1_index()
        a(f"s_cselect_b32 s{S_PRE}, 1, 0"); a(f"s_cselect_b32 s{S_PH}, 1, 2")
        publish_item()
        a.label(L)
    HK = dict(hook_second=hook_first, hook_tail=hook_tail) if ROT else dict(hook_first=hook_first, hook_tail=hook_tail)
    Lft = a.newlabel("Ft")
    a(f"s_cmp_eq_u32 s{S_PH}, 2"); a(f"s_cbranch_scc1 {Lft}")
    a(f"s_cmp_lg_u32 s{S_WAVE}, 0"); a(f"s_cbranch_scc1 {Lft}")
    a(f"s_sub_u32 s25, s34, s{S_T0}")
    q1_index()
    publish_item()
    a(f"s_mov_b32 s{S_PRE}, 1")
    a.label(Lft)
    a.label("L_next")
    wstamp(a, 0)
    Lb, Lpub, L1, L2 = [a.newlabel("N") for _ in range(4)]
    a(f"s_cmp_lg_u32 s{S_WAVE}, 0"); a(f"s_cbranch_scc1 {Lb}")
    a(f"s_cmp_lg_u32 s{S_PRE}, 0"); a(f"s_mov_b32 s{S_PRE}, 0"); a(f"s_cbranch_scc1 {Lb}")
    a(f"s_cmp_eq_u32 s{S_PH}, 2"); a(f"s_cbranch_scc1 {L2}")
    a.label(L1)
    atomic_ret(a, 4, S_CTR, 1)
    a("v_readfirstlane_b32 s25, v4")
    a("s_nop 3")
    q1_index()
    a(f"s_cbranch_scc1 {Lpub}")
    a(f"s_mov_b32 s{S_PH}, 2")
    a.label(L2)
    a(f"s_mov_b32 s20, {FL_Q2G}")
    atomic_ret(a, 4, 20, 1)
    a("v_readfirstlane_b32 s25, v4")
    a("s_nop 3")
    a("s_min_u32 s25, s25, 0xfff"); a("s_add_u32 s25, s25, 0x1000")
    a.label(Lpub)
    publish_item()
    a.label(Lb)
    a("s_waitcnt lgkmcnt(0)")
    a("s_barrier")
    a(f"v_mov_b32 v5, {LDS_SCR}")
    a("ds_read_b32 v4, v5")
    a("s_waitcnt lgkmcnt(0)")
    a(f"v_readfirstlane_b32 s{S_ITEM}, v4")
    a("s_nop 3")
    a(f"s_cmp_ge_u32 s{S_ITEM}, 0x1000"); a(f"s_cbranch_scc1 L_qa")
    a(f"s_lshr_b32 s20, s{S_ITEM}, 3"); a(f"s_and_b32 s21, s{S_ITEM}, 7")
    base = 0
    for typ, p, c0, n in Q1:
        Ln = a.newlabel("D")
        a(f"s_cmp_ge_u32 s20, {base+n}"); a(f"s_cbranch_scc1 {Ln}")
        a(f"s_sub_u32 s20, s20, {base-c0}") if base >= c0 else a(f"s_add_u32 s20, s20, {c0-base}")
        if typ in ("DN", "W2", "W1"): a("s_mov_b32 s36, s20"); a("s_mov_b32 s37, s21")
        elif typ == "WR": a("s_lshl_b32 s37, s20, 3"); a("s_add_u32 s37, s37, s21")
        elif typ == "KS":
            a("s_lshr_b32 s38, s20, 3"); a("s_add_u32 s38, s38, 1"); a("s_and_b32 s37, s20, 7"); a("s_lshl_b32 s37, s37, 1")
            a("s_lshr_b32 s22, s21, 2"); a("s_add_u32 s37, s37, s22"); a("s_and_b32 s36, s21, 3")
        elif typ in ("K4", "G4"):
            a("s_and_b32 s36, s21, 3"); a(f"s_add_u32 s36, s36, {p}"); a("s_lshr_b32 s21, s21, 2"); a("s_lshl_b32 s37, s20, 1"); a("s_add_u32 s37, s37, s21")
            if typ == "K4": a("s_lshr_b32 s38, s37, 4"); a("s_add_u32 s38, s38, 1"); a("s_and_b32 s37, s37, 15")
        elif typ == "A8": a("s_lshl_b32 s20, s20, 3"); a("s_add_u32 s36, s20, s21")
        elif typ == "G8": a("s_mov_b32 s36, s21"); a("s_mov_b32 s37, s20")
        elif typ == "QA": pass
        elif typ == "K1":
            a("s_and_b32 s38, s20, 1"); a("s_add_u32 s38, s38, 1"); a("s_lshr_b32 s37, s20, 1"); a("s_lshl_b32 s37, s37, 3")
            a("s_add_u32 s37, s37, s21"); a("s_mov_b32 s36, 1")
        else:
            a(f"s_mov_b32 s36, {2*p}")
            if typ == "KV": a("s_and_b32 s38, s20, 1"); a("s_add_u32 s38, s38, 1"); a("s_lshr_b32 s20, s20, 1")
            if typ == "Q": a("s_mov_b32 s38, 0")
        a(f"s_branch L_{dict(KV='QKV', Q='QKV', K1='QKV2', K4='QKV2', G4='GU2', G8='GU2').get(typ, typ)}")
        a.label(Ln)
        base += n
    a(f"s_branch {END}")
    a.label("L_QA")
    a(f"s_cmp_eq_u32 s{S_B}, 4"); a(f"s_cselect_b32 s{S_PH}, 1, 2")
    a("s_barrier")
    a("s_branch L_next")
    def coords():
        a("s_and_b32 s22, s21, 1"); a("s_add_u32 s36, s36, s22")
        a("s_lshr_b32 s21, s21, 1"); a("s_lshl_b32 s37, s20, 2"); a("s_add_u32 s37, s37, s21")
    def done():
        if PROFW:
            wstamp(a, 3)
            a("s_waitcnt lgkmcnt(0)")
            for i in range(4): a(f"v_writelane_b32 v4, s{70+2*i}, {i}")
            a(f"v_writelane_b32 v4, s{S_ITEM}, 4"); a(f"v_writelane_b32 v4, s{S_B}, 5")
            for i in range(5): a(f"v_writelane_b32 v4, s{[24,6,52,54,80][i]}, {8+i}")
            a("s_lshl_b32 s20, s2, 5"); a("s_add_u32 s20, s20, s100"); a("s_lshl_b32 s20, s20, 6"); a(f"s_add_u32 s20, s20, {TSW_OFF}")
            a(f"v_lshlrev_b32 v5, 2, v{V_LANE}")
            a("s_mov_b64 exec, 0xffff")
            a(f"buffer_store_dword v4, v5, {sr(S_FL,4)}, s20 offen")
            a("s_mov_b64 exec, -1")
            a("s_add_u32 s100, s100, 1"); a("s_min_u32 s100, s100, 31")
        if DBG:
            a(f"s_lshr_b32 s26, s{S_ITEM}, 7"); a("s_add_u32 s26, s26, 1"); a(f"s_cmp_ge_u32 s{S_ITEM}, {NQ1}"); a("s_cselect_b32 s26, 9, s26")
            a(f"s_cmp_ge_u32 s{S_ITEM}, 0x1000"); a("s_cselect_b32 s26, 10, s26")
            dbgmax(a, 26)
        a("s_branch L_next")
    a.label("L_QKV")
    coords()
    a.label("L_QKV2")
    wstamp(a, 1)
    load_srd(a, S_SRDX, 66, XN_OFF, S*XN_STR)
    a("s_cmp_eq_u32 s38, 1"); a("s_cselect_b32 s34, s46, s44"); a("s_cselect_b32 s35, s47, s45")
    a("s_cmp_eq_u32 s38, 2"); a("s_cselect_b32 s34, s48, s34"); a("s_cselect_b32 s35, s49, s35")
    load_srd(a, S_SRDW, 34, 0, DM*4096*2)
    gq = Gemm16(a, "qk", XN_STR, 8192, "head", xflags="sc1") if M16 else Gemm(a, "qk", 4, 4, 2, XN_STR, 8192, "head", xflags="sc1")
    gv = Gemm16(a, "v", XN_STR, 8192, "head", swap=True, xflags="sc1") if M16 else Gemm(a, "v", 4, 4, 2, XN_STR, 8192, "head", swap=True, xflags="sc1")
    gq.setup()
    a(f"s_mul_i32 s{S_OFFX}, s36, {256*XN_STR}"); a(f"s_lshl_b32 s{S_OFFW}, s37, 9")
    assert K_OFF == Q_OFF + 16*MB and VT_OFF == Q_OFF + 32*MB
    gq.prologue_dma()
    run_epi()
    gq.junk = gv.junk = (LDS_SCR+1024, 13, [24, 28, 84][:NJUNK], 79) if NJUNK else None
    for r, p in ((24, 56), (28, 58), (84, 60)): load_srd(a, r, p, 0, DM*DF*2)
    a(f"s_sub_u32 s79, s{S_ITEM}, 128"); a("s_cmp_lt_u32 s79, 128")
    for r in (24, 28, 84): a(f"s_cselect_b32 s{r+2}, s{r+2}, 0")
    a("s_cselect_b32 s79, s79, 0")
    a("s_lshl_b32 s79, s79, 2"); a(f"s_add_u32 s79, s79, s{S_WAVE}"); a(f"s_mul_i32 s79, s79, {14*1024}")
    a(f"v_lshlrev_b32 v13, 4, v{V_LANE}")
    a("s_cmp_eq_u32 s38, 2"); a("s_cbranch_scc1 L_V")
    gq.main(16, dma_issued=True, **HK)
    a(f"s_mov_b32 s{S_EPI}, 1")
    a("s_branch L_QKVfin")
    a.label("L_V")
    gv.main(16, dma_issued=True, **HK)
    a(f"s_mov_b32 s{S_EPI}, 2")
    a.label("L_QKVfin")
    after_main()
    a("s_lshl_b32 s32, s36, 21"); a("s_lshl_b32 s33, s37, 14"); a("s_add_u32 s32, s32, s33")
    a("s_lshl_b32 s33, s38, 24"); a("s_add_u32 s32, s32, s33"); a(f"s_add_u32 s{S_EP0}, s32, {Q_OFF}")
    a("s_lshl_b32 s32, s36, 10"); a("s_lshl_b32 s33, s37, 6"); a("s_add_u32 s32, s32, s33"); a(f"s_add_u32 s32, s32, {FL_QKV}")
    a("s_add_u32 s33, s38, 2"); a("s_cmp_ge_u32 s33, 3"); a("s_cselect_b32 s34, 3, 0"); a("s_sub_u32 s33, s33, s34")
    a("s_lshl_b32 s33, s33, 3"); a(f"s_lshl_b32 s{S_PVAL}, 4, s33"); a(f"s_mov_b32 s{S_POFF}, s32")
    if not ROT: run_epi()
    done()
    gQ, gV = gq, gv
    a.label("L_KS")
    wstamp(a, 1)
    load_srd(a, S_SRDX, 66, XN_OFF, S*XN_STR)
    a("s_cmp_eq_u32 s38, 2"); a("s_cselect_b32 s34, s48, s46"); a("s_cselect_b32 s35, s49, s47")
    load_srd(a, S_SRDW, 34, 0, DM*4096*2)
    gq = Gemm(a, "ks", 1, 4, 3, XN_STR, 8192, "head", xflags="sc1")
    gv = Gemm(a, "vs", 1, 4, 3, XN_STR, 8192, "head", swap=True, xflags="sc1")
    gq.setup()
    a(f"s_mul_i32 s{S_OFFX}, s36, {64*XN_STR}"); a(f"s_lshl_b32 s{S_OFFW}, s37, 9")
    a("s_lshl_b32 s32, s36, 19"); a("s_lshl_b32 s33, s37, 14"); a("s_add_u32 s32, s32, s33")
    a("s_lshl_b32 s33, s38, 24"); a("s_add_u32 s32, s32, s33"); a(f"s_add_u32 s32, s32, {Q_OFF}")
    gq.prologue_dma()
    a("s_cmp_eq_u32 s38, 2"); a("s_cbranch_scc1 L_VS")
    gq.main(16, dma_issued=True, hook_tail=hook_tail_first)
    after_main()
    gq.epi_qk(S_FL, 32, "sc1")
    a("s_branch L_KSfin")
    a.label("L_VS")
    gv.main(16, dma_issued=True, hook_tail=hook_tail_first)
    after_main()
    gv.epi_v(S_FL, 32, "sc1")
    a.label("L_KSfin")
    a("s_lshl_b32 s32, s37, 6"); a(f"s_add_u32 s32, s32, {FL_QKV}")
    a("s_sub_u32 s33, s38, 1"); a("s_lshl_b32 s33, s33, 3"); a("s_lshl_b32 s33, 1, s33")
    finish(a, 32, "s33")
    done()
    a.label("L_GU")
    coords()
    a.label("L_GU2")
    wstamp(a, 1)
    g = Gemm16(a, "gu", XN_STR, DF*2, "gu", xflags="sc1") if M16 else Gemm(a, "gu", 4, 4, 2, XN_STR, DF*2, "gu", xflags="sc1")
    load_srd(a, S_SRDX, 66, XN_OFF, S*XN_STR)
    a(f"s_cmp_ge_u32 s{S_WAVE}, 2"); a("s_cselect_b32 s34, s58, s56"); a("s_cselect_b32 s35, s59, s57")
    load_srd(a, S_SRDW, 34, 0, DM*DF*2)
    g.setup()
    a(f"s_mul_i32 s{S_OFFX}, s36, {256*XN_STR}"); a(f"s_lshl_b32 s{S_OFFW}, s37, 8")
    g.prologue_dma()
    run_epi()
    if GJUNK:
        g.junk = (LDS_SCR+1024, 13, [24, 84], 79)
        load_srd(a, 24, 44, 0, DM*4096*2); load_srd(a, 84, 50, 0, DM*4096*2)
        a(f"s_sub_u32 s79, s{S_ITEM}, 256"); a("s_cmp_lt_u32 s79, 128"); a("s_cselect_b32 s86, s86, 0"); a("s_cselect_b32 s26, s26, 0"); a("s_cselect_b32 s79, s79, 0")
        a("s_lshl_b32 s79, s79, 2"); a(f"s_add_u32 s79, s79, s{S_WAVE}"); a("s_lshl_b32 s79, s79, 14")
        a(f"v_lshlrev_b32 v13, 4, v{V_LANE}")
        L2 = a.newlabel("Gj")
        a("s_cmp_eq_u32 s26, 0"); a(f"s_cbranch_scc1 {L2}")
        a(f"s_mov_b32 m0, {LDS_SCR+1024}")
        for k in range(2):
            for r in (24, 84): a(f"buffer_load_dwordx4 v13, {sr(r,4)}, s79 offen lds")
            a("s_add_u32 s79, s79, 1024")
        a.label(L2)
    g.main(16, dma_issued=True, **HK)
    after_main()
    a(f"s_mul_i32 s32, s36, {256*H_STR}"); a("s_lshl_b32 s33, s37, 10"); a("s_add_u32 s32, s32, s33"); a(f"s_add_u32 s{S_EP0}, s32, {H_OFF}")
    a(f"s_mov_b32 s{S_EPI}, 3")
    a(f"s_lshl_b32 s{S_POFF}, s36, 7"); a(f"s_add_u32 s{S_POFF}, s{S_POFF}, {FL_GU}"); a(f"s_mov_b32 s{S_PVAL}, 1")
    if not ROT: run_epi()
    done()
    a.label("L_epi")
    a(f"s_cmp_eq_u32 s{S_EPI}, 0"); a("s_cbranch_scc1 L_epi_ret")
    a(f"s_cmp_eq_u32 s{S_EPI}, 2"); a("s_cbranch_scc1 L_epi2")
    a(f"s_cmp_eq_u32 s{S_EPI}, 3"); a("s_cbranch_scc1 L_epi3")
    gQ.epi_qk(S_FL, S_EP0, "sc1")
    a("s_branch L_epi_end")
    a.label("L_epi2")
    gV.epi_v(S_FL, S_EP0, "sc1")
    a("s_branch L_epi_end")
    a.label("L_epi3")
    g.epi_gu(S_FL, S_EP0, "sc1")
    a.label("L_epi_end")
    a(f"s_mov_b32 s{S_EPI}, 0")
    a.label("L_epi_ret")
    a(f"s_setpc_b64 s[{S_RET}:{S_RET+1}]")
    a.label("L_DN")
    flush()
    a("s_lshl_b32 s32, s36, 7"); a(f"s_add_u32 s32, s32, {FL_GU}")
    wait_flags(a, lambda: a("v_mov_b32 v5, 0"), 32, 0xffffffff, 28, END, 1)
    wstamp(a, 1)
    g = Gemm16N(a, "dn", 4, 3, H_STR, 2048, xflags="sc1", wperm=M16) if N16 else Gemm(a, "dn", 4, 2, 3, H_STR, 2048, "plain", xflags="sc1", xr4=True, wperm=M16)
    load_srd(a, S_SRDX, 66, H_OFF, S*H_STR)
    load_srd(a, S_SRDW, 60, 0, DF*DM*2)
    g.setup()
    a(f"s_mul_i32 s{S_OFFX}, s36, {256*H_STR}"); a(f"s_lshl_b32 s{S_OFFW}, s37, 8")
    g.main(56, hook_tail=hook_tail)
    after_main()
    load_srd(a, 28, 66, BP_OFF, S*DM*2)
    a("s_lshl_b32 s32, s36, 19"); a("s_lshl_b32 s33, s37, 8")
    g.epi_plain(28, 32, 33, "sc1")
    a("s_lshl_b32 s32, s36, 3"); a("s_add_u32 s32, s32, s37"); a("s_lshl_b32 s32, s32, 6"); a(f"s_add_u32 s{S_POFF}, s32, {FL_DN}")
    a(f"s_mov_b32 s{S_PVAL}, 1")
    done()
    for nm, MT, NST in (("W2", 4, 3), ("W1", 2, 4)):
        a.label(f"L_{nm}")
        flush()
        sh = 0 if MT == 4 else 1
        a(f"s_lshl_b32 s32, s36, {8-sh}"); a(f"s_add_u32 s32, s32, {FL_AT}")
        if MT == 4: wait_flags(a, lambda: (a(f"v_and_b32 v5, 1, v{V_LANE}"), a("v_lshlrev_b32 v5, 7, v5")), 32, 0xffffffff, 128, END, 2)
        else: wait_flags(a, lambda: a("v_mov_b32 v5, 0"), 32, 0xffffffff, 128, END, 1)
        wstamp(a, 1)
        g = Gemm16N(a, nm, MT, NST, OA_STR, 2048, xflags="sc1") if (N16 and (MT == 4 or N16 > 1)) else Gemm(a, nm, MT, 2, NST, OA_STR, 2048, "plain", xflags="sc1", xr4=True, wperm=True)
        load_srd(a, S_SRDX, 66, OA_OFF, S*OA_STR)
        load_srd(a, S_SRDW, 50, 0, 4096*DM*2)
        g.setup()
        a(f"s_mul_i32 s{S_OFFX}, s36, {64*MT*OA_STR}"); a(f"s_lshl_b32 s{S_OFFW}, s37, 8")
        g.main(64, hook_tail=hook_tail)
        after_main()
        a(f"s_lshr_b32 s32, s36, {sh}"); a("s_lshl_b32 s32, s32, 3"); a("s_add_u32 s32, s32, s37"); a("s_lshl_b32 s32, s32, 6"); a(f"s_add_u32 s32, s32, {FL_DN}")
        wait_flags(a, lambda: a("v_mov_b32 v5, 0"), 32, 0xffffffff, 1, END, 1)
        load_srd(a, 28, 62, 0, S*DM*2)
        load_srd(a, S_SRDX, 40, 0, S*DM*2)
        load_srd(a, S_SRDW, 66, BP_OFF, S*DM*2)
        a(f"s_lshl_b32 s32, s36, {19-sh}"); a("s_lshl_b32 s33, s37, 8")
        g.epi_plain(28, 32, 33, OUTF, final=(S_SRDX, S_SRDW, "sc1"))
        done()
    a.label("L_WR")
    flush()
    wor_item(a, END)
    done()
    a.label("L_qa")
    flush()
    a(f"s_sub_u32 s20, s{S_ITEM}, 0x1000")
    a(f"s_cmp_ge_u32 s20, {NQA-QASKIP}"); a(f"s_cbranch_scc1 {END}")
    Lq = a.newlabel("Px")
    a("s_cmp_ge_u32 s20, 32"); a(f"s_cbranch_scc1 {Lq}")
    for i in range(4): a(f"v_mov_b32 v{4+i}, -1")
    a(f"v_lshlrev_b32 v3, 4, v{V_LANE}"); a("s_lshl_b32 s21, s20, 16"); a(f"s_lshl_b32 s22, s{S_WAVE}, 14"); a("s_add_u32 s21, s21, s22"); a(f"s_add_u32 s21, s21, {EX_OFF}")
    for i in range(16):
        a(f"buffer_store_dwordx4 v[4:7], v3, {sr(S_FL,4)}, s21 offen offset:{(i%4)*1024} sc1")
        if i % 4 == 3: a("s_add_u32 s21, s21, 4096")
    a(f"s_mov_b32 s36, {FL_EX}")
    wstamp(a, 1)
    finish(a, 36, 1)
    a(f"s_mov_b32 m0, {LDS_SCR+1024}"); a("s_lshl_b32 s21, s20, 2"); a(f"s_add_u32 s21, s21, s{S_WAVE}")
    for p, size in PFLIST:
        n = size//(128*1024)
        load_srd(a, 28, p, 0, size)
        a(f"s_mul_i32 s22, s21, {n*1024}"); a(f"s_mov_b32 s23, {n//4}")
        Ll = a.newlabel("Pf")
        a.label(Ll)
        for i in range(4): a(f"buffer_load_dwordx4 v3, s[28:31], s22 offen lds"); a("s_add_u32 s22, s22, 1024")
        a(f"s_waitcnt vmcnt({PFDEPTH})")
        a("s_sub_u32 s23, s23, 1"); a("s_cmp_lg_u32 s23, 0"); a(f"s_cbranch_scc1 {Ll}")
    wstamp(a, 2)
    done()
    a.label(Lq)
    a("s_sub_u32 s20, s20, 32")
    if QAORD:
        pos = 0; Lo = a.newlabel("Qo")
        for first, n in QAORD:
            Ln = a.newlabel("Qo")
            a(f"s_cmp_ge_u32 s20, {pos+n}"); a(f"s_cbranch_scc1 {Ln}")
            a(f"s_add_u32 s20, s20, {(first-pos) & 0xffffffff:#x}"); a(f"s_branch {Lo}")
            a.label(Ln)
            pos += n
        a.label(Lo)
        if not QASKIP: assert sorted(x for f, n in QAORD for x in range(f, f+n)) == list(range(pos))
    a(f"s_cmp_ge_u32 s20, {NBLK*16}"); a("s_cbranch_scc1 L_AT4")
    def attention(npair):
        sh = 0 if npair == 2 else 1
        a("s_lshr_b32 s32, s38, 3"); a("s_lshl_b32 s32, s32, 10"); a(f"s_lshr_b32 s34, s37, {sh}"); a("s_lshl_b32 s33, s34, 8")
        a("s_add_u32 s32, s32, s33"); a(f"s_add_u32 s32, s32, {FL_QKV}")
        wait_flags(a, lambda: (a(f"v_and_b32 v5, 3, v{V_LANE}"), a("v_lshlrev_b32 v5, 6, v5")), 32, 0xffffff, 0x40404, END, 4)
        a("s_lshl_b32 s32, s38, 2"); a("s_add_u32 s32, s32, s34"); a("s_lshl_b32 s32, s32, 7"); a(f"s_add_u32 s32, s32, {FL_STEP}")
        def w():
            if SLOW1:
                a("s_cmp_eq_u32 s38, 0"); a("s_cselect_b32 s33, 0, 512"); a("s_sub_u32 s33, s32, s33")
                wait_flags(a, lambda: a("v_mov_b32 v15, 0"), 33, 0xffffffff, 48, END, 1, 14, 15, SLOW1, barrier=False)
            wait_flags(a, lambda: a("v_mov_b32 v15, 0"), 32, 0xffffffff, 48, END, 1, 14, 15, FAST1)
            if PROFW: a("s_memrealtime s[84:85]")
        att_item(a, S_FL, 38, 37, "sc1", "sc1", npair, w, late=(npair == 1))
        if PROFW: a("s_waitcnt lgkmcnt(0)"); a("s_mov_b32 s72, s84"); a("s_mov_b32 s74, s84")
        finish(a, 36, 4*npair)
        done()
    a("s_branch L_AT8")
    a.label("L_A8")
    flush()
    a("s_mov_b32 s20, s36")
    a.label("L_AT8")
    a("s_lshr_b32 s38, s20, 2"); a("s_and_b32 s37, s20, 3")
    a("s_lshr_b32 s36, s20, 4"); a("s_lshl_b32 s36, s36, 7"); a(f"s_add_u32 s36, s36, {FL_AT}")
    attention(2)
    a.label("L_AT4")
    a(f"s_sub_u32 s20, s20, {NBLK*16}"); a("s_lshr_b32 s38, s20, 3"); a("s_and_b32 s37, s20, 7")
    a("s_lshl_b32 s36, s38, 7"); a("s_lshr_b32 s21, s37, 2"); a("s_lshl_b32 s21, s21, 6"); a("s_add_u32 s36, s36, s21")
    a(f"s_add_u32 s36, s36, {FL_ATS}"); a(f"s_add_u32 s38, s38, {4*NBLK}")
    attention(1)

def build(path, prof=False, profw=False, force_slow=False, header=""):
    global PROFW
    chain.PROF = prof; PROFW = profw
    a = Asm()
    if header: a.raw(header)
    a.raw("; @launch grid=(256,1,1) block=(256,1,1) lds=163840")
    a.raw('.amdgcn_target "amdgcn-amd-amdhsa--gfx950"')
    a.raw(".text")
    emit_mega(a, MAIN, force_slow)
    a.raw('.section .rodata,"a"')
    kernel_desc(a, MAIN, 512, 256)
    open(path, "w").write(a.text())

if __name__ == "__main__":
    build("parallel_sum__memory_aug_recurrent_mem_tr__glu_gated_geglu__prompt.s", header=open("header.txt").read())
    build("m1.s")
    build("m1_prof.s", prof=True, profw=True)
    L0, S0 = LISTS, SMALL
    H = open("header.txt").read()
    chain.FORCE_FALLBACK = True
    build("m1_fb.s")
```

```python
import sys
import mega, chain, gemm16
mods = dict(m=mega, c=chain, g=gemm16)
H = open("header.txt").read()
for spec in sys.argv[1:]:
    nm, _, kv = spec.partition(":"); old = []
    for x in filter(None, kv.split(";")):
        k, v = x.split("=", 1); mod, key = k.split(".")
        old.append((mods[mod], key, getattr(mods[mod], key))); setattr(mods[mod], key, eval(v))
    mega.build(f"t_{nm}.s", header=H)
    for mod, key, v in old: setattr(mod, key, v)
```

```python
from common import *

V_LANE = 1
V_DX = 16
V_DW = 24
V_RA = 32
V_FR = 64
V_T  = 128
S_SRDX = 8; S_SRDW = 12
S_OFFX = 16; S_OFFW = 17; S_M0X = 18; S_M0W = 19; S_LOOP = 20; S_WAVE = 3

KNOB = dict(nodma=False, noread=False, stagger=False, shift=0, m16=False, place=2)
class Gemm:
    def __init__(s, a, tag, MT, NT, NST, strX, strW, wmap, swap=False, xflags="", wflags="", xr4=False, wperm=False):
        s.a, s.tag, s.MT, s.NT, s.NST = a, tag, MT, NT, NST
        s.strX, s.strW, s.wmap, s.swap = strX, strW, wmap, swap
        s.xflags, s.wflags = xflags, wflags
        s.xr4, s.wperm = xr4, wperm
        s.wrap = None
        s.junk = None
        s.XS = 8192*MT; s.WS = 8192*NT; s.SS = s.XS + s.WS
        s.RB = 64*NT
        s.D = 2*MT + 2*NT
        assert NT in (2, 4) and s.SS*NST <= 160*1024

    def acc(s, mt, nt): return (mt*s.NT + nt)*16
    def fx(s, st, mt): return V_FR + st*32 + mt*4
    def fw(s, st, nt): return V_FR + st*32 + 16 + nt*4

    def setup(s):
        a = s.a; MT, NT = s.MT, s.NT; L = V_LANE
        if not s.xr4:
            a(f"v_lshrrev_b32 v3, 4, v{L}")
            a(f"v_and_b32 v4, 7, v{L}")
            a(f"v_xor_b32 v3, v3, v4")
            a(f"v_lshrrev_b32 v2, 3, v{L}")
            a(f"s_mul_i32 s21, s{S_WAVE}, {16*MT}")
            a(f"v_add_u32 v2, s21, v2")
            a(f"s_mov_b32 s22, {s.strX}")
            a(f"v_mul_lo_u32 v2, v2, s22")
            a(f"v_lshlrev_b32 v3, 4, v3")
            a(f"v_xor_b32 v4, 64, v3")
        else:
            a(f"v_lshrrev_b32 v2, 5, v{L}")
            a(f"v_and_b32 v3, 31, v{L}"); a("v_lshlrev_b32 v3, 4, v3"); a("v_lshlrev_b32 v4, 7, v2"); a("v_xor_b32 v3, v3, v4")
            a(f"s_mul_i32 s21, s{S_WAVE}, {4*MT}")
            a(f"v_add_u32 v2, s21, v2")
            a(f"s_mov_b32 s22, {4*s.strX}")
            a(f"v_mul_lo_u32 v2, v2, s22")
            a(f"v_xor_b32 v4, 16, v3")
        a(f"v_add_u32 v3, v2, v3"); a(f"v_add_u32 v4, v2, v4")
        for j in range(2*MT):
            a(f"v_add_u32 v{V_DX+j}, {8*j*s.strX}, v{3+(j&1)}")
        lpr = s.RB//16; rpi = 64//lpr; sh = {16: 4, 8: 3}[lpr]
        a(f"v_lshrrev_b32 v2, {sh}, v{L}")
        a(f"v_and_b32 v3, {lpr-1}, v{L}")
        if NT == 4: a(f"v_lshlrev_b32 v4, 2, v2")
        else:
            a(f"v_and_b32 v4, 2, v2"); a(f"v_lshlrev_b32 v4, 1, v4")
        a(f"v_xor_b32 v3, v3, v4")
        a(f"s_and_b32 s21, s{S_WAVE}, 1"); a(f"s_lshl_b32 s21, s21, 5")
        if s.wperm and rpi == 8:
            a(f"v_lshrrev_b32 v4, 2, v2"); a("v_lshlrev_b32 v4, 4, v4"); a("v_and_b32 v2, 3, v2"); a("v_add_u32 v2, v2, v4")
        a(f"v_add_u32 v2, s21, v2")
        a(f"s_mov_b32 s22, {s.strW}")
        a(f"v_mul_lo_u32 v2, v2, s22")
        a(f"s_lshr_b32 s23, s{S_WAVE}, 1")
        if s.wmap == "head":
            a(f"v_lshrrev_b32 v4, 3, v3"); a(f"v_lshlrev_b32 v4, 8, v4")
            a(f"v_and_b32 v3, 7, v3"); a(f"v_lshlrev_b32 v3, 4, v3")
            a(f"v_add_u32 v3, v3, v4")
            a(f"s_lshl_b32 s23, s23, 7")
            a(f"v_add_u32 v3, s23, v3")
        elif s.wmap == "plain":
            a(f"v_lshlrev_b32 v3, 4, v3")
            a(f"s_mul_i32 s23, s23, {s.RB}")
            a(f"v_add_u32 v3, s23, v3")
        else:
            a(f"v_lshlrev_b32 v3, 4, v3")
        a(f"v_add_u32 v2, v2, v3")
        for j in range(2*NT):
            if not s.wperm: row = rpi*j
            elif rpi == 8: row = 4*j
            else: row = 16*(j & 1) + 4*(j >> 1)
            a(f"v_add_u32 v{V_DW+j}, {row*s.strW}, v2")
        a(f"s_mul_i32 s{S_M0X}, s{S_WAVE}, {2048*MT}")
        a(f"s_mul_i32 s{S_M0W}, s{S_WAVE}, {2048*NT}")
        a(f"s_add_u32 s{S_M0W}, s{S_M0W}, {s.XS}")
        a(f"s_lshr_b32 s21, s{S_WAVE}, 1"); a(f"s_mul_i32 s21, s21, {32*MT}")
        if not s.xr4:
            a(f"v_and_b32 v2, 31, v{L}")
            a(f"v_lshrrev_b32 v3, 1, v2"); a(f"v_and_b32 v3, 7, v3")
            a(f"v_lshrrev_b32 v4, 5, v{L}")
            a(f"v_xor_b32 v3, v3, v4")
            a(f"v_add_u32 v2, s21, v2"); a(f"v_lshlrev_b32 v2, 7, v2")
            for ks in range(4):
                a(f"v_xor_b32 v4, {2*ks}, v3"); a(f"v_lshlrev_b32 v4, 4, v4")
                a(f"v_add_u32 v{V_RA+ks}, v2, v4")
        else:
            a(f"v_bfe_u32 v2, v{L}, 2, 3"); a("v_lshlrev_b32 v2, 9, v2"); a("s_lshl_b32 s21, s21, 7"); a("v_add_u32 v2, s21, v2")
            a(f"v_and_b32 v3, 3, v{L}"); a("v_lshl_add_u32 v2, v3, 5, v2")
            a(f"v_lshrrev_b32 v3, 5, v{L}"); a(f"v_bfe_u32 v4, v{L}, 3, 1"); a("v_xor_b32 v3, v3, v4"); a("v_lshl_add_u32 v2, v3, 4, v2")
            a(f"v_bfe_u32 v3, v{L}, 2, 1")
            for ks in range(4):
                a(f"v_xor_b32 v4, {ks}, v3"); a(f"v_lshl_add_u32 v{V_RA+ks}, v4, 7, v2")
        a(f"v_lshrrev_b32 v2, 5, v{L}"); a(f"v_lshlrev_b32 v2, 3, v2")
        a(f"v_bfe_u32 v3, v{L}, 2, 2")
        a(f"v_add_u32 v2, v2, v3")
        a(f"v_mul_u32_u24 v2, {s.RB}, v2")
        a(f"v_bfe_u32 v4, v{L}, 4, 1"); a(f"v_lshlrev_b32 v4, 5, v4"); a(f"v_add_u32 v2, v2, v4")
        a(f"v_and_b32 v4, 3, v{L}"); a(f"v_lshlrev_b32 v4, 3, v4"); a(f"v_add_u32 v2, v2, v4")
        a(f"v_add_u32 v2, {s.XS}, v2")
        a(f"s_and_b32 s21, s{S_WAVE}, 1")
        if NT == 4:
            a(f"s_lshl_b32 s21, s21, 1")
            for p in range(2):
                a(f"v_xor_b32 v4, s21, v3")
                if p: a(f"v_xor_b32 v4, 1, v4")
                a(f"v_lshlrev_b32 v4, 6, v4"); a(f"v_add_u32 v{V_RA+4+p}, v2, v4")
        else:
            a(f"v_lshrrev_b32 v4, 1, v3"); a(f"v_xor_b32 v4, s21, v4")
            a(f"v_lshlrev_b32 v4, 6, v4"); a(f"v_add_u32 v{V_RA+4}, v2, v4")
        for b in range(1, s.NST):
            for r in range(6 if NT == 4 else 5):
                a(f"v_add_u32 v{V_RA+6*b+r}, {b*s.SS}, v{V_RA+r}")

    def dma_groups(s, buf):
        g = []
        for j in range(2*s.MT):
            g.append([f"s_add_u32 m0, s{S_M0X}, {buf*s.SS + 1024*j}", None,
                      f"buffer_load_dwordx4 v{V_DX+j}, {sr(S_SRDX,4)}, s{S_OFFX} offen {s.xflags} lds"])
        for j in range(2*s.NT):
            g.append([f"s_add_u32 m0, s{S_M0W}, {buf*s.SS + 1024*j}", None,
                      f"buffer_load_dwordx4 v{V_DW+j}, {sr(S_SRDW,4)}, s{S_OFFW} offen {s.wflags} lds"])
        x, w = g[:2*s.MT], g[2*s.MT:]
        out = []
        for i in range(max(len(x), len(w))):
            if i < len(x): out.append(x[i])
            if i < len(w): out.append(w[i])
        return out
    def advance(s):
        if s.wrap:
            r = s.wrap
            return [f"s_sub_u32 s{r}, s{r}, 1", f"s_cmp_eq_u32 s{r}, 0", f"s_cselect_b32 s{r+1}, {(128-2048) & 0xffffffff:#x}, s{r+3}",
                    f"s_mov_b32 s{r+2}, {64*s.strW}", f"s_cselect_b32 s{r+2}, {(64*s.strW-1024*s.strW) & 0xffffffff:#x}, s{r+2}",
                    f"s_add_u32 s{S_OFFX}, s{S_OFFX}, s{r+1}", f"s_add_u32 s{S_OFFW}, s{S_OFFW}, s{r+2}"]
        return [f"s_add_u32 s{S_OFFX}, s{S_OFFX}, {512 if s.xr4 else 128}", f"s_add_u32 s{S_OFFW}, s{S_OFFW}, {64*s.strW}"]
    def reads(s, buf, ks, st):
        r = []
        ra = V_RA + 6*buf
        xs = [f"ds_read_b128 {vr(s.fx(st,mt),4)}, v{ra+ks} offset:{mt*4096}" for mt in range(s.MT)]
        ws = []
        for nt in range(s.NT):
            half = nt // (s.NT//2); p = (nt % 2) if s.NT == 4 else 0
            for q in range(2):
                off = half*(s.WS//2) + (16*ks + 4*q)*s.RB
                ws.append(f"ds_read_b64_tr_b16 {vr(s.fw(st,nt)+2*q,2)}, v{ra+4+p} offset:{off}")
        r += ws[0:2] + xs[0:1]
        xi, wi = 1, 2
        while xi < len(xs) or wi < len(ws):
            if xi < len(xs): r.append(xs[xi]); xi += 1
            if wi < len(ws): r += ws[wi:wi+2]; wi += 2
        return r
    def mfmas(s, st, zero=False):
        m = []
        for nt in range(s.NT):
            for mt in range(s.MT):
                c = s.acc(mt, nt)
                A, B = vr(s.fw(st,nt),4), vr(s.fx(st,mt),4)
                if s.swap: A, B = B, A
                if KNOB['m16']:
                    st2 = 4*(st & 1)*2
                    m.append(f"v_mfma_f32_16x16x32_bf16 {ar(c+st2,4)}, {A}, {B}, {'0' if zero else ar(c+st2,4)}")
                    m.append(f"v_mfma_f32_16x16x32_bf16 {ar(c+st2+4,4)}, {B}, {A}, {'0' if zero else ar(c+st2+4,4)}")
                else:
                    m.append(f"v_mfma_f32_32x32x16_bf16 {ar(c,16)}, {A}, {B}, {'0' if zero else ar(c,16)}")
        return m

    def kstep(s, st, reads, dmas, zero=False, tail=None, pre=None):
        a = s.a
        m = s.mfmas(st, zero); n = len(m)
        gaps = [[] for _ in range(n)]
        ngap = n if tail is None else max(1, n - max(1, n//4))
        rg = max(1, min(ngap, len(reads))) if tail is None else max(1, min(ngap - (1 if ngap > 2 else 0), len(reads)))
        if n >= 16: rg = min(rg, 12 if tail is None else 8)
        pl = KNOB['place'] if n >= 16 else 0
        if KNOB['nodma']: dmas = []
        if KNOB['noread']: reads = []
        if KNOB['m16']:
            for i, g in enumerate(dmas): gaps[2*i+1].append(g)
            o = 2*len(dmas)
            for i, r in enumerate(reads): gaps[o + i].append(r)
        elif pl == 0:
            for i, r in enumerate(reads): gaps[i*rg//len(reads)].append(r)
            for i, g in enumerate(dmas): gaps[(2*i+1)*ngap//(2*len(dmas))].append(g)
        elif pl == 1:
            for i, r in enumerate(reads): gaps[i//2].append(r)
            for i, g in enumerate(dmas): gaps[6 + (i*10)//len(dmas) + (1 if len(dmas) <= 5 else 0)].append(g)
        elif pl == 2:
            if dmas:
                for i, g in enumerate(dmas): gaps[i].append(g)
                for i, r in enumerate(reads): gaps[len(dmas) + i//2 + (0 if len(dmas) > 5 else 1)].append(r)
            else:
                for i, r in enumerate(reads): gaps[i*rg//len(reads)].append(r)
        elif pl == 3:
            if dmas:
                for i, r in enumerate(reads): gaps[2*(i//2)].append(r)
                for i, g in enumerate(dmas): gaps[2*i+1 + (2 if len(dmas) <= 5 else 0)].append(g)
            else:
                for i, r in enumerate(reads): gaps[i*rg//len(reads)].append(r)
        a("s_waitcnt lgkmcnt(0)")
        if pre:
            for x in pre: a(x)
        early = False
        for i in range(n):
            if tail is not None and i == ngap:
                for x in tail: a(x)
            a(m[i])
            grp = [x for x in gaps[i] if isinstance(x, list)]
            rds = [x for x in gaps[i] if not isinstance(x, list)]
            for gi, g in enumerate(grp):
                if not (gi == 0 and early):
                    a(g[0])
                    if rds: a(rds.pop(0))
                    else: a("s_nop 0")
                a(g[2])
            for r in rds: a(r)
            nx = [x for x in gaps[i+1] if isinstance(x, list)] if i+1 < n else []
            early = bool(nx) and KNOB['place'] > 0 and not (tail is not None and i+1 == ngap)
            if early: a(nx[0][0])

    def issue_stage(s, buf):
        a = s.a
        for g in s.dma_groups(buf):
            a(g[0]); a("s_nop 0"); a(g[2])
        for x in s.advance(): a(x)

    def phase(s, bcur, dma, vm, last_barrier=True):
        bn = (bcur+1) % s.NST
        d = s.dma_groups(bcur) if dma else []
        k = (len(d)+2)//3
        parts = [d[0:k], d[k:2*k], d[2*k:]]
        nj = 0
        if dma and s.junk:
            m0, v, srds, so = s.junk; nj = len(srds)
            parts[2] = parts[2] + [[f"s_mov_b32 m0, {m0}", None, f"buffer_load_dwordx4 v{v}, {sr(r,4)}, s{so} offen lds"] for r in srds]
        s.kstep(1, s.reads(bn, 0, 0), parts[0])
        s.kstep(0, s.reads(bn, 1, 1), parts[1])
        s.kstep(1, s.reads(bn, 2, 0), parts[2])
        tail = []
        if vm is not None: tail.append(f"s_waitcnt vmcnt({vm+nj}) lgkmcnt(0)")
        else: tail.append("s_waitcnt lgkmcnt(0)")
        if last_barrier: tail.append("s_barrier")
        pre = s.advance() if dma else None
        if nj: pre.append(f"s_add_u32 s{s.junk[3]}, s{s.junk[3]}, 1024")
        s.kstep(0, s.reads(bn, 3, 1), [], tail=tail, pre=pre)

    def prologue_dma(s):
        for b in range(s.NST): s.issue_stage(b)

    def main(s, T, dma_issued=False, extra_vm=0, hook_first=None, hook_tail=None, hook_second=None):
        a = s.a; N = s.NST; D = s.D
        assert T >= 2*N
        rem = (T - N) % N
        if not dma_issued: s.prologue_dma()
        a(f"s_waitcnt vmcnt({min(63,(N-1)*D + extra_vm)})")
        a("s_barrier")
        for r in s.reads(0, 0, 0): a(r)
        if hook_first: hook_first()
        s.kstep(0, s.reads(0, 1, 1), [], zero=True)
        s.kstep(1, s.reads(0, 2, 0), [])
        s.kstep(0, s.reads(0, 3, 1), [], tail=[f"s_waitcnt vmcnt({min(63,(N-2)*D + extra_vm)}) lgkmcnt(0)", "s_barrier"])
        if hook_second: hook_second()
        a(f"s_mov_b32 s{S_LOOP}, {(T-N)//N}")
        ncopy = 3 if KNOB['stagger'] else 1
        Ls = [a.newlabel(f"G{s.tag}") for _ in range(ncopy)]
        Le = a.newlabel(f"GE{s.tag}")
        if ncopy > 1:
            a(f"s_cmp_eq_u32 s{S_WAVE}, 1"); a(f"s_cbranch_scc1 {Ls[1]}")
            a(f"s_cmp_eq_u32 s{S_WAVE}, 2"); a(f"s_cbranch_scc1 {Ls[2]}")
            a(f"s_cmp_eq_u32 s{S_WAVE}, 3"); a(f"s_cbranch_scc1 {Ls[1]}")
        for c in range(ncopy):
            s.shift = c
            a.label(Ls[c])
            for b in range(N):
                s.phase(b, True, (N-2)*D)
            a(f"s_sub_u32 s{S_LOOP}, s{S_LOOP}, 1")
            a(f"s_cmp_lg_u32 s{S_LOOP}, 0")
            a(f"s_cbranch_scc1 {Ls[c]}")
            if c < ncopy-1: a(f"s_branch {Le}")
        a.label(Le)
        for b in range(rem): s.phase(b, True, (N-2)*D)
        for i in range(N-1):
            p = T-N+i
            if p+2 <= T-1: s.phase((rem+i) % N, False, (T-1-(p+2))*D)
            else:
                if hook_tail: hook_tail()
                s.phase((rem+i) % N, False, None)
        s.kstep(1, [], [])

    def accread(s, dst, src):
        s.a(f"v_accvgpr_read_b32 v{dst}, a{src}")

    def epi_qk(s, srd, s_base, flags=""):
        a = s.a; L = V_LANE; T = V_T
        a("s_nop 15")
        a(f"v_bfe_u32 v2, v{L}, 4, 1"); a("v_lshlrev_b32 v2, 12, v2")
        a(f"v_and_b32 v3, 15, v{L}"); a("v_lshl_add_u32 v2, v3, 4, v2")
        a(f"v_lshrrev_b32 v3, 5, v{L}"); a("v_lshl_add_u32 v2, v3, 8, v2")
        a(f"s_lshr_b32 s21, s{S_WAVE}, 1"); a(f"s_mul_i32 s21, s21, {s.MT*32*8192}")
        a(f"s_and_b32 s22, s{S_WAVE}, 1"); a("s_lshl_b32 s22, s22, 13"); a("s_add_u32 s21, s21, s22")
        a(f"s_add_u32 s21, s21, s{s_base}")
        k = 0
        for mt in range(s.MT):
            for t in range(2):
                for q in range(4):
                    R = T + (k % 4)*12; k += 1
                    for i in range(4): s.accread(R+4+i, s.acc(mt,t)+4*q+i)
                    for i in range(4): s.accread(R+8+i, s.acc(mt,t+2)+4*q+i)
                    for i in range(4): a(f"v_cvt_pk_bf16_f32 v{R+i}, v{R+4+2*i}, v{R+5+2*i}")
                    a(f"buffer_store_dwordx4 {vr(R,4)}, v2, {sr(srd,4)}, s21 offen offset:{512*(4*t+q)} {flags}")
            if mt < s.MT-1: a(f"s_add_u32 s21, s21, {32*8192}")

    def epi_v(s, srd, s_base, flags=""):
        a = s.a; L = V_LANE; T = V_T
        a("s_nop 15")
        a(f"v_bfe_u32 v2, v{L}, 4, 1"); a("v_lshlrev_b32 v2, 10, v2")
        a(f"v_and_b32 v3, 15, v{L}"); a("v_lshl_add_u32 v2, v3, 4, v2")
        a(f"v_lshrrev_b32 v3, 5, v{L}"); a("v_lshl_add_u32 v2, v3, 8, v2")
        a("v_add_u32 v3, 4096, v2")
        a(f"s_lshr_b32 s21, s{S_WAVE}, 1"); a(f"s_mul_i32 s21, s21, {s.MT*32*8192}")
        a(f"s_and_b32 s22, s{S_WAVE}, 1"); a("s_lshl_b32 s22, s22, 13"); a("s_add_u32 s21, s21, s22")
        a(f"s_add_u32 s21, s21, s{s_base}")
        k = 0
        for mt in range(s.MT):
            for nt in range(4):
                for qp in range(2):
                    R = T + (k % 4)*12; k += 1
                    for i in range(4): s.accread(R+4+i, s.acc(mt,nt)+4*qp+i)
                    for i in range(4): s.accread(R+8+i, s.acc(mt,nt)+8+4*qp+i)
                    for i in range(4): a(f"v_cvt_pk_bf16_f32 v{R+i}, v{R+4+2*i}, v{R+5+2*i}")
                    a(f"buffer_store_dwordx4 {vr(R,4)}, v{2+(nt>>1)}, {sr(srd,4)}, s21 offen offset:{(nt&1)*2048+512*qp} {flags}")
            if mt < s.MT-1: a(f"s_add_u32 s21, s21, {32*8192}")

    def row_voffset(s, stride, wn_bytes, r4, dst=2):
        a = s.a; L = V_LANE; d = dst
        a(f"s_lshr_b32 s21, s{S_WAVE}, 1"); a(f"s_mul_i32 s21, s21, {32*s.MT*stride}")
        a(f"s_and_b32 s22, s{S_WAVE}, 1"); a(f"s_mul_i32 s22, s22, {wn_bytes*(4 if r4 else 1)}")
        a("s_add_u32 s21, s21, s22")
        if r4:
            a(f"v_bfe_u32 v{d}, v{L}, 2, 3"); a(f"s_mov_b32 s22, {4*stride}"); a(f"v_mul_lo_u32 v{d}, v{d}, s22")
            a(f"v_and_b32 v3, 3, v{L}"); a("v_lshlrev_b32 v3, 5, v3"); a(f"v_add_u32 v{d}, v{d}, v3")
        else:
            a(f"v_and_b32 v{d}, 31, v{L}"); a(f"s_mov_b32 s22, {stride}"); a(f"v_mul_lo_u32 v{d}, v{d}, s22")
        a(f"v_lshrrev_b32 v3, 5, v{L}"); a("v_lshlrev_b32 v3, 4, v3"); a(f"v_add_u32 v{d}, v{d}, v3")
        a(f"v_add_u32 v{d}, s21, v{d}")

    def epi_gu(s, srd, s_base, flags=""):
        import math
        a = s.a; T = V_T
        a("s_nop 15")
        s.row_voffset(H_STR, 128, True)
        c0 = -2.0*math.sqrt(2.0/math.pi)*math.log2(math.e); c1 = c0*0.044715
        a(f"v_mov_b32 v4, {f2u(c0):#x}"); a(f"v_mov_b32 v5, {f2u(c0):#x}")
        a(f"v_mov_b32 v6, {f2u(c1):#x}"); a(f"v_mov_b32 v7, {f2u(c1):#x}")
        a("v_mov_b32 v8, 1.0"); a("v_mov_b32 v9, 1.0")
        a(f"s_mov_b32 s21, s{s_base}")
        k = 0
        for mt in range(s.MT):
            for t in range(2):
                for qq in range(2):
                    R = T + (k % 2)*40; k += 1
                    G, U, P, O = R, R+8, R+16, R+32
                    for i in range(8): s.accread(G+i, s.acc(mt,t)+8*qq+i)
                    for i in range(8): s.accread(U+i, s.acc(mt,t+2)+8*qq+i)
                    for i in range(0, 8, 2): a(f"v_pk_mul_f32 {vr(P+i,2)}, {vr(G+i,2)}, {vr(G+i,2)}")
                    for i in range(0, 8, 2): a(f"v_pk_fma_f32 {vr(P+i,2)}, {vr(P+i,2)}, v[6:7], v[4:5]")
                    for i in range(0, 8, 2): a(f"v_pk_mul_f32 {vr(P+i,2)}, {vr(P+i,2)}, {vr(G+i,2)}")
                    for i in range(8): a(f"v_exp_f32 v{P+i}, v{P+i}")
                    for i in range(0, 8, 2): a(f"v_pk_mul_f32 {vr(G+i,2)}, {vr(G+i,2)}, {vr(U+i,2)}")
                    for i in range(0, 8, 2): a(f"v_pk_add_f32 {vr(P+i,2)}, {vr(P+i,2)}, v[8:9]")
                    for i in range(8): a(f"v_rcp_f32 v{P+i}, v{P+i}")
                    a("s_nop 0")
                    for i in range(0, 8, 2): a(f"v_pk_mul_f32 {vr(G+i,2)}, {vr(G+i,2)}, {vr(P+i,2)}")
                    for i in range(4): a(f"v_cvt_pk_bf16_f32 v{O+i}, v{G+2*i}, v{G+2*i+1}")
                    a("s_nop 1")
                    a(f"v_permlane32_swap_b32 v{O}, v{O+2}")
                    a(f"v_permlane32_swap_b32 v{O+1}, v{O+3}")
                    a(f"buffer_store_dwordx4 {vr(O,4)}, v2, {sr(srd,4)}, s21 offen offset:{4*(64*t+32*qq)} {flags}")
            if mt < s.MT-1: a(f"s_add_u32 s21, s21, {32*H_STR}")

    def epi_plain(s, srd, s_row0, s_col0, flags="", final=None):
        a = s.a; T = V_T; NT = s.NT
        s.row_voffset(2048, 32*NT, True, 10)
        if final: s.row_voffset(2048, 32*NT, False, 2)
        groups = []
        for mt in range(s.MT):
            for nt in range(NT):
                for qq in range(2):
                    off = (nt//(NT//2))*64*NT + (nt % (NT//2))*64 + 32*qq
                    groups.append((mt, nt, qq, off))
        def srow(mt): return 84 + mt
        def srow4(mt): return 88 + mt
        a(f"s_lshl_b32 s21, s{s_col0}, 2"); a(f"s_add_u32 s21, s21, s{s_row0}")
        a(f"s_add_u32 s22, s{s_col0}, s{s_row0}")
        for mt in range(s.MT):
            a(f"s_add_u32 s{srow(mt)}, s22, {mt*32*2048}")
            a(f"s_add_u32 s{srow4(mt)}, s21, {mt*32*2048}")
        LD = T + 32
        NB = 12
        def issue(i):
            mt, nt, qq, off = groups[i]
            Rr = LD + (i % NB)*8
            a(f"buffer_load_dwordx4 {vr(Rr,4)}, v2, {sr(final[0],4)}, s{srow(mt)} offen offset:{off}")
            a(f"buffer_load_dwordx4 {vr(Rr+4,4)}, v10, {sr(final[1],4)}, s{srow4(mt)} offen offset:{4*off} {final[2]}")
        if final:
            for i in range(min(NB-1, len(groups))): issue(i)
        a("s_nop 15")
        for gi, (mt, nt, qq, off) in enumerate(groups):
            R = T + (gi % 2)*16
            G, O = R, R+8
            for i in range(8): s.accread(G+i, s.acc(mt,nt)+8*qq+i)
            for i in range(4): a(f"v_cvt_pk_bf16_f32 v{O+i}, v{G+2*i}, v{G+2*i+1}")
            a("s_nop 1")
            a(f"v_permlane32_swap_b32 v{O}, v{O+2}")
            a(f"v_permlane32_swap_b32 v{O+1}, v{O+3}")
            if final:
                nxt = gi + NB - 1
                if nxt < len(groups): issue(nxt)
                lo = 2*(min(nxt, len(groups)-1) - gi)
                a(f"s_waitcnt vmcnt({lo})")
                X = LD + (gi % NB)*8
                for i in range(4):
                    a(f"v_lshlrev_b32 v{G}, 16, v{O+i}"); a(f"v_and_b32 v{G+1}, 0xffff0000, v{O+i}")
                    a(f"v_lshlrev_b32 v{G+2}, 16, v{X+i}"); a(f"v_and_b32 v{G+3}, 0xffff0000, v{X+i}")
                    a(f"v_pk_add_f32 {vr(G,2)}, {vr(G,2)}, {vr(G+2,2)}")
                    a(f"v_cvt_pk_bf16_f32 v{G+4}, v{G}, v{G+1}")
                    a(f"v_lshlrev_b32 v{G}, 16, v{G+4}"); a(f"v_and_b32 v{G+1}, 0xffff0000, v{G+4}")
                    a(f"v_lshlrev_b32 v{G+2}, 16, v{X+4+i}"); a(f"v_and_b32 v{G+3}, 0xffff0000, v{X+4+i}")
                    a(f"v_pk_add_f32 {vr(G,2)}, {vr(G,2)}, {vr(G+2,2)}")
                    a(f"v_cvt_pk_bf16_f32 v{O+i}, v{G}, v{G+1}")
                a(f"buffer_store_dwordx4 {vr(O,4)}, v2, {sr(srd,4)}, s{srow(mt)} offen offset:{off} {flags}")
            else:
                a(f"buffer_store_dwordx4 {vr(O,4)}, v10, {sr(srd,4)}, s{srow4(mt)} offen offset:{4*off} {flags}")
```

```python
from common import *

def emit_ln_row(a, srd_x, srd_xn, s_row, vb, store_flags="", preloaded=None, vm=0):
    L = vb; X = vb+2; F = vb+12; T = vb+30
    assert X % 2 == 0
    st = s_row+1
    if preloaded is None:
        a(f"s_lshl_b32 s{st}, s{s_row}, 11")
        a(f"buffer_load_dwordx4 {vr(X,4)}, v{L}, {sr(srd_x,4)}, s{st} offen")
        a(f"buffer_load_dwordx4 {vr(X+4,4)}, v{L}, {sr(srd_x,4)}, s{st} offen offset:1024")
    else: X = preloaded
    a(f"s_waitcnt vmcnt({vm})")
    for i in range(8):
        a(f"v_lshlrev_b32 v{F+2*i}, 16, v{X+i}")
        a(f"v_and_b32 v{F+2*i+1}, 0xffff0000, v{X+i}")
    a(f"v_add_f32 v{T}, v{F}, v{F+1}")
    for i in range(2, 16): a(f"v_add_f32 v{T}, v{T}, v{F+i}")
    wave_reduce(a, "v_add_f32", T, T+1)
    a(f"v_mul_f32 v{T}, {f2u(1/1024):#x}, v{T}")
    a(f"v_sub_f32 v{T+2}, v{F}, v{T}")
    a(f"v_mul_f32 v{T+3}, v{T+2}, v{T+2}")
    for i in range(1, 16):
        a(f"v_sub_f32 v{T+2}, v{F+i}, v{T}")
        a(f"v_fmac_f32 v{T+3}, v{T+2}, v{T+2}")
    wave_reduce(a, "v_add_f32", T+3, T+1)
    a(f"v_mul_f32 v{T+3}, {f2u(1/1024):#x}, v{T+3}")
    round_bf16(a, T, T)
    round_bf16(a, T+3, T+3)
    a(f"v_add_f32 v{T+3}, {f2u(1e-5):#x}, v{T+3}")
    round_bf16(a, T+3, T+3)
    a(f"v_sqrt_f32 v{T+3}, v{T+3}")
    a("s_nop 0")
    round_bf16(a, T+3, T+3)
    a(f"v_rcp_f32 v{T+4}, v{T+3}")
    for i in range(8):
        a(f"v_sub_f32 v{F+2*i}, v{F+2*i}, v{T}")
        a(f"v_sub_f32 v{F+2*i+1}, v{F+2*i+1}, v{T}")
        a(f"v_cvt_pk_bf16_f32 v{X+i}, v{F+2*i}, v{F+2*i+1}")
        a(f"v_lshlrev_b32 v{F+2*i}, 16, v{X+i}")
        a(f"v_and_b32 v{F+2*i+1}, 0xffff0000, v{X+i}")
        for j in (0, 1):
            f = F+2*i+j
            a(f"v_mul_f32 v{T+5+j}, v{f}, v{T+4}")
            a(f"v_fma_f32 v{f}, -v{T+5+j}, v{T+3}, v{f}")
            a(f"v_fma_f32 v{T+5+j}, v{f}, v{T+4}, v{T+5+j}")
        a(f"v_cvt_pk_bf16_f32 v{X+i}, v{T+5}, v{T+6}")
    a(f"s_mul_i32 s{st}, s{s_row}, {XN_STR}")
    a(f"buffer_store_dwordx4 {vr(X,4)}, v{L}, {sr(srd_xn,4)}, s{st} offen {store_flags}")
    a(f"buffer_store_dwordx4 {vr(X+4,4)}, v{L}, {sr(srd_xn,4)}, s{st} offen offset:1024 {store_flags}")

def emit_ln_kernel(a, name):
    kernel_header(a, name)
    a("s_cmp_ge_u32 s2, 512"); a(f"s_cbranch_scc1 {name}_end")
    a(f"s_load_dwordx2 s[4:5], s[0:1], {KA_X}")
    a(f"s_load_dwordx2 s[6:7], s[0:1], {KA_WS}")
    a("v_lshrrev_b32 v1, 6, v0")
    a("v_and_b32 v2, 63, v0")
    a("v_readfirstlane_b32 s3, v1")
    a("v_lshlrev_b32 v2, 4, v2")
    a("s_waitcnt lgkmcnt(0)")
    load_srd(a, 8, 4, 0, S*DM*2)
    load_srd(a, 12, 6, XN_OFF, S*XN_STR)
    a("s_lshl_b32 s16, s2, 2"); a("s_add_u32 s16, s16, s3")
    emit_ln_row(a, 8, 12, 16, 2)
    a.label(f"{name}_end")
    a("s_endpgm")

NPOIS = (CH_END - CH_BASE)//65536 - 1
PRE_GRID = 512 + 64 + NPOIS + 1
def emit_pre_kernel(a, name):
    kernel_header(a, name)
    a(f"s_cmp_ge_u32 s2, {PRE_GRID}"); a(f"s_cbranch_scc1 {name}_end")
    a(f"s_load_dwordx4 s[4:7], s[0:1], {KA_X}")
    a(f"s_load_dwordx2 s[20:21], s[0:1], {KA_WS}")
    a("v_lshrrev_b32 v1, 6, v0")
    a("v_and_b32 v2, 63, v0")
    a("v_readfirstlane_b32 s3, v1")
    a("v_lshlrev_b32 v2, 4, v2")
    a("s_waitcnt lgkmcnt(0)")
    a(f"s_cmp_ge_u32 s2, 576"); a(f"s_cbranch_scc1 {name}_fill")
    a(f"s_cmp_ge_u32 s2, 512"); a(f"s_cbranch_scc1 {name}_mem")
    load_srd(a, 8, 4, 0, S*DM*2)
    load_srd(a, 12, 20, XN_OFF, S*XN_STR)
    a("s_lshl_b32 s16, s2, 2"); a("s_add_u32 s16, s16, s3")
    emit_ln_row(a, 8, 12, 16, 2)
    a("s_endpgm")
    a.label(f"{name}_mem")
    load_srd(a, 8, 6, 0, 8*DM*2)
    load_srd(a, 12, 20, CH_MEM, 65536)
    a("s_sub_u32 s16, s2, 512"); a("s_and_b32 s17, s16, 15"); a("s_lshl_b32 s17, s17, 7")
    a("v_bfe_u32 v1, v0, 2, 3"); a("v_lshlrev_b32 v1, 11, v1")
    a("v_lshrrev_b32 v2, 6, v0"); a("v_lshl_add_u32 v1, v2, 5, v1")
    a("v_and_b32 v2, 3, v0"); a("v_lshl_add_u32 v1, v2, 3, v1")
    a("v_bfe_u32 v2, v0, 5, 1"); a("v_lshl_add_u32 v1, v2, 2, v1")
    a("buffer_load_dword v3, v1, s[8:11], s17 offen")
    a("v_lshlrev_b32 v2, 2, v0"); a("s_lshl_b32 s16, s16, 10")
    a("s_waitcnt vmcnt(0)")
    a("buffer_store_dword v3, v2, s[12:15], s16 offen")
    a("s_endpgm")
    a.label(f"{name}_fill")
    load_srd(a, 12, 20, 0, WS_SIZE)
    a("s_sub_u32 s16, s2, 576"); a(f"s_cmp_ge_u32 s16, {NCOPY*16}"); a("s_addc_u32 s16, s16, 0")
    a("s_lshl_b32 s16, s16, 16"); a(f"s_add_u32 s16, s16, {CH_BASE}")
    a(f"s_cmp_eq_u32 s2, {PRE_GRID-1}")
    a(f"s_cselect_b32 s16, {FLAGS}, s16"); a("s_cselect_b32 s17, 0, -1")
    for i in range(4): a(f"v_mov_b32 v{4+i}, s17")
    a("v_lshlrev_b32 v2, 4, v0")
    for i in range(16):
        a("buffer_store_dwordx4 v[4:7], v2, s[12:15], s16 offen")
        if i < 15: a("s_add_u32 s16, s16, 4096")
    a.label(f"{name}_end")
    a("s_endpgm")

def emit_ln_pair(a, srd_xn, s_row, L, X0, vb, store_flags, vm):
    streams = []
    for k in range(2):
        b = Asm()
        b(f"s_add_u32 s{s_row+1+2*k}, s{s_row}, {k}")
        b(f"v_mov_b32 v{vb+st*k}, v{L}")
        emit_ln_row(b, None, srd_xn, s_row+1+2*k, vb+st*k, store_flags, preloaded=X0+8*k, vm=vm)
        streams.append([x for x in b.lines if x.strip()])
    for x, y in zip(*streams):
        if "s_nop 1" in x: a.raw("    s_nop 0"); continue
        a.raw(x); a.raw(y)

def emit_ln_multi(a, srd_xn, rows, L, X0, vb, store_flags, vm, st=52):
    streams = []
    for k, r in enumerate(rows):
        b = Asm()
        b(f"v_mov_b32 v{vb+st*k}, v{L}")
        emit_ln_row(b, None, srd_xn, r, vb+st*k, store_flags, preloaded=X0+8*k, vm=vm)
        streams.append([x for x in b.lines if x.strip()])
    assert len(rows) >= 3
    for xs in zip(*streams):
        if "s_nop" in xs[0]: continue
        if "s_waitcnt" in xs[0]: a.raw(xs[0]); continue
        for x in xs: a.raw(x)
```

```python
from common import *
from ln import *
from gemm import *
from att import att_item
from gemm16 import Gemm16, Gemm16N
import chain, gemm
from chain import role_A, role_VR, assign_roles, poll_tail, S_WS

LDS_SCR = 156*1024
S_PH, S_CTR, S_B, S_ITEM = 96, 97, 98, 99
S_T0 = 83
S_EPI, S_EP0, S_EP1, S_RET = 82, 78, 77, 4
S_PRE, S_POFF, S_PVAL = 39, 68, 69
S_FL = 92
PROFW = False
TSW_OFF = 216*MB

BATCH = {"S0": [("KS",0,0,4)], "S1": [("KS",0,4,4)], "S2": [("KS",0,8,4)], "S3": [("KS",0,12,4)], "K1": [("K1",0,0,4)], "KV1a": [("KV",1,0,4)], "KV1b": [("KV",1,4,4)], "KV2a": [("KV",2,0,4)], "KV2b": [("KV",2,4,4)],
         "KV3a": [("KV",3,0,4)], "KV3b": [("KV",3,4,4)], "Q0": [("Q",0,0,4)], "Q1": [("Q",1,0,4)], "Q2": [("Q",2,0,4)], "Q3": [("Q",3,0,4)],
         "G1": [("GU",0,0,4)], "G2": [("GU",0,4,3),("GU",1,0,1)], "G3": [("GU",1,1,4)], "G4": [("GU",1,5,2),("GU",2,0,2)],
         "G5": [("GU",2,2,4)], "G6": [("GU",2,6,1),("GU",3,0,3)], "G7": [("GU",3,3,4)],
         "KVa": [("K4",2,0,4)], "KVb": [("K4",2,4,4)], "KVc": [("K4",2,8,4)], "KVd": [("K4",2,12,4)],
         "Ga1": [("G4",0,0,4)], "Ga2": [("G4",0,4,4)], "Ga3": [("G4",0,8,4)], "Gb1": [("G4",4,0,4)], "Gb2": [("G4",4,4,4)], "Gb3": [("G4",4,8,4)],
         "Gm": [("G8",0,24,4)],
         "A01": [("A8",0,0,4)], "A23": [("A8",0,4,4)], "A45": [("A8",0,8,4)], "A67": [("A8",0,12,4)], "A89": [("A8",0,16,4)], "AAB": [("A8",0,20,4)],
         "DNa": [("DN",0,0,4)], "DNb": [("DN",0,4,4)], "W2x": [("W2",0,0,4)], "W1x": [("W1",0,8,4)], "WR": [("WR",0,0,4)], "WRa": [("WR",0,0,2),("W1",0,8,2)], "WRb": [("WR",0,2,2),("W1",0,10,2)], "": [("QA",0,0,4)]}
LISTS = [['KVd','Gb3','Q0','Ga1','W2x'],['KVc','Gb1','Ga3','Ga2','WR'],['KVb','Gb2','KV3a','KV3b','DNa'],['KVa','Gm','Q1','DNb','W1x']]
SMALL = ['K1', 'Q3', 'Q2']
def q1_list():
    out = []
    LL = [[f'S{i}'] + l for i, l in enumerate(LISTS)]
    for r in range(max(map(len, LL))):
        for l in LL: out += BATCH[l[r] if r < len(l) else ""]
    for b in SMALL: out += BATCH[b]
    return out
NBLK = 12
WRPOS = 44
NQA = 32 + NBLK*16 + (64-4*NBLK)*8
NROT = 4

def load_ptrs(a):
    a("s_load_dwordx8 s[40:47], s[0:1], 0")
    a("s_load_dwordx4 s[48:51], s[0:1], 32")
    a("s_load_dwordx8 s[56:63], s[0:1], 64")
    a("s_load_dwordx4 s[64:67], s[0:1], 96")

def atomic_ret(a, vdst, s_off, val):
    a(f"v_mov_b32 v{vdst}, {val}")
    a("s_mov_b64 exec, 1")
    a(f"buffer_atomic_add v{vdst}, off, {sr(S_FL,4)}, s{s_off} sc0 sc1")
    a("s_mov_b64 exec, -1")
    a("s_waitcnt vmcnt(0)")

def signal(a, s_off, val, srd=S_FL, vtmp=4):
    a(f"v_mov_b32 v{vtmp}, {val}")
    a("s_mov_b64 exec, 1")
    a(f"buffer_atomic_add v{vtmp}, off, {sr(srd,4)}, s{s_off} sc1")
    a("s_mov_b64 exec, -1")

def wait_flags(a, voff_setup, s_base, mask, target, abort, nlanes, vd=4, vo=5, sleep=8, barrier=True):
    Lw, Lp = a.newlabel("Wf"), a.newlabel("Wp")
    a(f"s_cmp_lg_u32 s{S_WAVE}, 0"); a(f"s_cbranch_scc1 {Lw}")
    voff_setup()
    a("s_mov_b32 s30, 0"); a(f"s_mov_b32 s21, {target:#x}")
    a.label(Lp)
    a(f"buffer_load_dword v{vd}, v{vo}, {sr(S_FL,4)}, s{s_base} offen sc1")
    a("s_waitcnt vmcnt(0)")
    if mask != 0xffffffff: a(f"v_and_b32 v{vd}, {mask:#x}, v{vd}")
    a(f"v_cmp_ne_u32 vcc, s21, v{vd}")
    a(f"s_cbranch_vccz {Lw}")
    if sleep: a(f"s_sleep {sleep}")
    poll_tail(a, Lp, abort)
    a.label(Lw)
    if barrier: a("s_barrier")

def finish(a, s_off, val):
    a("s_waitcnt vmcnt(0)")
    a("s_barrier")
    L = a.newlabel("Fin")
    a(f"s_cmp_lg_u32 s{S_WAVE}, 0"); a(f"s_cbranch_scc1 {L}")
    signal(a, s_off, val)
    a.label(L)

DBG = False
def dbgmax(a, s_slot, vt=4):
    if not DBG: return
    L = a.newlabel("Db")
    a(f"s_cmp_lg_u32 s{S_WAVE}, 0"); a(f"s_cbranch_scc1 {L}")
    a("s_memrealtime s[24:25]"); load_srd(a, 20, 64, 0, 256); a("s_waitcnt lgkmcnt(0)")
    a("s_lshl_b32 s24, s24, 3"); a("s_sub_u32 s24, s24, s101"); a("s_bitset0_b32 s24, 31"); a("s_lshr_b32 s24, s24, 3")
    a(f"v_mov_b32 v{vt}, s24"); a(f"s_lshl_b32 s25, s{s_slot}, 2")
    a("s_mov_b64 exec, 1")
    a(f"buffer_atomic_umax v{vt}, off, s[20:23], s25 sc1")
    a("s_mov_b64 exec, -1")
    a.label(L)

def wstamp(a, i):
    if PROFW: a(f"s_memrealtime s[{70+2*i}:{71+2*i}]")

def xstamp(a, i):
    r = [24,6,52,54,80][i]
    if PROFW: a(f"s_memrealtime s[{r}:{r+1}]")

def wor_item(a, END):
    L = V_LANE; W = S_WAVE
    load_srd(a, S_SRDW, 50, 0, 4096*DM*2)
    a("s_and_b32 s36, s37, 1"); a("s_lshr_b32 s34, s37, 1")
    a(f"v_lshrrev_b32 v2, 5, v{L}"); a("v_lshlrev_b32 v2, 4, v2")
    a(f"v_bfe_u32 v3, v{L}, 3, 2"); a("v_add_u32 v2, v2, v3"); a("v_lshlrev_b32 v2, 11, v2")
    a(f"v_and_b32 v3, 7, v{L}"); a("v_lshl_add_u32 v2, v3, 4, v2")
    a(f"s_lshl_b32 s27, s{W}, 15")
    a(f"v_lshrrev_b32 v4, 5, v{L}"); a(f"v_bfe_u32 v5, v{L}, 2, 2"); a("v_lshl_add_u32 v4, v4, 3, v5"); a("v_lshlrev_b32 v4, 7, v4")
    a(f"v_bfe_u32 v5, v{L}, 4, 1"); a("v_lshl_add_u32 v4, v5, 5, v4"); a(f"v_and_b32 v3, 3, v{L}"); a("v_lshl_add_u32 v4, v3, 3, v4"); a("v_add_u32 v4, s27, v4")
    a(f"s_lshl_b32 s22, s{W}, 20"); a("s_lshl_b32 s23, s36, 22"); a("s_add_u32 s22, s22, s23"); a("s_lshl_b32 s23, s34, 7"); a("s_add_u32 s22, s22, s23")
    for rnd_ in range(2):
        for j in range(32):
            a(f"s_add_u32 m0, s27, {1024*j}"); a("s_nop 0")
            a(f"buffer_load_dwordx4 v2, {sr(S_SRDW,4)}, s22 offen lds")
            a(f"s_add_u32 s22, s22, {(4 if (j & 3) < 3 else 20)*2048}")
        a("s_waitcnt vmcnt(0)")
        for ks in range(16):
            for t in range(2):
                for q in range(2):
                    a(f"ds_read_b64_tr_b16 {ar(((rnd_*16+ks)*2+t)*4+2*q,2)}, v4 offset:{(16*ks+4*q)*128+64*t}")
            if ks % 2 == 1: a("s_waitcnt lgkmcnt(0)")
    a(f"s_mov_b32 s32, {FL_EX}")
    wait_flags(a, lambda: a("v_mov_b32 v15, 0"), 32, 0xffffffff, 32, END, 1, 14, 15)
    load_srd(a, S_SRDX, 66, OL_OFF, 16*MB)
    load_srd(a, 84, 62, 0, S*DM*2)
    load_srd(a, S_SRDW, 40, 0, S*DM*2)
    VX0, VO, VB, VW, VR, VE, VP = 64, 3, 6, 7, 8, 10, 11
    a("s_lshl_b32 s37, s34, 1"); a("s_add_u32 s37, s37, s36")
    a(f"v_bfe_u32 v10, v{L}, 2, 3"); a(f"v_and_b32 v11, 3, v{L}"); a(f"v_lshrrev_b32 v12, 5, v{L}")
    a(f"v_and_b32 v13, 31, v{L}"); a(f"v_lshlrev_b32 v{VO}, 11, v13"); a(f"v_lshl_add_u32 v{VO}, v12, 3, v{VO}")
    a("s_lshl_b32 s22, s37, 6"); a(f"s_lshl_b32 s23, s{W}, 4"); a("s_add_u32 s22, s22, s23"); a(f"v_add_u32 v{VO}, s22, v{VO}")
    a(f"v_lshlrev_b32 v{VB}, 13, v10"); a(f"v_lshl_add_u32 v{VB}, v11, 5, v{VB}"); a(f"v_lshl_add_u32 v{VB}, v12, 3, v{VB}")
    a("s_lshl_b32 s22, s37, 8"); a(f"s_lshr_b32 s23, s{W}, 1"); a("s_lshl_b32 s23, s23, 7"); a("s_add_u32 s22, s22, s23")
    a(f"s_and_b32 s23, s{W}, 1"); a("s_lshl_b32 s23, s23, 4"); a("s_add_u32 s22, s22, s23"); a(f"s_add_u32 s22, s22, {BP_OFF}")
    a(f"v_add_u32 v{VB}, s22, v{VB}")
    a(f"v_lshlrev_b32 v13, 4, v{L}")
    a(f"s_lshl_b32 s22, s{W}, 15"); a("s_lshl_b32 s23, s36, 17"); a("s_add_u32 s22, s22, s23"); a(f"v_add_u32 v{VX0}, s22, v13")
    for i in range(1, 8): a(f"v_add_u32 v{VX0+i}, {4096*i}, v{VX0}")
    a(f"s_lshl_b32 s22, s{W}, 13"); a(f"v_add_u32 v{VW}, s22, v13")
    a(f"s_lshl_b32 s22, s{W}, 10"); a("s_lshl_b32 s23, s36, 12"); a("s_add_u32 s23, s23, s22"); a(f"v_add_u32 v{VR}, s23, v13")
    a("s_lshl_b32 s23, s37, 12"); a("s_add_u32 s22, s22, s23"); a(f"s_add_u32 s22, s22, {EX_OFF - 4*NBLK*131072}")
    a(f"v_add_u32 v{VE}, s22, v13"); a(f"v_xor_b32 v{VP}, 4096, v{VE}")
    a(f"s_mov_b32 s38, {4*NBLK}"); a("s_mov_b32 s35, 0"); a("s_mov_b32 s90, 0"); a("s_mov_b32 s91, 0")
    a(f"v_mov_b32 v9, {LDS_SCR+64}")
    wstamp(a, 1)
    ACC = 16; XR = 128; RD = 80
    a.label("L_WORseg")
    Ld = a.newlabel("Wd")
    a("s_and_b32 s32, s38, 7"); a(f"s_cmp_eq_u32 s38, {4*NBLK}"); a("s_cselect_b32 s32, 0, s32"); a("s_cmp_lg_u32 s32, 0"); a(f"s_cbranch_scc1 {Ld}")
    a("s_lshr_b32 s32, s38, 3"); a("s_lshl_b32 s32, s32, 3"); a("s_lshr_b32 s33, s37, 2"); a("s_add_u32 s32, s32, s33")
    a("s_lshl_b32 s32, s32, 6"); a(f"s_add_u32 s32, s32, {FL_DN}")
    wait_flags(a, lambda: a("v_mov_b32 v15, 0"), 32, 0xffffffff, 1, END, 1, 14, 15)
    a.label(Ld)
    a("s_lshl_b32 s33, s38, 16")
    a(f"s_sub_u32 s32, s38, {4*NBLK}"); a("s_lshl_b32 s32, s32, 7"); a("s_lshl_b32 s34, s36, 6"); a("s_add_u32 s32, s32, s34"); a(f"s_add_u32 s32, s32, {FL_ATS}")
    a("s_lshl_b32 s34, s38, 18"); a("s_lshl_b32 s26, s38, 17")
    Lr = a.newlabel("Wr")
    a("s_cmp_eq_u32 s35, 16"); a(f"s_cbranch_scc1 {Lr}")
    a("s_mov_b32 s91, 0")
    wait_flags(a, lambda: a("v_mov_b32 v15, 0"), 32, 0xffffffff, 16, END, 1, 14, 15, WSLEEP)
    a.label(Lr)
    a("s_add_u32 s32, s32, 128")
    wstamp(a, 2)
    a(f"s_bfe_u32 s22, s37, {1 | (2 << 16):#x}")
    for e in range(1, NROT): a(f"s_cmp_eq_u32 s22, {e}"); a(f"s_cbranch_scc1 L_WORe{e}")
    for e in range(NROT):
        a.label(f"L_WORe{e}")
        order = [(32//NROT*e + i) % 32 for i in range(32)]
        WN = 8
        lds = [f"buffer_load_dwordx4 {vr(XR+ks*4,4)}, v{VX0+ks//4}, {sr(S_SRDX,4)}, s34 offen offset:{(ks%4)*1024} sc1" for ks in order]
        lds += [f"buffer_load_dwordx2 v[48:49], v{VO}, {sr(S_SRDW,4)}, s33 offen", f"buffer_load_dwordx2 v[50:51], v{VB}, {sr(S_FL,4)}, s33 offen sc1",
                f"buffer_load_dwordx4 v[116:119], v{VP}, {sr(S_FL,4)}, s26 offen sc1",
                f"buffer_load_dword v14, off, {sr(S_FL,4)}, s32 sc1"]
        if EARLY: a("s_cmp_lg_u32 s91, 0"); a(f"s_cbranch_scc1 L_WORf{e}")
        for x in lds[:WN]: a(x)
        a.label(f"L_WORf{e}")
        n = WN
        for i, ks in enumerate(order):
            a(f"s_waitcnt vmcnt({n-1-i})")
            if i == 0: xstamp(a, 0)
            for t in range(2):
                a(f"v_mfma_f32_32x32x16_bf16 {vr(ACC+16*t,16)}, {ar((ks*2+t)*4,4)}, {vr(XR+ks*4,4)}, {'0' if i == 0 else vr(ACC+16*t,16)}")
                if n < len(lds) and (t == 0 or i < 8): a(lds[n]); n += 1
        if EARLY:
            a("s_waitcnt vmcnt(0)")
            a("v_readfirstlane_b32 s91, v14"); a("s_add_u32 s23, s38, 1"); a("s_and_b32 s23, s23, 7"); a("s_cselect_b32 s23, 16, 17")
            a("s_cmp_eq_u32 s91, s23"); a("s_cselect_b32 s91, 1, 0"); a("s_cbranch_scc0 L_WORj")
            a("s_add_u32 s23, s34, 262144")
            for x in lds[:WN]: a(x.replace("s34", "s23"))
        if e < NROT-1: a("s_branch L_WORj")
    a.label("L_WORj")
    xstamp(a, 1)
    a("s_nop 10")
    for q in range(8): a(f"ds_write_b128 v{VW}, {vr(ACC+4*q,4)} offset:{1024*q}")
    if not EARLY: a("s_waitcnt vmcnt(0)")
    xstamp(a, 2)
    Lz = a.newlabel("Wz")
    a(f"s_cmp_lg_u32 s{W}, 0"); a(f"s_cbranch_scc1 {Lz}")
    a("ds_write_b32 v9, v14")
    a.label(Lz)
    a(f"v_xor_b32 v13, 4096, v{VR}")
    a("s_waitcnt lgkmcnt(0)")
    a("s_barrier")
    for i in range(4): a(f"ds_read_b128 {vr(RD+16+4*i,4)}, v13 offset:{8192*i}")
    for i in range(4): a(f"ds_read_b128 {vr(RD+4*i,4)}, v{VR} offset:{8192*i}")
    a("ds_read_b32 v14, v9")
    a(f"v_xor_b32 v{VW}, 32768, v{VW}"); a(f"v_xor_b32 v{VR}, 32768, v{VR}"); a("v_xor_b32 v9, 4, v9")
    def sum4(b):
        for k in (0, 2):
            a(f"v_pk_add_f32 {vr(b+k,2)}, {vr(b+k,2)}, {vr(b+4+k,2)}"); a(f"v_pk_add_f32 {vr(b+8+k,2)}, {vr(b+8+k,2)}, {vr(b+12+k,2)}")
        for k in (0, 2): a(f"v_pk_add_f32 {vr(b+k,2)}, {vr(b+k,2)}, {vr(b+8+k,2)}")
    a("s_waitcnt lgkmcnt(5)")
    sum4(RD+16)
    xstamp(a, 3)
    L1, L2 = a.newlabel("We"), a.newlabel("We")
    a(f"s_cmp_eq_u32 s{S_B}, 4"); a(f"s_cbranch_scc1 {L1}")
    if EXLATE: a(f"s_cmp_lt_u32 s38, {EXLATE}"); a(f"s_cbranch_scc1 {L1}")
    a(f"buffer_store_dwordx4 {vr(RD+16,4)}, v{VE}, {sr(S_FL,4)}, s26 offen")
    a(f"s_branch {L2}")
    a.label(L1)
    a(f"buffer_store_dwordx4 {vr(RD+16,4)}, v{VE}, {sr(S_FL,4)}, s26 offen sc1")
    a.label(L2)
    a("s_waitcnt lgkmcnt(0)")
    sum4(RD)
    a("v_readfirstlane_b32 s35, v14")
    PO = 120
    def finish_seg(nap):
        a(f"v_lshlrev_b32 v52, 16, v{PO+4}"); a(f"v_and_b32 v53, 0xffff0000, v{PO+4}"); a(f"v_lshlrev_b32 v54, 16, v{PO+5}"); a(f"v_and_b32 v55, 0xffff0000, v{PO+5}")
        a(f"v_lshlrev_b32 v56, 16, v{PO+6}"); a(f"v_and_b32 v57, 0xffff0000, v{PO+6}"); a(f"v_lshlrev_b32 v58, 16, v{PO+7}"); a(f"v_and_b32 v59, 0xffff0000, v{PO+7}")
        a("s_mov_b32 s30, 0")
        if nap: a(f"s_sleep {nap}")
        Lp, Lg = a.newlabel("Wp"), a.newlabel("Wg")
        R = 108
        a.label(Lp)
        a(f"buffer_load_dwordx4 {vr(R,4)}, v{VP}, {sr(S_FL,4)}, s89 offen sc1")
        a("s_waitcnt vmcnt(0)")
        a(f"v_max3_u32 v15, v{R}, v{R+1}, v{R+2}"); a(f"v_max_u32 v15, v15, v{R+3}")
        a("v_cmp_eq_u32 vcc, -1, v15")
        a(f"s_cbranch_vccz {Lg}")
        poll_tail(a, Lp, END)
        a.label(Lg)
        if nap: xstamp(a, 4)
        for k in (0, 2): a(f"v_pk_add_f32 {vr(R+k,2)}, {vr(R+k,2)}, {vr(PO+k,2)}")
        def rnd():
            a(f"v_cvt_pk_bf16_f32 v{R+4}, v{R}, v{R+1}"); a(f"v_cvt_pk_bf16_f32 v{R+5}, v{R+2}, v{R+3}")
        def unp():
            a(f"v_lshlrev_b32 v{R}, 16, v{R+4}"); a(f"v_and_b32 v{R+1}, 0xffff0000, v{R+4}")
            a(f"v_lshlrev_b32 v{R+2}, 16, v{R+5}"); a(f"v_and_b32 v{R+3}, 0xffff0000, v{R+5}")
        rnd(); unp()
        a(f"v_pk_add_f32 {vr(R,2)}, {vr(R,2)}, v[52:53]"); a(f"v_pk_add_f32 {vr(R+2,2)}, {vr(R+2,2)}, v[54:55]")
        rnd(); unp()
        a(f"v_pk_add_f32 {vr(R,2)}, {vr(R,2)}, v[56:57]"); a(f"v_pk_add_f32 {vr(R+2,2)}, {vr(R+2,2)}, v[58:59]")
        rnd()
        a(f"buffer_store_dwordx2 {vr(R+4,2)}, v{VO}, s[84:87], s88 offen")
    Ln = a.newlabel("Wn")
    a("s_cmp_eq_u32 s90, 0"); a(f"s_cbranch_scc1 {Ln}")
    finish_seg(0)
    a.label(Ln)
    for k in range(4): a(f"v_mov_b32 v{PO+k}, v{RD+k}"); a(f"v_mov_b32 v{PO+4+k}, v{48+k}")
    a("s_mov_b32 s88, s33"); a("s_mov_b32 s89, s26"); a("s_mov_b32 s90, 1")
    a("s_add_u32 s38, s38, 1")
    a("s_and_b32 s34, s38, 7"); a("s_cselect_b32 s34, s35, 0"); a("s_cmp_eq_u32 s34, 16"); a("s_cbranch_scc1 L_WORseg")
    Lv, Lf = a.newlabel("Wv"), a.newlabel("Wv")
    a("s_and_b32 s34, s38, 7"); a(f"s_cbranch_scc0 {Lf}")
    a(f"s_cmp_lg_u32 s{W}, 0"); a(f"s_cbranch_scc1 {Lv}")
    a(f"buffer_load_dword v14, off, {sr(S_FL,4)}, s32 sc1")
    a("s_waitcnt vmcnt(0)")
    a("ds_write_b32 v9, v14 offset:8")
    a("s_waitcnt lgkmcnt(0)")
    a.label(Lv)
    a("s_barrier")
    a("ds_read_b32 v14, v9 offset:8")
    a("s_waitcnt lgkmcnt(0)")
    a("v_readfirstlane_b32 s35, v14")
    a("s_nop 3")
    a("s_cmp_eq_u32 s35, 16"); a("s_cbranch_scc1 L_WORseg")
    a.label(Lf)
    finish_seg(1)
    a("s_mov_b32 s90, 0")
    a("s_cmp_lt_u32 s38, 64"); a("s_cbranch_scc1 L_WORseg")

NW1, NW2, NW3 = 0, 0, 21
def warm(a, s_unit, n, per, base):
    if n == 0: return
    load_srd(a, 84, 46, 0, DM*4096*2)
    a(f"s_mul_i32 s79, s{s_unit}, {per*1024}"); a(f"s_add_u32 s79, s79, {base*1024}")
    a(f"s_mov_b32 m0, {LDS_SCR+1024}")
    for i in range(n):
        a("s_nop 0" if i == 0 else "s_add_u32 s79, s79, 1024")
        a("buffer_load_dwordx4 v2, s[84:87], s79 offen lds")

NRDY = 0
ROT = False
KROT = False
LN2 = False
SIGL = 0
EARLY = True
QASKIP = 0
OUTF = ''
EXLATE = 0
WBL2 = False
QAORD = None
SLOW1 = 0
FAST1 = 2
WSLEEP = 1
M16 = True
N16 = 2
NPRE = 0
NJUNK = 3
GJUNK = False
PFLIST = []
PFDEPTH = 8
XNT = ''
HELP = 0
HELPM = (44,)
def setup_phase(a):
    L = V_LANE; W = S_WAVE
    a("s_and_b32 s16, s2, 7"); a("s_lshr_b32 s17, s2, 3"); a("s_lshl_b32 s17, s17, 2"); a("s_add_u32 s17, s17, s16"); a("s_sub_u32 s17, s17, 4")
    a("s_sub_u32 s18, s2, 96"); a("s_cmp_ge_u32 s2, 192"); a("s_cselect_b32 s19, s18, s17"); a("s_cbranch_scc1 L_su_go")
    a("s_cmp_lt_u32 s16, 4"); a("s_cbranch_scc1 L_su_pre")
    a.label("L_su_go")
    load_srd(a, 24, 40, 0, S*DM*2)
    load_srd(a, 12, 66, XN_OFF, S*XN_STR)
    a(f"v_lshlrev_b32 v2, 4, v{L}")
    a("s_mul_i32 s19, s19, 3"); a(f"s_add_u32 s19, s19, s{W}"); a("s_sub_u32 s19, s19, 1")
    a("s_mul_i32 s34, s19, 3"); a("s_add_u32 s36, s34, 1"); a("s_add_u32 s38, s34, 2")
    def rows(X0):
        for k in range(3):
            a(f"s_lshl_b32 s17, s{34+2*k}, 11")
            for h in range(2): a(f"buffer_load_dwordx4 {vr(X0+8*k+4*h,4)}, v2, s[24:27], s17 offen offset:{1024*h} {XNT}")
    if LN2:
        load_srd(a, 28, 42, 0, 8*DM*2)
        a(f"s_bfe_u32 s17, s19, {2 | (4 << 16):#x}"); a("s_lshl_b32 s17, s17, 7"); a("s_and_b32 s16, s19, 3"); a("s_lshl_b32 s16, s16, 5"); a("s_add_u32 s17, s17, s16")
        a(f"v_bfe_u32 v8, v{L}, 2, 3"); a("v_lshlrev_b32 v8, 11, v8")
        a(f"v_and_b32 v9, 3, v{L}"); a("v_lshl_add_u32 v8, v9, 3, v8")
        a(f"v_lshrrev_b32 v9, 5, v{L}"); a("v_lshl_add_u32 v8, v9, 2, v8")
        a("buffer_load_dword v10, v8, s[28:31], s17 offen")
        a("s_cmp_ge_u32 s19, 171"); a("s_cbranch_scc1 L_su_one")
        rows(64)
        emit_ln_multi(a, 12, [34, 36, 38], 2, 64, 96, "sc1", 0)
    else:
        rows(64)
        a("s_sub_u32 s18, s19, 277"); a("s_mul_i32 s18, s18, 3"); a("s_add_u32 s18, s18, 1440"); a("s_cmp_ge_u32 s19, 277"); a("s_cselect_b32 s18, s18, 4096")
        for k in range(3):
            a(f"s_add_u32 s17, s18, {k}"); a("s_lshl_b32 s17, s17, 11")
            for h in range(2): a(f"buffer_load_dwordx4 {vr(16+8*k+4*h,4)}, v2, s[24:27], s17 offen offset:{1024*h} {XNT}")
        load_srd(a, 28, 42, 0, 8*DM*2)
        a(f"s_bfe_u32 s17, s19, {2 | (4 << 16):#x}"); a("s_lshl_b32 s17, s17, 7"); a("s_and_b32 s16, s19, 3"); a("s_lshl_b32 s16, s16, 5"); a("s_add_u32 s17, s17, s16")
        a(f"v_bfe_u32 v8, v{L}, 2, 3"); a("v_lshlrev_b32 v8, 11, v8")
        a(f"v_and_b32 v9, 3, v{L}"); a("v_lshl_add_u32 v8, v9, 3, v8")
        a(f"v_lshrrev_b32 v9, 5, v{L}"); a("v_lshl_add_u32 v8, v9, 2, v8")
        a("buffer_load_dword v10, v8, s[28:31], s17 offen")
        emit_ln_multi(a, 12, [34, 36, 38], 2, 64, 96, "sc1", 7)
        a("s_cmp_lt_u32 s19, 277"); a("s_cbranch_scc1 L_su_one")
        a("s_mov_b32 s34, s18"); a("s_add_u32 s36, s18, 1"); a("s_add_u32 s38, s18, 2")
        emit_ln_multi(a, 12, [34, 36, 38], 2, 16, 96, "sc1", 7)
    a.label("L_su_one")
    tot = CH_END - CH_BASE - 65536
    assert tot % 1024 == 0 and tot//1024 <= 480*6
    for i in range(4): a(f"v_mov_b32 v{4+i}, -1")
    a("s_mul_i32 s16, s19, 6")
    for i in range(6):
        Ls = a.newlabel("Ps")
        a(f"s_cmp_ge_u32 s16, {tot//1024}"); a(f"s_cbranch_scc1 {Ls}")
        a(f"s_cmp_ge_u32 s16, {(CH_MEM-CH_BASE)//1024}"); a("s_cselect_b32 s17, 64, 0"); a("s_add_u32 s17, s17, s16")
        a("s_lshl_b32 s17, s17, 10"); a(f"s_add_u32 s17, s17, {CH_BASE}")
        a(f"buffer_store_dwordx4 v[4:7], v2, {sr(S_WS,4)}, s17 offen sc1")
        a.label(Ls)
        a("s_add_u32 s16, s16, 1")
    Lz, Lm = a.newlabel("Pz"), a.newlabel("Pm")
    a(f"v_lshlrev_b32 v9, 2, v{L}")
    a("s_cmp_lt_u32 s19, 224"); a(f"s_cbranch_scc1 {Lz}")
    a("v_mov_b32 v8, 0"); a("s_sub_u32 s17, s19, 224"); a("s_lshl_b32 s17, s17, 8"); a(f"s_add_u32 s17, s17, {FLAGS}")
    a(f"buffer_store_dword v8, v9, {sr(S_WS,4)}, s17 offen sc1")
    a.label(Lz)
    a("s_cmp_ge_u32 s19, 256"); a(f"s_cbranch_scc1 {Lm}")
    a("s_lshl_b32 s16, s19, 8"); a(f"s_add_u32 s16, s16, {CH_MEM}")
    a("s_waitcnt vmcnt(6)")
    a(f"buffer_store_dword v10, v9, {sr(S_WS,4)}, s16 offen sc1")
    a.label(Lm)
    a("s_branch L_su_end")
    a.label("L_su_pre")
    if NPRE:
        a("s_cmp_ge_u32 s31, 4"); a("s_cbranch_scc1 L_su_end")
        a(f"s_mov_b32 m0, {LDS_SCR+1024}"); a("s_lshr_b32 s17, s2, 3"); a("s_lshl_b32 s18, s31, 3")
        a("s_cmp_ge_u32 s17, 8"); a("s_cbranch_scc1 L_su_pv")
        a(f"s_cmp_eq_u32 s{W}, 3"); a("s_cselect_b32 s34, s46, s44"); a("s_cselect_b32 s35, s47, s45")
        load_srd(a, 84, 34, 0, DM*4096*2)
        a(f"v_lshrrev_b32 v2, 4, v{L}"); a("v_lshlrev_b32 v2, 13, v2"); a(f"v_and_b32 v3, 15, v{L}"); a("v_lshl_add_u32 v2, v3, 4, v2")
        a("s_add_u32 s17, s17, s18"); a("s_lshl_b32 s79, s17, 8")
        a(f"s_cmp_eq_u32 s{W}, 2"); a(f"s_cselect_b32 s17, {4*8192}, 0"); a("s_add_u32 s79, s79, s17")
        a(f"s_mov_b32 s78, {8*8192}")
        a(f"s_cmp_eq_u32 s{W}, 3"); a(f"s_cselect_b32 s78, {4*8192}, s78")
        a("s_branch L_su_pl")
        a.label("L_su_pv")
        load_srd(a, 84, 48, 0, DM*4096*2)
        a(f"v_lshrrev_b32 v2, 3, v{L}"); a("v_lshlrev_b32 v2, 13, v2"); a(f"v_and_b32 v3, 7, v{L}"); a("v_lshl_add_u32 v2, v3, 4, v2")
        a("s_sub_u32 s17, s17, 8"); a("s_lshl_b32 s18, s18, 1"); a("s_add_u32 s17, s17, s18"); a("s_lshl_b32 s79, s17, 7")
        a(f"s_lshl_b32 s17, s{W}, 21"); a("s_add_u32 s79, s79, s17"); a(f"s_mov_b32 s78, {8*8192}")
        a.label("L_su_pl")
        for i in range(NPRE):
            a("buffer_load_dwordx4 v2, s[84:87], s79 offen lds")
            a("s_add_u32 s79, s79, s78")
    a.label("L_su_end")

def init_arrive(a, srd, vt=61):
    L = a.newlabel("Ia")
    a(f"s_cmp_lg_u32 s{S_WAVE}, 0"); a(f"s_cbranch_scc1 {L}")
    a(f"v_mov_b32 v{vt}, s101"); a("s_lshl_b32 s21, s2, 2"); a(f"s_add_u32 s21, s21, {TBL_OFF+1024}")
    a("s_mov_b64 exec, 1")
    a(f"buffer_store_dword v{vt}, off, {sr(srd,4)}, s21 sc1")
    a("s_mov_b64 exec, -1")
    a.label(L)

def init_wait(a, abort):
    load_srd(a, 20, 64, 0, 256)
    Lp, Lg = a.newlabel("Ip"), a.newlabel("Ig")
    a("s_mov_b32 s30, 0"); a("s_mov_b32 s24, 192")
    a.label(Lp)
    a("buffer_load_dword v14, off, s[20:23], s24 sc1")
    a("s_waitcnt vmcnt(0)")
    a("v_cmp_ne_u32 vcc, s101, v14")
    a(f"s_cbranch_vccz {Lg}")
    a("s_sleep 4")
    poll_tail(a, Lp, abort)
    a.label(Lg)

def worker_start(a, abort):
    a(f"s_waitcnt vmcnt({NW2})")
    a("s_barrier")
    init_arrive(a, S_FL)
    Lw, Ln, Lp, Lg = [a.newlabel("Ws") for _ in range(4)]
    L0 = a.newlabel("Ws")
    a(f"s_cmp_eq_u32 s{S_WAVE}, 0"); a(f"s_cbranch_scc1 {L0}")
    Lb = a.newlabel("Ws")
    a(f"s_cmp_lg_u32 s{S_B}, 5"); a(f"s_cbranch_scc1 {Lb}")
    a(f"v_lshrrev_b32 v2, 4, v{V_LANE}"); a("v_lshlrev_b32 v2, 13, v2"); a(f"v_and_b32 v3, 15, v{V_LANE}"); a("v_lshl_add_u32 v2, v3, 4, v2")
    a(f"s_mov_b32 m0, {LDS_SCR+1024}")
    nper = HELP // 3
    for p in (HELPM if HELP else ()):
        load_srd(a, 84, p, 0, DM*4096*2)
        a(f"s_sub_u32 s79, s{S_WAVE}, 1"); a(f"s_mul_i32 s79, s79, {nper*4*8192}"); a("s_lshl_b32 s78, s34, 8"); a("s_add_u32 s79, s79, s78")
        a(f"s_add_u32 s79, s79, {(1024-12*nper)*8192}"); a(f"s_mov_b32 s78, {nper}")
        Ll = a.newlabel("Ws")
        a.label(Ll)
        a("buffer_load_dwordx4 v2, s[84:87], s79 offen lds")
        a(f"s_add_u32 s79, s79, {4*8192}"); a("s_sub_u32 s78, s78, 1"); a("s_cmp_lg_u32 s78, 0"); a(f"s_cbranch_scc1 {Ll}")
    a(f"s_branch {Lw}")
    a.label(Lb)
    a("s_sub_u32 s19, s33, 128"); a("s_mul_i32 s19, s19, 3"); a(f"s_add_u32 s19, s19, s{S_WAVE}"); a("s_sub_u32 s19, s19, 1")
    a(f"v_lshlrev_b32 v2, 4, v{V_LANE}")
    warm(a, 19, NW3, NW3, 8192 - 384*NW3)
    a(f"s_branch {Lw}")
    a.label(L0)
    a("s_cmp_lg_u32 s33, 255"); a(f"s_cbranch_scc1 {Ln}")
    a(f"v_lshlrev_b32 v3, 2, v{V_LANE}"); a(f"s_mov_b32 s26, {TBL_OFF+1024}"); a("s_mov_b32 s30, 0")
    a.label(Lp)
    for k in range(4): a(f"buffer_load_dword v{8+k}, v3, {sr(S_FL,4)}, s26 offen offset:{256*k} sc1")
    a("s_waitcnt vmcnt(0)")
    for k in range(4): a(f"v_xor_b32 v{8+k}, s101, v{8+k}")
    a("v_or_b32 v5, v8, v9"); a("v_or3_b32 v5, v5, v10, v11")
    a("v_cmp_ne_u32 vcc, 0, v5")
    a(f"s_cbranch_vccz {Lg}")
    a("s_sleep 2")
    poll_tail(a, Lp, abort)
    a.label(Lg)
    load_srd(a, 20, 64, 0, 256)
    a("v_mov_b32 v5, s101"); a("s_mov_b32 s24, 192")
    a("buffer_store_dword v5, off, s[20:23], s24 sc1")
    a(f"s_branch {Lw}")
    a.label(Ln)
    Lsm, Lq = a.newlabel("Ws"), a.newlabel("Ws")
    a(f"s_cmp_eq_u32 s{S_B}, 5"); a(f"s_cbranch_scc1 {Lsm}")
    a(f"v_and_b32 v3, 7, v{V_LANE}"); a("s_and_b32 s26, s34, 3"); a("s_mul_i32 s26, s26, 7"); a("v_add_u32 v3, s26, v3")
    a("v_and_b32 v4, 3, v3"); a("v_lshrrev_b32 v3, 2, v3"); a("v_lshl_add_u32 v3, v3, 3, v4"); a("v_add_u32 v3, 4, v3"); a("v_lshlrev_b32 v3, 2, v3")
    a(f"s_mov_b32 s26, {TBL_OFF+1024}")
    a("s_mov_b32 s30, 0")
    a.label(Lq)
    a("s_sleep 6")
    a(f"buffer_load_dword v8, v3, {sr(S_FL,4)}, s26 offen sc1")
    a("s_waitcnt vmcnt(0)")
    a("v_cmp_ne_u32 vcc, s101, v8")
    a(f"s_cbranch_vccz {Lw}")
    poll_tail(a, Lq, abort)
    a.label(Lsm)
    init_wait(a, abort)
    if NRDY == 0: a(f"s_branch {Lw}")
    a(f"s_mov_b32 s26, {FL_RDY}"); a("s_mov_b32 s30, 0")
    Lr = a.newlabel("Ws")
    a.label(Lr)
    a("s_sleep 16")
    a(f"buffer_load_dword v8, off, {sr(S_FL,4)}, s26 sc1")
    a("s_waitcnt vmcnt(0)")
    a(f"v_cmp_gt_u32 vcc, {NRDY}, v8")
    a(f"s_cbranch_vccz {Lw}")
    poll_tail(a, Lr, abort)
    a.label(Lw)
    a("s_barrier")

def emit_mega(a, name, force_slow=False):
    END = "L_abort"
    Q1 = q1_list(); NSM = 32*len(SMALL); NQ1 = 8*sum(x[3] for x in Q1) - NSM
    kernel_header(a, name)
    a(f"s_cmp_lt_u32 s2, 256"); a(f"s_cbranch_scc1 L_start")
    a("s_endpgm")
    a.label("L_start")
    xstamp(a, 2)
    load_ptrs(a)
    a("v_lshrrev_b32 v2, 6, v0")
    a(f"v_and_b32 v{V_LANE}, 63, v0")
    a(f"v_readfirstlane_b32 s{S_WAVE}, v2")
    a("s_waitcnt lgkmcnt(0)")
    load_srd(a, S_WS, 66, 0, WS_SIZE)
    chain.IDLE = setup_phase
    chain.INIT_WAIT = lambda a: init_wait(a, END)
    chain.INIT_ARRIVE = lambda a: init_arrive(a, S_WS)
    chain.NYOUNG = NW2
    def rdy(a):
        L = a.newlabel("Rd")
        a(f"s_cmp_lg_u32 s{S_WAVE}, 0"); a(f"s_cbranch_scc1 {L}")
        a(f"s_mov_b32 s20, {FL_RDY}"); signal(a, 20, 1, S_WS, 61)
        a.label(L)
    chain.A_READY = rdy
    assign_roles(a, END, LDS_SCR)
    xstamp(a, 1)
    a(f"s_mov_b32 s35, s{chain.S_MODE}")
    if force_slow: a(f"s_mov_b32 s{chain.S_MODE}, 1")
    a(f"s_mov_b32 s{S_PH}, 0")
    a(f"s_sub_u32 s{S_B}, s31, 4"); a("s_cmp_lt_u32 s31, 4"); a(f"s_cselect_b32 s{S_B}, 5, s{S_B}")
    a(f"s_mov_b32 s{S_PH}, 1")

    Lf = a.newlabel("Cl")
    a(f"s_cmp_eq_u32 s{chain.S_MODE}, 0"); a(f"s_cbranch_scc1 {Lf}")
    a("s_cmp_lt_u32 s33, 128"); a(f"s_cselect_b32 s{S_B}, 5, 4")
    a.label(Lf)
    a(f"s_lshl_b32 s{S_CTR}, s{S_B}, 7"); a(f"s_add_u32 s{S_CTR}, s{S_CTR}, {FL_Q1L}")
    a("s_mov_b32 s100, 0")
    a(f"s_cmp_eq_u32 s{S_B}, 4"); a(f"s_cselect_b32 s{S_T0}, 128, 32")
    a("s_lshl_b32 s34, s31, 3"); a("s_add_u32 s34, s34, s32"); a("s_sub_u32 s34, s34, 24")
    a("s_cmp_ge_u32 s31, 4"); a("s_cselect_b32 s34, s32, s34")
    Lp5 = a.newlabel("Cl")
    a("s_cmp_eq_u32 s35, 0"); a(f"s_cbranch_scc1 {Lp5}")
    a("s_sub_u32 s34, s33, 96"); a(f"s_cmp_eq_u32 s{S_B}, 4"); a("s_cselect_b32 s20, 32, 0"); a("s_sub_u32 s34, s34, s20")
    a.label(Lp5)
    a("s_cmp_eq_u32 s29, 0"); a(f"s_cbranch_scc1 L_worker0")
    a("s_setprio 3")
    a(f"s_cmp_ge_u32 s{chain.S_R}, 8"); a(f"s_cbranch_scc1 L_vr")
    def kv_wait(a):
        Ls, Lp = a.newlabel("Kw"), a.newlabel("Kp")
        Lc = a.newlabel("Kc")
        a(f"s_and_b32 s20, s{chain.S_STEP}, 7"); a(f"s_cbranch_scc1 {Ls}")
        a.label(Lc)
        a(f"s_lshr_b32 s20, s{chain.S_STEP}, 3"); a("s_lshl_b32 s20, s20, 10"); a("s_lshr_b32 s21, s26, 1"); a("s_lshl_b32 s21, s21, 6"); a("s_add_u32 s20, s20, s21")
        a(f"s_add_u32 s20, s20, {FL_QKV}"); a("s_mov_b32 s30, 0")
        a("s_mov_b32 s21, 0xffff"); a("s_movk_i32 s22, 0x404")
        a.label(Lp)
        a(f"buffer_load_dword v15, off, {sr(S_WS,4)}, s20 sc1")
        a("s_waitcnt vmcnt(0)")
        a("v_and_b32 v15, s21, v15")
        a("v_cmp_ne_u32 vcc, s22, v15")
        a(f"s_cbranch_vccz {Ls}")
        a("s_sleep 4")
        poll_tail(a, Lp, END)
        a.label(Ls)
    def step_addr(delta):
        a(f"s_lshl_b32 s20, s{chain.S_STEP}, 2"); a(f"s_add_u32 s20, s20, s{chain.S_X}"); a("s_lshl_b32 s20, s20, 7")
        a(f"s_add_u32 s20, s20, {FL_STEP + delta*512}")
    def step_done(a, kind):
        L = a.newlabel("Sd")
        if kind in ("A", "Alast"):
            if kind == "A" and SIGL: a(f"s_cmp_lt_u32 s{chain.S_STEP}, {SIGL}"); a(f"s_cbranch_scc1 {L}")
            a("s_waitcnt vmcnt(0)"); a("s_barrier")
            a(f"s_cmp_lg_u32 s{S_WAVE}, 0"); a(f"s_cbranch_scc1 {L}")
            step_addr(0); signal(a, 20, 2, S_WS, 60)
            if DBG:
                a(f"s_lshr_b32 s28, s{chain.S_STEP}, 4"); a("s_add_u32 s28, s28, 12"); a(f"s_cmp_eq_u32 s{chain.S_STEP}, 0"); a("s_cselect_b32 s28, 11, s28")
                a("s_mov_b32 s29, s25"); dbgmax(a, 28, 60); a("s_mov_b32 s25, s29")
        elif kind == "V3":
            L2 = a.newlabel("Sd")
            step_addr(0)
            if SIGL:
                a(f"s_sub_u32 s21, s{chain.S_STEP}, 1"); a(f"s_cmp_ge_u32 s21, {SIGL}"); a(f"s_cbranch_scc1 {L2}")
                a("s_sub_u32 s21, s20, 512"); signal(a, 21, 3, S_WS, 60)
                a.label(L2)
                a(f"s_cmp_lt_u32 s{chain.S_STEP}, {SIGL}"); a(f"s_cbranch_scc1 {L}")
            signal(a, 20, 2, S_WS, 61)
        elif kind == "Vlast":
            a("s_waitcnt vmcnt(0)"); a("s_barrier")
            a(f"s_cmp_lg_u32 s{S_WAVE}, 0"); a(f"s_cbranch_scc1 {L}")
            step_addr(0); signal(a, 20, 2, S_WS, 60)
        a.label(L)
    role_A(a, END, kv_wait, step_done)
    a("s_branch L_retire")
    a.label("L_vr")
    role_VR(a, END, step_done)
    a.label("L_retire")
    a("s_setprio 0")
    if WBL2:
        Lwb = a.newlabel("Wb")
        a(f"s_or_b32 s20, s{S_WAVE}, s{chain.S_R}"); a("s_cmp_lg_u32 s20, 0"); a(f"s_cbranch_scc1 {Lwb}")
        a("buffer_wbl2 sc1")
        a.label(Lwb)
    a(f"s_mov_b32 s{S_PH}, 2")
    load_ptrs(a)
    a(f"v_mbcnt_lo_u32_b32 v{V_LANE}, -1, 0"); a(f"v_mbcnt_hi_u32_b32 v{V_LANE}, -1, v{V_LANE}")
    a("s_waitcnt vmcnt(0) lgkmcnt(0)")
    a("s_barrier")
    load_srd(a, S_FL, 66, 0, WS_SIZE)
    a("s_branch L_worker")
    a.label(END)
    a("s_mov_b64 exec, -1")
    a(f"v_mov_b32 v4, 0x1fff"); a(f"v_mov_b32 v5, {LDS_SCR}")
    a("ds_write_b32 v5, v4")
    a("s_waitcnt lgkmcnt(0)")
    a("s_endpgm")
    a.label("L_worker0")
    load_srd(a, S_FL, 66, 0, WS_SIZE)
    worker_start(a, END)
    a.label("L_worker")
    a(f"s_mov_b32 s{S_PRE}, 0"); a(f"s_mov_b32 s{S_PVAL}, 0"); a(f"s_mov_b32 s{S_EPI}, 0")
    def run_epi(): a(f"s_call_b64 s[{S_RET}:{S_RET+1}], L_epi")
    def q1_index():
        L, L5 = a.newlabel("N"), a.newlabel("N")
        a(f"s_add_u32 s25, s25, s{S_T0}")
        a(f"s_cmp_eq_u32 s{S_B}, 5"); a(f"s_cbranch_scc1 {L5}")
        a(f"s_cmp_eq_u32 s{S_B}, 4"); a(f"s_cbranch_scc1 {L}")
        a("s_lshr_b32 s22, s25, 5"); a("s_and_b32 s25, s25, 31"); a("s_lshl_b32 s22, s22, 2"); a(f"s_add_u32 s22, s22, s{S_B}")
        a("s_lshl_b32 s22, s22, 5"); a("s_add_u32 s25, s25, s22")
        a.label(L)
        a(f"s_cmp_lt_u32 s25, {NQ1}"); a(f"s_cselect_b32 s25, s25, {NSM}"); a(f"s_cbranch_scc1 {L5}_e")
        a.label(L5)
        a(f"s_add_u32 s25, s25, {NQ1}"); a(f"s_cmp_lt_u32 s25, {NQ1+NSM}")
        a.label(f"{L5}_e")
    def publish_item():
        a("v_mov_b32 v14, s25"); a(f"v_mov_b32 v15, {LDS_SCR}")
        a("ds_write_b32 v15, v14")
    def flush():
        L, L2 = a.newlabel("Fl"), a.newlabel("Fl")
        run_epi()
        a(f"s_cmp_eq_u32 s{S_PVAL}, 0"); a(f"s_cbranch_scc1 {L}")
        finish(a, S_POFF, f"s{S_PVAL}")
        a(f"s_mov_b32 s{S_PVAL}, 0")
        a.label(L)
    def hook_first():
        L = a.newlabel("Hf")
        a(f"s_cmp_eq_u32 s{S_PVAL}, 0"); a(f"s_cbranch_scc1 {L}")
        a(f"s_mov_b32 s21, s{S_PVAL}"); a(f"s_mov_b32 s{S_PVAL}, 0")
        a(f"s_cmp_lg_u32 s{S_WAVE}, 0"); a(f"s_cbranch_scc1 {L}")
        signal(a, S_POFF, "s21", vtmp=14)
        a.label(L)
    def hook_tail():
        L = a.newlabel("Ht")
        a(f"s_cmp_lg_u32 s{S_WAVE}, 0"); a(f"s_cbranch_scc1 {L}")
        a("v_mov_b32 v14, 1")
        a("s_mov_b64 exec, 1")
        a(f"buffer_atomic_add v14, off, {sr(S_FL,4)}, s{S_CTR} sc0 sc1")
        a("s_mov_b64 exec, -1")
        a.label(L)
    def hook_tail_first():
        L = a.newlabel("Ht")
        a(f"s_cmp_lg_u32 s{S_WAVE}, 0"); a(f"s_cbranch_scc1 {L}")
        a(f"s_mov_b32 s25, s{S_LOOP}"); init_wait(a, END); a(f"s_mov_b32 s{S_LOOP}, s25")
        a.label(L)
        hook_tail()
        if LN2:
            load_srd(a, 24, 40, 0, S*DM*2)
            a(f"s_lshl_b32 s21, s{S_ITEM}, 2"); a(f"s_add_u32 s21, s21, s{S_WAVE}"); a("s_mul_i32 s21, s21, 3"); a("s_add_u32 s76, s21, 513")
            a(f"v_lshlrev_b32 v13, 4, v{V_LANE}"); a("s_lshl_b32 s21, s76, 11")
            for k in range(3):
                for h in range(2): a(f"buffer_load_dwordx4 {vr(224+8*k+4*h,4)}, v13, s[24:27], s21 offen offset:{1024*h}")
                a("s_add_u32 s21, s21, 2048")
    def after_main(vm=0):
        L = a.newlabel("Am")
        wstamp(a, 2)
        a(f"s_cmp_lg_u32 s{S_WAVE}, 0"); a(f"s_cbranch_scc1 {L}")
        a(f"s_waitcnt vmcnt({vm})")
        a("v_readfirstlane_b32 s25, v14")
        a("s_nop 3")
        q1_index()
        a(f"s_cselect_b32 s{S_PRE}, 1, 0"); a(f"s_cselect_b32 s{S_PH}, 1, 2")
        publish_item()
        a.label(L)
    HK = dict(hook_second=hook_first, hook_tail=hook_tail) if ROT else dict(hook_first=hook_first, hook_tail=hook_tail)
    Lft = a.newlabel("Ft")
    a(f"s_cmp_eq_u32 s{S_PH}, 2"); a(f"s_cbranch_scc1 {Lft}")
    a(f"s_cmp_lg_u32 s{S_WAVE}, 0"); a(f"s_cbranch_scc1 {Lft}")
    a(f"s_sub_u32 s25, s34, s{S_T0}")
    q1_index()
    publish_item()
    a(f"s_mov_b32 s{S_PRE}, 1")
    a.label(Lft)
    a.label("L_next")
    wstamp(a, 0)
    Lb, Lpub, L1, L2 = [a.newlabel("N") for _ in range(4)]
    a(f"s_cmp_lg_u32 s{S_WAVE}, 0"); a(f"s_cbranch_scc1 {Lb}")
    a(f"s_cmp_lg_u32 s{S_PRE}, 0"); a(f"s_mov_b32 s{S_PRE}, 0"); a(f"s_cbranch_scc1 {Lb}")
    a(f"s_cmp_eq_u32 s{S_PH}, 2"); a(f"s_cbranch_scc1 {L2}")
    a.label(L1)
    atomic_ret(a, 4, S_CTR, 1)
    a("v_readfirstlane_b32 s25, v4")
    a("s_nop 3")
    q1_index()
    a(f"s_cbranch_scc1 {Lpub}")
    a(f"s_mov_b32 s{S_PH}, 2")
    a.label(L2)
    a(f"s_mov_b32 s20, {FL_Q2G}")
    atomic_ret(a, 4, 20, 1)
    a("v_readfirstlane_b32 s25, v4")
    a("s_nop 3")
    a("s_min_u32 s25, s25, 0xfff"); a("s_add_u32 s25, s25, 0x1000")
    a.label(Lpub)
    publish_item()
    a.label(Lb)
    a("s_waitcnt lgkmcnt(0)")
    a("s_barrier")
    a(f"v_mov_b32 v5, {LDS_SCR}")
    a("ds_read_b32 v4, v5")
    a("s_waitcnt lgkmcnt(0)")
    a(f"v_readfirstlane_b32 s{S_ITEM}, v4")
    a("s_nop 3")
    a(f"s_cmp_ge_u32 s{S_ITEM}, 0x1000"); a(f"s_cbranch_scc1 L_qa")
    a(f"s_lshr_b32 s20, s{S_ITEM}, 3"); a(f"s_and_b32 s21, s{S_ITEM}, 7")
    base = 0
    for typ, p, c0, n in Q1:
        Ln = a.newlabel("D")
        a(f"s_cmp_ge_u32 s20, {base+n}"); a(f"s_cbranch_scc1 {Ln}")
        a(f"s_sub_u32 s20, s20, {base-c0}") if base >= c0 else a(f"s_add_u32 s20, s20, {c0-base}")
        if typ in ("DN", "W2", "W1"): a("s_mov_b32 s36, s20"); a("s_mov_b32 s37, s21")
        elif typ == "WR": a("s_lshl_b32 s37, s20, 3"); a("s_add_u32 s37, s37, s21")
        elif typ == "KS":
            a("s_lshr_b32 s38, s20, 3"); a("s_add_u32 s38, s38, 1"); a("s_and_b32 s37, s20, 7"); a("s_lshl_b32 s37, s37, 1")
            a("s_lshr_b32 s22, s21, 2"); a("s_add_u32 s37, s37, s22"); a("s_and_b32 s36, s21, 3")
        elif typ in ("K4", "G4"):
            a("s_and_b32 s36, s21, 3"); a(f"s_add_u32 s36, s36, {p}"); a("s_lshr_b32 s21, s21, 2"); a("s_lshl_b32 s37, s20, 1"); a("s_add_u32 s37, s37, s21")
            if typ == "K4": a("s_lshr_b32 s38, s37, 4"); a("s_add_u32 s38, s38, 1"); a("s_and_b32 s37, s37, 15")
        elif typ == "A8": a("s_lshl_b32 s20, s20, 3"); a("s_add_u32 s36, s20, s21")
        elif typ == "G8": a("s_mov_b32 s36, s21"); a("s_mov_b32 s37, s20")
        elif typ == "QA": pass
        elif typ == "K1":
            a("s_and_b32 s38, s20, 1"); a("s_add_u32 s38, s38, 1"); a("s_lshr_b32 s37, s20, 1"); a("s_lshl_b32 s37, s37, 3")
            a("s_add_u32 s37, s37, s21"); a("s_mov_b32 s36, 1")
        else:
            a(f"s_mov_b32 s36, {2*p}")
            if typ == "KV": a("s_and_b32 s38, s20, 1"); a("s_add_u32 s38, s38, 1"); a("s_lshr_b32 s20, s20, 1")
            if typ == "Q": a("s_mov_b32 s38, 0")
        a(f"s_branch L_{dict(KV='QKV', Q='QKV', K1='QKV2', K4='QKV2', G4='GU2', G8='GU2').get(typ, typ)}")
        a.label(Ln)
        base += n
    a(f"s_branch {END}")
    a.label("L_QA")
    a(f"s_cmp_eq_u32 s{S_B}, 4"); a(f"s_cselect_b32 s{S_PH}, 1, 2")
    a("s_barrier")
    a("s_branch L_next")
    def coords():
        a("s_and_b32 s22, s21, 1"); a("s_add_u32 s36, s36, s22")
        a("s_lshr_b32 s21, s21, 1"); a("s_lshl_b32 s37, s20, 2"); a("s_add_u32 s37, s37, s21")
    def done():
        if PROFW:
            wstamp(a, 3)
            a("s_waitcnt lgkmcnt(0)")
            for i in range(4): a(f"v_writelane_b32 v4, s{70+2*i}, {i}")
            a(f"v_writelane_b32 v4, s{S_ITEM}, 4"); a(f"v_writelane_b32 v4, s{S_B}, 5")
            for i in range(5): a(f"v_writelane_b32 v4, s{[24,6,52,54,80][i]}, {8+i}")
            a("s_lshl_b32 s20, s2, 5"); a("s_add_u32 s20, s20, s100"); a("s_lshl_b32 s20, s20, 6"); a(f"s_add_u32 s20, s20, {TSW_OFF}")
            a(f"v_lshlrev_b32 v5, 2, v{V_LANE}")
            a("s_mov_b64 exec, 0xffff")
            a(f"buffer_store_dword v4, v5, {sr(S_FL,4)}, s20 offen")
            a("s_mov_b64 exec, -1")
            a("s_add_u32 s100, s100, 1"); a("s_min_u32 s100, s100, 31")
        if DBG:
            a(f"s_lshr_b32 s26, s{S_ITEM}, 7"); a("s_add_u32 s26, s26, 1"); a(f"s_cmp_ge_u32 s{S_ITEM}, {NQ1}"); a("s_cselect_b32 s26, 9, s26")
            a(f"s_cmp_ge_u32 s{S_ITEM}, 0x1000"); a("s_cselect_b32 s26, 10, s26")
            dbgmax(a, 26)
        a("s_branch L_next")
    a.label("L_QKV")
    coords()
    if LN2:
        Lq = a.newlabel("L2")
        a(f"s_cmp_lg_u32 s{S_B}, 5"); a(f"s_cbranch_scc1 {Lq}")
        a(f"s_mov_b32 s32, {FL_LN2}")
        wait_flags(a, lambda: a("v_mov_b32 v5, 0"), 32, 0xffffffff, 128, END, 1)
        a.label(Lq)
    a.label("L_QKV2")
    wstamp(a, 1)
    load_srd(a, S_SRDX, 66, XN_OFF, S*XN_STR)
    a("s_cmp_eq_u32 s38, 1"); a("s_cselect_b32 s34, s46, s44"); a("s_cselect_b32 s35, s47, s45")
    a("s_cmp_eq_u32 s38, 2"); a("s_cselect_b32 s34, s48, s34"); a("s_cselect_b32 s35, s49, s35")
    load_srd(a, S_SRDW, 34, 0, DM*4096*2)
    gq = Gemm16(a, "qk", XN_STR, 8192, "head", xflags="sc1") if M16 else Gemm(a, "qk", 4, 4, 2, XN_STR, 8192, "head", xflags="sc1")
    gv = Gemm16(a, "v", XN_STR, 8192, "head", swap=True, xflags="sc1") if M16 else Gemm(a, "v", 4, 4, 2, XN_STR, 8192, "head", swap=True, xflags="sc1")
    gq.setup()
    a(f"s_mul_i32 s{S_OFFX}, s36, {256*XN_STR}"); a(f"s_lshl_b32 s{S_OFFW}, s37, 9")
    assert K_OFF == Q_OFF + 16*MB and VT_OFF == Q_OFF + 32*MB
    gq.prologue_dma()
    run_epi()
    gq.junk = gv.junk = (LDS_SCR+1024, 13, [24, 28, 84][:NJUNK], 79) if NJUNK else None
    for r, p in ((24, 56), (28, 58), (84, 60)): load_srd(a, r, p, 0, DM*DF*2)
    a(f"s_sub_u32 s79, s{S_ITEM}, 128"); a("s_cmp_lt_u32 s79, 128")
    for r in (24, 28, 84): a(f"s_cselect_b32 s{r+2}, s{r+2}, 0")
    a("s_cselect_b32 s79, s79, 0")
    a("s_lshl_b32 s79, s79, 2"); a(f"s_add_u32 s79, s79, s{S_WAVE}"); a(f"s_mul_i32 s79, s79, {14*1024}")
    a(f"v_lshlrev_b32 v13, 4, v{V_LANE}")
    a("s_cmp_eq_u32 s38, 2"); a("s_cbranch_scc1 L_V")
    gq.main(16, dma_issued=True, **HK)
    a(f"s_mov_b32 s{S_EPI}, 1")
    a("s_branch L_QKVfin")
    a.label("L_V")
    gv.main(16, dma_issued=True, **HK)
    a(f"s_mov_b32 s{S_EPI}, 2")
    a.label("L_QKVfin")
    after_main()
    a("s_lshl_b32 s32, s36, 21"); a("s_lshl_b32 s33, s37, 14"); a("s_add_u32 s32, s32, s33")
    a("s_lshl_b32 s33, s38, 24"); a("s_add_u32 s32, s32, s33"); a(f"s_add_u32 s{S_EP0}, s32, {Q_OFF}")
    a("s_lshl_b32 s32, s36, 10"); a("s_lshl_b32 s33, s37, 6"); a("s_add_u32 s32, s32, s33"); a(f"s_add_u32 s32, s32, {FL_QKV}")
    a("s_add_u32 s33, s38, 2"); a("s_cmp_ge_u32 s33, 3"); a("s_cselect_b32 s34, 3, 0"); a("s_sub_u32 s33, s33, s34")
    a("s_lshl_b32 s33, s33, 3"); a(f"s_lshl_b32 s{S_PVAL}, 4, s33"); a(f"s_mov_b32 s{S_POFF}, s32")
    if not ROT: run_epi()
    done()
    gQ, gV = gq, gv
    a.label("L_KS")
    wstamp(a, 1)
    load_srd(a, S_SRDX, 66, XN_OFF, S*XN_STR)
    a("s_cmp_eq_u32 s38, 2"); a("s_cselect_b32 s34, s48, s46"); a("s_cselect_b32 s35, s49, s47")
    load_srd(a, S_SRDW, 34, 0, DM*4096*2)
    gq = Gemm(a, "ks", 1, 4, 3, XN_STR, 8192, "head", xflags="sc1")
    gv = Gemm(a, "vs", 1, 4, 3, XN_STR, 8192, "head", swap=True, xflags="sc1")
    gq.setup()
    a(f"s_mul_i32 s{S_OFFX}, s36, {64*XN_STR}"); a(f"s_lshl_b32 s{S_OFFW}, s37, 9")
    if KROT:
        gq.wrap = gv.wrap = 84
        a("s_lshl_b32 s21, s36, 9"); a(f"s_add_u32 s{S_OFFX}, s{S_OFFX}, s21"); a("s_lshl_b32 s21, s36, 21"); a(f"s_add_u32 s{S_OFFW}, s{S_OFFW}, s21")
        a("s_lshl_b32 s21, s36, 2"); a("s_sub_u32 s84, 16, s21"); a("s_movk_i32 s87, 128")
    a("s_lshl_b32 s32, s36, 19"); a("s_lshl_b32 s33, s37, 14"); a("s_add_u32 s32, s32, s33")
    a("s_lshl_b32 s33, s38, 24"); a("s_add_u32 s32, s32, s33"); a(f"s_add_u32 s32, s32, {Q_OFF}")
    gq.prologue_dma()
    a("s_cmp_eq_u32 s38, 2"); a("s_cbranch_scc1 L_VS")
    gq.main(16, dma_issued=True, hook_tail=hook_tail_first)
    after_main(6 if LN2 else 0)
    gq.epi_qk(S_FL, 32, "sc1")
    a("s_branch L_KSfin")
    a.label("L_VS")
    gv.main(16, dma_issued=True, hook_tail=hook_tail_first)
    after_main(6 if LN2 else 0)
    gv.epi_v(S_FL, 32, "sc1")
    a.label("L_KSfin")
    a("s_lshl_b32 s32, s37, 6"); a(f"s_add_u32 s32, s32, {FL_QKV}")
    a("s_sub_u32 s33, s38, 1"); a("s_lshl_b32 s33, s33, 3"); a("s_lshl_b32 s33, 1, s33")
    finish(a, 32, "s33")
    if LN2:
        load_srd(a, 12, 66, XN_OFF, S*XN_STR)
        a("s_mov_b32 s34, s76"); a("s_add_u32 s36, s76, 1"); a("s_add_u32 s32, s76, 2")
        emit_ln_multi(a, 12, [34, 36, 32], 13, 224, 64, "sc1", 1, st=40)
        a(f"s_mov_b32 s32, {FL_LN2}")
        finish(a, 32, 1)
        wait_flags(a, lambda: a("v_mov_b32 v5, 0"), 32, 0xffffffff, 128, END, 1, sleep=4)
    done()
    a.label("L_GU")
    coords()
    a.label("L_GU2")
    wstamp(a, 1)
    g = Gemm16(a, "gu", XN_STR, DF*2, "gu", xflags="sc1") if M16 else Gemm(a, "gu", 4, 4, 2, XN_STR, DF*2, "gu", xflags="sc1")
    load_srd(a, S_SRDX, 66, XN_OFF, S*XN_STR)
    a(f"s_cmp_ge_u32 s{S_WAVE}, 2"); a("s_cselect_b32 s34, s58, s56"); a("s_cselect_b32 s35, s59, s57")
    load_srd(a, S_SRDW, 34, 0, DM*DF*2)
    g.setup()
    a(f"s_mul_i32 s{S_OFFX}, s36, {256*XN_STR}"); a(f"s_lshl_b32 s{S_OFFW}, s37, 8")
    g.prologue_dma()
    run_epi()
    if GJUNK:
        g.junk = (LDS_SCR+1024, 13, [24, 84][2-GJUNK:], 79)
        load_srd(a, 24, 44, 0, DM*4096*2); load_srd(a, 84, 50, 0, DM*4096*2)
        a(f"s_sub_u32 s79, s{S_ITEM}, 256"); a("s_cmp_lt_u32 s79, 128"); a("s_cselect_b32 s86, s86, 0"); a("s_cselect_b32 s26, s26, 0"); a("s_cselect_b32 s79, s79, 0")
        a("s_lshl_b32 s79, s79, 2"); a(f"s_add_u32 s79, s79, s{S_WAVE}"); a("s_lshl_b32 s79, s79, 14")
        a(f"v_lshlrev_b32 v13, 4, v{V_LANE}")
        L2 = a.newlabel("Gj")
        a("s_cmp_eq_u32 s26, 0"); a(f"s_cbranch_scc1 {L2}")
        a(f"s_mov_b32 m0, {LDS_SCR+1024}")
        for k in range(2):
            for r in [24, 84][2-GJUNK:]: a(f"buffer_load_dwordx4 v13, {sr(r,4)}, s79 offen lds")
            a("s_add_u32 s79, s79, 1024")
        a.label(L2)
    g.main(16, dma_issued=True, **HK)
    after_main()
    a(f"s_mul_i32 s32, s36, {256*H_STR}"); a("s_lshl_b32 s33, s37, 10"); a("s_add_u32 s32, s32, s33"); a(f"s_add_u32 s{S_EP0}, s32, {H_OFF}")
    a(f"s_mov_b32 s{S_EPI}, 3")
    a(f"s_lshl_b32 s{S_POFF}, s36, 7"); a(f"s_add_u32 s{S_POFF}, s{S_POFF}, {FL_GU}"); a(f"s_mov_b32 s{S_PVAL}, 1")
    if not ROT: run_epi()
    done()
    a.label("L_epi")
    a(f"s_cmp_eq_u32 s{S_EPI}, 0"); a("s_cbranch_scc1 L_epi_ret")
    a(f"s_cmp_eq_u32 s{S_EPI}, 2"); a("s_cbranch_scc1 L_epi2")
    a(f"s_cmp_eq_u32 s{S_EPI}, 3"); a("s_cbranch_scc1 L_epi3")
    gQ.epi_qk(S_FL, S_EP0, "sc1")
    a("s_branch L_epi_end")
    a.label("L_epi2")
    gV.epi_v(S_FL, S_EP0, "sc1")
    a("s_branch L_epi_end")
    a.label("L_epi3")
    g.epi_gu(S_FL, S_EP0, "sc1")
    a.label("L_epi_end")
    a(f"s_mov_b32 s{S_EPI}, 0")
    a.label("L_epi_ret")
    a(f"s_setpc_b64 s[{S_RET}:{S_RET+1}]")
    a.label("L_DN")
    flush()
    a("s_lshl_b32 s32, s36, 7"); a(f"s_add_u32 s32, s32, {FL_GU}")
    wait_flags(a, lambda: a("v_mov_b32 v5, 0"), 32, 0xffffffff, 28, END, 1)
    wstamp(a, 1)
    g = Gemm16N(a, "dn", 4, 3, H_STR, 2048, xflags="sc1", wperm=M16) if N16 else Gemm(a, "dn", 4, 2, 3, H_STR, 2048, "plain", xflags="sc1", xr4=True, wperm=M16)
    load_srd(a, S_SRDX, 66, H_OFF, S*H_STR)
    load_srd(a, S_SRDW, 60, 0, DF*DM*2)
    g.setup()
    a(f"s_mul_i32 s{S_OFFX}, s36, {256*H_STR}"); a(f"s_lshl_b32 s{S_OFFW}, s37, 8")
    g.main(56, hook_tail=hook_tail)
    after_main()
    load_srd(a, 28, 66, BP_OFF, S*DM*2)
    a("s_lshl_b32 s32, s36, 19"); a("s_lshl_b32 s33, s37, 8")
    g.epi_plain(28, 32, 33, "sc1")
    a("s_lshl_b32 s32, s36, 3"); a("s_add_u32 s32, s32, s37"); a("s_lshl_b32 s32, s32, 6"); a(f"s_add_u32 s{S_POFF}, s32, {FL_DN}")
    a(f"s_mov_b32 s{S_PVAL}, 1")
    done()
    for nm, MT, NST in (("W2", 4, 3), ("W1", 2, 4)):
        a.label(f"L_{nm}")
        flush()
        sh = 0 if MT == 4 else 1
        a(f"s_lshl_b32 s32, s36, {8-sh}"); a(f"s_add_u32 s32, s32, {FL_AT}")
        if MT == 4: wait_flags(a, lambda: (a(f"v_and_b32 v5, 1, v{V_LANE}"), a("v_lshlrev_b32 v5, 7, v5")), 32, 0xffffffff, 128, END, 2)
        else: wait_flags(a, lambda: a("v_mov_b32 v5, 0"), 32, 0xffffffff, 128, END, 1)
        wstamp(a, 1)
        g = Gemm16N(a, nm, MT, NST, OA_STR, 2048, xflags="sc1") if (N16 and (MT == 4 or N16 > 1)) else Gemm(a, nm, MT, 2, NST, OA_STR, 2048, "plain", xflags="sc1", xr4=True, wperm=True)
        load_srd(a, S_SRDX, 66, OA_OFF, S*OA_STR)
        load_srd(a, S_SRDW, 50, 0, 4096*DM*2)
        g.setup()
        a(f"s_mul_i32 s{S_OFFX}, s36, {64*MT*OA_STR}"); a(f"s_lshl_b32 s{S_OFFW}, s37, 8")
        g.main(64, hook_tail=hook_tail)
        after_main()
        a(f"s_lshr_b32 s32, s36, {sh}"); a("s_lshl_b32 s32, s32, 3"); a("s_add_u32 s32, s32, s37"); a("s_lshl_b32 s32, s32, 6"); a(f"s_add_u32 s32, s32, {FL_DN}")
        wait_flags(a, lambda: a("v_mov_b32 v5, 0"), 32, 0xffffffff, 1, END, 1)
        load_srd(a, 28, 62, 0, S*DM*2)
        load_srd(a, S_SRDX, 40, 0, S*DM*2)
        load_srd(a, S_SRDW, 66, BP_OFF, S*DM*2)
        a(f"s_lshl_b32 s32, s36, {19-sh}"); a("s_lshl_b32 s33, s37, 8")
        g.epi_plain(28, 32, 33, OUTF, final=(S_SRDX, S_SRDW, "sc1"))
        done()
    a.label("L_WR")
    flush()
    wor_item(a, END)
    done()
    a.label("L_qa")
    flush()
    a(f"s_sub_u32 s20, s{S_ITEM}, 0x1000")
    a(f"s_cmp_ge_u32 s20, {NQA-QASKIP}"); a(f"s_cbranch_scc1 {END}")
    Lq = a.newlabel("Px")
    a("s_cmp_ge_u32 s20, 32"); a(f"s_cbranch_scc1 {Lq}")
    for i in range(4): a(f"v_mov_b32 v{4+i}, -1")
    a(f"v_lshlrev_b32 v3, 4, v{V_LANE}"); a("s_lshl_b32 s21, s20, 16"); a(f"s_lshl_b32 s22, s{S_WAVE}, 14"); a("s_add_u32 s21, s21, s22"); a(f"s_add_u32 s21, s21, {EX_OFF}")
    for i in range(16):
        a(f"buffer_store_dwordx4 v[4:7], v3, {sr(S_FL,4)}, s21 offen offset:{(i%4)*1024} sc1")
        if i % 4 == 3: a("s_add_u32 s21, s21, 4096")
    a(f"s_mov_b32 s36, {FL_EX}")
    wstamp(a, 1)
    finish(a, 36, 1)
    a(f"s_mov_b32 m0, {LDS_SCR+1024}"); a("s_lshl_b32 s21, s20, 2"); a(f"s_add_u32 s21, s21, s{S_WAVE}")
    for p, size in PFLIST:
        n = size//(128*1024)
        load_srd(a, 28, p, 0, size)
        a(f"s_mul_i32 s22, s21, {n*1024}"); a(f"s_mov_b32 s23, {n//4}")
        Ll = a.newlabel("Pf")
        a.label(Ll)
        for i in range(4): a(f"buffer_load_dwordx4 v3, s[28:31], s22 offen lds"); a("s_add_u32 s22, s22, 1024")
        a(f"s_waitcnt vmcnt({PFDEPTH})")
        a("s_sub_u32 s23, s23, 1"); a("s_cmp_lg_u32 s23, 0"); a(f"s_cbranch_scc1 {Ll}")
    wstamp(a, 2)
    done()
    a.label(Lq)
    a("s_sub_u32 s20, s20, 32")
    if QAORD:
        pos = 0; Lo = a.newlabel("Qo")
        for first, n in QAORD:
            Ln = a.newlabel("Qo")
            a(f"s_cmp_ge_u32 s20, {pos+n}"); a(f"s_cbranch_scc1 {Ln}")
            a(f"s_add_u32 s20, s20, {(first-pos) & 0xffffffff:#x}"); a(f"s_branch {Lo}")
            a.label(Ln)
            pos += n
        a.label(Lo)
        if not QASKIP: assert sorted(x for f, n in QAORD for x in range(f, f+n)) == list(range(pos))
    a(f"s_cmp_ge_u32 s20, {NBLK*16}"); a("s_cbranch_scc1 L_AT4")
    def attention(npair):
        sh = 0 if npair == 2 else 1
        a("s_lshr_b32 s32, s38, 3"); a("s_lshl_b32 s32, s32, 10"); a(f"s_lshr_b32 s34, s37, {sh}"); a("s_lshl_b32 s33, s34, 8")
        a("s_add_u32 s32, s32, s33"); a(f"s_add_u32 s32, s32, {FL_QKV}")
        wait_flags(a, lambda: (a(f"v_and_b32 v5, 3, v{V_LANE}"), a("v_lshlrev_b32 v5, 6, v5")), 32, 0xffffff, 0x40404, END, 4)
        a("s_lshl_b32 s32, s38, 2"); a("s_add_u32 s32, s32, s34"); a("s_lshl_b32 s32, s32, 7"); a(f"s_add_u32 s32, s32, {FL_STEP}")
        def w():
            if SLOW1:
                a("s_cmp_eq_u32 s38, 0"); a("s_cselect_b32 s33, 0, 512"); a("s_sub_u32 s33, s32, s33")
                wait_flags(a, lambda: a("v_mov_b32 v15, 0"), 33, 0xffffffff, 48, END, 1, 14, 15, SLOW1, barrier=False)
            wait_flags(a, lambda: a("v_mov_b32 v15, 0"), 32, 0xffffffff, 48, END, 1, 14, 15, FAST1)
            if PROFW: a("s_memrealtime s[84:85]")
        att_item(a, S_FL, 38, 37, "sc1", "sc1", npair, w, late=(npair == 1))
        if PROFW: a("s_waitcnt lgkmcnt(0)"); a("s_mov_b32 s72, s84"); a("s_mov_b32 s74, s84")
        finish(a, 36, 4*npair)
        done()
    a("s_branch L_AT8")
    a.label("L_A8")
    flush()
    a("s_mov_b32 s20, s36")
    a.label("L_AT8")
    a("s_lshr_b32 s38, s20, 2"); a("s_and_b32 s37, s20, 3")
    a("s_lshr_b32 s36, s20, 4"); a("s_lshl_b32 s36, s36, 7"); a(f"s_add_u32 s36, s36, {FL_AT}")
    attention(2)
    a.label("L_AT4")
    a(f"s_sub_u32 s20, s20, {NBLK*16}"); a("s_lshr_b32 s38, s20, 3"); a("s_and_b32 s37, s20, 7")
    a("s_lshl_b32 s36, s38, 7"); a("s_lshr_b32 s21, s37, 2"); a("s_lshl_b32 s21, s21, 6"); a("s_add_u32 s36, s36, s21")
    a(f"s_add_u32 s36, s36, {FL_ATS}"); a(f"s_add_u32 s38, s38, {4*NBLK}")
    attention(1)

def build(path, prof=False, profw=False, force_slow=False, header=""):
    global PROFW
    chain.PROF = prof; PROFW = profw
    a = Asm()
    if header: a.raw(header)
    a.raw("; @launch grid=(256,1,1) block=(256,1,1) lds=163840")
    a.raw('.amdgcn_target "amdgcn-amd-amdhsa--gfx950"')
    a.raw(".text")
    emit_mega(a, MAIN, force_slow)
    a.raw('.section .rodata,"a"')
    kernel_desc(a, MAIN, 512, 256)
    open(path, "w").write(a.text())

if __name__ == "__main__":
    build("parallel_sum__memory_aug_recurrent_mem_tr__glu_gated_geglu__prompt.s", header=open("header.txt").read())
    build("m1.s")
    build("m1_prof.s", prof=True, profw=True)
    L0, S0 = LISTS, SMALL
    H = open("header.txt").read()
    chain.FORCE_FALLBACK = True
    build("m1_fb.s")
```
